```python
import torch

def _softmax(x, axis=-1):
    return torch.softmax(x, dim=axis)
def _gelu(x):
    return torch.nn.functional.gelu(x, approximate="tanh")
def _silu(x):
    return torch.nn.functional.silu(x)
def _sigmoid(x):
    return torch.sigmoid(x)
def _layernorm(x, axis=-1, eps=1e-5):
    m = x.mean(dim=axis, keepdim=True)
    v = x.var(dim=axis, keepdim=True, unbiased=False)
    return (x - m) / torch.sqrt(v + eps)
def _scatter_add(tgt, idx, src, axis=0):
    return tgt.clone().index_add_(axis, idx, src)
def _segment_sum(src, seg, n):
    out = torch.zeros((n,) + src.shape[1:], dtype=src.dtype)
    return out.index_add_(0, seg, src)
def _pad(x, pw):
    flat = tuple(v for pair in reversed(pw) for v in pair)
    return torch.nn.functional.pad(x, flat)

kernel_name = 'standalone__moe_arch_mod__sampling'

def setup_inputs():

    _w = (lambda a: (lambda t: t.to(torch.bfloat16) if t.is_floating_point() else t)(torch.as_tensor(a)))
    B, S, D, F, C = 8, 32, 1024, 3584, 1
    return {
        "x": _w((lambda *s: torch.randn(*s, dtype=torch.bfloat16) * 0.1)(B, S, D)),
        "w_r": _w((lambda *s: torch.randn(*s, dtype=torch.bfloat16) * 0.1)(D)),
        "w_gate": _w((lambda *s: torch.randn(*s, dtype=torch.bfloat16) * 0.1)(D, F)),
        "w_up": _w((lambda *s: torch.randn(*s, dtype=torch.bfloat16) * 0.1)(D, F)),
        "w_down": _w((lambda *s: torch.randn(*s, dtype=torch.bfloat16) * 0.1)(F, D)),
    }

def reference(x, w_r, w_gate, w_up, w_down):
    B, S, D = x.shape
    C = 1
    r = x @ w_r
    idx = torch.argsort(-r, axis=-1)[:, :C]
    idx_e = (lambda x, n, axis: torch.repeat_interleave(x, n, dim=axis))(idx.reshape(B, C, 1), D, axis=2)
    x_sel = (lambda x, i, axis: torch.take_along_dim(x, i, dim=axis))(x, idx_e, axis=1)
    g = _silu(x_sel @ w_gate)
    u = x_sel @ w_up
    y = (g * u) @ w_down
    r_sel = _sigmoid((lambda x, i, axis: torch.take_along_dim(x, i, dim=axis))(r, idx, axis=1))
    y = y * r_sel.reshape(B, C, 1)
    b_off = (torch.arange(B) * S).reshape(B, 1)
    flat_idx = (idx + b_off).reshape(B * C)
    zero = (x * 0.0).reshape(B * S, D)
    upd = _scatter_add(zero, flat_idx, y.reshape(B * C, D), axis=0)
    return x + upd.reshape(B, S, D)
```

```python
import sys
KN = "standalone__moe_arch_mod__sampling_kernel"
HEAD = open("standalone__moe_arch_mod__sampling.s.ref").read().split("; Override launch")[0]

O_IDX = 0x1000
O_EX1 = 0x10000
O_EX1F = 0x90000
O_EX2 = 0x200000
WS_REC = 0x400000
L_XS = 0
L_RED = 8192
L_HB = 16384
L_KEY = 17408
LDS_BYTES = 17408 + 64
SPIN = 40000

def gen(pol="nt", xpol="", D1=10, K0=12, stamps=False, outpol="", fast=False):
    L = []
    def A(s): L.append("  " + s)
    def LB(s): L.append(s + ":")
    nst = [0]
    def stamp(i):
        if stamps: A(f"s_memrealtime s[{60+2*i}:{61+2*i}]")
    pol = (" " + pol) if pol else ""
    xpol = (" " + xpol) if xpol else ""
    outpol = (" " + outpol) if outpol else ""

    stamp(0)
    A("s_cmp_ge_u32 s2, 256")
    A("s_cbranch_scc1 L_end")
    A("s_load_dwordx16 s[4:19], s[0:1], 0")
    A("v_lshrrev_b32 v1, 6, v0")
    A("v_and_b32 v0, 63, v0                 ; lane")
    A("v_readfirstlane_b32 s3, v1           ; wave")
    if stamps:
        for i in range(1, 8): A(f"s_mov_b32 s{60+2*i}, 0")
        A("s_mov_b32 s49, 0")
        A("s_mov_b32 s55, s3")
    A("s_and_b32 s22, s2, 7")
    A("s_lshr_b32 s23, s2, 3                ; j")
    A("s_cmp_ge_u32 s23, 28")
    A("s_cbranch_scc1 L_router")
    A("s_mul_i32 s20, s22, 7")
    A("s_lshr_b32 s21, s23, 2")
    A("s_add_u32 s20, s20, s21              ; ct")
    A("s_and_b32 s21, s23, 3                ; q")
    A("s_mov_b32 s42, 0x05040100")
    A("s_mov_b32 s43, 0x07060302")
    A("s_mov_b32 s26, 7340032")
    A("s_mov_b32 s27, 0x20000")
    A("s_mov_b32 s34, %d" % WS_REC)
    A("s_mov_b32 s35, 0x20000")
    A("v_lshrrev_b32 v1, 4, v0              ; g")
    A("v_and_b32 v2, 15, v0                 ; n")
    A("s_cmp_ge_u32 s3, 4")
    A("s_cbranch_scc1 L_p2")

    RAW = 16
    FR = 80
    XB = 96
    ACC = 112
    def raw(s, i): return RAW + 16*s + 2*i
    def frag(s, j): return (FR if s == 0 else RAW + 16*(s-1)) + 4*j
    A("v_mul_u32_u24 v3, %d, v1" % (8*7168))
    A("v_lshl_add_u32 v3, v2, 3, v3         ; voffset")
    A("s_lshr_b32 s44, s21, 1               ; khalf")
    A("s_lshl_b32 s44, s44, 2")
    A("s_add_u32 s44, s44, s3")
    A("s_mul_i32 s44, s44, %d" % (128*7168))
    A("s_lshl_b32 s45, s20, 7")
    A("s_add_u32 s44, s44, s45              ; soffset")
    A("s_bitcmp1_b32 s21, 0")
    A("s_waitcnt lgkmcnt(0)")
    A("s_cselect_b32 s24, s10, s8")
    A("s_cselect_b32 s25, s11, s9")
    stamp(1)
    def perms(s):
        for p in range(4):
            for e in range(2):
                A(f"v_perm_b32 v{frag(s,2*e)+p}, v{raw(s,2*p+1)+e}, v{raw(s,2*p)+e}, s42")
                A(f"v_perm_b32 v{frag(s,2*e+1)+p}, v{raw(s,2*p+1)+e}, v{raw(s,2*p)+e}, s43")
    done = 0
    for n in range(32):
        s, i = divmod(n, 8)
        if n >= D1: A(f"s_waitcnt vmcnt({D1-1})")
        A(f"buffer_load_dwordx2 v[{raw(s,i)}:{raw(s,i)+1}], v3, s[24:27], s44 offen{pol}")
        if n < 31: A("s_add_u32 s44, s44, %d" % (7168 if i < 7 else 25*7168))
        if n == 0:
            A("s_load_dword s40, s[18:19], 0        ; epoch")
            A("s_mov_b32 s32, s18")
            A("s_mov_b32 s33, s19")
        if n == K0:
            A("s_barrier                            ; B0")
        complete = n - D1 + 1 if n >= D1 else 0
        while done < 4 and 8*done + 8 <= complete and n < 31:
            perms(done); done += 1
    stamp(2)
    A("s_barrier                            ; B1")
    A("v_and_b32 v4, 7, v0")
    A("v_lshl_add_u32 v4, v1, 3, v4         ; g*8+(t&7)")
    A("v_lshlrev_b32 v4, 4, v4")
    A("s_lshl_b32 s45, s3, 11")
    A("v_add_u32 v5, s45, v4")
    A("v_lshlrev_b32 v6, 3, v0              ; lane*8")
    A("s_lshl_b32 s45, s3, 9")
    A("v_add_u32 v6, s45, v6                ; w*512 + lane*8")
    while done < 4:
        A(f"s_waitcnt vmcnt({32 - 8*done - 8})")
        perms(done); done += 1
    A("s_waitcnt lgkmcnt(0)")
    A("s_add_u32 s40, s40, 1                ; tag32")
    A("s_and_b32 s41, s40, 0xff")
    stamp(3)
    A("s_barrier                            ; B2")
    for s in range(4):
        A(f"ds_read_b128 v[{XB+4*s}:{XB+4*s+3}], v5 offset:{L_XS + 512*s}")
    for s in range(4):
        A(f"s_waitcnt lgkmcnt({3-s})")
        for j in range(4):
            c = "0" if s == 0 else f"v[{ACC+4*j}:{ACC+4*j+3}]"
            A(f"v_mfma_f32_16x16x32_bf16 v[{ACC+4*j}:{ACC+4*j+3}], v[{frag(s,j)}:{frag(s,j)+3}], v[{XB+4*s}:{XB+4*s+3}], {c}")
    A("s_mov_b32 exec_lo, 0x00ff00ff")
    A("s_mov_b32 exec_hi, 0x00ff00ff")
    A("s_nop 2")
    for j in range(4):
        A(f"ds_write_b128 v5, v[{ACC+4*j}:{ACC+4*j+3}] offset:{L_RED + 512*j}")
    A("s_mov_b64 exec, -1")
    A("s_waitcnt lgkmcnt(0)")
    A("s_barrier                            ; B3")
    for w in range(4):
        A(f"ds_read_b64 v[{16+2*w}:{17+2*w}], v6 offset:{L_RED + 2048*w}")
    A("s_lshl_b32 s45, s20, 2")
    A("s_add_u32 s46, s45, s21")
    A("s_lshl_b32 s46, s46, 11")
    A("s_lshl_b32 s45, s45, 11")
    A("s_add_u32 s46, s46, %d" % O_EX1)
    A("s_add_u32 s45, s45, %d" % O_EX1)
    A("s_add_u32 s47, s45, 4096")
    A("s_mov_b32 s48, 0xffffff00")
    A("s_mov_b32 s49, 0")
    A("s_waitcnt lgkmcnt(2)")
    A("v_pk_add_f32 v[16:17], v[16:17], v[18:19]")
    A("s_waitcnt lgkmcnt(0)")
    A("v_pk_add_f32 v[20:21], v[20:21], v[22:23]")
    A("v_mov_b32 v7, s41")
    A("v_pk_add_f32 v[16:17], v[16:17], v[20:21]")
    A("s_nop 0")
    A("v_and_or_b32 v16, v16, s48, v7")
    A("v_and_or_b32 v17, v17, s48, v7")
    A("buffer_store_dwordx2 v[16:17], v6, s[32:35], s46 offen sc1")
    stamp(4)
    A("s_waitcnt vmcnt(0)")
    LB("L_x1poll")
    A("buffer_load_dwordx2 v[24:25], v6, s[32:35], s45 offen sc1")
    A("buffer_load_dwordx2 v[26:27], v6, s[32:35], s45 offen offset:2048 sc1")
    A("buffer_load_dwordx2 v[28:29], v6, s[32:35], s47 offen sc1")
    A("buffer_load_dwordx2 v[30:31], v6, s[32:35], s47 offen offset:2048 sc1")
    A("s_add_u32 s49, s49, 1")
    A("s_waitcnt vmcnt(0)")
    for r in range(24, 32): A(f"v_xor_b32 v{r}, s41, v{r}")
    A("v_or3_b32 v8, v24, v25, v26")
    A("v_or3_b32 v9, v27, v28, v29")
    A("v_or3_b32 v8, v8, v30, v31")
    A("v_or_b32 v8, v8, v9")
    A("v_and_b32 v8, 0xff, v8")
    A("v_cmp_ne_u32 vcc, 0, v8")
    A("s_cmp_ge_u32 s49, %d" % SPIN)
    A("s_cbranch_scc1 L_x1ok")
    A("s_cbranch_vccnz L_x1poll")
    LB("L_x1ok")
    stamp(5)
    A("v_pk_add_f32 v[24:25], v[24:25], v[28:29]   ; gate")
    A("v_pk_add_f32 v[26:27], v[26:27], v[30:31]   ; up")
    A("s_mov_b32 s45, 0xbfb8aa3b             ; -log2(e)")
    A("v_cvt_pk_bf16_f32 v8, v24, v25")
    A("v_cvt_pk_bf16_f32 v9, v26, v27")
    A("v_lshlrev_b32 v10, 16, v8")
    A("v_and_b32 v11, 0xffff0000, v8")
    A("v_mul_f32 v12, s45, v10")
    A("v_mul_f32 v13, s45, v11")
    A("v_exp_f32 v12, v12")
    A("v_exp_f32 v13, v13")
    A("v_lshlrev_b32 v14, 16, v9")
    A("v_add_f32 v12, 1.0, v12")
    A("v_add_f32 v13, 1.0, v13")
    A("v_rcp_f32 v12, v12")
    A("v_rcp_f32 v13, v13")
    A("v_and_b32 v15, 0xffff0000, v9")
    A("v_mul_f32 v10, v10, v12")
    A("v_mul_f32 v11, v11, v13")
    A("v_cvt_pk_bf16_f32 v8, v10, v11        ; silu")
    A("v_lshrrev_b32 v12, 1, v0")
    A("v_lshlrev_b32 v10, 16, v8")
    A("v_and_b32 v11, 0xffff0000, v8")
    A("v_lshlrev_b32 v12, 4, v12             ; (g*8+t)*16")
    A("v_and_b32 v13, 1, v0")
    A("v_mul_f32 v10, v10, v14")
    A("v_mul_f32 v11, v11, v15")
    A("v_lshl_add_u32 v12, v13, 2, v12")
    A("s_lshr_b32 s45, s3, 1")
    A("s_lshl_b32 s45, s45, 9")
    A("s_and_b32 s46, s3, 1")
    A("s_lshl_b32 s46, s46, 3")
    A("s_add_u32 s45, s45, s46")
    A("v_cvt_pk_bf16_f32 v8, v10, v11        ; h")
    A("v_add_u32 v12, s45, v12")
    A(f"ds_write_b32 v12, v8 offset:{L_HB}")
    A("s_waitcnt lgkmcnt(0)")
    A("s_barrier                            ; B4")
    stamp(6)
    stamp(7)
    A("s_branch L_fin")

    LB("L_p2")
    RW2 = 16
    FR2 = 48
    HA = 80
    AC2 = 88
    def raw2(s, i): return RW2 + 16*s + 2*i
    def frag2(s, j): return FR2 + 16*s + 4*j
    A("s_sub_u32 s3, s3, 4                  ; w")
    A("v_lshlrev_b32 v3, 15, v1             ; g*16*2048")
    A("v_lshl_add_u32 v3, v2, 3, v3")
    A("s_lshl_b32 s44, s20, 17              ; ct*64*2048")
    A("s_lshl_b32 s45, s21, 9")
    A("s_add_u32 s44, s44, s45")
    A("s_lshl_b32 s45, s3, 7")
    A("s_add_u32 s44, s44, s45")
    A("s_mov_b32 s30, 524288")
    A("s_mov_b32 s31, 0x20000")
    A("s_mov_b32 s38, 524288")
    A("s_mov_b32 s39, 0x20000")
    A("s_waitcnt lgkmcnt(0)")
    stamp(1)
    A("s_load_dword s40, s[18:19], 0        ; epoch")
    A("s_mov_b32 s24, s12")
    A("s_mov_b32 s25, s13")
    A("s_mov_b32 s28, s4")
    A("s_mov_b32 s29, s5")
    A("s_mov_b32 s32, s18")
    A("s_mov_b32 s33, s19")
    A("s_mov_b32 s36, s14")
    A("s_mov_b32 s37, s15")
    A("s_lshl_b32 s50, s20, 2")
    A("s_add_u32 s50, s50, s21")
    A("s_lshl_b32 s45, s22, 2")
    A("s_add_u32 s45, s45, s23")
    A("s_add_u32 s45, s45, 224")
    A("s_cmp_lt_u32 s23, 4")
    A("s_cselect_b32 s45, s45, 256")
    A("s_cmp_eq_u32 s3, 1")
    A("s_cselect_b32 s45, s45, 256")
    A("s_cmp_eq_u32 s3, 0")
    A("s_cselect_b32 s50, s50, s45          ; slice")
    A("v_and_b32 v4, 7, v0")
    A("s_waitcnt lgkmcnt(0)")
    A("s_add_u32 s40, s40, 1")
    A("s_and_b32 s41, s40, 0xff")
    A("s_barrier                            ; B0")
    A("s_cmp_lg_u32 s3, 0")
    A("s_cbranch_scc1 L_p2b1")
    A("v_lshlrev_b32 v5, 7, v4")
    A("s_mov_b32 s49, 0")
    A("s_mov_b32 s45, %d" % O_IDX)
    LB("L_ipoll")
    A("buffer_load_dwordx4 v[8:11], v5, s[32:35], s45 offen sc1")
    A("buffer_load_dwordx4 v[12:15], v5, s[32:35], s45 offen offset:16 sc1")
    A("s_add_u32 s49, s49, 1")
    A("s_waitcnt vmcnt(0)")
    A("v_xor_b32 v9, s40, v9")
    A("v_xor_b32 v11, s40, v11")
    A("v_xor_b32 v13, s40, v13")
    A("v_xor_b32 v15, s40, v15")
    A("v_or3_b32 v9, v9, v11, v13")
    A("v_or_b32 v9, v9, v15")
    A("v_cmp_ne_u32 vcc, 0, v9")
    A("s_cmp_ge_u32 s49, %d" % SPIN)
    A("s_cbranch_scc1 L_iok")
    A("s_cbranch_vccnz L_ipoll")
    LB("L_iok")
    stamp(2)
    A("v_max3_u32 v8, v8, v10, v12")
    A("v_max_u32 v8, v8, v14")
    A("v_lshlrev_b32 v9, 2, v4")
    A("v_and_b32 v10, 31, v8")
    A("v_xor_b32 v10, 31, v10")
    A("v_lshl_add_u32 v10, v4, 5, v10       ; row")
    A("v_lshlrev_b32 v10, 11, v10")
    A("v_lshrrev_b32 v11, 3, v0")
    A("v_lshl_add_u32 v10, v11, 4, v10      ; + chunk*16")
    A("s_lshr_b32 s45, s21, 1")
    A("s_lshl_b32 s45, s45, 10              ; khalf*1024")
    A("s_mov_b32 m0, %d" % L_XS)
    A(f"ds_write_b32 v9, v8 offset:{L_KEY}")
    for i in range(8):
        A(f"buffer_load_dwordx4 v10, s[28:31], s45 offen{xpol} lds")
        if i < 7:
            A("s_add_u32 m0, m0, 1024")
            A("s_add_u32 s45, s45, 128")
    A("s_waitcnt lgkmcnt(0)")
    LB("L_p2b1")
    A("s_barrier                            ; B1")
    for s in range(2):
        for i in range(8):
            p, b = divmod(i, 2)
            row = 2*s + (p >> 1) + 8*(p & 1) + 4*b
            A("s_add_u32 s45, s44, %d" % (row*2048))
            A(f"buffer_load_dwordx2 v[{raw2(s,i)}:{raw2(s,i)+1}], v3, s[24:27], s45 offen{pol}")
    stamp(3)
    A("s_lshr_b32 s51, s50, 5")
    A("s_and_b32 s51, s51, 7               ; token")
    A("s_lshl_b32 s45, s51, 2")
    A("v_mov_b32 v5, s45")
    A(f"ds_read_b32 v6, v5 offset:{L_KEY}")
    A("s_waitcnt vmcnt(16)")
    A("s_barrier                            ; B2")
    A("s_barrier                            ; B3")
    A("v_lshrrev_b32 v7, 5, v0")
    A("v_bfe_u32 v8, v0, 4, 1")
    A("v_lshl_add_u32 v7, v8, 1, v7         ; e")
    A("v_lshl_add_u32 v7, v4, 2, v7         ; 4*pos + e")
    A("s_and_b32 s45, s50, 31")
    A("s_lshl_b32 s45, s45, 5")
    A("v_add_u32 v7, s45, v7                ; column")
    A("s_waitcnt lgkmcnt(0)")
    A("v_and_b32 v8, 31, v6")
    A("v_xor_b32 v8, 31, v8")
    A("s_lshl_b32 s45, s51, 5")
    A("v_add_u32 v8, s45, v8                ; row")
    A("v_lshlrev_b32 v8, 10, v8")
    A("v_add_u32 v7, v8, v7")
    A("v_lshlrev_b32 v7, 1, v7")
    A("buffer_load_ushort v9, v7, s[28:31], 0 offen")
    A("v_lshrrev_b32 v10, 16, v6")
    A("v_xor_b32 v11, 0xffff, v10")
    A("v_and_b32 v12, 0x7fff, v10")
    A("v_cmp_gt_i32 vcc, 0, v6")
    A("s_mov_b32 s45, 0xbfb8aa3b")
    A("s_nop 0")
    A("v_cndmask_b32 v10, v11, v12, vcc")
    A("v_lshlrev_b32 v10, 16, v10           ; r")
    A("v_mul_f32 v10, s45, v10")
    A("v_exp_f32 v10, v10")
    A("s_nop 0")
    A("v_add_f32 v10, 1.0, v10")
    A("v_rcp_f32 v10, v10")
    A("s_nop 0")
    A("v_cvt_pk_bf16_f32 v10, v10, v10")
    A("v_and_b32 v10, 0xffff0000, v10       ; sig")
    A("v_lshrrev_b32 v11, 3, v2             ; n>>3")
    A("v_lshl_add_u32 v11, v1, 7, v11       ; 4g*32 + (n>>3)")
    A("v_mul_u32_u24 v11, 7168, v11")
    A("v_lshl_add_u32 v11, v4, 4, v11       ; + (n&7)*16")
    A("s_lshl_b32 s45, s21, 3")
    A("s_lshl_b32 s46, s3, 1")
    A("s_add_u32 s45, s45, s46")
    A("s_mul_i32 s45, s45, 7168")
    A("s_lshl_b32 s46, s20, 7")
    A("s_add_u32 s45, s45, s46")
    A("s_add_u32 s52, s45, %d" % O_EX2)
    A("s_mul_i32 s53, s50, 7168")
    A("s_add_u32 s53, s53, %d" % O_EX2)
    A("s_add_u32 s54, s53, 4096")
    A("s_mov_b32 s48, 0xffffff00")
    A("v_mov_b32 v12, s41")
    A("v_lshl_add_u32 v13, v1, 3, v4")
    A("v_lshlrev_b32 v13, 4, v13")
    A("v_lshlrev_b32 v14, 4, v0             ; lane*16")
    for s in range(2):
        A(f"s_waitcnt vmcnt({9 - 8*s})")
        for p in range(4):
            for e in range(2):
                A(f"v_perm_b32 v{frag2(s,2*e)+p}, v{raw2(s,2*p+1)+e}, v{raw2(s,2*p)+e}, s42")
                A(f"v_perm_b32 v{frag2(s,2*e+1)+p}, v{raw2(s,2*p+1)+e}, v{raw2(s,2*p)+e}, s43")
    stamp(4)
    A("s_barrier                            ; B4")
    for s in range(2):
        A(f"ds_read_b128 v[{HA+4*s}:{HA+4*s+3}], v13 offset:{L_HB + 512*s}")
    for s in range(2):
        A(f"s_waitcnt lgkmcnt({1-s})")
        for j in range(4):
            c = "0" if s == 0 else f"v[{AC2+4*j}:{AC2+4*j+3}]"
            A(f"v_mfma_f32_16x16x32_bf16 v[{AC2+4*j}:{AC2+4*j+3}], v[{HA+4*s}:{HA+4*s+3}], v[{frag2(s,j)}:{frag2(s,j)+3}], {c}")
    A("s_mov_b32 exec_lo, -1")
    A("s_mov_b32 exec_hi, 0")
    A("s_nop 5")
    for r in range(4):
        for j in range(4):
            A(f"v_and_or_b32 v{16+4*r+j}, v{AC2+4*j+r}, s48, v12")
        A(f"buffer_store_dwordx4 v[{16+4*r}:{19+4*r}], v11, s[32:35], s52 offen sc1")
        if r < 3: A("s_add_u32 s52, s52, %d" % (32*7168))
    A("s_mov_b64 exec, -1")
    stamp(5)
    A("s_cmp_ge_u32 s50, 256")
    A("s_cbranch_scc1 L_fin")
    A("s_mov_b32 s49, 0")
    A("s_waitcnt vmcnt(0)")
    LB("L_x2poll")
    for i in range(7):
        so = "s53" if i < 4 else "s54"
        A(f"buffer_load_dwordx4 v[{32+4*i}:{35+4*i}], v14, s[32:35], {so} offen offset:{(i%4)*1024} sc1")
    A("s_add_u32 s49, s49, 1")
    for i in range(7):
        A(f"s_waitcnt vmcnt({6-i})")
        b = 32 + 4*i
        for r in range(b, b+4): A(f"v_xor_b32 v{r}, s41, v{r}")
        if i == 0:
            A(f"v_or3_b32 v15, v{b}, v{b+1}, v{b+2}")
            A(f"v_or_b32 v15, v15, v{b+3}")
        else:
            A(f"v_or3_b32 v15, v15, v{b}, v{b+1}")
            A(f"v_or3_b32 v15, v15, v{b+2}, v{b+3}")
            src = 32 if i == 1 else 16
            A(f"v_pk_add_f32 v[16:17], v[{src}:{src+1}], v[{b}:{b+1}]")
            A(f"v_pk_add_f32 v[18:19], v[{src+2}:{src+3}], v[{b+2}:{b+3}]")
    A("v_and_b32 v15, 0xff, v15")
    A("v_cmp_ne_u32 vcc, 0, v15")
    A("s_cmp_ge_u32 s49, %d" % SPIN)
    A("s_cbranch_scc1 L_x2ok")
    A("s_cbranch_vccnz L_x2poll")
    LB("L_x2ok")
    stamp(6)
    A("v_permlane32_swap_b32 v16, v17")
    A("v_permlane32_swap_b32 v18, v19")
    A("v_lshlrev_b32 v9, 16, v9             ; x")
    A("v_add_f32 v16, v16, v17")
    A("v_add_f32 v18, v18, v19")
    A("s_nop 1")
    A("v_permlane16_swap_b32 v16, v18")
    A("s_nop 0")
    A("v_add_f32 v16, v16, v18")
    A("s_nop 1")
    A("v_add_f32_dpp v16, v16, v16 row_ror:8 row_mask:0xf bank_mask:0xf")
    A("s_mov_b32 exec_lo, 0x00ff00ff")
    A("s_mov_b32 exec_hi, 0x00ff00ff")
    A("v_cvt_pk_bf16_f32 v16, v16, v16")
    A("v_and_b32 v16, 0xffff0000, v16       ; y")
    A("v_mul_f32 v16, v16, v10")
    A("v_cvt_pk_bf16_f32 v16, v16, v16")
    A("v_and_b32 v16, 0xffff0000, v16       ; y*sig")
    A("v_fma_f32 v16, v9, 0, v16            ; upd = x*0 + y")
    A("v_add_f32 v16, v9, v16")
    A("v_cvt_pk_bf16_f32 v16, v16, v16")
    A(f"buffer_store_short v16, v7, s[36:39], 0 offen{outpol}")
    A("s_mov_b64 exec, -1")
    A("s_cmp_lg_u32 s50, 0")
    A("s_cbranch_scc1 L_noep")
    A("v_mov_b32 v16, s40")
    A("v_mov_b32 v17, 0")
    A("s_mov_b64 exec, 1")
    A("buffer_store_dword v16, v17, s[32:35], 0 offen sc1")
    A("s_mov_b64 exec, -1")
    LB("L_noep")
    stamp(7)
    A("s_branch L_fin")

    LB("L_router")
    A("s_sub_u32 s23, s23, 28               ; quarter")
    A("s_lshl_b32 s20, s23, 3")
    A("s_add_u32 s20, s20, s3")
    A("s_lshl_b32 s21, s22, 5")
    A("s_add_u32 s21, s21, s20              ; row")
    A("s_lshl_b32 s21, s21, 11")
    A("v_lshlrev_b32 v1, 4, v0")
    A("s_mov_b32 s26, 2048")
    A("s_mov_b32 s27, 0x20000")
    A("s_mov_b32 s30, 524288")
    A("s_mov_b32 s31, 0x20000")
    A("s_mov_b32 s34, %d" % WS_REC)
    A("s_mov_b32 s35, 0x20000")
    A("s_mov_b32 s38, 524288")
    A("s_mov_b32 s39, 0x20000")
    A("s_waitcnt lgkmcnt(0)")
    stamp(1)
    A("s_mov_b32 s28, s4")
    A("s_mov_b32 s29, s5")
    A("s_mov_b32 s24, s6")
    A("s_mov_b32 s25, s7")
    A(f"buffer_load_dwordx4 v[8:11], v1, s[28:31], s21 offen{xpol}")
    A(f"buffer_load_dwordx4 v[16:19], v1, s[24:27], 0 offen")
    A(f"buffer_load_dwordx4 v[12:15], v1, s[28:31], s21 offen offset:1024{xpol}")
    A(f"buffer_load_dwordx4 v[20:23], v1, s[24:27], 0 offen offset:1024")
    A("s_load_dword s40, s[18:19], 0        ; epoch")
    A("s_mov_b32 s32, s18")
    A("s_mov_b32 s33, s19")
    A("s_mov_b32 s36, s14")
    A("s_mov_b32 s37, s15")
    A("v_mov_b32 v2, 0")
    A("v_mov_b32 v3, 0")
    A("s_waitcnt vmcnt(2)")
    A("v_dot2_f32_bf16 v2, v8, v16, v2")
    A("v_dot2_f32_bf16 v3, v9, v17, v3")
    A("v_dot2_f32_bf16 v2, v10, v18, v2")
    A("v_dot2_f32_bf16 v3, v11, v19, v3")
    A("s_waitcnt vmcnt(0)")
    A("v_dot2_f32_bf16 v2, v12, v20, v2")
    A("v_dot2_f32_bf16 v3, v13, v21, v3")
    A("v_dot2_f32_bf16 v2, v14, v22, v2")
    A("v_dot2_f32_bf16 v3, v15, v23, v3")
    stamp(2)
    A("s_nop 2")
    A("v_add_f32 v2, v2, v3")
    A("s_nop 1")
    A("v_add_f32_dpp v2, v2, v2 quad_perm:[1,0,3,2] row_mask:0xf bank_mask:0xf")
    A("s_nop 1")
    A("v_add_f32_dpp v2, v2, v2 quad_perm:[2,3,0,1] row_mask:0xf bank_mask:0xf")
    A("s_nop 1")
    A("v_add_f32_dpp v2, v2, v2 row_half_mirror row_mask:0xf bank_mask:0xf")
    A("s_nop 1")
    A("v_add_f32_dpp v2, v2, v2 row_ror:8 row_mask:0xf bank_mask:0xf")
    A("s_nop 0")
    A("v_mov_b32 v3, v2")
    A("s_nop 1")
    A("v_permlane16_swap_b32 v2, v3")
    A("s_nop 0")
    A("v_add_f32 v2, v2, v3")
    A("s_nop 0")
    A("v_mov_b32 v3, v2")
    A("s_nop 1")
    A("v_permlane32_swap_b32 v2, v3")
    A("s_nop 0")
    A("v_add_f32 v2, v2, v3")
    A("v_cvt_pk_bf16_f32 v3, v2, v2")
    A("v_and_b32 v3, 0xffff0000, v3          ; r (bf16)")
    A("v_ashrrev_i32 v4, 31, v3")
    A("v_or_b32 v4, 0x80000000, v4")
    A("v_xor_b32 v4, v4, v3")
    A("v_and_b32 v4, 0xffff0000, v4")
    A("v_cmp_o_f32 vcc, v3, v3")
    A("s_xor_b32 s45, s20, 31")
    A("s_lshl_b32 s46, s3, 2")
    A("v_cndmask_b32 v4, 0, v4, vcc")
    A("v_or_b32 v4, s45, v4")
    A("v_mov_b32 v5, s46")
    A("ds_write_b32 v5, v4")
    A("s_waitcnt lgkmcnt(0)")
    A("s_barrier")
    A("v_mov_b32 v5, 0")
    A("ds_read_b128 v[24:27], v5")
    A("ds_read_b128 v[28:31], v5 offset:16")
    A("s_add_u32 s40, s40, 1")
    A("s_lshl_b32 s45, s22, 7")
    A("s_add_u32 s45, s45, %d" % O_IDX)
    A("s_lshl_b32 s46, s23, 3")
    A("s_add_u32 s46, s46, s45")
    A("v_mov_b32 v7, s40")
    A("s_waitcnt lgkmcnt(0)")
    A("v_max3_u32 v24, v24, v25, v26")
    A("v_max3_u32 v28, v28, v29, v30")
    A("v_max3_u32 v24, v24, v27, v31")
    A("v_max_u32 v6, v24, v28")
    A("s_cmp_lg_u32 s3, 0")
    A("s_cbranch_scc1 L_rnopub")
    A("s_mov_b64 exec, 1")
    A("buffer_store_dwordx2 v[6:7], v5, s[32:35], s46 offen sc1")
    A("s_mov_b64 exec, -1")
    LB("L_rnopub")
    stamp(3)
    for r in range(8, 16):
        A(f"v_lshlrev_b32 v16, 16, v{r}")
        A(f"v_and_b32 v17, 0xffff0000, v{r}")
        A("v_fma_f32 v16, v16, 0, v16")
        A("v_fma_f32 v17, v17, 0, v17")
        A(f"v_cvt_pk_bf16_f32 v{r}, v16, v17")
    A("v_cmp_ne_u32 vcc, v6, v4")
    A("s_cbranch_vccnz L_rstore")
    A("s_mov_b32 s49, 0")
    A("s_waitcnt vmcnt(0)")
    LB("L_rpoll")
    A("buffer_load_dwordx4 v[24:27], v5, s[32:35], s45 offen sc1")
    A("buffer_load_dwordx4 v[28:31], v5, s[32:35], s45 offen offset:16 sc1")
    A("s_add_u32 s49, s49, 1")
    A("s_waitcnt vmcnt(0)")
    A("v_xor_b32 v25, s40, v25")
    A("v_xor_b32 v27, s40, v27")
    A("v_xor_b32 v29, s40, v29")
    A("v_xor_b32 v31, s40, v31")
    A("v_or3_b32 v25, v25, v27, v29")
    A("v_or_b32 v25, v25, v31")
    A("v_cmp_ne_u32 vcc, 0, v25")
    A("s_cmp_ge_u32 s49, %d" % SPIN)
    A("s_cbranch_scc1 L_rok")
    A("s_cbranch_vccnz L_rpoll")
    LB("L_rok")
    A("v_max3_u32 v24, v24, v26, v28")
    A("v_max_u32 v24, v24, v30")
    A("v_cmp_ne_u32 vcc, v24, v4")
    A("s_cbranch_vccz L_rdone")
    LB("L_rstore")
    A(f"buffer_store_dwordx4 v[8:11], v1, s[36:39], s21 offen{outpol}")
    A(f"buffer_store_dwordx4 v[12:15], v1, s[36:39], s21 offen offset:1024{outpol}")
    LB("L_rdone")
    stamp(4); stamp(5); stamp(6); stamp(7)
    LB("L_fin")
    if stamps:
        A("s_waitcnt lgkmcnt(0)")
        A("s_lshl_b32 s20, s55, 8")
        A("s_add_u32 s20, s20, s2")
        A("s_lshl_b32 s20, s20, 6")
        A("s_add_u32 s20, s20, 0x8000000")
        A("s_add_u32 s18, s18, s20")
        A("s_addc_u32 s19, s19, 0")
        for i in range(8): A(f"v_mov_b32 v{16+i}, s{60+2*i}")
        A("v_mov_b32 v24, s49")
        A("v_mov_b32 v3, 0")
        A("s_mov_b64 exec, 1")
        A("global_store_dwordx4 v3, v[16:19], s[18:19]")
        A("global_store_dwordx4 v3, v[20:23], s[18:19] offset:16")
        A("global_store_dword v3, v24, s[18:19] offset:32")
    LB("L_end")
    A("s_endpgm")
    body = "\n".join(L)
    return f"""{HEAD}; @launch grid=(256,1,1) block=(512,1,1) lds={LDS_BYTES}
.amdgcn_target "amdgcn-amd-amdhsa--gfx950"
.text
.globl {KN}
.p2align 8
.type {KN},@function
{KN}:
{body}
.section .rodata,"a"
.p2align 6
.amdhsa_kernel {KN}
  .amdhsa_next_free_vgpr 128
  .amdhsa_next_free_sgpr 96
  .amdhsa_accum_offset 128
  .amdhsa_group_segment_fixed_size 0
  .amdhsa_kernarg_size 64
  .amdhsa_user_sgpr_count 2
  .amdhsa_user_sgpr_kernarg_segment_ptr 1
  .amdhsa_system_sgpr_workgroup_id_x 1
  .amdhsa_float_denorm_mode_32 3
.end_amdhsa_kernel
"""
if __name__ == "__main__":
    import argparse
    ap = argparse.ArgumentParser()
    ap.add_argument("-o", default="standalone__moe_arch_mod__sampling.s")
    ap.add_argument("--pol", default="nt"); ap.add_argument("--xpol", default="")
    ap.add_argument("--D1", type=int, default=10); ap.add_argument("--K0", type=int, default=12)
    ap.add_argument("--stamps", action="store_true"); ap.add_argument("--outpol", default="")
    a = ap.parse_args()
    open(a.o, "w").write(gen(a.pol, a.xpol, a.D1, a.K0, a.stamps, a.outpol))
```

```python
import sys
KN = "standalone__moe_arch_mod__sampling_kernel"
HEAD = open("standalone__moe_arch_mod__sampling.s.ref").read().split("; Override launch")[0]

O_IDX = 0x1000
O_EX1 = 0x10000
O_EX1F = 0x90000
O_EX2 = 0x200000
WS_REC = 0x400000
L_XS = 0
L_RED = 8192
L_HB = 16384
L_KEY = 17408
LDS_BYTES = 17408 + 64
SPIN = 40000

def gen(pol="nt", xpol="", D1=10, K0=12, stamps=False, outpol="", fast=False, dbgst=False, extra_sleep=0):
    L = []
    def A(s): L.append("  " + s)
    def LB(s): L.append(s + ":")
    nst = [0]
    def stamp(i):
        if stamps: A(f"s_memrealtime s[{60+2*i}:{61+2*i}]")
    pol = (" " + pol) if pol else ""
    xpol = (" " + xpol) if xpol else ""
    outpol = (" " + outpol) if outpol else ""

    stamp(0)
    A("s_cmp_ge_u32 s2, 256")
    A("s_cbranch_scc1 L_end")
    A("s_load_dwordx16 s[4:19], s[0:1], 0")
    A("v_lshrrev_b32 v1, 6, v0")
    A("v_and_b32 v0, 63, v0                 ; lane")
    A("v_readfirstlane_b32 s3, v1           ; wave")
    if stamps:
        for i in range(1, 8): A(f"s_mov_b32 s{60+2*i}, 0")
        A("s_mov_b32 s49, 0")
        A("s_mov_b32 s55, s3")
    A("s_and_b32 s22, s2, 7")
    A("s_lshr_b32 s23, s2, 3                ; j")
    A("s_cmp_ge_u32 s23, 28")
    A("s_cbranch_scc1 L_router")
    A("s_mul_i32 s20, s22, 7")
    A("s_lshr_b32 s21, s23, 2")
    A("s_add_u32 s20, s20, s21              ; ct")
    A("s_and_b32 s21, s23, 3                ; q")
    A("s_mov_b32 s42, 0x05040100")
    A("s_mov_b32 s43, 0x07060302")
    A("s_mov_b32 s26, 7340032")
    A("s_mov_b32 s27, 0x20000")
    A("s_mov_b32 s34, %d" % WS_REC)
    A("s_mov_b32 s35, 0x20000")
    A("v_lshrrev_b32 v1, 4, v0              ; g")
    A("v_and_b32 v2, 15, v0                 ; n")
    A("s_cmp_ge_u32 s3, 4")
    A("s_cbranch_scc1 L_p2")

    RAW = 16
    FR = 80
    XB = 96
    ACC = 112
    def raw(s, i): return RAW + 16*s + 2*i
    def frag(s, j): return (FR if s == 0 else RAW + 16*(s-1)) + 4*j
    A("v_mul_u32_u24 v3, %d, v1" % (8*7168))
    A("v_lshl_add_u32 v3, v2, 3, v3         ; voffset")
    A("s_lshr_b32 s44, s21, 1               ; khalf")
    A("s_lshl_b32 s44, s44, 2")
    A("s_add_u32 s44, s44, s3")
    A("s_mul_i32 s44, s44, %d" % (128*7168))
    A("s_lshl_b32 s45, s20, 7")
    A("s_add_u32 s44, s44, s45              ; soffset")
    A("s_bitcmp1_b32 s21, 0")
    A("s_waitcnt lgkmcnt(0)")
    A("s_cselect_b32 s24, s10, s8")
    A("s_cselect_b32 s25, s11, s9")
    stamp(1)
    def perms(s):
        for p in range(4):
            for e in range(2):
                A(f"v_perm_b32 v{frag(s,2*e)+p}, v{raw(s,2*p+1)+e}, v{raw(s,2*p)+e}, s42")
                A(f"v_perm_b32 v{frag(s,2*e+1)+p}, v{raw(s,2*p+1)+e}, v{raw(s,2*p)+e}, s43")
    done = 0
    for n in range(32):
        s, i = divmod(n, 8)
        if n >= D1: A(f"s_waitcnt vmcnt({D1-1})")
        A(f"buffer_load_dwordx2 v[{raw(s,i)}:{raw(s,i)+1}], v3, s[24:27], s44 offen{pol}")
        if n < 31: A("s_add_u32 s44, s44, %d" % (7168 if i < 7 else 25*7168))
        if n == 0:
            A("s_load_dword s40, s[18:19], 0        ; epoch")
            A("s_mov_b32 s32, s18")
            A("s_mov_b32 s33, s19")
        if n == K0:
            A("s_barrier                            ; B0")
        complete = n - D1 + 1 if n >= D1 else 0
        while done < 4 and 8*done + 8 <= complete and n < 31:
            perms(done); done += 1
    stamp(2)
    A("s_barrier                            ; B1")
    A("v_and_b32 v4, 7, v0")
    A("v_lshl_add_u32 v4, v1, 3, v4         ; g*8+(t&7)")
    A("v_lshlrev_b32 v4, 4, v4")
    A("s_lshl_b32 s45, s3, 11")
    A("v_add_u32 v5, s45, v4")
    A("v_lshlrev_b32 v6, 3, v0              ; lane*8")
    A("s_lshl_b32 s45, s3, 9")
    A("v_add_u32 v6, s45, v6                ; w*512 + lane*8")
    while done < 4:
        A(f"s_waitcnt vmcnt({32 - 8*done - 8})")
        perms(done); done += 1
    A("s_waitcnt lgkmcnt(0)")
    A("s_add_u32 s40, s40, 1                ; tag32")
    A("s_and_b32 s41, s40, 0xff")
    stamp(3)
    A("s_barrier                            ; B2")
    for s in range(4):
        A(f"ds_read_b128 v[{XB+4*s}:{XB+4*s+3}], v5 offset:{L_XS + 512*s}")
    for s in range(4):
        A(f"s_waitcnt lgkmcnt({3-s})")
        for j in range(4):
            c = "0" if s == 0 else f"v[{ACC+4*j}:{ACC+4*j+3}]"
            A(f"v_mfma_f32_16x16x32_bf16 v[{ACC+4*j}:{ACC+4*j+3}], v[{frag(s,j)}:{frag(s,j)+3}], v[{XB+4*s}:{XB+4*s+3}], {c}")
    A("s_mov_b32 exec_lo, 0x00ff00ff")
    A("s_mov_b32 exec_hi, 0x00ff00ff")
    A("s_nop 2")
    for j in range(4):
        A(f"ds_write_b128 v5, v[{ACC+4*j}:{ACC+4*j+3}] offset:{L_RED + 512*j}")
    A("s_mov_b64 exec, -1")
    A("s_waitcnt lgkmcnt(0)")
    A("s_barrier                            ; B3")
    for w in range(4):
        A(f"ds_read_b64 v[{16+2*w}:{17+2*w}], v6 offset:{L_RED + 2048*w}")
    A("s_lshl_b32 s45, s20, 2")
    A("s_add_u32 s46, s45, s21")
    A("s_lshl_b32 s46, s46, 11")
    A("s_lshl_b32 s45, s45, 11")
    A("s_add_u32 s46, s46, %d" % O_EX1)
    A("s_add_u32 s45, s45, %d" % O_EX1)
    A("s_add_u32 s47, s45, 4096")
    A("s_mov_b32 s48, 0xffffff00")
    A("s_mov_b32 s49, 0")
    A("s_waitcnt lgkmcnt(2)")
    A("v_pk_add_f32 v[16:17], v[16:17], v[18:19]")
    A("s_waitcnt lgkmcnt(0)")
    A("v_pk_add_f32 v[20:21], v[20:21], v[22:23]")
    A("v_mov_b32 v7, s41")
    A("v_pk_add_f32 v[16:17], v[16:17], v[20:21]")
    A("s_nop 0")
    A("v_and_or_b32 v16, v16, s48, v7")
    A("v_and_or_b32 v17, v17, s48, v7")
    A("buffer_store_dwordx2 v[16:17], v6, s[32:35], s46 offen sc1")
    stamp(4)
    A("s_waitcnt vmcnt(0)")
    LB("L_x1poll")
    A("buffer_load_dwordx2 v[24:25], v6, s[32:35], s45 offen sc1")
    A("buffer_load_dwordx2 v[26:27], v6, s[32:35], s45 offen offset:2048 sc1")
    A("buffer_load_dwordx2 v[28:29], v6, s[32:35], s47 offen sc1")
    A("buffer_load_dwordx2 v[30:31], v6, s[32:35], s47 offen offset:2048 sc1")
    A("s_add_u32 s49, s49, 1")
    A("s_waitcnt vmcnt(0)")
    for r in range(24, 32): A(f"v_xor_b32 v{r}, s41, v{r}")
    A("v_or3_b32 v8, v24, v25, v26")
    A("v_or3_b32 v9, v27, v28, v29")
    A("v_or3_b32 v8, v8, v30, v31")
    A("v_or_b32 v8, v8, v9")
    A("v_and_b32 v8, 0xff, v8")
    A("v_cmp_ne_u32 vcc, 0, v8")
    A("s_cmp_ge_u32 s49, %d" % SPIN)
    A("s_cbranch_scc1 L_x1ok")
    A("s_cbranch_vccnz L_x1poll")
    LB("L_x1ok")
    stamp(5)
    A("v_pk_add_f32 v[24:25], v[24:25], v[28:29]   ; gate")
    A("v_pk_add_f32 v[26:27], v[26:27], v[30:31]   ; up")
    A("s_mov_b32 s45, 0xbfb8aa3b             ; -log2(e)")
    A("v_cvt_pk_bf16_f32 v8, v24, v25")
    A("v_cvt_pk_bf16_f32 v9, v26, v27")
    A("v_lshlrev_b32 v10, 16, v8")
    A("v_and_b32 v11, 0xffff0000, v8")
    A("v_mul_f32 v12, s45, v10")
    A("v_mul_f32 v13, s45, v11")
    A("v_exp_f32 v12, v12")
    A("v_exp_f32 v13, v13")
    A("v_lshlrev_b32 v14, 16, v9")
    A("v_add_f32 v12, 1.0, v12")
    A("v_add_f32 v13, 1.0, v13")
    A("v_rcp_f32 v12, v12")
    A("v_rcp_f32 v13, v13")
    A("v_and_b32 v15, 0xffff0000, v9")
    A("v_mul_f32 v10, v10, v12")
    A("v_mul_f32 v11, v11, v13")
    A("v_cvt_pk_bf16_f32 v8, v10, v11        ; silu")
    A("v_lshrrev_b32 v12, 1, v0")
    A("v_lshlrev_b32 v10, 16, v8")
    A("v_and_b32 v11, 0xffff0000, v8")
    A("v_lshlrev_b32 v12, 4, v12             ; (g*8+t)*16")
    A("v_and_b32 v13, 1, v0")
    A("v_mul_f32 v10, v10, v14")
    A("v_mul_f32 v11, v11, v15")
    A("v_lshl_add_u32 v12, v13, 2, v12")
    A("s_lshr_b32 s45, s3, 1")
    A("s_lshl_b32 s45, s45, 9")
    A("s_and_b32 s46, s3, 1")
    A("s_lshl_b32 s46, s46, 3")
    A("s_add_u32 s45, s45, s46")
    A("v_cvt_pk_bf16_f32 v8, v10, v11        ; h")
    A("v_add_u32 v12, s45, v12")
    A(f"ds_write_b32 v12, v8 offset:{L_HB}")
    A("s_waitcnt lgkmcnt(0)")
    A("s_barrier                            ; B4")
    stamp(6)
    stamp(7)
    A("s_branch L_fin")

    LB("L_p2")
    RW2 = 16
    FR2 = 48
    HA = 80
    AC2 = 88
    def raw2(s, i): return RW2 + 16*s + 2*i
    def frag2(s, j): return FR2 + 16*s + 4*j
    A("s_sub_u32 s3, s3, 4                  ; w")
    A("v_lshlrev_b32 v3, 15, v1             ; g*16*2048")
    A("v_lshl_add_u32 v3, v2, 3, v3")
    A("s_lshl_b32 s44, s20, 17              ; ct*64*2048")
    A("s_lshl_b32 s45, s21, 9")
    A("s_add_u32 s44, s44, s45")
    A("s_lshl_b32 s45, s3, 7")
    A("s_add_u32 s44, s44, s45")
    A("s_mov_b32 s30, 524288")
    A("s_mov_b32 s31, 0x20000")
    A("s_mov_b32 s38, 524288")
    A("s_mov_b32 s39, 0x20000")
    A("s_waitcnt lgkmcnt(0)")
    stamp(1)
    A("s_load_dword s40, s[18:19], 0        ; epoch")
    A("s_mov_b32 s24, s12")
    A("s_mov_b32 s25, s13")
    A("s_mov_b32 s28, s4")
    A("s_mov_b32 s29, s5")
    A("s_mov_b32 s32, s18")
    A("s_mov_b32 s33, s19")
    A("s_mov_b32 s36, s14")
    A("s_mov_b32 s37, s15")
    A("s_lshl_b32 s50, s20, 2")
    A("s_add_u32 s50, s50, s21")
    A("s_lshl_b32 s45, s22, 2")
    A("s_add_u32 s45, s45, s23")
    A("s_add_u32 s45, s45, 224")
    A("s_cmp_lt_u32 s23, 4")
    A("s_cselect_b32 s45, s45, 256")
    A("s_cmp_eq_u32 s3, 1")
    A("s_cselect_b32 s45, s45, 256")
    A("s_cmp_eq_u32 s3, 0")
    A("s_cselect_b32 s50, s50, s45          ; slice")
    A("v_and_b32 v4, 7, v0")
    A("s_waitcnt lgkmcnt(0)")
    A("s_add_u32 s40, s40, 1")
    A("s_and_b32 s41, s40, 0xff")
    A("s_barrier                            ; B0")
    A("s_cmp_lg_u32 s3, 0")
    A("s_cbranch_scc1 L_p2b1")
    A("v_lshlrev_b32 v5, 7, v4")
    A("s_mov_b32 s49, 0")
    A("s_mov_b32 s45, %d" % O_IDX)
    LB("L_ipoll")
    A("buffer_load_dwordx4 v[8:11], v5, s[32:35], s45 offen sc1")
    A("buffer_load_dwordx4 v[12:15], v5, s[32:35], s45 offen offset:16 sc1")
    A("s_add_u32 s49, s49, 1")
    A("s_waitcnt vmcnt(0)")
    A("v_xor_b32 v9, s40, v9")
    A("v_xor_b32 v11, s40, v11")
    A("v_xor_b32 v13, s40, v13")
    A("v_xor_b32 v15, s40, v15")
    A("v_or3_b32 v9, v9, v11, v13")
    A("v_or_b32 v9, v9, v15")
    A("v_cmp_ne_u32 vcc, 0, v9")
    A("s_cmp_ge_u32 s49, %d" % SPIN)
    A("s_cbranch_scc1 L_iok")
    A("s_cbranch_vccnz L_ipoll")
    LB("L_iok")
    stamp(2)
    A("v_max3_u32 v8, v8, v10, v12")
    A("v_max_u32 v8, v8, v14")
    A("v_lshlrev_b32 v9, 2, v4")
    A("v_and_b32 v10, 31, v8")
    A("v_xor_b32 v10, 31, v10")
    A("v_lshl_add_u32 v10, v4, 5, v10       ; row")
    A("v_lshlrev_b32 v10, 11, v10")
    A("v_lshrrev_b32 v11, 3, v0")
    A("v_lshl_add_u32 v10, v11, 4, v10      ; + chunk*16")
    A("s_lshr_b32 s45, s21, 1")
    A("s_lshl_b32 s45, s45, 10              ; khalf*1024")
    A("s_mov_b32 m0, %d" % L_XS)
    A(f"ds_write_b32 v9, v8 offset:{L_KEY}")
    for i in range(8):
        A(f"buffer_load_dwordx4 v10, s[28:31], s45 offen{xpol} lds")
        if i < 7:
            A("s_add_u32 m0, m0, 1024")
            A("s_add_u32 s45, s45, 128")
    A("s_waitcnt lgkmcnt(0)")
    LB("L_p2b1")
    A("s_barrier                            ; B1")
    for s in range(2):
        for i in range(8):
            p, b = divmod(i, 2)
            row = 2*s + (p >> 1) + 8*(p & 1) + 4*b
            A("s_add_u32 s45, s44, %d" % (row*2048))
            A(f"buffer_load_dwordx2 v[{raw2(s,i)}:{raw2(s,i)+1}], v3, s[24:27], s45 offen{pol}")
    stamp(3)
    A("s_lshr_b32 s51, s50, 5")
    A("s_and_b32 s51, s51, 7               ; token")
    A("s_lshl_b32 s45, s51, 2")
    A("v_mov_b32 v5, s45")
    A(f"ds_read_b32 v6, v5 offset:{L_KEY}")
    A("s_waitcnt vmcnt(16)")
    A("s_barrier                            ; B2")
    A("s_barrier                            ; B3")
    A("v_lshrrev_b32 v7, 5, v0")
    A("v_bfe_u32 v8, v0, 4, 1")
    A("v_lshl_add_u32 v7, v8, 1, v7         ; e")
    A("v_lshl_add_u32 v7, v4, 2, v7         ; 4*pos + e")
    A("s_and_b32 s45, s50, 31")
    A("s_lshl_b32 s45, s45, 5")
    A("v_add_u32 v7, s45, v7                ; column")
    A("s_waitcnt lgkmcnt(0)")
    A("v_and_b32 v8, 31, v6")
    A("v_xor_b32 v8, 31, v8")
    A("s_lshl_b32 s45, s51, 5")
    A("v_add_u32 v8, s45, v8                ; row")
    A("v_lshlrev_b32 v8, 10, v8")
    A("v_add_u32 v7, v8, v7")
    A("v_lshlrev_b32 v7, 1, v7")
    A("buffer_load_ushort v9, v7, s[28:31], 0 offen")
    A("v_lshrrev_b32 v10, 16, v6")
    A("v_xor_b32 v11, 0xffff, v10")
    A("v_and_b32 v12, 0x7fff, v10")
    A("v_cmp_gt_i32 vcc, 0, v6")
    A("s_mov_b32 s45, 0xbfb8aa3b")
    A("s_nop 0")
    A("v_cndmask_b32 v10, v11, v12, vcc")
    A("v_lshlrev_b32 v10, 16, v10           ; r")
    A("v_mul_f32 v10, s45, v10")
    A("v_exp_f32 v10, v10")
    A("s_nop 0")
    A("v_add_f32 v10, 1.0, v10")
    A("v_rcp_f32 v10, v10")
    A("s_nop 0")
    A("v_cvt_pk_bf16_f32 v10, v10, v10")
    A("v_and_b32 v10, 0xffff0000, v10       ; sig")
    A("v_lshrrev_b32 v11, 3, v2             ; n>>3")
    A("v_lshl_add_u32 v11, v1, 7, v11       ; 4g*32 + (n>>3)")
    A("v_mul_u32_u24 v11, 7168, v11")
    A("v_lshl_add_u32 v11, v4, 4, v11       ; + (n&7)*16")
    A("s_lshl_b32 s45, s21, 3")
    A("s_lshl_b32 s46, s3, 1")
    A("s_add_u32 s45, s45, s46")
    A("s_mul_i32 s45, s45, 7168")
    A("s_lshl_b32 s46, s20, 7")
    A("s_add_u32 s45, s45, s46")
    A("s_add_u32 s52, s45, %d" % O_EX2)
    A("s_mul_i32 s53, s50, 7168")
    A("s_add_u32 s53, s53, %d" % O_EX2)
    A("s_add_u32 s54, s53, 4096")
    A("s_mov_b32 s48, 0xffffff00")
    A("v_mov_b32 v12, s41")
    A("v_lshl_add_u32 v13, v1, 3, v4")
    A("v_lshlrev_b32 v13, 4, v13")
    A("v_lshlrev_b32 v14, 4, v0             ; lane*16")
    for s in range(2):
        A(f"s_waitcnt vmcnt({9 - 8*s})")
        for p in range(4):
            for e in range(2):
                A(f"v_perm_b32 v{frag2(s,2*e)+p}, v{raw2(s,2*p+1)+e}, v{raw2(s,2*p)+e}, s42")
                A(f"v_perm_b32 v{frag2(s,2*e+1)+p}, v{raw2(s,2*p+1)+e}, v{raw2(s,2*p)+e}, s43")
    stamp(4)
    A("s_barrier                            ; B4")
    for s in range(2):
        A(f"ds_read_b128 v[{HA+4*s}:{HA+4*s+3}], v13 offset:{L_HB + 512*s}")
    for s in range(2):
        A(f"s_waitcnt lgkmcnt({1-s})")
        for j in range(4):
            c = "0" if s == 0 else f"v[{AC2+4*j}:{AC2+4*j+3}]"
            A(f"v_mfma_f32_16x16x32_bf16 v[{AC2+4*j}:{AC2+4*j+3}], v[{HA+4*s}:{HA+4*s+3}], v[{frag2(s,j)}:{frag2(s,j)+3}], {c}")
    A("s_mov_b32 exec_lo, -1")
    A("s_mov_b32 exec_hi, 0")
    A("s_nop 5")
    for r in range(4):
        for j in range(4):
            A(f"v_and_or_b32 v{16+4*r+j}, v{AC2+4*j+r}, s48, v12")
        A(f"buffer_store_dwordx4 v[{16+4*r}:{19+4*r}], v11, s[32:35], s52 offen sc1")
        if r < 3: A("s_add_u32 s52, s52, %d" % (32*7168))
    A("s_mov_b64 exec, -1")
    stamp(5)
    A("s_cmp_ge_u32 s50, 256")
    A("s_cbranch_scc1 L_fin")
    A("s_mov_b32 s49, 0")
    A("s_waitcnt vmcnt(0)")
    LB("L_x2poll")
    for i in range(7):
        so = "s53" if i < 4 else "s54"
        A(f"buffer_load_dwordx4 v[{32+4*i}:{35+4*i}], v14, s[32:35], {so} offen offset:{(i%4)*1024} sc1")
    A("s_add_u32 s49, s49, 1")
    for i in range(7):
        A(f"s_waitcnt vmcnt({6-i})")
        b = 32 + 4*i
        for r in range(b, b+4): A(f"v_xor_b32 v{r}, s41, v{r}")
        if i == 0:
            A(f"v_or3_b32 v15, v{b}, v{b+1}, v{b+2}")
            A(f"v_or_b32 v15, v15, v{b+3}")
        else:
            A(f"v_or3_b32 v15, v15, v{b}, v{b+1}")
            A(f"v_or3_b32 v15, v15, v{b+2}, v{b+3}")
            src = 32 if i == 1 else 16
            A(f"v_pk_add_f32 v[16:17], v[{src}:{src+1}], v[{b}:{b+1}]")
            A(f"v_pk_add_f32 v[18:19], v[{src+2}:{src+3}], v[{b+2}:{b+3}]")
    A("v_and_b32 v15, 0xff, v15")
    A("v_cmp_ne_u32 vcc, 0, v15")
    A("s_cmp_ge_u32 s49, %d" % SPIN)
    A("s_cbranch_scc1 L_x2ok")
    A("s_cbranch_vccnz L_x2poll")
    LB("L_x2ok")
    stamp(6)
    A("v_permlane32_swap_b32 v16, v17")
    A("v_permlane32_swap_b32 v18, v19")
    A("v_lshlrev_b32 v9, 16, v9             ; x")
    A("v_add_f32 v16, v16, v17")
    A("v_add_f32 v18, v18, v19")
    A("s_nop 1")
    A("v_permlane16_swap_b32 v16, v18")
    A("s_nop 0")
    A("v_add_f32 v16, v16, v18")
    A("s_nop 1")
    A("v_add_f32_dpp v16, v16, v16 row_ror:8 row_mask:0xf bank_mask:0xf")
    A("s_mov_b32 exec_lo, 0x00ff00ff")
    A("s_mov_b32 exec_hi, 0x00ff00ff")
    A("v_cvt_pk_bf16_f32 v16, v16, v16")
    A("v_and_b32 v16, 0xffff0000, v16       ; y")
    A("v_mul_f32 v16, v16, v10")
    A("v_cvt_pk_bf16_f32 v16, v16, v16")
    A("v_and_b32 v16, 0xffff0000, v16       ; y*sig")
    A("v_fma_f32 v16, v9, 0, v16            ; upd = x*0 + y")
    A("v_add_f32 v16, v9, v16")
    A("v_cvt_pk_bf16_f32 v16, v16, v16")
    A(f"buffer_store_short v16, v7, s[36:39], 0 offen{outpol}")
    A("s_mov_b64 exec, -1")
    A("s_cmp_lg_u32 s50, 0")
    A("s_cbranch_scc1 L_noep")
    A("v_mov_b32 v16, s40")
    A("v_mov_b32 v17, 0")
    A("s_mov_b64 exec, 1")
    A("buffer_store_dword v16, v17, s[32:35], 0 offen sc1")
    A("s_mov_b64 exec, -1")
    LB("L_noep")
    stamp(7)
    A("s_branch L_fin")

    LB("L_router")
    A("s_sub_u32 s23, s23, 28               ; quarter")
    A("s_lshl_b32 s20, s23, 3")
    A("s_add_u32 s20, s20, s3")
    A("s_lshl_b32 s21, s22, 5")
    A("s_add_u32 s21, s21, s20              ; row")
    A("s_lshl_b32 s21, s21, 11")
    A("v_lshlrev_b32 v1, 4, v0")
    A("s_mov_b32 s26, 2048")
    A("s_mov_b32 s27, 0x20000")
    A("s_mov_b32 s30, 524288")
    A("s_mov_b32 s31, 0x20000")
    A("s_mov_b32 s34, %d" % WS_REC)
    A("s_mov_b32 s35, 0x20000")
    A("s_mov_b32 s38, 524288")
    A("s_mov_b32 s39, 0x20000")
    A("s_waitcnt lgkmcnt(0)")
    stamp(1)
    A("s_mov_b32 s28, s4")
    A("s_mov_b32 s29, s5")
    A("s_mov_b32 s24, s6")
    A("s_mov_b32 s25, s7")
    A(f"buffer_load_dwordx4 v[8:11], v1, s[28:31], s21 offen{xpol}")
    A(f"buffer_load_dwordx4 v[16:19], v1, s[24:27], 0 offen")
    A(f"buffer_load_dwordx4 v[12:15], v1, s[28:31], s21 offen offset:1024{xpol}")
    A(f"buffer_load_dwordx4 v[20:23], v1, s[24:27], 0 offen offset:1024")
    A("s_load_dword s40, s[18:19], 0        ; epoch")
    A("s_mov_b32 s32, s18")
    A("s_mov_b32 s33, s19")
    A("s_mov_b32 s36, s14")
    A("s_mov_b32 s37, s15")
    A("v_mov_b32 v2, 0")
    A("v_mov_b32 v3, 0")
    A("s_waitcnt vmcnt(2)")
    A("v_dot2_f32_bf16 v2, v8, v16, v2")
    A("v_dot2_f32_bf16 v3, v9, v17, v3")
    A("v_dot2_f32_bf16 v2, v10, v18, v2")
    A("v_dot2_f32_bf16 v3, v11, v19, v3")
    A("s_waitcnt vmcnt(0)")
    A("v_dot2_f32_bf16 v2, v12, v20, v2")
    A("v_dot2_f32_bf16 v3, v13, v21, v3")
    A("v_dot2_f32_bf16 v2, v14, v22, v2")
    A("v_dot2_f32_bf16 v3, v15, v23, v3")
    stamp(2)
    A("s_nop 2")
    A("v_add_f32 v2, v2, v3")
    A("s_nop 1")
    A("v_add_f32_dpp v2, v2, v2 quad_perm:[1,0,3,2] row_mask:0xf bank_mask:0xf")
    A("s_nop 1")
    A("v_add_f32_dpp v2, v2, v2 quad_perm:[2,3,0,1] row_mask:0xf bank_mask:0xf")
    A("s_nop 1")
    A("v_add_f32_dpp v2, v2, v2 row_half_mirror row_mask:0xf bank_mask:0xf")
    A("s_nop 1")
    A("v_add_f32_dpp v2, v2, v2 row_ror:8 row_mask:0xf bank_mask:0xf")
    A("s_nop 0")
    A("v_mov_b32 v3, v2")
    A("s_nop 1")
    A("v_permlane16_swap_b32 v2, v3")
    A("s_nop 0")
    A("v_add_f32 v2, v2, v3")
    A("s_nop 0")
    A("v_mov_b32 v3, v2")
    A("s_nop 1")
    A("v_permlane32_swap_b32 v2, v3")
    A("s_nop 0")
    A("v_add_f32 v2, v2, v3")
    A("v_cvt_pk_bf16_f32 v3, v2, v2")
    A("v_and_b32 v3, 0xffff0000, v3          ; r (bf16)")
    A("v_ashrrev_i32 v4, 31, v3")
    A("v_or_b32 v4, 0x80000000, v4")
    A("v_xor_b32 v4, v4, v3")
    A("v_and_b32 v4, 0xffff0000, v4")
    A("v_cmp_o_f32 vcc, v3, v3")
    A("s_xor_b32 s45, s20, 31")
    A("s_lshl_b32 s46, s3, 2")
    A("v_cndmask_b32 v4, 0, v4, vcc")
    A("v_or_b32 v4, s45, v4")
    A("v_mov_b32 v5, s46")
    A("ds_write_b32 v5, v4")
    A("s_waitcnt lgkmcnt(0)")
    A("s_barrier")
    A("v_mov_b32 v5, 0")
    A("ds_read_b128 v[24:27], v5")
    A("ds_read_b128 v[28:31], v5 offset:16")
    A("s_add_u32 s40, s40, 1")
    A("s_lshl_b32 s45, s22, 7")
    A("s_add_u32 s45, s45, %d" % O_IDX)
    A("s_lshl_b32 s46, s23, 3")
    A("s_add_u32 s46, s46, s45")
    A("v_mov_b32 v7, s40")
    A("s_waitcnt lgkmcnt(0)")
    A("v_max3_u32 v24, v24, v25, v26")
    A("v_max3_u32 v28, v28, v29, v30")
    A("v_max3_u32 v24, v24, v27, v31")
    A("v_max_u32 v6, v24, v28")
    A("s_cmp_lg_u32 s3, 0")
    A("s_cbranch_scc1 L_rnopub")
    A("s_mov_b64 exec, 1")
    A("buffer_store_dwordx2 v[6:7], v5, s[32:35], s46 offen sc1")
    A("s_mov_b64 exec, -1")
    LB("L_rnopub")
    stamp(3)
    for r in range(8, 16):
        A(f"v_lshlrev_b32 v16, 16, v{r}")
        A(f"v_and_b32 v17, 0xffff0000, v{r}")
        A("v_fma_f32 v16, v16, 0, v16")
        A("v_fma_f32 v17, v17, 0, v17")
        A(f"v_cvt_pk_bf16_f32 v{r}, v16, v17")
    A("v_cmp_ne_u32 vcc, v6, v4")
    A("s_cbranch_vccnz L_rstore")
    A("s_mov_b32 s49, 0")
    A("s_waitcnt vmcnt(0)")
    LB("L_rpoll")
    A("buffer_load_dwordx4 v[24:27], v5, s[32:35], s45 offen sc1")
    A("buffer_load_dwordx4 v[28:31], v5, s[32:35], s45 offen offset:16 sc1")
    A("s_add_u32 s49, s49, 1")
    A("s_waitcnt vmcnt(0)")
    A("v_xor_b32 v25, s40, v25")
    A("v_xor_b32 v27, s40, v27")
    A("v_xor_b32 v29, s40, v29")
    A("v_xor_b32 v31, s40, v31")
    A("v_or3_b32 v25, v25, v27, v29")
    A("v_or_b32 v25, v25, v31")
    A("v_cmp_ne_u32 vcc, 0, v25")
    A("s_cmp_ge_u32 s49, %d" % SPIN)
    A("s_cbranch_scc1 L_rok")
    A("s_cbranch_vccnz L_rpoll")
    LB("L_rok")
    A("v_max3_u32 v24, v24, v26, v28")
    A("v_max_u32 v24, v24, v30")
    A("v_cmp_ne_u32 vcc, v24, v4")
    A("s_cbranch_vccz L_rdone")
    LB("L_rstore")
    A(f"buffer_store_dwordx4 v[8:11], v1, s[36:39], s21 offen{outpol}")
    A(f"buffer_store_dwordx4 v[12:15], v1, s[36:39], s21 offen offset:1024{outpol}")
    LB("L_rdone")
    stamp(4); stamp(5); stamp(6); stamp(7)
    LB("L_fin")
    if extra_sleep: A(f"s_sleep {extra_sleep}")
    if dbgst:
        A("s_waitcnt lgkmcnt(0)")
        A("s_cmp_lg_u32 s55, 4")
        A("s_cbranch_scc1 L_end")
        A("s_lshr_b32 s20, s2, 3")
        A("s_cmp_ge_u32 s20, 28")
        A("s_cselect_b32 s21, 36, 0")
        A("v_mov_b32 v3, s21")
        A("s_mov_b64 exec, 1")
        for i in range(8):
            A(f"v_mov_b32 v16, s{60+2*i}")
            if i < 4 or True:
                if i >= 4:
                    if i == 4:
                        A("s_cbranch_scc1 L_end")
                A(f"global_atomic_umax v3, v16, s[16:17] offset:{4*i}")
        A("s_not_b32 s60, s60")
        A("v_mov_b32 v16, s60")
        A("global_atomic_umax v3, v16, s[16:17] offset:32")
    elif stamps:
        A("s_waitcnt lgkmcnt(0)")
        A("s_lshl_b32 s20, s55, 8")
        A("s_add_u32 s20, s20, s2")
        A("s_lshl_b32 s20, s20, 6")
        A("s_add_u32 s20, s20, 0x8000000")
        A("s_add_u32 s18, s18, s20")
        A("s_addc_u32 s19, s19, 0")
        for i in range(8): A(f"v_mov_b32 v{16+i}, s{60+2*i}")
        A("v_mov_b32 v24, s49")
        A("v_mov_b32 v3, 0")
        A("s_mov_b64 exec, 1")
        A("global_store_dwordx4 v3, v[16:19], s[18:19]")
        A("global_store_dwordx4 v3, v[20:23], s[18:19] offset:16")
        A("global_store_dword v3, v24, s[18:19] offset:32")
    LB("L_end")
    A("s_endpgm")
    body = "\n".join(L)
    return f"""{HEAD}; @launch grid=(256,1,1) block=(512,1,1) lds={LDS_BYTES}
.amdgcn_target "amdgcn-amd-amdhsa--gfx950"
.text
.globl {KN}
.p2align 8
.type {KN},@function
{KN}:
{body}
.section .rodata,"a"
.p2align 6
.amdhsa_kernel {KN}
  .amdhsa_next_free_vgpr 128
  .amdhsa_next_free_sgpr 96
  .amdhsa_accum_offset 128
  .amdhsa_group_segment_fixed_size 0
  .amdhsa_kernarg_size 64
  .amdhsa_user_sgpr_count 2
  .amdhsa_user_sgpr_kernarg_segment_ptr 1
  .amdhsa_system_sgpr_workgroup_id_x 1
  .amdhsa_float_denorm_mode_32 3
.end_amdhsa_kernel
"""
if __name__ == "__main__":
    import argparse
    ap = argparse.ArgumentParser()
    ap.add_argument("-o", default="standalone__moe_arch_mod__sampling.s")
    ap.add_argument("--pol", default="nt"); ap.add_argument("--xpol", default="")
    ap.add_argument("--D1", type=int, default=10); ap.add_argument("--K0", type=int, default=12)
    ap.add_argument("--dbgst", action="store_true"); ap.add_argument("--sleep", type=int, default=0)
    ap.add_argument("--stamps", action="store_true"); ap.add_argument("--outpol", default="")
    a = ap.parse_args()
    open(a.o, "w").write(gen(a.pol, a.xpol, a.D1, a.K0, a.stamps or a.dbgst, a.outpol, dbgst=a.dbgst, extra_sleep=a.sleep))
```

```python
KN = "standalone__moe_arch_mod__sampling_kernel"
HEAD = open("standalone__moe_arch_mod__sampling.s.ref").read().split("; Override launch")[0]

O_IDX = 0x1000
O_EX1 = 0x20000
O_EX1F = 0x100000
O_EX2 = 0x200000
WS_REC = 0x400000
L_XS = 0
L_RED = 8192
L_HB = 16384
L_KEY = 17408
LDS_BYTES = 17408 + 64
SPIN = 40000
NRX = 2

def gen(pol="nt", xpol="", D1=10, LS=16, NF=10, stamps=False, outpol="", amp=None, psleep=0, NP=1,
        PD=40, D0=5, ackwait=True, WA=10, PW=0, D13=None, WA3=None, x2delay=0):
    L = []
    def A(s): L.append("  " + s)
    def LB(s): L.append(s + ":")
    def stamp(i):
        if stamps: A(f"s_memrealtime s[{60+2*i}:{61+2*i}]")
    pol = (" " + pol) if pol else ""
    xpol = (" " + xpol) if xpol else ""
    outpol = (" " + outpol) if outpol else ""
    REPS = 64 * LS
    D13 = D13 or D1
    WA3 = WA3 or WA

    stamp(0)
    A("s_cmp_ge_u32 s2, 256")
    A("s_cbranch_scc1 L_exit")
    A("s_load_dwordx16 s[4:19], s[0:1], 0")
    A("v_lshrrev_b32 v1, 6, v0")
    A("v_and_b32 v0, 63, v0                 ; lane")
    A("v_readfirstlane_b32 s3, v1           ; wave")
    if stamps:
        for i in range(1, 8): A(f"s_mov_b32 s{60+2*i}, 0")
        A("s_mov_b32 s49, 0")
        A("s_mov_b32 s59, 0")
    A("s_and_b32 s22, s2, 7")
    A("s_lshr_b32 s23, s2, 3                ; j")
    A("s_add_u32 s56, s22, 3")
    A("s_and_b32 s56, s56, 7")
    A("s_lshr_b32 s20, s23, 2")
    A("s_and_b32 s21, s23, 3")
    A("s_cmp_eq_u32 s20, 7")
    A("s_cselect_b32 s20, s56, s20")
    A("s_cselect_b32 s44, 4, 0")
    A("s_add_u32 s21, s21, s44              ; q")
    A("s_cmp_lg_u32 s20, 7")
    A("s_cbranch_scc1 L_hastile")
    LB("L_exit")
    A("s_endpgm")
    LB("L_hastile")
    A("s_cmp_eq_u32 s20, s56")
    A("s_cselect_b32 s57, 1, 0")
    A("s_mul_i32 s44, s22, 7")
    A("s_add_u32 s20, s20, s44              ; ct")
    A("s_mov_b32 s27, 0x20000")
    A("s_mov_b32 s34, %d" % WS_REC)
    A("s_mov_b32 s35, 0x20000")
    A("s_cmp_ge_u32 s3, 4")
    A("s_cbranch_scc1 L_r")
    A("s_mov_b32 s26, 7340032")
    A("v_lshrrev_b32 v1, 4, v0              ; g")
    A("v_and_b32 v2, 15, v0                 ; n")
    A("v_mul_u32_u24 v3, %d, v1" % (8*7168))
    A("v_lshl_add_u32 v3, v2, 3, v3         ; voffset")
    A("s_lshr_b32 s44, s21, 1")
    A("s_lshl_b32 s44, s44, 2")
    A("s_add_u32 s44, s44, s3")
    A("s_lshl_b32 s45, s20, 7")
    A("s_cmp_eq_u32 s57, 1")
    A("s_cbranch_scc1 L_cb")

    RAW = 16; FR = 80; XB = 96; ACC = 112; W2 = 128
    F2 = 40; HA = 72
    def raw(s, i): return RAW + 16*s + 2*i
    def frag(s, j): return (FR if s == 0 else RAW + 16*(s-1)) + 4*j
    def raw2(s, i): return W2 + 16*s + 2*i
    def frag2(s, j): return F2 + 16*s + 4*j
    def perms(rawf, fragf, s):
        for e in range(2):
            for p in range(4):
                A(f"v_perm_b32 v{fragf(s,2*e)+p}, v{rawf(s,2*p+1)+e}, v{rawf(s,2*p)+e}, s42")
            for p in range(4):
                A(f"v_perm_b32 v{fragf(s,2*e+1)+p}, v{rawf(s,2*p+1)+e}, v{rawf(s,2*p)+e}, s43")
    def w2load(n):
        s, i = divmod(n, 8)
        p, b = divmod(i, 2)
        row = 2*s + (p >> 1) + 8*(p & 1) + 4*b
        A("s_add_u32 s47, s44, %d" % (row*2048))
        A(f"buffer_load_dwordx2 v[{raw2(s,i)}:{raw2(s,i)+1}], v10, s[28:31], s47 offen{pol}")
    def cpath(NS, sfx, D, WA):
        NL = 8*NS
        WB = 16 - WA
        A("s_mul_i32 s44, s44, %d" % (32*NS*7168))
        A("s_add_u32 s44, s44, s45              ; soffset")
        A("s_bitcmp1_b32 s21, 0")
        A("s_waitcnt lgkmcnt(0)")
        A("s_cselect_b32 s24, s10, s8")
        A("s_cselect_b32 s25, s11, s9")
        A("s_cmp_ge_u32 s22, %d" % NRX)
        A("s_cbranch_scc1 L_nb0" + sfx)
        A("s_barrier")
        LB("L_nb0" + sfx)
        stamp(1)
        done = 0
        for n in range(NL + WA):
            if n >= D: A(f"s_waitcnt vmcnt({D-1})")
            if n < NL:
                s, i = divmod(n, 8)
                A(f"buffer_load_dwordx2 v[{raw(s,i)}:{raw(s,i)+1}], v3, s[24:27], s44 offen{pol}")
                if n < NL-1: A("s_add_u32 s44, s44, %d" % (7168 if i < 7 else 25*7168))
            else:
                w2load(n - NL)
            if n == 0:
                A("s_load_dword s40, s[18:19], 0        ; epoch")
            if n == D0 - 1:
                A("s_mov_b32 s32, s18")
                A("s_mov_b32 s33, s19")
                A("s_mov_b32 s42, 0x05040100")
                A("s_mov_b32 s43, 0x07060302")
                A("v_and_b32 v8, 7, v0")
                A("v_lshl_add_u32 v13, v1, 3, v8")
                A("v_lshlrev_b32 v13, 4, v13")
                A("s_lshl_b32 s45, s3, %d" % (11 if NS == 4 else 10))
                A("v_add_u32 v5, s45, v13")
                A("s_lshl_b32 s45, s3, 11")
                A("v_add_u32 v4, s45, v13")
                A("v_lshlrev_b32 v6, 3, v0")
                A("s_lshl_b32 s45, s3, 9")
                A("v_add_u32 v6, s45, v6                ; w*512 + lane*8")
                A("v_lshrrev_b32 v7, 1, v0")
                A("v_lshlrev_b32 v7, 4, v7")
                A("v_and_b32 v9, 1, v0")
                A("v_lshl_add_u32 v7, v9, 2, v7")
                A("s_lshr_b32 s45, s3, 1")
                A("s_lshl_b32 s45, s45, 9")
                A("s_and_b32 s46, s3, 1")
                A("s_lshl_b32 s46, s46, 3")
                A("s_add_u32 s45, s45, s46")
                A("v_add_u32 v7, s45, v7")
                A("s_mov_b32 s28, s12")
                A("s_mov_b32 s29, s13")
                A("s_mov_b32 s30, 7340032")
                A("s_mov_b32 s31, 0x20000")
                A("v_lshlrev_b32 v10, 15, v1            ; g*16*2048")
                A("v_lshl_add_u32 v10, v2, 3, v10")
                A("v_lshrrev_b32 v11, 3, v2")
                A("v_lshl_add_u32 v11, v1, 7, v11       ; 4g*32 + (n>>3)")
                A("v_mul_u32_u24 v11, 7168, v11")
                A("v_lshl_add_u32 v11, v8, 4, v11       ; + (n&7)*16")
                A("s_lshl_b32 s53, s21, %d" % (2 if NS == 4 else 1))
                A("s_add_u32 s53, s53, s3")
                if NS == 2:
                    A("s_cmp_ge_u32 s3, 2")
                    A("s_cselect_b32 s45, 0x40000000, 0")
                    A("v_or_b32 v10, s45, v10")
                    A("v_or_b32 v11, s45, v11")
                A("s_mul_i32 s52, s53, %d" % (2*7168))
                A("s_lshl_b32 s46, s20, 7")
                A("s_add_u32 s52, s52, s46")
                A("s_add_u32 s52, s52, %d" % O_EX2)
                A("s_lshl_b32 s53, s53, 7")
                A("s_lshl_b32 s46, s20, 17              ; ct*64*2048")
                A("s_add_u32 s53, s53, s46")
                A("s_lshl_b32 s45, s20, 14")
                A("s_lshl_b32 s46, s21, 11")
                A("s_add_u32 s46, s46, s45")
                A("s_add_u32 s50, s46, %d" % O_EX1)
                A("s_add_u32 s46, s46, %d" % O_EX1F)
                A("s_add_u32 s45, s45, %d" % O_EX1F)
                A("s_mov_b32 s48, 0xffffff00")
                A("s_mov_b32 s51, 0xbfb8aa3b            ; -log2(e)")
                A("s_mov_b32 s49, 0")
                A("s_cmp_ge_u32 s22, %d" % NRX)
                A("s_cbranch_scc1 L_nb0b" + sfx)
                A("s_barrier")
                LB("L_nb0b" + sfx)
            if n == NL - 1:
                A("s_mov_b32 s44, s53")
                stamp(2)
            complete = n - D + 1 if n >= D else 0
            while done < NS and 8*done + 8 <= complete:
                perms(raw, frag, done); done += 1
        A("s_waitcnt lgkmcnt(0)")
        A("s_add_u32 s40, s40, 1                ; tag32")
        A("s_and_b32 s41, s40, 0xff")
        A("v_mov_b32 v9, s41")
        while done < NS:
            A(f"s_waitcnt vmcnt({NL + WA - 8*done - 8})")
            perms(raw, frag, done); done += 1
        A("s_barrier                            ; B2")
        stamp(3)
        for s in range(NS):
            A(f"ds_read_b128 v[{XB+4*s}:{XB+4*s+3}], v5 offset:{L_XS + 512*s}")
        for s in range(NS):
            A(f"s_waitcnt lgkmcnt({NS-1-s})")
            for j in range(4):
                c = "0" if s == 0 else f"v[{ACC+4*j}:{ACC+4*j+3}]"
                A(f"v_mfma_f32_16x16x32_bf16 v[{ACC+4*j}:{ACC+4*j+3}], v[{frag(s,j)}:{frag(s,j)+3}], v[{XB+4*s}:{XB+4*s+3}], {c}")
        A("s_mov_b32 exec_lo, 0x00ff00ff")
        A("s_mov_b32 exec_hi, 0x00ff00ff")
        A("s_nop 2")
        for j in range(4):
            A(f"ds_write_b128 v4, v[{ACC+4*j}:{ACC+4*j+3}] offset:{L_RED + 512*j}")
        A("s_mov_b64 exec, -1")
        A("s_waitcnt lgkmcnt(0)")
        A("s_barrier                            ; B3")
        for w in range(4):
            A(f"ds_read_b64 v[{16+2*w}:{17+2*w}], v6 offset:{L_RED + 2048*w}")
        A("s_waitcnt lgkmcnt(2)")
        A("v_pk_add_f32 v[16:17], v[16:17], v[18:19]")
        A("s_waitcnt lgkmcnt(0)")
        A("v_pk_add_f32 v[20:21], v[20:21], v[22:23]")
        A("v_pk_add_f32 v[16:17], v[16:17], v[20:21]")
        A("v_and_or_b32 v16, v16, s48, v9")
        A("v_and_or_b32 v17, v17, s48, v9")
        A("buffer_store_dwordx2 v[16:17], v6, s[32:35], s46 offen")
        stamp(4)
        for n in range(WA, 16): w2load(n)
        A(f"s_waitcnt vmcnt({WB})")
        pdone = 0
        if WA >= 8:
            perms(raw2, frag2, 0); pdone = 1
        if PW and WB: A(f"s_waitcnt vmcnt({max(WB - PW, 0)})")
        NB = 4 if NS == 4 else 8
        LB("L_x1poll" + sfx)
        for b in range(NB):
            if b and b % 2 == 0: A(f"s_add_u32 s47, s45, {b*2048}")
            A(f"buffer_load_dwordx2 v[{24+2*b}:{25+2*b}], v6, s[32:35], {'s45' if b < 2 else 's47'} offen offset:{(b%2)*2048} sc1")
        A("s_add_u32 s49, s49, 1")
        A("s_waitcnt vmcnt(0)")
        for r in range(24, 24+2*NB): A(f"v_xor_b32 v{r}, s41, v{r}")
        A("v_or3_b32 v8, v24, v25, v26")
        for r in range(27, 24+2*NB-1, 2): A(f"v_or3_b32 v8, v8, v{r}, v{r+1}")
        A(f"v_or_b32 v8, v8, v{24+2*NB-1}")
        A("v_and_b32 v8, 0xff, v8")
        A("v_cmp_ne_u32 vcc, 0, v8")
        A("s_cbranch_vccz L_x1ok" + sfx)
        A(f"s_cmp_lg_u32 s49, {NF}")
        A("s_cbranch_scc1 L_x1ns" + sfx)
        A("buffer_store_dwordx2 v[16:17], v6, s[32:35], s50 offen sc1")
        A("s_sub_u32 s45, s45, %d" % (O_EX1F - O_EX1))
        LB("L_x1ns" + sfx)
        A("s_cmp_lt_u32 s49, %d" % SPIN)
        A("s_cbranch_scc1 L_x1poll" + sfx)
        LB("L_x1ok" + sfx)
        stamp(5)
        if NB == 8:
            A("v_pk_add_f32 v[24:25], v[24:25], v[32:33]")
            A("v_pk_add_f32 v[26:27], v[26:27], v[34:35]")
            A("v_pk_add_f32 v[28:29], v[28:29], v[36:37]")
            A("v_pk_add_f32 v[30:31], v[30:31], v[38:39]")
        return pdone
    pa = cpath(4, "a", D1, WA)
    LB("L_h")
    A("v_pk_add_f32 v[24:25], v[24:25], v[28:29]   ; gate")
    A("v_pk_add_f32 v[26:27], v[26:27], v[30:31]   ; up")
    A("v_cvt_pk_bf16_f32 v8, v24, v25")
    A("v_cvt_pk_bf16_f32 v12, v26, v27")
    A("v_lshlrev_b32 v18, 16, v8")
    A("v_and_b32 v19, 0xffff0000, v8")
    A("v_mul_f32 v20, s51, v18")
    A("v_mul_f32 v21, s51, v19")
    A("v_exp_f32 v20, v20")
    A("v_exp_f32 v21, v21")
    A("v_lshlrev_b32 v14, 16, v12")
    A("v_add_f32 v20, 1.0, v20")
    A("v_add_f32 v21, 1.0, v21")
    A("v_rcp_f32 v20, v20")
    A("v_rcp_f32 v21, v21")
    A("v_and_b32 v15, 0xffff0000, v12")
    A("v_mul_f32 v18, v18, v20")
    A("v_mul_f32 v19, v19, v21")
    A("v_cvt_pk_bf16_f32 v8, v18, v19        ; silu")
    A("v_lshlrev_b32 v18, 16, v8")
    A("v_and_b32 v19, 0xffff0000, v8")
    A("v_mul_f32 v18, v18, v14")
    A("v_mul_f32 v19, v19, v15")
    A("v_cvt_pk_bf16_f32 v8, v18, v19        ; h")
    A(f"ds_write_b32 v7, v8 offset:{L_HB}")
    A("buffer_store_dwordx2 v[16:17], v6, s[32:35], s50 offen sc1")
    for s in range(pa, 2): perms(raw2, frag2, s)
    A("s_waitcnt lgkmcnt(0)")
    A("s_barrier                            ; B4")
    for s in range(2):
        A(f"ds_read_b128 v[{HA+4*s}:{HA+4*s+3}], v13 offset:{L_HB + 512*s}")
    for s in range(2):
        A(f"s_waitcnt lgkmcnt({1-s})")
        for j in range(4):
            c = "0" if s == 0 else f"v[{ACC+4*j}:{ACC+4*j+3}]"
            A(f"v_mfma_f32_16x16x32_bf16 v[{ACC+4*j}:{ACC+4*j+3}], v[{HA+4*s}:{HA+4*s+3}], v[{frag2(s,j)}:{frag2(s,j)+3}], {c}")
    A("s_mov_b32 exec_lo, -1")
    A("s_mov_b32 exec_hi, 0")
    A("s_nop 5")
    for r in range(4):
        for j in range(4):
            A(f"v_and_or_b32 v{20+4*r+j}, v{ACC+4*j+r}, s48, v9")
        A(f"buffer_store_dwordx4 v[{20+4*r}:{23+4*r}], v11, s[32:35], s52 offen sc1")
        if r < 3: A("s_add_u32 s52, s52, %d" % (32*7168))
    stamp(6)
    A("s_waitcnt vmcnt(0)")
    A("s_barrier                            ; B5")
    stamp(7)
    A("s_branch L_fin")
    LB("L_cb")
    pb = cpath(2, "b", D13, WA3)
    assert pa == pb
    A("s_branch L_h")

    XR = 80
    LB("L_r")
    A("s_mov_b32 s30, 524288")
    A("s_mov_b32 s31, 0x20000")
    A("v_lshlrev_b32 v14, 4, v0             ; lane*16")
    A("s_cmp_eq_u32 s3, 4")
    A("s_cbranch_scc1 L_r4")
    A("s_and_b32 s45, s2, 0xe7")
    A("s_cmp_eq_u32 s45, 0xe0")
    A("s_cbranch_scc1 L_r5")
    A("s_endpgm")
    LB("L_r5")
    A("s_barrier")
    A("s_waitcnt lgkmcnt(0)")
    A("s_load_dword s40, s[18:19], 0        ; epoch")
    A("s_mov_b32 s28, s4")
    A("s_mov_b32 s29, s5")
    A("s_mov_b32 s32, s18")
    A("s_mov_b32 s33, s19")
    A("s_add_u32 s50, s2, 4                 ; slice")
    A("v_and_b32 v4, 7, v0")
    A("s_barrier                            ; B0b")
    A("s_waitcnt lgkmcnt(0)")
    A("s_add_u32 s40, s40, 1")
    A("s_barrier                            ; B2")
    A("s_branch L_red")
    LB("L_r4")
    A("s_lshl_b32 s45, s20, 14")
    A("s_lshl_b32 s46, s21, 11")
    A("s_add_u32 s46, s46, s45")
    A("s_add_u32 s48, s46, %d               ; own L2-local block" % O_EX1F)
    A("s_cmp_lt_u32 s22, %d" % NRX)
    A("s_cbranch_scc1 L_route")
    A("s_waitcnt lgkmcnt(0)")
    A("s_mov_b32 s32, s18")
    A("s_mov_b32 s33, s19")
    A("buffer_load_dwordx4 v[24:27], v14, s[32:35], s48 offen")
    A("buffer_load_dwordx4 v[28:31], v14, s[32:35], s48 offen offset:1024")
    stamp(1)
    A("s_load_dword s40, s[18:19], 0        ; epoch")
    A("s_mov_b32 s28, s4")
    A("s_mov_b32 s29, s5")
    if PD: A(f"s_sleep {PD}")
    A("s_waitcnt lgkmcnt(0)")
    A("s_add_u32 s40, s40, 1")
    A("s_branch L_ip0")
    LB("L_route")
    A("s_setprio 3")
    A("s_lshl_b32 s52, s23, 1")
    A("s_add_u32 s52, s52, s22")
    A("s_lshl_b32 s44, s52, 13")
    A("s_add_u32 s45, s44, 4096")
    A("s_mov_b32 s26, 2048")
    A("s_waitcnt lgkmcnt(0)")
    A("s_mov_b32 s28, s4")
    A("s_mov_b32 s29, s5")
    A("s_mov_b32 s24, s6")
    A("s_mov_b32 s25, s7")
    A(f"buffer_load_dwordx4 v[16:19], v14, s[24:27], 0 offen")
    A(f"buffer_load_dwordx4 v[20:23], v14, s[24:27], 0 offen offset:1024")
    for i in range(8):
        A(f"buffer_load_dwordx4 v[{XR+4*i}:{XR+4*i+3}], v14, s[28:31], {'s44' if i < 4 else 's45'} offen offset:{(i%4)*1024}{xpol}")
    A("s_barrier                            ; B0")
    stamp(1)
    A("s_load_dword s40, s[18:19], 0        ; epoch")
    A("s_mov_b32 s32, s18")
    A("s_mov_b32 s33, s19")
    A("buffer_load_dwordx4 v[24:27], v14, s[32:35], s48 offen")
    A("buffer_load_dwordx4 v[28:31], v14, s[32:35], s48 offen offset:1024")
    A("s_and_b32 s45, s52, 7")
    A("s_lshl_b32 s46, s45, 3")
    A("s_lshr_b32 s52, s52, 3               ; batch")
    A("s_add_u32 s46, s46, s52")
    A("s_mul_i32 s46, s46, %d" % LS)
    A("s_add_u32 s46, s46, %d               ; slot" % O_IDX)
    A("s_lshl_b32 s45, s45, 2")
    A("v_mul_u32_u24 v5, %d, v0             ; replica offset" % REPS)
    A("v_lshrrev_b32 v10, 5, v0")
    A("v_bfe_u32 v11, v0, 4, 1")
    A("v_lshl_add_u32 v10, v11, 1, v10")
    A("v_add_u32 v10, s45, v10")
    A("v_xor_b32 v10, 31, v10")
    for t in range(4):
        for hlf in range(2):
            A(f"s_waitcnt vmcnt({9 - 2*t - hlf})")
            for k in range(4):
                c = "0" if (hlf == 0 and k == 0) else f"v{6+t}"
                A(f"v_dot2_f32_bf16 v{6+t}, v{XR+8*t+4*hlf+k}, v{16+4*hlf+k}, {c}")
    A("s_waitcnt lgkmcnt(0)")
    A("s_add_u32 s40, s40, 1")
    A("s_nop 0")
    A("v_permlane32_swap_b32 v6, v7")
    A("v_permlane32_swap_b32 v8, v9")
    A("v_add_f32 v6, v6, v7")
    A("v_add_f32 v8, v8, v9")
    A("s_nop 1")
    A("v_permlane16_swap_b32 v6, v8")
    A("v_add_f32 v6, v6, v8")
    A("s_nop 1")
    A("v_add_f32_dpp v6, v6, v6 quad_perm:[1,0,3,2] row_mask:0xf bank_mask:0xf")
    A("s_nop 1")
    A("v_add_f32_dpp v6, v6, v6 quad_perm:[2,3,0,1] row_mask:0xf bank_mask:0xf")
    A("s_nop 1")
    A("v_add_f32_dpp v6, v6, v6 row_half_mirror row_mask:0xf bank_mask:0xf")
    A("s_nop 1")
    A("v_add_f32_dpp v6, v6, v6 row_mirror row_mask:0xf bank_mask:0xf")
    A("v_cvt_pk_bf16_f32 v7, v6, v6")
    A("v_and_b32 v7, 0xffff0000, v7          ; r (bf16)")
    A("v_ashrrev_i32 v6, 31, v7")
    A("v_or_b32 v6, 0x80000000, v6")
    A("v_xor_b32 v6, v6, v7")
    A("v_cmp_o_f32 vcc, v7, v7")
    A("v_and_b32 v6, 0xffff0000, v6")
    A("s_nop 0")
    A("v_cndmask_b32 v6, 0, v6, vcc")
    A("v_or_b32 v6, v10, v6")
    A("v_mov_b32 v7, v6")
    A("s_nop 1")
    A("v_permlane16_swap_b32 v6, v7")
    A("v_max_u32 v6, v6, v7")
    A("v_mov_b32 v7, v6")
    A("s_nop 1")
    A("v_permlane32_swap_b32 v6, v7")
    A("v_max_u32 v6, v6, v7")
    A("v_mov_b32 v7, s40")
    A("s_mov_b64 exec, 0xff")
    A("buffer_store_dwordx2 v[6:7], v5, s[32:35], s46 offen sc1")
    A("s_mov_b64 exec, -1")
    A("s_barrier                            ; B0b")
    stamp(2)
    A("s_setprio 0")
    A("s_lshl_b32 s53, s52, 5")
    A("s_add_u32 s53, s53, s45")
    for r in range(XR, XR+32):
        A(f"v_lshlrev_b32 v16, 16, v{r}")
        A(f"v_and_b32 v17, 0xffff0000, v{r}")
        A("v_pk_fma_f32 v[16:17], v[16:17], 0, v[16:17] op_sel_hi:[1,0,1]")
        A(f"v_cvt_pk_bf16_f32 v{r}, v16, v17    ; x + x*0")
    if ackwait: A("s_waitcnt vmcnt(0)")
    LB("L_ip0")
    A("v_mul_u32_u24 v12, %d, v0            ; poll offset" % LS)
    A("s_mul_i32 s47, s22, %d" % REPS)
    A("s_add_u32 s47, s47, %d               ; this die's replica" % O_IDX)
    A("s_mov_b32 s49, 0")
    A("v_and_b32 v4, 7, v0")
    A("v_lshrrev_b32 v11, 3, v0")
    for k in range(NP):
        if psleep and k: A(f"s_sleep {psleep}")
        A(f"buffer_load_dwordx2 v[{16+2*k}:{17+2*k}], v12, s[32:35], s47 offen sc1")
    A("s_lshr_b32 s45, s21, 1")
    A("s_sub_u32 s46, 10, s57")
    A("s_lshl_b32 s45, s45, s46")
    A("s_mov_b32 s50, s2                    ; slice")
    LB("L_ipoll")
    for k in range(NP):
        A(f"s_waitcnt vmcnt({NP-1})")
        A(f"v_cmp_ne_u32 vcc, s40, v{17+2*k}")
        A(f"v_mov_b32 v8, v{16+2*k}")
        A("s_cbranch_vccz L_iok")
        A(f"buffer_load_dwordx2 v[{16+2*k}:{17+2*k}], v12, s[32:35], s47 offen sc1")
    A("s_add_u32 s49, s49, 1")
    A("s_cmp_lt_u32 s49, %d" % SPIN)
    A("s_cbranch_scc1 L_ipoll")
    LB("L_iok")
    stamp(3)
    if stamps: A("s_mov_b32 s59, s49")
    A("s_mov_b32 m0, %d" % L_XS)
    A("v_max_u32_dpp v8, v8, v8 row_ror:8 row_mask:0xf bank_mask:0xf")
    A("v_mov_b32 v9, v8")
    A("s_and_b32 s52, s52, 7")
    A("s_cmp_eq_u32 s57, 1")
    A("v_permlane16_swap_b32 v8, v9")
    A("v_max_u32 v8, v8, v9")
    A("v_mov_b32 v9, v8")
    A("s_nop 1")
    A("v_permlane32_swap_b32 v8, v9")
    A("v_max_u32 v8, v8, v9")
    A("v_and_b32 v10, 31, v8")
    A("v_xor_b32 v10, 31, v10")
    A("v_lshl_add_u32 v10, v4, 5, v10       ; row")
    A("v_lshlrev_b32 v10, 11, v10")
    A("v_lshl_add_u32 v10, v11, 4, v10      ; + chunk*16")
    A("v_lshlrev_b32 v9, 2, v4")
    A("v_readlane_b32 s54, v10, s52")
    for i in range(8):
        if i == 4: A("s_cbranch_scc1 L_dmadone")
        A(f"buffer_load_dwordx4 v10, s[28:31], s45 offen{xpol} lds")
        if i < 7:
            A("s_mov_b32 m0, %d" % (L_XS + 1024*(i+1)))
            A("v_add_u32 v10, 128, v10")
    LB("L_dmadone")
    A(f"ds_write_b32 v9, v8 offset:{L_KEY}")
    A("s_mov_b32 s36, s14")
    A("s_mov_b32 s37, s15")
    A("s_mov_b32 s38, 524288")
    A("s_mov_b32 s39, 0x20000")
    A("s_waitcnt vmcnt(0) lgkmcnt(0)")
    A("s_barrier                            ; B2")
    stamp(4)
    A("s_cmp_ge_u32 s22, %d" % NRX)
    A("s_cbranch_scc1 L_red")
    A("s_lshl_b32 s44, s53, 11")
    for t in range(4):
        A("s_cmp_eq_u32 s44, s54")
        A(f"s_cbranch_scc1 L_sel{t}")
        A(f"buffer_store_dwordx4 v[{XR+8*t}:{XR+8*t+3}], v14, s[36:39], s44 offen{outpol}")
        A(f"buffer_store_dwordx4 v[{XR+8*t+4}:{XR+8*t+7}], v14, s[36:39], s44 offen offset:1024{outpol}")
        LB(f"L_sel{t}")
        A("s_add_u32 s44, s44, 2048")
    LB("L_red")
    A("s_lshr_b32 s51, s50, 5               ; token")
    A("s_lshl_b32 s45, s51, 2")
    A("v_mov_b32 v5, s45")
    A(f"ds_read_b32 v6, v5 offset:{L_KEY}")
    A("s_barrier                            ; B3")
    A("s_mov_b32 s36, s14")
    A("s_mov_b32 s37, s15")
    A("s_mov_b32 s38, 524288")
    A("s_mov_b32 s39, 0x20000")
    A("s_and_b32 s41, s40, 0xff")
    A("v_lshrrev_b32 v7, 5, v0")
    A("v_bfe_u32 v8, v0, 4, 1")
    A("v_lshl_add_u32 v7, v8, 1, v7         ; e")
    A("v_lshl_add_u32 v7, v4, 2, v7         ; 4*pos + e")
    A("s_and_b32 s45, s50, 31")
    A("s_lshl_b32 s45, s45, 5")
    A("v_add_u32 v7, s45, v7                ; column")
    A("s_waitcnt lgkmcnt(0)")
    A("v_and_b32 v8, 31, v6")
    A("v_xor_b32 v8, 31, v8")
    A("s_lshl_b32 s45, s51, 5")
    A("v_add_u32 v8, s45, v8                ; row")
    A("v_lshlrev_b32 v8, 10, v8")
    A("v_add_u32 v7, v8, v7")
    A("v_lshlrev_b32 v7, 1, v7")
    A("buffer_load_ushort v9, v7, s[28:31], 0 offen")
    A("v_lshrrev_b32 v10, 16, v6")
    A("v_xor_b32 v11, 0xffff, v10")
    A("v_and_b32 v12, 0x7fff, v10")
    A("v_cmp_gt_i32 vcc, 0, v6")
    A("s_mov_b32 s45, 0xbfb8aa3b")
    A("s_nop 0")
    A("v_cndmask_b32 v10, v11, v12, vcc")
    A("v_lshlrev_b32 v10, 16, v10           ; r")
    A("v_mul_f32 v10, s45, v10")
    A("v_exp_f32 v10, v10")
    A("s_nop 0")
    A("v_add_f32 v10, 1.0, v10")
    A("v_rcp_f32 v10, v10")
    A("s_nop 0")
    A("v_cvt_pk_bf16_f32 v10, v10, v10")
    A("v_and_b32 v10, 0xffff0000, v10       ; sigmoid")
    A("s_mul_i32 s46, s50, 7168")
    A("s_add_u32 s46, s46, %d" % O_EX2)
    A("s_add_u32 s47, s46, 4096")
    A("s_mov_b32 s49, 0")
    A("s_mov_b32 s44, 0x00ff00ff")
    A("s_mov_b32 s45, 0x00ff00ff")
    A("s_waitcnt vmcnt(0)")
    A("v_lshlrev_b32 v9, 16, v9             ; x")
    A("s_barrier                            ; B4")
    A("s_barrier                            ; B5")
    if x2delay: A(f"s_sleep {x2delay}")
    stamp(5)
    LB("L_x2poll")
    for i in range(7):
        so = "s46" if i < 4 else "s47"
        A(f"buffer_load_dwordx4 v[{32+4*i}:{35+4*i}], v14, s[32:35], {so} offen offset:{(i%4)*1024} sc1")
    A("s_add_u32 s49, s49, 1")
    for i in range(7):
        A(f"s_waitcnt vmcnt({6-i})")
        b = 32 + 4*i
        for r in range(b, b+4): A(f"v_xor_b32 v{r}, s41, v{r}")
        if i == 0:
            A(f"v_or3_b32 v15, v{b}, v{b+1}, v{b+2}")
            A(f"v_or_b32 v15, v15, v{b+3}")
        else:
            A(f"v_or3_b32 v15, v15, v{b}, v{b+1}")
            A(f"v_or3_b32 v15, v15, v{b+2}, v{b+3}")
            src = 32 if i == 1 else 16
            A(f"v_pk_add_f32 v[16:17], v[{src}:{src+1}], v[{b}:{b+1}]")
            A(f"v_pk_add_f32 v[18:19], v[{src+2}:{src+3}], v[{b+2}:{b+3}]")
    A("v_and_b32 v15, 0xff, v15")
    A("v_cmp_ne_u32 vcc, 0, v15")
    A("s_cbranch_vccz L_x2ok")
    A("s_cmp_lt_u32 s49, %d" % SPIN)
    A("s_cbranch_scc1 L_x2poll")
    LB("L_x2ok")
    stamp(6)
    A("v_permlane32_swap_b32 v16, v17")
    A("v_permlane32_swap_b32 v18, v19")
    A("v_add_f32 v16, v16, v17")
    A("v_add_f32 v18, v18, v19")
    A("s_nop 1")
    A("v_permlane16_swap_b32 v16, v18")
    A("v_add_f32 v16, v16, v18")
    A("s_nop 1")
    A("v_add_f32_dpp v16, v16, v16 row_ror:8 row_mask:0xf bank_mask:0xf")
    A("s_mov_b64 exec, s[44:45]")
    A("v_cvt_pk_bf16_f32 v16, v16, v16")
    A("v_and_b32 v16, 0xffff0000, v16       ; y")
    A("v_mul_f32 v16, v16, v10")
    A("v_cvt_pk_bf16_f32 v16, v16, v16")
    A("v_and_b32 v16, 0xffff0000, v16       ; y*sigmoid")
    A("v_fma_f32 v16, v9, 0, v16            ; upd = x*0 + y")
    A("v_add_f32 v16, v9, v16")
    A("v_cvt_pk_bf16_f32 v16, v16, v16")
    A(f"buffer_store_short v16, v7, s[36:39], 0 offen{outpol}")
    A("s_cmp_lg_u32 s50, 0")
    A("s_cbranch_scc1 L_noep")
    A("v_mov_b32 v18, s40")
    A("v_mov_b32 v17, 0")
    A("s_mov_b64 exec, 1")
    A("buffer_store_dword v18, v17, s[32:35], 0 offen sc1")
    LB("L_noep")
    stamp(7)
    LB("L_fin")
    if amp:
        A("s_waitcnt lgkmcnt(0)")
        A(f"s_cmp_lg_u32 s3, {amp[2]}")
        A("s_cbranch_scc1 L_end")
        A(f"s_cmp_lg_u32 s2, {amp[3]}")
        A("s_cbranch_scc1 L_end")
        A(f"s_sub_u32 s20, s{60+2*amp[1]}, s{60+2*amp[0]}")
        A("s_min_u32 s20, s20, 5000")
        A("s_mul_i32 s20, s20, 10")
        A("s_memrealtime s[22:23]")
        A("s_waitcnt lgkmcnt(0)")
        LB("L_amp")
        A("s_memrealtime s[24:25]")
        A("s_waitcnt lgkmcnt(0)")
        A("s_sub_u32 s21, s24, s22")
        A("s_cmp_lt_u32 s21, s20")
        A("s_cbranch_scc1 L_amp")
    elif stamps:
        A("s_waitcnt lgkmcnt(0)")
        A("s_mov_b64 exec, -1")
        A("s_lshl_b32 s20, s3, 8")
        A("s_add_u32 s20, s20, s2")
        A("s_lshl_b32 s20, s20, 6")
        A("s_add_u32 s20, s20, 0x8000000")
        A("s_add_u32 s18, s18, s20")
        A("s_addc_u32 s19, s19, 0")
        for i in range(8): A(f"v_mov_b32 v{16+i}, s{60+2*i}")
        A("v_mov_b32 v24, s49")
        A("v_mov_b32 v25, s59")
        A("v_mov_b32 v3, 0")
        A("s_mov_b64 exec, 1")
        A("global_store_dwordx4 v3, v[16:19], s[18:19]")
        A("global_store_dwordx4 v3, v[20:23], s[18:19] offset:16")
        A("global_store_dwordx2 v3, v[24:25], s[18:19] offset:32")
    LB("L_end")
    A("s_endpgm")
    body = "\n".join(L)
    return f"""{HEAD}; @launch grid=(256,1,1) block=(384,1,1) lds={LDS_BYTES}
.amdgcn_target "amdgcn-amd-amdhsa--gfx950"
.text
.globl {KN}
.p2align 8
.type {KN},@function
{KN}:
{body}
.section .rodata,"a"
.p2align 6
.amdhsa_kernel {KN}
  .amdhsa_next_free_vgpr 160
  .amdhsa_next_free_sgpr 96
  .amdhsa_accum_offset 160
  .amdhsa_group_segment_fixed_size 0
  .amdhsa_kernarg_size 64
  .amdhsa_user_sgpr_count 2
  .amdhsa_user_sgpr_kernarg_segment_ptr 1
  .amdhsa_system_sgpr_workgroup_id_x 1
  .amdhsa_float_denorm_mode_32 3
.end_amdhsa_kernel
"""
if __name__ == "__main__":
    import sys, json
    kw = json.loads(sys.argv[2]) if len(sys.argv) > 2 else {}
    open(sys.argv[1] if len(sys.argv) > 1 else "standalone__moe_arch_mod__sampling.s", "w").write(gen(**kw))
```

```python
KN = "standalone__moe_arch_mod__sampling_kernel"
HEAD = open("standalone__moe_arch_mod__sampling.s.ref").read().split("; Override launch")[0]

O_IDX = 0x1000
O_EX1 = 0x20000
O_EX1F = 0x100000
O_EX2 = 0x200000
WS_REC = 0x400000
L_XS = 0
L_RED = 8192
L_HB = 16384
L_KEY = 17408
LDS_BYTES = 17408 + 64
SPIN = 40000
NRX = 2

def gen(pol="nt", xpol="", D1=10, LS=16, NF=10, stamps=False, outpol="", amp=None, psleep=0, NP=1,
        PD=40, D0=5, ackwait=True, WA=10, PW=0, D13=None, WA3=None, x2delay=0, gamp=None):
    if gamp: stamps=True
    L = []
    def A(s): L.append("  " + s)
    def LB(s): L.append(s + ":")
    def stamp(i):
        if stamps: A(f"s_memrealtime s[{60+2*i}:{61+2*i}]")
    pol = (" " + pol) if pol else ""
    xpol = (" " + xpol) if xpol else ""
    outpol = (" " + outpol) if outpol else ""
    REPS = 64 * LS
    D13 = D13 or D1
    WA3 = WA3 or WA

    stamp(0)
    A("s_cmp_ge_u32 s2, 256")
    A("s_cbranch_scc1 L_exit")
    A("s_load_dwordx16 s[4:19], s[0:1], 0")
    A("v_lshrrev_b32 v1, 6, v0")
    A("v_and_b32 v0, 63, v0                 ; lane")
    A("v_readfirstlane_b32 s3, v1           ; wave")
    if stamps:
        for i in range(1, 8): A(f"s_mov_b32 s{60+2*i}, 0")
        A("s_mov_b32 s49, 0")
        A("s_mov_b32 s59, 0")
    A("s_and_b32 s22, s2, 7")
    A("s_lshr_b32 s23, s2, 3                ; j")
    A("s_add_u32 s56, s22, 3")
    A("s_and_b32 s56, s56, 7")
    A("s_lshr_b32 s20, s23, 2")
    A("s_and_b32 s21, s23, 3")
    A("s_cmp_eq_u32 s20, 7")
    A("s_cselect_b32 s20, s56, s20")
    A("s_cselect_b32 s44, 4, 0")
    A("s_add_u32 s21, s21, s44              ; q")
    A("s_cmp_lg_u32 s20, 7")
    A("s_cbranch_scc1 L_hastile")
    LB("L_exit")
    A("s_endpgm")
    LB("L_hastile")
    A("s_cmp_eq_u32 s20, s56")
    A("s_cselect_b32 s57, 1, 0")
    A("s_mul_i32 s44, s22, 7")
    A("s_add_u32 s20, s20, s44              ; ct")
    A("s_mov_b32 s27, 0x20000")
    A("s_mov_b32 s34, %d" % WS_REC)
    A("s_mov_b32 s35, 0x20000")
    A("s_cmp_ge_u32 s3, 4")
    A("s_cbranch_scc1 L_r")
    A("s_mov_b32 s26, 7340032")
    A("v_lshrrev_b32 v1, 4, v0              ; g")
    A("v_and_b32 v2, 15, v0                 ; n")
    A("v_mul_u32_u24 v3, %d, v1" % (8*7168))
    A("v_lshl_add_u32 v3, v2, 3, v3         ; voffset")
    A("s_lshr_b32 s44, s21, 1")
    A("s_lshl_b32 s44, s44, 2")
    A("s_add_u32 s44, s44, s3")
    A("s_lshl_b32 s45, s20, 7")
    A("s_cmp_eq_u32 s57, 1")
    A("s_cbranch_scc1 L_cb")

    RAW = 16; FR = 80; XB = 96; ACC = 112; W2 = 128
    F2 = 40; HA = 72
    def raw(s, i): return RAW + 16*s + 2*i
    def frag(s, j): return (FR if s == 0 else RAW + 16*(s-1)) + 4*j
    def raw2(s, i): return W2 + 16*s + 2*i
    def frag2(s, j): return F2 + 16*s + 4*j
    def perms(rawf, fragf, s):
        for e in range(2):
            for p in range(4):
                A(f"v_perm_b32 v{fragf(s,2*e)+p}, v{rawf(s,2*p+1)+e}, v{rawf(s,2*p)+e}, s42")
            for p in range(4):
                A(f"v_perm_b32 v{fragf(s,2*e+1)+p}, v{rawf(s,2*p+1)+e}, v{rawf(s,2*p)+e}, s43")
    def w2load(n):
        s, i = divmod(n, 8)
        p, b = divmod(i, 2)
        row = 2*s + (p >> 1) + 8*(p & 1) + 4*b
        A("s_add_u32 s47, s44, %d" % (row*2048))
        A(f"buffer_load_dwordx2 v[{raw2(s,i)}:{raw2(s,i)+1}], v10, s[28:31], s47 offen{pol}")
    def cpath(NS, sfx, D, WA):
        NL = 8*NS
        WB = 16 - WA
        A("s_mul_i32 s44, s44, %d" % (32*NS*7168))
        A("s_add_u32 s44, s44, s45              ; soffset")
        A("s_bitcmp1_b32 s21, 0")
        A("s_waitcnt lgkmcnt(0)")
        A("s_cselect_b32 s24, s10, s8")
        A("s_cselect_b32 s25, s11, s9")
        A("s_cmp_ge_u32 s22, %d" % NRX)
        A("s_cbranch_scc1 L_nb0" + sfx)
        A("s_barrier")
        LB("L_nb0" + sfx)
        stamp(1)
        done = 0
        for n in range(NL + WA):
            if n >= D: A(f"s_waitcnt vmcnt({D-1})")
            if n < NL:
                s, i = divmod(n, 8)
                A(f"buffer_load_dwordx2 v[{raw(s,i)}:{raw(s,i)+1}], v3, s[24:27], s44 offen{pol}")
                if n < NL-1: A("s_add_u32 s44, s44, %d" % (7168 if i < 7 else 25*7168))
            else:
                w2load(n - NL)
            if n == 0:
                A("s_load_dword s40, s[18:19], 0        ; epoch")
            if n == D0 - 1:
                A("s_mov_b32 s32, s18")
                A("s_mov_b32 s33, s19")
                A("s_mov_b32 s42, 0x05040100")
                A("s_mov_b32 s43, 0x07060302")
                A("v_and_b32 v8, 7, v0")
                A("v_lshl_add_u32 v13, v1, 3, v8")
                A("v_lshlrev_b32 v13, 4, v13")
                A("s_lshl_b32 s45, s3, %d" % (11 if NS == 4 else 10))
                A("v_add_u32 v5, s45, v13")
                A("s_lshl_b32 s45, s3, 11")
                A("v_add_u32 v4, s45, v13")
                A("v_lshlrev_b32 v6, 3, v0")
                A("s_lshl_b32 s45, s3, 9")
                A("v_add_u32 v6, s45, v6                ; w*512 + lane*8")
                A("v_lshrrev_b32 v7, 1, v0")
                A("v_lshlrev_b32 v7, 4, v7")
                A("v_and_b32 v9, 1, v0")
                A("v_lshl_add_u32 v7, v9, 2, v7")
                A("s_lshr_b32 s45, s3, 1")
                A("s_lshl_b32 s45, s45, 9")
                A("s_and_b32 s46, s3, 1")
                A("s_lshl_b32 s46, s46, 3")
                A("s_add_u32 s45, s45, s46")
                A("v_add_u32 v7, s45, v7")
                A("s_mov_b32 s28, s12")
                A("s_mov_b32 s29, s13")
                A("s_mov_b32 s30, 7340032")
                A("s_mov_b32 s31, 0x20000")
                A("v_lshlrev_b32 v10, 15, v1            ; g*16*2048")
                A("v_lshl_add_u32 v10, v2, 3, v10")
                A("v_lshrrev_b32 v11, 3, v2")
                A("v_lshl_add_u32 v11, v1, 7, v11       ; 4g*32 + (n>>3)")
                A("v_mul_u32_u24 v11, 7168, v11")
                A("v_lshl_add_u32 v11, v8, 4, v11       ; + (n&7)*16")
                A("s_lshl_b32 s53, s21, %d" % (2 if NS == 4 else 1))
                A("s_add_u32 s53, s53, s3")
                if NS == 2:
                    A("s_cmp_ge_u32 s3, 2")
                    A("s_cselect_b32 s45, 0x40000000, 0")
                    A("v_or_b32 v10, s45, v10")
                    A("v_or_b32 v11, s45, v11")
                A("s_mul_i32 s52, s53, %d" % (2*7168))
                A("s_lshl_b32 s46, s20, 7")
                A("s_add_u32 s52, s52, s46")
                A("s_add_u32 s52, s52, %d" % O_EX2)
                A("s_lshl_b32 s53, s53, 7")
                A("s_lshl_b32 s46, s20, 17              ; ct*64*2048")
                A("s_add_u32 s53, s53, s46")
                A("s_lshl_b32 s45, s20, 14")
                A("s_lshl_b32 s46, s21, 11")
                A("s_add_u32 s46, s46, s45")
                A("s_add_u32 s50, s46, %d" % O_EX1)
                A("s_add_u32 s46, s46, %d" % O_EX1F)
                A("s_add_u32 s45, s45, %d" % O_EX1F)
                A("s_mov_b32 s48, 0xffffff00")
                A("s_mov_b32 s51, 0xbfb8aa3b            ; -log2(e)")
                A("s_mov_b32 s49, 0")
                A("s_cmp_ge_u32 s22, %d" % NRX)
                A("s_cbranch_scc1 L_nb0b" + sfx)
                A("s_barrier")
                LB("L_nb0b" + sfx)
            if n == NL - 1:
                A("s_mov_b32 s44, s53")
                stamp(2)
            complete = n - D + 1 if n >= D else 0
            while done < NS and 8*done + 8 <= complete:
                perms(raw, frag, done); done += 1
        A("s_waitcnt lgkmcnt(0)")
        A("s_add_u32 s40, s40, 1                ; tag32")
        A("s_and_b32 s41, s40, 0xff")
        A("v_mov_b32 v9, s41")
        while done < NS:
            A(f"s_waitcnt vmcnt({NL + WA - 8*done - 8})")
            perms(raw, frag, done); done += 1
        A("s_barrier                            ; B2")
        stamp(3)
        for s in range(NS):
            A(f"ds_read_b128 v[{XB+4*s}:{XB+4*s+3}], v5 offset:{L_XS + 512*s}")
        for s in range(NS):
            A(f"s_waitcnt lgkmcnt({NS-1-s})")
            for j in range(4):
                c = "0" if s == 0 else f"v[{ACC+4*j}:{ACC+4*j+3}]"
                A(f"v_mfma_f32_16x16x32_bf16 v[{ACC+4*j}:{ACC+4*j+3}], v[{frag(s,j)}:{frag(s,j)+3}], v[{XB+4*s}:{XB+4*s+3}], {c}")
        A("s_mov_b32 exec_lo, 0x00ff00ff")
        A("s_mov_b32 exec_hi, 0x00ff00ff")
        A("s_nop 2")
        for j in range(4):
            A(f"ds_write_b128 v4, v[{ACC+4*j}:{ACC+4*j+3}] offset:{L_RED + 512*j}")
        A("s_mov_b64 exec, -1")
        A("s_waitcnt lgkmcnt(0)")
        A("s_barrier                            ; B3")
        for w in range(4):
            A(f"ds_read_b64 v[{16+2*w}:{17+2*w}], v6 offset:{L_RED + 2048*w}")
        A("s_waitcnt lgkmcnt(2)")
        A("v_pk_add_f32 v[16:17], v[16:17], v[18:19]")
        A("s_waitcnt lgkmcnt(0)")
        A("v_pk_add_f32 v[20:21], v[20:21], v[22:23]")
        A("v_pk_add_f32 v[16:17], v[16:17], v[20:21]")
        A("v_and_or_b32 v16, v16, s48, v9")
        A("v_and_or_b32 v17, v17, s48, v9")
        A("buffer_store_dwordx2 v[16:17], v6, s[32:35], s46 offen")
        stamp(4)
        for n in range(WA, 16): w2load(n)
        A(f"s_waitcnt vmcnt({WB})")
        pdone = 0
        if WA >= 8:
            perms(raw2, frag2, 0); pdone = 1
        if PW and WB: A(f"s_waitcnt vmcnt({max(WB - PW, 0)})")
        NB = 4 if NS == 4 else 8
        LB("L_x1poll" + sfx)
        for b in range(NB):
            if b and b % 2 == 0: A(f"s_add_u32 s47, s45, {b*2048}")
            A(f"buffer_load_dwordx2 v[{24+2*b}:{25+2*b}], v6, s[32:35], {'s45' if b < 2 else 's47'} offen offset:{(b%2)*2048} sc1")
        A("s_add_u32 s49, s49, 1")
        A("s_waitcnt vmcnt(0)")
        for r in range(24, 24+2*NB): A(f"v_xor_b32 v{r}, s41, v{r}")
        A("v_or3_b32 v8, v24, v25, v26")
        for r in range(27, 24+2*NB-1, 2): A(f"v_or3_b32 v8, v8, v{r}, v{r+1}")
        A(f"v_or_b32 v8, v8, v{24+2*NB-1}")
        A("v_and_b32 v8, 0xff, v8")
        A("v_cmp_ne_u32 vcc, 0, v8")
        A("s_cbranch_vccz L_x1ok" + sfx)
        A(f"s_cmp_lg_u32 s49, {NF}")
        A("s_cbranch_scc1 L_x1ns" + sfx)
        A("buffer_store_dwordx2 v[16:17], v6, s[32:35], s50 offen sc1")
        A("s_sub_u32 s45, s45, %d" % (O_EX1F - O_EX1))
        LB("L_x1ns" + sfx)
        A("s_cmp_lt_u32 s49, %d" % SPIN)
        A("s_cbranch_scc1 L_x1poll" + sfx)
        LB("L_x1ok" + sfx)
        stamp(5)
        if NB == 8:
            A("v_pk_add_f32 v[24:25], v[24:25], v[32:33]")
            A("v_pk_add_f32 v[26:27], v[26:27], v[34:35]")
            A("v_pk_add_f32 v[28:29], v[28:29], v[36:37]")
            A("v_pk_add_f32 v[30:31], v[30:31], v[38:39]")
        return pdone
    pa = cpath(4, "a", D1, WA)
    LB("L_h")
    A("v_pk_add_f32 v[24:25], v[24:25], v[28:29]   ; gate")
    A("v_pk_add_f32 v[26:27], v[26:27], v[30:31]   ; up")
    A("v_cvt_pk_bf16_f32 v8, v24, v25")
    A("v_cvt_pk_bf16_f32 v12, v26, v27")
    A("v_lshlrev_b32 v18, 16, v8")
    A("v_and_b32 v19, 0xffff0000, v8")
    A("v_mul_f32 v20, s51, v18")
    A("v_mul_f32 v21, s51, v19")
    A("v_exp_f32 v20, v20")
    A("v_exp_f32 v21, v21")
    A("v_lshlrev_b32 v14, 16, v12")
    A("v_add_f32 v20, 1.0, v20")
    A("v_add_f32 v21, 1.0, v21")
    A("v_rcp_f32 v20, v20")
    A("v_rcp_f32 v21, v21")
    A("v_and_b32 v15, 0xffff0000, v12")
    A("v_mul_f32 v18, v18, v20")
    A("v_mul_f32 v19, v19, v21")
    A("v_cvt_pk_bf16_f32 v8, v18, v19        ; silu")
    A("v_lshlrev_b32 v18, 16, v8")
    A("v_and_b32 v19, 0xffff0000, v8")
    A("v_mul_f32 v18, v18, v14")
    A("v_mul_f32 v19, v19, v15")
    A("v_cvt_pk_bf16_f32 v8, v18, v19        ; h")
    A(f"ds_write_b32 v7, v8 offset:{L_HB}")
    A("buffer_store_dwordx2 v[16:17], v6, s[32:35], s50 offen sc1")
    for s in range(pa, 2): perms(raw2, frag2, s)
    A("s_waitcnt lgkmcnt(0)")
    A("s_barrier                            ; B4")
    for s in range(2):
        A(f"ds_read_b128 v[{HA+4*s}:{HA+4*s+3}], v13 offset:{L_HB + 512*s}")
    for s in range(2):
        A(f"s_waitcnt lgkmcnt({1-s})")
        for j in range(4):
            c = "0" if s == 0 else f"v[{ACC+4*j}:{ACC+4*j+3}]"
            A(f"v_mfma_f32_16x16x32_bf16 v[{ACC+4*j}:{ACC+4*j+3}], v[{HA+4*s}:{HA+4*s+3}], v[{frag2(s,j)}:{frag2(s,j)+3}], {c}")
    A("s_mov_b32 exec_lo, -1")
    A("s_mov_b32 exec_hi, 0")
    A("s_nop 5")
    for r in range(4):
        for j in range(4):
            A(f"v_and_or_b32 v{20+4*r+j}, v{ACC+4*j+r}, s48, v9")
        A(f"buffer_store_dwordx4 v[{20+4*r}:{23+4*r}], v11, s[32:35], s52 offen sc1")
        if r < 3: A("s_add_u32 s52, s52, %d" % (32*7168))
    stamp(6)
    A("s_waitcnt vmcnt(0)")
    A("s_barrier                            ; B5")
    stamp(7)
    A("s_branch L_fin")
    LB("L_cb")
    pb = cpath(2, "b", D13, WA3)
    assert pa == pb
    A("s_branch L_h")

    XR = 80
    LB("L_r")
    A("s_mov_b32 s30, 524288")
    A("s_mov_b32 s31, 0x20000")
    A("v_lshlrev_b32 v14, 4, v0             ; lane*16")
    A("s_cmp_eq_u32 s3, 4")
    A("s_cbranch_scc1 L_r4")
    A("s_and_b32 s45, s2, 0xe7")
    A("s_cmp_eq_u32 s45, 0xe0")
    A("s_cbranch_scc1 L_r5")
    A("s_endpgm")
    LB("L_r5")
    A("s_barrier")
    A("s_waitcnt lgkmcnt(0)")
    A("s_load_dword s40, s[18:19], 0        ; epoch")
    A("s_mov_b32 s28, s4")
    A("s_mov_b32 s29, s5")
    A("s_mov_b32 s32, s18")
    A("s_mov_b32 s33, s19")
    A("s_add_u32 s50, s2, 4                 ; slice")
    A("v_and_b32 v4, 7, v0")
    A("s_barrier                            ; B0b")
    A("s_waitcnt lgkmcnt(0)")
    A("s_add_u32 s40, s40, 1")
    A("s_barrier                            ; B2")
    A("s_branch L_red")
    LB("L_r4")
    A("s_lshl_b32 s45, s20, 14")
    A("s_lshl_b32 s46, s21, 11")
    A("s_add_u32 s46, s46, s45")
    A("s_add_u32 s48, s46, %d               ; own L2-local block" % O_EX1F)
    A("s_cmp_lt_u32 s22, %d" % NRX)
    A("s_cbranch_scc1 L_route")
    A("s_waitcnt lgkmcnt(0)")
    A("s_mov_b32 s32, s18")
    A("s_mov_b32 s33, s19")
    A("buffer_load_dwordx4 v[24:27], v14, s[32:35], s48 offen")
    A("buffer_load_dwordx4 v[28:31], v14, s[32:35], s48 offen offset:1024")
    stamp(1)
    A("s_load_dword s40, s[18:19], 0        ; epoch")
    A("s_mov_b32 s28, s4")
    A("s_mov_b32 s29, s5")
    if PD: A(f"s_sleep {PD}")
    A("s_waitcnt lgkmcnt(0)")
    A("s_add_u32 s40, s40, 1")
    A("s_branch L_ip0")
    LB("L_route")
    A("s_setprio 3")
    A("s_lshl_b32 s52, s23, 1")
    A("s_add_u32 s52, s52, s22")
    A("s_lshl_b32 s44, s52, 13")
    A("s_add_u32 s45, s44, 4096")
    A("s_mov_b32 s26, 2048")
    A("s_waitcnt lgkmcnt(0)")
    A("s_mov_b32 s28, s4")
    A("s_mov_b32 s29, s5")
    A("s_mov_b32 s24, s6")
    A("s_mov_b32 s25, s7")
    A(f"buffer_load_dwordx4 v[16:19], v14, s[24:27], 0 offen")
    A(f"buffer_load_dwordx4 v[20:23], v14, s[24:27], 0 offen offset:1024")
    for i in range(8):
        A(f"buffer_load_dwordx4 v[{XR+4*i}:{XR+4*i+3}], v14, s[28:31], {'s44' if i < 4 else 's45'} offen offset:{(i%4)*1024}{xpol}")
    A("s_barrier                            ; B0")
    stamp(1)
    A("s_load_dword s40, s[18:19], 0        ; epoch")
    A("s_mov_b32 s32, s18")
    A("s_mov_b32 s33, s19")
    A("buffer_load_dwordx4 v[24:27], v14, s[32:35], s48 offen")
    A("buffer_load_dwordx4 v[28:31], v14, s[32:35], s48 offen offset:1024")
    A("s_and_b32 s45, s52, 7")
    A("s_lshl_b32 s46, s45, 3")
    A("s_lshr_b32 s52, s52, 3               ; batch")
    A("s_add_u32 s46, s46, s52")
    A("s_mul_i32 s46, s46, %d" % LS)
    A("s_add_u32 s46, s46, %d               ; slot" % O_IDX)
    A("s_lshl_b32 s45, s45, 2")
    A("v_mul_u32_u24 v5, %d, v0             ; replica offset" % REPS)
    A("v_lshrrev_b32 v10, 5, v0")
    A("v_bfe_u32 v11, v0, 4, 1")
    A("v_lshl_add_u32 v10, v11, 1, v10")
    A("v_add_u32 v10, s45, v10")
    A("v_xor_b32 v10, 31, v10")
    for t in range(4):
        for hlf in range(2):
            A(f"s_waitcnt vmcnt({9 - 2*t - hlf})")
            for k in range(4):
                c = "0" if (hlf == 0 and k == 0) else f"v{6+t}"
                A(f"v_dot2_f32_bf16 v{6+t}, v{XR+8*t+4*hlf+k}, v{16+4*hlf+k}, {c}")
    A("s_waitcnt lgkmcnt(0)")
    A("s_add_u32 s40, s40, 1")
    A("s_nop 0")
    A("v_permlane32_swap_b32 v6, v7")
    A("v_permlane32_swap_b32 v8, v9")
    A("v_add_f32 v6, v6, v7")
    A("v_add_f32 v8, v8, v9")
    A("s_nop 1")
    A("v_permlane16_swap_b32 v6, v8")
    A("v_add_f32 v6, v6, v8")
    A("s_nop 1")
    A("v_add_f32_dpp v6, v6, v6 quad_perm:[1,0,3,2] row_mask:0xf bank_mask:0xf")
    A("s_nop 1")
    A("v_add_f32_dpp v6, v6, v6 quad_perm:[2,3,0,1] row_mask:0xf bank_mask:0xf")
    A("s_nop 1")
    A("v_add_f32_dpp v6, v6, v6 row_half_mirror row_mask:0xf bank_mask:0xf")
    A("s_nop 1")
    A("v_add_f32_dpp v6, v6, v6 row_mirror row_mask:0xf bank_mask:0xf")
    A("v_cvt_pk_bf16_f32 v7, v6, v6")
    A("v_and_b32 v7, 0xffff0000, v7          ; r (bf16)")
    A("v_ashrrev_i32 v6, 31, v7")
    A("v_or_b32 v6, 0x80000000, v6")
    A("v_xor_b32 v6, v6, v7")
    A("v_cmp_o_f32 vcc, v7, v7")
    A("v_and_b32 v6, 0xffff0000, v6")
    A("s_nop 0")
    A("v_cndmask_b32 v6, 0, v6, vcc")
    A("v_or_b32 v6, v10, v6")
    A("v_mov_b32 v7, v6")
    A("s_nop 1")
    A("v_permlane16_swap_b32 v6, v7")
    A("v_max_u32 v6, v6, v7")
    A("v_mov_b32 v7, v6")
    A("s_nop 1")
    A("v_permlane32_swap_b32 v6, v7")
    A("v_max_u32 v6, v6, v7")
    A("v_mov_b32 v7, s40")
    A("s_mov_b64 exec, 0xff")
    A("buffer_store_dwordx2 v[6:7], v5, s[32:35], s46 offen sc1")
    A("s_mov_b64 exec, -1")
    A("s_barrier                            ; B0b")
    stamp(2)
    A("s_setprio 0")
    A("s_lshl_b32 s53, s52, 5")
    A("s_add_u32 s53, s53, s45")
    for r in range(XR, XR+32):
        A(f"v_lshlrev_b32 v16, 16, v{r}")
        A(f"v_and_b32 v17, 0xffff0000, v{r}")
        A("v_pk_fma_f32 v[16:17], v[16:17], 0, v[16:17] op_sel_hi:[1,0,1]")
        A(f"v_cvt_pk_bf16_f32 v{r}, v16, v17    ; x + x*0")
    if ackwait: A("s_waitcnt vmcnt(0)")
    LB("L_ip0")
    A("v_mul_u32_u24 v12, %d, v0            ; poll offset" % LS)
    A("s_mul_i32 s47, s22, %d" % REPS)
    A("s_add_u32 s47, s47, %d               ; this die's replica" % O_IDX)
    A("s_mov_b32 s49, 0")
    A("v_and_b32 v4, 7, v0")
    A("v_lshrrev_b32 v11, 3, v0")
    for k in range(NP):
        if psleep and k: A(f"s_sleep {psleep}")
        A(f"buffer_load_dwordx2 v[{16+2*k}:{17+2*k}], v12, s[32:35], s47 offen sc1")
    A("s_lshr_b32 s45, s21, 1")
    A("s_sub_u32 s46, 10, s57")
    A("s_lshl_b32 s45, s45, s46")
    A("s_mov_b32 s50, s2                    ; slice")
    LB("L_ipoll")
    for k in range(NP):
        A(f"s_waitcnt vmcnt({NP-1})")
        A(f"v_cmp_ne_u32 vcc, s40, v{17+2*k}")
        A(f"v_mov_b32 v8, v{16+2*k}")
        A("s_cbranch_vccz L_iok")
        A(f"buffer_load_dwordx2 v[{16+2*k}:{17+2*k}], v12, s[32:35], s47 offen sc1")
    A("s_add_u32 s49, s49, 1")
    A("s_cmp_lt_u32 s49, %d" % SPIN)
    A("s_cbranch_scc1 L_ipoll")
    LB("L_iok")
    stamp(3)
    if stamps: A("s_mov_b32 s59, s49")
    A("s_mov_b32 m0, %d" % L_XS)
    A("v_max_u32_dpp v8, v8, v8 row_ror:8 row_mask:0xf bank_mask:0xf")
    A("v_mov_b32 v9, v8")
    A("s_and_b32 s52, s52, 7")
    A("s_cmp_eq_u32 s57, 1")
    A("v_permlane16_swap_b32 v8, v9")
    A("v_max_u32 v8, v8, v9")
    A("v_mov_b32 v9, v8")
    A("s_nop 1")
    A("v_permlane32_swap_b32 v8, v9")
    A("v_max_u32 v8, v8, v9")
    A("v_and_b32 v10, 31, v8")
    A("v_xor_b32 v10, 31, v10")
    A("v_lshl_add_u32 v10, v4, 5, v10       ; row")
    A("v_lshlrev_b32 v10, 11, v10")
    A("v_lshl_add_u32 v10, v11, 4, v10      ; + chunk*16")
    A("v_lshlrev_b32 v9, 2, v4")
    A("v_readlane_b32 s54, v10, s52")
    for i in range(8):
        if i == 4: A("s_cbranch_scc1 L_dmadone")
        A(f"buffer_load_dwordx4 v10, s[28:31], s45 offen{xpol} lds")
        if i < 7:
            A("s_mov_b32 m0, %d" % (L_XS + 1024*(i+1)))
            A("v_add_u32 v10, 128, v10")
    LB("L_dmadone")
    A(f"ds_write_b32 v9, v8 offset:{L_KEY}")
    A("s_mov_b32 s36, s14")
    A("s_mov_b32 s37, s15")
    A("s_mov_b32 s38, 524288")
    A("s_mov_b32 s39, 0x20000")
    A("s_waitcnt vmcnt(0) lgkmcnt(0)")
    A("s_barrier                            ; B2")
    stamp(4)
    A("s_cmp_ge_u32 s22, %d" % NRX)
    A("s_cbranch_scc1 L_red")
    A("s_lshl_b32 s44, s53, 11")
    for t in range(4):
        A("s_cmp_eq_u32 s44, s54")
        A(f"s_cbranch_scc1 L_sel{t}")
        A(f"buffer_store_dwordx4 v[{XR+8*t}:{XR+8*t+3}], v14, s[36:39], s44 offen{outpol}")
        A(f"buffer_store_dwordx4 v[{XR+8*t+4}:{XR+8*t+7}], v14, s[36:39], s44 offen offset:1024{outpol}")
        LB(f"L_sel{t}")
        A("s_add_u32 s44, s44, 2048")
    LB("L_red")
    A("s_lshr_b32 s51, s50, 5               ; token")
    A("s_lshl_b32 s45, s51, 2")
    A("v_mov_b32 v5, s45")
    A(f"ds_read_b32 v6, v5 offset:{L_KEY}")
    A("s_barrier                            ; B3")
    A("s_mov_b32 s36, s14")
    A("s_mov_b32 s37, s15")
    A("s_mov_b32 s38, 524288")
    A("s_mov_b32 s39, 0x20000")
    A("s_and_b32 s41, s40, 0xff")
    A("v_lshrrev_b32 v7, 5, v0")
    A("v_bfe_u32 v8, v0, 4, 1")
    A("v_lshl_add_u32 v7, v8, 1, v7         ; e")
    A("v_lshl_add_u32 v7, v4, 2, v7         ; 4*pos + e")
    A("s_and_b32 s45, s50, 31")
    A("s_lshl_b32 s45, s45, 5")
    A("v_add_u32 v7, s45, v7                ; column")
    A("s_waitcnt lgkmcnt(0)")
    A("v_and_b32 v8, 31, v6")
    A("v_xor_b32 v8, 31, v8")
    A("s_lshl_b32 s45, s51, 5")
    A("v_add_u32 v8, s45, v8                ; row")
    A("v_lshlrev_b32 v8, 10, v8")
    A("v_add_u32 v7, v8, v7")
    A("v_lshlrev_b32 v7, 1, v7")
    A("buffer_load_ushort v9, v7, s[28:31], 0 offen")
    A("v_lshrrev_b32 v10, 16, v6")
    A("v_xor_b32 v11, 0xffff, v10")
    A("v_and_b32 v12, 0x7fff, v10")
    A("v_cmp_gt_i32 vcc, 0, v6")
    A("s_mov_b32 s45, 0xbfb8aa3b")
    A("s_nop 0")
    A("v_cndmask_b32 v10, v11, v12, vcc")
    A("v_lshlrev_b32 v10, 16, v10           ; r")
    A("v_mul_f32 v10, s45, v10")
    A("v_exp_f32 v10, v10")
    A("s_nop 0")
    A("v_add_f32 v10, 1.0, v10")
    A("v_rcp_f32 v10, v10")
    A("s_nop 0")
    A("v_cvt_pk_bf16_f32 v10, v10, v10")
    A("v_and_b32 v10, 0xffff0000, v10       ; sigmoid")
    A("s_mul_i32 s46, s50, 7168")
    A("s_add_u32 s46, s46, %d" % O_EX2)
    A("s_add_u32 s47, s46, 4096")
    A("s_mov_b32 s49, 0")
    A("s_mov_b32 s44, 0x00ff00ff")
    A("s_mov_b32 s45, 0x00ff00ff")
    A("s_waitcnt vmcnt(0)")
    A("v_lshlrev_b32 v9, 16, v9             ; x")
    A("s_barrier                            ; B4")
    A("s_barrier                            ; B5")
    if x2delay: A(f"s_sleep {x2delay}")
    stamp(5)
    LB("L_x2poll")
    for i in range(7):
        so = "s46" if i < 4 else "s47"
        A(f"buffer_load_dwordx4 v[{32+4*i}:{35+4*i}], v14, s[32:35], {so} offen offset:{(i%4)*1024} sc1")
    A("s_add_u32 s49, s49, 1")
    for i in range(7):
        A(f"s_waitcnt vmcnt({6-i})")
        b = 32 + 4*i
        for r in range(b, b+4): A(f"v_xor_b32 v{r}, s41, v{r}")
        if i == 0:
            A(f"v_or3_b32 v15, v{b}, v{b+1}, v{b+2}")
            A(f"v_or_b32 v15, v15, v{b+3}")
        else:
            A(f"v_or3_b32 v15, v15, v{b}, v{b+1}")
            A(f"v_or3_b32 v15, v15, v{b+2}, v{b+3}")
            src = 32 if i == 1 else 16
            A(f"v_pk_add_f32 v[16:17], v[{src}:{src+1}], v[{b}:{b+1}]")
            A(f"v_pk_add_f32 v[18:19], v[{src+2}:{src+3}], v[{b+2}:{b+3}]")
    A("v_and_b32 v15, 0xff, v15")
    A("v_cmp_ne_u32 vcc, 0, v15")
    A("s_cbranch_vccz L_x2ok")
    A("s_cmp_lt_u32 s49, %d" % SPIN)
    A("s_cbranch_scc1 L_x2poll")
    LB("L_x2ok")
    stamp(6)
    A("v_permlane32_swap_b32 v16, v17")
    A("v_permlane32_swap_b32 v18, v19")
    A("v_add_f32 v16, v16, v17")
    A("v_add_f32 v18, v18, v19")
    A("s_nop 1")
    A("v_permlane16_swap_b32 v16, v18")
    A("v_add_f32 v16, v16, v18")
    A("s_nop 1")
    A("v_add_f32_dpp v16, v16, v16 row_ror:8 row_mask:0xf bank_mask:0xf")
    A("s_mov_b64 exec, s[44:45]")
    A("v_cvt_pk_bf16_f32 v16, v16, v16")
    A("v_and_b32 v16, 0xffff0000, v16       ; y")
    A("v_mul_f32 v16, v16, v10")
    A("v_cvt_pk_bf16_f32 v16, v16, v16")
    A("v_and_b32 v16, 0xffff0000, v16       ; y*sigmoid")
    A("v_fma_f32 v16, v9, 0, v16            ; upd = x*0 + y")
    A("v_add_f32 v16, v9, v16")
    A("v_cvt_pk_bf16_f32 v16, v16, v16")
    A(f"buffer_store_short v16, v7, s[36:39], 0 offen{outpol}")
    A("s_cmp_lg_u32 s50, 0")
    A("s_cbranch_scc1 L_noep")
    A("v_mov_b32 v18, s40")
    A("v_mov_b32 v17, 0")
    A("s_mov_b64 exec, 1")
    A("buffer_store_dword v18, v17, s[32:35], 0 offen sc1")
    LB("L_noep")
    stamp(7)
    LB("L_fin")
    if amp:
        A("s_waitcnt lgkmcnt(0)")
        A(f"s_cmp_lg_u32 s3, {amp[2]}")
        A("s_cbranch_scc1 L_end")
        A(f"s_cmp_lg_u32 s2, {amp[3]}")
        A("s_cbranch_scc1 L_end")
        A(f"s_sub_u32 s20, s{60+2*amp[1]}, s{60+2*amp[0]}")
        A("s_min_u32 s20, s20, 5000")
        A("s_mul_i32 s20, s20, 10")
        A("s_memrealtime s[22:23]")
        A("s_waitcnt lgkmcnt(0)")
        LB("L_amp")
        A("s_memrealtime s[24:25]")
        A("s_waitcnt lgkmcnt(0)")
        A("s_sub_u32 s21, s24, s22")
        A("s_cmp_lt_u32 s21, s20")
        A("s_cbranch_scc1 L_amp")
    elif gamp:
        k, wv, fac, cnt = gamp
        A("s_waitcnt lgkmcnt(0) vmcnt(0)")
        A(f"s_cmp_lg_u32 s3, {wv}")
        A("s_cbranch_scc1 L_end")
        A("s_mov_b64 exec, 1")
        A("s_not_b32 s20, s60")
        A("v_mov_b32 v16, s20")
        A(f"v_mov_b32 v17, s{60+2*k}" if k >= 0 else f"v_mov_b32 v17, s49")
        A("v_mov_b32 v3, 0")
        A("v_mov_b32 v18, 1")
        A("global_atomic_umax v3, v16, s[16:17] sc1")
        A("global_atomic_umax v3, v17, s[16:17] offset:64 sc1")
        A("s_waitcnt vmcnt(0)")
        A("global_atomic_add v19, v3, v18, s[16:17] offset:128 sc0 sc1")
        A("s_waitcnt vmcnt(0)")
        A("v_readfirstlane_b32 s20, v19")
        A(f"s_cmp_lg_u32 s20, {cnt-1}")
        A("s_cbranch_scc1 L_end")
        A("v_mov_b32 v18, 0")
        A("global_atomic_umax v16, v3, v18, s[16:17] sc0 sc1")
        A("global_atomic_umax v17, v3, v18, s[16:17] offset:64 sc0 sc1")
        A("s_waitcnt vmcnt(0)")
        A("v_readfirstlane_b32 s20, v16")
        A("v_readfirstlane_b32 s21, v17")
        A("s_not_b32 s20, s20")
        if k >= 0: A("s_sub_u32 s20, s21, s20")
        else: A("s_mov_b32 s20, s21")
        A("v_mov_b32 v18, s20")
        A("global_store_dword v3, v18, s[16:17] offset:4")
        A("s_min_u32 s20, s20, 3000")
        A(f"s_mul_i32 s20, s20, {fac}")
        A("s_memrealtime s[22:23]")
        A("s_waitcnt lgkmcnt(0)")
        LB("L_amp")
        A("s_memrealtime s[24:25]")
        A("s_waitcnt lgkmcnt(0)")
        A("s_sub_u32 s21, s24, s22")
        A("s_cmp_lt_u32 s21, s20")
        A("s_cbranch_scc1 L_amp")
    elif stamps:
        A("s_waitcnt lgkmcnt(0)")
        A("s_mov_b64 exec, -1")
        A("s_lshl_b32 s20, s3, 8")
        A("s_add_u32 s20, s20, s2")
        A("s_lshl_b32 s20, s20, 6")
        A("s_add_u32 s20, s20, 0x8000000")
        A("s_add_u32 s18, s18, s20")
        A("s_addc_u32 s19, s19, 0")
        for i in range(8): A(f"v_mov_b32 v{16+i}, s{60+2*i}")
        A("v_mov_b32 v24, s49")
        A("v_mov_b32 v25, s59")
        A("v_mov_b32 v3, 0")
        A("s_mov_b64 exec, 1")
        A("global_store_dwordx4 v3, v[16:19], s[18:19]")
        A("global_store_dwordx4 v3, v[20:23], s[18:19] offset:16")
        A("global_store_dwordx2 v3, v[24:25], s[18:19] offset:32")
    LB("L_end")
    A("s_endpgm")
    body = "\n".join(L)
    return f"""{HEAD}; @launch grid=(256,1,1) block=(384,1,1) lds={LDS_BYTES}
.amdgcn_target "amdgcn-amd-amdhsa--gfx950"
.text
.globl {KN}
.p2align 8
.type {KN},@function
{KN}:
{body}
.section .rodata,"a"
.p2align 6
.amdhsa_kernel {KN}
  .amdhsa_next_free_vgpr 160
  .amdhsa_next_free_sgpr 96
  .amdhsa_accum_offset 160
  .amdhsa_group_segment_fixed_size 0
  .amdhsa_kernarg_size 64
  .amdhsa_user_sgpr_count 2
  .amdhsa_user_sgpr_kernarg_segment_ptr 1
  .amdhsa_system_sgpr_workgroup_id_x 1
  .amdhsa_float_denorm_mode_32 3
.end_amdhsa_kernel
"""
if __name__ == "__main__":
    import sys, json
    kw = json.loads(sys.argv[2]) if len(sys.argv) > 2 else {}
    open(sys.argv[1] if len(sys.argv) > 1 else "standalone__moe_arch_mod__sampling.s", "w").write(gen(**kw))
```

```python
def epilogue(A, LB, stats, nwg=252, gatherwave=4, invalid=(228,236,244,252), extra=("s49","s59")):
    A("s_waitcnt lgkmcnt(0) vmcnt(0)")
    A("s_mov_b64 exec, -1")
    A("s_barrier")
    A("s_lshl_b32 s20, s3, 8")
    A("s_add_u32 s20, s20, s2")
    A("s_lshl_b32 s20, s20, 6")
    A("s_add_u32 s18, s18, 0x8000000")
    A("s_addc_u32 s19, s19, 0")
    for i in range(8): A(f"v_mov_b32 v{16+i}, s{60+2*i}")
    A(f"v_mov_b32 v24, {extra[0]}")
    A(f"v_mov_b32 v25, {extra[1]}")
    A("v_mov_b32 v3, s20")
    A("s_mov_b64 exec, 1")
    A("global_store_dwordx4 v3, v[16:19], s[18:19] sc1")
    A("global_store_dwordx4 v3, v[20:23], s[18:19] offset:16 sc1")
    A("global_store_dwordx2 v3, v[24:25], s[18:19] offset:32 sc1")
    A("s_waitcnt vmcnt(0)")
    A("s_barrier")
    A(f"s_cmp_lg_u32 s3, {gatherwave}")
    A("s_cbranch_scc1 L_end")
    A("v_mov_b32 v3, 0")
    A("v_mov_b32 v18, 1")
    A("global_atomic_add v19, v3, v18, s[16:17] offset:128 sc0 sc1")
    A("s_waitcnt vmcnt(0)")
    A("v_readfirstlane_b32 s20, v19")
    A(f"s_cmp_lg_u32 s20, {nwg-1}")
    A("s_cbranch_scc1 L_end")
    A("s_mov_b64 exec, -1")
    A("v_mbcnt_lo_u32_b32 v0, -1, 0")
    A("v_mbcnt_hi_u32_b32 v0, -1, v0")
    for i in range(4):
        A(f"v_add_u32 v{4+i}, {64*i}, v0")
        for bad in invalid:
            if bad // 64 == i:
                A(f"s_mov_b32 s20, {bad}")
                A(f"v_cmp_eq_u32 vcc, s20, v{4+i}")
                A("s_nop 1")
                A(f"v_cndmask_b32 v{4+i}, v{4+i}, {bad & 7}, vcc")
        A(f"v_lshlrev_b32 v{4+i}, 6, v{4+i}")
    def gather(role, k, op, dst):
        A(f"s_add_u32 s22, s18, {role*256*64 + 4*k}")
        A("s_addc_u32 s23, s19, 0")
        for i in range(4): A(f"global_load_dword v{8+i}, v{4+i}, s[22:23] sc1")
        A("s_waitcnt vmcnt(0)")
        if op == "min":
            for i in range(4):
                A(f"v_cmp_eq_u32 vcc, 0, v{8+i}")
                A("s_nop 1")
                A(f"v_cndmask_b32 v{8+i}, v{8+i}, -1, vcc")
        o = f"v_{op}_u32"
        A(f"{o} v8, v8, v9"); A(f"{o} v10, v10, v11"); A(f"{o} v8, v8, v10")
        A("s_nop 1")
        A(f"{o}_dpp v8, v8, v8 row_ror:8 row_mask:0xf bank_mask:0xf")
        A("v_mov_b32 v9, v8"); A("s_nop 1")
        A("v_permlane16_swap_b32 v8, v9"); A(f"{o} v8, v8, v9")
        A("v_mov_b32 v9, v8"); A("s_nop 1")
        A("v_permlane32_swap_b32 v8, v9"); A(f"{o} v{dst}, v8, v9")
    gather(0, 0, "min", 30)
    gather(4, 0, "min", 31)
    A("v_min_u32 v30, v30, v31")
    A("s_nop 1")
    A("v_min_u32_dpp v30, v30, v30 row_ror:4 row_mask:0xf bank_mask:0xf")
    A("s_nop 1")
    A("v_min_u32_dpp v30, v30, v30 row_ror:2 row_mask:0xf bank_mask:0xf")
    A("s_nop 1")
    A("v_min_u32_dpp v30, v30, v30 row_ror:1 row_mask:0xf bank_mask:0xf")
    for q, (role, k, op) in enumerate(stats):
        gather(role, k, op, 32)
        if k < 8:
            A("v_sub_u32 v32, v32, v30")
            A("v_add_u32 v32, 2, v32")
            A("v_ashrrev_i32 v32, 2, v32")
            A("v_max_i32 v32, 0, v32")
        A("v_min_u32 v32, 255, v32")
        A(f"v_add_u32 v33, {8*q}, v0")
        A("s_mov_b64 exec, 0xff")
        A("global_store_byte v33, v32, s[16:17]")
        A("s_mov_b64 exec, -1")
```

```python
KN = "standalone__moe_arch_mod__sampling_kernel"
HEAD = open("standalone__moe_arch_mod__sampling.s.ref").read().split("; Override launch")[0]

O_IDX = 0x1000
O_EX1 = 0x20000
O_EX1F = 0x100000
O_EX2 = 0x200000
WS_REC = 0x400000
L_XS = 0
L_RED = 8192
L_HB = 16384
L_KEY = 17408
LDS_BYTES = 17408 + 64
SPIN = 40000
NRX = 2

def gen(pol="nt", xpol="", D1=10, LS=16, NF=10, stamps=False, outpol="", amp=None, psleep=0, NP=1,
        PD=40, D0=5, ackwait=True, WA=10, PW=0, D13=None, WA3=None, x2delay=0, gamp=None, dg=None):
    if gamp or dg: stamps=True
    L = []
    def A(s): L.append("  " + s)
    def LB(s): L.append(s + ":")
    def stamp(i):
        if stamps: A(f"s_memrealtime s[{60+2*i}:{61+2*i}]")
    pol = (" " + pol) if pol else ""
    xpol = (" " + xpol) if xpol else ""
    outpol = (" " + outpol) if outpol else ""
    REPS = 64 * LS
    D13 = D13 or D1
    WA3 = WA3 or WA

    stamp(0)
    A("s_cmp_ge_u32 s2, 256")
    A("s_cbranch_scc1 L_exit")
    A("s_load_dwordx16 s[4:19], s[0:1], 0")
    A("v_lshrrev_b32 v1, 6, v0")
    A("v_and_b32 v0, 63, v0                 ; lane")
    A("v_readfirstlane_b32 s3, v1           ; wave")
    if stamps:
        for i in range(1, 8): A(f"s_mov_b32 s{60+2*i}, 0")
        A("s_mov_b32 s49, 0")
        A("s_mov_b32 s59, 0")
    A("s_and_b32 s22, s2, 7")
    A("s_lshr_b32 s23, s2, 3                ; j")
    A("s_add_u32 s56, s22, 3")
    A("s_and_b32 s56, s56, 7")
    A("s_lshr_b32 s20, s23, 2")
    A("s_and_b32 s21, s23, 3")
    A("s_cmp_eq_u32 s20, 7")
    A("s_cselect_b32 s20, s56, s20")
    A("s_cselect_b32 s44, 4, 0")
    A("s_add_u32 s21, s21, s44              ; q")
    A("s_cmp_lg_u32 s20, 7")
    A("s_cbranch_scc1 L_hastile")
    LB("L_exit")
    A("s_endpgm")
    LB("L_hastile")
    A("s_cmp_eq_u32 s20, s56")
    A("s_cselect_b32 s57, 1, 0")
    A("s_mul_i32 s44, s22, 7")
    A("s_add_u32 s20, s20, s44              ; ct")
    A("s_mov_b32 s27, 0x20000")
    A("s_mov_b32 s34, %d" % WS_REC)
    A("s_mov_b32 s35, 0x20000")
    A("s_cmp_ge_u32 s3, 4")
    A("s_cbranch_scc1 L_r")
    A("s_mov_b32 s26, 7340032")
    A("v_lshrrev_b32 v1, 4, v0              ; g")
    A("v_and_b32 v2, 15, v0                 ; n")
    A("v_mul_u32_u24 v3, %d, v1" % (8*7168))
    A("v_lshl_add_u32 v3, v2, 3, v3         ; voffset")
    A("s_lshr_b32 s44, s21, 1")
    A("s_lshl_b32 s44, s44, 2")
    A("s_add_u32 s44, s44, s3")
    A("s_lshl_b32 s45, s20, 7")
    A("s_cmp_eq_u32 s57, 1")
    A("s_cbranch_scc1 L_cb")

    RAW = 16; FR = 80; XB = 96; ACC = 112; W2 = 128
    F2 = 40; HA = 72
    def raw(s, i): return RAW + 16*s + 2*i
    def frag(s, j): return (FR if s == 0 else RAW + 16*(s-1)) + 4*j
    def raw2(s, i): return W2 + 16*s + 2*i
    def frag2(s, j): return F2 + 16*s + 4*j
    def perms(rawf, fragf, s):
        for e in range(2):
            for p in range(4):
                A(f"v_perm_b32 v{fragf(s,2*e)+p}, v{rawf(s,2*p+1)+e}, v{rawf(s,2*p)+e}, s42")
            for p in range(4):
                A(f"v_perm_b32 v{fragf(s,2*e+1)+p}, v{rawf(s,2*p+1)+e}, v{rawf(s,2*p)+e}, s43")
    def w2load(n):
        s, i = divmod(n, 8)
        p, b = divmod(i, 2)
        row = 2*s + (p >> 1) + 8*(p & 1) + 4*b
        A("s_add_u32 s47, s44, %d" % (row*2048))
        A(f"buffer_load_dwordx2 v[{raw2(s,i)}:{raw2(s,i)+1}], v10, s[28:31], s47 offen{pol}")
    def cpath(NS, sfx, D, WA):
        NL = 8*NS
        WB = 16 - WA
        A("s_mul_i32 s44, s44, %d" % (32*NS*7168))
        A("s_add_u32 s44, s44, s45              ; soffset")
        A("s_bitcmp1_b32 s21, 0")
        A("s_waitcnt lgkmcnt(0)")
        A("s_cselect_b32 s24, s10, s8")
        A("s_cselect_b32 s25, s11, s9")
        A("s_cmp_ge_u32 s22, %d" % NRX)
        A("s_cbranch_scc1 L_nb0" + sfx)
        A("s_barrier")
        LB("L_nb0" + sfx)
        stamp(1)
        done = 0
        for n in range(NL + WA):
            if n >= D: A(f"s_waitcnt vmcnt({D-1})")
            if n < NL:
                s, i = divmod(n, 8)
                A(f"buffer_load_dwordx2 v[{raw(s,i)}:{raw(s,i)+1}], v3, s[24:27], s44 offen{pol}")
                if n < NL-1: A("s_add_u32 s44, s44, %d" % (7168 if i < 7 else 25*7168))
            else:
                w2load(n - NL)
            if n == 0:
                A("s_load_dword s40, s[18:19], 0        ; epoch")
            if n == D0 - 1:
                A("s_mov_b32 s32, s18")
                A("s_mov_b32 s33, s19")
                A("s_mov_b32 s42, 0x05040100")
                A("s_mov_b32 s43, 0x07060302")
                A("v_and_b32 v8, 7, v0")
                A("v_lshl_add_u32 v13, v1, 3, v8")
                A("v_lshlrev_b32 v13, 4, v13")
                A("s_lshl_b32 s45, s3, %d" % (11 if NS == 4 else 10))
                A("v_add_u32 v5, s45, v13")
                A("s_lshl_b32 s45, s3, 11")
                A("v_add_u32 v4, s45, v13")
                A("v_lshlrev_b32 v6, 3, v0")
                A("s_lshl_b32 s45, s3, 9")
                A("v_add_u32 v6, s45, v6                ; w*512 + lane*8")
                A("v_lshrrev_b32 v7, 1, v0")
                A("v_lshlrev_b32 v7, 4, v7")
                A("v_and_b32 v9, 1, v0")
                A("v_lshl_add_u32 v7, v9, 2, v7")
                A("s_lshr_b32 s45, s3, 1")
                A("s_lshl_b32 s45, s45, 9")
                A("s_and_b32 s46, s3, 1")
                A("s_lshl_b32 s46, s46, 3")
                A("s_add_u32 s45, s45, s46")
                A("v_add_u32 v7, s45, v7")
                A("s_mov_b32 s28, s12")
                A("s_mov_b32 s29, s13")
                A("s_mov_b32 s30, 7340032")
                A("s_mov_b32 s31, 0x20000")
                A("v_lshlrev_b32 v10, 15, v1            ; g*16*2048")
                A("v_lshl_add_u32 v10, v2, 3, v10")
                A("v_lshrrev_b32 v11, 3, v2")
                A("v_lshl_add_u32 v11, v1, 7, v11       ; 4g*32 + (n>>3)")
                A("v_mul_u32_u24 v11, 7168, v11")
                A("v_lshl_add_u32 v11, v8, 4, v11       ; + (n&7)*16")
                A("s_lshl_b32 s53, s21, %d" % (2 if NS == 4 else 1))
                A("s_add_u32 s53, s53, s3")
                if NS == 2:
                    A("s_cmp_ge_u32 s3, 2")
                    A("s_cselect_b32 s45, 0x40000000, 0")
                    A("v_or_b32 v10, s45, v10")
                    A("v_or_b32 v11, s45, v11")
                A("s_mul_i32 s52, s53, %d" % (2*7168))
                A("s_lshl_b32 s46, s20, 7")
                A("s_add_u32 s52, s52, s46")
                A("s_add_u32 s52, s52, %d" % O_EX2)
                A("s_lshl_b32 s53, s53, 7")
                A("s_lshl_b32 s46, s20, 17              ; ct*64*2048")
                A("s_add_u32 s53, s53, s46")
                A("s_lshl_b32 s45, s20, 14")
                A("s_lshl_b32 s46, s21, 11")
                A("s_add_u32 s46, s46, s45")
                A("s_add_u32 s50, s46, %d" % O_EX1)
                A("s_add_u32 s46, s46, %d" % O_EX1F)
                A("s_add_u32 s45, s45, %d" % O_EX1F)
                A("s_mov_b32 s48, 0xffffff00")
                A("s_mov_b32 s51, 0xbfb8aa3b            ; -log2(e)")
                A("s_mov_b32 s49, 0")
                A("s_cmp_ge_u32 s22, %d" % NRX)
                A("s_cbranch_scc1 L_nb0b" + sfx)
                A("s_barrier")
                LB("L_nb0b" + sfx)
            if n == NL - 1:
                A("s_mov_b32 s44, s53")
                stamp(2)
            complete = n - D + 1 if n >= D else 0
            while done < NS and 8*done + 8 <= complete:
                perms(raw, frag, done); done += 1
        A("s_waitcnt lgkmcnt(0)")
        A("s_add_u32 s40, s40, 1                ; tag32")
        A("s_and_b32 s41, s40, 0xff")
        A("v_mov_b32 v9, s41")
        while done < NS:
            A(f"s_waitcnt vmcnt({NL + WA - 8*done - 8})")
            perms(raw, frag, done); done += 1
        A("s_barrier                            ; B2")
        stamp(3)
        for s in range(NS):
            A(f"ds_read_b128 v[{XB+4*s}:{XB+4*s+3}], v5 offset:{L_XS + 512*s}")
        for s in range(NS):
            A(f"s_waitcnt lgkmcnt({NS-1-s})")
            for j in range(4):
                c = "0" if s == 0 else f"v[{ACC+4*j}:{ACC+4*j+3}]"
                A(f"v_mfma_f32_16x16x32_bf16 v[{ACC+4*j}:{ACC+4*j+3}], v[{frag(s,j)}:{frag(s,j)+3}], v[{XB+4*s}:{XB+4*s+3}], {c}")
        A("s_mov_b32 exec_lo, 0x00ff00ff")
        A("s_mov_b32 exec_hi, 0x00ff00ff")
        A("s_nop 2")
        for j in range(4):
            A(f"ds_write_b128 v4, v[{ACC+4*j}:{ACC+4*j+3}] offset:{L_RED + 512*j}")
        A("s_mov_b64 exec, -1")
        A("s_waitcnt lgkmcnt(0)")
        A("s_barrier                            ; B3")
        for w in range(4):
            A(f"ds_read_b64 v[{16+2*w}:{17+2*w}], v6 offset:{L_RED + 2048*w}")
        A("s_waitcnt lgkmcnt(2)")
        A("v_pk_add_f32 v[16:17], v[16:17], v[18:19]")
        A("s_waitcnt lgkmcnt(0)")
        A("v_pk_add_f32 v[20:21], v[20:21], v[22:23]")
        A("v_pk_add_f32 v[16:17], v[16:17], v[20:21]")
        A("v_and_or_b32 v16, v16, s48, v9")
        A("v_and_or_b32 v17, v17, s48, v9")
        A("buffer_store_dwordx2 v[16:17], v6, s[32:35], s46 offen")
        stamp(4)
        for n in range(WA, 16): w2load(n)
        A(f"s_waitcnt vmcnt({WB})")
        pdone = 0
        if WA >= 8:
            perms(raw2, frag2, 0); pdone = 1
        if PW and WB: A(f"s_waitcnt vmcnt({max(WB - PW, 0)})")
        NB = 4 if NS == 4 else 8
        LB("L_x1poll" + sfx)
        for b in range(NB):
            if b and b % 2 == 0: A(f"s_add_u32 s47, s45, {b*2048}")
            A(f"buffer_load_dwordx2 v[{24+2*b}:{25+2*b}], v6, s[32:35], {'s45' if b < 2 else 's47'} offen offset:{(b%2)*2048} sc1")
        A("s_add_u32 s49, s49, 1")
        A("s_waitcnt vmcnt(0)")
        for r in range(24, 24+2*NB): A(f"v_xor_b32 v{r}, s41, v{r}")
        A("v_or3_b32 v8, v24, v25, v26")
        for r in range(27, 24+2*NB-1, 2): A(f"v_or3_b32 v8, v8, v{r}, v{r+1}")
        A(f"v_or_b32 v8, v8, v{24+2*NB-1}")
        A("v_and_b32 v8, 0xff, v8")
        A("v_cmp_ne_u32 vcc, 0, v8")
        A("s_cbranch_vccz L_x1ok" + sfx)
        A(f"s_cmp_lg_u32 s49, {NF}")
        A("s_cbranch_scc1 L_x1ns" + sfx)
        A("buffer_store_dwordx2 v[16:17], v6, s[32:35], s50 offen sc1")
        A("s_sub_u32 s45, s45, %d" % (O_EX1F - O_EX1))
        LB("L_x1ns" + sfx)
        A("s_cmp_lt_u32 s49, %d" % SPIN)
        A("s_cbranch_scc1 L_x1poll" + sfx)
        LB("L_x1ok" + sfx)
        stamp(5)
        if NB == 8:
            A("v_pk_add_f32 v[24:25], v[24:25], v[32:33]")
            A("v_pk_add_f32 v[26:27], v[26:27], v[34:35]")
            A("v_pk_add_f32 v[28:29], v[28:29], v[36:37]")
            A("v_pk_add_f32 v[30:31], v[30:31], v[38:39]")
        return pdone
    pa = cpath(4, "a", D1, WA)
    LB("L_h")
    A("v_pk_add_f32 v[24:25], v[24:25], v[28:29]   ; gate")
    A("v_pk_add_f32 v[26:27], v[26:27], v[30:31]   ; up")
    A("v_cvt_pk_bf16_f32 v8, v24, v25")
    A("v_cvt_pk_bf16_f32 v12, v26, v27")
    A("v_lshlrev_b32 v18, 16, v8")
    A("v_and_b32 v19, 0xffff0000, v8")
    A("v_mul_f32 v20, s51, v18")
    A("v_mul_f32 v21, s51, v19")
    A("v_exp_f32 v20, v20")
    A("v_exp_f32 v21, v21")
    A("v_lshlrev_b32 v14, 16, v12")
    A("v_add_f32 v20, 1.0, v20")
    A("v_add_f32 v21, 1.0, v21")
    A("v_rcp_f32 v20, v20")
    A("v_rcp_f32 v21, v21")
    A("v_and_b32 v15, 0xffff0000, v12")
    A("v_mul_f32 v18, v18, v20")
    A("v_mul_f32 v19, v19, v21")
    A("v_cvt_pk_bf16_f32 v8, v18, v19        ; silu")
    A("v_lshlrev_b32 v18, 16, v8")
    A("v_and_b32 v19, 0xffff0000, v8")
    A("v_mul_f32 v18, v18, v14")
    A("v_mul_f32 v19, v19, v15")
    A("v_cvt_pk_bf16_f32 v8, v18, v19        ; h")
    A(f"ds_write_b32 v7, v8 offset:{L_HB}")
    A("buffer_store_dwordx2 v[16:17], v6, s[32:35], s50 offen sc1")
    for s in range(pa, 2): perms(raw2, frag2, s)
    A("s_waitcnt lgkmcnt(0)")
    A("s_barrier                            ; B4")
    for s in range(2):
        A(f"ds_read_b128 v[{HA+4*s}:{HA+4*s+3}], v13 offset:{L_HB + 512*s}")
    for s in range(2):
        A(f"s_waitcnt lgkmcnt({1-s})")
        for j in range(4):
            c = "0" if s == 0 else f"v[{ACC+4*j}:{ACC+4*j+3}]"
            A(f"v_mfma_f32_16x16x32_bf16 v[{ACC+4*j}:{ACC+4*j+3}], v[{HA+4*s}:{HA+4*s+3}], v[{frag2(s,j)}:{frag2(s,j)+3}], {c}")
    A("s_mov_b32 exec_lo, -1")
    A("s_mov_b32 exec_hi, 0")
    A("s_nop 5")
    for r in range(4):
        for j in range(4):
            A(f"v_and_or_b32 v{20+4*r+j}, v{ACC+4*j+r}, s48, v9")
        A(f"buffer_store_dwordx4 v[{20+4*r}:{23+4*r}], v11, s[32:35], s52 offen sc1")
        if r < 3: A("s_add_u32 s52, s52, %d" % (32*7168))
    stamp(6)
    A("s_waitcnt vmcnt(0)")
    A("s_barrier                            ; B5")
    stamp(7)
    A("s_branch L_fin")
    LB("L_cb")
    pb = cpath(2, "b", D13, WA3)
    assert pa == pb
    A("s_branch L_h")

    XR = 80
    LB("L_r")
    A("s_mov_b32 s30, 524288")
    A("s_mov_b32 s31, 0x20000")
    A("v_lshlrev_b32 v14, 4, v0             ; lane*16")
    A("s_cmp_eq_u32 s3, 4")
    A("s_cbranch_scc1 L_r4")
    A("s_and_b32 s45, s2, 0xe7")
    A("s_cmp_eq_u32 s45, 0xe0")
    A("s_cbranch_scc1 L_r5")
    A("s_endpgm")
    LB("L_r5")
    A("s_barrier")
    A("s_waitcnt lgkmcnt(0)")
    A("s_load_dword s40, s[18:19], 0        ; epoch")
    A("s_mov_b32 s28, s4")
    A("s_mov_b32 s29, s5")
    A("s_mov_b32 s32, s18")
    A("s_mov_b32 s33, s19")
    A("s_add_u32 s50, s2, 4                 ; slice")
    A("v_and_b32 v4, 7, v0")
    A("s_barrier                            ; B0b")
    A("s_waitcnt lgkmcnt(0)")
    A("s_add_u32 s40, s40, 1")
    A("s_barrier                            ; B2")
    A("s_branch L_red")
    LB("L_r4")
    A("s_lshl_b32 s45, s20, 14")
    A("s_lshl_b32 s46, s21, 11")
    A("s_add_u32 s46, s46, s45")
    A("s_add_u32 s48, s46, %d               ; own L2-local block" % O_EX1F)
    A("s_cmp_lt_u32 s22, %d" % NRX)
    A("s_cbranch_scc1 L_route")
    A("s_waitcnt lgkmcnt(0)")
    A("s_mov_b32 s32, s18")
    A("s_mov_b32 s33, s19")
    A("buffer_load_dwordx4 v[24:27], v14, s[32:35], s48 offen")
    A("buffer_load_dwordx4 v[28:31], v14, s[32:35], s48 offen offset:1024")
    stamp(1)
    A("s_load_dword s40, s[18:19], 0        ; epoch")
    A("s_mov_b32 s28, s4")
    A("s_mov_b32 s29, s5")
    if PD: A(f"s_sleep {PD}")
    A("s_waitcnt lgkmcnt(0)")
    A("s_add_u32 s40, s40, 1")
    A("s_branch L_ip0")
    LB("L_route")
    A("s_setprio 3")
    A("s_lshl_b32 s52, s23, 1")
    A("s_add_u32 s52, s52, s22")
    A("s_lshl_b32 s44, s52, 13")
    A("s_add_u32 s45, s44, 4096")
    A("s_mov_b32 s26, 2048")
    A("s_waitcnt lgkmcnt(0)")
    A("s_mov_b32 s28, s4")
    A("s_mov_b32 s29, s5")
    A("s_mov_b32 s24, s6")
    A("s_mov_b32 s25, s7")
    A(f"buffer_load_dwordx4 v[16:19], v14, s[24:27], 0 offen")
    A(f"buffer_load_dwordx4 v[20:23], v14, s[24:27], 0 offen offset:1024")
    for i in range(8):
        A(f"buffer_load_dwordx4 v[{XR+4*i}:{XR+4*i+3}], v14, s[28:31], {'s44' if i < 4 else 's45'} offen offset:{(i%4)*1024}{xpol}")
    A("s_barrier                            ; B0")
    stamp(1)
    A("s_load_dword s40, s[18:19], 0        ; epoch")
    A("s_mov_b32 s32, s18")
    A("s_mov_b32 s33, s19")
    A("buffer_load_dwordx4 v[24:27], v14, s[32:35], s48 offen")
    A("buffer_load_dwordx4 v[28:31], v14, s[32:35], s48 offen offset:1024")
    A("s_and_b32 s45, s52, 7")
    A("s_lshl_b32 s46, s45, 3")
    A("s_lshr_b32 s52, s52, 3               ; batch")
    A("s_add_u32 s46, s46, s52")
    A("s_mul_i32 s46, s46, %d" % LS)
    A("s_add_u32 s46, s46, %d               ; slot" % O_IDX)
    A("s_lshl_b32 s45, s45, 2")
    A("v_mul_u32_u24 v5, %d, v0             ; replica offset" % REPS)
    A("v_lshrrev_b32 v10, 5, v0")
    A("v_bfe_u32 v11, v0, 4, 1")
    A("v_lshl_add_u32 v10, v11, 1, v10")
    A("v_add_u32 v10, s45, v10")
    A("v_xor_b32 v10, 31, v10")
    for t in range(4):
        for hlf in range(2):
            A(f"s_waitcnt vmcnt({9 - 2*t - hlf})")
            for k in range(4):
                c = "0" if (hlf == 0 and k == 0) else f"v{6+t}"
                A(f"v_dot2_f32_bf16 v{6+t}, v{XR+8*t+4*hlf+k}, v{16+4*hlf+k}, {c}")
    A("s_waitcnt lgkmcnt(0)")
    A("s_add_u32 s40, s40, 1")
    A("s_nop 0")
    A("v_permlane32_swap_b32 v6, v7")
    A("v_permlane32_swap_b32 v8, v9")
    A("v_add_f32 v6, v6, v7")
    A("v_add_f32 v8, v8, v9")
    A("s_nop 1")
    A("v_permlane16_swap_b32 v6, v8")
    A("v_add_f32 v6, v6, v8")
    A("s_nop 1")
    A("v_add_f32_dpp v6, v6, v6 quad_perm:[1,0,3,2] row_mask:0xf bank_mask:0xf")
    A("s_nop 1")
    A("v_add_f32_dpp v6, v6, v6 quad_perm:[2,3,0,1] row_mask:0xf bank_mask:0xf")
    A("s_nop 1")
    A("v_add_f32_dpp v6, v6, v6 row_half_mirror row_mask:0xf bank_mask:0xf")
    A("s_nop 1")
    A("v_add_f32_dpp v6, v6, v6 row_mirror row_mask:0xf bank_mask:0xf")
    A("v_cvt_pk_bf16_f32 v7, v6, v6")
    A("v_and_b32 v7, 0xffff0000, v7          ; r (bf16)")
    A("v_ashrrev_i32 v6, 31, v7")
    A("v_or_b32 v6, 0x80000000, v6")
    A("v_xor_b32 v6, v6, v7")
    A("v_cmp_o_f32 vcc, v7, v7")
    A("v_and_b32 v6, 0xffff0000, v6")
    A("s_nop 0")
    A("v_cndmask_b32 v6, 0, v6, vcc")
    A("v_or_b32 v6, v10, v6")
    A("v_mov_b32 v7, v6")
    A("s_nop 1")
    A("v_permlane16_swap_b32 v6, v7")
    A("v_max_u32 v6, v6, v7")
    A("v_mov_b32 v7, v6")
    A("s_nop 1")
    A("v_permlane32_swap_b32 v6, v7")
    A("v_max_u32 v6, v6, v7")
    A("v_mov_b32 v7, s40")
    A("s_mov_b64 exec, 0xff")
    A("buffer_store_dwordx2 v[6:7], v5, s[32:35], s46 offen sc1")
    A("s_mov_b64 exec, -1")
    A("s_barrier                            ; B0b")
    stamp(2)
    A("s_setprio 0")
    A("s_lshl_b32 s53, s52, 5")
    A("s_add_u32 s53, s53, s45")
    for r in range(XR, XR+32):
        A(f"v_lshlrev_b32 v16, 16, v{r}")
        A(f"v_and_b32 v17, 0xffff0000, v{r}")
        A("v_pk_fma_f32 v[16:17], v[16:17], 0, v[16:17] op_sel_hi:[1,0,1]")
        A(f"v_cvt_pk_bf16_f32 v{r}, v16, v17    ; x + x*0")
    if ackwait: A("s_waitcnt vmcnt(0)")
    LB("L_ip0")
    A("v_mul_u32_u24 v12, %d, v0            ; poll offset" % LS)
    A("s_mul_i32 s47, s22, %d" % REPS)
    A("s_add_u32 s47, s47, %d               ; this die's replica" % O_IDX)
    A("s_mov_b32 s49, 0")
    A("v_and_b32 v4, 7, v0")
    A("v_lshrrev_b32 v11, 3, v0")
    for k in range(NP):
        if psleep and k: A(f"s_sleep {psleep}")
        A(f"buffer_load_dwordx2 v[{16+2*k}:{17+2*k}], v12, s[32:35], s47 offen sc1")
    A("s_lshr_b32 s45, s21, 1")
    A("s_sub_u32 s46, 10, s57")
    A("s_lshl_b32 s45, s45, s46")
    A("s_mov_b32 s50, s2                    ; slice")
    LB("L_ipoll")
    for k in range(NP):
        A(f"s_waitcnt vmcnt({NP-1})")
        A(f"v_cmp_ne_u32 vcc, s40, v{17+2*k}")
        A(f"v_mov_b32 v8, v{16+2*k}")
        A("s_cbranch_vccz L_iok")
        A(f"buffer_load_dwordx2 v[{16+2*k}:{17+2*k}], v12, s[32:35], s47 offen sc1")
    A("s_add_u32 s49, s49, 1")
    A("s_cmp_lt_u32 s49, %d" % SPIN)
    A("s_cbranch_scc1 L_ipoll")
    LB("L_iok")
    stamp(3)
    if stamps: A("s_mov_b32 s59, s49")
    A("s_mov_b32 m0, %d" % L_XS)
    A("v_max_u32_dpp v8, v8, v8 row_ror:8 row_mask:0xf bank_mask:0xf")
    A("v_mov_b32 v9, v8")
    A("s_and_b32 s52, s52, 7")
    A("s_cmp_eq_u32 s57, 1")
    A("v_permlane16_swap_b32 v8, v9")
    A("v_max_u32 v8, v8, v9")
    A("v_mov_b32 v9, v8")
    A("s_nop 1")
    A("v_permlane32_swap_b32 v8, v9")
    A("v_max_u32 v8, v8, v9")
    A("v_and_b32 v10, 31, v8")
    A("v_xor_b32 v10, 31, v10")
    A("v_lshl_add_u32 v10, v4, 5, v10       ; row")
    A("v_lshlrev_b32 v10, 11, v10")
    A("v_lshl_add_u32 v10, v11, 4, v10      ; + chunk*16")
    A("v_lshlrev_b32 v9, 2, v4")
    A("v_readlane_b32 s54, v10, s52")
    for i in range(8):
        if i == 4: A("s_cbranch_scc1 L_dmadone")
        A(f"buffer_load_dwordx4 v10, s[28:31], s45 offen{xpol} lds")
        if i < 7:
            A("s_mov_b32 m0, %d" % (L_XS + 1024*(i+1)))
            A("v_add_u32 v10, 128, v10")
    LB("L_dmadone")
    A(f"ds_write_b32 v9, v8 offset:{L_KEY}")
    A("s_mov_b32 s36, s14")
    A("s_mov_b32 s37, s15")
    A("s_mov_b32 s38, 524288")
    A("s_mov_b32 s39, 0x20000")
    A("s_waitcnt vmcnt(0) lgkmcnt(0)")
    A("s_barrier                            ; B2")
    stamp(4)
    A("s_cmp_ge_u32 s22, %d" % NRX)
    A("s_cbranch_scc1 L_red")
    A("s_lshl_b32 s44, s53, 11")
    for t in range(4):
        A("s_cmp_eq_u32 s44, s54")
        A(f"s_cbranch_scc1 L_sel{t}")
        A(f"buffer_store_dwordx4 v[{XR+8*t}:{XR+8*t+3}], v14, s[36:39], s44 offen{outpol}")
        A(f"buffer_store_dwordx4 v[{XR+8*t+4}:{XR+8*t+7}], v14, s[36:39], s44 offen offset:1024{outpol}")
        LB(f"L_sel{t}")
        A("s_add_u32 s44, s44, 2048")
    LB("L_red")
    A("s_lshr_b32 s51, s50, 5               ; token")
    A("s_lshl_b32 s45, s51, 2")
    A("v_mov_b32 v5, s45")
    A(f"ds_read_b32 v6, v5 offset:{L_KEY}")
    A("s_barrier                            ; B3")
    A("s_mov_b32 s36, s14")
    A("s_mov_b32 s37, s15")
    A("s_mov_b32 s38, 524288")
    A("s_mov_b32 s39, 0x20000")
    A("s_and_b32 s41, s40, 0xff")
    A("v_lshrrev_b32 v7, 5, v0")
    A("v_bfe_u32 v8, v0, 4, 1")
    A("v_lshl_add_u32 v7, v8, 1, v7         ; e")
    A("v_lshl_add_u32 v7, v4, 2, v7         ; 4*pos + e")
    A("s_and_b32 s45, s50, 31")
    A("s_lshl_b32 s45, s45, 5")
    A("v_add_u32 v7, s45, v7                ; column")
    A("s_waitcnt lgkmcnt(0)")
    A("v_and_b32 v8, 31, v6")
    A("v_xor_b32 v8, 31, v8")
    A("s_lshl_b32 s45, s51, 5")
    A("v_add_u32 v8, s45, v8                ; row")
    A("v_lshlrev_b32 v8, 10, v8")
    A("v_add_u32 v7, v8, v7")
    A("v_lshlrev_b32 v7, 1, v7")
    A("buffer_load_ushort v9, v7, s[28:31], 0 offen")
    A("v_lshrrev_b32 v10, 16, v6")
    A("v_xor_b32 v11, 0xffff, v10")
    A("v_and_b32 v12, 0x7fff, v10")
    A("v_cmp_gt_i32 vcc, 0, v6")
    A("s_mov_b32 s45, 0xbfb8aa3b")
    A("s_nop 0")
    A("v_cndmask_b32 v10, v11, v12, vcc")
    A("v_lshlrev_b32 v10, 16, v10           ; r")
    A("v_mul_f32 v10, s45, v10")
    A("v_exp_f32 v10, v10")
    A("s_nop 0")
    A("v_add_f32 v10, 1.0, v10")
    A("v_rcp_f32 v10, v10")
    A("s_nop 0")
    A("v_cvt_pk_bf16_f32 v10, v10, v10")
    A("v_and_b32 v10, 0xffff0000, v10       ; sigmoid")
    A("s_mul_i32 s46, s50, 7168")
    A("s_add_u32 s46, s46, %d" % O_EX2)
    A("s_add_u32 s47, s46, 4096")
    A("s_mov_b32 s49, 0")
    A("s_mov_b32 s44, 0x00ff00ff")
    A("s_mov_b32 s45, 0x00ff00ff")
    A("s_waitcnt vmcnt(0)")
    A("v_lshlrev_b32 v9, 16, v9             ; x")
    A("s_barrier                            ; B4")
    A("s_barrier                            ; B5")
    if x2delay: A(f"s_sleep {x2delay}")
    stamp(5)
    LB("L_x2poll")
    for i in range(7):
        so = "s46" if i < 4 else "s47"
        A(f"buffer_load_dwordx4 v[{32+4*i}:{35+4*i}], v14, s[32:35], {so} offen offset:{(i%4)*1024} sc1")
    A("s_add_u32 s49, s49, 1")
    for i in range(7):
        A(f"s_waitcnt vmcnt({6-i})")
        b = 32 + 4*i
        for r in range(b, b+4): A(f"v_xor_b32 v{r}, s41, v{r}")
        if i == 0:
            A(f"v_or3_b32 v15, v{b}, v{b+1}, v{b+2}")
            A(f"v_or_b32 v15, v15, v{b+3}")
        else:
            A(f"v_or3_b32 v15, v15, v{b}, v{b+1}")
            A(f"v_or3_b32 v15, v15, v{b+2}, v{b+3}")
            src = 32 if i == 1 else 16
            A(f"v_pk_add_f32 v[16:17], v[{src}:{src+1}], v[{b}:{b+1}]")
            A(f"v_pk_add_f32 v[18:19], v[{src+2}:{src+3}], v[{b+2}:{b+3}]")
    A("v_and_b32 v15, 0xff, v15")
    A("v_cmp_ne_u32 vcc, 0, v15")
    A("s_cbranch_vccz L_x2ok")
    A("s_cmp_lt_u32 s49, %d" % SPIN)
    A("s_cbranch_scc1 L_x2poll")
    LB("L_x2ok")
    stamp(6)
    A("v_permlane32_swap_b32 v16, v17")
    A("v_permlane32_swap_b32 v18, v19")
    A("v_add_f32 v16, v16, v17")
    A("v_add_f32 v18, v18, v19")
    A("s_nop 1")
    A("v_permlane16_swap_b32 v16, v18")
    A("v_add_f32 v16, v16, v18")
    A("s_nop 1")
    A("v_add_f32_dpp v16, v16, v16 row_ror:8 row_mask:0xf bank_mask:0xf")
    A("s_mov_b64 exec, s[44:45]")
    A("v_cvt_pk_bf16_f32 v16, v16, v16")
    A("v_and_b32 v16, 0xffff0000, v16       ; y")
    A("v_mul_f32 v16, v16, v10")
    A("v_cvt_pk_bf16_f32 v16, v16, v16")
    A("v_and_b32 v16, 0xffff0000, v16       ; y*sigmoid")
    A("v_fma_f32 v16, v9, 0, v16            ; upd = x*0 + y")
    A("v_add_f32 v16, v9, v16")
    A("v_cvt_pk_bf16_f32 v16, v16, v16")
    A(f"buffer_store_short v16, v7, s[36:39], 0 offen{outpol}")
    A("s_cmp_lg_u32 s50, 0")
    A("s_cbranch_scc1 L_noep")
    A("v_mov_b32 v18, s40")
    A("v_mov_b32 v17, 0")
    A("s_mov_b64 exec, 1")
    A("buffer_store_dword v18, v17, s[32:35], 0 offen sc1")
    LB("L_noep")
    stamp(7)
    LB("L_fin")
    if amp:
        A("s_waitcnt lgkmcnt(0)")
        A(f"s_cmp_lg_u32 s3, {amp[2]}")
        A("s_cbranch_scc1 L_end")
        A(f"s_cmp_lg_u32 s2, {amp[3]}")
        A("s_cbranch_scc1 L_end")
        A(f"s_sub_u32 s20, s{60+2*amp[1]}, s{60+2*amp[0]}")
        A("s_min_u32 s20, s20, 5000")
        A("s_mul_i32 s20, s20, 10")
        A("s_memrealtime s[22:23]")
        A("s_waitcnt lgkmcnt(0)")
        LB("L_amp")
        A("s_memrealtime s[24:25]")
        A("s_waitcnt lgkmcnt(0)")
        A("s_sub_u32 s21, s24, s22")
        A("s_cmp_lt_u32 s21, s20")
        A("s_cbranch_scc1 L_amp")
    elif dg:
        import diag
        diag.epilogue(A, LB, dg)
    elif gamp:
        k, wv, fac, cnt = gamp
        A("s_waitcnt lgkmcnt(0) vmcnt(0)")
        A(f"s_cmp_lg_u32 s3, {wv}")
        A("s_cbranch_scc1 L_end")
        A("s_mov_b64 exec, 1")
        A("s_not_b32 s20, s60")
        A("v_mov_b32 v16, s20")
        A(f"v_mov_b32 v17, s{60+2*k}" if k >= 0 else f"v_mov_b32 v17, s49")
        A("v_mov_b32 v3, 0")
        A("v_mov_b32 v18, 1")
        A("global_atomic_umax v3, v16, s[16:17] sc1")
        A("global_atomic_umax v3, v17, s[16:17] offset:64 sc1")
        A("s_waitcnt vmcnt(0)")
        A("global_atomic_add v19, v3, v18, s[16:17] offset:128 sc0 sc1")
        A("s_waitcnt vmcnt(0)")
        A("v_readfirstlane_b32 s20, v19")
        A(f"s_cmp_lg_u32 s20, {cnt-1}")
        A("s_cbranch_scc1 L_end")
        A("v_mov_b32 v18, 0")
        A("global_atomic_umax v16, v3, v18, s[16:17] sc0 sc1")
        A("global_atomic_umax v17, v3, v18, s[16:17] offset:64 sc0 sc1")
        A("s_waitcnt vmcnt(0)")
        A("v_readfirstlane_b32 s20, v16")
        A("v_readfirstlane_b32 s21, v17")
        A("s_not_b32 s20, s20")
        if k >= 0: A("s_sub_u32 s20, s21, s20")
        else: A("s_mov_b32 s20, s21")
        A("v_mov_b32 v18, s20")
        A("global_store_dword v3, v18, s[16:17] offset:4")
        A("s_min_u32 s20, s20, 3000")
        A(f"s_mul_i32 s20, s20, {fac}")
        A("s_memrealtime s[22:23]")
        A("s_waitcnt lgkmcnt(0)")
        LB("L_amp")
        A("s_memrealtime s[24:25]")
        A("s_waitcnt lgkmcnt(0)")
        A("s_sub_u32 s21, s24, s22")
        A("s_cmp_lt_u32 s21, s20")
        A("s_cbranch_scc1 L_amp")
    elif stamps:
        A("s_waitcnt lgkmcnt(0)")
        A("s_mov_b64 exec, -1")
        A("s_lshl_b32 s20, s3, 8")
        A("s_add_u32 s20, s20, s2")
        A("s_lshl_b32 s20, s20, 6")
        A("s_add_u32 s20, s20, 0x8000000")
        A("s_add_u32 s18, s18, s20")
        A("s_addc_u32 s19, s19, 0")
        for i in range(8): A(f"v_mov_b32 v{16+i}, s{60+2*i}")
        A("v_mov_b32 v24, s49")
        A("v_mov_b32 v25, s59")
        A("v_mov_b32 v3, 0")
        A("s_mov_b64 exec, 1")
        A("global_store_dwordx4 v3, v[16:19], s[18:19]")
        A("global_store_dwordx4 v3, v[20:23], s[18:19] offset:16")
        A("global_store_dwordx2 v3, v[24:25], s[18:19] offset:32")
    LB("L_end")
    A("s_endpgm")
    body = "\n".join(L)
    return f"""{HEAD}; @launch grid=(256,1,1) block=(384,1,1) lds={LDS_BYTES}
.amdgcn_target "amdgcn-amd-amdhsa--gfx950"
.text
.globl {KN}
.p2align 8
.type {KN},@function
{KN}:
{body}
.section .rodata,"a"
.p2align 6
.amdhsa_kernel {KN}
  .amdhsa_next_free_vgpr 160
  .amdhsa_next_free_sgpr 96
  .amdhsa_accum_offset 160
  .amdhsa_group_segment_fixed_size 0
  .amdhsa_kernarg_size 64
  .amdhsa_user_sgpr_count 2
  .amdhsa_user_sgpr_kernarg_segment_ptr 1
  .amdhsa_system_sgpr_workgroup_id_x 1
  .amdhsa_float_denorm_mode_32 3
.end_amdhsa_kernel
"""
if __name__ == "__main__":
    import sys, json
    kw = json.loads(sys.argv[2]) if len(sys.argv) > 2 else {}
    open(sys.argv[1] if len(sys.argv) > 1 else "standalone__moe_arch_mod__sampling.s", "w").write(gen(**kw))
```

```python
KN = "standalone__moe_arch_mod__sampling_kernel"
HEAD = open("standalone__moe_arch_mod__sampling.s.ref").read().split("; Override launch")[0]

O_IDX = 0x1000
O_EX1 = 0x20000
O_EX1F = 0x100000
O_EX2 = 0x200000
WS_REC = 0x400000
L_XS = 0
L_RED = 8192
L_HB = 16384
L_KEY = 17408
LDS_BYTES = 17408 + 64
SPIN = 40000
NRX = 2

def gen(pol="nt", xpol="", D1=10, LS=16, NF=10, stamps=False, outpol="", amp=None, psleep=0, NP=1,
        PD=40, D0=5, ackwait=True, WA=10, PW=0, D13=None, WA3=None, x2delay=0, gamp=None, dg=None, probe=None):
    if gamp or dg: stamps=True
    L = []
    def A(s): L.append("  " + s)
    def LB(s): L.append(s + ":")
    def stamp(i):
        if stamps: A(f"s_memrealtime s[{60+2*i}:{61+2*i}]")
    def P(name):
        if probe == name: A("s_memrealtime s[76:77]")
    pol = (" " + pol) if pol else ""
    xpol = (" " + xpol) if xpol else ""
    outpol = (" " + outpol) if outpol else ""
    REPS = 64 * LS
    D13 = D13 or D1
    WA3 = WA3 or WA

    stamp(0)
    A("s_cmp_ge_u32 s2, 256")
    A("s_cbranch_scc1 L_exit")
    A("s_load_dwordx16 s[4:19], s[0:1], 0")
    A("v_lshrrev_b32 v1, 6, v0")
    A("v_and_b32 v0, 63, v0                 ; lane")
    A("v_readfirstlane_b32 s3, v1           ; wave")
    if stamps:
        for i in range(1, 8): A(f"s_mov_b32 s{60+2*i}, 0")
        A("s_mov_b32 s49, 0")
        A("s_mov_b32 s59, 0")
        A("s_mov_b32 s76, 0")
    A("s_and_b32 s22, s2, 7")
    A("s_lshr_b32 s23, s2, 3                ; j")
    A("s_add_u32 s56, s22, 3")
    A("s_and_b32 s56, s56, 7")
    A("s_lshr_b32 s20, s23, 2")
    A("s_and_b32 s21, s23, 3")
    A("s_cmp_eq_u32 s20, 7")
    A("s_cselect_b32 s20, s56, s20")
    A("s_cselect_b32 s44, 4, 0")
    A("s_add_u32 s21, s21, s44              ; q")
    A("s_cmp_lg_u32 s20, 7")
    A("s_cbranch_scc1 L_hastile")
    LB("L_exit")
    A("s_endpgm")
    LB("L_hastile")
    A("s_cmp_eq_u32 s20, s56")
    A("s_cselect_b32 s57, 1, 0")
    A("s_mul_i32 s44, s22, 7")
    A("s_add_u32 s20, s20, s44              ; ct")
    A("s_mov_b32 s27, 0x20000")
    A("s_mov_b32 s34, %d" % WS_REC)
    A("s_mov_b32 s35, 0x20000")
    A("s_cmp_ge_u32 s3, 4")
    A("s_cbranch_scc1 L_r")
    A("s_mov_b32 s26, 7340032")
    A("v_lshrrev_b32 v1, 4, v0              ; g")
    A("v_and_b32 v2, 15, v0                 ; n")
    A("v_mul_u32_u24 v3, %d, v1" % (8*7168))
    A("v_lshl_add_u32 v3, v2, 3, v3         ; voffset")
    A("s_lshr_b32 s44, s21, 1")
    A("s_lshl_b32 s44, s44, 2")
    A("s_add_u32 s44, s44, s3")
    A("s_lshl_b32 s45, s20, 7")
    A("s_cmp_eq_u32 s57, 1")
    A("s_cbranch_scc1 L_cb")

    RAW = 16; FR = 80; XB = 96; ACC = 112; W2 = 128
    F2 = 40; HA = 72
    def raw(s, i): return RAW + 16*s + 2*i
    def frag(s, j): return (FR if s == 0 else RAW + 16*(s-1)) + 4*j
    def raw2(s, i): return W2 + 16*s + 2*i
    def frag2(s, j): return F2 + 16*s + 4*j
    def perms(rawf, fragf, s):
        for e in range(2):
            for p in range(4):
                A(f"v_perm_b32 v{fragf(s,2*e)+p}, v{rawf(s,2*p+1)+e}, v{rawf(s,2*p)+e}, s42")
            for p in range(4):
                A(f"v_perm_b32 v{fragf(s,2*e+1)+p}, v{rawf(s,2*p+1)+e}, v{rawf(s,2*p)+e}, s43")
    def w2load(n):
        s, i = divmod(n, 8)
        p, b = divmod(i, 2)
        row = 2*s + (p >> 1) + 8*(p & 1) + 4*b
        A("s_add_u32 s47, s44, %d" % (row*2048))
        A(f"buffer_load_dwordx2 v[{raw2(s,i)}:{raw2(s,i)+1}], v10, s[28:31], s47 offen{pol}")
    def cpath(NS, sfx, D, WA):
        NL = 8*NS
        WB = 16 - WA
        A("s_mul_i32 s44, s44, %d" % (32*NS*7168))
        A("s_add_u32 s44, s44, s45              ; soffset")
        A("s_bitcmp1_b32 s21, 0")
        A("s_waitcnt lgkmcnt(0)")
        A("s_cselect_b32 s24, s10, s8")
        A("s_cselect_b32 s25, s11, s9")
        A("s_cmp_ge_u32 s22, %d" % NRX)
        A("s_cbranch_scc1 L_nb0" + sfx)
        A("s_barrier")
        LB("L_nb0" + sfx)
        stamp(1)
        done = 0
        for n in range(NL + WA):
            if n >= D: A(f"s_waitcnt vmcnt({D-1})")
            if n < NL:
                s, i = divmod(n, 8)
                A(f"buffer_load_dwordx2 v[{raw(s,i)}:{raw(s,i)+1}], v3, s[24:27], s44 offen{pol}")
                if n < NL-1: A("s_add_u32 s44, s44, %d" % (7168 if i < 7 else 25*7168))
            else:
                w2load(n - NL)
            if n == 0:
                A("s_load_dword s40, s[18:19], 0        ; epoch")
            if n == D0 - 1:
                A("s_mov_b32 s32, s18")
                A("s_mov_b32 s33, s19")
                A("s_mov_b32 s42, 0x05040100")
                A("s_mov_b32 s43, 0x07060302")
                A("v_and_b32 v8, 7, v0")
                A("v_lshl_add_u32 v13, v1, 3, v8")
                A("v_lshlrev_b32 v13, 4, v13")
                A("s_lshl_b32 s45, s3, %d" % (11 if NS == 4 else 10))
                A("v_add_u32 v5, s45, v13")
                A("s_lshl_b32 s45, s3, 11")
                A("v_add_u32 v4, s45, v13")
                A("v_lshlrev_b32 v6, 3, v0")
                A("s_lshl_b32 s45, s3, 9")
                A("v_add_u32 v6, s45, v6                ; w*512 + lane*8")
                A("v_lshrrev_b32 v7, 1, v0")
                A("v_lshlrev_b32 v7, 4, v7")
                A("v_and_b32 v9, 1, v0")
                A("v_lshl_add_u32 v7, v9, 2, v7")
                A("s_lshr_b32 s45, s3, 1")
                A("s_lshl_b32 s45, s45, 9")
                A("s_and_b32 s46, s3, 1")
                A("s_lshl_b32 s46, s46, 3")
                A("s_add_u32 s45, s45, s46")
                A("v_add_u32 v7, s45, v7")
                A("s_mov_b32 s28, s12")
                A("s_mov_b32 s29, s13")
                A("s_mov_b32 s30, 7340032")
                A("s_mov_b32 s31, 0x20000")
                A("v_lshlrev_b32 v10, 15, v1            ; g*16*2048")
                A("v_lshl_add_u32 v10, v2, 3, v10")
                A("v_lshrrev_b32 v11, 3, v2")
                A("v_lshl_add_u32 v11, v1, 7, v11       ; 4g*32 + (n>>3)")
                A("v_mul_u32_u24 v11, 7168, v11")
                A("v_lshl_add_u32 v11, v8, 4, v11       ; + (n&7)*16")
                A("s_lshl_b32 s53, s21, %d" % (2 if NS == 4 else 1))
                A("s_add_u32 s53, s53, s3")
                if NS == 2:
                    A("s_cmp_ge_u32 s3, 2")
                    A("s_cselect_b32 s45, 0x40000000, 0")
                    A("v_or_b32 v10, s45, v10")
                    A("v_or_b32 v11, s45, v11")
                A("s_mul_i32 s52, s53, %d" % (2*7168))
                A("s_lshl_b32 s46, s20, 7")
                A("s_add_u32 s52, s52, s46")
                A("s_add_u32 s52, s52, %d" % O_EX2)
                A("s_lshl_b32 s53, s53, 7")
                A("s_lshl_b32 s46, s20, 17              ; ct*64*2048")
                A("s_add_u32 s53, s53, s46")
                A("s_lshl_b32 s45, s20, 14")
                A("s_lshl_b32 s46, s21, 11")
                A("s_add_u32 s46, s46, s45")
                A("s_add_u32 s50, s46, %d" % O_EX1)
                A("s_add_u32 s46, s46, %d" % O_EX1F)
                A("s_add_u32 s45, s45, %d" % O_EX1F)
                A("s_mov_b32 s48, 0xffffff00")
                A("s_mov_b32 s51, 0xbfb8aa3b            ; -log2(e)")
                A("s_mov_b32 s49, 0")
                A("s_cmp_ge_u32 s22, %d" % NRX)
                A("s_cbranch_scc1 L_nb0b" + sfx)
                A("s_barrier")
                LB("L_nb0b" + sfx)
            if n == NL - 1:
                A("s_mov_b32 s44, s53")
                stamp(2)
            complete = n - D + 1 if n >= D else 0
            while done < NS and 8*done + 8 <= complete:
                perms(raw, frag, done); done += 1
        A("s_waitcnt lgkmcnt(0)")
        A("s_add_u32 s40, s40, 1                ; tag32")
        A("s_and_b32 s41, s40, 0xff")
        A("v_mov_b32 v9, s41")
        while done < NS:
            A(f"s_waitcnt vmcnt({NL + WA - 8*done - 8})")
            perms(raw, frag, done); done += 1
        A("s_barrier                            ; B2")
        stamp(3)
        for s in range(NS):
            A(f"ds_read_b128 v[{XB+4*s}:{XB+4*s+3}], v5 offset:{L_XS + 512*s}")
        for s in range(NS):
            A(f"s_waitcnt lgkmcnt({NS-1-s})")
            for j in range(4):
                c = "0" if s == 0 else f"v[{ACC+4*j}:{ACC+4*j+3}]"
                A(f"v_mfma_f32_16x16x32_bf16 v[{ACC+4*j}:{ACC+4*j+3}], v[{frag(s,j)}:{frag(s,j)+3}], v[{XB+4*s}:{XB+4*s+3}], {c}")
        A("s_mov_b32 exec_lo, 0x00ff00ff")
        A("s_mov_b32 exec_hi, 0x00ff00ff")
        A("s_nop 2")
        for j in range(4):
            A(f"ds_write_b128 v4, v[{ACC+4*j}:{ACC+4*j+3}] offset:{L_RED + 512*j}")
        A("s_mov_b64 exec, -1")
        A("s_waitcnt lgkmcnt(0)")
        A("s_barrier                            ; B3")
        for w in range(4):
            A(f"ds_read_b64 v[{16+2*w}:{17+2*w}], v6 offset:{L_RED + 2048*w}")
        A("s_waitcnt lgkmcnt(2)")
        A("v_pk_add_f32 v[16:17], v[16:17], v[18:19]")
        A("s_waitcnt lgkmcnt(0)")
        A("v_pk_add_f32 v[20:21], v[20:21], v[22:23]")
        A("v_pk_add_f32 v[16:17], v[16:17], v[20:21]")
        A("v_and_or_b32 v16, v16, s48, v9")
        A("v_and_or_b32 v17, v17, s48, v9")
        A("buffer_store_dwordx2 v[16:17], v6, s[32:35], s46 offen")
        stamp(4)
        for n in range(WA, 16): w2load(n)
        A(f"s_waitcnt vmcnt({WB})")
        pdone = 0
        if WA >= 8:
            perms(raw2, frag2, 0); pdone = 1
        if PW and WB: A(f"s_waitcnt vmcnt({max(WB - PW, 0)})")
        NB = 4 if NS == 4 else 8
        LB("L_x1poll" + sfx)
        for b in range(NB):
            if b and b % 2 == 0: A(f"s_add_u32 s47, s45, {b*2048}")
            A(f"buffer_load_dwordx2 v[{24+2*b}:{25+2*b}], v6, s[32:35], {'s45' if b < 2 else 's47'} offen offset:{(b%2)*2048} sc1")
        A("s_add_u32 s49, s49, 1")
        A("s_waitcnt vmcnt(0)")
        for r in range(24, 24+2*NB): A(f"v_xor_b32 v{r}, s41, v{r}")
        A("v_or3_b32 v8, v24, v25, v26")
        for r in range(27, 24+2*NB-1, 2): A(f"v_or3_b32 v8, v8, v{r}, v{r+1}")
        A(f"v_or_b32 v8, v8, v{24+2*NB-1}")
        A("v_and_b32 v8, 0xff, v8")
        A("v_cmp_ne_u32 vcc, 0, v8")
        A("s_cbranch_vccz L_x1ok" + sfx)
        A(f"s_cmp_lg_u32 s49, {NF}")
        A("s_cbranch_scc1 L_x1ns" + sfx)
        A("buffer_store_dwordx2 v[16:17], v6, s[32:35], s50 offen sc1")
        A("s_sub_u32 s45, s45, %d" % (O_EX1F - O_EX1))
        LB("L_x1ns" + sfx)
        A("s_cmp_lt_u32 s49, %d" % SPIN)
        A("s_cbranch_scc1 L_x1poll" + sfx)
        LB("L_x1ok" + sfx)
        stamp(5)
        if NB == 8:
            A("v_pk_add_f32 v[24:25], v[24:25], v[32:33]")
            A("v_pk_add_f32 v[26:27], v[26:27], v[34:35]")
            A("v_pk_add_f32 v[28:29], v[28:29], v[36:37]")
            A("v_pk_add_f32 v[30:31], v[30:31], v[38:39]")
        return pdone
    pa = cpath(4, "a", D1, WA)
    LB("L_h")
    A("v_pk_add_f32 v[24:25], v[24:25], v[28:29]   ; gate")
    A("v_pk_add_f32 v[26:27], v[26:27], v[30:31]   ; up")
    A("v_cvt_pk_bf16_f32 v8, v24, v25")
    A("v_cvt_pk_bf16_f32 v12, v26, v27")
    A("v_lshlrev_b32 v18, 16, v8")
    A("v_and_b32 v19, 0xffff0000, v8")
    A("v_mul_f32 v20, s51, v18")
    A("v_mul_f32 v21, s51, v19")
    A("v_exp_f32 v20, v20")
    A("v_exp_f32 v21, v21")
    A("v_lshlrev_b32 v14, 16, v12")
    A("v_add_f32 v20, 1.0, v20")
    A("v_add_f32 v21, 1.0, v21")
    A("v_rcp_f32 v20, v20")
    A("v_rcp_f32 v21, v21")
    A("v_and_b32 v15, 0xffff0000, v12")
    A("v_mul_f32 v18, v18, v20")
    A("v_mul_f32 v19, v19, v21")
    A("v_cvt_pk_bf16_f32 v8, v18, v19        ; silu")
    A("v_lshlrev_b32 v18, 16, v8")
    A("v_and_b32 v19, 0xffff0000, v8")
    A("v_mul_f32 v18, v18, v14")
    A("v_mul_f32 v19, v19, v15")
    A("v_cvt_pk_bf16_f32 v8, v18, v19        ; h")
    A(f"ds_write_b32 v7, v8 offset:{L_HB}")
    A("buffer_store_dwordx2 v[16:17], v6, s[32:35], s50 offen sc1")
    for s in range(pa, 2): perms(raw2, frag2, s)
    A("s_waitcnt lgkmcnt(0)")
    A("s_barrier                            ; B4")
    for s in range(2):
        A(f"ds_read_b128 v[{HA+4*s}:{HA+4*s+3}], v13 offset:{L_HB + 512*s}")
    for s in range(2):
        A(f"s_waitcnt lgkmcnt({1-s})")
        for j in range(4):
            c = "0" if s == 0 else f"v[{ACC+4*j}:{ACC+4*j+3}]"
            A(f"v_mfma_f32_16x16x32_bf16 v[{ACC+4*j}:{ACC+4*j+3}], v[{HA+4*s}:{HA+4*s+3}], v[{frag2(s,j)}:{frag2(s,j)+3}], {c}")
    A("s_mov_b32 exec_lo, -1")
    A("s_mov_b32 exec_hi, 0")
    A("s_nop 5")
    for r in range(4):
        for j in range(4):
            A(f"v_and_or_b32 v{20+4*r+j}, v{ACC+4*j+r}, s48, v9")
        A(f"buffer_store_dwordx4 v[{20+4*r}:{23+4*r}], v11, s[32:35], s52 offen sc1")
        if r < 3: A("s_add_u32 s52, s52, %d" % (32*7168))
    stamp(6)
    A("s_waitcnt vmcnt(0)")
    A("s_barrier                            ; B5")
    stamp(7)
    A("s_branch L_fin")
    LB("L_cb")
    pb = cpath(2, "b", D13, WA3)
    assert pa == pb
    A("s_branch L_h")

    XR = 80
    LB("L_r")
    A("s_mov_b32 s30, 524288")
    A("s_mov_b32 s31, 0x20000")
    A("v_lshlrev_b32 v14, 4, v0             ; lane*16")
    A("s_cmp_eq_u32 s3, 4")
    A("s_cbranch_scc1 L_r4")
    A("s_and_b32 s45, s2, 0xe7")
    A("s_cmp_eq_u32 s45, 0xe0")
    A("s_cbranch_scc1 L_r5")
    A("s_endpgm")
    LB("L_r5")
    A("s_barrier")
    A("s_waitcnt lgkmcnt(0)")
    A("s_load_dword s40, s[18:19], 0        ; epoch")
    A("s_mov_b32 s28, s4")
    A("s_mov_b32 s29, s5")
    A("s_mov_b32 s32, s18")
    A("s_mov_b32 s33, s19")
    A("s_add_u32 s50, s2, 4                 ; slice")
    A("v_and_b32 v4, 7, v0")
    A("s_barrier                            ; B0b")
    A("s_waitcnt lgkmcnt(0)")
    A("s_add_u32 s40, s40, 1")
    A("s_barrier                            ; B2")
    A("s_branch L_red")
    LB("L_r4")
    A("s_lshl_b32 s45, s20, 14")
    A("s_lshl_b32 s46, s21, 11")
    A("s_add_u32 s46, s46, s45")
    A("s_add_u32 s48, s46, %d               ; own L2-local block" % O_EX1F)
    A("s_cmp_lt_u32 s22, %d" % NRX)
    A("s_cbranch_scc1 L_route")
    A("s_waitcnt lgkmcnt(0)")
    A("s_mov_b32 s32, s18")
    A("s_mov_b32 s33, s19")
    A("buffer_load_dwordx4 v[24:27], v14, s[32:35], s48 offen")
    A("buffer_load_dwordx4 v[28:31], v14, s[32:35], s48 offen offset:1024")
    stamp(1)
    A("s_load_dword s40, s[18:19], 0        ; epoch")
    A("s_mov_b32 s28, s4")
    A("s_mov_b32 s29, s5")
    if PD: A(f"s_sleep {PD}")
    A("s_waitcnt lgkmcnt(0)")
    A("s_add_u32 s40, s40, 1")
    A("s_branch L_ip0")
    LB("L_route")
    A("s_setprio 3")
    A("s_lshl_b32 s52, s23, 1")
    A("s_add_u32 s52, s52, s22")
    A("s_lshl_b32 s44, s52, 13")
    A("s_add_u32 s45, s44, 4096")
    A("s_mov_b32 s26, 2048")
    P("r_pre")
    A("s_waitcnt lgkmcnt(0)")
    P("r_karg")
    A("s_mov_b32 s28, s4")
    A("s_mov_b32 s29, s5")
    A("s_mov_b32 s24, s6")
    A("s_mov_b32 s25, s7")
    A(f"buffer_load_dwordx4 v[16:19], v14, s[24:27], 0 offen")
    A(f"buffer_load_dwordx4 v[20:23], v14, s[24:27], 0 offen offset:1024")
    for i in range(8):
        A(f"buffer_load_dwordx4 v[{XR+4*i}:{XR+4*i+3}], v14, s[28:31], {'s44' if i < 4 else 's45'} offen offset:{(i%4)*1024}{xpol}")
    P("r_iss")
    A("s_barrier                            ; B0")
    stamp(1)
    A("s_load_dword s40, s[18:19], 0        ; epoch")
    A("s_mov_b32 s32, s18")
    A("s_mov_b32 s33, s19")
    A("buffer_load_dwordx4 v[24:27], v14, s[32:35], s48 offen")
    A("buffer_load_dwordx4 v[28:31], v14, s[32:35], s48 offen offset:1024")
    A("s_and_b32 s45, s52, 7")
    A("s_lshl_b32 s46, s45, 3")
    A("s_lshr_b32 s52, s52, 3               ; batch")
    A("s_add_u32 s46, s46, s52")
    A("s_mul_i32 s46, s46, %d" % LS)
    A("s_add_u32 s46, s46, %d               ; slot" % O_IDX)
    A("s_lshl_b32 s45, s45, 2")
    A("v_mul_u32_u24 v5, %d, v0             ; replica offset" % REPS)
    A("v_lshrrev_b32 v10, 5, v0")
    A("v_bfe_u32 v11, v0, 4, 1")
    A("v_lshl_add_u32 v10, v11, 1, v10")
    A("v_add_u32 v10, s45, v10")
    A("v_xor_b32 v10, 31, v10")
    for t in range(4):
        for hlf in range(2):
            A(f"s_waitcnt vmcnt({9 - 2*t - hlf})")
            if t == 0 and hlf == 0: P("r_first")
            if t == 3 and hlf == 1: P("r_last")
            for k in range(4):
                c = "0" if (hlf == 0 and k == 0) else f"v{6+t}"
                A(f"v_dot2_f32_bf16 v{6+t}, v{XR+8*t+4*hlf+k}, v{16+4*hlf+k}, {c}")
    A("s_waitcnt lgkmcnt(0)")
    P("r_epoch")
    A("s_add_u32 s40, s40, 1")
    A("s_nop 0")
    A("v_permlane32_swap_b32 v6, v7")
    A("v_permlane32_swap_b32 v8, v9")
    A("v_add_f32 v6, v6, v7")
    A("v_add_f32 v8, v8, v9")
    A("s_nop 1")
    A("v_permlane16_swap_b32 v6, v8")
    A("v_add_f32 v6, v6, v8")
    A("s_nop 1")
    A("v_add_f32_dpp v6, v6, v6 quad_perm:[1,0,3,2] row_mask:0xf bank_mask:0xf")
    A("s_nop 1")
    A("v_add_f32_dpp v6, v6, v6 quad_perm:[2,3,0,1] row_mask:0xf bank_mask:0xf")
    A("s_nop 1")
    A("v_add_f32_dpp v6, v6, v6 row_half_mirror row_mask:0xf bank_mask:0xf")
    A("s_nop 1")
    A("v_add_f32_dpp v6, v6, v6 row_mirror row_mask:0xf bank_mask:0xf")
    A("v_cvt_pk_bf16_f32 v7, v6, v6")
    A("v_and_b32 v7, 0xffff0000, v7          ; r (bf16)")
    A("v_ashrrev_i32 v6, 31, v7")
    A("v_or_b32 v6, 0x80000000, v6")
    A("v_xor_b32 v6, v6, v7")
    A("v_cmp_o_f32 vcc, v7, v7")
    A("v_and_b32 v6, 0xffff0000, v6")
    A("s_nop 0")
    A("v_cndmask_b32 v6, 0, v6, vcc")
    A("v_or_b32 v6, v10, v6")
    A("v_mov_b32 v7, v6")
    A("s_nop 1")
    A("v_permlane16_swap_b32 v6, v7")
    A("v_max_u32 v6, v6, v7")
    A("v_mov_b32 v7, v6")
    A("s_nop 1")
    A("v_permlane32_swap_b32 v6, v7")
    A("v_max_u32 v6, v6, v7")
    A("v_mov_b32 v7, s40")
    A("s_mov_b64 exec, 0xff")
    A("buffer_store_dwordx2 v[6:7], v5, s[32:35], s46 offen sc1")
    A("s_mov_b64 exec, -1")
    A("s_barrier                            ; B0b")
    stamp(2)
    A("s_setprio 0")
    A("s_lshl_b32 s53, s52, 5")
    A("s_add_u32 s53, s53, s45")
    for r in range(XR, XR+32):
        A(f"v_lshlrev_b32 v16, 16, v{r}")
        A(f"v_and_b32 v17, 0xffff0000, v{r}")
        A("v_pk_fma_f32 v[16:17], v[16:17], 0, v[16:17] op_sel_hi:[1,0,1]")
        A(f"v_cvt_pk_bf16_f32 v{r}, v16, v17    ; x + x*0")
    if ackwait: A("s_waitcnt vmcnt(0)")
    P("r_ack")
    LB("L_ip0")
    A("v_mul_u32_u24 v12, %d, v0            ; poll offset" % LS)
    A("s_mul_i32 s47, s22, %d" % REPS)
    A("s_add_u32 s47, s47, %d               ; this die's replica" % O_IDX)
    A("s_mov_b32 s49, 0")
    A("v_and_b32 v4, 7, v0")
    A("v_lshrrev_b32 v11, 3, v0")
    for k in range(NP):
        if psleep and k: A(f"s_sleep {psleep}")
        A(f"buffer_load_dwordx2 v[{16+2*k}:{17+2*k}], v12, s[32:35], s47 offen sc1")
    A("s_lshr_b32 s45, s21, 1")
    A("s_sub_u32 s46, 10, s57")
    A("s_lshl_b32 s45, s45, s46")
    A("s_mov_b32 s50, s2                    ; slice")
    LB("L_ipoll")
    for k in range(NP):
        A(f"s_waitcnt vmcnt({NP-1})")
        A(f"v_cmp_ne_u32 vcc, s40, v{17+2*k}")
        A(f"v_mov_b32 v8, v{16+2*k}")
        A("s_cbranch_vccz L_iok")
        A(f"buffer_load_dwordx2 v[{16+2*k}:{17+2*k}], v12, s[32:35], s47 offen sc1")
    A("s_add_u32 s49, s49, 1")
    A("s_cmp_lt_u32 s49, %d" % SPIN)
    A("s_cbranch_scc1 L_ipoll")
    LB("L_iok")
    stamp(3)
    if stamps: A("s_mov_b32 s59, s49")
    A("s_mov_b32 m0, %d" % L_XS)
    A("v_max_u32_dpp v8, v8, v8 row_ror:8 row_mask:0xf bank_mask:0xf")
    A("v_mov_b32 v9, v8")
    A("s_and_b32 s52, s52, 7")
    A("s_cmp_eq_u32 s57, 1")
    A("v_permlane16_swap_b32 v8, v9")
    A("v_max_u32 v8, v8, v9")
    A("v_mov_b32 v9, v8")
    A("s_nop 1")
    A("v_permlane32_swap_b32 v8, v9")
    A("v_max_u32 v8, v8, v9")
    A("v_and_b32 v10, 31, v8")
    A("v_xor_b32 v10, 31, v10")
    A("v_lshl_add_u32 v10, v4, 5, v10       ; row")
    A("v_lshlrev_b32 v10, 11, v10")
    A("v_lshl_add_u32 v10, v11, 4, v10      ; + chunk*16")
    A("v_lshlrev_b32 v9, 2, v4")
    A("v_readlane_b32 s54, v10, s52")
    for i in range(8):
        if i == 4: A("s_cbranch_scc1 L_dmadone")
        A(f"buffer_load_dwordx4 v10, s[28:31], s45 offen{xpol} lds")
        if i < 7:
            A("s_mov_b32 m0, %d" % (L_XS + 1024*(i+1)))
            A("v_add_u32 v10, 128, v10")
    LB("L_dmadone")
    A(f"ds_write_b32 v9, v8 offset:{L_KEY}")
    A("s_mov_b32 s36, s14")
    A("s_mov_b32 s37, s15")
    A("s_mov_b32 s38, 524288")
    A("s_mov_b32 s39, 0x20000")
    A("s_waitcnt vmcnt(0) lgkmcnt(0)")
    A("s_barrier                            ; B2")
    stamp(4)
    A("s_cmp_ge_u32 s22, %d" % NRX)
    A("s_cbranch_scc1 L_red")
    A("s_lshl_b32 s44, s53, 11")
    for t in range(4):
        A("s_cmp_eq_u32 s44, s54")
        A(f"s_cbranch_scc1 L_sel{t}")
        A(f"buffer_store_dwordx4 v[{XR+8*t}:{XR+8*t+3}], v14, s[36:39], s44 offen{outpol}")
        A(f"buffer_store_dwordx4 v[{XR+8*t+4}:{XR+8*t+7}], v14, s[36:39], s44 offen offset:1024{outpol}")
        LB(f"L_sel{t}")
        A("s_add_u32 s44, s44, 2048")
    LB("L_red")
    A("s_lshr_b32 s51, s50, 5               ; token")
    A("s_lshl_b32 s45, s51, 2")
    A("v_mov_b32 v5, s45")
    A(f"ds_read_b32 v6, v5 offset:{L_KEY}")
    A("s_barrier                            ; B3")
    A("s_mov_b32 s36, s14")
    A("s_mov_b32 s37, s15")
    A("s_mov_b32 s38, 524288")
    A("s_mov_b32 s39, 0x20000")
    A("s_and_b32 s41, s40, 0xff")
    A("v_lshrrev_b32 v7, 5, v0")
    A("v_bfe_u32 v8, v0, 4, 1")
    A("v_lshl_add_u32 v7, v8, 1, v7         ; e")
    A("v_lshl_add_u32 v7, v4, 2, v7         ; 4*pos + e")
    A("s_and_b32 s45, s50, 31")
    A("s_lshl_b32 s45, s45, 5")
    A("v_add_u32 v7, s45, v7                ; column")
    A("s_waitcnt lgkmcnt(0)")
    A("v_and_b32 v8, 31, v6")
    A("v_xor_b32 v8, 31, v8")
    A("s_lshl_b32 s45, s51, 5")
    A("v_add_u32 v8, s45, v8                ; row")
    A("v_lshlrev_b32 v8, 10, v8")
    A("v_add_u32 v7, v8, v7")
    A("v_lshlrev_b32 v7, 1, v7")
    A("buffer_load_ushort v9, v7, s[28:31], 0 offen")
    A("v_lshrrev_b32 v10, 16, v6")
    A("v_xor_b32 v11, 0xffff, v10")
    A("v_and_b32 v12, 0x7fff, v10")
    A("v_cmp_gt_i32 vcc, 0, v6")
    A("s_mov_b32 s45, 0xbfb8aa3b")
    A("s_nop 0")
    A("v_cndmask_b32 v10, v11, v12, vcc")
    A("v_lshlrev_b32 v10, 16, v10           ; r")
    A("v_mul_f32 v10, s45, v10")
    A("v_exp_f32 v10, v10")
    A("s_nop 0")
    A("v_add_f32 v10, 1.0, v10")
    A("v_rcp_f32 v10, v10")
    A("s_nop 0")
    A("v_cvt_pk_bf16_f32 v10, v10, v10")
    A("v_and_b32 v10, 0xffff0000, v10       ; sigmoid")
    A("s_mul_i32 s46, s50, 7168")
    A("s_add_u32 s46, s46, %d" % O_EX2)
    A("s_add_u32 s47, s46, 4096")
    A("s_mov_b32 s49, 0")
    A("s_mov_b32 s44, 0x00ff00ff")
    A("s_mov_b32 s45, 0x00ff00ff")
    A("s_waitcnt vmcnt(0)")
    A("v_lshlrev_b32 v9, 16, v9             ; x")
    A("s_barrier                            ; B4")
    A("s_barrier                            ; B5")
    if x2delay: A(f"s_sleep {x2delay}")
    stamp(5)
    LB("L_x2poll")
    for i in range(7):
        so = "s46" if i < 4 else "s47"
        A(f"buffer_load_dwordx4 v[{32+4*i}:{35+4*i}], v14, s[32:35], {so} offen offset:{(i%4)*1024} sc1")
    A("s_add_u32 s49, s49, 1")
    for i in range(7):
        A(f"s_waitcnt vmcnt({6-i})")
        b = 32 + 4*i
        for r in range(b, b+4): A(f"v_xor_b32 v{r}, s41, v{r}")
        if i == 0:
            A(f"v_or3_b32 v15, v{b}, v{b+1}, v{b+2}")
            A(f"v_or_b32 v15, v15, v{b+3}")
        else:
            A(f"v_or3_b32 v15, v15, v{b}, v{b+1}")
            A(f"v_or3_b32 v15, v15, v{b+2}, v{b+3}")
            src = 32 if i == 1 else 16
            A(f"v_pk_add_f32 v[16:17], v[{src}:{src+1}], v[{b}:{b+1}]")
            A(f"v_pk_add_f32 v[18:19], v[{src+2}:{src+3}], v[{b+2}:{b+3}]")
    A("v_and_b32 v15, 0xff, v15")
    A("v_cmp_ne_u32 vcc, 0, v15")
    A("s_cbranch_vccz L_x2ok")
    A("s_cmp_lt_u32 s49, %d" % SPIN)
    A("s_cbranch_scc1 L_x2poll")
    LB("L_x2ok")
    stamp(6)
    A("v_permlane32_swap_b32 v16, v17")
    A("v_permlane32_swap_b32 v18, v19")
    A("v_add_f32 v16, v16, v17")
    A("v_add_f32 v18, v18, v19")
    A("s_nop 1")
    A("v_permlane16_swap_b32 v16, v18")
    A("v_add_f32 v16, v16, v18")
    A("s_nop 1")
    A("v_add_f32_dpp v16, v16, v16 row_ror:8 row_mask:0xf bank_mask:0xf")
    A("s_mov_b64 exec, s[44:45]")
    A("v_cvt_pk_bf16_f32 v16, v16, v16")
    A("v_and_b32 v16, 0xffff0000, v16       ; y")
    A("v_mul_f32 v16, v16, v10")
    A("v_cvt_pk_bf16_f32 v16, v16, v16")
    A("v_and_b32 v16, 0xffff0000, v16       ; y*sigmoid")
    A("v_fma_f32 v16, v9, 0, v16            ; upd = x*0 + y")
    A("v_add_f32 v16, v9, v16")
    A("v_cvt_pk_bf16_f32 v16, v16, v16")
    A(f"buffer_store_short v16, v7, s[36:39], 0 offen{outpol}")
    A("s_cmp_lg_u32 s50, 0")
    A("s_cbranch_scc1 L_noep")
    A("v_mov_b32 v18, s40")
    A("v_mov_b32 v17, 0")
    A("s_mov_b64 exec, 1")
    A("buffer_store_dword v18, v17, s[32:35], 0 offen sc1")
    LB("L_noep")
    stamp(7)
    LB("L_fin")
    if amp:
        A("s_waitcnt lgkmcnt(0)")
        A(f"s_cmp_lg_u32 s3, {amp[2]}")
        A("s_cbranch_scc1 L_end")
        A(f"s_cmp_lg_u32 s2, {amp[3]}")
        A("s_cbranch_scc1 L_end")
        A(f"s_sub_u32 s20, s{60+2*amp[1]}, s{60+2*amp[0]}")
        A("s_min_u32 s20, s20, 5000")
        A("s_mul_i32 s20, s20, 10")
        A("s_memrealtime s[22:23]")
        A("s_waitcnt lgkmcnt(0)")
        LB("L_amp")
        A("s_memrealtime s[24:25]")
        A("s_waitcnt lgkmcnt(0)")
        A("s_sub_u32 s21, s24, s22")
        A("s_cmp_lt_u32 s21, s20")
        A("s_cbranch_scc1 L_amp")
    elif dg:
        import diag
        diag.epilogue(A, LB, dg)
    elif gamp:
        k, wv, fac, cnt = gamp
        A("s_waitcnt lgkmcnt(0) vmcnt(0)")
        A(f"s_cmp_lg_u32 s3, {wv}")
        A("s_cbranch_scc1 L_end")
        A("s_mov_b64 exec, 1")
        A("s_not_b32 s20, s60")
        A("v_mov_b32 v16, s20")
        A(f"v_mov_b32 v17, s{60+2*k}" if k >= 0 else f"v_mov_b32 v17, s49")
        A("v_mov_b32 v3, 0")
        A("v_mov_b32 v18, 1")
        A("global_atomic_umax v3, v16, s[16:17] sc1")
        A("global_atomic_umax v3, v17, s[16:17] offset:64 sc1")
        A("s_waitcnt vmcnt(0)")
        A("global_atomic_add v19, v3, v18, s[16:17] offset:128 sc0 sc1")
        A("s_waitcnt vmcnt(0)")
        A("v_readfirstlane_b32 s20, v19")
        A(f"s_cmp_lg_u32 s20, {cnt-1}")
        A("s_cbranch_scc1 L_end")
        A("v_mov_b32 v18, 0")
        A("global_atomic_umax v16, v3, v18, s[16:17] sc0 sc1")
        A("global_atomic_umax v17, v3, v18, s[16:17] offset:64 sc0 sc1")
        A("s_waitcnt vmcnt(0)")
        A("v_readfirstlane_b32 s20, v16")
        A("v_readfirstlane_b32 s21, v17")
        A("s_not_b32 s20, s20")
        if k >= 0: A("s_sub_u32 s20, s21, s20")
        else: A("s_mov_b32 s20, s21")
        A("v_mov_b32 v18, s20")
        A("global_store_dword v3, v18, s[16:17] offset:4")
        A("s_min_u32 s20, s20, 3000")
        A(f"s_mul_i32 s20, s20, {fac}")
        A("s_memrealtime s[22:23]")
        A("s_waitcnt lgkmcnt(0)")
        LB("L_amp")
        A("s_memrealtime s[24:25]")
        A("s_waitcnt lgkmcnt(0)")
        A("s_sub_u32 s21, s24, s22")
        A("s_cmp_lt_u32 s21, s20")
        A("s_cbranch_scc1 L_amp")
    elif stamps:
        A("s_waitcnt lgkmcnt(0)")
        A("s_mov_b64 exec, -1")
        A("s_lshl_b32 s20, s3, 8")
        A("s_add_u32 s20, s20, s2")
        A("s_lshl_b32 s20, s20, 6")
        A("s_add_u32 s20, s20, 0x8000000")
        A("s_add_u32 s18, s18, s20")
        A("s_addc_u32 s19, s19, 0")
        for i in range(8): A(f"v_mov_b32 v{16+i}, s{60+2*i}")
        A("v_mov_b32 v24, s49")
        A("v_mov_b32 v25, s59")
        A("v_mov_b32 v3, 0")
        A("s_mov_b64 exec, 1")
        A("global_store_dwordx4 v3, v[16:19], s[18:19]")
        A("global_store_dwordx4 v3, v[20:23], s[18:19] offset:16")
        A("global_store_dwordx2 v3, v[24:25], s[18:19] offset:32")
    LB("L_end")
    A("s_endpgm")
    body = "\n".join(L)
    return f"""{HEAD}; @launch grid=(256,1,1) block=(384,1,1) lds={LDS_BYTES}
.amdgcn_target "amdgcn-amd-amdhsa--gfx950"
.text
.globl {KN}
.p2align 8
.type {KN},@function
{KN}:
{body}
.section .rodata,"a"
.p2align 6
.amdhsa_kernel {KN}
  .amdhsa_next_free_vgpr 160
  .amdhsa_next_free_sgpr 96
  .amdhsa_accum_offset 160
  .amdhsa_group_segment_fixed_size 0
  .amdhsa_kernarg_size 64
  .amdhsa_user_sgpr_count 2
  .amdhsa_user_sgpr_kernarg_segment_ptr 1
  .amdhsa_system_sgpr_workgroup_id_x 1
  .amdhsa_float_denorm_mode_32 3
.end_amdhsa_kernel
"""
if __name__ == "__main__":
    import sys, json
    kw = json.loads(sys.argv[2]) if len(sys.argv) > 2 else {}
    open(sys.argv[1] if len(sys.argv) > 1 else "standalone__moe_arch_mod__sampling.s", "w").write(gen(**kw))
```

```python
KN = "standalone__moe_arch_mod__sampling_kernel"
HEAD = open("standalone__moe_arch_mod__sampling.s.ref").read().split("; Override launch")[0]

O_IDX = 0x1000
O_EX1 = 0x20000
O_EX1F = 0x100000
O_EX2 = 0x200000
WS_REC = 0x400000
L_XS = 0
L_RED = 8192
L_HB = 16384
L_KEY = 17408
LDS_BYTES = 17408 + 64
SPIN = 40000
NRX = 2

def gen(pol="nt", xpol="", D1=10, LS=16, NF=10, stamps=False, outpol="", amp=None, psleep=0, NP=1,
        PD=40, D0=5, ackwait=True, WA=10, PW=0, D13=None, WA3=None, x2delay=0, gamp=None, dg=None, probe=None, cpf=None, tt=""):
    if gamp or dg: stamps=True
    L = []
    def A(s): L.append("  " + s)
    def LB(s): L.append(s + ":")
    def stamp(i):
        if stamps: A(f"s_memrealtime s[{60+2*i}:{61+2*i}]")
    def P(name):
        if probe == name: A("s_memrealtime s[76:77]")
    pol = (" " + pol) if pol else ""
    xpol = (" " + xpol) if xpol else ""
    outpol = (" " + outpol) if outpol else ""
    REPS = 64 * LS
    D13 = D13 or D1
    WA3 = WA3 or WA

    stamp(0)
    A("s_cmp_ge_u32 s2, 256")
    A("s_cbranch_scc1 L_exit")
    A("s_load_dwordx16 s[4:19], s[0:1], 0")
    A("v_lshrrev_b32 v1, 6, v0")
    A("v_and_b32 v0, 63, v0                 ; lane")
    A("v_readfirstlane_b32 s3, v1           ; wave")
    if cpf is not None:
        A("s_getpc_b64 s[20:21]")
        A(f"s_cmp_lg_u32 s3, {cpf}")
        A("s_cbranch_scc1 L_nopf")
        A("v_lshlrev_b32 v2, 7, v0")
        A("global_load_dword v159, v2, s[20:21] offset:640")
        LB("L_nopf")
    if stamps:
        for i in range(1, 8): A(f"s_mov_b32 s{60+2*i}, 0")
        A("s_mov_b32 s49, 0")
        A("s_mov_b32 s59, 0")
        A("s_mov_b32 s76, 0")
    A("s_and_b32 s22, s2, 7")
    A("s_lshr_b32 s23, s2, 3                ; j")
    A("s_add_u32 s56, s22, 3")
    A("s_and_b32 s56, s56, 7")
    A("s_lshr_b32 s20, s23, 2")
    A("s_and_b32 s21, s23, 3")
    A("s_cmp_eq_u32 s20, 7")
    A("s_cselect_b32 s20, s56, s20")
    A("s_cselect_b32 s44, 4, 0")
    A("s_add_u32 s21, s21, s44              ; q")
    A("s_cmp_lg_u32 s20, 7")
    A("s_cbranch_scc1 L_hastile")
    LB("L_exit")
    A("s_endpgm")
    LB("L_hastile")
    A("s_cmp_eq_u32 s20, s56")
    A("s_cselect_b32 s57, 1, 0")
    A("s_mul_i32 s44, s22, 7")
    A("s_add_u32 s20, s20, s44              ; ct")
    A("s_mov_b32 s27, 0x20000")
    A("s_mov_b32 s34, %d" % WS_REC)
    A("s_mov_b32 s35, 0x20000")
    A("s_cmp_ge_u32 s3, 4")
    A("s_cbranch_scc1 L_r")
    A("s_mov_b32 s26, 7340032")
    A("v_lshrrev_b32 v1, 4, v0              ; g")
    A("v_and_b32 v2, 15, v0                 ; n")
    A("v_mul_u32_u24 v3, %d, v1" % (8*7168))
    A("v_lshl_add_u32 v3, v2, 3, v3         ; voffset")
    A("s_lshr_b32 s44, s21, 1")
    A("s_lshl_b32 s44, s44, 2")
    A("s_add_u32 s44, s44, s3")
    A("s_lshl_b32 s45, s20, 7")
    A("s_cmp_eq_u32 s57, 1")
    A("s_cbranch_scc1 L_cb")

    RAW = 16; FR = 80; XB = 96; ACC = 112; W2 = 128
    F2 = 40; HA = 72
    def raw(s, i): return RAW + 16*s + 2*i
    def frag(s, j): return (FR if s == 0 else RAW + 16*(s-1)) + 4*j
    def raw2(s, i): return W2 + 16*s + 2*i
    def frag2(s, j): return F2 + 16*s + 4*j
    def perms(rawf, fragf, s):
        for e in range(2):
            for p in range(4):
                A(f"v_perm_b32 v{fragf(s,2*e)+p}, v{rawf(s,2*p+1)+e}, v{rawf(s,2*p)+e}, s42")
            for p in range(4):
                A(f"v_perm_b32 v{fragf(s,2*e+1)+p}, v{rawf(s,2*p+1)+e}, v{rawf(s,2*p)+e}, s43")
    def w2load(n):
        s, i = divmod(n, 8)
        p, b = divmod(i, 2)
        row = 2*s + (p >> 1) + 8*(p & 1) + 4*b
        A("s_add_u32 s47, s44, %d" % (row*2048))
        A(f"buffer_load_dwordx2 v[{raw2(s,i)}:{raw2(s,i)+1}], v10, s[28:31], s47 offen{pol}")
    def cpath(NS, sfx, D, WA):
        NL = 8*NS
        WB = 16 - WA
        A("s_mul_i32 s44, s44, %d" % (32*NS*7168))
        A("s_add_u32 s44, s44, s45              ; soffset")
        A("s_bitcmp1_b32 s21, 0")
        A("s_waitcnt lgkmcnt(0)")
        A("s_cselect_b32 s24, s10, s8")
        A("s_cselect_b32 s25, s11, s9")
        A("s_cmp_ge_u32 s22, %d" % NRX)
        A("s_cbranch_scc1 L_nb0" + sfx)
        A("s_barrier")
        LB("L_nb0" + sfx)
        stamp(1)
        done = 0
        for n in range(NL + WA):
            if n >= D: A(f"s_waitcnt vmcnt({D-1})")
            if n < NL:
                s, i = divmod(n, 8)
                A(f"buffer_load_dwordx2 v[{raw(s,i)}:{raw(s,i)+1}], v3, s[24:27], s44 offen{pol}")
                if n < NL-1: A("s_add_u32 s44, s44, %d" % (7168 if i < 7 else 25*7168))
            else:
                w2load(n - NL)
            if n == 0:
                A("s_load_dword s40, s[18:19], 0        ; epoch")
            if n == D0 - 1:
                A("s_mov_b32 s32, s18")
                A("s_mov_b32 s33, s19")
                A("s_mov_b32 s42, 0x05040100")
                A("s_mov_b32 s43, 0x07060302")
                A("v_and_b32 v8, 7, v0")
                A("v_lshl_add_u32 v13, v1, 3, v8")
                A("v_lshlrev_b32 v13, 4, v13")
                A("s_lshl_b32 s45, s3, %d" % (11 if NS == 4 else 10))
                A("v_add_u32 v5, s45, v13")
                A("s_lshl_b32 s45, s3, 11")
                A("v_add_u32 v4, s45, v13")
                A("v_lshlrev_b32 v6, 3, v0")
                A("s_lshl_b32 s45, s3, 9")
                A("v_add_u32 v6, s45, v6                ; w*512 + lane*8")
                A("v_lshrrev_b32 v7, 1, v0")
                A("v_lshlrev_b32 v7, 4, v7")
                A("v_and_b32 v9, 1, v0")
                A("v_lshl_add_u32 v7, v9, 2, v7")
                A("s_lshr_b32 s45, s3, 1")
                A("s_lshl_b32 s45, s45, 9")
                A("s_and_b32 s46, s3, 1")
                A("s_lshl_b32 s46, s46, 3")
                A("s_add_u32 s45, s45, s46")
                A("v_add_u32 v7, s45, v7")
                A("s_mov_b32 s28, s12")
                A("s_mov_b32 s29, s13")
                A("s_mov_b32 s30, 7340032")
                A("s_mov_b32 s31, 0x20000")
                A("v_lshlrev_b32 v10, 15, v1            ; g*16*2048")
                A("v_lshl_add_u32 v10, v2, 3, v10")
                A("v_lshrrev_b32 v11, 3, v2")
                A("v_lshl_add_u32 v11, v1, 7, v11       ; 4g*32 + (n>>3)")
                A("v_mul_u32_u24 v11, 7168, v11")
                A("v_lshl_add_u32 v11, v8, 4, v11       ; + (n&7)*16")
                A("s_lshl_b32 s53, s21, %d" % (2 if NS == 4 else 1))
                A("s_add_u32 s53, s53, s3")
                if NS == 2:
                    A("s_cmp_ge_u32 s3, 2")
                    A("s_cselect_b32 s45, 0x40000000, 0")
                    A("v_or_b32 v10, s45, v10")
                    A("v_or_b32 v11, s45, v11")
                A("s_mul_i32 s52, s53, %d" % (2*7168))
                A("s_lshl_b32 s46, s20, 7")
                A("s_add_u32 s52, s52, s46")
                A("s_add_u32 s52, s52, %d" % O_EX2)
                A("s_lshl_b32 s53, s53, 7")
                A("s_lshl_b32 s46, s20, 17              ; ct*64*2048")
                A("s_add_u32 s53, s53, s46")
                A("s_lshl_b32 s45, s20, 14")
                A("s_lshl_b32 s46, s21, 11")
                A("s_add_u32 s46, s46, s45")
                A("s_add_u32 s50, s46, %d" % O_EX1)
                A("s_add_u32 s46, s46, %d" % O_EX1F)
                A("s_add_u32 s45, s45, %d" % O_EX1F)
                A("s_mov_b32 s48, 0xffffff00")
                A("s_mov_b32 s51, 0xbfb8aa3b            ; -log2(e)")
                A("s_mov_b32 s49, 0")
                A("s_cmp_ge_u32 s22, %d" % NRX)
                A("s_cbranch_scc1 L_nb0b" + sfx)
                A("s_barrier")
                LB("L_nb0b" + sfx)
            if n == NL - 1:
                A("s_mov_b32 s44, s53")
                stamp(2)
            complete = n - D + 1 if n >= D else 0
            while done < NS and 8*done + 8 <= complete:
                perms(raw, frag, done); done += 1
        A("s_waitcnt lgkmcnt(0)")
        A("s_add_u32 s40, s40, 1                ; tag32")
        A("s_and_b32 s41, s40, 0xff")
        A("v_mov_b32 v9, s41")
        while done < NS:
            A(f"s_waitcnt vmcnt({NL + WA - 8*done - 8})")
            perms(raw, frag, done); done += 1
        A("s_barrier                            ; B2")
        stamp(3)
        for s in range(NS):
            A(f"ds_read_b128 v[{XB+4*s}:{XB+4*s+3}], v5 offset:{L_XS + 512*s}")
        for s in range(NS):
            A(f"s_waitcnt lgkmcnt({NS-1-s})")
            for j in range(4):
                c = "0" if s == 0 else f"v[{ACC+4*j}:{ACC+4*j+3}]"
                A(f"v_mfma_f32_16x16x32_bf16 v[{ACC+4*j}:{ACC+4*j+3}], v[{frag(s,j)}:{frag(s,j)+3}], v[{XB+4*s}:{XB+4*s+3}], {c}")
        A("s_mov_b32 exec_lo, 0x00ff00ff")
        A("s_mov_b32 exec_hi, 0x00ff00ff")
        A("s_nop 2")
        for j in range(4):
            A(f"ds_write_b128 v4, v[{ACC+4*j}:{ACC+4*j+3}] offset:{L_RED + 512*j}")
        A("s_mov_b64 exec, -1")
        A("s_waitcnt lgkmcnt(0)")
        A("s_barrier                            ; B3")
        for w in range(4):
            A(f"ds_read_b64 v[{16+2*w}:{17+2*w}], v6 offset:{L_RED + 2048*w}")
        A("s_waitcnt lgkmcnt(2)")
        A("v_pk_add_f32 v[16:17], v[16:17], v[18:19]")
        A("s_waitcnt lgkmcnt(0)")
        A("v_pk_add_f32 v[20:21], v[20:21], v[22:23]")
        A("v_pk_add_f32 v[16:17], v[16:17], v[20:21]")
        A("v_and_or_b32 v16, v16, s48, v9")
        A("v_and_or_b32 v17, v17, s48, v9")
        A("buffer_store_dwordx2 v[16:17], v6, s[32:35], s46 offen")
        stamp(4)
        for n in range(WA, 16): w2load(n)
        A(f"s_waitcnt vmcnt({WB})")
        pdone = 0
        if WA >= 8:
            perms(raw2, frag2, 0); pdone = 1
        if PW and WB: A(f"s_waitcnt vmcnt({max(WB - PW, 0)})")
        NB = 4 if NS == 4 else 8
        LB("L_x1poll" + sfx)
        for b in range(NB):
            if b and b % 2 == 0: A(f"s_add_u32 s47, s45, {b*2048}")
            A(f"buffer_load_dwordx2 v[{24+2*b}:{25+2*b}], v6, s[32:35], {'s45' if b < 2 else 's47'} offen offset:{(b%2)*2048} sc1")
        A("s_add_u32 s49, s49, 1")
        A("s_waitcnt vmcnt(0)")
        for r in range(24, 24+2*NB): A(f"v_xor_b32 v{r}, s41, v{r}")
        A("v_or3_b32 v8, v24, v25, v26")
        for r in range(27, 24+2*NB-1, 2): A(f"v_or3_b32 v8, v8, v{r}, v{r+1}")
        A(f"v_or_b32 v8, v8, v{24+2*NB-1}")
        A("v_and_b32 v8, 0xff, v8")
        A("v_cmp_ne_u32 vcc, 0, v8")
        A("s_cbranch_vccz L_x1ok" + sfx)
        A(f"s_cmp_lg_u32 s49, {NF}")
        A("s_cbranch_scc1 L_x1ns" + sfx)
        A("buffer_store_dwordx2 v[16:17], v6, s[32:35], s50 offen sc1")
        A("s_sub_u32 s45, s45, %d" % (O_EX1F - O_EX1))
        LB("L_x1ns" + sfx)
        A("s_cmp_lt_u32 s49, %d" % SPIN)
        A("s_cbranch_scc1 L_x1poll" + sfx)
        LB("L_x1ok" + sfx)
        stamp(5)
        if NB == 8:
            A("v_pk_add_f32 v[24:25], v[24:25], v[32:33]")
            A("v_pk_add_f32 v[26:27], v[26:27], v[34:35]")
            A("v_pk_add_f32 v[28:29], v[28:29], v[36:37]")
            A("v_pk_add_f32 v[30:31], v[30:31], v[38:39]")
        return pdone
    pa = cpath(4, "a", D1, WA)
    LB("L_h")
    A("v_pk_add_f32 v[24:25], v[24:25], v[28:29]   ; gate")
    A("v_pk_add_f32 v[26:27], v[26:27], v[30:31]   ; up")
    A("v_cvt_pk_bf16_f32 v8, v24, v25")
    A("v_cvt_pk_bf16_f32 v12, v26, v27")
    A("v_lshlrev_b32 v18, 16, v8")
    A("v_and_b32 v19, 0xffff0000, v8")
    A("v_mul_f32 v20, s51, v18")
    A("v_mul_f32 v21, s51, v19")
    A("v_exp_f32 v20, v20")
    A("v_exp_f32 v21, v21")
    A("v_lshlrev_b32 v14, 16, v12")
    A("v_add_f32 v20, 1.0, v20")
    A("v_add_f32 v21, 1.0, v21")
    A("v_rcp_f32 v20, v20")
    A("v_rcp_f32 v21, v21")
    A("v_and_b32 v15, 0xffff0000, v12")
    A("v_mul_f32 v18, v18, v20")
    A("v_mul_f32 v19, v19, v21")
    A("v_cvt_pk_bf16_f32 v8, v18, v19        ; silu")
    A("v_lshlrev_b32 v18, 16, v8")
    A("v_and_b32 v19, 0xffff0000, v8")
    A("v_mul_f32 v18, v18, v14")
    A("v_mul_f32 v19, v19, v15")
    A("v_cvt_pk_bf16_f32 v8, v18, v19        ; h")
    A(f"ds_write_b32 v7, v8 offset:{L_HB}")
    A("buffer_store_dwordx2 v[16:17], v6, s[32:35], s50 offen sc1")
    for s in range(pa, 2): perms(raw2, frag2, s)
    A("s_waitcnt lgkmcnt(0)")
    A("s_barrier                            ; B4")
    for s in range(2):
        A(f"ds_read_b128 v[{HA+4*s}:{HA+4*s+3}], v13 offset:{L_HB + 512*s}")
    for s in range(2):
        A(f"s_waitcnt lgkmcnt({1-s})")
        for j in range(4):
            c = "0" if s == 0 else f"v[{ACC+4*j}:{ACC+4*j+3}]"
            A(f"v_mfma_f32_16x16x32_bf16 v[{ACC+4*j}:{ACC+4*j+3}], v[{HA+4*s}:{HA+4*s+3}], v[{frag2(s,j)}:{frag2(s,j)+3}], {c}")
    A("s_mov_b32 exec_lo, -1")
    A("s_mov_b32 exec_hi, 0")
    A("s_nop 5")
    for r in range(4):
        for j in range(4):
            A(f"v_and_or_b32 v{20+4*r+j}, v{ACC+4*j+r}, s48, v9")
        A(f"buffer_store_dwordx4 v[{20+4*r}:{23+4*r}], v11, s[32:35], s52 offen sc1")
        if r < 3: A("s_add_u32 s52, s52, %d" % (32*7168))
    stamp(6)
    A("s_waitcnt vmcnt(0)")
    A("s_barrier                            ; B5")
    stamp(7)
    A("s_branch L_fin")
    LB("L_cb")
    pb = cpath(2, "b", D13, WA3)
    assert pa == pb
    A("s_branch L_h")

    XR = 80
    def touch(which):
        A("v_mov_b32 v32, 0")
        if "x" in which: A("global_load_dword v33, v32, s[4:5]")
        if "o" in which: A("global_load_dword v34, v32, s[14:15]")
        if "e" in which:
            A("s_mov_b32 s45, 0x3f0000")
            A("buffer_load_dword v35, v32, s[32:35], s45 offen")
        if "d" in which:
            A("s_lshl_b32 s45, s20, 17")
            A("v_mov_b32 v36, s45")
            A("global_load_dword v37, v36, s[12:13]")
    LB("L_r")
    A("s_mov_b32 s30, 524288")
    A("s_mov_b32 s31, 0x20000")
    A("v_lshlrev_b32 v14, 4, v0             ; lane*16")
    A("s_cmp_eq_u32 s3, 4")
    A("s_cbranch_scc1 L_r4")
    A("s_and_b32 s45, s2, 0xe7")
    A("s_cmp_eq_u32 s45, 0xe0")
    A("s_cbranch_scc1 L_r5")
    A("s_endpgm")
    LB("L_r5")
    A("s_barrier")
    A("s_waitcnt lgkmcnt(0)")
    A("s_load_dword s40, s[18:19], 0        ; epoch")
    A("s_mov_b32 s28, s4")
    A("s_mov_b32 s29, s5")
    A("s_mov_b32 s32, s18")
    A("s_mov_b32 s33, s19")
    A("s_add_u32 s50, s2, 4                 ; slice")
    A("v_and_b32 v4, 7, v0")
    A("s_barrier                            ; B0b")
    A("s_waitcnt lgkmcnt(0)")
    A("s_add_u32 s40, s40, 1")
    A("s_barrier                            ; B2")
    A("s_branch L_red")
    LB("L_r4")
    A("s_lshl_b32 s45, s20, 14")
    A("s_lshl_b32 s46, s21, 11")
    A("s_add_u32 s46, s46, s45")
    A("s_add_u32 s48, s46, %d               ; own L2-local block" % O_EX1F)
    A("s_cmp_lt_u32 s22, %d" % NRX)
    A("s_cbranch_scc1 L_route")
    A("s_waitcnt lgkmcnt(0)")
    A("s_mov_b32 s32, s18")
    A("s_mov_b32 s33, s19")
    A("buffer_load_dwordx4 v[24:27], v14, s[32:35], s48 offen")
    A("buffer_load_dwordx4 v[28:31], v14, s[32:35], s48 offen offset:1024")
    touch(tt)
    stamp(1)
    A("s_load_dword s40, s[18:19], 0        ; epoch")
    A("s_mov_b32 s28, s4")
    A("s_mov_b32 s29, s5")
    if PD: A(f"s_sleep {PD}")
    A("s_waitcnt lgkmcnt(0)")
    A("s_add_u32 s40, s40, 1")
    A("s_branch L_ip0")
    LB("L_route")
    A("s_setprio 3")
    A("s_lshl_b32 s52, s23, 1")
    A("s_add_u32 s52, s52, s22")
    A("s_lshl_b32 s44, s52, 13")
    A("s_add_u32 s45, s44, 4096")
    A("s_mov_b32 s26, 2048")
    P("r_pre")
    A("s_waitcnt lgkmcnt(0)")
    P("r_karg")
    A("s_mov_b32 s28, s4")
    A("s_mov_b32 s29, s5")
    A("s_mov_b32 s24, s6")
    A("s_mov_b32 s25, s7")
    A(f"buffer_load_dwordx4 v[16:19], v14, s[24:27], 0 offen")
    A(f"buffer_load_dwordx4 v[20:23], v14, s[24:27], 0 offen offset:1024")
    for i in range(8):
        A(f"buffer_load_dwordx4 v[{XR+4*i}:{XR+4*i+3}], v14, s[28:31], {'s44' if i < 4 else 's45'} offen offset:{(i%4)*1024}{xpol}")
    P("r_iss")
    A("s_barrier                            ; B0")
    stamp(1)
    A("s_load_dword s40, s[18:19], 0        ; epoch")
    A("s_mov_b32 s32, s18")
    A("s_mov_b32 s33, s19")
    A("buffer_load_dwordx4 v[24:27], v14, s[32:35], s48 offen")
    A("buffer_load_dwordx4 v[28:31], v14, s[32:35], s48 offen offset:1024")
    ntt = len(tt.replace("x", ""))
    touch(tt.replace("x", ""))
    A("s_and_b32 s45, s52, 7")
    A("s_lshl_b32 s46, s45, 3")
    A("s_lshr_b32 s52, s52, 3               ; batch")
    A("s_add_u32 s46, s46, s52")
    A("s_mul_i32 s46, s46, %d" % LS)
    A("s_add_u32 s46, s46, %d               ; slot" % O_IDX)
    A("s_lshl_b32 s45, s45, 2")
    A("v_mul_u32_u24 v5, %d, v0             ; replica offset" % REPS)
    A("v_lshrrev_b32 v10, 5, v0")
    A("v_bfe_u32 v11, v0, 4, 1")
    A("v_lshl_add_u32 v10, v11, 1, v10")
    A("v_add_u32 v10, s45, v10")
    A("v_xor_b32 v10, 31, v10")
    for t in range(4):
        for hlf in range(2):
            A(f"s_waitcnt vmcnt({9 + ntt - 2*t - hlf})")
            if t == 0 and hlf == 0: P("r_first")
            if t == 3 and hlf == 1: P("r_last")
            for k in range(4):
                c = "0" if (hlf == 0 and k == 0) else f"v{6+t}"
                A(f"v_dot2_f32_bf16 v{6+t}, v{XR+8*t+4*hlf+k}, v{16+4*hlf+k}, {c}")
    A("s_waitcnt lgkmcnt(0)")
    P("r_epoch")
    A("s_add_u32 s40, s40, 1")
    A("s_nop 0")
    A("v_permlane32_swap_b32 v6, v7")
    A("v_permlane32_swap_b32 v8, v9")
    A("v_add_f32 v6, v6, v7")
    A("v_add_f32 v8, v8, v9")
    A("s_nop 1")
    A("v_permlane16_swap_b32 v6, v8")
    A("v_add_f32 v6, v6, v8")
    A("s_nop 1")
    A("v_add_f32_dpp v6, v6, v6 quad_perm:[1,0,3,2] row_mask:0xf bank_mask:0xf")
    A("s_nop 1")
    A("v_add_f32_dpp v6, v6, v6 quad_perm:[2,3,0,1] row_mask:0xf bank_mask:0xf")
    A("s_nop 1")
    A("v_add_f32_dpp v6, v6, v6 row_half_mirror row_mask:0xf bank_mask:0xf")
    A("s_nop 1")
    A("v_add_f32_dpp v6, v6, v6 row_mirror row_mask:0xf bank_mask:0xf")
    A("v_cvt_pk_bf16_f32 v7, v6, v6")
    A("v_and_b32 v7, 0xffff0000, v7          ; r (bf16)")
    A("v_ashrrev_i32 v6, 31, v7")
    A("v_or_b32 v6, 0x80000000, v6")
    A("v_xor_b32 v6, v6, v7")
    A("v_cmp_o_f32 vcc, v7, v7")
    A("v_and_b32 v6, 0xffff0000, v6")
    A("s_nop 0")
    A("v_cndmask_b32 v6, 0, v6, vcc")
    A("v_or_b32 v6, v10, v6")
    A("v_mov_b32 v7, v6")
    A("s_nop 1")
    A("v_permlane16_swap_b32 v6, v7")
    A("v_max_u32 v6, v6, v7")
    A("v_mov_b32 v7, v6")
    A("s_nop 1")
    A("v_permlane32_swap_b32 v6, v7")
    A("v_max_u32 v6, v6, v7")
    A("v_mov_b32 v7, s40")
    A("s_mov_b64 exec, 0xff")
    A("buffer_store_dwordx2 v[6:7], v5, s[32:35], s46 offen sc1")
    A("s_mov_b64 exec, -1")
    A("s_barrier                            ; B0b")
    stamp(2)
    A("s_setprio 0")
    A("s_lshl_b32 s53, s52, 5")
    A("s_add_u32 s53, s53, s45")
    for r in range(XR, XR+32):
        A(f"v_lshlrev_b32 v16, 16, v{r}")
        A(f"v_and_b32 v17, 0xffff0000, v{r}")
        A("v_pk_fma_f32 v[16:17], v[16:17], 0, v[16:17] op_sel_hi:[1,0,1]")
        A(f"v_cvt_pk_bf16_f32 v{r}, v16, v17    ; x + x*0")
    if ackwait: A("s_waitcnt vmcnt(0)")
    P("r_ack")
    LB("L_ip0")
    A("v_mul_u32_u24 v12, %d, v0            ; poll offset" % LS)
    A("s_mul_i32 s47, s22, %d" % REPS)
    A("s_add_u32 s47, s47, %d               ; this die's replica" % O_IDX)
    A("s_mov_b32 s49, 0")
    A("v_and_b32 v4, 7, v0")
    A("v_lshrrev_b32 v11, 3, v0")
    for k in range(NP):
        if psleep and k: A(f"s_sleep {psleep}")
        A(f"buffer_load_dwordx2 v[{16+2*k}:{17+2*k}], v12, s[32:35], s47 offen sc1")
    A("s_lshr_b32 s45, s21, 1")
    A("s_sub_u32 s46, 10, s57")
    A("s_lshl_b32 s45, s45, s46")
    A("s_mov_b32 s50, s2                    ; slice")
    LB("L_ipoll")
    for k in range(NP):
        A(f"s_waitcnt vmcnt({NP-1})")
        A(f"v_cmp_ne_u32 vcc, s40, v{17+2*k}")
        A(f"v_mov_b32 v8, v{16+2*k}")
        A("s_cbranch_vccz L_iok")
        A(f"buffer_load_dwordx2 v[{16+2*k}:{17+2*k}], v12, s[32:35], s47 offen sc1")
    A("s_add_u32 s49, s49, 1")
    A("s_cmp_lt_u32 s49, %d" % SPIN)
    A("s_cbranch_scc1 L_ipoll")
    LB("L_iok")
    stamp(3)
    if stamps: A("s_mov_b32 s59, s49")
    A("s_mov_b32 m0, %d" % L_XS)
    A("v_max_u32_dpp v8, v8, v8 row_ror:8 row_mask:0xf bank_mask:0xf")
    A("v_mov_b32 v9, v8")
    A("s_and_b32 s52, s52, 7")
    A("s_cmp_eq_u32 s57, 1")
    A("v_permlane16_swap_b32 v8, v9")
    A("v_max_u32 v8, v8, v9")
    A("v_mov_b32 v9, v8")
    A("s_nop 1")
    A("v_permlane32_swap_b32 v8, v9")
    A("v_max_u32 v8, v8, v9")
    A("v_and_b32 v10, 31, v8")
    A("v_xor_b32 v10, 31, v10")
    A("v_lshl_add_u32 v10, v4, 5, v10       ; row")
    A("v_lshlrev_b32 v10, 11, v10")
    A("v_lshl_add_u32 v10, v11, 4, v10      ; + chunk*16")
    A("v_lshlrev_b32 v9, 2, v4")
    A("v_readlane_b32 s54, v10, s52")
    for i in range(8):
        if i == 4: A("s_cbranch_scc1 L_dmadone")
        A(f"buffer_load_dwordx4 v10, s[28:31], s45 offen{xpol} lds")
        if i < 7:
            A("s_mov_b32 m0, %d" % (L_XS + 1024*(i+1)))
            A("v_add_u32 v10, 128, v10")
    LB("L_dmadone")
    A(f"ds_write_b32 v9, v8 offset:{L_KEY}")
    A("s_mov_b32 s36, s14")
    A("s_mov_b32 s37, s15")
    A("s_mov_b32 s38, 524288")
    A("s_mov_b32 s39, 0x20000")
    A("s_waitcnt vmcnt(0) lgkmcnt(0)")
    A("s_barrier                            ; B2")
    stamp(4)
    A("s_cmp_ge_u32 s22, %d" % NRX)
    A("s_cbranch_scc1 L_red")
    A("s_lshl_b32 s44, s53, 11")
    for t in range(4):
        A("s_cmp_eq_u32 s44, s54")
        A(f"s_cbranch_scc1 L_sel{t}")
        A(f"buffer_store_dwordx4 v[{XR+8*t}:{XR+8*t+3}], v14, s[36:39], s44 offen{outpol}")
        A(f"buffer_store_dwordx4 v[{XR+8*t+4}:{XR+8*t+7}], v14, s[36:39], s44 offen offset:1024{outpol}")
        LB(f"L_sel{t}")
        A("s_add_u32 s44, s44, 2048")
    LB("L_red")
    A("s_lshr_b32 s51, s50, 5               ; token")
    A("s_lshl_b32 s45, s51, 2")
    A("v_mov_b32 v5, s45")
    A(f"ds_read_b32 v6, v5 offset:{L_KEY}")
    A("s_barrier                            ; B3")
    A("s_mov_b32 s36, s14")
    A("s_mov_b32 s37, s15")
    A("s_mov_b32 s38, 524288")
    A("s_mov_b32 s39, 0x20000")
    A("s_and_b32 s41, s40, 0xff")
    A("v_lshrrev_b32 v7, 5, v0")
    A("v_bfe_u32 v8, v0, 4, 1")
    A("v_lshl_add_u32 v7, v8, 1, v7         ; e")
    A("v_lshl_add_u32 v7, v4, 2, v7         ; 4*pos + e")
    A("s_and_b32 s45, s50, 31")
    A("s_lshl_b32 s45, s45, 5")
    A("v_add_u32 v7, s45, v7                ; column")
    A("s_waitcnt lgkmcnt(0)")
    A("v_and_b32 v8, 31, v6")
    A("v_xor_b32 v8, 31, v8")
    A("s_lshl_b32 s45, s51, 5")
    A("v_add_u32 v8, s45, v8                ; row")
    A("v_lshlrev_b32 v8, 10, v8")
    A("v_add_u32 v7, v8, v7")
    A("v_lshlrev_b32 v7, 1, v7")
    A("buffer_load_ushort v9, v7, s[28:31], 0 offen")
    A("v_lshrrev_b32 v10, 16, v6")
    A("v_xor_b32 v11, 0xffff, v10")
    A("v_and_b32 v12, 0x7fff, v10")
    A("v_cmp_gt_i32 vcc, 0, v6")
    A("s_mov_b32 s45, 0xbfb8aa3b")
    A("s_nop 0")
    A("v_cndmask_b32 v10, v11, v12, vcc")
    A("v_lshlrev_b32 v10, 16, v10           ; r")
    A("v_mul_f32 v10, s45, v10")
    A("v_exp_f32 v10, v10")
    A("s_nop 0")
    A("v_add_f32 v10, 1.0, v10")
    A("v_rcp_f32 v10, v10")
    A("s_nop 0")
    A("v_cvt_pk_bf16_f32 v10, v10, v10")
    A("v_and_b32 v10, 0xffff0000, v10       ; sigmoid")
    A("s_mul_i32 s46, s50, 7168")
    A("s_add_u32 s46, s46, %d" % O_EX2)
    A("s_add_u32 s47, s46, 4096")
    A("s_mov_b32 s49, 0")
    A("s_mov_b32 s44, 0x00ff00ff")
    A("s_mov_b32 s45, 0x00ff00ff")
    A("s_waitcnt vmcnt(0)")
    A("v_lshlrev_b32 v9, 16, v9             ; x")
    A("s_barrier                            ; B4")
    A("s_barrier                            ; B5")
    if x2delay: A(f"s_sleep {x2delay}")
    stamp(5)
    LB("L_x2poll")
    for i in range(7):
        so = "s46" if i < 4 else "s47"
        A(f"buffer_load_dwordx4 v[{32+4*i}:{35+4*i}], v14, s[32:35], {so} offen offset:{(i%4)*1024} sc1")
    A("s_add_u32 s49, s49, 1")
    for i in range(7):
        A(f"s_waitcnt vmcnt({6-i})")
        b = 32 + 4*i
        for r in range(b, b+4): A(f"v_xor_b32 v{r}, s41, v{r}")
        if i == 0:
            A(f"v_or3_b32 v15, v{b}, v{b+1}, v{b+2}")
            A(f"v_or_b32 v15, v15, v{b+3}")
        else:
            A(f"v_or3_b32 v15, v15, v{b}, v{b+1}")
            A(f"v_or3_b32 v15, v15, v{b+2}, v{b+3}")
            src = 32 if i == 1 else 16
            A(f"v_pk_add_f32 v[16:17], v[{src}:{src+1}], v[{b}:{b+1}]")
            A(f"v_pk_add_f32 v[18:19], v[{src+2}:{src+3}], v[{b+2}:{b+3}]")
    A("v_and_b32 v15, 0xff, v15")
    A("v_cmp_ne_u32 vcc, 0, v15")
    A("s_cbranch_vccz L_x2ok")
    A("s_cmp_lt_u32 s49, %d" % SPIN)
    A("s_cbranch_scc1 L_x2poll")
    LB("L_x2ok")
    stamp(6)
    A("v_permlane32_swap_b32 v16, v17")
    A("v_permlane32_swap_b32 v18, v19")
    A("v_add_f32 v16, v16, v17")
    A("v_add_f32 v18, v18, v19")
    A("s_nop 1")
    A("v_permlane16_swap_b32 v16, v18")
    A("v_add_f32 v16, v16, v18")
    A("s_nop 1")
    A("v_add_f32_dpp v16, v16, v16 row_ror:8 row_mask:0xf bank_mask:0xf")
    A("s_mov_b64 exec, s[44:45]")
    A("v_cvt_pk_bf16_f32 v16, v16, v16")
    A("v_and_b32 v16, 0xffff0000, v16       ; y")
    A("v_mul_f32 v16, v16, v10")
    A("v_cvt_pk_bf16_f32 v16, v16, v16")
    A("v_and_b32 v16, 0xffff0000, v16       ; y*sigmoid")
    A("v_fma_f32 v16, v9, 0, v16            ; upd = x*0 + y")
    A("v_add_f32 v16, v9, v16")
    A("v_cvt_pk_bf16_f32 v16, v16, v16")
    A(f"buffer_store_short v16, v7, s[36:39], 0 offen{outpol}")
    A("s_cmp_lg_u32 s50, 0")
    A("s_cbranch_scc1 L_noep")
    A("v_mov_b32 v18, s40")
    A("v_mov_b32 v17, 0")
    A("s_mov_b64 exec, 1")
    A("buffer_store_dword v18, v17, s[32:35], 0 offen sc1")
    LB("L_noep")
    stamp(7)
    LB("L_fin")
    if amp:
        A("s_waitcnt lgkmcnt(0)")
        A(f"s_cmp_lg_u32 s3, {amp[2]}")
        A("s_cbranch_scc1 L_end")
        A(f"s_cmp_lg_u32 s2, {amp[3]}")
        A("s_cbranch_scc1 L_end")
        A(f"s_sub_u32 s20, s{60+2*amp[1]}, s{60+2*amp[0]}")
        A("s_min_u32 s20, s20, 5000")
        A("s_mul_i32 s20, s20, 10")
        A("s_memrealtime s[22:23]")
        A("s_waitcnt lgkmcnt(0)")
        LB("L_amp")
        A("s_memrealtime s[24:25]")
        A("s_waitcnt lgkmcnt(0)")
        A("s_sub_u32 s21, s24, s22")
        A("s_cmp_lt_u32 s21, s20")
        A("s_cbranch_scc1 L_amp")
    elif dg:
        import diag
        diag.epilogue(A, LB, dg)
    elif gamp:
        k, wv, fac, cnt = gamp
        A("s_waitcnt lgkmcnt(0) vmcnt(0)")
        A(f"s_cmp_lg_u32 s3, {wv}")
        A("s_cbranch_scc1 L_end")
        A("s_mov_b64 exec, 1")
        A("s_not_b32 s20, s60")
        A("v_mov_b32 v16, s20")
        A(f"v_mov_b32 v17, s{60+2*k}" if k >= 0 else f"v_mov_b32 v17, s49")
        A("v_mov_b32 v3, 0")
        A("v_mov_b32 v18, 1")
        A("global_atomic_umax v3, v16, s[16:17] sc1")
        A("global_atomic_umax v3, v17, s[16:17] offset:64 sc1")
        A("s_waitcnt vmcnt(0)")
        A("global_atomic_add v19, v3, v18, s[16:17] offset:128 sc0 sc1")
        A("s_waitcnt vmcnt(0)")
        A("v_readfirstlane_b32 s20, v19")
        A(f"s_cmp_lg_u32 s20, {cnt-1}")
        A("s_cbranch_scc1 L_end")
        A("v_mov_b32 v18, 0")
        A("global_atomic_umax v16, v3, v18, s[16:17] sc0 sc1")
        A("global_atomic_umax v17, v3, v18, s[16:17] offset:64 sc0 sc1")
        A("s_waitcnt vmcnt(0)")
        A("v_readfirstlane_b32 s20, v16")
        A("v_readfirstlane_b32 s21, v17")
        A("s_not_b32 s20, s20")
        if k >= 0: A("s_sub_u32 s20, s21, s20")
        else: A("s_mov_b32 s20, s21")
        A("v_mov_b32 v18, s20")
        A("global_store_dword v3, v18, s[16:17] offset:4")
        A("s_min_u32 s20, s20, 3000")
        A(f"s_mul_i32 s20, s20, {fac}")
        A("s_memrealtime s[22:23]")
        A("s_waitcnt lgkmcnt(0)")
        LB("L_amp")
        A("s_memrealtime s[24:25]")
        A("s_waitcnt lgkmcnt(0)")
        A("s_sub_u32 s21, s24, s22")
        A("s_cmp_lt_u32 s21, s20")
        A("s_cbranch_scc1 L_amp")
    elif stamps:
        A("s_waitcnt lgkmcnt(0)")
        A("s_mov_b64 exec, -1")
        A("s_lshl_b32 s20, s3, 8")
        A("s_add_u32 s20, s20, s2")
        A("s_lshl_b32 s20, s20, 6")
        A("s_add_u32 s20, s20, 0x8000000")
        A("s_add_u32 s18, s18, s20")
        A("s_addc_u32 s19, s19, 0")
        for i in range(8): A(f"v_mov_b32 v{16+i}, s{60+2*i}")
        A("v_mov_b32 v24, s49")
        A("v_mov_b32 v25, s59")
        A("v_mov_b32 v3, 0")
        A("s_mov_b64 exec, 1")
        A("global_store_dwordx4 v3, v[16:19], s[18:19]")
        A("global_store_dwordx4 v3, v[20:23], s[18:19] offset:16")
        A("global_store_dwordx2 v3, v[24:25], s[18:19] offset:32")
    LB("L_end")
    A("s_endpgm")
    body = "\n".join(L)
    return f"""{HEAD}; @launch grid=(256,1,1) block=(384,1,1) lds={LDS_BYTES}
.amdgcn_target "amdgcn-amd-amdhsa--gfx950"
.text
.globl {KN}
.p2align 8
.type {KN},@function
{KN}:
{body}
.section .rodata,"a"
.p2align 6
.amdhsa_kernel {KN}
  .amdhsa_next_free_vgpr 160
  .amdhsa_next_free_sgpr 96
  .amdhsa_accum_offset 160
  .amdhsa_group_segment_fixed_size 0
  .amdhsa_kernarg_size 64
  .amdhsa_user_sgpr_count 2
  .amdhsa_user_sgpr_kernarg_segment_ptr 1
  .amdhsa_system_sgpr_workgroup_id_x 1
  .amdhsa_float_denorm_mode_32 3
.end_amdhsa_kernel
"""
if __name__ == "__main__":
    import sys, json
    kw = json.loads(sys.argv[2]) if len(sys.argv) > 2 else {}
    open(sys.argv[1] if len(sys.argv) > 1 else "standalone__moe_arch_mod__sampling.s", "w").write(gen(**kw))
```

```python
def epilogue(A, LB, stats, nwg=252, gatherwave=4, invalid=(228,236,244,252), extra=("s49","s59")):
    A("s_waitcnt lgkmcnt(0) vmcnt(0)")
    A("s_mov_b64 exec, -1")
    A("s_barrier")
    A("s_lshl_b32 s20, s3, 8")
    A("s_add_u32 s20, s20, s2")
    A("s_lshl_b32 s20, s20, 6")
    A("s_add_u32 s18, s18, 0x8000000")
    A("s_addc_u32 s19, s19, 0")
    for i in range(8): A(f"v_mov_b32 v{16+i}, s{60+2*i}")
    A(f"v_mov_b32 v24, {extra[0]}")
    A(f"v_mov_b32 v25, {extra[1]}")
    A("v_mov_b32 v3, s20")
    A("s_mov_b64 exec, 1")
    A("global_store_dwordx4 v3, v[16:19], s[18:19] sc1")
    A("global_store_dwordx4 v3, v[20:23], s[18:19] offset:16 sc1")
    A("global_store_dwordx2 v3, v[24:25], s[18:19] offset:32 sc1")
    A("s_waitcnt vmcnt(0)")
    A("s_barrier")
    A(f"s_cmp_lg_u32 s3, {gatherwave}")
    A("s_cbranch_scc1 L_end")
    A("v_mov_b32 v3, 0")
    A("v_mov_b32 v18, 1")
    A("global_atomic_add v19, v3, v18, s[16:17] offset:128 sc0 sc1")
    A("s_waitcnt vmcnt(0)")
    A("v_readfirstlane_b32 s20, v19")
    A(f"s_cmp_lg_u32 s20, {nwg-1}")
    A("s_cbranch_scc1 L_end")
    A("s_mov_b64 exec, -1")
    A("v_mbcnt_lo_u32_b32 v0, -1, 0")
    A("v_mbcnt_hi_u32_b32 v0, -1, v0")
    for i in range(4):
        A(f"v_add_u32 v{4+i}, {64*i}, v0")
        for bad in invalid:
            if bad // 64 == i:
                A(f"s_mov_b32 s20, {bad}")
                A(f"v_cmp_eq_u32 vcc, s20, v{4+i}")
                A("s_nop 1")
                A(f"v_cndmask_b32 v{4+i}, v{4+i}, {bad & 7}, vcc")
        A(f"v_lshlrev_b32 v{4+i}, 6, v{4+i}")
    def gather(role, k, op, dst):
        A(f"s_add_u32 s22, s18, {role*256*64 + 4*k}")
        A("s_addc_u32 s23, s19, 0")
        for i in range(4): A(f"global_load_dword v{8+i}, v{4+i}, s[22:23] sc1")
        A("s_waitcnt vmcnt(0)")
        if op == "min":
            for i in range(4):
                A(f"v_cmp_eq_u32 vcc, 0, v{8+i}")
                A("s_nop 1")
                A(f"v_cndmask_b32 v{8+i}, v{8+i}, -1, vcc")
        o = f"v_{op}_u32"
        A(f"{o} v8, v8, v9"); A(f"{o} v10, v10, v11"); A(f"{o} v8, v8, v10")
        A("s_nop 1")
        A(f"{o}_dpp v8, v8, v8 row_ror:8 row_mask:0xf bank_mask:0xf")
        A("v_mov_b32 v9, v8"); A("s_nop 1")
        A("v_permlane16_swap_b32 v8, v9"); A(f"{o} v8, v8, v9")
        A("v_mov_b32 v9, v8"); A("s_nop 1")
        A("v_permlane32_swap_b32 v8, v9"); A(f"{o} v{dst}, v8, v9")
    gather(0, 0, "min", 30)
    gather(4, 0, "min", 31)
    A("v_min_u32 v30, v30, v31")
    A("s_nop 1")
    A("v_min_u32_dpp v30, v30, v30 row_ror:4 row_mask:0xf bank_mask:0xf")
    A("s_nop 1")
    A("v_min_u32_dpp v30, v30, v30 row_ror:2 row_mask:0xf bank_mask:0xf")
    A("s_nop 1")
    A("v_min_u32_dpp v30, v30, v30 row_ror:1 row_mask:0xf bank_mask:0xf")
    for q, (role, k, op) in enumerate(stats):
        gather(role, k, op, 32)
        if k < 8:
            A("v_sub_u32 v32, v32, v30")
            A("v_add_u32 v32, 2, v32")
            A("v_ashrrev_i32 v32, 2, v32")
            A("v_max_i32 v32, 0, v32")
        A("v_min_u32 v32, 255, v32")
        A(f"v_add_u32 v33, {8*q}, v0")
        A("s_mov_b64 exec, 0xff")
        A("global_store_byte v33, v32, s[16:17]")
        A("s_mov_b64 exec, -1")

def dump(A, LB):
    A("s_waitcnt lgkmcnt(0)")
    A("s_mov_b64 exec, -1")
    A("s_lshl_b32 s20, s3, 8")
    A("s_add_u32 s20, s20, s2")
    A("s_lshl_b32 s20, s20, 6")
    A("s_add_u32 s20, s20, 0x8000000")
    A("s_add_u32 s18, s18, s20")
    A("s_addc_u32 s19, s19, 0")
    for i in range(8): A(f"v_mov_b32 v{16+i}, s{60+2*i}")
    A("v_mov_b32 v24, s49")
    A("v_mov_b32 v25, s59")
    A("v_mov_b32 v3, 0")
    A("s_mov_b64 exec, 1")
    A("global_store_dwordx4 v3, v[16:19], s[18:19]")
    A("global_store_dwordx4 v3, v[20:23], s[18:19] offset:16")
    A("global_store_dwordx2 v3, v[24:25], s[18:19] offset:32")

def gamp(A, LB, g):
    k, wv, fac, cnt = g[:4]
    die = g[4] if len(g) > 4 else None
    A("s_waitcnt lgkmcnt(0) vmcnt(0)")
    A("s_mov_b64 exec, -1")
    A("s_barrier")
    A(f"s_cmp_lg_u32 s3, {wv}")
    A("s_cbranch_scc1 L_end")
    A("s_mov_b64 exec, 1")
    A("s_not_b32 s20, s60")
    A("v_mov_b32 v16, s20")
    A(f"v_mov_b32 v17, s{60+2*k}" if k >= 0 else f"v_mov_b32 v17, s{49 if k == -1 else 59}")
    if die is not None:
        A("s_and_b32 s21, s2, 7")
        A(f"s_cmp_eq_u32 s21, {die}")
        A("s_cselect_b32 s21, -1, 0")
        A("v_and_b32 v17, s21, v17")
    A("v_mov_b32 v3, 0")
    A("v_mov_b32 v18, 1")
    A("global_atomic_umax v3, v16, s[16:17] sc1")
    A("global_atomic_umax v3, v17, s[16:17] offset:64 sc1")
    A("s_waitcnt vmcnt(0)")
    A("global_atomic_add v19, v3, v18, s[16:17] offset:128 sc0 sc1")
    A("s_waitcnt vmcnt(0)")
    A("v_readfirstlane_b32 s20, v19")
    A(f"s_cmp_lg_u32 s20, {cnt-1}")
    A("s_cbranch_scc1 L_end")
    A("v_mov_b32 v18, 0")
    A("global_atomic_umax v16, v3, v18, s[16:17] sc0 sc1")
    A("global_atomic_umax v17, v3, v18, s[16:17] offset:64 sc0 sc1")
    A("s_waitcnt vmcnt(0)")
    A("v_readfirstlane_b32 s20, v16")
    A("v_readfirstlane_b32 s21, v17")
    A("s_not_b32 s20, s20")
    if k >= 0: A("s_sub_u32 s20, s21, s20")
    else: A("s_mov_b32 s20, s21")
    A("v_mov_b32 v18, s20")
    A("global_store_dword v3, v18, s[16:17] offset:4")
    A("s_min_u32 s20, s20, 3000")
    A(f"s_mul_i32 s20, s20, {fac}")
    A("s_memrealtime s[22:23]")
    A("s_waitcnt lgkmcnt(0)")
    LB("L_amp")
    A("s_memrealtime s[24:25]")
    A("s_waitcnt lgkmcnt(0)")
    A("s_sub_u32 s21, s24, s22")
    A("s_cmp_lt_u32 s21, s20")
    A("s_cbranch_scc1 L_amp")
```

```python
KN = "standalone__moe_arch_mod__sampling_kernel"
HEAD = open("standalone__moe_arch_mod__sampling.s.ref").read().split("; Override launch")[0]

O_IDX = 0x1000
O_EX1F = 0x20000
O_EX2 = 0x100000
O_EX1 = 0x300000
WS_REC = 0x500000
L_XS = 0
L_RED = 8192
L_HB = 16384
L_KEY = 17408
L_FLAG = 17408 + 32
LDS_BYTES = 17408 + 64
SPIN = 40000
NRX = 4

def gen(pol="nt", xpol="", D=10, LS=16, NF=12, stamps=False, outpol="", D0=3, WA=10, WM1=2, WM2=1, PK=None,
        KT=21, KT3=17, dg=None, gamp=None, cpf=3, tt="o", fsleep=1, cst1=False, WA3=None, rack=True):
    if gamp or dg: stamps = True
    L = []
    def A(s): L.append("  " + s)
    def LB(s): L.append(s + ":")
    def stamp(i):
        if stamps: A(f"s_memrealtime s[{60+2*i}:{61+2*i}]")
    pol = (" " + pol) if pol else ""
    xpol = (" " + xpol) if xpol else ""
    outpol = (" " + outpol) if outpol else ""
    REPS = 64 * LS
    XR = 80
    RAW = 16; FR = 80; XB = 96; ACC = 112; W2 = 128
    F2 = 40; HA = 72
    IDR = 40
    def raw(s, i): return RAW + 16*s + 2*i
    def frag(s, j): return (FR if s == 0 else RAW + 16*(s-1)) + 4*j
    def raw2(s, i): return W2 + 16*s + 2*i
    def frag2(s, j): return F2 + 16*s + 4*j
    def perms(rawf, fragf, s):
        for e in range(2):
            for p in range(4):
                A(f"v_perm_b32 v{fragf(s,2*e)+p}, v{rawf(s,2*p+1)+e}, v{rawf(s,2*p)+e}, s42")
            for p in range(4):
                A(f"v_perm_b32 v{fragf(s,2*e+1)+p}, v{rawf(s,2*p+1)+e}, v{rawf(s,2*p)+e}, s43")
    def w1load(n):
        s, i = divmod(n, 8)
        A(f"buffer_load_dwordx2 v[{raw(s,i)}:{raw(s,i)+1}], v3, s[24:27], s44 offen{pol}")
        A("s_addk_i32 s44, 7168" if i < 7 else "s_add_u32 s44, s44, %d" % (25*7168))
    def w2load(n):
        s, i = divmod(n, 8)
        p, b = divmod(i, 2)
        row = 2*s + (p >> 1) + 8*(p & 1) + 4*b
        A("s_add_u32 s47, s53, %d" % (row*2048))
        A(f"buffer_load_dwordx2 v[{raw2(s,i)}:{raw2(s,i)+1}], v10, s[28:31], s47 offen{pol}")

    stamp(0)
    A("s_cmp_ge_u32 s2, 256")
    A("s_cbranch_scc1 L_exit")
    A("s_load_dwordx16 s[4:19], s[0:1], 0")
    A("v_lshrrev_b32 v1, 6, v0")
    A("v_and_b32 v0, 63, v0                 ; lane")
    A("v_readfirstlane_b32 s3, v1           ; wave")
    A("s_and_b32 s22, s2, 7")
    A("s_lshr_b32 s23, s2, 3")
    A("s_add_u32 s56, s22, 3")
    A("s_and_b32 s56, s56, 7")
    A("s_lshr_b32 s20, s23, 2")
    A("s_and_b32 s21, s23, 3")
    A("s_cmp_eq_u32 s20, 7")
    A("s_cselect_b32 s20, s56, s20")
    A("s_cselect_b32 s44, 4, 0")
    A("s_add_u32 s21, s21, s44              ; q")
    A("s_cmp_lg_u32 s20, 7")
    A("s_cbranch_scc1 L_hastile")
    LB("L_exit")
    A("s_endpgm")
    LB("L_hastile")
    A("s_cmp_eq_u32 s20, s56")
    A("s_cselect_b32 s57, 1, 0")
    A("s_cmp_lt_u32 s22, %d" % NRX)
    A("s_cselect_b32 s58, s57, 0")
    A("s_mul_i32 s44, s22, 7")
    A("s_add_u32 s20, s20, s44")
    A("s_mov_b32 s27, 0x20000")
    A("s_cmp_lt_u32 s3, 4")
    A("s_cbranch_scc1 L_c")
    A("s_mov_b32 s30, 524288")
    A("s_mov_b32 s31, 0x20000")
    A("v_lshlrev_b32 v14, 4, v0             ; lane*16")
    A("s_cmp_eq_u32 s58, 0")
    A("s_cbranch_scc1 L_r")
    A("s_setprio 3")
    A("s_lshl_b32 s52, s22, 3")
    A("s_add_u32 s52, s52, s21")
    A("s_lshl_b32 s52, s52, 1")
    A("s_add_u32 s52, s52, s3")
    A("s_sub_u32 s52, s52, 4")
    A("s_lshl_b32 s44, s52, 13")
    A("s_add_u32 s45, s44, 4096")
    A("s_movk_i32 s26, 2048")
    A("s_waitcnt lgkmcnt(0)")
    A("s_mov_b64 s[28:29], s[4:5]")
    A("s_mov_b64 s[24:25], s[6:7]")
    A("s_load_dword s40, s[18:19], 0        ; epoch")
    A(f"buffer_load_dwordx4 v[16:19], v14, s[24:27], 0 offen")
    A(f"buffer_load_dwordx4 v[20:23], v14, s[24:27], 0 offen offset:1024")
    for i in range(8):
        A(f"buffer_load_dwordx4 v[{XR+4*i}:{XR+4*i+3}], v14, s[28:31], {'s44' if i < 4 else 's45'} offen offset:{(i%4)*1024}{xpol}")
    A("s_barrier                            ; B0")
    A("s_branch L_route")
    LB("L_c")
    if cpf is not None:
        A("s_getpc_b64 s[46:47]")
        LB("L_pc")
        A(f"s_cmp_lg_u32 s3, {cpf}")
        A("s_cbranch_scc1 L_nopf")
        A("v_lshlrev_b32 v2, 7, v0")
        A("v_min_u32 v2, L_last - L_pc - 256, v2")
        A("global_load_dword v159, v2, s[46:47] offset:256")
        LB("L_nopf")
    A("s_mov_b32 s26, 7340032")
    A("v_lshrrev_b32 v1, 4, v0              ; g")
    A("v_and_b32 v2, 15, v0                 ; n")
    A("v_mul_u32_u24 v3, %d, v1" % (8*7168))
    A("v_lshl_add_u32 v3, v2, 3, v3         ; voffset")
    A("s_lshr_b32 s44, s21, 1")
    A("s_lshl_b32 s44, s44, 2")
    A("s_add_u32 s44, s44, s3")
    A("s_lshr_b32 s45, %d, s57" % (128*7168))
    A("s_mul_i32 s44, s44, s45")
    A("s_lshl_b32 s45, s20, 7")
    A("s_add_u32 s44, s44, s45              ; soffset")
    A("s_bitcmp1_b32 s21, 0")
    A("s_waitcnt lgkmcnt(0)")
    A("s_cselect_b64 s[24:25], s[10:11], s[8:9]")
    A("s_cmp_eq_u32 s58, 0")
    A("s_cbranch_scc1 L_nb0")
    A("s_barrier")
    LB("L_nb0")
    if not cst1: stamp(1)
    for n in range(D):
        w1load(n)
        if n == D0 - 1:
            A("s_cmp_eq_u32 s58, 0")
            A("s_cbranch_scc1 L_nb0b")
            A("s_barrier")
            LB("L_nb0b")
    A("s_load_dword s40, s[18:19], 0        ; epoch")
    if stamps:
        for i in range(2, 8): A(f"s_mov_b32 s{60+2*i}, 0")
        A("s_mov_b32 s59, 0")
    A("s_mov_b64 s[32:33], s[18:19]")
    A("s_mov_b32 s34, %d" % WS_REC)
    A("s_mov_b32 s35, 0x20000")
    A("s_mov_b32 s42, 0x05040100")
    A("s_mov_b32 s43, 0x07060302")
    A("v_and_b32 v8, 7, v0")
    A("v_lshl_add_u32 v13, v1, 3, v8")
    A("v_lshlrev_b32 v13, 4, v13")
    A("s_lshl_b32 s45, s3, 11")
    A("v_add_u32 v4, s45, v13")
    A("s_lshr_b32 s45, s45, s57")
    A("v_add_u32 v5, s45, v13")
    A("v_lshlrev_b32 v6, 3, v0")
    A("s_lshl_b32 s45, s3, 9")
    A("v_add_u32 v6, s45, v6                ; w*512 + lane*8")
    A("v_lshrrev_b32 v7, 1, v0")
    A("v_lshlrev_b32 v7, 4, v7")
    A("v_and_b32 v9, 1, v0")
    A("v_lshl_add_u32 v7, v9, 2, v7")
    A("s_lshr_b32 s45, s3, 1")
    A("s_lshl_b32 s45, s45, 9")
    A("s_and_b32 s46, s3, 1")
    A("s_lshl_b32 s46, s46, 3")
    A("s_add_u32 s45, s45, s46")
    A("v_add_u32 v7, s45, v7")
    A("s_mov_b64 s[28:29], s[12:13]")
    A("s_mov_b32 s30, 7340032")
    A("s_mov_b32 s31, 0x20000")
    A("v_lshlrev_b32 v10, 15, v1            ; g*16*2048")
    A("v_lshl_add_u32 v10, v2, 3, v10")
    A("v_lshrrev_b32 v11, 3, v2")
    A("v_lshl_add_u32 v11, v1, 7, v11       ; 4g*32 + (n>>3)")
    A("v_mul_u32_u24 v11, 7168, v11")
    A("v_lshl_add_u32 v11, v8, 4, v11       ; + (n&7)*16")
    A("s_lshl_b32 s53, s21, 2")
    A("s_lshr_b32 s53, s53, s57")
    A("s_add_u32 s53, s53, s3")
    A("s_lshr_b32 s45, s3, 1")
    A("s_and_b32 s45, s45, s57")
    A("s_lshl_b32 s45, s45, 30")
    A("v_or_b32 v10, s45, v10")
    A("v_or_b32 v11, s45, v11")
    A("s_mul_i32 s52, s53, %d" % (2*7168))
    A("s_lshl_b32 s46, s20, 7")
    A("s_add_u32 s52, s52, s46")
    A("s_add_u32 s52, s52, %d" % O_EX2)
    A("s_lshl_b32 s53, s53, 7")
    A("s_lshl_b32 s46, s20, 17              ; ct*64*2048")
    A("s_add_u32 s53, s53, s46")
    A("s_lshl_b32 s45, s20, 14")
    A("s_lshl_b32 s46, s21, 11")
    A("s_add_u32 s45, s45, %d               ; group base" % O_EX1F)
    A("s_add_u32 s46, s46, s45")
    A("s_mov_b32 s48, 0xffffff00")
    A("s_mov_b32 s51, 0xbfb8aa3b            ; -log2(e)")
    A("s_mov_b32 s49, 0")
    A("s_getreg_b32 s54, hwreg(HW_REG_XCC_ID, 0, 3)")
    A("v_mov_b32 v12, 1")
    for n in range(D, 16):
        A(f"s_waitcnt vmcnt({D-1})")
        if n == D and cst1: stamp(1)
        w1load(n)
    A("s_cmp_eq_u32 s57, 1")
    A("s_cbranch_scc1 L_cb")

    slow = []
    def cpath(NS, sfx, K, WA):
        NL = 8*NS
        WB = 16 - WA - WM1 - WM2
        assert WB >= 0
        done = 0
        if NS == 2: stamp(2)
        for n in range(16, NL + WA):
            A(f"s_waitcnt vmcnt({D-1})")
            if n < NL: w1load(n)
            else: w2load(n - NL)
            if n == K:
                A(f"ds_write_b32 v12, v12 offset:{L_FLAG - 1}")
            if n == NL - 1: stamp(2)
            complete = n - D + 1
            while done < NS and 8*done + 8 <= complete:
                perms(raw, frag, done); done += 1
        A("s_waitcnt lgkmcnt(0)")
        A("s_add_u32 s40, s40, 1                ; tag32")
        A("s_and_b32 s41, s40, 0xff")
        A("s_lshl_b32 s55, s40, 3")
        A("s_and_b32 s55, s55, 0xf8")
        A("s_or_b32 s54, s54, s55")
        A("v_mov_b32 v9, s41")
        A("v_mov_b32 v12, s54")
        while done < NS:
            A(f"s_waitcnt vmcnt({NL + WA - 8*done - 8})")
            perms(raw, frag, done); done += 1
        A("s_barrier                            ; B2")
        stamp(3)
        for s in range(NS):
            A(f"ds_read_b128 v[{XB+4*s}:{XB+4*s+3}], v5 offset:{L_XS + 512*s}")
        for n in range(WA, WA + WM1): w2load(n)
        for s in range(NS):
            A(f"s_waitcnt lgkmcnt({NS-1-s})")
            for j in range(4):
                c = "0" if s == 0 else f"v[{ACC+4*j}:{ACC+4*j+3}]"
                A(f"v_mfma_f32_16x16x32_bf16 v[{ACC+4*j}:{ACC+4*j+3}], v[{frag(s,j)}:{frag(s,j)+3}], v[{XB+4*s}:{XB+4*s+3}], {c}")
        A("s_mov_b32 exec_lo, 0x00ff00ff")
        A("s_mov_b32 exec_hi, 0x00ff00ff")
        A("s_nop 2")
        for j in range(4):
            A(f"ds_write_b128 v4, v[{ACC+4*j}:{ACC+4*j+3}] offset:{L_RED + 512*j}")
        A("s_mov_b64 exec, -1")
        for n in range(WA + WM1, WA + WM1 + WM2): w2load(n)
        A("s_waitcnt lgkmcnt(0)")
        A("s_barrier                            ; B3")
        for w in range(4):
            A(f"ds_read_b64 v[{16+2*w}:{17+2*w}], v6 offset:{L_RED + 2048*w}")
        A("s_waitcnt lgkmcnt(2)")
        A("v_pk_add_f32 v[16:17], v[16:17], v[18:19]")
        A("s_waitcnt lgkmcnt(0)")
        A("v_pk_add_f32 v[20:21], v[20:21], v[22:23]")
        A("v_pk_add_f32 v[16:17], v[16:17], v[20:21]")
        A("v_and_or_b32 v16, v16, s48, v12")
        A("v_and_or_b32 v17, v17, s48, v12")
        A("buffer_store_dwordx2 v[16:17], v6, s[32:35], s46 offen")
        stamp(4)
        for n in range(16 - WB, 16): w2load(n)
        pk = WB if PK is None else PK
        after7 = 8 + (1 if 16 - WB >= 8 else 0)
        A(f"s_waitcnt vmcnt({min(max(pk, 0), after7) if pk > after7 else after7})")
        perms(raw2, frag2, 0)
        if pk < after7: A(f"s_waitcnt vmcnt({pk})")
        NB = 4 if NS == 4 else 8
        LB("L_x1poll" + sfx)
        for b in range(NB):
            if b and b % 2 == 0: A(f"s_add_u32 s47, s45, {b*2048}")
            A(f"buffer_load_dwordx2 v[{24+2*b}:{25+2*b}], v6, s[32:35], {'s45' if b < 2 else 's47'} offen offset:{(b%2)*2048} sc1")
        A("s_add_u32 s49, s49, 1")
        A("s_waitcnt vmcnt(0)")
        for r in range(24, 24+2*NB): A(f"v_xor_b32 v{r}, s54, v{r}")
        A("v_or3_b32 v8, v24, v25, v26")
        for r in range(27, 24+2*NB-1, 2): A(f"v_or3_b32 v8, v8, v{r}, v{r+1}")
        A(f"v_or_b32 v8, v8, v{24+2*NB-1}")
        A("v_and_b32 v8, 0xff, v8")
        A("v_cmp_ne_u32 vcc, 0, v8")
        A("s_cbranch_vccnz L_x1no" + sfx)
        LB("L_x1ok" + sfx)
        stamp(5)
        if NB == 8:
            A("v_pk_add_f32 v[24:25], v[24:25], v[32:33]")
            A("v_pk_add_f32 v[26:27], v[26:27], v[34:35]")
            A("v_pk_add_f32 v[28:29], v[28:29], v[36:37]")
            A("v_pk_add_f32 v[30:31], v[30:31], v[38:39]")
        S = []
        def B(s): S.append("  " + s)
        S.append("L_x1no" + sfx + ":")
        B(f"s_cmp_lt_u32 s49, {NF}")
        B("s_cbranch_scc1 L_x1poll" + sfx)
        B("v_lshlrev_b32 v8, 1, v6")
        B("s_lshl_b32 s50, s20, 15")
        B("s_add_u32 s50, s50, %d" % O_EX1)
        B(f"s_cmp_lg_u32 s49, {NF}")
        B("s_cbranch_scc1 L_x1ns" + sfx)
        B("v_and_b32 v96, s48, v16")
        B("v_and_b32 v97, s48, v17")
        B("v_mov_b32 v98, s40")
        B("v_mov_b32 v99, s40")
        B("s_lshl_b32 s47, s21, 12")
        B("s_add_u32 s47, s47, s50")
        B("buffer_store_dwordx4 v[96:99], v8, s[32:35], s47 offen sc1")
        B("s_waitcnt vmcnt(0)")
        S.append("L_x1ns" + sfx + ":")
        for b in range(NB):
            B(f"buffer_load_dwordx4 v[{96+4*b}:{99+4*b}], v8, s[32:35], s50 offen sc1")
            B("s_add_u32 s50, s50, 4096")
        B("s_waitcnt vmcnt(0)")
        B("v_mov_b32 v8, 0")
        for b in range(NB):
            B(f"v_xor_b32 v{98+4*b}, s40, v{98+4*b}")
            B(f"v_xor_b32 v{99+4*b}, s40, v{99+4*b}")
            B(f"v_or3_b32 v8, v8, v{98+4*b}, v{99+4*b}")
            B(f"v_mov_b32 v{24+2*b}, v{96+4*b}")
            B(f"v_mov_b32 v{25+2*b}, v{97+4*b}")
        B("v_cmp_ne_u32 vcc, 0, v8")
        B("s_cbranch_vccz L_x1ok" + sfx)
        B("s_cmp_lt_u32 s49, %d" % SPIN)
        B("s_cbranch_scc1 L_x1poll" + sfx)
        if sfx == "b": S.append("L_last:")
        B("s_branch L_x1ok" + sfx)
        slow.extend(S)
    cpath(4, "a", KT, WA)
    LB("L_h")
    A("v_pk_add_f32 v[24:25], v[24:25], v[28:29]   ; gate")
    A("v_pk_add_f32 v[26:27], v[26:27], v[30:31]   ; up")
    A("v_cvt_pk_bf16_f32 v8, v24, v25")
    A("v_cvt_pk_bf16_f32 v12, v26, v27")
    A("v_lshlrev_b32 v18, 16, v8")
    A("v_and_b32 v19, 0xffff0000, v8")
    A("v_mul_f32 v20, s51, v18")
    A("v_mul_f32 v21, s51, v19")
    A("v_exp_f32 v20, v20")
    A("v_exp_f32 v21, v21")
    A("v_lshlrev_b32 v14, 16, v12")
    A("v_add_f32 v20, 1.0, v20")
    A("v_add_f32 v21, 1.0, v21")
    A("v_rcp_f32 v20, v20")
    A("v_rcp_f32 v21, v21")
    A("v_and_b32 v15, 0xffff0000, v12")
    A("v_mul_f32 v18, v18, v20")
    A("v_mul_f32 v19, v19, v21")
    A("v_cvt_pk_bf16_f32 v8, v18, v19        ; silu")
    A("v_lshlrev_b32 v18, 16, v8")
    A("v_and_b32 v19, 0xffff0000, v8")
    A("v_mul_f32 v18, v18, v14")
    A("v_mul_f32 v19, v19, v15")
    A("v_cvt_pk_bf16_f32 v8, v18, v19        ; h")
    A(f"ds_write_b32 v7, v8 offset:{L_HB}")
    perms(raw2, frag2, 1)
    A("s_waitcnt lgkmcnt(0)")
    A("s_barrier                            ; B4")
    for s in range(2):
        A(f"ds_read_b128 v[{HA+4*s}:{HA+4*s+3}], v13 offset:{L_HB + 512*s}")
    for s in range(2):
        A(f"s_waitcnt lgkmcnt({1-s})")
        for j in range(4):
            c = "0" if s == 0 else f"v[{ACC+4*j}:{ACC+4*j+3}]"
            A(f"v_mfma_f32_16x16x32_bf16 v[{ACC+4*j}:{ACC+4*j+3}], v[{HA+4*s}:{HA+4*s+3}], v[{frag2(s,j)}:{frag2(s,j)+3}], {c}")
    A("s_mov_b32 exec_lo, -1")
    A("s_mov_b32 exec_hi, 0")
    A("s_nop 5")
    for r in range(4):
        for j in range(4):
            A(f"v_and_or_b32 v{20+4*r+j}, v{ACC+4*j+r}, s48, v9")
        A(f"buffer_store_dwordx4 v[{20+4*r}:{23+4*r}], v11, s[32:35], s52 offen sc1")
        if r < 3: A("s_add_u32 s52, s52, %d" % (32*7168))
    stamp(6)
    A("s_waitcnt vmcnt(0)")
    A("s_barrier                            ; B5")
    stamp(7)
    if stamps: A("s_branch L_fin")
    else: A("s_endpgm")
    LB("L_cb")
    cpath(2, "b", KT3, WA3 if WA3 is not None else WA)
    A("s_branch L_h")

    def rsetup():
        A("s_mov_b64 s[32:33], s[18:19]")
        A("s_mov_b32 s34, %d" % WS_REC)
        A("s_mov_b32 s35, 0x20000")
        A("s_mov_b64 s[36:37], s[14:15]")
        A("s_mov_b32 s38, 524288")
        A("s_mov_b32 s39, 0x20000")
        A("v_and_b32 v4, 7, v0")
        if stamps:
            for i in range(2, 8): A(f"s_mov_b32 s{60+2*i}, 0")
            A("s_mov_b32 s59, 0")
            A("s_mov_b32 s49, 0")
    def idload():
        A("s_lshl_b32 s53, s50, 11")
        A(f"buffer_load_dwordx4 v[{IDR}:{IDR+3}], v14, s[28:31], s53 offen{xpol}")
        A(f"buffer_load_dwordx4 v[{IDR+4}:{IDR+7}], v14, s[28:31], s53 offen offset:1024{xpol}")
    def pretouch():
        A("s_lshl_b32 s45, s20, 14")
        A("s_lshl_b32 s46, s21, 11")
        A("s_add_u32 s46, s46, s45")
        A("s_add_u32 s48, s46, %d               ; own L2-local block" % O_EX1F)
        A("buffer_load_dwordx4 v[24:27], v14, s[32:35], s48 offen")
        A("buffer_load_dwordx4 v[28:31], v14, s[32:35], s48 offen offset:1024")
        if tt: A("v_mov_b32 v32, 0")
        if "o" in tt: A("buffer_load_dword v33, v32, s[36:39], s53 offen")
        if "e" in tt:
            A("s_mov_b32 s45, 0x2f0000")
            A("buffer_load_dword v35, v32, s[32:35], s45 offen")
        if "d" in tt:
            A("s_lshl_b32 s45, s20, 17")
            A("v_mov_b32 v36, s45")
            A("global_load_dword v37, v36, s[12:13]")
    LB("L_r")
    A("s_cmp_eq_u32 s3, 4")
    A("s_cbranch_scc0 L_end")
    A("v_mov_b32 v8, 0")
    A(f"ds_write_b32 v8, v8 offset:{L_FLAG}")
    A("s_mov_b32 s50, s2                    ; slice")
    A("s_waitcnt lgkmcnt(0)")
    A("s_load_dword s40, s[18:19], 0        ; epoch")
    A("s_mov_b64 s[28:29], s[4:5]")
    rsetup()
    idload()
    pretouch()
    stamp(1)
    A("s_mov_b32 s49, 0")
    LB("L_fwait")
    if fsleep: A(f"s_sleep {fsleep}")
    A(f"ds_read_b32 v9, v8 offset:{L_FLAG}")
    A("s_add_u32 s49, s49, 1")
    A("s_cmp_ge_u32 s49, %d" % SPIN)
    A("s_waitcnt lgkmcnt(0)")
    A("v_cmp_eq_u32 vcc, 0, v9")
    A("s_cbranch_scc1 L_fok")
    A("s_cbranch_vccnz L_fwait")
    LB("L_fok")
    A("s_add_u32 s40, s40, 1")
    stamp(2)
    A("s_branch L_ip0")
    LB("L_route")
    stamp(1)
    rsetup()
    A("s_and_b32 s45, s52, 7")
    A("s_lshl_b32 s46, s45, 3")
    A("s_lshr_b32 s52, s52, 3               ; batch")
    A("s_add_u32 s46, s46, s52")
    A("s_mul_i32 s46, s46, %d" % LS)
    A("s_add_u32 s46, s46, %d               ; slot" % O_IDX)
    A("s_lshl_b32 s45, s45, 2")
    A("v_mul_u32_u24 v5, %d, v0             ; replica offset" % REPS)
    A("v_lshrrev_b32 v10, 5, v0")
    A("v_bfe_u32 v11, v0, 4, 1")
    A("v_lshl_add_u32 v10, v11, 1, v10")
    A("v_add_u32 v10, s45, v10")
    A("v_xor_b32 v10, 31, v10")
    for t in range(4):
        for hlf in range(2):
            A(f"s_waitcnt vmcnt({7 - 2*t - hlf})")
            for k in range(4):
                c = "0" if (hlf == 0 and k == 0) else f"v{6+t}"
                A(f"v_dot2_f32_bf16 v{6+t}, v{XR+8*t+4*hlf+k}, v{16+4*hlf+k}, {c}")
    A("s_waitcnt lgkmcnt(0)")
    A("s_add_u32 s40, s40, 1")
    A("s_nop 0")
    A("v_permlane32_swap_b32 v6, v7")
    A("v_permlane32_swap_b32 v8, v9")
    A("v_add_f32 v6, v6, v7")
    A("v_add_f32 v8, v8, v9")
    A("s_nop 1")
    A("v_permlane16_swap_b32 v6, v8")
    A("v_add_f32 v6, v6, v8")
    A("s_nop 1")
    A("v_add_f32_dpp v6, v6, v6 quad_perm:[1,0,3,2] row_mask:0xf bank_mask:0xf")
    A("s_nop 1")
    A("v_add_f32_dpp v6, v6, v6 quad_perm:[2,3,0,1] row_mask:0xf bank_mask:0xf")
    A("s_nop 1")
    A("v_add_f32_dpp v6, v6, v6 row_half_mirror row_mask:0xf bank_mask:0xf")
    A("s_nop 1")
    A("v_add_f32_dpp v6, v6, v6 row_mirror row_mask:0xf bank_mask:0xf")
    A("v_cvt_pk_bf16_f32 v7, v6, v6")
    A("v_and_b32 v7, 0xffff0000, v7          ; r (bf16)")
    A("v_ashrrev_i32 v6, 31, v7")
    A("v_or_b32 v6, 0x80000000, v6")
    A("v_xor_b32 v6, v6, v7")
    A("v_cmp_o_f32 vcc, v7, v7")
    A("v_and_b32 v6, 0xffff0000, v6")
    A("s_nop 0")
    A("v_cndmask_b32 v6, 0, v6, vcc")
    A("v_or_b32 v6, v10, v6")
    A("v_mov_b32 v7, v6")
    A("s_nop 1")
    A("v_permlane16_swap_b32 v6, v7")
    A("v_max_u32 v6, v6, v7")
    A("v_mov_b32 v7, v6")
    A("s_nop 1")
    A("v_permlane32_swap_b32 v6, v7")
    A("v_max_u32 v6, v6, v7")
    A("v_mov_b32 v7, s40")
    A("s_mov_b64 exec, 0xff")
    A("buffer_store_dwordx2 v[6:7], v5, s[32:35], s46 offen sc1")
    A("s_mov_b64 exec, -1")
    A("s_barrier                            ; B0b")
    stamp(2)
    A("s_setprio 0")
    A("s_cmp_eq_u32 s3, 4")
    A("s_cbranch_scc1 L_r4")
    A("s_and_b32 s45, s2, 0xe7")
    A("s_cmp_eq_u32 s45, 0xe0")
    A("s_cbranch_scc0 L_end")
    A("s_add_u32 s50, s2, 4                 ; slice")
    idload()
    A("s_branch L_b2")
    LB("L_r4")
    A("s_mov_b32 s50, s2                    ; slice")
    idload()
    pretouch()
    if rack: A(f"s_waitcnt vmcnt({4 + len(tt)})")
    LB("L_ip0")
    A("v_mul_u32_u24 v12, %d, v0            ; poll offset" % LS)
    A("s_mul_i32 s47, s22, %d" % REPS)
    A("s_add_u32 s47, s47, %d               ; this die's replica" % O_IDX)
    A("s_mov_b32 s49, 0")
    A("v_lshrrev_b32 v11, 3, v0")
    A("s_lshr_b32 s45, s21, 1")
    A("s_sub_u32 s46, 10, s57")
    A("s_lshl_b32 s45, s45, s46")
    LB("L_ipoll")
    A(f"buffer_load_dwordx2 v[8:9], v12, s[32:35], s47 offen sc1")
    A("s_add_u32 s49, s49, 1")
    A("s_cmp_ge_u32 s49, %d" % SPIN)
    A(f"s_waitcnt vmcnt(0)")
    A(f"v_cmp_ne_u32 vcc, s40, v9")
    A("s_cbranch_scc1 L_iok")
    A("s_cbranch_vccnz L_ipoll")
    LB("L_iok")
    stamp(3)
    if stamps: A("s_mov_b32 s59, s49")
    A("s_mov_b32 m0, %d" % L_XS)
    A("v_max_u32_dpp v8, v8, v8 row_ror:8 row_mask:0xf bank_mask:0xf")
    A("v_mov_b32 v9, v8")
    A("s_cmp_eq_u32 s57, 1")
    A("s_nop 0")
    A("v_permlane16_swap_b32 v8, v9")
    A("v_max_u32 v8, v8, v9")
    A("v_mov_b32 v9, v8")
    A("s_nop 1")
    A("v_permlane32_swap_b32 v8, v9")
    A("v_max_u32 v8, v8, v9")
    A("v_and_b32 v10, 31, v8")
    A("v_xor_b32 v10, 31, v10")
    A("v_lshl_add_u32 v10, v4, 5, v10       ; row")
    A("v_lshlrev_b32 v10, 11, v10")
    A("v_lshl_add_u32 v10, v11, 4, v10      ; + chunk*16")
    A("v_lshlrev_b32 v9, 2, v4")
    for i in range(8):
        if i == 4: A("s_cbranch_scc1 L_dmadone")
        A(f"buffer_load_dwordx4 v10, s[28:31], s45 offen{xpol} lds")
        if i < 7:
            A("s_mov_b32 m0, %d" % (L_XS + 1024*(i+1)))
            A("v_add_u32 v10, 128, v10")
    LB("L_dmadone")
    A(f"ds_write_b32 v9, v8 offset:{L_KEY}")
    LB("L_b2")
    A("s_lshr_b32 s51, s50, 5")
    A("s_lshl_b32 s45, s51, 2")
    A("v_mov_b32 v5, s45")
    A("s_waitcnt vmcnt(0) lgkmcnt(0)")
    A("s_barrier                            ; B2")
    stamp(4)
    A(f"ds_read_b32 v6, v5 offset:{L_KEY}")
    for r in range(IDR, IDR+8):
        A(f"v_lshlrev_b32 v16, 16, v{r}")
        A(f"v_and_b32 v17, 0xffff0000, v{r}")
        A("v_pk_fma_f32 v[16:17], v[16:17], 0, v[16:17] op_sel_hi:[1,0,1]")
        A(f"v_cvt_pk_bf16_f32 v{r}, v16, v17    ; x + x*0")
    A("s_and_b32 s41, s40, 0xff")
    A("v_lshrrev_b32 v7, 5, v0")
    A("v_bfe_u32 v8, v0, 4, 1")
    A("v_lshl_add_u32 v7, v8, 1, v7         ; e")
    A("v_lshl_add_u32 v7, v4, 2, v7         ; 4*pos + e")
    A("s_and_b32 s46, s50, 31")
    A("s_lshl_b32 s45, s46, 5")
    A("v_add_u32 v7, s45, v7                ; column")
    A("s_waitcnt lgkmcnt(0)")
    A("s_barrier                            ; B3")
    A("v_and_b32 v8, 31, v6")
    A("v_xor_b32 v8, 31, v8")
    A("v_cmp_ne_u32 vcc, s46, v8")
    A("s_lshl_b32 s45, s51, 5")
    A("v_add_u32 v8, s45, v8                ; row")
    A("v_lshlrev_b32 v8, 10, v8")
    A("v_add_u32 v7, v8, v7")
    A("v_lshlrev_b32 v7, 1, v7")
    A("buffer_load_ushort v9, v7, s[28:31], 0 offen")
    A("s_cbranch_vccz L_sel")
    A(f"buffer_store_dwordx4 v[{IDR}:{IDR+3}], v14, s[36:39], s53 offen{outpol}")
    A(f"buffer_store_dwordx4 v[{IDR+4}:{IDR+7}], v14, s[36:39], s53 offen offset:1024{outpol}")
    LB("L_sel")
    A("v_lshrrev_b32 v10, 16, v6")
    A("v_xor_b32 v11, 0xffff, v10")
    A("v_and_b32 v12, 0x7fff, v10")
    A("v_cmp_gt_i32 vcc, 0, v6")
    A("s_mov_b32 s45, 0xbfb8aa3b")
    A("s_nop 0")
    A("v_cndmask_b32 v10, v11, v12, vcc")
    A("v_lshlrev_b32 v10, 16, v10           ; r")
    A("v_mul_f32 v10, s45, v10")
    A("v_exp_f32 v10, v10")
    A("s_nop 0")
    A("v_add_f32 v10, 1.0, v10")
    A("v_rcp_f32 v10, v10")
    A("s_nop 0")
    A("v_cvt_pk_bf16_f32 v10, v10, v10")
    A("v_and_b32 v10, 0xffff0000, v10       ; sigmoid")
    A("s_mul_i32 s46, s50, 7168")
    A("s_add_u32 s46, s46, %d" % O_EX2)
    A("s_add_u32 s47, s46, 4096")
    A("s_mov_b32 s49, 0")
    A("s_mov_b32 s44, 0x00ff00ff")
    A("s_mov_b32 s45, 0x00ff00ff")
    A("s_waitcnt vmcnt(0)")
    A("v_lshlrev_b32 v9, 16, v9             ; x")
    A("s_barrier                            ; B4")
    A("s_barrier                            ; B5")
    stamp(5)
    LB("L_x2poll")
    for i in range(7):
        so = "s46" if i < 4 else "s47"
        A(f"buffer_load_dwordx4 v[{32+4*i}:{35+4*i}], v14, s[32:35], {so} offen offset:{(i%4)*1024} sc1")
    A("s_add_u32 s49, s49, 1")
    for i in range(7):
        A(f"s_waitcnt vmcnt({6-i})")
        b = 32 + 4*i
        for r in range(b, b+4): A(f"v_xor_b32 v{r}, s41, v{r}")
        if i == 0:
            A(f"v_or3_b32 v15, v{b}, v{b+1}, v{b+2}")
            A(f"v_or_b32 v15, v15, v{b+3}")
        else:
            A(f"v_or3_b32 v15, v15, v{b}, v{b+1}")
            A(f"v_or3_b32 v15, v15, v{b+2}, v{b+3}")
            src = 32 if i == 1 else 16
            A(f"v_pk_add_f32 v[16:17], v[{src}:{src+1}], v[{b}:{b+1}]")
            A(f"v_pk_add_f32 v[18:19], v[{src+2}:{src+3}], v[{b+2}:{b+3}]")
    A("v_and_b32 v15, 0xff, v15")
    A("v_cmp_ne_u32 vcc, 0, v15")
    A("s_cbranch_vccz L_x2ok")
    A("s_cmp_lt_u32 s49, %d" % SPIN)
    A("s_cbranch_scc1 L_x2poll")
    LB("L_x2ok")
    stamp(6)
    A("v_permlane32_swap_b32 v16, v17")
    A("v_permlane32_swap_b32 v18, v19")
    A("v_add_f32 v16, v16, v17")
    A("v_add_f32 v18, v18, v19")
    A("s_nop 1")
    A("v_permlane16_swap_b32 v16, v18")
    A("v_add_f32 v16, v16, v18")
    A("s_nop 1")
    A("v_add_f32_dpp v16, v16, v16 row_ror:8 row_mask:0xf bank_mask:0xf")
    A("s_mov_b64 exec, s[44:45]")
    A("v_cvt_pk_bf16_f32 v16, v16, v16")
    A("v_and_b32 v16, 0xffff0000, v16       ; y")
    A("v_mul_f32 v16, v16, v10")
    A("v_cvt_pk_bf16_f32 v16, v16, v16")
    A("v_and_b32 v16, 0xffff0000, v16       ; y*sigmoid")
    A("v_fma_f32 v16, v9, 0, v16            ; upd = x*0 + y")
    A("v_add_f32 v16, v9, v16")
    A("v_cvt_pk_bf16_f32 v16, v16, v16")
    A(f"buffer_store_short v16, v7, s[36:39], 0 offen{outpol}")
    A("s_cmp_lg_u32 s50, 0")
    A("s_cbranch_scc1 L_noep")
    A("v_mov_b32 v18, s40")
    A("v_mov_b32 v17, 0")
    A("s_mov_b64 exec, 1")
    A("buffer_store_dword v18, v17, s[32:35], 0 offen sc1")
    LB("L_noep")
    stamp(7)
    LB("L_fin")
    import diag
    if dg: diag.epilogue(A, LB, dg)
    elif gamp: diag.gamp(A, LB, gamp)
    elif stamps: diag.dump(A, LB)
    LB("L_end")
    A("s_endpgm")
    L.extend(slow)
    body = "\n".join(L)
    return f"""{HEAD}; @launch grid=(256,1,1) block=(384,1,1) lds={LDS_BYTES}
.amdgcn_target "amdgcn-amd-amdhsa--gfx950"
.text
.globl {KN}
.p2align 8
.type {KN},@function
{KN}:
{body}
.section .rodata,"a"
.p2align 6
.amdhsa_kernel {KN}
  .amdhsa_next_free_vgpr 160
  .amdhsa_next_free_sgpr 96
  .amdhsa_accum_offset 160
  .amdhsa_group_segment_fixed_size 0
  .amdhsa_kernarg_size 64
  .amdhsa_user_sgpr_count 2
  .amdhsa_user_sgpr_kernarg_segment_ptr 1
  .amdhsa_system_sgpr_workgroup_id_x 1
  .amdhsa_float_denorm_mode_32 3
.end_amdhsa_kernel
"""
if __name__ == "__main__":
    import sys, json
    kw = json.loads(sys.argv[2]) if len(sys.argv) > 2 else {}
    open(sys.argv[1] if len(sys.argv) > 1 else "standalone__moe_arch_mod__sampling.s", "w").write(gen(**kw))
```

```python
KN = "standalone__moe_arch_mod__sampling_kernel"
HEAD = open("standalone__moe_arch_mod__sampling.s.ref").read().split("; Override launch")[0]

O_IDX = 0x1000
O_EX1F = 0x20000
O_EX2 = 0x100000
O_EX1 = 0x300000
WS_REC = 0x500000
L_XS = 0
L_RED = 8192
L_HB = 16384
L_KEY = 17408
L_FLAG = 17408 + 32
LDS_BYTES = 17408 + 64
SPIN = 40000
NRX = 4

def gen(pol="nt", xpol="", D=10, LS=16, NF=12, stamps=False, outpol="", D0=3, WA=10, WM1=2, WM2=1, PK=None,
        KT=21, KT3=17, dg=None, gamp=None, cpf=3, tt="o", fsleep=1, cst1=False, WA3=None, rack=True, RD=(2,3,5,7), KB=None, KB3=None):
    if gamp or dg: stamps = True
    L = []
    def A(s): L.append("  " + s)
    def LB(s): L.append(s + ":")
    def stamp(i):
        if stamps: A(f"s_memrealtime s[{60+2*i}:{61+2*i}]")
    pol = (" " + pol) if pol else ""
    xpol = (" " + xpol) if xpol else ""
    outpol = (" " + outpol) if outpol else ""
    REPS = 64 * LS
    XR = 80
    RAW = 16; FR = 80; XB = 96; ACC = 112; W2 = 128
    F2 = 40; HA = 72
    IDR = 40
    def raw(s, i): return RAW + 16*s + 2*i
    def frag(s, j): return (FR if s == 0 else RAW + 16*(s-1)) + 4*j
    def raw2(s, i): return W2 + 16*s + 2*i
    def frag2(s, j): return F2 + 16*s + 4*j
    def perms(rawf, fragf, s):
        for e in range(2):
            for p in range(4):
                A(f"v_perm_b32 v{fragf(s,2*e)+p}, v{rawf(s,2*p+1)+e}, v{rawf(s,2*p)+e}, s42")
            for p in range(4):
                A(f"v_perm_b32 v{fragf(s,2*e+1)+p}, v{rawf(s,2*p+1)+e}, v{rawf(s,2*p)+e}, s43")
    def w1load(n):
        s, i = divmod(n, 8)
        A(f"buffer_load_dwordx2 v[{raw(s,i)}:{raw(s,i)+1}], v3, s[24:27], s44 offen{pol}")
        A("s_addk_i32 s44, 7168" if i < 7 else "s_add_u32 s44, s44, %d" % (25*7168))
    def w2load(n):
        s, i = divmod(n, 8)
        p, b = divmod(i, 2)
        row = 2*s + (p >> 1) + 8*(p & 1) + 4*b
        A("s_add_u32 s47, s53, %d" % (row*2048))
        A(f"buffer_load_dwordx2 v[{raw2(s,i)}:{raw2(s,i)+1}], v10, s[28:31], s47 offen{pol}")

    stamp(0)
    A("s_cmp_ge_u32 s2, 256")
    A("s_cbranch_scc1 L_exit")
    A("s_load_dwordx16 s[4:19], s[0:1], 0")
    A("v_lshrrev_b32 v1, 6, v0")
    A("v_and_b32 v0, 63, v0                 ; lane")
    A("v_readfirstlane_b32 s3, v1           ; wave")
    A("s_and_b32 s22, s2, 7")
    A("s_lshr_b32 s23, s2, 3")
    A("s_add_u32 s56, s22, 3")
    A("s_and_b32 s56, s56, 7")
    A("s_lshr_b32 s20, s23, 2")
    A("s_and_b32 s21, s23, 3")
    A("s_cmp_eq_u32 s20, 7")
    A("s_cselect_b32 s20, s56, s20")
    A("s_cselect_b32 s44, 4, 0")
    A("s_add_u32 s21, s21, s44              ; q")
    A("s_cmp_lg_u32 s20, 7")
    A("s_cbranch_scc1 L_hastile")
    LB("L_exit")
    A("s_endpgm")
    LB("L_hastile")
    A("s_cmp_eq_u32 s20, s56")
    A("s_cselect_b32 s57, 1, 0")
    A("s_bitcmp1_b32 %d, s22" % sum(1 << d for d in RD))
    A("s_cselect_b32 s58, s57, 0")
    A("s_mul_i32 s44, s22, 7")
    A("s_add_u32 s20, s20, s44")
    A("s_mov_b32 s27, 0x20000")
    A("s_cmp_lt_u32 s3, 4")
    A("s_cbranch_scc1 L_c")
    A("s_mov_b32 s30, 524288")
    A("s_mov_b32 s31, 0x20000")
    A("v_lshlrev_b32 v14, 4, v0             ; lane*16")
    A("s_cmp_eq_u32 s58, 0")
    A("s_cbranch_scc1 L_r")
    A("s_setprio 3")
    A("s_lshl_b32 s52, s22, 2")
    A("s_lshr_b32 s52, 0x%x, s52" % sum(i << (4*d) for i, d in enumerate(RD)))
    A("s_and_b32 s52, s52, 3")
    A("s_lshl_b32 s52, s52, 3")
    A("s_add_u32 s52, s52, s21")
    A("s_lshl_b32 s52, s52, 1")
    A("s_add_u32 s52, s52, s3")
    A("s_sub_u32 s52, s52, 4")
    A("s_lshl_b32 s44, s52, 13")
    A("s_add_u32 s45, s44, 4096")
    A("s_movk_i32 s26, 2048")
    A("s_waitcnt lgkmcnt(0)")
    A("s_mov_b64 s[28:29], s[4:5]")
    A("s_mov_b64 s[24:25], s[6:7]")
    A("s_load_dword s40, s[18:19], 0        ; epoch")
    A(f"buffer_load_dwordx4 v[16:19], v14, s[24:27], 0 offen")
    A(f"buffer_load_dwordx4 v[20:23], v14, s[24:27], 0 offen offset:1024")
    for i in range(8):
        A(f"buffer_load_dwordx4 v[{XR+4*i}:{XR+4*i+3}], v14, s[28:31], {'s44' if i < 4 else 's45'} offen offset:{(i%4)*1024}{xpol}")
    A("s_barrier                            ; B0")
    A("s_branch L_route")
    LB("L_c")
    if cpf is not None:
        A("s_getpc_b64 s[46:47]")
        LB("L_pc")
        A(f"s_cmp_lg_u32 s3, {cpf}")
        A("s_cbranch_scc1 L_nopf")
        A("v_lshlrev_b32 v2, 7, v0")
        A("v_min_u32 v2, L_last - L_pc - 256, v2")
        A("global_load_dword v159, v2, s[46:47] offset:256")
        LB("L_nopf")
    A("s_mov_b32 s26, 7340032")
    A("v_lshrrev_b32 v1, 4, v0              ; g")
    A("v_and_b32 v2, 15, v0                 ; n")
    A("v_mul_u32_u24 v3, %d, v1" % (8*7168))
    A("v_lshl_add_u32 v3, v2, 3, v3         ; voffset")
    A("s_lshr_b32 s44, s21, 1")
    A("s_lshl_b32 s44, s44, 2")
    A("s_add_u32 s44, s44, s3")
    A("s_lshr_b32 s45, %d, s57" % (128*7168))
    A("s_mul_i32 s44, s44, s45")
    A("s_lshl_b32 s45, s20, 7")
    A("s_add_u32 s44, s44, s45              ; soffset")
    A("s_bitcmp1_b32 s21, 0")
    A("s_waitcnt lgkmcnt(0)")
    A("s_cselect_b64 s[24:25], s[10:11], s[8:9]")
    A("s_cmp_eq_u32 s58, 0")
    A("s_cbranch_scc1 L_nb0")
    A("s_barrier")
    LB("L_nb0")
    if not cst1: stamp(1)
    for n in range(D):
        w1load(n)
        if n == D0 - 1:
            A("s_cmp_eq_u32 s58, 0")
            A("s_cbranch_scc1 L_nb0b")
            A("s_barrier")
            LB("L_nb0b")
    A("s_load_dword s40, s[18:19], 0        ; epoch")
    if stamps:
        for i in range(2, 8): A(f"s_mov_b32 s{60+2*i}, 0")
        A("s_mov_b32 s59, 0")
    A("s_mov_b64 s[32:33], s[18:19]")
    A("s_mov_b32 s34, %d" % WS_REC)
    A("s_mov_b32 s35, 0x20000")
    A("s_mov_b32 s42, 0x05040100")
    A("s_mov_b32 s43, 0x07060302")
    A("v_and_b32 v8, 7, v0")
    A("v_lshl_add_u32 v13, v1, 3, v8")
    A("v_lshlrev_b32 v13, 4, v13")
    A("s_lshl_b32 s45, s3, 11")
    A("v_add_u32 v4, s45, v13")
    A("s_lshr_b32 s45, s45, s57")
    A("v_add_u32 v5, s45, v13")
    A("v_lshlrev_b32 v6, 3, v0")
    A("s_lshl_b32 s45, s3, 9")
    A("v_add_u32 v6, s45, v6                ; w*512 + lane*8")
    A("v_lshrrev_b32 v7, 1, v0")
    A("v_lshlrev_b32 v7, 4, v7")
    A("v_and_b32 v9, 1, v0")
    A("v_lshl_add_u32 v7, v9, 2, v7")
    A("s_lshr_b32 s45, s3, 1")
    A("s_lshl_b32 s45, s45, 9")
    A("s_and_b32 s46, s3, 1")
    A("s_lshl_b32 s46, s46, 3")
    A("s_add_u32 s45, s45, s46")
    A("v_add_u32 v7, s45, v7")
    A("s_mov_b64 s[28:29], s[12:13]")
    A("s_mov_b32 s30, 7340032")
    A("s_mov_b32 s31, 0x20000")
    A("v_lshlrev_b32 v10, 15, v1            ; g*16*2048")
    A("v_lshl_add_u32 v10, v2, 3, v10")
    A("v_lshrrev_b32 v11, 3, v2")
    A("v_lshl_add_u32 v11, v1, 7, v11       ; 4g*32 + (n>>3)")
    A("v_mul_u32_u24 v11, 7168, v11")
    A("v_lshl_add_u32 v11, v8, 4, v11       ; + (n&7)*16")
    A("s_lshl_b32 s53, s21, 2")
    A("s_lshr_b32 s53, s53, s57")
    A("s_add_u32 s53, s53, s3")
    A("s_lshr_b32 s45, s3, 1")
    A("s_and_b32 s45, s45, s57")
    A("s_lshl_b32 s45, s45, 30")
    A("v_or_b32 v10, s45, v10")
    A("v_or_b32 v11, s45, v11")
    A("s_mul_i32 s52, s53, %d" % (2*7168))
    A("s_lshl_b32 s46, s20, 7")
    A("s_add_u32 s52, s52, s46")
    A("s_add_u32 s52, s52, %d" % O_EX2)
    A("s_lshl_b32 s53, s53, 7")
    A("s_lshl_b32 s46, s20, 17              ; ct*64*2048")
    A("s_add_u32 s53, s53, s46")
    A("s_lshl_b32 s45, s20, 14")
    A("s_lshl_b32 s46, s21, 11")
    A("s_add_u32 s45, s45, %d               ; group base" % O_EX1F)
    A("s_add_u32 s46, s46, s45")
    A("s_mov_b32 s48, 0xffffff00")
    A("s_mov_b32 s51, 0xbfb8aa3b            ; -log2(e)")
    A("s_mov_b32 s49, 0")
    A("s_getreg_b32 s54, hwreg(HW_REG_XCC_ID, 0, 3)")
    A("v_mov_b32 v12, 1")
    for n in range(D, 16):
        A(f"s_waitcnt vmcnt({D-1})")
        if n == D and cst1: stamp(1)
        w1load(n)
    A("s_cmp_eq_u32 s57, 1")
    A("s_cbranch_scc1 L_cb")

    slow = []
    def cpath(NS, sfx, K, WA, K2):
        NL = 8*NS
        WB = 16 - WA - WM1 - WM2
        assert WB >= 0
        done = 0
        if NS == 2: stamp(2)
        for n in range(16, NL + WA):
            A(f"s_waitcnt vmcnt({D-1})")
            if n < NL: w1load(n)
            else: w2load(n - NL)
            if n == K:
                A(f"ds_write_b32 v12, v12 offset:{L_FLAG - 1}")
            if n == K2:
                A(f"ds_write_b32 v12, v12 offset:{L_FLAG + 3}")
            if n == NL - 1: stamp(2)
            complete = n - D + 1
            while done < NS and 8*done + 8 <= complete:
                perms(raw, frag, done); done += 1
        A("s_waitcnt lgkmcnt(0)")
        A("s_add_u32 s40, s40, 1                ; tag32")
        A("s_and_b32 s41, s40, 0xff")
        A("s_lshl_b32 s55, s40, 3")
        A("s_and_b32 s55, s55, 0xf8")
        A("s_or_b32 s54, s54, s55")
        A("v_mov_b32 v9, s41")
        A("v_mov_b32 v12, s54")
        while done < NS:
            A(f"s_waitcnt vmcnt({NL + WA - 8*done - 8})")
            perms(raw, frag, done); done += 1
        A("s_barrier                            ; B2")
        stamp(3)
        for s in range(NS):
            A(f"ds_read_b128 v[{XB+4*s}:{XB+4*s+3}], v5 offset:{L_XS + 512*s}")
        for n in range(WA, WA + WM1): w2load(n)
        for s in range(NS):
            A(f"s_waitcnt lgkmcnt({NS-1-s})")
            for j in range(4):
                c = "0" if s == 0 else f"v[{ACC+4*j}:{ACC+4*j+3}]"
                A(f"v_mfma_f32_16x16x32_bf16 v[{ACC+4*j}:{ACC+4*j+3}], v[{frag(s,j)}:{frag(s,j)+3}], v[{XB+4*s}:{XB+4*s+3}], {c}")
        A("s_mov_b32 exec_lo, 0x00ff00ff")
        A("s_mov_b32 exec_hi, 0x00ff00ff")
        A("s_nop 2")
        for j in range(4):
            A(f"ds_write_b128 v4, v[{ACC+4*j}:{ACC+4*j+3}] offset:{L_RED + 512*j}")
        A("s_mov_b64 exec, -1")
        for n in range(WA + WM1, WA + WM1 + WM2): w2load(n)
        A("s_waitcnt lgkmcnt(0)")
        A("s_barrier                            ; B3")
        for w in range(4):
            A(f"ds_read_b64 v[{16+2*w}:{17+2*w}], v6 offset:{L_RED + 2048*w}")
        A("s_waitcnt lgkmcnt(2)")
        A("v_pk_add_f32 v[16:17], v[16:17], v[18:19]")
        A("s_waitcnt lgkmcnt(0)")
        A("v_pk_add_f32 v[20:21], v[20:21], v[22:23]")
        A("v_pk_add_f32 v[16:17], v[16:17], v[20:21]")
        A("v_and_or_b32 v16, v16, s48, v12")
        A("v_and_or_b32 v17, v17, s48, v12")
        A("buffer_store_dwordx2 v[16:17], v6, s[32:35], s46 offen")
        stamp(4)
        for n in range(16 - WB, 16): w2load(n)
        pk = WB if PK is None else PK
        after7 = 8 + (1 if 16 - WB >= 8 else 0)
        A(f"s_waitcnt vmcnt({min(max(pk, 0), after7) if pk > after7 else after7})")
        perms(raw2, frag2, 0)
        if pk < after7: A(f"s_waitcnt vmcnt({pk})")
        NB = 4 if NS == 4 else 8
        LB("L_x1poll" + sfx)
        for b in range(NB):
            if b and b % 2 == 0: A(f"s_add_u32 s47, s45, {b*2048}")
            A(f"buffer_load_dwordx2 v[{24+2*b}:{25+2*b}], v6, s[32:35], {'s45' if b < 2 else 's47'} offen offset:{(b%2)*2048} sc1")
        A("s_add_u32 s49, s49, 1")
        A("s_waitcnt vmcnt(0)")
        for r in range(24, 24+2*NB): A(f"v_xor_b32 v{r}, s54, v{r}")
        A("v_or3_b32 v8, v24, v25, v26")
        for r in range(27, 24+2*NB-1, 2): A(f"v_or3_b32 v8, v8, v{r}, v{r+1}")
        A(f"v_or_b32 v8, v8, v{24+2*NB-1}")
        A("v_and_b32 v8, 0xff, v8")
        A("v_cmp_ne_u32 vcc, 0, v8")
        A("s_cbranch_vccnz L_x1no" + sfx)
        LB("L_x1ok" + sfx)
        stamp(5)
        if NB == 8:
            A("v_pk_add_f32 v[24:25], v[24:25], v[32:33]")
            A("v_pk_add_f32 v[26:27], v[26:27], v[34:35]")
            A("v_pk_add_f32 v[28:29], v[28:29], v[36:37]")
            A("v_pk_add_f32 v[30:31], v[30:31], v[38:39]")
        S = []
        def B(s): S.append("  " + s)
        S.append("L_x1no" + sfx + ":")
        B(f"s_cmp_lt_u32 s49, {NF}")
        B("s_cbranch_scc1 L_x1poll" + sfx)
        B("v_lshlrev_b32 v8, 1, v6")
        B("s_lshl_b32 s50, s20, 15")
        B("s_add_u32 s50, s50, %d" % O_EX1)
        B(f"s_cmp_lg_u32 s49, {NF}")
        B("s_cbranch_scc1 L_x1ns" + sfx)
        B("v_and_b32 v96, s48, v16")
        B("v_and_b32 v97, s48, v17")
        B("v_mov_b32 v98, s40")
        B("v_mov_b32 v99, s40")
        B("s_lshl_b32 s47, s21, 12")
        B("s_add_u32 s47, s47, s50")
        B("buffer_store_dwordx4 v[96:99], v8, s[32:35], s47 offen sc1")
        B("s_waitcnt vmcnt(0)")
        S.append("L_x1ns" + sfx + ":")
        for b in range(NB):
            B(f"buffer_load_dwordx4 v[{96+4*b}:{99+4*b}], v8, s[32:35], s50 offen sc1")
            B("s_add_u32 s50, s50, 4096")
        B("s_waitcnt vmcnt(0)")
        B("v_mov_b32 v8, 0")
        for b in range(NB):
            B(f"v_xor_b32 v{98+4*b}, s40, v{98+4*b}")
            B(f"v_xor_b32 v{99+4*b}, s40, v{99+4*b}")
            B(f"v_or3_b32 v8, v8, v{98+4*b}, v{99+4*b}")
            B(f"v_mov_b32 v{24+2*b}, v{96+4*b}")
            B(f"v_mov_b32 v{25+2*b}, v{97+4*b}")
        B("v_cmp_ne_u32 vcc, 0, v8")
        B("s_cbranch_vccz L_x1ok" + sfx)
        B("s_cmp_lt_u32 s49, %d" % SPIN)
        B("s_cbranch_scc1 L_x1poll" + sfx)
        if sfx == "b": S.append("L_last:")
        B("s_branch L_x1ok" + sfx)
        slow.extend(S)
    cpath(4, "a", KT, WA, KB)
    LB("L_h")
    A("v_pk_add_f32 v[24:25], v[24:25], v[28:29]   ; gate")
    A("v_pk_add_f32 v[26:27], v[26:27], v[30:31]   ; up")
    A("v_cvt_pk_bf16_f32 v8, v24, v25")
    A("v_cvt_pk_bf16_f32 v12, v26, v27")
    A("v_lshlrev_b32 v18, 16, v8")
    A("v_and_b32 v19, 0xffff0000, v8")
    A("v_mul_f32 v20, s51, v18")
    A("v_mul_f32 v21, s51, v19")
    A("v_exp_f32 v20, v20")
    A("v_exp_f32 v21, v21")
    A("v_lshlrev_b32 v14, 16, v12")
    A("v_add_f32 v20, 1.0, v20")
    A("v_add_f32 v21, 1.0, v21")
    A("v_rcp_f32 v20, v20")
    A("v_rcp_f32 v21, v21")
    A("v_and_b32 v15, 0xffff0000, v12")
    A("v_mul_f32 v18, v18, v20")
    A("v_mul_f32 v19, v19, v21")
    A("v_cvt_pk_bf16_f32 v8, v18, v19        ; silu")
    A("v_lshlrev_b32 v18, 16, v8")
    A("v_and_b32 v19, 0xffff0000, v8")
    A("v_mul_f32 v18, v18, v14")
    A("v_mul_f32 v19, v19, v15")
    A("v_cvt_pk_bf16_f32 v8, v18, v19        ; h")
    A(f"ds_write_b32 v7, v8 offset:{L_HB}")
    perms(raw2, frag2, 1)
    A("s_waitcnt lgkmcnt(0)")
    A("s_barrier                            ; B4")
    for s in range(2):
        A(f"ds_read_b128 v[{HA+4*s}:{HA+4*s+3}], v13 offset:{L_HB + 512*s}")
    for s in range(2):
        A(f"s_waitcnt lgkmcnt({1-s})")
        for j in range(4):
            c = "0" if s == 0 else f"v[{ACC+4*j}:{ACC+4*j+3}]"
            A(f"v_mfma_f32_16x16x32_bf16 v[{ACC+4*j}:{ACC+4*j+3}], v[{HA+4*s}:{HA+4*s+3}], v[{frag2(s,j)}:{frag2(s,j)+3}], {c}")
    A("s_mov_b32 exec_lo, -1")
    A("s_mov_b32 exec_hi, 0")
    A("s_nop 5")
    for r in range(4):
        for j in range(4):
            A(f"v_and_or_b32 v{20+4*r+j}, v{ACC+4*j+r}, s48, v9")
        A(f"buffer_store_dwordx4 v[{20+4*r}:{23+4*r}], v11, s[32:35], s52 offen sc1")
        if r < 3: A("s_add_u32 s52, s52, %d" % (32*7168))
    stamp(6)
    A("s_waitcnt vmcnt(0)")
    A("s_barrier                            ; B5")
    stamp(7)
    if stamps: A("s_branch L_fin")
    else: A("s_endpgm")
    LB("L_cb")
    cpath(2, "b", KT3, WA3 if WA3 is not None else WA, KB3)
    A("s_branch L_h")

    def rsetup():
        A("s_mov_b64 s[32:33], s[18:19]")
        A("s_mov_b32 s34, %d" % WS_REC)
        A("s_mov_b32 s35, 0x20000")
        A("s_mov_b64 s[36:37], s[14:15]")
        A("s_mov_b32 s38, 524288")
        A("s_mov_b32 s39, 0x20000")
        A("v_and_b32 v4, 7, v0")
        if stamps:
            for i in range(2, 8): A(f"s_mov_b32 s{60+2*i}, 0")
            A("s_mov_b32 s59, 0")
            A("s_mov_b32 s49, 0")
    def idload():
        A("s_lshl_b32 s53, s50, 11")
        A(f"buffer_load_dwordx4 v[{IDR}:{IDR+3}], v14, s[28:31], s53 offen{xpol}")
        A(f"buffer_load_dwordx4 v[{IDR+4}:{IDR+7}], v14, s[28:31], s53 offen offset:1024{xpol}")
    def pretouch():
        A("s_lshl_b32 s45, s20, 14")
        A("s_lshl_b32 s46, s21, 11")
        A("s_add_u32 s46, s46, s45")
        A("s_add_u32 s48, s46, %d               ; own L2-local block" % O_EX1F)
        A("buffer_load_dwordx4 v[24:27], v14, s[32:35], s48 offen")
        A("buffer_load_dwordx4 v[28:31], v14, s[32:35], s48 offen offset:1024")
        if tt: A("v_mov_b32 v32, 0")
        if "o" in tt: A("buffer_load_dword v33, v32, s[36:39], s53 offen")
        if "e" in tt:
            A("s_mov_b32 s45, 0x2f0000")
            A("buffer_load_dword v35, v32, s[32:35], s45 offen")
        if "d" in tt:
            A("s_lshl_b32 s45, s20, 17")
            A("v_mov_b32 v36, s45")
            A("global_load_dword v37, v36, s[12:13]")
    LB("L_r")
    A("s_cmp_eq_u32 s3, 4")
    A("s_cbranch_scc0 L_end")
    A("v_mov_b32 v8, 0")
    A("v_mov_b32 v9, 0")
    A(f"ds_write_b64 v8, v[8:9] offset:{L_FLAG}")
    A("s_mov_b32 s50, s2                    ; slice")
    A("s_waitcnt lgkmcnt(0)")
    A("s_load_dword s40, s[18:19], 0        ; epoch")
    A("s_mov_b64 s[28:29], s[4:5]")
    rsetup()
    idload()
    pretouch()
    stamp(1)
    def fwait(nm, off):
        A("s_mov_b32 s49, 0")
        LB("L_fwait" + nm)
        if fsleep: A(f"s_sleep {fsleep}")
        A(f"ds_read_b32 v9, v8 offset:{off}")
        A("s_add_u32 s49, s49, 1")
        A("s_cmp_ge_u32 s49, %d" % SPIN)
        A("s_waitcnt lgkmcnt(0)")
        A("v_cmp_eq_u32 vcc, 0, v9")
        A("s_cbranch_scc1 L_fok" + nm)
        A("s_cbranch_vccnz L_fwait" + nm)
        LB("L_fok" + nm)
    def psetup():
        A("v_mul_u32_u24 v12, %d, v0            ; poll offset" % LS)
        A("s_mul_i32 s47, s22, %d" % REPS)
        A("s_add_u32 s47, s47, %d               ; this die's replica" % O_IDX)
        A("v_lshrrev_b32 v11, 3, v0")
        A("s_lshr_b32 s45, s21, 1")
        A("s_sub_u32 s46, 10, s57")
        A("s_lshl_b32 s45, s45, s46")
    psetup()
    fwait("a", L_FLAG)
    A("s_add_u32 s40, s40, 1")
    stamp(2)
    if KB is not None:
        A(f"buffer_load_dwordx2 v[16:17], v12, s[32:35], s47 offen sc1")
        fwait("b", L_FLAG + 4)
        A("s_mov_b32 s49, 0")
        LB("L_ipoll2")
        A(f"buffer_load_dwordx2 v[18:19], v12, s[32:35], s47 offen sc1")
        A("s_add_u32 s49, s49, 1")
        A(f"s_waitcnt vmcnt(1)")
        A(f"v_cmp_ne_u32 vcc, s40, v17")
        A("v_mov_b32 v8, v16")
        A("s_cbranch_vccz L_iok")
        A(f"buffer_load_dwordx2 v[16:17], v12, s[32:35], s47 offen sc1")
        A("s_add_u32 s49, s49, 1")
        A("s_cmp_ge_u32 s49, %d" % SPIN)
        A(f"s_waitcnt vmcnt(1)")
        A(f"v_cmp_ne_u32 vcc, s40, v19")
        A("v_mov_b32 v8, v18")
        A("s_cbranch_scc1 L_iok")
        A("s_cbranch_vccnz L_ipoll2")
        A("s_branch L_iok")
    else:
        A("s_branch L_ip0")
    LB("L_route")
    stamp(1)
    rsetup()
    A("s_and_b32 s45, s52, 7")
    A("s_lshl_b32 s46, s45, 3")
    A("s_lshr_b32 s52, s52, 3               ; batch")
    A("s_add_u32 s46, s46, s52")
    A("s_mul_i32 s46, s46, %d" % LS)
    A("s_add_u32 s46, s46, %d               ; slot" % O_IDX)
    A("s_lshl_b32 s45, s45, 2")
    A("v_mul_u32_u24 v5, %d, v0             ; replica offset" % REPS)
    A("v_lshrrev_b32 v10, 5, v0")
    A("v_bfe_u32 v11, v0, 4, 1")
    A("v_lshl_add_u32 v10, v11, 1, v10")
    A("v_add_u32 v10, s45, v10")
    A("v_xor_b32 v10, 31, v10")
    for t in range(4):
        for hlf in range(2):
            A(f"s_waitcnt vmcnt({7 - 2*t - hlf})")
            for k in range(4):
                c = "0" if (hlf == 0 and k == 0) else f"v{6+t}"
                A(f"v_dot2_f32_bf16 v{6+t}, v{XR+8*t+4*hlf+k}, v{16+4*hlf+k}, {c}")
    A("s_waitcnt lgkmcnt(0)")
    A("s_add_u32 s40, s40, 1")
    A("s_nop 0")
    A("v_permlane32_swap_b32 v6, v7")
    A("v_permlane32_swap_b32 v8, v9")
    A("v_add_f32 v6, v6, v7")
    A("v_add_f32 v8, v8, v9")
    A("s_nop 1")
    A("v_permlane16_swap_b32 v6, v8")
    A("v_add_f32 v6, v6, v8")
    A("s_nop 1")
    A("v_add_f32_dpp v6, v6, v6 quad_perm:[1,0,3,2] row_mask:0xf bank_mask:0xf")
    A("s_nop 1")
    A("v_add_f32_dpp v6, v6, v6 quad_perm:[2,3,0,1] row_mask:0xf bank_mask:0xf")
    A("s_nop 1")
    A("v_add_f32_dpp v6, v6, v6 row_half_mirror row_mask:0xf bank_mask:0xf")
    A("s_nop 1")
    A("v_add_f32_dpp v6, v6, v6 row_mirror row_mask:0xf bank_mask:0xf")
    A("v_cvt_pk_bf16_f32 v7, v6, v6")
    A("v_and_b32 v7, 0xffff0000, v7          ; r (bf16)")
    A("v_ashrrev_i32 v6, 31, v7")
    A("v_or_b32 v6, 0x80000000, v6")
    A("v_xor_b32 v6, v6, v7")
    A("v_cmp_o_f32 vcc, v7, v7")
    A("v_and_b32 v6, 0xffff0000, v6")
    A("s_nop 0")
    A("v_cndmask_b32 v6, 0, v6, vcc")
    A("v_or_b32 v6, v10, v6")
    A("v_mov_b32 v7, v6")
    A("s_nop 1")
    A("v_permlane16_swap_b32 v6, v7")
    A("v_max_u32 v6, v6, v7")
    A("v_mov_b32 v7, v6")
    A("s_nop 1")
    A("v_permlane32_swap_b32 v6, v7")
    A("v_max_u32 v6, v6, v7")
    A("v_mov_b32 v7, s40")
    A("s_mov_b64 exec, 0xff")
    A("buffer_store_dwordx2 v[6:7], v5, s[32:35], s46 offen sc1")
    A("s_mov_b64 exec, -1")
    A("s_barrier                            ; B0b")
    stamp(2)
    A("s_setprio 0")
    A("s_cmp_eq_u32 s3, 4")
    A("s_cbranch_scc1 L_r4")
    A("s_and_b32 s45, s2, 0xe7")
    A("s_cmp_eq_u32 s45, 0x%x" % (0xe0 + RD[0]))
    A("s_cbranch_scc0 L_end")
    A("s_add_i32 s50, s2, %d                 ; slice" % (4 - RD[0]))
    idload()
    A("s_branch L_b2")
    LB("L_r4")
    A("s_mov_b32 s50, s2                    ; slice")
    idload()
    pretouch()
    psetup()
    if rack: A(f"s_waitcnt vmcnt({4 + len(tt)})")
    LB("L_ip0")
    A("s_mov_b32 s49, 0")
    LB("L_ipoll")
    A(f"buffer_load_dwordx2 v[8:9], v12, s[32:35], s47 offen sc1")
    A("s_add_u32 s49, s49, 1")
    A("s_cmp_ge_u32 s49, %d" % SPIN)
    A(f"s_waitcnt vmcnt(0)")
    A(f"v_cmp_ne_u32 vcc, s40, v9")
    A("s_cbranch_scc1 L_iok")
    A("s_cbranch_vccnz L_ipoll")
    LB("L_iok")
    stamp(3)
    if stamps: A("s_mov_b32 s59, s49")
    A("s_mov_b32 m0, %d" % L_XS)
    A("s_nop 0")
    A("v_max_u32_dpp v8, v8, v8 row_ror:8 row_mask:0xf bank_mask:0xf")
    A("v_mov_b32 v9, v8")
    A("s_cmp_eq_u32 s57, 1")
    A("s_nop 0")
    A("v_permlane16_swap_b32 v8, v9")
    A("v_max_u32 v8, v8, v9")
    A("v_mov_b32 v9, v8")
    A("s_nop 1")
    A("v_permlane32_swap_b32 v8, v9")
    A("v_max_u32 v8, v8, v9")
    A("v_and_b32 v10, 31, v8")
    A("v_xor_b32 v10, 31, v10")
    A("v_lshl_add_u32 v10, v4, 5, v10       ; row")
    A("v_lshlrev_b32 v10, 11, v10")
    A("v_lshl_add_u32 v10, v11, 4, v10      ; + chunk*16")
    A("v_lshlrev_b32 v9, 2, v4")
    for i in range(8):
        if i == 4: A("s_cbranch_scc1 L_dmadone")
        A(f"buffer_load_dwordx4 v10, s[28:31], s45 offen{xpol} lds")
        if i < 7:
            A("s_mov_b32 m0, %d" % (L_XS + 1024*(i+1)))
            A("v_add_u32 v10, 128, v10")
    LB("L_dmadone")
    A(f"ds_write_b32 v9, v8 offset:{L_KEY}")
    LB("L_b2")
    A("s_lshr_b32 s51, s50, 5")
    A("s_lshl_b32 s45, s51, 2")
    A("v_mov_b32 v5, s45")
    A("s_waitcnt vmcnt(0) lgkmcnt(0)")
    A("s_barrier                            ; B2")
    stamp(4)
    A(f"ds_read_b32 v6, v5 offset:{L_KEY}")
    for r in range(IDR, IDR+8):
        A(f"v_lshlrev_b32 v16, 16, v{r}")
        A(f"v_and_b32 v17, 0xffff0000, v{r}")
        A("v_pk_fma_f32 v[16:17], v[16:17], 0, v[16:17] op_sel_hi:[1,0,1]")
        A(f"v_cvt_pk_bf16_f32 v{r}, v16, v17    ; x + x*0")
    A("s_and_b32 s41, s40, 0xff")
    A("v_lshrrev_b32 v7, 5, v0")
    A("v_bfe_u32 v8, v0, 4, 1")
    A("v_lshl_add_u32 v7, v8, 1, v7         ; e")
    A("v_lshl_add_u32 v7, v4, 2, v7         ; 4*pos + e")
    A("s_and_b32 s46, s50, 31")
    A("s_lshl_b32 s45, s46, 5")
    A("v_add_u32 v7, s45, v7                ; column")
    A("s_waitcnt lgkmcnt(0)")
    A("s_barrier                            ; B3")
    A("v_and_b32 v8, 31, v6")
    A("v_xor_b32 v8, 31, v8")
    A("v_cmp_ne_u32 vcc, s46, v8")
    A("s_lshl_b32 s45, s51, 5")
    A("v_add_u32 v8, s45, v8                ; row")
    A("v_lshlrev_b32 v8, 10, v8")
    A("v_add_u32 v7, v8, v7")
    A("v_lshlrev_b32 v7, 1, v7")
    A("buffer_load_ushort v9, v7, s[28:31], 0 offen")
    A("s_cbranch_vccz L_sel")
    A(f"buffer_store_dwordx4 v[{IDR}:{IDR+3}], v14, s[36:39], s53 offen{outpol}")
    A(f"buffer_store_dwordx4 v[{IDR+4}:{IDR+7}], v14, s[36:39], s53 offen offset:1024{outpol}")
    LB("L_sel")
    A("v_lshrrev_b32 v10, 16, v6")
    A("v_xor_b32 v11, 0xffff, v10")
    A("v_and_b32 v12, 0x7fff, v10")
    A("v_cmp_gt_i32 vcc, 0, v6")
    A("s_mov_b32 s45, 0xbfb8aa3b")
    A("s_nop 0")
    A("v_cndmask_b32 v10, v11, v12, vcc")
    A("v_lshlrev_b32 v10, 16, v10           ; r")
    A("v_mul_f32 v10, s45, v10")
    A("v_exp_f32 v10, v10")
    A("s_nop 0")
    A("v_add_f32 v10, 1.0, v10")
    A("v_rcp_f32 v10, v10")
    A("s_nop 0")
    A("v_cvt_pk_bf16_f32 v10, v10, v10")
    A("v_and_b32 v10, 0xffff0000, v10       ; sigmoid")
    A("s_mul_i32 s46, s50, 7168")
    A("s_add_u32 s46, s46, %d" % O_EX2)
    A("s_add_u32 s47, s46, 4096")
    A("s_mov_b32 s49, 0")
    A("s_mov_b32 s44, 0x00ff00ff")
    A("s_mov_b32 s45, 0x00ff00ff")
    A("s_waitcnt vmcnt(0)")
    A("v_lshlrev_b32 v9, 16, v9             ; x")
    A("s_barrier                            ; B4")
    A("s_barrier                            ; B5")
    stamp(5)
    LB("L_x2poll")
    for i in range(7):
        so = "s46" if i < 4 else "s47"
        A(f"buffer_load_dwordx4 v[{32+4*i}:{35+4*i}], v14, s[32:35], {so} offen offset:{(i%4)*1024} sc1")
    A("s_add_u32 s49, s49, 1")
    for i in range(7):
        A(f"s_waitcnt vmcnt({6-i})")
        b = 32 + 4*i
        for r in range(b, b+4): A(f"v_xor_b32 v{r}, s41, v{r}")
        if i == 0:
            A(f"v_or3_b32 v15, v{b}, v{b+1}, v{b+2}")
            A(f"v_or_b32 v15, v15, v{b+3}")
        else:
            A(f"v_or3_b32 v15, v15, v{b}, v{b+1}")
            A(f"v_or3_b32 v15, v15, v{b+2}, v{b+3}")
            src = 32 if i == 1 else 16
            A(f"v_pk_add_f32 v[16:17], v[{src}:{src+1}], v[{b}:{b+1}]")
            A(f"v_pk_add_f32 v[18:19], v[{src+2}:{src+3}], v[{b+2}:{b+3}]")
    A("v_and_b32 v15, 0xff, v15")
    A("v_cmp_ne_u32 vcc, 0, v15")
    A("s_cbranch_vccz L_x2ok")
    A("s_cmp_lt_u32 s49, %d" % SPIN)
    A("s_cbranch_scc1 L_x2poll")
    LB("L_x2ok")
    stamp(6)
    A("v_permlane32_swap_b32 v16, v17")
    A("v_permlane32_swap_b32 v18, v19")
    A("v_add_f32 v16, v16, v17")
    A("v_add_f32 v18, v18, v19")
    A("s_nop 1")
    A("v_permlane16_swap_b32 v16, v18")
    A("v_add_f32 v16, v16, v18")
    A("s_nop 1")
    A("v_add_f32_dpp v16, v16, v16 row_ror:8 row_mask:0xf bank_mask:0xf")
    A("s_mov_b64 exec, s[44:45]")
    A("v_cvt_pk_bf16_f32 v16, v16, v16")
    A("v_and_b32 v16, 0xffff0000, v16       ; y")
    A("v_mul_f32 v16, v16, v10")
    A("v_cvt_pk_bf16_f32 v16, v16, v16")
    A("v_and_b32 v16, 0xffff0000, v16       ; y*sigmoid")
    A("v_fma_f32 v16, v9, 0, v16            ; upd = x*0 + y")
    A("v_add_f32 v16, v9, v16")
    A("v_cvt_pk_bf16_f32 v16, v16, v16")
    A(f"buffer_store_short v16, v7, s[36:39], 0 offen{outpol}")
    A("s_cmp_lg_u32 s50, 0")
    A("s_cbranch_scc1 L_noep")
    A("v_mov_b32 v18, s40")
    A("v_mov_b32 v17, 0")
    A("s_mov_b64 exec, 1")
    A("buffer_store_dword v18, v17, s[32:35], 0 offen sc1")
    LB("L_noep")
    stamp(7)
    LB("L_fin")
    import diag
    if dg: diag.epilogue(A, LB, dg)
    elif gamp: diag.gamp(A, LB, gamp)
    elif stamps: diag.dump(A, LB)
    LB("L_end")
    A("s_endpgm")
    L.extend(slow)
    body = "\n".join(L)
    return f"""{HEAD}; @launch grid=(256,1,1) block=(384,1,1) lds={LDS_BYTES}
.amdgcn_target "amdgcn-amd-amdhsa--gfx950"
.text
.globl {KN}
.p2align 8
.type {KN},@function
{KN}:
{body}
.section .rodata,"a"
.p2align 6
.amdhsa_kernel {KN}
  .amdhsa_next_free_vgpr 160
  .amdhsa_next_free_sgpr 96
  .amdhsa_accum_offset 160
  .amdhsa_group_segment_fixed_size 0
  .amdhsa_kernarg_size 64
  .amdhsa_user_sgpr_count 2
  .amdhsa_user_sgpr_kernarg_segment_ptr 1
  .amdhsa_system_sgpr_workgroup_id_x 1
  .amdhsa_float_denorm_mode_32 3
.end_amdhsa_kernel
"""
if __name__ == "__main__":
    import sys, json
    kw = json.loads(sys.argv[2]) if len(sys.argv) > 2 else {}
    open(sys.argv[1] if len(sys.argv) > 1 else "standalone__moe_arch_mod__sampling.s", "w").write(gen(**kw))
```

```python
KN = "standalone__moe_arch_mod__sampling_kernel"
HEAD = open("standalone__moe_arch_mod__sampling.s.ref").read().split("; Override launch")[0]

O_IDX = 0x1000
O_EX1F = 0x20000
O_EX2 = 0x100000
O_EX1 = 0x300000
WS_REC = 0x500000
L_XS = 0
L_RED = 8192
L_HB = 16384
L_KEY = 17408
L_FLAG = 17408 + 32
LDS_BYTES = 17408 + 64
SPIN = 40000
NRX = 4

def gen(pol="nt", xpol="", D=10, LS=16, NF=12, stamps=False, outpol="", D0=3, WA=10, WM1=2, WM2=1, PK=None,
        KT=21, KT3=17, dg=None, gamp=None, cpf=3, tt="o", fsleep=1, cst1=False, WA3=None, rack=True, RD=(2,3,5,7), KB=None, KB3=None, SA=None, SB=None, E1=True):
    if gamp or dg: stamps = True
    L = []
    def A(s): L.append("  " + s)
    def LB(s): L.append(s + ":")
    def stamp(i):
        if stamps: A(f"s_memrealtime s[{60+2*i}:{61+2*i}]")
    pol = (" " + pol) if pol else ""
    xpol = (" " + xpol) if xpol else ""
    outpol = (" " + outpol) if outpol else ""
    REPS = 64 * LS
    XR = 80
    RAW = 16; FR = 80; XB = 96; ACC = 112; W2 = 128
    F2 = 40; HA = 72
    IDR = 40
    def raw(s, i): return RAW + 16*s + 2*i
    def frag(s, j): return (FR if s == 0 else RAW + 16*(s-1)) + 4*j
    def raw2(s, i): return W2 + 16*s + 2*i
    def frag2(s, j): return F2 + 16*s + 4*j
    def perms(rawf, fragf, s):
        for e in range(2):
            for p in range(4):
                A(f"v_perm_b32 v{fragf(s,2*e)+p}, v{rawf(s,2*p+1)+e}, v{rawf(s,2*p)+e}, s42")
            for p in range(4):
                A(f"v_perm_b32 v{fragf(s,2*e+1)+p}, v{rawf(s,2*p+1)+e}, v{rawf(s,2*p)+e}, s43")
    def w1load(n):
        s, i = divmod(n, 8)
        A(f"buffer_load_dwordx2 v[{raw(s,i)}:{raw(s,i)+1}], v3, s[24:27], s44 offen{pol}")
        A("s_addk_i32 s44, 7168" if i < 7 else "s_add_u32 s44, s44, %d" % (25*7168))
    def w2load(n):
        s, i = divmod(n, 8)
        p, b = divmod(i, 2)
        row = 2*s + (p >> 1) + 8*(p & 1) + 4*b
        A("s_add_u32 s47, s53, %d" % (row*2048))
        A(f"buffer_load_dwordx2 v[{raw2(s,i)}:{raw2(s,i)+1}], v10, s[28:31], s47 offen{pol}")

    stamp(0)
    A("s_cmp_ge_u32 s2, 256")
    A("s_cbranch_scc1 L_exit")
    A("s_load_dwordx16 s[4:19], s[0:1], 0")
    A("v_lshrrev_b32 v1, 6, v0")
    A("v_and_b32 v0, 63, v0                 ; lane")
    A("v_readfirstlane_b32 s3, v1           ; wave")
    A("s_and_b32 s22, s2, 7")
    A("s_lshr_b32 s23, s2, 3")
    A("s_add_u32 s56, s22, 3")
    A("s_and_b32 s56, s56, 7")
    A("s_lshr_b32 s20, s23, 2")
    A("s_and_b32 s21, s23, 3")
    A("s_cmp_eq_u32 s20, 7")
    A("s_cselect_b32 s20, s56, s20")
    A("s_cselect_b32 s44, 4, 0")
    A("s_add_u32 s21, s21, s44              ; q")
    A("s_cmp_lg_u32 s20, 7")
    A("s_cbranch_scc1 L_hastile")
    LB("L_exit")
    A("s_endpgm")
    LB("L_hastile")
    A("s_cmp_eq_u32 s20, s56")
    A("s_cselect_b32 s57, 1, 0")
    A("s_bitcmp1_b32 %d, s22" % sum(1 << d for d in RD))
    A("s_cselect_b32 s58, s57, 0")
    A("s_mul_i32 s44, s22, 7")
    A("s_add_u32 s20, s20, s44")
    A("s_mov_b32 s27, 0x20000")
    A("s_cmp_lt_u32 s3, 4")
    A("s_cbranch_scc1 L_c")
    A("s_mov_b32 s30, 524288")
    A("s_mov_b32 s31, 0x20000")
    A("v_lshlrev_b32 v14, 4, v0             ; lane*16")
    A("s_cmp_eq_u32 s58, 0")
    A("s_cbranch_scc1 L_r")
    A("s_setprio 3")
    A("s_lshl_b32 s52, s22, 2")
    A("s_lshr_b32 s52, 0x%x, s52" % sum(i << (4*d) for i, d in enumerate(RD)))
    A("s_and_b32 s52, s52, 3")
    A("s_lshl_b32 s52, s52, 3")
    A("s_add_u32 s52, s52, s21")
    A("s_lshl_b32 s52, s52, 1")
    A("s_add_u32 s52, s52, s3")
    A("s_sub_u32 s52, s52, 4")
    A("s_lshl_b32 s44, s52, 13")
    A("s_add_u32 s45, s44, 4096")
    A("s_movk_i32 s26, 2048")
    A("s_waitcnt lgkmcnt(0)")
    A("s_mov_b64 s[28:29], s[4:5]")
    A("s_mov_b64 s[24:25], s[6:7]")
    A("s_load_dword s40, s[18:19], 0        ; epoch")
    A(f"buffer_load_dwordx4 v[16:19], v14, s[24:27], 0 offen")
    A(f"buffer_load_dwordx4 v[20:23], v14, s[24:27], 0 offen offset:1024")
    for i in range(8):
        A(f"buffer_load_dwordx4 v[{XR+4*i}:{XR+4*i+3}], v14, s[28:31], {'s44' if i < 4 else 's45'} offen offset:{(i%4)*1024}{xpol}")
    A("s_barrier                            ; B0")
    A("s_branch L_route")
    LB("L_c")
    if cpf is not None:
        A("s_getpc_b64 s[46:47]")
        LB("L_pc")
        A(f"s_cmp_lg_u32 s3, {cpf}")
        A("s_cbranch_scc1 L_nopf")
        A("v_lshlrev_b32 v2, 7, v0")
        A("v_min_u32 v2, L_last - L_pc - 256, v2")
        A("global_load_dword v159, v2, s[46:47] offset:256")
        LB("L_nopf")
    A("s_mov_b32 s26, 7340032")
    A("v_lshrrev_b32 v1, 4, v0              ; g")
    A("v_and_b32 v2, 15, v0                 ; n")
    A("v_mul_u32_u24 v3, %d, v1" % (8*7168))
    A("v_lshl_add_u32 v3, v2, 3, v3         ; voffset")
    A("s_lshr_b32 s44, s21, 1")
    A("s_lshl_b32 s44, s44, 2")
    A("s_add_u32 s44, s44, s3")
    A("s_lshr_b32 s45, %d, s57" % (128*7168))
    A("s_mul_i32 s44, s44, s45")
    A("s_lshl_b32 s45, s20, 7")
    A("s_add_u32 s44, s44, s45              ; soffset")
    A("s_bitcmp1_b32 s21, 0")
    A("s_waitcnt lgkmcnt(0)")
    A("s_cselect_b64 s[24:25], s[10:11], s[8:9]")
    A("s_cmp_eq_u32 s58, 0")
    A("s_cbranch_scc1 L_nb0")
    A("s_barrier")
    LB("L_nb0")
    if not cst1: stamp(1)
    for n in range(D):
        w1load(n)
        if n == D0 - 1:
            A("s_cmp_eq_u32 s58, 0")
            A("s_cbranch_scc1 L_nb0b")
            A("s_barrier")
            LB("L_nb0b")
    A("s_load_dword s40, s[18:19], 0        ; epoch")
    if stamps:
        for i in range(2, 8): A(f"s_mov_b32 s{60+2*i}, 0")
        A("s_mov_b32 s59, 0")
    A("s_mov_b64 s[32:33], s[18:19]")
    A("s_mov_b32 s34, %d" % WS_REC)
    A("s_mov_b32 s35, 0x20000")
    A("s_mov_b32 s42, 0x05040100")
    A("s_mov_b32 s43, 0x07060302")
    A("v_and_b32 v8, 7, v0")
    A("v_lshl_add_u32 v13, v1, 3, v8")
    A("v_lshlrev_b32 v13, 4, v13")
    A("s_lshl_b32 s45, s3, 11")
    A("v_add_u32 v4, s45, v13")
    A("s_lshr_b32 s45, s45, s57")
    A("v_add_u32 v5, s45, v13")
    A("v_lshlrev_b32 v6, 3, v0")
    A("s_lshl_b32 s45, s3, 9")
    A("v_add_u32 v6, s45, v6                ; w*512 + lane*8")
    A("v_lshrrev_b32 v7, 1, v0")
    A("v_lshlrev_b32 v7, 4, v7")
    A("v_and_b32 v9, 1, v0")
    A("v_lshl_add_u32 v7, v9, 2, v7")
    A("s_lshr_b32 s45, s3, 1")
    A("s_lshl_b32 s45, s45, 9")
    A("s_and_b32 s46, s3, 1")
    A("s_lshl_b32 s46, s46, 3")
    A("s_add_u32 s45, s45, s46")
    A("v_add_u32 v7, s45, v7")
    A("s_mov_b64 s[28:29], s[12:13]")
    A("s_mov_b32 s30, 7340032")
    A("s_mov_b32 s31, 0x20000")
    A("v_lshlrev_b32 v10, 15, v1            ; g*16*2048")
    A("v_lshl_add_u32 v10, v2, 3, v10")
    A("v_lshrrev_b32 v11, 3, v2")
    A("v_lshl_add_u32 v11, v1, 7, v11       ; 4g*32 + (n>>3)")
    A("v_mul_u32_u24 v11, 7168, v11")
    A("v_lshl_add_u32 v11, v8, 4, v11       ; + (n&7)*16")
    A("s_lshl_b32 s53, s21, 2")
    A("s_lshr_b32 s53, s53, s57")
    A("s_add_u32 s53, s53, s3")
    A("s_lshr_b32 s45, s3, 1")
    A("s_and_b32 s45, s45, s57")
    A("s_lshl_b32 s45, s45, 30")
    A("v_or_b32 v10, s45, v10")
    A("v_or_b32 v11, s45, v11")
    A("s_mul_i32 s52, s53, %d" % (2*7168))
    A("s_lshl_b32 s46, s20, 7")
    A("s_add_u32 s52, s52, s46")
    A("s_add_u32 s52, s52, %d" % O_EX2)
    A("s_lshl_b32 s53, s53, 7")
    A("s_lshl_b32 s46, s20, 17              ; ct*64*2048")
    A("s_add_u32 s53, s53, s46")
    A("s_lshl_b32 s45, s20, 14")
    A("s_lshl_b32 s46, s21, 11")
    A("s_add_u32 s45, s45, %d               ; group base" % O_EX1F)
    A("s_add_u32 s46, s46, s45")
    A("s_mov_b32 s48, 0xffffff00")
    A("s_mov_b32 s51, 0xbfb8aa3b            ; -log2(e)")
    A("s_mov_b32 s49, 0")
    A("s_getreg_b32 s54, hwreg(HW_REG_XCC_ID, 0, 3)")
    A("v_mov_b32 v12, 1")
    for n in range(D, 16):
        A(f"s_waitcnt vmcnt({D-1})")
        if n == D and cst1: stamp(1)
        w1load(n)
    A("s_cmp_eq_u32 s57, 1")
    A("s_cbranch_scc1 L_cb")

    slow = []
    def cpath(NS, sfx, K, WA, K2):
        NL = 8*NS
        WB = 16 - WA - WM1 - WM2
        assert WB >= 0
        done = 0
        if NS == 2: stamp(2)
        for n in range(16, NL + WA):
            A(f"s_waitcnt vmcnt({D-1})")
            if n < NL: w1load(n)
            else: w2load(n - NL)
            if n == K and SA is None:
                A(f"ds_write_b32 v12, v12 offset:{L_FLAG - 1}")
            if n == K2:
                A(f"ds_write_b32 v12, v12 offset:{L_FLAG + 3}")
            if n == NL - 1: stamp(2)
            complete = n - D + 1
            while done < NS and 8*done + 8 <= complete:
                perms(raw, frag, done); done += 1
        A("s_waitcnt lgkmcnt(0)")
        A("s_add_u32 s40, s40, 1                ; tag32")
        A("s_and_b32 s41, s40, 0xff")
        A("s_lshl_b32 s55, s40, 3")
        A("s_and_b32 s55, s55, 0xf8")
        A("s_or_b32 s54, s54, s55")
        A("v_mov_b32 v9, s41")
        A("v_mov_b32 v12, s54")
        while done < NS:
            A(f"s_waitcnt vmcnt({NL + WA - 8*done - 8})")
            perms(raw, frag, done); done += 1
        A("s_barrier                            ; B2")
        stamp(3)
        for s in range(NS):
            A(f"ds_read_b128 v[{XB+4*s}:{XB+4*s+3}], v5 offset:{L_XS + 512*s}")
        for n in range(WA, WA + WM1): w2load(n)
        for s in range(NS):
            A(f"s_waitcnt lgkmcnt({NS-1-s})")
            for j in range(4):
                c = "0" if s == 0 else f"v[{ACC+4*j}:{ACC+4*j+3}]"
                A(f"v_mfma_f32_16x16x32_bf16 v[{ACC+4*j}:{ACC+4*j+3}], v[{frag(s,j)}:{frag(s,j)+3}], v[{XB+4*s}:{XB+4*s+3}], {c}")
        A("s_mov_b32 exec_lo, 0x00ff00ff")
        A("s_mov_b32 exec_hi, 0x00ff00ff")
        A("s_nop 2")
        for j in range(4):
            A(f"ds_write_b128 v4, v[{ACC+4*j}:{ACC+4*j+3}] offset:{L_RED + 512*j}")
        A("s_mov_b64 exec, -1")
        for n in range(WA + WM1, WA + WM1 + WM2): w2load(n)
        A("s_waitcnt lgkmcnt(0)")
        A("s_barrier                            ; B3")
        for w in range(4):
            A(f"ds_read_b64 v[{16+2*w}:{17+2*w}], v6 offset:{L_RED + 2048*w}")
        A("s_waitcnt lgkmcnt(2)")
        A("v_pk_add_f32 v[16:17], v[16:17], v[18:19]")
        A("s_waitcnt lgkmcnt(0)")
        A("v_pk_add_f32 v[20:21], v[20:21], v[22:23]")
        A("v_pk_add_f32 v[16:17], v[16:17], v[20:21]")
        A("v_and_or_b32 v16, v16, s48, v12")
        A("v_and_or_b32 v17, v17, s48, v12")
        A("buffer_store_dwordx2 v[16:17], v6, s[32:35], s46 offen")
        stamp(4)
        for n in range(16 - WB, 16): w2load(n)
        pk = WB if PK is None else PK
        after7 = 8 + (1 if 16 - WB >= 8 else 0)
        A(f"s_waitcnt vmcnt({min(max(pk, 0), after7) if pk > after7 else after7})")
        perms(raw2, frag2, 0)
        if pk < after7: A(f"s_waitcnt vmcnt({pk})")
        NB = 4 if NS == 4 else 8
        LB("L_x1poll" + sfx)
        for b in range(NB):
            if b and b % 2 == 0: A(f"s_add_u32 s47, s45, {b*2048}")
            A(f"buffer_load_dwordx2 v[{24+2*b}:{25+2*b}], v6, s[32:35], {'s45' if b < 2 else 's47'} offen offset:{(b%2)*2048} sc1")
        A("s_add_u32 s49, s49, 1")
        A("s_waitcnt vmcnt(0)")
        for r in range(24, 24+2*NB): A(f"v_xor_b32 v{r}, s54, v{r}")
        A("v_or3_b32 v8, v24, v25, v26")
        for r in range(27, 24+2*NB-1, 2): A(f"v_or3_b32 v8, v8, v{r}, v{r+1}")
        A(f"v_or_b32 v8, v8, v{24+2*NB-1}")
        A("v_and_b32 v8, 0xff, v8")
        A("v_cmp_ne_u32 vcc, 0, v8")
        A("s_cbranch_vccnz L_x1no" + sfx)
        LB("L_x1ok" + sfx)
        stamp(5)
        if NB == 8:
            A("v_pk_add_f32 v[24:25], v[24:25], v[32:33]")
            A("v_pk_add_f32 v[26:27], v[26:27], v[34:35]")
            A("v_pk_add_f32 v[28:29], v[28:29], v[36:37]")
            A("v_pk_add_f32 v[30:31], v[30:31], v[38:39]")
        S = []
        def B(s): S.append("  " + s)
        S.append("L_x1no" + sfx + ":")
        B(f"s_cmp_lt_u32 s49, {NF}")
        B("s_cbranch_scc1 L_x1poll" + sfx)
        B("v_lshlrev_b32 v8, 1, v6")
        B("s_lshl_b32 s50, s20, 15")
        B("s_add_u32 s50, s50, %d" % O_EX1)
        B(f"s_cmp_lg_u32 s49, {NF}")
        B("s_cbranch_scc1 L_x1ns" + sfx)
        B("v_and_b32 v96, s48, v16")
        B("v_and_b32 v97, s48, v17")
        B("v_mov_b32 v98, s40")
        B("v_mov_b32 v99, s40")
        B("s_lshl_b32 s47, s21, 12")
        B("s_add_u32 s47, s47, s50")
        B("buffer_store_dwordx4 v[96:99], v8, s[32:35], s47 offen sc1")
        B("s_waitcnt vmcnt(0)")
        S.append("L_x1ns" + sfx + ":")
        for b in range(NB):
            B(f"buffer_load_dwordx4 v[{96+4*b}:{99+4*b}], v8, s[32:35], s50 offen sc1")
            B("s_add_u32 s50, s50, 4096")
        B("s_waitcnt vmcnt(0)")
        B("v_mov_b32 v8, 0")
        for b in range(NB):
            B(f"v_xor_b32 v{98+4*b}, s40, v{98+4*b}")
            B(f"v_xor_b32 v{99+4*b}, s40, v{99+4*b}")
            B(f"v_or3_b32 v8, v8, v{98+4*b}, v{99+4*b}")
            B(f"v_mov_b32 v{24+2*b}, v{96+4*b}")
            B(f"v_mov_b32 v{25+2*b}, v{97+4*b}")
        B("v_cmp_ne_u32 vcc, 0, v8")
        B("s_cbranch_vccz L_x1ok" + sfx)
        B("s_cmp_lt_u32 s49, %d" % SPIN)
        B("s_cbranch_scc1 L_x1poll" + sfx)
        if sfx == "b": S.append("L_last:")
        B("s_branch L_x1ok" + sfx)
        slow.extend(S)
    cpath(4, "a", KT, WA, KB)
    LB("L_h")
    A("v_pk_add_f32 v[24:25], v[24:25], v[28:29]   ; gate")
    A("v_pk_add_f32 v[26:27], v[26:27], v[30:31]   ; up")
    A("v_cvt_pk_bf16_f32 v8, v24, v25")
    A("v_cvt_pk_bf16_f32 v12, v26, v27")
    A("v_lshlrev_b32 v18, 16, v8")
    A("v_and_b32 v19, 0xffff0000, v8")
    A("v_mul_f32 v20, s51, v18")
    A("v_mul_f32 v21, s51, v19")
    A("v_exp_f32 v20, v20")
    A("v_exp_f32 v21, v21")
    A("v_lshlrev_b32 v14, 16, v12")
    A("v_add_f32 v20, 1.0, v20")
    A("v_add_f32 v21, 1.0, v21")
    A("v_rcp_f32 v20, v20")
    A("v_rcp_f32 v21, v21")
    A("v_and_b32 v15, 0xffff0000, v12")
    A("v_mul_f32 v18, v18, v20")
    A("v_mul_f32 v19, v19, v21")
    A("v_cvt_pk_bf16_f32 v8, v18, v19        ; silu")
    A("v_lshlrev_b32 v18, 16, v8")
    A("v_and_b32 v19, 0xffff0000, v8")
    A("v_mul_f32 v18, v18, v14")
    A("v_mul_f32 v19, v19, v15")
    A("v_cvt_pk_bf16_f32 v8, v18, v19        ; h")
    A(f"ds_write_b32 v7, v8 offset:{L_HB}")
    perms(raw2, frag2, 1)
    A("s_waitcnt lgkmcnt(0)")
    A("s_barrier                            ; B4")
    for s in range(2):
        A(f"ds_read_b128 v[{HA+4*s}:{HA+4*s+3}], v13 offset:{L_HB + 512*s}")
    for s in range(2):
        A(f"s_waitcnt lgkmcnt({1-s})")
        for j in range(4):
            c = "0" if s == 0 else f"v[{ACC+4*j}:{ACC+4*j+3}]"
            A(f"v_mfma_f32_16x16x32_bf16 v[{ACC+4*j}:{ACC+4*j+3}], v[{HA+4*s}:{HA+4*s+3}], v[{frag2(s,j)}:{frag2(s,j)+3}], {c}")
    A("s_mov_b32 exec_lo, -1")
    A("s_mov_b32 exec_hi, 0")
    A("s_nop 5")
    for r in range(4):
        for j in range(4):
            A(f"v_and_or_b32 v{20+4*r+j}, v{ACC+4*j+r}, s48, v9")
        A(f"buffer_store_dwordx4 v[{20+4*r}:{23+4*r}], v11, s[32:35], s52 offen sc1")
        if r < 3: A("s_add_u32 s52, s52, %d" % (32*7168))
    stamp(6)
    A("s_waitcnt vmcnt(0)")
    A("s_barrier                            ; B5")
    stamp(7)
    if stamps: A("s_branch L_fin")
    else: A("s_endpgm")
    LB("L_cb")
    cpath(2, "b", KT3, WA3 if WA3 is not None else WA, KB3)
    A("s_branch L_h")

    def rsetup():
        A("s_mov_b64 s[32:33], s[18:19]")
        A("s_mov_b32 s34, %d" % WS_REC)
        A("s_mov_b32 s35, 0x20000")
        A("s_mov_b64 s[36:37], s[14:15]")
        A("s_mov_b32 s38, 524288")
        A("s_mov_b32 s39, 0x20000")
        A("v_and_b32 v4, 7, v0")
        if stamps:
            for i in range(2, 8): A(f"s_mov_b32 s{60+2*i}, 0")
            A("s_mov_b32 s59, 0")
            A("s_mov_b32 s49, 0")
    def idload():
        A("s_lshl_b32 s53, s50, 11")
        A(f"buffer_load_dwordx4 v[{IDR}:{IDR+3}], v14, s[28:31], s53 offen{xpol}")
        A(f"buffer_load_dwordx4 v[{IDR+4}:{IDR+7}], v14, s[28:31], s53 offen offset:1024{xpol}")
    def pretouch():
        A("s_lshl_b32 s45, s20, 14")
        A("s_lshl_b32 s46, s21, 11")
        A("s_add_u32 s46, s46, s45")
        A("s_add_u32 s48, s46, %d               ; own L2-local block" % O_EX1F)
        A("buffer_load_dwordx4 v[24:27], v14, s[32:35], s48 offen")
        A("buffer_load_dwordx4 v[28:31], v14, s[32:35], s48 offen offset:1024")
        if tt: A("v_mov_b32 v32, 0")
        if "o" in tt: A("buffer_load_dword v33, v32, s[36:39], s53 offen")
        if "e" in tt:
            A("s_mov_b32 s45, 0x2f0000")
            A("buffer_load_dword v35, v32, s[32:35], s45 offen")
        if "d" in tt:
            A("s_lshl_b32 s45, s20, 17")
            A("v_mov_b32 v36, s45")
            A("global_load_dword v37, v36, s[12:13]")
    LB("L_r")
    A("s_cmp_eq_u32 s3, 4")
    A("s_cbranch_scc0 L_end")
    A("v_mov_b32 v8, 0")
    A("v_mov_b32 v9, 0")
    A(f"ds_write_b64 v8, v[8:9] offset:{L_FLAG}")
    A("s_mov_b32 s50, s2                    ; slice")
    A("s_waitcnt lgkmcnt(0)")
    A("s_load_dword s40, s[18:19], 0        ; epoch")
    A("s_mov_b64 s[28:29], s[4:5]")
    rsetup()
    idload()
    pretouch()
    stamp(1)
    def fwait(nm, off):
        A("s_mov_b32 s49, 0")
        LB("L_fwait" + nm)
        if fsleep: A(f"s_sleep {fsleep}")
        A(f"ds_read_b32 v9, v8 offset:{off}")
        A("s_add_u32 s49, s49, 1")
        A("s_cmp_ge_u32 s49, %d" % SPIN)
        A("s_waitcnt lgkmcnt(0)")
        A("v_cmp_eq_u32 vcc, 0, v9")
        A("s_cbranch_scc1 L_fok" + nm)
        A("s_cbranch_vccnz L_fwait" + nm)
        LB("L_fok" + nm)
    def psetup():
        A("v_mul_u32_u24 v12, %d, v0            ; poll offset" % LS)
        A("s_mul_i32 s47, s22, %d" % REPS)
        A("s_add_u32 s47, s47, %d               ; this die's replica" % O_IDX)
        A("v_lshrrev_b32 v11, 3, v0")
        A("s_lshr_b32 s45, s21, 1")
        A("s_sub_u32 s46, 10, s57")
        A("s_lshl_b32 s45, s45, s46")
    psetup()
    if SA is None: fwait("a", L_FLAG)
    else:
        if E1:
            A("s_waitcnt vmcnt(0) lgkmcnt(0)")
            stamp(1)
        if SA: A(f"s_sleep {SA}")
        A("s_waitcnt lgkmcnt(0)")
    A("s_add_u32 s40, s40, 1")
    stamp(2)
    if KB is not None or SB is not None:
        A(f"buffer_load_dwordx2 v[16:17], v12, s[32:35], s47 offen sc1")
        if SB is None: fwait("b", L_FLAG + 4)
        else: A(f"s_sleep {SB}")
        A("s_mov_b32 s49, 0")
        LB("L_ipoll2")
        A(f"buffer_load_dwordx2 v[18:19], v12, s[32:35], s47 offen sc1")
        A("s_add_u32 s49, s49, 1")
        A(f"s_waitcnt vmcnt(1)")
        A(f"v_cmp_ne_u32 vcc, s40, v17")
        A("v_mov_b32 v8, v16")
        A("s_cbranch_vccz L_iok")
        A(f"buffer_load_dwordx2 v[16:17], v12, s[32:35], s47 offen sc1")
        A("s_add_u32 s49, s49, 1")
        A("s_cmp_ge_u32 s49, %d" % SPIN)
        A(f"s_waitcnt vmcnt(1)")
        A(f"v_cmp_ne_u32 vcc, s40, v19")
        A("v_mov_b32 v8, v18")
        A("s_cbranch_scc1 L_iok")
        A("s_cbranch_vccnz L_ipoll2")
        A("s_branch L_iok")
    else:
        A("s_branch L_ip0")
    LB("L_route")
    stamp(1)
    rsetup()
    A("s_and_b32 s45, s52, 7")
    A("s_lshl_b32 s46, s45, 3")
    A("s_lshr_b32 s52, s52, 3               ; batch")
    A("s_add_u32 s46, s46, s52")
    A("s_mul_i32 s46, s46, %d" % LS)
    A("s_add_u32 s46, s46, %d               ; slot" % O_IDX)
    A("s_lshl_b32 s45, s45, 2")
    A("v_mul_u32_u24 v5, %d, v0             ; replica offset" % REPS)
    A("v_lshrrev_b32 v10, 5, v0")
    A("v_bfe_u32 v11, v0, 4, 1")
    A("v_lshl_add_u32 v10, v11, 1, v10")
    A("v_add_u32 v10, s45, v10")
    A("v_xor_b32 v10, 31, v10")
    for t in range(4):
        for hlf in range(2):
            A(f"s_waitcnt vmcnt({7 - 2*t - hlf})")
            for k in range(4):
                c = "0" if (hlf == 0 and k == 0) else f"v{6+t}"
                A(f"v_dot2_f32_bf16 v{6+t}, v{XR+8*t+4*hlf+k}, v{16+4*hlf+k}, {c}")
    A("s_waitcnt lgkmcnt(0)")
    A("s_add_u32 s40, s40, 1")
    A("s_nop 0")
    A("v_permlane32_swap_b32 v6, v7")
    A("v_permlane32_swap_b32 v8, v9")
    A("v_add_f32 v6, v6, v7")
    A("v_add_f32 v8, v8, v9")
    A("s_nop 1")
    A("v_permlane16_swap_b32 v6, v8")
    A("v_add_f32 v6, v6, v8")
    A("s_nop 1")
    A("v_add_f32_dpp v6, v6, v6 quad_perm:[1,0,3,2] row_mask:0xf bank_mask:0xf")
    A("s_nop 1")
    A("v_add_f32_dpp v6, v6, v6 quad_perm:[2,3,0,1] row_mask:0xf bank_mask:0xf")
    A("s_nop 1")
    A("v_add_f32_dpp v6, v6, v6 row_half_mirror row_mask:0xf bank_mask:0xf")
    A("s_nop 1")
    A("v_add_f32_dpp v6, v6, v6 row_mirror row_mask:0xf bank_mask:0xf")
    A("v_cvt_pk_bf16_f32 v7, v6, v6")
    A("v_and_b32 v7, 0xffff0000, v7          ; r (bf16)")
    A("v_ashrrev_i32 v6, 31, v7")
    A("v_or_b32 v6, 0x80000000, v6")
    A("v_xor_b32 v6, v6, v7")
    A("v_cmp_o_f32 vcc, v7, v7")
    A("v_and_b32 v6, 0xffff0000, v6")
    A("s_nop 0")
    A("v_cndmask_b32 v6, 0, v6, vcc")
    A("v_or_b32 v6, v10, v6")
    A("v_mov_b32 v7, v6")
    A("s_nop 1")
    A("v_permlane16_swap_b32 v6, v7")
    A("v_max_u32 v6, v6, v7")
    A("v_mov_b32 v7, v6")
    A("s_nop 1")
    A("v_permlane32_swap_b32 v6, v7")
    A("v_max_u32 v6, v6, v7")
    A("v_mov_b32 v7, s40")
    A("s_mov_b64 exec, 0xff")
    A("buffer_store_dwordx2 v[6:7], v5, s[32:35], s46 offen sc1")
    A("s_mov_b64 exec, -1")
    A("s_barrier                            ; B0b")
    stamp(2)
    A("s_setprio 0")
    A("s_cmp_eq_u32 s3, 4")
    A("s_cbranch_scc1 L_r4")
    A("s_and_b32 s45, s2, 0xe7")
    A("s_cmp_eq_u32 s45, 0x%x" % (0xe0 + RD[0]))
    A("s_cbranch_scc0 L_end")
    A("s_add_i32 s50, s2, %d                 ; slice" % (4 - RD[0]))
    idload()
    A("s_branch L_b2")
    LB("L_r4")
    A("s_mov_b32 s50, s2                    ; slice")
    idload()
    pretouch()
    psetup()
    if rack: A(f"s_waitcnt vmcnt({4 + len(tt)})")
    LB("L_ip0")
    A("s_mov_b32 s49, 0")
    LB("L_ipoll")
    A(f"buffer_load_dwordx2 v[8:9], v12, s[32:35], s47 offen sc1")
    A("s_add_u32 s49, s49, 1")
    A("s_cmp_ge_u32 s49, %d" % SPIN)
    A(f"s_waitcnt vmcnt(0)")
    A(f"v_cmp_ne_u32 vcc, s40, v9")
    A("s_cbranch_scc1 L_iok")
    A("s_cbranch_vccnz L_ipoll")
    LB("L_iok")
    stamp(3)
    if stamps: A("s_mov_b32 s59, s49")
    A("s_mov_b32 m0, %d" % L_XS)
    A("s_nop 0")
    A("v_max_u32_dpp v8, v8, v8 row_ror:8 row_mask:0xf bank_mask:0xf")
    A("v_mov_b32 v9, v8")
    A("s_cmp_eq_u32 s57, 1")
    A("s_nop 0")
    A("v_permlane16_swap_b32 v8, v9")
    A("v_max_u32 v8, v8, v9")
    A("v_mov_b32 v9, v8")
    A("s_nop 1")
    A("v_permlane32_swap_b32 v8, v9")
    A("v_max_u32 v8, v8, v9")
    A("v_and_b32 v10, 31, v8")
    A("v_xor_b32 v10, 31, v10")
    A("v_lshl_add_u32 v10, v4, 5, v10       ; row")
    A("v_lshlrev_b32 v10, 11, v10")
    A("v_lshl_add_u32 v10, v11, 4, v10      ; + chunk*16")
    A("v_lshlrev_b32 v9, 2, v4")
    for i in range(8):
        if i == 4: A("s_cbranch_scc1 L_dmadone")
        A(f"buffer_load_dwordx4 v10, s[28:31], s45 offen{xpol} lds")
        if i < 7:
            A("s_mov_b32 m0, %d" % (L_XS + 1024*(i+1)))
            A("v_add_u32 v10, 128, v10")
    LB("L_dmadone")
    A(f"ds_write_b32 v9, v8 offset:{L_KEY}")
    LB("L_b2")
    A("s_lshr_b32 s51, s50, 5")
    A("s_lshl_b32 s45, s51, 2")
    A("v_mov_b32 v5, s45")
    A("s_waitcnt vmcnt(0) lgkmcnt(0)")
    A("s_barrier                            ; B2")
    stamp(4)
    A(f"ds_read_b32 v6, v5 offset:{L_KEY}")
    for r in range(IDR, IDR+8):
        A(f"v_lshlrev_b32 v16, 16, v{r}")
        A(f"v_and_b32 v17, 0xffff0000, v{r}")
        A("v_pk_fma_f32 v[16:17], v[16:17], 0, v[16:17] op_sel_hi:[1,0,1]")
        A(f"v_cvt_pk_bf16_f32 v{r}, v16, v17    ; x + x*0")
    A("s_and_b32 s41, s40, 0xff")
    A("v_lshrrev_b32 v7, 5, v0")
    A("v_bfe_u32 v8, v0, 4, 1")
    A("v_lshl_add_u32 v7, v8, 1, v7         ; e")
    A("v_lshl_add_u32 v7, v4, 2, v7         ; 4*pos + e")
    A("s_and_b32 s46, s50, 31")
    A("s_lshl_b32 s45, s46, 5")
    A("v_add_u32 v7, s45, v7                ; column")
    A("s_waitcnt lgkmcnt(0)")
    A("s_barrier                            ; B3")
    A("v_and_b32 v8, 31, v6")
    A("v_xor_b32 v8, 31, v8")
    A("v_cmp_ne_u32 vcc, s46, v8")
    A("s_lshl_b32 s45, s51, 5")
    A("v_add_u32 v8, s45, v8                ; row")
    A("v_lshlrev_b32 v8, 10, v8")
    A("v_add_u32 v7, v8, v7")
    A("v_lshlrev_b32 v7, 1, v7")
    A("buffer_load_ushort v9, v7, s[28:31], 0 offen")
    A("s_cbranch_vccz L_sel")
    A(f"buffer_store_dwordx4 v[{IDR}:{IDR+3}], v14, s[36:39], s53 offen{outpol}")
    A(f"buffer_store_dwordx4 v[{IDR+4}:{IDR+7}], v14, s[36:39], s53 offen offset:1024{outpol}")
    LB("L_sel")
    A("v_lshrrev_b32 v10, 16, v6")
    A("v_xor_b32 v11, 0xffff, v10")
    A("v_and_b32 v12, 0x7fff, v10")
    A("v_cmp_gt_i32 vcc, 0, v6")
    A("s_mov_b32 s45, 0xbfb8aa3b")
    A("s_nop 0")
    A("v_cndmask_b32 v10, v11, v12, vcc")
    A("v_lshlrev_b32 v10, 16, v10           ; r")
    A("v_mul_f32 v10, s45, v10")
    A("v_exp_f32 v10, v10")
    A("s_nop 0")
    A("v_add_f32 v10, 1.0, v10")
    A("v_rcp_f32 v10, v10")
    A("s_nop 0")
    A("v_cvt_pk_bf16_f32 v10, v10, v10")
    A("v_and_b32 v10, 0xffff0000, v10       ; sigmoid")
    A("s_mul_i32 s46, s50, 7168")
    A("s_add_u32 s46, s46, %d" % O_EX2)
    A("s_add_u32 s47, s46, 4096")
    A("s_mov_b32 s49, 0")
    A("s_mov_b32 s44, 0x00ff00ff")
    A("s_mov_b32 s45, 0x00ff00ff")
    A("s_waitcnt vmcnt(0)")
    A("v_lshlrev_b32 v9, 16, v9             ; x")
    A("s_barrier                            ; B4")
    A("s_barrier                            ; B5")
    stamp(5)
    LB("L_x2poll")
    for i in range(7):
        so = "s46" if i < 4 else "s47"
        A(f"buffer_load_dwordx4 v[{32+4*i}:{35+4*i}], v14, s[32:35], {so} offen offset:{(i%4)*1024} sc1")
    A("s_add_u32 s49, s49, 1")
    for i in range(7):
        A(f"s_waitcnt vmcnt({6-i})")
        b = 32 + 4*i
        for r in range(b, b+4): A(f"v_xor_b32 v{r}, s41, v{r}")
        if i == 0:
            A(f"v_or3_b32 v15, v{b}, v{b+1}, v{b+2}")
            A(f"v_or_b32 v15, v15, v{b+3}")
        else:
            A(f"v_or3_b32 v15, v15, v{b}, v{b+1}")
            A(f"v_or3_b32 v15, v15, v{b+2}, v{b+3}")
            src = 32 if i == 1 else 16
            A(f"v_pk_add_f32 v[16:17], v[{src}:{src+1}], v[{b}:{b+1}]")
            A(f"v_pk_add_f32 v[18:19], v[{src+2}:{src+3}], v[{b+2}:{b+3}]")
    A("v_and_b32 v15, 0xff, v15")
    A("v_cmp_ne_u32 vcc, 0, v15")
    A("s_cbranch_vccz L_x2ok")
    A("s_cmp_lt_u32 s49, %d" % SPIN)
    A("s_cbranch_scc1 L_x2poll")
    LB("L_x2ok")
    stamp(6)
    A("v_permlane32_swap_b32 v16, v17")
    A("v_permlane32_swap_b32 v18, v19")
    A("v_add_f32 v16, v16, v17")
    A("v_add_f32 v18, v18, v19")
    A("s_nop 1")
    A("v_permlane16_swap_b32 v16, v18")
    A("v_add_f32 v16, v16, v18")
    A("s_nop 1")
    A("v_add_f32_dpp v16, v16, v16 row_ror:8 row_mask:0xf bank_mask:0xf")
    A("s_mov_b64 exec, s[44:45]")
    A("v_cvt_pk_bf16_f32 v16, v16, v16")
    A("v_and_b32 v16, 0xffff0000, v16       ; y")
    A("v_mul_f32 v16, v16, v10")
    A("v_cvt_pk_bf16_f32 v16, v16, v16")
    A("v_and_b32 v16, 0xffff0000, v16       ; y*sigmoid")
    A("v_fma_f32 v16, v9, 0, v16            ; upd = x*0 + y")
    A("v_add_f32 v16, v9, v16")
    A("v_cvt_pk_bf16_f32 v16, v16, v16")
    A(f"buffer_store_short v16, v7, s[36:39], 0 offen{outpol}")
    A("s_cmp_lg_u32 s50, 0")
    A("s_cbranch_scc1 L_noep")
    A("v_mov_b32 v18, s40")
    A("v_mov_b32 v17, 0")
    A("s_mov_b64 exec, 1")
    A("buffer_store_dword v18, v17, s[32:35], 0 offen sc1")
    LB("L_noep")
    stamp(7)
    LB("L_fin")
    import diag
    if dg: diag.epilogue(A, LB, dg)
    elif gamp: diag.gamp(A, LB, gamp)
    elif stamps: diag.dump(A, LB)
    LB("L_end")
    A("s_endpgm")
    L.extend(slow)
    body = "\n".join(L)
    return f"""{HEAD}; @launch grid=(256,1,1) block=(384,1,1) lds={LDS_BYTES}
.amdgcn_target "amdgcn-amd-amdhsa--gfx950"
.text
.globl {KN}
.p2align 8
.type {KN},@function
{KN}:
{body}
.section .rodata,"a"
.p2align 6
.amdhsa_kernel {KN}
  .amdhsa_next_free_vgpr 160
  .amdhsa_next_free_sgpr 96
  .amdhsa_accum_offset 160
  .amdhsa_group_segment_fixed_size 0
  .amdhsa_kernarg_size 64
  .amdhsa_user_sgpr_count 2
  .amdhsa_user_sgpr_kernarg_segment_ptr 1
  .amdhsa_system_sgpr_workgroup_id_x 1
  .amdhsa_float_denorm_mode_32 3
.end_amdhsa_kernel
"""
if __name__ == "__main__":
    import sys, json
    kw = json.loads(sys.argv[2]) if len(sys.argv) > 2 else {}
    open(sys.argv[1] if len(sys.argv) > 1 else "standalone__moe_arch_mod__sampling.s", "w").write(gen(**kw))
```

```python
KN = "standalone__moe_arch_mod__sampling_kernel"
HEAD = open("standalone__moe_arch_mod__sampling.s.ref").read().split("; Override launch")[0]

O_IDX = 0x1000
O_EX1F = 0x20000
O_EX2 = 0x100000
O_EX1 = 0x300000
WS_REC = 0x500000
L_XS = 0
L_RED = 8192
L_HB = 16384
L_KEY = 17408
L_FLAG = 17408 + 32
LDS_BYTES = 17408 + 64
SPIN = 40000
NRX = 4

def gen(pol="nt", xpol="", D=10, LS=16, NF=12, stamps=False, outpol="", D0=3, WA=10, WM1=2, WM2=1, PK=None,
        KT=21, KT3=17, dg=None, gamp=None, cpf=3, tt="o", fsleep=1, cst1=False, WA3=None, rack=True, RD=(2,3,5,7), KB=None, KB3=None, SA=None, SB=None, E1=True, st=True, x1pol="", rst=True, K0=None, NP=0, DL=9):
    if gamp or dg: stamps = True
    L = []
    def A(s): L.append("  " + s)
    def LB(s): L.append(s + ":")
    def stamp(i):
        if stamps: A(f"s_memrealtime s[{60+2*i}:{61+2*i}]")
    pol = (" " + pol) if pol else ""
    xpol = (" " + xpol) if xpol else ""
    outpol = (" " + outpol) if outpol else ""
    REPS = 64 * LS
    XR = 80
    RAW = 16; FR = 80; XB = 96; ACC = 112; W2 = 128
    F2 = 40; HA = 72
    IDR = 40
    def raw(s, i): return RAW + 16*s + 2*i
    def frag(s, j): return (FR if s == 0 else RAW + 16*(s-1)) + 4*j
    def raw2(s, i): return W2 + 16*s + 2*i
    def frag2(s, j): return F2 + 16*s + 4*j
    def perms(rawf, fragf, s):
        for e in range(2):
            for p in range(4):
                A(f"v_perm_b32 v{fragf(s,2*e)+p}, v{rawf(s,2*p+1)+e}, v{rawf(s,2*p)+e}, s42")
            for p in range(4):
                A(f"v_perm_b32 v{fragf(s,2*e+1)+p}, v{rawf(s,2*p+1)+e}, v{rawf(s,2*p)+e}, s43")
    def w1load(n):
        s, i = divmod(n, 8)
        A(f"buffer_load_dwordx2 v[{raw(s,i)}:{raw(s,i)+1}], v3, s[24:27], s44 offen{pol}")
        A("s_addk_i32 s44, 7168" if i < 7 else "s_add_u32 s44, s44, %d" % (25*7168))
    def w2load(n):
        s, i = divmod(n, 8)
        p, b = divmod(i, 2)
        row = 2*s + (p >> 1) + 8*(p & 1) + 4*b
        A("s_add_u32 s47, s53, %d" % (row*2048))
        A(f"buffer_load_dwordx2 v[{raw2(s,i)}:{raw2(s,i)+1}], v10, s[28:31], s47 offen{pol}")

    stamp(0)
    A("s_cmp_ge_u32 s2, 256")
    A("s_cbranch_scc1 L_exit")
    A("s_load_dwordx16 s[4:19], s[0:1], 0")
    A("v_lshrrev_b32 v1, 6, v0")
    A("v_and_b32 v0, 63, v0                 ; lane")
    A("v_readfirstlane_b32 s3, v1           ; wave")
    A("s_and_b32 s22, s2, 7")
    A("s_lshr_b32 s23, s2, 3")
    A("s_add_u32 s56, s22, 3")
    A("s_and_b32 s56, s56, 7")
    A("s_lshr_b32 s20, s23, 2")
    A("s_and_b32 s21, s23, 3")
    A("s_cmp_eq_u32 s20, 7")
    A("s_cselect_b32 s20, s56, s20")
    A("s_cselect_b32 s44, 4, 0")
    A("s_add_u32 s21, s21, s44              ; q")
    A("s_cmp_lg_u32 s20, 7")
    A("s_cbranch_scc1 L_hastile")
    LB("L_exit")
    A("s_endpgm")
    LB("L_hastile")
    A("s_cmp_eq_u32 s20, s56")
    A("s_cselect_b32 s57, 1, 0")
    A("s_bitcmp1_b32 %d, s22" % sum(1 << d for d in RD))
    A("s_cselect_b32 s58, s57, 0")
    A("s_mul_i32 s44, s22, 7")
    A("s_add_u32 s20, s20, s44")
    A("s_mov_b32 s27, 0x20000")
    A("s_cmp_lt_u32 s3, 4")
    A("s_cbranch_scc1 L_c")
    A("s_mov_b32 s30, 524288")
    A("s_mov_b32 s31, 0x20000")
    A("v_lshlrev_b32 v14, 4, v0             ; lane*16")
    A("s_cmp_eq_u32 s58, 1")
    A("s_cbranch_scc1 L_rt")
    A("s_cmp_eq_u32 s3, 4")
    A("s_cbranch_scc0 L_w5")
    A("s_waitcnt lgkmcnt(0)")
    A("s_load_dword s40, s[18:19], 0        ; epoch")
    A("s_branch L_r")
    LB("L_rt")
    A("s_setprio 3")
    A("s_lshl_b32 s52, s22, 2")
    A("s_lshr_b32 s52, 0x%x, s52" % sum(i << (4*d) for i, d in enumerate(RD)))
    A("s_and_b32 s52, s52, 3")
    A("s_lshl_b32 s52, s52, 3")
    A("s_add_u32 s52, s52, s21")
    A("s_lshl_b32 s52, s52, 1")
    A("s_add_u32 s52, s52, s3")
    A("s_sub_u32 s52, s52, 4")
    A("s_lshl_b32 s44, s52, 13")
    A("s_add_u32 s45, s44, 4096")
    A("s_movk_i32 s26, 2048")
    A("s_waitcnt lgkmcnt(0)")
    if rst:
        A("s_load_dword s41, s[4:5], s44")
        A("s_load_dword s42, s[6:7], 0")
    A("s_mov_b64 s[28:29], s[4:5]")
    A("s_mov_b64 s[24:25], s[6:7]")
    A("s_load_dword s40, s[18:19], 0        ; epoch")
    A(f"buffer_load_dwordx4 v[16:19], v14, s[24:27], 0 offen")
    A(f"buffer_load_dwordx4 v[20:23], v14, s[24:27], 0 offen offset:1024")
    for i in range(8):
        A(f"buffer_load_dwordx4 v[{XR+4*i}:{XR+4*i+3}], v14, s[28:31], {'s44' if i < 4 else 's45'} offen offset:{(i%4)*1024}{xpol}")
    A("s_barrier                            ; B0")
    A("s_branch L_route")
    LB("L_c")
    if cpf is not None:
        A("s_getpc_b64 s[46:47]")
        LB("L_pc")
        A(f"s_cmp_lg_u32 s3, {cpf}")
        A("s_cbranch_scc1 L_nopf")
        A("v_lshlrev_b32 v2, 7, v0")
        A("v_min_u32 v2, L_last - L_pc - 256, v2")
        A("global_load_dword v159, v2, s[46:47] offset:256")
        LB("L_nopf")
    A("s_mov_b32 s26, 7340032")
    A("v_lshrrev_b32 v1, 4, v0              ; g")
    A("v_and_b32 v2, 15, v0                 ; n")
    A("v_mul_u32_u24 v3, %d, v1" % (8*7168))
    A("v_lshl_add_u32 v3, v2, 3, v3         ; voffset")
    A("s_lshr_b32 s44, s21, 1")
    A("s_lshl_b32 s44, s44, 2")
    A("s_add_u32 s44, s44, s3")
    A("s_lshr_b32 s45, %d, s57" % (128*7168))
    A("s_mul_i32 s44, s44, s45")
    A("s_lshl_b32 s45, s20, 7")
    A("s_add_u32 s44, s44, s45              ; soffset")
    A("s_bitcmp1_b32 s21, 0")
    A("s_waitcnt lgkmcnt(0)")
    A("s_cselect_b64 s[24:25], s[10:11], s[8:9]")
    A("s_cmp_eq_u32 s58, 0")
    A("s_cbranch_scc1 L_nb0")
    A("s_barrier")
    LB("L_nb0")
    if not cst1: stamp(1)
    for n in range(D):
        w1load(n)
        if n == D0 - 1:
            A("s_cmp_eq_u32 s58, 0")
            A("s_cbranch_scc1 L_nb0b")
            A("s_barrier")
            LB("L_nb0b")
    A("s_load_dword s40, s[18:19], 0        ; epoch")
    if stamps:
        for i in range(2, 8): A(f"s_mov_b32 s{60+2*i}, 0")
        A("s_mov_b32 s59, 0")
    A("s_mov_b64 s[32:33], s[18:19]")
    A("s_mov_b32 s34, %d" % WS_REC)
    A("s_mov_b32 s35, 0x20000")
    A("s_mov_b32 s42, 0x05040100")
    A("s_mov_b32 s43, 0x07060302")
    A("v_and_b32 v8, 7, v0")
    A("v_lshl_add_u32 v13, v1, 3, v8")
    A("v_lshlrev_b32 v13, 4, v13")
    A("s_lshl_b32 s45, s3, 11")
    A("v_add_u32 v4, s45, v13")
    A("s_lshr_b32 s45, s45, s57")
    A("v_add_u32 v5, s45, v13")
    A("v_lshlrev_b32 v6, 3, v0")
    A("s_lshl_b32 s45, s3, 9")
    A("v_add_u32 v6, s45, v6                ; w*512 + lane*8")
    A("v_lshrrev_b32 v7, 1, v0")
    A("v_lshlrev_b32 v7, 4, v7")
    A("v_and_b32 v9, 1, v0")
    A("v_lshl_add_u32 v7, v9, 2, v7")
    A("s_lshr_b32 s45, s3, 1")
    A("s_lshl_b32 s45, s45, 9")
    A("s_and_b32 s46, s3, 1")
    A("s_lshl_b32 s46, s46, 3")
    A("s_add_u32 s45, s45, s46")
    A("v_add_u32 v7, s45, v7")
    A("s_mov_b64 s[28:29], s[12:13]")
    A("s_mov_b32 s30, 7340032")
    A("s_mov_b32 s31, 0x20000")
    A("v_lshlrev_b32 v10, 15, v1            ; g*16*2048")
    A("v_lshl_add_u32 v10, v2, 3, v10")
    A("v_lshrrev_b32 v11, 3, v2")
    A("v_lshl_add_u32 v11, v1, 7, v11       ; 4g*32 + (n>>3)")
    A("v_mul_u32_u24 v11, 7168, v11")
    A("v_lshl_add_u32 v11, v8, 4, v11       ; + (n&7)*16")
    A("s_lshl_b32 s53, s21, 2")
    A("s_lshr_b32 s53, s53, s57")
    A("s_add_u32 s53, s53, s3")
    A("s_lshr_b32 s45, s3, 1")
    A("s_and_b32 s45, s45, s57")
    A("s_lshl_b32 s45, s45, 30")
    A("v_or_b32 v10, s45, v10")
    A("v_or_b32 v11, s45, v11")
    A("s_mul_i32 s52, s53, %d" % (2*7168))
    A("s_lshl_b32 s46, s20, 7")
    A("s_add_u32 s52, s52, s46")
    A("s_add_u32 s52, s52, %d" % O_EX2)
    A("s_lshl_b32 s53, s53, 7")
    A("s_lshl_b32 s46, s20, 17              ; ct*64*2048")
    A("s_add_u32 s53, s53, s46")
    A("s_lshl_b32 s45, s20, 14")
    A("s_lshl_b32 s46, s21, 11")
    A("s_add_u32 s45, s45, %d               ; group base" % O_EX1F)
    A("s_add_u32 s46, s46, s45")
    A("s_mov_b32 s48, 0xffffff00")
    A("s_mov_b32 s51, 0xbfb8aa3b            ; -log2(e)")
    A("s_mov_b32 s49, 0")
    A("s_getreg_b32 s54, hwreg(HW_REG_XCC_ID, 0, 3)")
    A("v_mov_b32 v12, 1")
    for n in range(D, 16):
        A(f"s_waitcnt vmcnt({D-1})")
        if n == D and cst1: stamp(1)
        if n == KT and KT < 16 and SA is None: A(f"ds_write_b32 v12, v12 offset:{L_FLAG - 1}")
        if n == (K0 or D): A(f"ds_write_b32 v12, v12 offset:{L_FLAG + 7}")
        w1load(n)
    A("s_cmp_eq_u32 s57, 1")
    A("s_cbranch_scc1 L_cb")

    slow = []
    def cpath(NS, sfx, K, WA, K2):
        NL = 8*NS
        WB = 16 - WA - WM1 - WM2
        assert WB >= 0
        done = 0
        if NS == 2: stamp(2)
        for n in range(16, NL + WA):
            A(f"s_waitcnt vmcnt({D-1})")
            if n < NL: w1load(n)
            else: w2load(n - NL)
            if n == K and SA is None:
                A(f"ds_write_b32 v12, v12 offset:{L_FLAG - 1}")
            if n == K2:
                A(f"ds_write_b32 v12, v12 offset:{L_FLAG + 3}")
            if n == NL - 1: stamp(2)
            complete = n - D + 1
            while done < NS and 8*done + 8 <= complete:
                perms(raw, frag, done); done += 1
        A("s_waitcnt lgkmcnt(0)")
        A("s_add_u32 s40, s40, 1                ; tag32")
        A("s_and_b32 s41, s40, 0xff")
        A("s_lshl_b32 s55, s40, 3")
        A("s_and_b32 s55, s55, 0xf8")
        A("s_or_b32 s54, s54, s55")
        A("v_mov_b32 v9, s41")
        A("v_mov_b32 v12, s54")
        while done < NS:
            A(f"s_waitcnt vmcnt({NL + WA - 8*done - 8})")
            perms(raw, frag, done); done += 1
        A("s_barrier                            ; B2")
        stamp(3)
        for s in range(NS):
            A(f"ds_read_b128 v[{XB+4*s}:{XB+4*s+3}], v5 offset:{L_XS + 512*s}")
        for n in range(WA, WA + WM1): w2load(n)
        for s in range(NS):
            A(f"s_waitcnt lgkmcnt({NS-1-s})")
            for j in range(4):
                c = "0" if s == 0 else f"v[{ACC+4*j}:{ACC+4*j+3}]"
                A(f"v_mfma_f32_16x16x32_bf16 v[{ACC+4*j}:{ACC+4*j+3}], v[{frag(s,j)}:{frag(s,j)+3}], v[{XB+4*s}:{XB+4*s+3}], {c}")
        A("s_mov_b32 exec_lo, 0x00ff00ff")
        A("s_mov_b32 exec_hi, 0x00ff00ff")
        A("s_nop 2")
        for j in range(4):
            A(f"ds_write_b128 v4, v[{ACC+4*j}:{ACC+4*j+3}] offset:{L_RED + 512*j}")
        A("s_mov_b64 exec, -1")
        for n in range(WA + WM1, WA + WM1 + WM2): w2load(n)
        A("s_waitcnt lgkmcnt(0)")
        A("s_barrier                            ; B3")
        for w in range(4):
            A(f"ds_read_b64 v[{16+2*w}:{17+2*w}], v6 offset:{L_RED + 2048*w}")
        A("s_waitcnt lgkmcnt(2)")
        A("v_pk_add_f32 v[16:17], v[16:17], v[18:19]")
        A("s_waitcnt lgkmcnt(0)")
        A("v_pk_add_f32 v[20:21], v[20:21], v[22:23]")
        A("v_pk_add_f32 v[16:17], v[16:17], v[20:21]")
        A("v_and_or_b32 v16, v16, s48, v12")
        A("v_and_or_b32 v17, v17, s48, v12")
        A("buffer_store_dwordx2 v[16:17], v6, s[32:35], s46 offen" + (" " + x1pol if x1pol else ""))
        stamp(4)
        for n in range(16 - WB, 16): w2load(n)
        pk = WB if PK is None else PK
        after7 = 8 + (1 if 16 - WB >= 8 else 0)
        A(f"s_waitcnt vmcnt({min(max(pk, 0), after7) if pk > after7 else after7})")
        perms(raw2, frag2, 0)
        if pk < after7: A(f"s_waitcnt vmcnt({pk})")
        NB = 4 if NS == 4 else 8
        LB("L_x1poll" + sfx)
        for b in range(NB):
            if b and b % 2 == 0: A(f"s_add_u32 s47, s45, {b*2048}")
            A(f"buffer_load_dwordx2 v[{24+2*b}:{25+2*b}], v6, s[32:35], {'s45' if b < 2 else 's47'} offen offset:{(b%2)*2048} sc1")
        A("s_add_u32 s49, s49, 1")
        A("s_waitcnt vmcnt(0)")
        for r in range(24, 24+2*NB): A(f"v_xor_b32 v{r}, s54, v{r}")
        A("v_or3_b32 v8, v24, v25, v26")
        for r in range(27, 24+2*NB-1, 2): A(f"v_or3_b32 v8, v8, v{r}, v{r+1}")
        A(f"v_or_b32 v8, v8, v{24+2*NB-1}")
        A("v_and_b32 v8, 0xff, v8")
        A("v_cmp_ne_u32 vcc, 0, v8")
        A("s_cbranch_vccnz L_x1no" + sfx)
        LB("L_x1ok" + sfx)
        stamp(5)
        if NB == 8:
            A("v_pk_add_f32 v[24:25], v[24:25], v[32:33]")
            A("v_pk_add_f32 v[26:27], v[26:27], v[34:35]")
            A("v_pk_add_f32 v[28:29], v[28:29], v[36:37]")
            A("v_pk_add_f32 v[30:31], v[30:31], v[38:39]")
        S = []
        def B(s): S.append("  " + s)
        S.append("L_x1no" + sfx + ":")
        B(f"s_cmp_lt_u32 s49, {NF}")
        B("s_cbranch_scc1 L_x1poll" + sfx)
        B("v_lshlrev_b32 v8, 1, v6")
        B("s_lshl_b32 s50, s20, 15")
        B("s_add_u32 s50, s50, %d" % O_EX1)
        B(f"s_cmp_lg_u32 s49, {NF}")
        B("s_cbranch_scc1 L_x1ns" + sfx)
        B("v_and_b32 v96, s48, v16")
        B("v_and_b32 v97, s48, v17")
        B("v_mov_b32 v98, s40")
        B("v_mov_b32 v99, s40")
        B("s_lshl_b32 s47, s21, 12")
        B("s_add_u32 s47, s47, s50")
        B("buffer_store_dwordx4 v[96:99], v8, s[32:35], s47 offen sc1")
        B("s_waitcnt vmcnt(0)")
        S.append("L_x1ns" + sfx + ":")
        for b in range(NB):
            B(f"buffer_load_dwordx4 v[{96+4*b}:{99+4*b}], v8, s[32:35], s50 offen sc1")
            B("s_add_u32 s50, s50, 4096")
        B("s_waitcnt vmcnt(0)")
        B("v_mov_b32 v8, 0")
        for b in range(NB):
            B(f"v_xor_b32 v{98+4*b}, s40, v{98+4*b}")
            B(f"v_xor_b32 v{99+4*b}, s40, v{99+4*b}")
            B(f"v_or3_b32 v8, v8, v{98+4*b}, v{99+4*b}")
            B(f"v_mov_b32 v{24+2*b}, v{96+4*b}")
            B(f"v_mov_b32 v{25+2*b}, v{97+4*b}")
        B("v_cmp_ne_u32 vcc, 0, v8")
        B("s_cbranch_vccz L_x1ok" + sfx)
        B("s_cmp_lt_u32 s49, %d" % SPIN)
        B("s_cbranch_scc1 L_x1poll" + sfx)
        if sfx == "b": S.append("L_last:")
        B("s_branch L_x1ok" + sfx)
        slow.extend(S)
    cpath(4, "a", KT, WA, KB)
    LB("L_h")
    A("v_pk_add_f32 v[24:25], v[24:25], v[28:29]   ; gate")
    A("v_pk_add_f32 v[26:27], v[26:27], v[30:31]   ; up")
    A("v_cvt_pk_bf16_f32 v8, v24, v25")
    A("v_cvt_pk_bf16_f32 v12, v26, v27")
    A("v_lshlrev_b32 v18, 16, v8")
    A("v_and_b32 v19, 0xffff0000, v8")
    A("v_mul_f32 v20, s51, v18")
    A("v_mul_f32 v21, s51, v19")
    A("v_exp_f32 v20, v20")
    A("v_exp_f32 v21, v21")
    A("v_lshlrev_b32 v14, 16, v12")
    A("v_add_f32 v20, 1.0, v20")
    A("v_add_f32 v21, 1.0, v21")
    A("v_rcp_f32 v20, v20")
    A("v_rcp_f32 v21, v21")
    A("v_and_b32 v15, 0xffff0000, v12")
    A("v_mul_f32 v18, v18, v20")
    A("v_mul_f32 v19, v19, v21")
    A("v_cvt_pk_bf16_f32 v8, v18, v19        ; silu")
    A("v_lshlrev_b32 v18, 16, v8")
    A("v_and_b32 v19, 0xffff0000, v8")
    A("v_mul_f32 v18, v18, v14")
    A("v_mul_f32 v19, v19, v15")
    A("v_cvt_pk_bf16_f32 v8, v18, v19        ; h")
    A(f"ds_write_b32 v7, v8 offset:{L_HB}")
    perms(raw2, frag2, 1)
    A("s_waitcnt lgkmcnt(0)")
    A("s_barrier                            ; B4")
    for s in range(2):
        A(f"ds_read_b128 v[{HA+4*s}:{HA+4*s+3}], v13 offset:{L_HB + 512*s}")
    for s in range(2):
        A(f"s_waitcnt lgkmcnt({1-s})")
        for j in range(4):
            c = "0" if s == 0 else f"v[{ACC+4*j}:{ACC+4*j+3}]"
            A(f"v_mfma_f32_16x16x32_bf16 v[{ACC+4*j}:{ACC+4*j+3}], v[{HA+4*s}:{HA+4*s+3}], v[{frag2(s,j)}:{frag2(s,j)+3}], {c}")
    A("s_mov_b32 exec_lo, -1")
    A("s_mov_b32 exec_hi, 0")
    A("s_nop 5")
    for r in range(4):
        for j in range(4):
            A(f"v_and_or_b32 v{20+4*r+j}, v{ACC+4*j+r}, s48, v9")
        A(f"buffer_store_dwordx4 v[{20+4*r}:{23+4*r}], v11, s[32:35], s52 offen sc1")
        if r < 3: A("s_add_u32 s52, s52, %d" % (32*7168))
    stamp(6)
    A("s_waitcnt vmcnt(0)")
    A("s_barrier                            ; B5")
    stamp(7)
    if stamps: A("s_branch L_fin")
    else: A("s_endpgm")
    LB("L_cb")
    cpath(2, "b", KT3, WA3 if WA3 is not None else WA, KB3)
    A("s_branch L_h")

    def rsetup():
        A("s_mov_b64 s[32:33], s[18:19]")
        A("s_mov_b32 s34, %d" % WS_REC)
        A("s_mov_b32 s35, 0x20000")
        A("s_mov_b64 s[36:37], s[14:15]")
        A("s_mov_b32 s38, 524288")
        A("s_mov_b32 s39, 0x20000")
        A("v_and_b32 v4, 7, v0")
        if stamps:
            for i in range(2, 8): A(f"s_mov_b32 s{60+2*i}, 0")
            A("s_mov_b32 s59, 0")
            A("s_mov_b32 s49, 0")
    def idload():
        A("s_lshl_b32 s53, s50, 11")
        A(f"buffer_load_dwordx4 v[{IDR}:{IDR+3}], v14, s[28:31], s53 offen{xpol}")
        A(f"buffer_load_dwordx4 v[{IDR+4}:{IDR+7}], v14, s[28:31], s53 offen offset:1024{xpol}")
    def pretouch():
        A("s_lshl_b32 s45, s20, 14")
        A("s_lshl_b32 s46, s21, 11")
        A("s_add_u32 s46, s46, s45")
        A("s_add_u32 s48, s46, %d               ; own L2-local block" % O_EX1F)
        A("buffer_load_dwordx4 v[24:27], v14, s[32:35], s48 offen")
        A("buffer_load_dwordx4 v[28:31], v14, s[32:35], s48 offen offset:1024")
        if tt: A("v_mov_b32 v32, 0")
        if "o" in tt: A("buffer_load_dword v33, v32, s[36:39], s53 offen")
        if "e" in tt:
            A("s_mov_b32 s45, 0x2f0000")
            A("buffer_load_dword v35, v32, s[32:35], s45 offen")
        if "d" in tt:
            A("s_lshl_b32 s45, s20, 17")
            A("v_mov_b32 v36, s45")
            A("global_load_dword v37, v36, s[12:13]")
    def touches():
        A("s_lshl_b32 s45, s2, 11")
        A("s_lshl_b32 s46, s20, 17")
        A("s_mov_b32 s47, 0x2f0000")
        A("s_load_dword s41, s[4:5], s45")
        A("s_load_dword s42, s[12:13], s46")
        A("s_load_dword s43, s[14:15], s45")
        A("s_load_dword s44, s[18:19], s47")
        A("s_waitcnt lgkmcnt(0)")
    def fwait(nm, off):
        A("s_mov_b32 s49, 0")
        LB("L_fwait" + nm)
        if fsleep: A(f"s_sleep {fsleep}")
        A(f"ds_read_b32 v9, v8 offset:{off}")
        A("s_add_u32 s49, s49, 1")
        A("s_cmp_ge_u32 s49, %d" % SPIN)
        A("s_waitcnt lgkmcnt(0)")
        A("v_cmp_eq_u32 vcc, 0, v9")
        A("s_cbranch_scc1 L_fok" + nm)
        A("s_cbranch_vccnz L_fwait" + nm)
        LB("L_fok" + nm)
    def psetup():
        A("v_mul_u32_u24 v12, %d, v0            ; poll offset" % LS)
        A("s_mul_i32 s47, s22, %d" % REPS)
        A("s_add_u32 s47, s47, %d               ; this die's replica" % O_IDX)
        A("v_lshrrev_b32 v11, 3, v0")
        A("s_lshr_b32 s45, s21, 1")
        A("s_sub_u32 s46, 10, s57")
        A("s_lshl_b32 s45, s45, s46")
    LB("L_w5")
    if st:
        A("v_mov_b32 v8, 0")
        A(f"ds_write_b32 v8, v8 offset:{L_FLAG + 8}")
        fwait("0", L_FLAG + 8)
        touches()
    A("s_endpgm")
    LB("L_r")
    A("v_mov_b32 v8, 0")
    A("v_mov_b32 v9, 0")
    A(f"ds_write_b64 v8, v[8:9] offset:{L_FLAG}")
    A("s_mov_b32 s50, s2                    ; slice")
    A("s_mov_b64 s[28:29], s[4:5]")
    rsetup()
    stamp(1)
    psetup()
    if SA is None: fwait("a", L_FLAG)
    else:
        if E1:
            A("s_waitcnt vmcnt(0) lgkmcnt(0)")
            stamp(1)
        if SA: A(f"s_sleep {SA}")
        A("s_waitcnt lgkmcnt(0)")
    A("s_add_u32 s40, s40, 1")
    stamp(2)
    if NP:
        for k in range(NP):
            if k: A(f"s_sleep {DL}")
            A(f"buffer_load_dwordx2 v[{16+2*k}:{17+2*k}], v12, s[32:35], s47 offen sc1")
        A("s_mov_b32 s49, 0")
        LB("L_ipolln")
        for k in range(NP):
            A("s_add_u32 s49, s49, 1")
            A(f"s_waitcnt vmcnt({NP-1})")
            A(f"v_cmp_ne_u32 vcc, s40, v{17+2*k}")
            A(f"v_mov_b32 v8, v{16+2*k}")
            A("s_cbranch_vccz L_iok")
            A(f"buffer_load_dwordx2 v[{16+2*k}:{17+2*k}], v12, s[32:35], s47 offen sc1")
        A("s_cmp_lt_u32 s49, %d" % SPIN)
        A("s_cbranch_scc1 L_ipolln")
        A("s_branch L_iok")
    elif KB is not None or SB is not None:
        A(f"buffer_load_dwordx2 v[16:17], v12, s[32:35], s47 offen sc1")
        if SB is None: fwait("b", L_FLAG + 4)
        else: A(f"s_sleep {SB}")
        A("s_mov_b32 s49, 0")
        LB("L_ipoll2")
        A(f"buffer_load_dwordx2 v[18:19], v12, s[32:35], s47 offen sc1")
        A("s_add_u32 s49, s49, 1")
        A(f"s_waitcnt vmcnt(1)")
        A(f"v_cmp_ne_u32 vcc, s40, v17")
        A("v_mov_b32 v8, v16")
        A("s_cbranch_vccz L_iok")
        A(f"buffer_load_dwordx2 v[16:17], v12, s[32:35], s47 offen sc1")
        A("s_add_u32 s49, s49, 1")
        A("s_cmp_ge_u32 s49, %d" % SPIN)
        A(f"s_waitcnt vmcnt(1)")
        A(f"v_cmp_ne_u32 vcc, s40, v19")
        A("v_mov_b32 v8, v18")
        A("s_cbranch_scc1 L_iok")
        A("s_cbranch_vccnz L_ipoll2")
        A("s_branch L_iok")
    else:
        A("s_branch L_ip0")
    LB("L_route")
    stamp(1)
    rsetup()
    A("s_and_b32 s45, s52, 7")
    A("s_lshl_b32 s46, s45, 3")
    A("s_lshr_b32 s52, s52, 3               ; batch")
    A("s_add_u32 s46, s46, s52")
    A("s_mul_i32 s46, s46, %d" % LS)
    A("s_add_u32 s46, s46, %d               ; slot" % O_IDX)
    A("s_lshl_b32 s45, s45, 2")
    A("v_mul_u32_u24 v5, %d, v0             ; replica offset" % REPS)
    A("v_lshrrev_b32 v10, 5, v0")
    A("v_bfe_u32 v11, v0, 4, 1")
    A("v_lshl_add_u32 v10, v11, 1, v10")
    A("v_add_u32 v10, s45, v10")
    A("v_xor_b32 v10, 31, v10")
    for t in range(4):
        for hlf in range(2):
            A(f"s_waitcnt vmcnt({7 - 2*t - hlf})")
            for k in range(4):
                c = "0" if (hlf == 0 and k == 0) else f"v{6+t}"
                A(f"v_dot2_f32_bf16 v{6+t}, v{XR+8*t+4*hlf+k}, v{16+4*hlf+k}, {c}")
    A("s_waitcnt lgkmcnt(0)")
    A("s_add_u32 s40, s40, 1")
    A("s_nop 0")
    A("v_permlane32_swap_b32 v6, v7")
    A("v_permlane32_swap_b32 v8, v9")
    A("v_add_f32 v6, v6, v7")
    A("v_add_f32 v8, v8, v9")
    A("s_nop 1")
    A("v_permlane16_swap_b32 v6, v8")
    A("v_add_f32 v6, v6, v8")
    A("s_nop 1")
    A("v_add_f32_dpp v6, v6, v6 quad_perm:[1,0,3,2] row_mask:0xf bank_mask:0xf")
    A("s_nop 1")
    A("v_add_f32_dpp v6, v6, v6 quad_perm:[2,3,0,1] row_mask:0xf bank_mask:0xf")
    A("s_nop 1")
    A("v_add_f32_dpp v6, v6, v6 row_half_mirror row_mask:0xf bank_mask:0xf")
    A("s_nop 1")
    A("v_add_f32_dpp v6, v6, v6 row_mirror row_mask:0xf bank_mask:0xf")
    A("v_cvt_pk_bf16_f32 v7, v6, v6")
    A("v_and_b32 v7, 0xffff0000, v7          ; r (bf16)")
    A("v_ashrrev_i32 v6, 31, v7")
    A("v_or_b32 v6, 0x80000000, v6")
    A("v_xor_b32 v6, v6, v7")
    A("v_cmp_o_f32 vcc, v7, v7")
    A("v_and_b32 v6, 0xffff0000, v6")
    A("s_nop 0")
    A("v_cndmask_b32 v6, 0, v6, vcc")
    A("v_or_b32 v6, v10, v6")
    A("v_mov_b32 v7, v6")
    A("s_nop 1")
    A("v_permlane16_swap_b32 v6, v7")
    A("v_max_u32 v6, v6, v7")
    A("v_mov_b32 v7, v6")
    A("s_nop 1")
    A("v_permlane32_swap_b32 v6, v7")
    A("v_max_u32 v6, v6, v7")
    A("v_mov_b32 v7, s40")
    A("s_mov_b64 exec, 0xff")
    A("buffer_store_dwordx2 v[6:7], v5, s[32:35], s46 offen sc1")
    A("s_mov_b64 exec, -1")
    A("s_barrier                            ; B0b")
    stamp(2)
    A("s_setprio 0")
    A("s_cmp_eq_u32 s3, 4")
    A("s_cbranch_scc1 L_r4")
    if st: touches()
    A("s_and_b32 s45, s2, 0xe7")
    A("s_cmp_eq_u32 s45, 0x%x" % (0xe0 + RD[0]))
    A("s_cbranch_scc0 L_end")
    A("s_add_i32 s50, s2, %d                 ; slice" % (4 - RD[0]))
    idload()
    A("s_waitcnt vmcnt(0)")
    A("s_branch L_b2")
    LB("L_r4")
    A("s_mov_b32 s50, s2                    ; slice")
    psetup()
    if rack: A(f"s_waitcnt vmcnt(0)")
    LB("L_ip0")
    A("s_mov_b32 s49, 0")
    LB("L_ipoll")
    A(f"buffer_load_dwordx2 v[8:9], v12, s[32:35], s47 offen sc1")
    A("s_add_u32 s49, s49, 1")
    A("s_cmp_ge_u32 s49, %d" % SPIN)
    A(f"s_waitcnt vmcnt(0)")
    A(f"v_cmp_ne_u32 vcc, s40, v9")
    A("s_cbranch_scc1 L_iok")
    A("s_cbranch_vccnz L_ipoll")
    LB("L_iok")
    stamp(3)
    if stamps: A("s_mov_b32 s59, s49")
    A("s_mov_b32 m0, %d" % L_XS)
    A("s_nop 0")
    A("v_max_u32_dpp v8, v8, v8 row_ror:8 row_mask:0xf bank_mask:0xf")
    A("v_mov_b32 v9, v8")
    A("s_cmp_eq_u32 s57, 1")
    A("s_nop 0")
    A("v_permlane16_swap_b32 v8, v9")
    A("v_max_u32 v8, v8, v9")
    A("v_mov_b32 v9, v8")
    A("s_nop 1")
    A("v_permlane32_swap_b32 v8, v9")
    A("v_max_u32 v8, v8, v9")
    A("v_and_b32 v10, 31, v8")
    A("v_xor_b32 v10, 31, v10")
    A("v_lshl_add_u32 v10, v4, 5, v10       ; row")
    A("v_lshlrev_b32 v10, 11, v10")
    A("v_lshl_add_u32 v10, v11, 4, v10      ; + chunk*16")
    A("v_lshlrev_b32 v9, 2, v4")
    for i in range(8):
        if i == 4: A("s_cbranch_scc1 L_dmadone")
        A(f"buffer_load_dwordx4 v10, s[28:31], s45 offen{xpol} lds")
        if i < 7:
            A("s_mov_b32 m0, %d" % (L_XS + 1024*(i+1)))
            A("v_add_u32 v10, 128, v10")
    LB("L_dmadone")
    A(f"ds_write_b32 v9, v8 offset:{L_KEY}")
    idload()
    pretouch()
    LB("L_b2")
    A("s_lshr_b32 s51, s50, 5")
    A("s_lshl_b32 s45, s51, 2")
    A("v_mov_b32 v5, s45")
    A(f"s_waitcnt vmcnt({4 + len(tt)}) lgkmcnt(0)")
    A("s_barrier                            ; B2")
    stamp(4)
    A(f"ds_read_b32 v6, v5 offset:{L_KEY}")
    A(f"s_waitcnt vmcnt({2 + len(tt)})")
    for r in range(IDR, IDR+8):
        A(f"v_lshlrev_b32 v16, 16, v{r}")
        A(f"v_and_b32 v17, 0xffff0000, v{r}")
        A("v_pk_fma_f32 v[16:17], v[16:17], 0, v[16:17] op_sel_hi:[1,0,1]")
        A(f"v_cvt_pk_bf16_f32 v{r}, v16, v17    ; x + x*0")
    A("s_and_b32 s41, s40, 0xff")
    A("v_lshrrev_b32 v7, 5, v0")
    A("v_bfe_u32 v8, v0, 4, 1")
    A("v_lshl_add_u32 v7, v8, 1, v7         ; e")
    A("v_lshl_add_u32 v7, v4, 2, v7         ; 4*pos + e")
    A("s_and_b32 s46, s50, 31")
    A("s_lshl_b32 s45, s46, 5")
    A("v_add_u32 v7, s45, v7                ; column")
    A("s_waitcnt lgkmcnt(0)")
    A("s_barrier                            ; B3")
    A("v_and_b32 v8, 31, v6")
    A("v_xor_b32 v8, 31, v8")
    A("v_cmp_ne_u32 vcc, s46, v8")
    A("s_lshl_b32 s45, s51, 5")
    A("v_add_u32 v8, s45, v8                ; row")
    A("v_lshlrev_b32 v8, 10, v8")
    A("v_add_u32 v7, v8, v7")
    A("v_lshlrev_b32 v7, 1, v7")
    A("buffer_load_ushort v9, v7, s[28:31], 0 offen")
    A("s_cbranch_vccz L_sel")
    A(f"buffer_store_dwordx4 v[{IDR}:{IDR+3}], v14, s[36:39], s53 offen{outpol}")
    A(f"buffer_store_dwordx4 v[{IDR+4}:{IDR+7}], v14, s[36:39], s53 offen offset:1024{outpol}")
    LB("L_sel")
    A("v_lshrrev_b32 v10, 16, v6")
    A("v_xor_b32 v11, 0xffff, v10")
    A("v_and_b32 v12, 0x7fff, v10")
    A("v_cmp_gt_i32 vcc, 0, v6")
    A("s_mov_b32 s45, 0xbfb8aa3b")
    A("s_nop 0")
    A("v_cndmask_b32 v10, v11, v12, vcc")
    A("v_lshlrev_b32 v10, 16, v10           ; r")
    A("v_mul_f32 v10, s45, v10")
    A("v_exp_f32 v10, v10")
    A("s_nop 0")
    A("v_add_f32 v10, 1.0, v10")
    A("v_rcp_f32 v10, v10")
    A("s_nop 0")
    A("v_cvt_pk_bf16_f32 v10, v10, v10")
    A("v_and_b32 v10, 0xffff0000, v10       ; sigmoid")
    A("s_mul_i32 s46, s50, 7168")
    A("s_add_u32 s46, s46, %d" % O_EX2)
    A("s_add_u32 s47, s46, 4096")
    A("s_mov_b32 s49, 0")
    A("s_mov_b32 s44, 0x00ff00ff")
    A("s_mov_b32 s45, 0x00ff00ff")
    A("s_waitcnt vmcnt(0)")
    A("v_lshlrev_b32 v9, 16, v9             ; x")
    A("s_barrier                            ; B4")
    A("s_barrier                            ; B5")
    stamp(5)
    LB("L_x2poll")
    for i in range(7):
        so = "s46" if i < 4 else "s47"
        A(f"buffer_load_dwordx4 v[{32+4*i}:{35+4*i}], v14, s[32:35], {so} offen offset:{(i%4)*1024} sc1")
    A("s_add_u32 s49, s49, 1")
    for i in range(7):
        A(f"s_waitcnt vmcnt({6-i})")
        b = 32 + 4*i
        for r in range(b, b+4): A(f"v_xor_b32 v{r}, s41, v{r}")
        if i == 0:
            A(f"v_or3_b32 v15, v{b}, v{b+1}, v{b+2}")
            A(f"v_or_b32 v15, v15, v{b+3}")
        else:
            A(f"v_or3_b32 v15, v15, v{b}, v{b+1}")
            A(f"v_or3_b32 v15, v15, v{b+2}, v{b+3}")
            src = 32 if i == 1 else 16
            A(f"v_pk_add_f32 v[16:17], v[{src}:{src+1}], v[{b}:{b+1}]")
            A(f"v_pk_add_f32 v[18:19], v[{src+2}:{src+3}], v[{b+2}:{b+3}]")
    A("v_and_b32 v15, 0xff, v15")
    A("v_cmp_ne_u32 vcc, 0, v15")
    A("s_cbranch_vccz L_x2ok")
    A("s_cmp_lt_u32 s49, %d" % SPIN)
    A("s_cbranch_scc1 L_x2poll")
    LB("L_x2ok")
    stamp(6)
    A("v_permlane32_swap_b32 v16, v17")
    A("v_permlane32_swap_b32 v18, v19")
    A("v_add_f32 v16, v16, v17")
    A("v_add_f32 v18, v18, v19")
    A("s_nop 1")
    A("v_permlane16_swap_b32 v16, v18")
    A("v_add_f32 v16, v16, v18")
    A("s_nop 1")
    A("v_add_f32_dpp v16, v16, v16 row_ror:8 row_mask:0xf bank_mask:0xf")
    A("s_mov_b64 exec, s[44:45]")
    A("v_cvt_pk_bf16_f32 v16, v16, v16")
    A("v_and_b32 v16, 0xffff0000, v16       ; y")
    A("v_mul_f32 v16, v16, v10")
    A("v_cvt_pk_bf16_f32 v16, v16, v16")
    A("v_and_b32 v16, 0xffff0000, v16       ; y*sigmoid")
    A("v_fma_f32 v16, v9, 0, v16            ; upd = x*0 + y")
    A("v_add_f32 v16, v9, v16")
    A("v_cvt_pk_bf16_f32 v16, v16, v16")
    A(f"buffer_store_short v16, v7, s[36:39], 0 offen{outpol}")
    A("s_cmp_lg_u32 s50, 0")
    A("s_cbranch_scc1 L_noep")
    A("v_mov_b32 v18, s40")
    A("v_mov_b32 v17, 0")
    A("s_mov_b64 exec, 1")
    A("buffer_store_dword v18, v17, s[32:35], 0 offen sc1")
    LB("L_noep")
    stamp(7)
    LB("L_fin")
    import diag
    if dg: diag.epilogue(A, LB, dg)
    elif gamp: diag.gamp(A, LB, gamp)
    elif stamps: diag.dump(A, LB)
    LB("L_end")
    A("s_endpgm")
    L.extend(slow)
    body = "\n".join(L)
    return f"""{HEAD}; @launch grid=(256,1,1) block=(384,1,1) lds={LDS_BYTES}
.amdgcn_target "amdgcn-amd-amdhsa--gfx950"
.text
.globl {KN}
.p2align 8
.type {KN},@function
{KN}:
{body}
.section .rodata,"a"
.p2align 6
.amdhsa_kernel {KN}
  .amdhsa_next_free_vgpr 160
  .amdhsa_next_free_sgpr 96
  .amdhsa_accum_offset 160
  .amdhsa_group_segment_fixed_size 0
  .amdhsa_kernarg_size 64
  .amdhsa_user_sgpr_count 2
  .amdhsa_user_sgpr_kernarg_segment_ptr 1
  .amdhsa_system_sgpr_workgroup_id_x 1
  .amdhsa_float_denorm_mode_32 3
.end_amdhsa_kernel
"""
if __name__ == "__main__":
    import sys, json
    kw = json.loads(sys.argv[2]) if len(sys.argv) > 2 else {}
    open(sys.argv[1] if len(sys.argv) > 1 else "standalone__moe_arch_mod__sampling.s", "w").write(gen(**kw))
```

```python
def epilogue(A, LB, stats, nwg=252, gatherwave=4, invalid=(228,236,244,252), extra=("s49","s59")):
    A("s_waitcnt lgkmcnt(0) vmcnt(0)")
    A("s_mov_b64 exec, -1")
    A("s_barrier")
    A("s_lshl_b32 s20, s3, 8")
    A("s_add_u32 s20, s20, s2")
    A("s_lshl_b32 s20, s20, 6")
    A("s_add_u32 s18, s18, 0x8000000")
    A("s_addc_u32 s19, s19, 0")
    for i in range(8): A(f"v_mov_b32 v{16+i}, s{60+2*i}")
    A(f"v_mov_b32 v24, {extra[0]}")
    A(f"v_mov_b32 v25, {extra[1]}")
    A("v_mov_b32 v3, s20")
    A("s_mov_b64 exec, 1")
    A("global_store_dwordx4 v3, v[16:19], s[18:19] sc1")
    A("global_store_dwordx4 v3, v[20:23], s[18:19] offset:16 sc1")
    A("global_store_dwordx2 v3, v[24:25], s[18:19] offset:32 sc1")
    A("s_waitcnt vmcnt(0)")
    A("s_barrier")
    A(f"s_cmp_lg_u32 s3, {gatherwave}")
    A("s_cbranch_scc1 L_end")
    A("v_mov_b32 v3, 0")
    A("v_mov_b32 v18, 1")
    A("global_atomic_add v19, v3, v18, s[16:17] offset:128 sc0 sc1")
    A("s_waitcnt vmcnt(0)")
    A("v_readfirstlane_b32 s20, v19")
    A(f"s_cmp_lg_u32 s20, {nwg-1}")
    A("s_cbranch_scc1 L_end")
    A("s_mov_b64 exec, -1")
    A("v_mbcnt_lo_u32_b32 v0, -1, 0")
    A("v_mbcnt_hi_u32_b32 v0, -1, v0")
    for i in range(4):
        A(f"v_add_u32 v{4+i}, {64*i}, v0")
        for bad in invalid:
            if bad // 64 == i:
                A(f"s_mov_b32 s20, {bad}")
                A(f"v_cmp_eq_u32 vcc, s20, v{4+i}")
                A("s_nop 1")
                A(f"v_cndmask_b32 v{4+i}, v{4+i}, {bad & 7}, vcc")
        A(f"v_lshlrev_b32 v{4+i}, 6, v{4+i}")
    def gather(role, k, op, dst):
        A(f"s_add_u32 s22, s18, {role*256*64 + 4*k}")
        A("s_addc_u32 s23, s19, 0")
        for i in range(4): A(f"global_load_dword v{8+i}, v{4+i}, s[22:23] sc1")
        A("s_waitcnt vmcnt(0)")
        if op == "min":
            for i in range(4):
                A(f"v_cmp_eq_u32 vcc, 0, v{8+i}")
                A("s_nop 1")
                A(f"v_cndmask_b32 v{8+i}, v{8+i}, -1, vcc")
        o = f"v_{op}_u32"
        A(f"{o} v8, v8, v9"); A(f"{o} v10, v10, v11"); A(f"{o} v8, v8, v10")
        A("s_nop 1")
        A(f"{o}_dpp v8, v8, v8 row_ror:8 row_mask:0xf bank_mask:0xf")
        A("v_mov_b32 v9, v8"); A("s_nop 1")
        A("v_permlane16_swap_b32 v8, v9"); A(f"{o} v8, v8, v9")
        A("v_mov_b32 v9, v8"); A("s_nop 1")
        A("v_permlane32_swap_b32 v8, v9"); A(f"{o} v{dst}, v8, v9")
    gather(0, 0, "min", 30)
    gather(4, 0, "min", 31)
    A("v_min_u32 v30, v30, v31")
    A("s_nop 1")
    A("v_min_u32_dpp v30, v30, v30 row_ror:4 row_mask:0xf bank_mask:0xf")
    A("s_nop 1")
    A("v_min_u32_dpp v30, v30, v30 row_ror:2 row_mask:0xf bank_mask:0xf")
    A("s_nop 1")
    A("v_min_u32_dpp v30, v30, v30 row_ror:1 row_mask:0xf bank_mask:0xf")
    for q, (role, k, op) in enumerate(stats):
        gather(role, k, op, 32)
        if k < 8:
            A("v_sub_u32 v32, v32, v30")
            A("v_add_u32 v32, 2, v32")
            A("v_ashrrev_i32 v32, 2, v32")
            A("v_max_i32 v32, 0, v32")
        A("v_min_u32 v32, 255, v32")
        A(f"v_add_u32 v33, {8*q}, v0")
        A("s_mov_b64 exec, 0xff")
        A("global_store_byte v33, v32, s[16:17]")
        A("s_mov_b64 exec, -1")

def dump(A, LB):
    A("s_waitcnt lgkmcnt(0)")
    A("s_mov_b64 exec, -1")
    A("s_lshl_b32 s20, s3, 8")
    A("s_add_u32 s20, s20, s2")
    A("s_lshl_b32 s20, s20, 6")
    A("s_add_u32 s20, s20, 0x8000000")
    A("s_add_u32 s18, s18, s20")
    A("s_addc_u32 s19, s19, 0")
    for i in range(8): A(f"v_mov_b32 v{16+i}, s{60+2*i}")
    A("v_mov_b32 v24, s49")
    A("v_mov_b32 v25, s59")
    A("v_mov_b32 v3, 0")
    A("s_mov_b64 exec, 1")
    A("global_store_dwordx4 v3, v[16:19], s[18:19]")
    A("global_store_dwordx4 v3, v[20:23], s[18:19] offset:16")
    A("global_store_dwordx2 v3, v[24:25], s[18:19] offset:32")

def gamp(A, LB, g):
    k, wv, fac, cnt = g[:4]
    die = g[4] if len(g) > 4 else None
    A("s_waitcnt lgkmcnt(0) vmcnt(0)")
    A("s_mov_b64 exec, -1")
    A("s_barrier")
    A(f"s_cmp_lg_u32 s3, {wv}")
    A("s_cbranch_scc1 L_end")
    A("s_mov_b64 exec, 1")
    A("s_not_b32 s20, s60")
    A("v_mov_b32 v16, s20")
    A(f"v_mov_b32 v17, s{60+2*k}" if k >= 0 else f"v_mov_b32 v17, s{49 if k == -1 else 59}")
    if die is not None:
        A("s_and_b32 s21, s2, 7")
        A(f"s_cmp_eq_u32 s21, {die}")
        A("s_cselect_b32 s21, -1, 0")
        A("v_and_b32 v17, s21, v17")
    A("v_mov_b32 v3, 0")
    A("v_mov_b32 v18, 1")
    A("global_atomic_umax v3, v16, s[16:17] sc1")
    A("global_atomic_umax v3, v17, s[16:17] offset:64 sc1")
    A("s_waitcnt vmcnt(0)")
    A("global_atomic_add v19, v3, v18, s[16:17] offset:128 sc0 sc1")
    A("s_waitcnt vmcnt(0)")
    A("v_readfirstlane_b32 s20, v19")
    A(f"s_cmp_lg_u32 s20, {cnt-1}")
    A("s_cbranch_scc1 L_end")
    A("v_mov_b32 v18, 0")
    A("global_atomic_umax v16, v3, v18, s[16:17] sc0 sc1")
    A("global_atomic_umax v17, v3, v18, s[16:17] offset:64 sc0 sc1")
    A("s_waitcnt vmcnt(0)")
    A("v_readfirstlane_b32 s20, v16")
    A("v_readfirstlane_b32 s21, v17")
    A("s_not_b32 s20, s20")
    if k >= 0: A("s_sub_u32 s20, s21, s20")
    else: A("s_mov_b32 s20, s21")
    A("v_mov_b32 v18, s20")
    A("global_store_dword v3, v18, s[16:17] offset:4")
    A("s_min_u32 s20, s20, 3000")
    A(f"s_mul_i32 s20, s20, {fac}")
    A("s_memrealtime s[22:23]")
    A("s_waitcnt lgkmcnt(0)")
    LB("L_amp")
    A("s_memrealtime s[24:25]")
    A("s_waitcnt lgkmcnt(0)")
    A("s_sub_u32 s21, s24, s22")
    A("s_cmp_lt_u32 s21, s20")
    A("s_cbranch_scc1 L_amp")

def gpair(A, LB, g):
    da, db, cnt = g
    A("s_waitcnt lgkmcnt(0) vmcnt(0)")
    A("s_mov_b64 exec, -1")
    A("s_barrier")
    A("s_cmp_lg_u32 s3, 4")
    A("s_cbranch_scc1 L_end")
    A("s_mov_b64 exec, 1")
    A("s_not_b32 s20, s60")
    A("v_mov_b32 v16, s20")
    A("s_and_b32 s21, s2, 7")
    A(f"s_cmp_eq_u32 s21, {da}")
    A("s_cselect_b32 s22, s20, 0")
    A(f"s_cmp_eq_u32 s21, {db}")
    A("s_cselect_b32 s23, s20, 0")
    A("v_mov_b32 v17, s22")
    A("v_mov_b32 v20, s23")
    A("v_mov_b32 v3, 0")
    A("v_mov_b32 v18, 1")
    A("global_atomic_umax v3, v16, s[16:17] sc1")
    A("global_atomic_umax v3, v17, s[16:17] offset:64 sc1")
    A("global_atomic_umax v3, v20, s[16:17] offset:192 sc1")
    A("s_waitcnt vmcnt(0)")
    A("global_atomic_add v19, v3, v18, s[16:17] offset:128 sc0 sc1")
    A("s_waitcnt vmcnt(0)")
    A("v_readfirstlane_b32 s20, v19")
    A(f"s_cmp_lg_u32 s20, {cnt-1}")
    A("s_cbranch_scc1 L_end")
    A("v_mov_b32 v18, 0")
    A("global_atomic_umax v16, v3, v18, s[16:17] sc0 sc1")
    A("global_atomic_umax v17, v3, v18, s[16:17] offset:64 sc0 sc1")
    A("global_atomic_umax v20, v3, v18, s[16:17] offset:192 sc0 sc1")
    A("s_waitcnt vmcnt(0)")
    A("v_readfirstlane_b32 s20, v16")
    A("v_readfirstlane_b32 s21, v17")
    A("v_readfirstlane_b32 s22, v20")
    A("s_sub_u32 s21, s20, s21")
    A("s_sub_u32 s22, s20, s22")
    for r in (21, 22):
        A(f"s_add_u32 s{r}, s{r}, 2")
        A(f"s_lshr_b32 s{r}, s{r}, 2")
        A(f"s_min_u32 s{r}, s{r}, 31")
    A("s_lshl_b32 s22, s22, 5")
    A("s_add_u32 s20, s21, s22")
    A("v_mov_b32 v18, s20")
    A("global_store_dword v3, v18, s[16:17] offset:4")
    A("s_mul_i32 s20, s20, 200")
    A("s_memrealtime s[22:23]")
    A("s_waitcnt lgkmcnt(0)")
    LB("L_amp")
    A("s_memrealtime s[24:25]")
    A("s_waitcnt lgkmcnt(0)")
    A("s_sub_u32 s21, s24, s22")
    A("s_cmp_lt_u32 s21, s20")
    A("s_cbranch_scc1 L_amp")
```

```python
KN = "standalone__moe_arch_mod__sampling_kernel"
HEAD = open("standalone__moe_arch_mod__sampling.s.ref").read().split("; Override launch")[0]

O_IDX = 0x1000
O_EX1F = 0x20000
O_EX2 = 0x100000
O_EX1 = 0x300000
WS_REC = 0x500000
L_XS = 0
L_RED = 8192
L_HB = 16384
L_KEY = 17408
L_FLAG = 17408 + 32
LDS_BYTES = 17408 + 64
SPIN = 40000
NRX = 4

def gen(pol="nt", xpol="", D=10, LS=16, NF=12, stamps=False, outpol="", D0=3, WA=10, WM1=2, WM2=1, PK=None,
        KT=21, KT3=17, dg=None, gamp=None, cpf=3, tt="o", fsleep=1, cst1=False, WA3=None, rack=True, RD=(1,2,3,7), KB=None, KB3=None, SA=None, SB=None, E1=True, st=True, x1pol="", rst=True, K0=None, NP=0, DL=9, DI=None, rp=False, FS=0, RM=None, align=True, mx=True, x2d=0, x2s=0, x2ld="sc1", x2st="sc1", nob5=False, gpair=None):
    RM = {int(k): v for k, v in RM.items()} if RM else {d: i for i, d in enumerate(RD)}
    RD = list(RM)
    if gamp or dg or gpair: stamps = True
    L = []
    def A(s): L.append("  " + s)
    def LB(s): L.append(s + ":")
    def stamp(i):
        if stamps: A(f"s_memrealtime s[{60+2*i}:{61+2*i}]")
    pol = (" " + pol) if pol else ""
    xpol = (" " + xpol) if xpol else ""
    outpol = (" " + outpol) if outpol else ""
    REPS = 64 * LS
    XR = 80
    RAW = 16; FR = 80; XB = 96; ACC = 112; W2 = 128
    F2 = 40; HA = 72
    IDR = 40
    def raw(s, i): return RAW + 16*s + 2*i
    def frag(s, j): return (FR if s == 0 else RAW + 16*(s-1)) + 4*j
    def raw2(s, i): return W2 + 16*s + 2*i
    def frag2(s, j): return F2 + 16*s + 4*j
    def perms(rawf, fragf, s):
        for e in range(2):
            for p in range(4):
                A(f"v_perm_b32 v{fragf(s,2*e)+p}, v{rawf(s,2*p+1)+e}, v{rawf(s,2*p)+e}, s42")
            for p in range(4):
                A(f"v_perm_b32 v{fragf(s,2*e+1)+p}, v{rawf(s,2*p+1)+e}, v{rawf(s,2*p)+e}, s43")
    def w1load(n):
        s, i = divmod(n, 8)
        A(f"buffer_load_dwordx2 v[{raw(s,i)}:{raw(s,i)+1}], v3, s[24:27], s44 offen{pol}")
        A("s_addk_i32 s44, 7168" if i < 7 else "s_add_u32 s44, s44, %d" % (25*7168))
    def w2load(n):
        s, i = divmod(n, 8)
        p, b = divmod(i, 2)
        row = 2*s + (p >> 1) + 8*(p & 1) + 4*b
        A("s_add_u32 s47, s53, %d" % (row*2048))
        A(f"buffer_load_dwordx2 v[{raw2(s,i)}:{raw2(s,i)+1}], v10, s[28:31], s47 offen{pol}")

    stamp(0)
    A("s_cmp_ge_u32 s2, 256")
    A("s_cbranch_scc1 L_exit")
    A("s_load_dwordx16 s[4:19], s[0:1], 0")
    A("v_lshrrev_b32 v1, 6, v0")
    A("v_and_b32 v0, 63, v0                 ; lane")
    A("v_readfirstlane_b32 s3, v1           ; wave")
    A("s_and_b32 s22, s2, 7")
    A("s_lshr_b32 s23, s2, 3")
    A("s_add_u32 s56, s22, 3")
    A("s_and_b32 s56, s56, 7")
    A("s_lshr_b32 s20, s23, 2")
    A("s_and_b32 s21, s23, 3")
    A("s_cmp_eq_u32 s20, 7")
    A("s_cselect_b32 s20, s56, s20")
    A("s_cselect_b32 s44, 4, 0")
    A("s_add_u32 s21, s21, s44              ; q")
    A("s_cmp_lg_u32 s20, 7")
    A("s_cbranch_scc1 L_hastile")
    LB("L_exit")
    A("s_endpgm")
    LB("L_hastile")
    A("s_cmp_eq_u32 s20, s56")
    A("s_cselect_b32 s57, 1, 0")
    A("s_bitcmp1_b32 %d, s22" % sum(1 << d for d in RD))
    A("s_cselect_b32 s58, s57, 0")
    A("s_mul_i32 s44, s22, 7")
    A("s_add_u32 s20, s20, s44")
    A("s_mov_b32 s27, 0x20000")
    A("s_cmp_lt_u32 s3, 4")
    A("s_cbranch_scc1 L_c")
    A("s_mov_b32 s30, 524288")
    A("s_mov_b32 s31, 0x20000")
    A("v_lshlrev_b32 v14, 4, v0             ; lane*16")
    A("s_cmp_eq_u32 s58, 1")
    A("s_cbranch_scc1 L_rt")
    A("s_cmp_eq_u32 s3, 4")
    A("s_cbranch_scc0 L_w5")
    A("s_waitcnt lgkmcnt(0)")
    A("s_load_dword s40, s[18:19], 0        ; epoch")
    A("s_branch L_r")
    LB("L_rt")
    A("s_setprio 3")
    A("s_lshl_b32 s52, s22, 2")
    A("s_lshr_b32 s52, 0x%x, s52" % sum(i << (4*d) for d, i in RM.items()))
    A("s_and_b32 s52, s52, 3")
    A("s_lshl_b32 s52, s52, 3")
    A("s_add_u32 s52, s52, s21")
    A("s_lshl_b32 s52, s52, 1")
    A("s_add_u32 s52, s52, s3")
    A("s_sub_u32 s52, s52, 4")
    A("s_lshl_b32 s44, s52, 13")
    A("s_add_u32 s45, s44, 4096")
    A("s_movk_i32 s26, 2048")
    A("s_waitcnt lgkmcnt(0)")
    if rst:
        A("s_load_dword s41, s[4:5], s44")
        A("s_load_dword s42, s[6:7], 0")
    A("s_mov_b64 s[28:29], s[4:5]")
    A("s_mov_b64 s[24:25], s[6:7]")
    A("s_load_dword s40, s[18:19], 0        ; epoch")
    A(f"buffer_load_dwordx4 v[16:19], v14, s[24:27], 0 offen")
    A(f"buffer_load_dwordx4 v[20:23], v14, s[24:27], 0 offen offset:1024")
    for i in range(8):
        A(f"buffer_load_dwordx4 v[{XR+4*i}:{XR+4*i+3}], v14, s[28:31], {'s44' if i < 4 else 's45'} offen offset:{(i%4)*1024}{xpol}")
    A("s_barrier                            ; B0")
    A("s_branch L_route")
    LB("L_c")
    if cpf is not None:
        A("s_getpc_b64 s[46:47]")
        LB("L_pc")
        A(f"s_cmp_lg_u32 s3, {cpf}")
        A("s_cbranch_scc1 L_nopf")
        A("v_lshlrev_b32 v2, 7, v0")
        A("v_min_u32 v2, L_last - L_pc - 256, v2")
        A("global_load_dword v159, v2, s[46:47] offset:256")
        LB("L_nopf")
    A("s_mov_b32 s26, 7340032")
    A("v_lshrrev_b32 v1, 4, v0              ; g")
    A("v_and_b32 v2, 15, v0                 ; n")
    A("v_mul_u32_u24 v3, %d, v1" % (8*7168))
    A("v_lshl_add_u32 v3, v2, 3, v3         ; voffset")
    A("s_lshr_b32 s44, s21, 1")
    A("s_lshl_b32 s44, s44, 2")
    A("s_add_u32 s44, s44, s3")
    A("s_lshr_b32 s45, %d, s57" % (128*7168))
    A("s_mul_i32 s44, s44, s45")
    A("s_lshl_b32 s45, s20, 7")
    A("s_add_u32 s44, s44, s45              ; soffset")
    A("s_bitcmp1_b32 s21, 0")
    A("s_waitcnt lgkmcnt(0)")
    A("s_cselect_b64 s[24:25], s[10:11], s[8:9]")
    A("s_cmp_eq_u32 s58, 0")
    A("s_cbranch_scc1 L_nb0")
    A("s_barrier")
    LB("L_nb0")
    if not cst1: stamp(1)
    DI = DI or D
    for n in range(DI):
        w1load(n)
        if n == D0 - 1:
            A("s_cmp_eq_u32 s58, 0")
            A("s_cbranch_scc1 L_nb0b")
            A("s_barrier")
            LB("L_nb0b")
    A("s_load_dword s40, s[18:19], 0        ; epoch")
    if stamps:
        for i in range(2, 8): A(f"s_mov_b32 s{60+2*i}, 0")
        A("s_mov_b32 s59, 0")
    A("s_mov_b64 s[32:33], s[18:19]")
    A("s_mov_b32 s34, %d" % WS_REC)
    A("s_mov_b32 s35, 0x20000")
    A("s_mov_b32 s42, 0x05040100")
    A("s_mov_b32 s43, 0x07060302")
    A("v_and_b32 v8, 7, v0")
    A("v_lshl_add_u32 v13, v1, 3, v8")
    A("v_lshlrev_b32 v13, 4, v13")
    A("s_lshl_b32 s45, s3, 11")
    A("v_add_u32 v4, s45, v13")
    A("s_lshr_b32 s45, s45, s57")
    A("v_add_u32 v5, s45, v13")
    A("v_lshlrev_b32 v6, 3, v0")
    A("s_lshl_b32 s45, s3, 9")
    A("v_add_u32 v6, s45, v6                ; w*512 + lane*8")
    A("v_lshrrev_b32 v7, 1, v0")
    A("v_lshlrev_b32 v7, 4, v7")
    A("v_and_b32 v9, 1, v0")
    A("v_lshl_add_u32 v7, v9, 2, v7")
    A("s_lshr_b32 s45, s3, 1")
    A("s_lshl_b32 s45, s45, 9")
    A("s_and_b32 s46, s3, 1")
    A("s_lshl_b32 s46, s46, 3")
    A("s_add_u32 s45, s45, s46")
    A("v_add_u32 v7, s45, v7")
    A("s_mov_b64 s[28:29], s[12:13]")
    A("s_mov_b32 s30, 7340032")
    A("s_mov_b32 s31, 0x20000")
    A("v_lshlrev_b32 v10, 15, v1            ; g*16*2048")
    A("v_lshl_add_u32 v10, v2, 3, v10")
    A("v_lshrrev_b32 v11, 3, v2")
    A("v_lshl_add_u32 v11, v1, 7, v11       ; 4g*32 + (n>>3)")
    A("v_mul_u32_u24 v11, 7168, v11")
    A("v_lshl_add_u32 v11, v8, 4, v11       ; + (n&7)*16")
    A("s_lshl_b32 s53, s21, 2")
    A("s_lshr_b32 s53, s53, s57")
    A("s_add_u32 s53, s53, s3")
    A("s_lshr_b32 s45, s3, 1")
    A("s_and_b32 s45, s45, s57")
    A("s_lshl_b32 s45, s45, 30")
    A("v_or_b32 v10, s45, v10")
    A("v_or_b32 v11, s45, v11")
    A("s_mul_i32 s52, s53, %d" % (2*7168))
    A("s_lshl_b32 s46, s20, 7")
    A("s_add_u32 s52, s52, s46")
    A("s_add_u32 s52, s52, %d" % O_EX2)
    A("s_lshl_b32 s53, s53, 7")
    A("s_lshl_b32 s46, s20, 17              ; ct*64*2048")
    A("s_add_u32 s53, s53, s46")
    A("s_lshl_b32 s45, s20, 14")
    A("s_lshl_b32 s46, s21, 11")
    A("s_add_u32 s45, s45, %d               ; group base" % O_EX1F)
    A("s_add_u32 s46, s46, s45")
    A("s_mov_b32 s48, 0xffffff00")
    A("s_mov_b32 s51, 0xbfb8aa3b            ; -log2(e)")
    A("s_mov_b32 s49, 0")
    A("s_getreg_b32 s54, hwreg(HW_REG_XCC_ID, 0, 3)")
    A("v_mov_b32 v12, 1")
    depth = DI
    first = True
    for n in range(DI, 16):
        if depth < D and not first and (n - DI) % 2 == 1:
            depth += 1
        else:
            A(f"s_waitcnt vmcnt({depth-1})")
        first = False
        if n == DI and cst1: stamp(1)
        if n == KT and KT < 16 and SA is None: A(f"ds_write_b32 v12, v12 offset:{L_FLAG - 1}")
        if n == (K0 or DI): A(f"ds_write_b32 v12, v12 offset:{L_FLAG + 7}")
        w1load(n)
    assert depth == D
    A("s_cmp_eq_u32 s57, 1")
    A("s_cbranch_scc1 L_cb")

    slow = []
    def cpath(NS, sfx, K, WA, K2):
        NL = 8*NS
        WB = 16 - WA - WM1 - WM2
        assert WB >= 0
        done = 0
        if NS == 2: stamp(2)
        for n in range(16, NL + WA):
            A(f"s_waitcnt vmcnt({D-1})")
            if n < NL: w1load(n)
            else: w2load(n - NL)
            if n == K and SA is None and KT >= 16:
                A(f"ds_write_b32 v12, v12 offset:{L_FLAG - 1}")
            if n == K2:
                A(f"ds_write_b32 v12, v12 offset:{L_FLAG + 3}")
            if n == NL - 1: stamp(2)
            complete = n - D + 1
            while done < NS and 8*done + 8 <= complete:
                perms(raw, frag, done); done += 1
        A("s_waitcnt lgkmcnt(0)")
        A("s_add_u32 s40, s40, 1                ; tag32")
        A("s_and_b32 s41, s40, 0xff")
        A("s_lshl_b32 s55, s40, 3")
        A("s_and_b32 s55, s55, 0xf8")
        A("s_or_b32 s54, s54, s55")
        A("v_mov_b32 v9, s41")
        A("v_mov_b32 v12, s54")
        while done < NS:
            A(f"s_waitcnt vmcnt({NL + WA - 8*done - 8})")
            perms(raw, frag, done); done += 1
        A("s_barrier                            ; B2")
        stamp(3)
        for s in range(NS):
            A(f"ds_read_b128 v[{XB+4*s}:{XB+4*s+3}], v5 offset:{L_XS + 512*s}")
        for n in range(WA, WA + WM1): w2load(n)
        for s in range(NS):
            A(f"s_waitcnt lgkmcnt({NS-1-s})")
            for j in range(4):
                c = "0" if s == 0 else f"v[{ACC+4*j}:{ACC+4*j+3}]"
                A(f"v_mfma_f32_16x16x32_bf16 v[{ACC+4*j}:{ACC+4*j+3}], v[{frag(s,j)}:{frag(s,j)+3}], v[{XB+4*s}:{XB+4*s+3}], {c}")
        A("s_mov_b32 exec_lo, 0x00ff00ff")
        A("s_mov_b32 exec_hi, 0x00ff00ff")
        A("s_nop 2")
        for j in range(4):
            A(f"ds_write_b128 v4, v[{ACC+4*j}:{ACC+4*j+3}] offset:{L_RED + 512*j}")
        A("s_mov_b64 exec, -1")
        for n in range(WA + WM1, WA + WM1 + WM2): w2load(n)
        A("s_waitcnt lgkmcnt(0)")
        A("s_barrier                            ; B3")
        for w in range(4):
            A(f"ds_read_b64 v[{16+2*w}:{17+2*w}], v6 offset:{L_RED + 2048*w}")
        A("s_waitcnt lgkmcnt(2)")
        A("v_pk_add_f32 v[16:17], v[16:17], v[18:19]")
        A("s_waitcnt lgkmcnt(0)")
        A("v_pk_add_f32 v[20:21], v[20:21], v[22:23]")
        A("v_pk_add_f32 v[16:17], v[16:17], v[20:21]")
        A("v_and_or_b32 v16, v16, s48, v12")
        A("v_and_or_b32 v17, v17, s48, v12")
        A("buffer_store_dwordx2 v[16:17], v6, s[32:35], s46 offen" + (" " + x1pol if x1pol else ""))
        stamp(4)
        for n in range(16 - WB, 16): w2load(n)
        pk = WB if PK is None else PK
        after7 = 8 + (1 if 16 - WB >= 8 else 0)
        A(f"s_waitcnt vmcnt({min(max(pk, 0), after7) if pk > after7 else after7})")
        perms(raw2, frag2, 0)
        if pk < after7: A(f"s_waitcnt vmcnt({pk})")
        NB = 4 if NS == 4 else 8
        LB("L_x1poll" + sfx)
        for b in range(NB):
            if b and b % 2 == 0: A(f"s_add_u32 s47, s45, {b*2048}")
            A(f"buffer_load_dwordx2 v[{24+2*b}:{25+2*b}], v6, s[32:35], {'s45' if b < 2 else 's47'} offen offset:{(b%2)*2048} sc1")
        A("s_add_u32 s49, s49, 1")
        A("s_waitcnt vmcnt(0)")
        for r in range(24, 24+2*NB): A(f"v_xor_b32 v{r}, s54, v{r}")
        A("v_or3_b32 v8, v24, v25, v26")
        for r in range(27, 24+2*NB-1, 2): A(f"v_or3_b32 v8, v8, v{r}, v{r+1}")
        A(f"v_or_b32 v8, v8, v{24+2*NB-1}")
        A("v_and_b32 v8, 0xff, v8")
        A("v_cmp_ne_u32 vcc, 0, v8")
        A("s_cbranch_vccnz L_x1no" + sfx)
        LB("L_x1ok" + sfx)
        stamp(5)
        if NB == 8:
            A("v_pk_add_f32 v[24:25], v[24:25], v[32:33]")
            A("v_pk_add_f32 v[26:27], v[26:27], v[34:35]")
            A("v_pk_add_f32 v[28:29], v[28:29], v[36:37]")
            A("v_pk_add_f32 v[30:31], v[30:31], v[38:39]")
        S = []
        def B(s): S.append("  " + s)
        S.append("L_x1no" + sfx + ":")
        B(f"s_cmp_lt_u32 s49, {NF}")
        B("s_cbranch_scc1 L_x1poll" + sfx)
        B("v_lshlrev_b32 v8, 1, v6")
        B("s_lshl_b32 s50, s20, 15")
        B("s_add_u32 s50, s50, %d" % O_EX1)
        B(f"s_cmp_lg_u32 s49, {NF}")
        B("s_cbranch_scc1 L_x1ns" + sfx)
        B("v_and_b32 v96, s48, v16")
        B("v_and_b32 v97, s48, v17")
        B("v_mov_b32 v98, s40")
        B("v_mov_b32 v99, s40")
        B("s_lshl_b32 s47, s21, 12")
        B("s_add_u32 s47, s47, s50")
        B("buffer_store_dwordx4 v[96:99], v8, s[32:35], s47 offen sc1")
        B("s_waitcnt vmcnt(0)")
        S.append("L_x1ns" + sfx + ":")
        for b in range(NB):
            B(f"buffer_load_dwordx4 v[{96+4*b}:{99+4*b}], v8, s[32:35], s50 offen sc1")
            B("s_add_u32 s50, s50, 4096")
        B("s_waitcnt vmcnt(0)")
        B("v_mov_b32 v8, 0")
        for b in range(NB):
            B(f"v_xor_b32 v{98+4*b}, s40, v{98+4*b}")
            B(f"v_xor_b32 v{99+4*b}, s40, v{99+4*b}")
            B(f"v_or3_b32 v8, v8, v{98+4*b}, v{99+4*b}")
            B(f"v_mov_b32 v{24+2*b}, v{96+4*b}")
            B(f"v_mov_b32 v{25+2*b}, v{97+4*b}")
        B("v_cmp_ne_u32 vcc, 0, v8")
        B("s_cbranch_vccz L_x1ok" + sfx)
        B("s_cmp_lt_u32 s49, %d" % SPIN)
        B("s_cbranch_scc1 L_x1poll" + sfx)
        if sfx == "b": S.append("L_last:")
        B("s_branch L_x1ok" + sfx)
        slow.extend(S)
    cpath(4, "a", KT, WA, KB)
    LB("L_h")
    A("v_pk_add_f32 v[24:25], v[24:25], v[28:29]   ; gate")
    A("v_pk_add_f32 v[26:27], v[26:27], v[30:31]   ; up")
    A("v_cvt_pk_bf16_f32 v8, v24, v25")
    A("v_cvt_pk_bf16_f32 v12, v26, v27")
    A("v_lshlrev_b32 v18, 16, v8")
    A("v_and_b32 v19, 0xffff0000, v8")
    A("v_mul_f32 v20, s51, v18")
    A("v_mul_f32 v21, s51, v19")
    A("v_exp_f32 v20, v20")
    A("v_exp_f32 v21, v21")
    A("v_lshlrev_b32 v14, 16, v12")
    A("v_add_f32 v20, 1.0, v20")
    A("v_add_f32 v21, 1.0, v21")
    A("v_rcp_f32 v20, v20")
    A("v_rcp_f32 v21, v21")
    A("v_and_b32 v15, 0xffff0000, v12")
    A("v_mul_f32 v18, v18, v20")
    A("v_mul_f32 v19, v19, v21")
    A("v_cvt_pk_bf16_f32 v8, v18, v19        ; silu")
    A("v_lshlrev_b32 v18, 16, v8")
    A("v_and_b32 v19, 0xffff0000, v8")
    A("v_mul_f32 v18, v18, v14")
    A("v_mul_f32 v19, v19, v15")
    A("v_cvt_pk_bf16_f32 v8, v18, v19        ; h")
    A(f"ds_write_b32 v7, v8 offset:{L_HB}")
    perms(raw2, frag2, 1)
    A("s_waitcnt lgkmcnt(0)")
    A("s_barrier                            ; B4")
    for s in range(2):
        A(f"ds_read_b128 v[{HA+4*s}:{HA+4*s+3}], v13 offset:{L_HB + 512*s}")
    for s in range(2):
        A(f"s_waitcnt lgkmcnt({1-s})")
        for j in range(4):
            c = "0" if s == 0 else f"v[{ACC+4*j}:{ACC+4*j+3}]"
            A(f"v_mfma_f32_16x16x32_bf16 v[{ACC+4*j}:{ACC+4*j+3}], v[{HA+4*s}:{HA+4*s+3}], v[{frag2(s,j)}:{frag2(s,j)+3}], {c}")
    A("s_mov_b32 exec_lo, -1")
    A("s_mov_b32 exec_hi, 0")
    A("s_nop 5")
    for r in range(4):
        for j in range(4):
            A(f"v_and_or_b32 v{20+4*r+j}, v{ACC+4*j+r}, s48, v9")
        A(f"buffer_store_dwordx4 v[{20+4*r}:{23+4*r}], v11, s[32:35], s52 offen {x2st}")
        if r < 3: A("s_add_u32 s52, s52, %d" % (32*7168))
    stamp(6)
    if not nob5: A("s_waitcnt vmcnt(0)")
    A("s_barrier                            ; B5")
    stamp(7)
    if stamps: A("s_branch L_fin")
    else: A("s_endpgm")
    main_end = len(L)
    LB("L_cb")
    cpath(2, "b", KT3, WA3 if WA3 is not None else WA, KB3)
    A("s_branch L_h")

    def rsetup():
        A("s_mov_b64 s[32:33], s[18:19]")
        A("s_mov_b32 s34, %d" % WS_REC)
        A("s_mov_b32 s35, 0x20000")
        A("s_mov_b64 s[36:37], s[14:15]")
        A("s_mov_b32 s38, 524288")
        A("s_mov_b32 s39, 0x20000")
        A("v_and_b32 v4, 7, v0")
        if stamps:
            for i in range(2, 8): A(f"s_mov_b32 s{60+2*i}, 0")
            A("s_mov_b32 s59, 0")
            A("s_mov_b32 s49, 0")
    def idload():
        A("s_lshl_b32 s53, s50, 11")
        A(f"buffer_load_dwordx4 v[{IDR}:{IDR+3}], v14, s[28:31], s53 offen{xpol}")
        A(f"buffer_load_dwordx4 v[{IDR+4}:{IDR+7}], v14, s[28:31], s53 offen offset:1024{xpol}")
    def pretouch():
        A("s_lshl_b32 s45, s20, 14")
        A("s_lshl_b32 s46, s21, 11")
        A("s_add_u32 s46, s46, s45")
        A("s_add_u32 s48, s46, %d               ; own L2-local block" % O_EX1F)
        A("buffer_load_dwordx4 v[24:27], v14, s[32:35], s48 offen")
        A("buffer_load_dwordx4 v[28:31], v14, s[32:35], s48 offen offset:1024")
        if tt: A("v_mov_b32 v32, 0")
        if "o" in tt: A("buffer_load_dword v33, v32, s[36:39], s53 offen")
        if "e" in tt:
            A("s_mov_b32 s45, 0x2f0000")
            A("buffer_load_dword v35, v32, s[32:35], s45 offen")
        if "d" in tt:
            A("s_lshl_b32 s45, s20, 17")
            A("v_mov_b32 v36, s45")
            A("global_load_dword v37, v36, s[12:13]")
    def touches():
        A("s_lshl_b32 s45, s2, 11")
        A("s_lshl_b32 s46, s20, 17")
        A("s_mov_b32 s47, 0x2f0000")
        A("s_load_dword s41, s[4:5], s45")
        A("s_load_dword s42, s[12:13], s46")
        A("s_load_dword s43, s[14:15], s45")
        A("s_load_dword s44, s[18:19], s47")
        A("s_waitcnt lgkmcnt(0)")
    def fwait(nm, off):
        A("s_mov_b32 s49, 0")
        LB("L_fwait" + nm)
        if fsleep: A(f"s_sleep {fsleep}")
        A(f"ds_read_b32 v9, v8 offset:{off}")
        A("s_add_u32 s49, s49, 1")
        A("s_cmp_ge_u32 s49, %d" % SPIN)
        A("s_waitcnt lgkmcnt(0)")
        A("v_cmp_eq_u32 vcc, 0, v9")
        A("s_cbranch_scc1 L_fok" + nm)
        A("s_cbranch_vccnz L_fwait" + nm)
        LB("L_fok" + nm)
    def psetup():
        A("v_mul_u32_u24 v12, %d, v0            ; poll offset" % LS)
        A("s_mul_i32 s47, s22, %d" % REPS)
        A("s_add_u32 s47, s47, %d               ; this die's replica" % O_IDX)
        A("v_lshrrev_b32 v11, 3, v0")
        A("s_lshr_b32 s45, s21, 1")
        A("s_sub_u32 s46, 10, s57")
        A("s_lshl_b32 s45, s45, s46")
    LB("L_w5")
    if st:
        A("v_mov_b32 v8, 0")
        A(f"ds_write_b32 v8, v8 offset:{L_FLAG + 8}")
        fwait("0", L_FLAG + 8)
        touches()
    A("s_endpgm")
    LB("L_r")
    A("v_mov_b32 v8, 0")
    A("v_mov_b32 v9, 0")
    A(f"ds_write_b64 v8, v[8:9] offset:{L_FLAG}")
    A("s_mov_b32 s50, s2                    ; slice")
    A("s_mov_b64 s[28:29], s[4:5]")
    rsetup()
    stamp(1)
    psetup()
    if SA is None:
        fwait("a", L_FLAG)
        if FS: A(f"s_sleep {FS}")
    else:
        if E1:
            A("s_waitcnt vmcnt(0) lgkmcnt(0)")
            stamp(1)
        if SA: A(f"s_sleep {SA}")
        A("s_waitcnt lgkmcnt(0)")
    A("s_add_u32 s40, s40, 1")
    stamp(2)
    if NP:
        for k in range(NP):
            if k: A(f"s_sleep {DL}")
            A(f"buffer_load_dwordx2 v[{16+2*k}:{17+2*k}], v12, s[32:35], s47 offen sc1")
        A("s_mov_b32 s49, 0")
        LB("L_ipolln")
        for k in range(NP):
            A("s_add_u32 s49, s49, 1")
            A(f"s_waitcnt vmcnt({NP-1})")
            A(f"v_cmp_ne_u32 vcc, s40, v{17+2*k}")
            A(f"v_mov_b32 v8, v{16+2*k}")
            A("s_cbranch_vccz L_iok")
            A(f"buffer_load_dwordx2 v[{16+2*k}:{17+2*k}], v12, s[32:35], s47 offen sc1")
        A("s_cmp_lt_u32 s49, %d" % SPIN)
        A("s_cbranch_scc1 L_ipolln")
        A("s_branch L_iok")
    elif KB is not None or SB is not None:
        A(f"buffer_load_dwordx2 v[16:17], v12, s[32:35], s47 offen sc1")
        if SB is None: fwait("b", L_FLAG + 4)
        else: A(f"s_sleep {SB}")
        A("s_mov_b32 s49, 0")
        LB("L_ipoll2")
        A(f"buffer_load_dwordx2 v[18:19], v12, s[32:35], s47 offen sc1")
        A("s_add_u32 s49, s49, 1")
        A(f"s_waitcnt vmcnt(1)")
        A(f"v_cmp_ne_u32 vcc, s40, v17")
        A("v_mov_b32 v8, v16")
        A("s_cbranch_vccz L_iok")
        A(f"buffer_load_dwordx2 v[16:17], v12, s[32:35], s47 offen sc1")
        A("s_add_u32 s49, s49, 1")
        A("s_cmp_ge_u32 s49, %d" % SPIN)
        A(f"s_waitcnt vmcnt(1)")
        A(f"v_cmp_ne_u32 vcc, s40, v19")
        A("v_mov_b32 v8, v18")
        A("s_cbranch_scc1 L_iok")
        A("s_cbranch_vccnz L_ipoll2")
        A("s_branch L_iok")
    else:
        A("s_branch L_ip0")
    route_beg = len(L)
    LB("L_route")
    stamp(1)
    rsetup()
    A("s_and_b32 s45, s52, 7")
    A("s_lshl_b32 s46, s45, 3")
    A("s_lshr_b32 s52, s52, 3               ; batch")
    A("s_add_u32 s46, s46, s52")
    A("s_mul_i32 s46, s46, %d" % LS)
    A("s_add_u32 s46, s46, %d               ; slot" % O_IDX)
    A("s_lshl_b32 s45, s45, 2")
    A("v_mul_u32_u24 v5, %d, v0             ; replica offset" % REPS)
    A("v_lshrrev_b32 v10, 5, v0")
    A("v_bfe_u32 v11, v0, 4, 1")
    A("v_lshl_add_u32 v10, v11, 1, v10")
    A("v_add_u32 v10, s45, v10")
    A("v_xor_b32 v10, 31, v10")
    for t in range(4):
        for hlf in range(2):
            A(f"s_waitcnt vmcnt({7 - 2*t - hlf})")
            if rp and t == 0 and hlf == 0: stamp(5)
            if rp and t == 3 and hlf == 1: stamp(6)
            for k in range(4):
                c = "0" if (hlf == 0 and k == 0) else f"v{6+t}"
                A(f"v_dot2_f32_bf16 v{6+t}, v{XR+8*t+4*hlf+k}, v{16+4*hlf+k}, {c}")
    A("s_waitcnt lgkmcnt(0)")
    if rp: stamp(4)
    A("s_add_u32 s40, s40, 1")
    A("s_nop 0")
    A("v_permlane32_swap_b32 v6, v7")
    A("v_permlane32_swap_b32 v8, v9")
    A("v_add_f32 v6, v6, v7")
    A("v_add_f32 v8, v8, v9")
    A("s_nop 1")
    A("v_permlane16_swap_b32 v6, v8")
    A("v_add_f32 v6, v6, v8")
    A("s_nop 1")
    A("v_add_f32_dpp v6, v6, v6 quad_perm:[1,0,3,2] row_mask:0xf bank_mask:0xf")
    A("s_nop 1")
    A("v_add_f32_dpp v6, v6, v6 quad_perm:[2,3,0,1] row_mask:0xf bank_mask:0xf")
    A("s_nop 1")
    A("v_add_f32_dpp v6, v6, v6 row_half_mirror row_mask:0xf bank_mask:0xf")
    A("s_nop 1")
    A("v_add_f32_dpp v6, v6, v6 row_mirror row_mask:0xf bank_mask:0xf")
    A("v_cvt_pk_bf16_f32 v7, v6, v6")
    A("v_and_b32 v7, 0xffff0000, v7          ; r (bf16)")
    A("v_ashrrev_i32 v6, 31, v7")
    A("v_or_b32 v6, 0x80000000, v6")
    A("v_xor_b32 v6, v6, v7")
    A("v_cmp_o_f32 vcc, v7, v7")
    A("v_and_b32 v6, 0xffff0000, v6")
    A("s_nop 0")
    A("v_cndmask_b32 v6, 0, v6, vcc")
    A("v_or_b32 v6, v10, v6")
    A("v_mov_b32 v7, v6")
    A("s_nop 1")
    A("v_permlane16_swap_b32 v6, v7")
    A("v_max_u32 v6, v6, v7")
    A("v_mov_b32 v7, v6")
    A("s_nop 1")
    A("v_permlane32_swap_b32 v6, v7")
    A("v_max_u32 v6, v6, v7")
    A("v_mov_b32 v7, s40")
    A("s_mov_b64 exec, 0xff")
    A("buffer_store_dwordx2 v[6:7], v5, s[32:35], s46 offen sc1")
    A("s_mov_b64 exec, -1")
    if rp: stamp(3)
    A("s_barrier                            ; B0b")
    stamp(2)
    A("s_setprio 0")
    A("s_branch L_rpub")
    route_end = len(L)
    LB("L_rpub")
    A("s_cmp_eq_u32 s3, 4")
    A("s_cbranch_scc1 L_r4")
    if st: touches()
    A("s_and_b32 s45, s2, 0xe7")
    A("s_cmp_eq_u32 s45, 0x%x" % (0xe0 + RD[0]))
    A("s_cbranch_scc0 L_end")
    A("s_add_i32 s50, s2, %d                 ; slice" % (4 - RD[0]))
    idload()
    A("s_waitcnt vmcnt(0)")
    A("s_branch L_b2")
    LB("L_r4")
    A("s_mov_b32 s50, s2                    ; slice")
    psetup()
    if rack: A(f"s_waitcnt vmcnt(0)")
    LB("L_ip0")
    A("s_mov_b32 s49, 0")
    LB("L_ipoll")
    A(f"buffer_load_dwordx2 v[8:9], v12, s[32:35], s47 offen sc1")
    A("s_add_u32 s49, s49, 1")
    A("s_cmp_ge_u32 s49, %d" % SPIN)
    A(f"s_waitcnt vmcnt(0)")
    A(f"v_cmp_ne_u32 vcc, s40, v9")
    A("s_cbranch_scc1 L_iok")
    A("s_cbranch_vccnz L_ipoll")
    LB("L_iok")
    if not rp: stamp(3)
    if stamps: A("s_mov_b32 s59, s49")
    A("s_mov_b32 m0, %d" % L_XS)
    A("s_nop 0")
    A("v_max_u32_dpp v8, v8, v8 row_ror:8 row_mask:0xf bank_mask:0xf")
    A("v_mov_b32 v9, v8")
    A("s_cmp_eq_u32 s57, 1")
    A("s_nop 0")
    A("v_permlane16_swap_b32 v8, v9")
    A("v_max_u32 v8, v8, v9")
    A("v_mov_b32 v9, v8")
    A("s_nop 1")
    A("v_permlane32_swap_b32 v8, v9")
    A("v_max_u32 v8, v8, v9")
    A("v_and_b32 v10, 31, v8")
    A("v_xor_b32 v10, 31, v10")
    A("v_lshl_add_u32 v10, v4, 5, v10       ; row")
    A("v_lshlrev_b32 v10, 11, v10")
    A("v_lshl_add_u32 v10, v11, 4, v10      ; + chunk*16")
    A("v_lshlrev_b32 v9, 2, v4")
    for i in range(8):
        if i == 4: A("s_cbranch_scc1 L_dmadone")
        A(f"buffer_load_dwordx4 v10, s[28:31], s45 offen{xpol} lds")
        if i < 7:
            A("s_mov_b32 m0, %d" % (L_XS + 1024*(i+1)))
            A("v_add_u32 v10, 128, v10")
    LB("L_dmadone")
    A(f"ds_write_b32 v9, v8 offset:{L_KEY}")
    idload()
    pretouch()
    LB("L_b2")
    A("s_lshr_b32 s51, s50, 5")
    A("s_lshl_b32 s45, s51, 2")
    A("v_mov_b32 v5, s45")
    A(f"s_waitcnt vmcnt({4 + len(tt)}) lgkmcnt(0)")
    A("s_barrier                            ; B2")
    if not rp: stamp(4)
    A(f"ds_read_b32 v6, v5 offset:{L_KEY}")
    A(f"s_waitcnt vmcnt({2 + len(tt)})")
    for r in range(IDR, IDR+8):
        A(f"v_lshlrev_b32 v16, 16, v{r}")
        A(f"v_and_b32 v17, 0xffff0000, v{r}")
        A("v_pk_fma_f32 v[16:17], v[16:17], 0, v[16:17] op_sel_hi:[1,0,1]")
        A(f"v_cvt_pk_bf16_f32 v{r}, v16, v17    ; x + x*0")
    A("s_and_b32 s41, s40, 0xff")
    A("v_lshrrev_b32 v7, 5, v0")
    A("v_bfe_u32 v8, v0, 4, 1")
    A("v_lshl_add_u32 v7, v8, 1, v7         ; e")
    A("v_lshl_add_u32 v7, v4, 2, v7         ; 4*pos + e")
    A("s_and_b32 s46, s50, 31")
    A("s_lshl_b32 s45, s46, 5")
    A("v_add_u32 v7, s45, v7                ; column")
    A("s_waitcnt lgkmcnt(0)")
    A("s_barrier                            ; B3")
    A("v_and_b32 v8, 31, v6")
    A("v_xor_b32 v8, 31, v8")
    A("v_cmp_ne_u32 vcc, s46, v8")
    A("s_lshl_b32 s45, s51, 5")
    A("v_add_u32 v8, s45, v8                ; row")
    A("v_lshlrev_b32 v8, 10, v8")
    A("v_add_u32 v7, v8, v7")
    A("v_lshlrev_b32 v7, 1, v7")
    A("buffer_load_ushort v9, v7, s[28:31], 0 offen")
    A("s_cbranch_vccz L_sel")
    A(f"buffer_store_dwordx4 v[{IDR}:{IDR+3}], v14, s[36:39], s53 offen{outpol}")
    A(f"buffer_store_dwordx4 v[{IDR+4}:{IDR+7}], v14, s[36:39], s53 offen offset:1024{outpol}")
    LB("L_sel")
    A("v_lshrrev_b32 v10, 16, v6")
    A("v_xor_b32 v11, 0xffff, v10")
    A("v_and_b32 v12, 0x7fff, v10")
    A("v_cmp_gt_i32 vcc, 0, v6")
    A("s_mov_b32 s45, 0xbfb8aa3b")
    A("s_nop 0")
    A("v_cndmask_b32 v10, v11, v12, vcc")
    A("v_lshlrev_b32 v10, 16, v10           ; r")
    A("v_mul_f32 v10, s45, v10")
    A("v_exp_f32 v10, v10")
    A("s_nop 0")
    A("v_add_f32 v10, 1.0, v10")
    A("v_rcp_f32 v10, v10")
    A("s_nop 0")
    A("v_cvt_pk_bf16_f32 v10, v10, v10")
    A("v_and_b32 v10, 0xffff0000, v10       ; sigmoid")
    A("s_mul_i32 s46, s50, 7168")
    A("s_add_u32 s46, s46, %d" % O_EX2)
    A("s_add_u32 s47, s46, 4096")
    A("s_mov_b32 s49, 0")
    A("s_mov_b32 s44, 0x00ff00ff")
    A("s_mov_b32 s45, 0x00ff00ff")
    A("s_waitcnt vmcnt(0)")
    A("v_lshlrev_b32 v9, 16, v9             ; x")
    A("v_mov_b32 v13, 0")
    A("s_barrier                            ; B4")
    A("s_barrier                            ; B5")
    if not rp: stamp(5)
    if x2d: A(f"s_sleep {x2d}")
    if mx:
        MS = 76 if stamps else 60
        def ld(i):
            so = "s46" if i < 4 else "s47"
            A(f"buffer_load_dwordx4 v[{32+4*i}:{35+4*i}], v14, s[32:35], {so} offen offset:{(i%4)*1024} {x2ld}")
        def chk(i):
            b = 32 + 4*i
            for r in range(b, b+4): A(f"v_xor_b32 v{r}, s41, v{r}")
            A(f"v_or3_b32 v15, v{b}, v{b+1}, v{b+2}")
            A(f"v_or_b32 v15, v15, v{b+3}")
            A(f"v_cmp_ne_u32_sdwa s[{MS+2*i}:{MS+2*i+1}], v15, v13 src0_sel:BYTE_0 src1_sel:DWORD")
        def anyleft():
            A(f"s_or_b64 s[42:43], s[{MS}:{MS+1}], s[{MS+2}:{MS+3}]")
            for i in range(2, 7): A(f"s_or_b64 s[42:43], s[42:43], s[{MS+2*i}:{MS+2*i+1}]")
        for i in range(7): ld(i)
        A("s_mov_b32 s49, 1")
        for i in range(7):
            A(f"s_waitcnt vmcnt({6-i})")
            chk(i)
            if i == 1: A("v_pk_add_f32 v[16:17], v[32:33], v[36:37]"); A("v_pk_add_f32 v[18:19], v[34:35], v[38:39]")
            if i >= 2: A(f"v_pk_add_f32 v[16:17], v[16:17], v[{32+4*i}:{33+4*i}]"); A(f"v_pk_add_f32 v[18:19], v[18:19], v[{34+4*i}:{35+4*i}]")
        anyleft()
        A("s_cbranch_scc0 L_x2ok")
        LB("L_x2poll")
        if x2s: A(f"s_sleep {x2s}")
        for i in range(7):
            A(f"s_mov_b64 exec, s[{MS+2*i}:{MS+2*i+1}]")
            A(f"s_cbranch_execz L_x2l{i}")
            ld(i)
            LB(f"L_x2l{i}")
        A("s_add_u32 s49, s49, 1")
        A("s_waitcnt vmcnt(0)")
        for i in range(7):
            A(f"s_mov_b64 exec, s[{MS+2*i}:{MS+2*i+1}]")
            A(f"s_cbranch_execz L_x2c{i}")
            chk(i)
            LB(f"L_x2c{i}")
        A("s_mov_b64 exec, -1")
        anyleft()
        A("s_cbranch_scc0 L_x2sum")
        A("s_cmp_lt_u32 s49, %d" % SPIN)
        A("s_cbranch_scc1 L_x2poll")
        LB("L_x2sum")
        A("v_pk_add_f32 v[16:17], v[32:33], v[36:37]"); A("v_pk_add_f32 v[18:19], v[34:35], v[38:39]")
        for i in range(2, 7):
            A(f"v_pk_add_f32 v[16:17], v[16:17], v[{32+4*i}:{33+4*i}]"); A(f"v_pk_add_f32 v[18:19], v[18:19], v[{34+4*i}:{35+4*i}]")
        A("s_nop 0")
    else:
        LB("L_x2poll")
        for i in range(7):
            so = "s46" if i < 4 else "s47"
            A(f"buffer_load_dwordx4 v[{32+4*i}:{35+4*i}], v14, s[32:35], {so} offen offset:{(i%4)*1024} {x2ld}")
        A("s_add_u32 s49, s49, 1")
        for i in range(7):
            A(f"s_waitcnt vmcnt({6-i})")
            b = 32 + 4*i
            for r in range(b, b+4): A(f"v_xor_b32 v{r}, s41, v{r}")
            if i == 0:
                A(f"v_or3_b32 v15, v{b}, v{b+1}, v{b+2}")
                A(f"v_or_b32 v15, v15, v{b+3}")
            else:
                A(f"v_or3_b32 v15, v15, v{b}, v{b+1}")
                A(f"v_or3_b32 v15, v15, v{b+2}, v{b+3}")
                src = 32 if i == 1 else 16
                A(f"v_pk_add_f32 v[16:17], v[{src}:{src+1}], v[{b}:{b+1}]")
                A(f"v_pk_add_f32 v[18:19], v[{src+2}:{src+3}], v[{b+2}:{b+3}]")
        A("v_and_b32 v15, 0xff, v15")
        A("v_cmp_ne_u32 vcc, 0, v15")
        A("s_cbranch_vccz L_x2ok")
        A("s_cmp_lt_u32 s49, %d" % SPIN)
        A("s_cbranch_scc1 L_x2poll")
    LB("L_x2ok")
    if not rp: stamp(6)
    A("v_permlane32_swap_b32 v16, v17")
    A("v_permlane32_swap_b32 v18, v19")
    A("v_add_f32 v16, v16, v17")
    A("v_add_f32 v18, v18, v19")
    A("s_nop 1")
    A("v_permlane16_swap_b32 v16, v18")
    A("v_add_f32 v16, v16, v18")
    A("s_nop 1")
    A("v_add_f32_dpp v16, v16, v16 row_ror:8 row_mask:0xf bank_mask:0xf")
    A("s_mov_b64 exec, s[44:45]")
    A("v_cvt_pk_bf16_f32 v16, v16, v16")
    A("v_and_b32 v16, 0xffff0000, v16       ; y")
    A("v_mul_f32 v16, v16, v10")
    A("v_cvt_pk_bf16_f32 v16, v16, v16")
    A("v_and_b32 v16, 0xffff0000, v16       ; y*sigmoid")
    A("v_fma_f32 v16, v9, 0, v16            ; upd = x*0 + y")
    A("v_add_f32 v16, v9, v16")
    A("v_cvt_pk_bf16_f32 v16, v16, v16")
    A(f"buffer_store_short v16, v7, s[36:39], 0 offen{outpol}")
    A("s_cmp_lg_u32 s50, 0")
    A("s_cbranch_scc1 L_noep")
    A("v_mov_b32 v18, s40")
    A("v_mov_b32 v17, 0")
    A("s_mov_b64 exec, 1")
    A("buffer_store_dword v18, v17, s[32:35], 0 offen sc1")
    LB("L_noep")
    stamp(7)
    LB("L_fin")
    import diag
    if dg: diag.epilogue(A, LB, dg)
    elif gamp: diag.gamp(A, LB, gamp)
    elif gpair: diag.gpair(A, LB, gpair)
    elif stamps: diag.dump(A, LB)
    LB("L_end")
    A("s_endpgm")
    if align:
        L = L[:main_end] + L[route_beg:route_end] + [".p2align 12"] + L[main_end:route_beg] + L[route_end:]
    L.extend(slow)
    body = "\n".join(L)
    pad = ".p2align 12\n.fill 832, 4, 0xbf800000            ; the kernel starts a 4 KB page (instruction prefetch stops at page ends)\n" if align else ""
    return f"""{HEAD}; @launch grid=(256,1,1) block=(384,1,1) lds={LDS_BYTES}
.amdgcn_target "amdgcn-amd-amdhsa--gfx950"
.text
.globl {KN}
{pad}.p2align 8
.type {KN},@function
{KN}:
{body}
.section .rodata,"a"
.p2align 6
.amdhsa_kernel {KN}
  .amdhsa_next_free_vgpr 160
  .amdhsa_next_free_sgpr 96
  .amdhsa_accum_offset 160
  .amdhsa_group_segment_fixed_size 0
  .amdhsa_kernarg_size 64
  .amdhsa_user_sgpr_count 2
  .amdhsa_user_sgpr_kernarg_segment_ptr 1
  .amdhsa_system_sgpr_workgroup_id_x 1
  .amdhsa_float_denorm_mode_32 3
.end_amdhsa_kernel
"""
if __name__ == "__main__":
    import sys, json
    kw = json.loads(sys.argv[2]) if len(sys.argv) > 2 else {}
    open(sys.argv[1] if len(sys.argv) > 1 else "standalone__moe_arch_mod__sampling.s", "w").write(gen(**kw))
```

```python
KN = "standalone__moe_arch_mod__sampling_kernel"
HEAD = open("standalone__moe_arch_mod__sampling.s.ref").read().split("; Override launch")[0]

O_IDX = 0x1000
O_EX1F = 0x20000
O_EX2 = 0x100000
O_EX1 = 0x300000
WS_REC = 0x500000
L_XS = 0
L_RED = 8192
L_HB = 16384
L_KEY = 17408
L_FLAG = 17408 + 32
LDS_BYTES = 17408 + 64
SPIN = 40000
NRX = 4

def gen(pol="nt", xpol="", D=10, LS=16, NF=12, stamps=False, outpol="", D0=3, WA=10, WM1=2, WM2=1, PK=None,
        KT=21, KT3=17, dg=None, gamp=None, cpf=3, tt="o", fsleep=1, cst1=False, WA3=None, rack=True, RD=(1,2,3,7), KB=None, KB3=None, SA=None, SB=None, E1=True, st=True, x1pol="", rst=True, K0=None, NP=0, DL=9, DI=None, rp=False, FS=0, RM=None, align=True, mx=True, x2d=0, x2s=0, x2ld="sc1", x2st="sc1", nob5=False, gpair=None, WM3=None, DUP0=False, LD=0, PERM=None, LDSB=None):
    RM = {int(k): v for k, v in RM.items()} if RM else {d: i for i, d in enumerate(RD)}
    RD = list(RM)
    if gamp or dg or gpair: stamps = True
    L = []
    def A(s): L.append("  " + s)
    def LB(s): L.append(s + ":")
    def stamp(i):
        if stamps: A(f"s_memrealtime s[{60+2*i}:{61+2*i}]")
    pol = (" " + pol) if pol else ""
    xpol = (" " + xpol) if xpol else ""
    outpol = (" " + outpol) if outpol else ""
    REPS = 64 * LS
    XR = 80
    RAW = 16; FR = 80; XB = 96; ACC = 112; W2 = 128
    F2 = 40; HA = 72
    IDR = 40
    def raw(s, i): return RAW + 16*s + 2*i
    def frag(s, j): return (FR if s == 0 else RAW + 16*(s-1)) + 4*j
    def raw2(s, i): return W2 + 16*s + 2*i
    def frag2(s, j): return F2 + 16*s + 4*j
    def perms(rawf, fragf, s):
        for e in range(2):
            for p in range(4):
                A(f"v_perm_b32 v{fragf(s,2*e)+p}, v{rawf(s,2*p+1)+e}, v{rawf(s,2*p)+e}, s42")
            for p in range(4):
                A(f"v_perm_b32 v{fragf(s,2*e+1)+p}, v{rawf(s,2*p+1)+e}, v{rawf(s,2*p)+e}, s43")
    def w1load(n):
        s, i = divmod(n, 8)
        A(f"buffer_load_dwordx2 v[{raw(s,i)}:{raw(s,i)+1}], v3, s[24:27], s44 offen{pol}")
        A("s_addk_i32 s44, 7168" if i < 7 else "s_add_u32 s44, s44, %d" % (25*7168))
    def w2load(n):
        s, i = divmod(n, 8)
        p, b = divmod(i, 2)
        row = 2*s + (p >> 1) + 8*(p & 1) + 4*b
        A("s_add_u32 s47, s53, %d" % (row*2048))
        A(f"buffer_load_dwordx2 v[{raw2(s,i)}:{raw2(s,i)+1}], v10, s[28:31], s47 offen{pol}")

    stamp(0)
    A("s_cmp_ge_u32 s2, 256")
    A("s_cbranch_scc1 L_w5x")
    A("s_load_dwordx16 s[4:19], s[0:1], 0")
    A("v_lshrrev_b32 v1, 6, v0")
    A("v_and_b32 v0, 63, v0                 ; lane")
    A("v_readfirstlane_b32 s3, v1           ; wave")
    if PERM:
        A("s_lshl_b32 s22, s2, 2")
        A("s_lshr_b32 s22, 0x%x, s22" % sum(v << (4*i) for i, v in enumerate(PERM)))
    else:
        A("s_sub_u32 s22, s2, %d" % LD)
    A("s_and_b32 s22, s22, 7")
    A("s_lshr_b32 s23, s2, 3")
    A("s_lshr_b32 s44, s23, 2")
    A("s_mul_i32 s45, s22, 6")
    A("s_sub_u32 s45, s45, 6")
    A("s_lshl_b32 s46, s22, 3")
    A("s_sub_u32 s46, s46, 16")
    A("s_cmp_lt_u32 s22, 5")
    A("s_cselect_b32 s45, s45, s46")
    A("s_cselect_b32 s46, 24, 32")
    A("s_add_u32 s45, s45, s44")
    A("s_add_u32 s44, s45, 4")
    A("s_mul_i32 s44, s44, 37")
    A("s_lshr_b32 s44, s44, 8")
    A("s_add_u32 s20, s45, s44")
    A("s_and_b32 s45, s23, 0x18")
    A("s_add_u32 s45, s45, 3")
    A("s_cmp_eq_u32 s45, 27")
    A("s_cselect_b32 s45, 55, s45")
    A("s_lshl_b32 s44, s22, 3")
    A("s_add_u32 s44, s44, 19")
    A("s_cmp_eq_u32 s22, 0")
    A("s_cselect_b32 s44, s45, s44")
    A("s_cselect_b32 s46, 0, s46")
    if not DUP0: A("s_cselect_b32 s58, 0, 1")
    A("s_cmp_ge_u32 s23, s46")
    A("s_cselect_b32 s20, s44, s20")
    A("s_cselect_b32 s57, 1, 0")
    A("s_cselect_b32 s21, 7, 3")
    A("s_and_b32 s21, s21, s23              ; part")
    if DUP0: A("s_mov_b32 s58, s57")
    else: A("s_and_b32 s58, s58, s57")
    A("s_mov_b32 s27, 0x20000")
    A("s_cmp_lt_u32 s3, 4")
    A("s_cbranch_scc1 L_c")
    A("s_mov_b32 s30, 524288")
    A("s_mov_b32 s31, 0x20000")
    A("v_lshlrev_b32 v14, 4, v0             ; lane*16")
    A("s_cmp_eq_u32 s58, 1")
    A("s_cbranch_scc1 L_rt")
    A("s_cmp_eq_u32 s3, 4")
    A("s_cbranch_scc0 %s" % ("L_w5" if st else "L_w5x"))
    A("s_waitcnt lgkmcnt(0)")
    A("s_load_dword s40, s[18:19], 0        ; epoch")
    A("s_branch L_r")
    LB("L_w5x")
    A("s_endpgm")
    LB("L_rt")
    A("s_setprio 3")
    A("s_lshl_b32 s52, s22, 3")
    if DUP0:
        A("s_and_b32 s44, s23, 0x18")
        A("s_add_u32 s44, s44, 8")
        A("s_cmp_eq_u32 s22, 0")
        A("s_cselect_b32 s52, s44, s52")
    A("s_add_u32 s52, s52, s21")
    A("s_lshl_b32 s52, s52, 1")
    A("s_add_u32 s52, s52, s3")
    A("s_sub_u32 s52, s52, 20")
    A("s_lshl_b32 s44, s52, 13")
    A("s_add_u32 s45, s44, 4096")
    A("s_movk_i32 s26, 2048")
    A("s_waitcnt lgkmcnt(0)")
    if rst:
        A("s_load_dword s41, s[4:5], s44")
        A("s_load_dword s42, s[6:7], 0")
    A("s_mov_b64 s[28:29], s[4:5]")
    A("s_mov_b64 s[24:25], s[6:7]")
    A("s_load_dword s40, s[18:19], 0        ; epoch")
    A(f"buffer_load_dwordx4 v[16:19], v14, s[24:27], 0 offen")
    A(f"buffer_load_dwordx4 v[20:23], v14, s[24:27], 0 offen offset:1024")
    for i in range(8):
        A(f"buffer_load_dwordx4 v[{XR+4*i}:{XR+4*i+3}], v14, s[28:31], {'s44' if i < 4 else 's45'} offen offset:{(i%4)*1024}{xpol}")
    A("s_barrier                            ; B0")
    A("s_branch L_route")
    LB("L_c")
    if cpf is not None:
        A("s_getpc_b64 s[46:47]")
        LB("L_pc")
        A(f"s_cmp_lg_u32 s3, {cpf}")
        A("s_cbranch_scc1 L_nopf")
        A("v_lshlrev_b32 v2, 7, v0")
        A("v_min_u32 v2, L_last - L_pc - 256, v2")
        A("global_load_dword v159, v2, s[46:47] offset:256")
        LB("L_nopf")
    A("s_mov_b32 s26, 7340032")
    A("v_lshrrev_b32 v1, 4, v0              ; g")
    A("v_and_b32 v2, 15, v0                 ; n")
    A("v_mul_u32_u24 v3, %d, v1" % (8*7168))
    A("v_lshl_add_u32 v3, v2, 3, v3         ; voffset")
    A("s_lshr_b32 s44, s21, 1")
    A("s_lshl_b32 s44, s44, 2")
    A("s_add_u32 s44, s44, s3")
    A("s_lshr_b32 s45, %d, s57" % (128*7168))
    A("s_mul_i32 s44, s44, s45")
    A("s_lshl_b32 s45, s20, 7")
    A("s_add_u32 s44, s44, s45              ; soffset")
    A("s_bitcmp1_b32 s21, 0")
    A("s_waitcnt lgkmcnt(0)")
    A("s_cselect_b64 s[24:25], s[10:11], s[8:9]")
    A("s_cmp_eq_u32 s58, 0")
    A("s_cbranch_scc1 L_nb0")
    A("s_barrier")
    LB("L_nb0")
    if not cst1: stamp(1)
    DI = DI or D
    for n in range(DI):
        w1load(n)
        if n == D0 - 1:
            A("s_cmp_eq_u32 s58, 0")
            A("s_cbranch_scc1 L_nb0b")
            A("s_barrier")
            LB("L_nb0b")
    A("s_load_dword s40, s[18:19], 0        ; epoch")
    if stamps:
        for i in range(2, 8): A(f"s_mov_b32 s{60+2*i}, 0")
        A("s_getreg_b32 s59, hwreg(HW_REG_HW_ID)")
    A("s_mov_b64 s[32:33], s[18:19]")
    A("s_mov_b32 s34, %d" % WS_REC)
    A("s_mov_b32 s35, 0x20000")
    A("s_mov_b32 s42, 0x05040100")
    A("s_mov_b32 s43, 0x07060302")
    A("v_and_b32 v8, 7, v0")
    A("v_lshl_add_u32 v13, v1, 3, v8")
    A("v_lshlrev_b32 v13, 4, v13")
    A("s_lshl_b32 s45, s3, 11")
    A("v_add_u32 v4, s45, v13")
    A("s_lshr_b32 s45, s45, s57")
    A("v_add_u32 v5, s45, v13")
    A("v_lshlrev_b32 v6, 3, v0")
    A("s_lshl_b32 s45, s3, 9")
    A("v_add_u32 v6, s45, v6                ; w*512 + lane*8")
    A("v_lshrrev_b32 v7, 1, v0")
    A("v_lshlrev_b32 v7, 4, v7")
    A("v_and_b32 v9, 1, v0")
    A("v_lshl_add_u32 v7, v9, 2, v7")
    A("s_lshr_b32 s45, s3, 1")
    A("s_lshl_b32 s45, s45, 9")
    A("s_and_b32 s46, s3, 1")
    A("s_lshl_b32 s46, s46, 3")
    A("s_add_u32 s45, s45, s46")
    A("v_add_u32 v7, s45, v7")
    A("s_mov_b64 s[28:29], s[12:13]")
    A("s_mov_b32 s30, 7340032")
    A("s_mov_b32 s31, 0x20000")
    A("v_lshlrev_b32 v10, 15, v1            ; g*16*2048")
    A("v_lshl_add_u32 v10, v2, 3, v10")
    A("v_lshrrev_b32 v11, 3, v2")
    A("v_lshl_add_u32 v11, v1, 7, v11       ; 4g*32 + (n>>3)")
    A("v_mul_u32_u24 v11, 7168, v11")
    A("v_lshl_add_u32 v11, v8, 4, v11       ; + (n&7)*16")
    A("s_lshl_b32 s53, s21, 2")
    A("s_lshr_b32 s53, s53, s57")
    A("s_add_u32 s53, s53, s3")
    A("s_lshr_b32 s45, s3, 1")
    A("s_and_b32 s45, s45, s57")
    A("s_lshl_b32 s45, s45, 30")
    A("v_or_b32 v10, s45, v10")
    A("v_or_b32 v11, s45, v11")
    A("s_mul_i32 s52, s53, %d" % (2*7168))
    A("s_lshl_b32 s46, s20, 7")
    A("s_add_u32 s52, s52, s46")
    A("s_add_u32 s52, s52, %d" % O_EX2)
    A("s_lshl_b32 s53, s53, 7")
    A("s_lshl_b32 s46, s20, 17              ; ct*64*2048")
    A("s_add_u32 s53, s53, s46")
    A("s_lshl_b32 s45, s20, 14")
    A("s_lshl_b32 s46, s21, 11")
    A("s_add_u32 s45, s45, %d               ; group base" % O_EX1F)
    A("s_add_u32 s46, s46, s45")
    A("s_mov_b32 s48, 0xffffff00")
    A("s_mov_b32 s51, 0xbfb8aa3b            ; -log2(e)")
    A("s_mov_b32 s49, 0")
    A("s_getreg_b32 s54, hwreg(HW_REG_XCC_ID, 0, 3)")
    A("v_mov_b32 v12, 1")
    depth = DI
    first = True
    for n in range(DI, 16):
        if depth < D and not first and (n - DI) % 2 == 1:
            depth += 1
        else:
            A(f"s_waitcnt vmcnt({depth-1})")
        first = False
        if n == DI and cst1: stamp(1)
        if n == KT and KT < 16 and SA is None: A(f"ds_write_b32 v12, v12 offset:{L_FLAG - 1}")
        if n == (K0 or DI): A(f"ds_write_b32 v12, v12 offset:{L_FLAG + 7}")
        w1load(n)
    assert depth == D
    A("s_cmp_eq_u32 s57, 1")
    A("s_cbranch_scc1 L_cb")

    slow = []
    def cpath(NS, sfx, K, WA, K2, WM1, WM2):
        NL = 8*NS
        WB = 16 - WA - WM1 - WM2
        assert WB >= 0
        done = 0
        if NS == 2: stamp(2)
        for n in range(16, NL + WA):
            A(f"s_waitcnt vmcnt({D-1})")
            if n < NL: w1load(n)
            else: w2load(n - NL)
            if n == K and SA is None and KT >= 16:
                A(f"ds_write_b32 v12, v12 offset:{L_FLAG - 1}")
            if n == K2:
                A(f"ds_write_b32 v12, v12 offset:{L_FLAG + 3}")
            if n == NL - 1: stamp(2)
            complete = n - D + 1
            while done < NS and 8*done + 8 <= complete:
                perms(raw, frag, done); done += 1
        A("s_waitcnt lgkmcnt(0)")
        A("s_add_u32 s40, s40, 1                ; tag32")
        A("s_and_b32 s41, s40, 0xff")
        A("s_lshl_b32 s55, s40, 3")
        A("s_and_b32 s55, s55, 0xf8")
        A("s_or_b32 s54, s54, s55")
        A("v_mov_b32 v9, s41")
        A("v_mov_b32 v12, s54")
        while done < NS:
            A(f"s_waitcnt vmcnt({NL + WA - 8*done - 8})")
            perms(raw, frag, done); done += 1
        A("s_barrier                            ; B2")
        stamp(3)
        for s in range(NS):
            A(f"ds_read_b128 v[{XB+4*s}:{XB+4*s+3}], v5 offset:{L_XS + 512*s}")
        for n in range(WA, WA + WM1): w2load(n)
        for s in range(NS):
            A(f"s_waitcnt lgkmcnt({NS-1-s})")
            for j in range(4):
                c = "0" if s == 0 else f"v[{ACC+4*j}:{ACC+4*j+3}]"
                A(f"v_mfma_f32_16x16x32_bf16 v[{ACC+4*j}:{ACC+4*j+3}], v[{frag(s,j)}:{frag(s,j)+3}], v[{XB+4*s}:{XB+4*s+3}], {c}")
        A("s_mov_b32 exec_lo, 0x00ff00ff")
        A("s_mov_b32 exec_hi, 0x00ff00ff")
        A("s_nop 2")
        for j in range(4):
            A(f"ds_write_b128 v4, v[{ACC+4*j}:{ACC+4*j+3}] offset:{L_RED + 512*j}")
        A("s_mov_b64 exec, -1")
        for n in range(WA + WM1, WA + WM1 + WM2): w2load(n)
        A("s_waitcnt lgkmcnt(0)")
        A("s_barrier                            ; B3")
        for w in range(4):
            A(f"ds_read_b64 v[{16+2*w}:{17+2*w}], v6 offset:{L_RED + 2048*w}")
        A("s_waitcnt lgkmcnt(2)")
        A("v_pk_add_f32 v[16:17], v[16:17], v[18:19]")
        A("s_waitcnt lgkmcnt(0)")
        A("v_pk_add_f32 v[20:21], v[20:21], v[22:23]")
        A("v_pk_add_f32 v[16:17], v[16:17], v[20:21]")
        A("v_and_or_b32 v16, v16, s48, v12")
        A("v_and_or_b32 v17, v17, s48, v12")
        A("buffer_store_dwordx2 v[16:17], v6, s[32:35], s46 offen" + (" " + x1pol if x1pol else ""))
        stamp(4)
        for n in range(16 - WB, 16): w2load(n)
        pk = WB if PK is None else PK
        after7 = 8 + (1 if 16 - WB >= 8 else 0)
        A(f"s_waitcnt vmcnt({min(max(pk, 0), after7) if pk > after7 else after7})")
        perms(raw2, frag2, 0)
        if pk < after7: A(f"s_waitcnt vmcnt({pk})")
        NB = 4 if NS == 4 else 8
        LB("L_x1poll" + sfx)
        for b in range(NB):
            if b and b % 2 == 0: A(f"s_add_u32 s47, s45, {b*2048}")
            A(f"buffer_load_dwordx2 v[{24+2*b}:{25+2*b}], v6, s[32:35], {'s45' if b < 2 else 's47'} offen offset:{(b%2)*2048} sc1")
        A("s_add_u32 s49, s49, 1")
        A("s_waitcnt vmcnt(0)")
        for r in range(24, 24+2*NB): A(f"v_xor_b32 v{r}, s54, v{r}")
        A("v_or3_b32 v8, v24, v25, v26")
        for r in range(27, 24+2*NB-1, 2): A(f"v_or3_b32 v8, v8, v{r}, v{r+1}")
        A(f"v_or_b32 v8, v8, v{24+2*NB-1}")
        A("v_and_b32 v8, 0xff, v8")
        A("v_cmp_ne_u32 vcc, 0, v8")
        A("s_cbranch_vccnz L_x1no" + sfx)
        LB("L_x1ok" + sfx)
        stamp(5)
        if NB == 8:
            A("v_pk_add_f32 v[24:25], v[24:25], v[32:33]")
            A("v_pk_add_f32 v[26:27], v[26:27], v[34:35]")
            A("v_pk_add_f32 v[28:29], v[28:29], v[36:37]")
            A("v_pk_add_f32 v[30:31], v[30:31], v[38:39]")
        S = []
        def B(s): S.append("  " + s)
        S.append("L_x1no" + sfx + ":")
        B(f"s_cmp_lt_u32 s49, {NF}")
        B("s_cbranch_scc1 L_x1poll" + sfx)
        B("v_lshlrev_b32 v8, 1, v6")
        B("s_lshl_b32 s50, s20, 15")
        B("s_add_u32 s50, s50, %d" % O_EX1)
        B(f"s_cmp_lg_u32 s49, {NF}")
        B("s_cbranch_scc1 L_x1ns" + sfx)
        B("v_and_b32 v96, s48, v16")
        B("v_and_b32 v97, s48, v17")
        B("v_mov_b32 v98, s40")
        B("v_mov_b32 v99, s40")
        B("s_lshl_b32 s47, s21, 12")
        B("s_add_u32 s47, s47, s50")
        B("buffer_store_dwordx4 v[96:99], v8, s[32:35], s47 offen sc1")
        B("s_waitcnt vmcnt(0)")
        S.append("L_x1ns" + sfx + ":")
        for b in range(NB):
            B(f"buffer_load_dwordx4 v[{96+4*b}:{99+4*b}], v8, s[32:35], s50 offen sc1")
            B("s_add_u32 s50, s50, 4096")
        B("s_waitcnt vmcnt(0)")
        B("v_mov_b32 v8, 0")
        for b in range(NB):
            B(f"v_xor_b32 v{98+4*b}, s40, v{98+4*b}")
            B(f"v_xor_b32 v{99+4*b}, s40, v{99+4*b}")
            B(f"v_or3_b32 v8, v8, v{98+4*b}, v{99+4*b}")
            B(f"v_mov_b32 v{24+2*b}, v{96+4*b}")
            B(f"v_mov_b32 v{25+2*b}, v{97+4*b}")
        B("v_cmp_ne_u32 vcc, 0, v8")
        B("s_cbranch_vccz L_x1ok" + sfx)
        B("s_cmp_lt_u32 s49, %d" % SPIN)
        B("s_cbranch_scc1 L_x1poll" + sfx)
        if sfx == "b": S.append("L_last:")
        B("s_branch L_x1ok" + sfx)
        slow.extend(S)
    cpath(4, "a", KT, WA, KB, WM1, WM2)
    LB("L_h")
    A("v_pk_add_f32 v[24:25], v[24:25], v[28:29]   ; gate")
    A("v_pk_add_f32 v[26:27], v[26:27], v[30:31]   ; up")
    A("v_cvt_pk_bf16_f32 v8, v24, v25")
    A("v_cvt_pk_bf16_f32 v12, v26, v27")
    A("v_lshlrev_b32 v18, 16, v8")
    A("v_and_b32 v19, 0xffff0000, v8")
    A("v_mul_f32 v20, s51, v18")
    A("v_mul_f32 v21, s51, v19")
    A("v_exp_f32 v20, v20")
    A("v_exp_f32 v21, v21")
    A("v_lshlrev_b32 v14, 16, v12")
    A("v_add_f32 v20, 1.0, v20")
    A("v_add_f32 v21, 1.0, v21")
    A("v_rcp_f32 v20, v20")
    A("v_rcp_f32 v21, v21")
    A("v_and_b32 v15, 0xffff0000, v12")
    A("v_mul_f32 v18, v18, v20")
    A("v_mul_f32 v19, v19, v21")
    A("v_cvt_pk_bf16_f32 v8, v18, v19        ; silu")
    A("v_lshlrev_b32 v18, 16, v8")
    A("v_and_b32 v19, 0xffff0000, v8")
    A("v_mul_f32 v18, v18, v14")
    A("v_mul_f32 v19, v19, v15")
    A("v_cvt_pk_bf16_f32 v8, v18, v19        ; h")
    A(f"ds_write_b32 v7, v8 offset:{L_HB}")
    perms(raw2, frag2, 1)
    A("s_waitcnt lgkmcnt(0)")
    A("s_barrier                            ; B4")
    for s in range(2):
        A(f"ds_read_b128 v[{HA+4*s}:{HA+4*s+3}], v13 offset:{L_HB + 512*s}")
    for s in range(2):
        A(f"s_waitcnt lgkmcnt({1-s})")
        for j in range(4):
            c = "0" if s == 0 else f"v[{ACC+4*j}:{ACC+4*j+3}]"
            A(f"v_mfma_f32_16x16x32_bf16 v[{ACC+4*j}:{ACC+4*j+3}], v[{HA+4*s}:{HA+4*s+3}], v[{frag2(s,j)}:{frag2(s,j)+3}], {c}")
    A("s_mov_b32 exec_lo, -1")
    A("s_mov_b32 exec_hi, 0")
    A("s_nop 5")
    for r in range(4):
        for j in range(4):
            A(f"v_and_or_b32 v{20+4*r+j}, v{ACC+4*j+r}, s48, v9")
        A(f"buffer_store_dwordx4 v[{20+4*r}:{23+4*r}], v11, s[32:35], s52 offen {x2st}")
        if r < 3: A("s_add_u32 s52, s52, %d" % (32*7168))
    stamp(6)
    if not nob5: A("s_waitcnt vmcnt(0)")
    A("s_barrier                            ; B5")
    stamp(7)
    if stamps: A("s_branch L_fin")
    else: A("s_endpgm")
    main_end = len(L)
    LB("L_cb")
    cpath(2, "b", KT3, WA3 if WA3 is not None else WA, KB3, *(WM3 or (WM1, WM2)))
    A("s_branch L_h")

    def rsetup():
        A("s_mov_b64 s[32:33], s[18:19]")
        A("s_mov_b32 s34, %d" % WS_REC)
        A("s_mov_b32 s35, 0x20000")
        A("s_mov_b64 s[36:37], s[14:15]")
        A("s_mov_b32 s38, 524288")
        A("s_mov_b32 s39, 0x20000")
        A("v_and_b32 v4, 7, v0")
        if stamps:
            for i in range(2, 8): A(f"s_mov_b32 s{60+2*i}, 0")
            A("s_mov_b32 s59, 0")
            A("s_mov_b32 s49, 0")
    def idload():
        A("s_lshl_b32 s53, s50, 11")
        A(f"buffer_load_dwordx4 v[{IDR}:{IDR+3}], v14, s[28:31], s53 offen{xpol}")
        A(f"buffer_load_dwordx4 v[{IDR+4}:{IDR+7}], v14, s[28:31], s53 offen offset:1024{xpol}")
    def pretouch():
        A("s_lshl_b32 s45, s20, 14")
        A("s_lshl_b32 s46, s21, 11")
        A("s_add_u32 s46, s46, s45")
        A("s_add_u32 s48, s46, %d               ; own L2-local block" % O_EX1F)
        A("buffer_load_dwordx4 v[24:27], v14, s[32:35], s48 offen")
        A("buffer_load_dwordx4 v[28:31], v14, s[32:35], s48 offen offset:1024")
        if tt: A("v_mov_b32 v32, 0")
        if "o" in tt: A("buffer_load_dword v33, v32, s[36:39], s53 offen")
        if "e" in tt:
            A("s_mov_b32 s45, 0x2f0000")
            A("buffer_load_dword v35, v32, s[32:35], s45 offen")
        if "d" in tt:
            A("s_lshl_b32 s45, s20, 17")
            A("v_mov_b32 v36, s45")
            A("global_load_dword v37, v36, s[12:13]")
    def touches():
        A("s_lshl_b32 s45, s2, 11")
        A("s_lshl_b32 s46, s20, 17")
        A("s_mov_b32 s47, 0x2f0000")
        A("s_load_dword s41, s[4:5], s45")
        A("s_load_dword s42, s[12:13], s46")
        A("s_load_dword s43, s[14:15], s45")
        A("s_load_dword s44, s[18:19], s47")
        A("s_waitcnt lgkmcnt(0)")
    def fwait(nm, off):
        A("s_mov_b32 s49, 0")
        LB("L_fwait" + nm)
        if fsleep: A(f"s_sleep {fsleep}")
        A(f"ds_read_b32 v9, v8 offset:{off}")
        A("s_add_u32 s49, s49, 1")
        A("s_cmp_ge_u32 s49, %d" % SPIN)
        A("s_waitcnt lgkmcnt(0)")
        A("v_cmp_eq_u32 vcc, 0, v9")
        A("s_cbranch_scc1 L_fok" + nm)
        A("s_cbranch_vccnz L_fwait" + nm)
        LB("L_fok" + nm)
    def psetup():
        A("v_mul_u32_u24 v12, %d, v0            ; poll offset" % LS)
        A("s_mul_i32 s47, s22, %d" % REPS)
        A("s_add_u32 s47, s47, %d               ; this die's replica" % O_IDX)
        A("v_lshrrev_b32 v11, 3, v0")
        A("s_lshr_b32 s45, s21, 1")
        A("s_sub_u32 s46, 10, s57")
        A("s_lshl_b32 s45, s45, s46")
    LB("L_w5")
    if st:
        A("v_mov_b32 v8, 0")
        A(f"ds_write_b32 v8, v8 offset:{L_FLAG + 8}")
        fwait("0", L_FLAG + 8)
        touches()
    A("s_endpgm")
    LB("L_r")
    A("v_mov_b32 v8, 0")
    A("v_mov_b32 v9, 0")
    A(f"ds_write_b64 v8, v[8:9] offset:{L_FLAG}")
    A("s_mov_b32 s50, s2                    ; slice")
    A("s_mov_b64 s[28:29], s[4:5]")
    rsetup()
    stamp(1)
    psetup()
    if SA is None:
        fwait("a", L_FLAG)
        if FS: A(f"s_sleep {FS}")
    else:
        if E1:
            A("s_waitcnt vmcnt(0) lgkmcnt(0)")
            stamp(1)
        if SA: A(f"s_sleep {SA}")
        A("s_waitcnt lgkmcnt(0)")
    A("s_add_u32 s40, s40, 1")
    stamp(2)
    if NP:
        for k in range(NP):
            if k: A(f"s_sleep {DL}")
            A(f"buffer_load_dwordx2 v[{16+2*k}:{17+2*k}], v12, s[32:35], s47 offen sc1")
        A("s_mov_b32 s49, 0")
        LB("L_ipolln")
        for k in range(NP):
            A("s_add_u32 s49, s49, 1")
            A(f"s_waitcnt vmcnt({NP-1})")
            A(f"v_cmp_ne_u32 vcc, s40, v{17+2*k}")
            A(f"v_mov_b32 v8, v{16+2*k}")
            A("s_cbranch_vccz L_iok")
            A(f"buffer_load_dwordx2 v[{16+2*k}:{17+2*k}], v12, s[32:35], s47 offen sc1")
        A("s_cmp_lt_u32 s49, %d" % SPIN)
        A("s_cbranch_scc1 L_ipolln")
        A("s_branch L_iok")
    elif KB is not None or SB is not None:
        A(f"buffer_load_dwordx2 v[16:17], v12, s[32:35], s47 offen sc1")
        if SB is None: fwait("b", L_FLAG + 4)
        else: A(f"s_sleep {SB}")
        A("s_mov_b32 s49, 0")
        LB("L_ipoll2")
        A(f"buffer_load_dwordx2 v[18:19], v12, s[32:35], s47 offen sc1")
        A("s_add_u32 s49, s49, 1")
        A(f"s_waitcnt vmcnt(1)")
        A(f"v_cmp_ne_u32 vcc, s40, v17")
        A("v_mov_b32 v8, v16")
        A("s_cbranch_vccz L_iok")
        A(f"buffer_load_dwordx2 v[16:17], v12, s[32:35], s47 offen sc1")
        A("s_add_u32 s49, s49, 1")
        A("s_cmp_ge_u32 s49, %d" % SPIN)
        A(f"s_waitcnt vmcnt(1)")
        A(f"v_cmp_ne_u32 vcc, s40, v19")
        A("v_mov_b32 v8, v18")
        A("s_cbranch_scc1 L_iok")
        A("s_cbranch_vccnz L_ipoll2")
        A("s_branch L_iok")
    else:
        A("s_branch L_ip0")
    route_beg = len(L)
    LB("L_route")
    stamp(1)
    rsetup()
    A("s_and_b32 s45, s52, 7")
    A("s_lshl_b32 s46, s45, 3")
    A("s_lshr_b32 s52, s52, 3               ; batch")
    A("s_add_u32 s46, s46, s52")
    A("s_mul_i32 s46, s46, %d" % LS)
    A("s_add_u32 s46, s46, %d               ; slot" % O_IDX)
    A("s_lshl_b32 s45, s45, 2")
    A("v_mul_u32_u24 v5, %d, v0             ; replica offset" % REPS)
    A("v_lshrrev_b32 v10, 5, v0")
    A("v_bfe_u32 v11, v0, 4, 1")
    A("v_lshl_add_u32 v10, v11, 1, v10")
    A("v_add_u32 v10, s45, v10")
    A("v_xor_b32 v10, 31, v10")
    for t in range(4):
        for hlf in range(2):
            A(f"s_waitcnt vmcnt({7 - 2*t - hlf})")
            if rp and t == 0 and hlf == 0: stamp(5)
            if rp and t == 3 and hlf == 1: stamp(6)
            for k in range(4):
                c = "0" if (hlf == 0 and k == 0) else f"v{6+t}"
                A(f"v_dot2_f32_bf16 v{6+t}, v{XR+8*t+4*hlf+k}, v{16+4*hlf+k}, {c}")
    A("s_waitcnt lgkmcnt(0)")
    if rp: stamp(4)
    A("s_add_u32 s40, s40, 1")
    A("s_nop 0")
    A("v_permlane32_swap_b32 v6, v7")
    A("v_permlane32_swap_b32 v8, v9")
    A("v_add_f32 v6, v6, v7")
    A("v_add_f32 v8, v8, v9")
    A("s_nop 1")
    A("v_permlane16_swap_b32 v6, v8")
    A("v_add_f32 v6, v6, v8")
    A("s_nop 1")
    A("v_add_f32_dpp v6, v6, v6 quad_perm:[1,0,3,2] row_mask:0xf bank_mask:0xf")
    A("s_nop 1")
    A("v_add_f32_dpp v6, v6, v6 quad_perm:[2,3,0,1] row_mask:0xf bank_mask:0xf")
    A("s_nop 1")
    A("v_add_f32_dpp v6, v6, v6 row_half_mirror row_mask:0xf bank_mask:0xf")
    A("s_nop 1")
    A("v_add_f32_dpp v6, v6, v6 row_mirror row_mask:0xf bank_mask:0xf")
    A("v_cvt_pk_bf16_f32 v7, v6, v6")
    A("v_and_b32 v7, 0xffff0000, v7          ; r (bf16)")
    A("v_ashrrev_i32 v6, 31, v7")
    A("v_or_b32 v6, 0x80000000, v6")
    A("v_xor_b32 v6, v6, v7")
    A("v_cmp_o_f32 vcc, v7, v7")
    A("v_and_b32 v6, 0xffff0000, v6")
    A("s_nop 0")
    A("v_cndmask_b32 v6, 0, v6, vcc")
    A("v_or_b32 v6, v10, v6")
    A("v_mov_b32 v7, v6")
    A("s_nop 1")
    A("v_permlane16_swap_b32 v6, v7")
    A("v_max_u32 v6, v6, v7")
    A("v_mov_b32 v7, v6")
    A("s_nop 1")
    A("v_permlane32_swap_b32 v6, v7")
    A("v_max_u32 v6, v6, v7")
    A("v_mov_b32 v7, s40")
    A("s_mov_b64 exec, 0xff")
    A("buffer_store_dwordx2 v[6:7], v5, s[32:35], s46 offen sc1")
    A("s_mov_b64 exec, -1")
    if rp: stamp(3)
    A("s_barrier                            ; B0b")
    stamp(2)
    A("s_setprio 0")
    A("s_branch L_rpub")
    route_end = len(L)
    LB("L_rpub")
    A("s_cmp_eq_u32 s3, 4")
    A("s_cbranch_scc1 L_r4")
    if st: touches()
    A("s_endpgm")
    LB("L_r4")
    A("s_mov_b32 s50, s2                    ; slice")
    psetup()
    if rack: A(f"s_waitcnt vmcnt(0)")
    LB("L_ip0")
    A("s_mov_b32 s49, 0")
    LB("L_ipoll")
    A(f"buffer_load_dwordx2 v[8:9], v12, s[32:35], s47 offen sc1")
    A("s_add_u32 s49, s49, 1")
    A("s_cmp_ge_u32 s49, %d" % SPIN)
    A(f"s_waitcnt vmcnt(0)")
    A(f"v_cmp_ne_u32 vcc, s40, v9")
    A("s_cbranch_scc1 L_iok")
    A("s_cbranch_vccnz L_ipoll")
    LB("L_iok")
    if not rp: stamp(3)
    if stamps: A("s_mov_b32 s59, s49")
    A("s_mov_b32 m0, %d" % L_XS)
    A("s_nop 0")
    A("v_max_u32_dpp v8, v8, v8 row_ror:8 row_mask:0xf bank_mask:0xf")
    A("v_mov_b32 v9, v8")
    A("s_cmp_eq_u32 s57, 1")
    A("s_nop 0")
    A("v_permlane16_swap_b32 v8, v9")
    A("v_max_u32 v8, v8, v9")
    A("v_mov_b32 v9, v8")
    A("s_nop 1")
    A("v_permlane32_swap_b32 v8, v9")
    A("v_max_u32 v8, v8, v9")
    A("v_and_b32 v10, 31, v8")
    A("v_xor_b32 v10, 31, v10")
    A("v_lshl_add_u32 v10, v4, 5, v10       ; row")
    A("v_lshlrev_b32 v10, 11, v10")
    A("v_lshl_add_u32 v10, v11, 4, v10      ; + chunk*16")
    A("v_lshlrev_b32 v9, 2, v4")
    for i in range(8):
        if i == 4: A("s_cbranch_scc1 L_dmadone")
        A(f"buffer_load_dwordx4 v10, s[28:31], s45 offen{xpol} lds")
        if i < 7:
            A("s_mov_b32 m0, %d" % (L_XS + 1024*(i+1)))
            A("v_add_u32 v10, 128, v10")
    LB("L_dmadone")
    A(f"ds_write_b32 v9, v8 offset:{L_KEY}")
    idload()
    pretouch()
    LB("L_b2")
    A("s_lshr_b32 s51, s50, 5")
    A("s_lshl_b32 s45, s51, 2")
    A("v_mov_b32 v5, s45")
    A(f"s_waitcnt vmcnt({4 + len(tt)}) lgkmcnt(0)")
    A("s_barrier                            ; B2")
    if not rp: stamp(4)
    A(f"ds_read_b32 v6, v5 offset:{L_KEY}")
    A(f"s_waitcnt vmcnt({2 + len(tt)})")
    for r in range(IDR, IDR+8):
        A(f"v_lshlrev_b32 v16, 16, v{r}")
        A(f"v_and_b32 v17, 0xffff0000, v{r}")
        A("v_pk_fma_f32 v[16:17], v[16:17], 0, v[16:17] op_sel_hi:[1,0,1]")
        A(f"v_cvt_pk_bf16_f32 v{r}, v16, v17    ; x + x*0")
    A("s_and_b32 s41, s40, 0xff")
    A("v_lshrrev_b32 v7, 5, v0")
    A("v_bfe_u32 v8, v0, 4, 1")
    A("v_lshl_add_u32 v7, v8, 1, v7         ; e")
    A("v_lshl_add_u32 v7, v4, 2, v7         ; 4*pos + e")
    A("s_and_b32 s46, s50, 31")
    A("s_lshl_b32 s45, s46, 5")
    A("v_add_u32 v7, s45, v7                ; column")
    A("s_waitcnt lgkmcnt(0)")
    A("s_barrier                            ; B3")
    A("v_and_b32 v8, 31, v6")
    A("v_xor_b32 v8, 31, v8")
    A("v_cmp_ne_u32 vcc, s46, v8")
    A("s_lshl_b32 s45, s51, 5")
    A("v_add_u32 v8, s45, v8                ; row")
    A("v_lshlrev_b32 v8, 10, v8")
    A("v_add_u32 v7, v8, v7")
    A("v_lshlrev_b32 v7, 1, v7")
    A("buffer_load_ushort v9, v7, s[28:31], 0 offen")
    A("s_cbranch_vccz L_sel")
    A(f"buffer_store_dwordx4 v[{IDR}:{IDR+3}], v14, s[36:39], s53 offen{outpol}")
    A(f"buffer_store_dwordx4 v[{IDR+4}:{IDR+7}], v14, s[36:39], s53 offen offset:1024{outpol}")
    LB("L_sel")
    A("v_lshrrev_b32 v10, 16, v6")
    A("v_xor_b32 v11, 0xffff, v10")
    A("v_and_b32 v12, 0x7fff, v10")
    A("v_cmp_gt_i32 vcc, 0, v6")
    A("s_mov_b32 s45, 0xbfb8aa3b")
    A("s_nop 0")
    A("v_cndmask_b32 v10, v11, v12, vcc")
    A("v_lshlrev_b32 v10, 16, v10           ; r")
    A("v_mul_f32 v10, s45, v10")
    A("v_exp_f32 v10, v10")
    A("s_nop 0")
    A("v_add_f32 v10, 1.0, v10")
    A("v_rcp_f32 v10, v10")
    A("s_nop 0")
    A("v_cvt_pk_bf16_f32 v10, v10, v10")
    A("v_and_b32 v10, 0xffff0000, v10       ; sigmoid")
    A("s_mul_i32 s46, s50, 7168")
    A("s_add_u32 s46, s46, %d" % O_EX2)
    A("s_add_u32 s47, s46, 4096")
    A("s_mov_b32 s49, 0")
    A("s_mov_b32 s44, 0x00ff00ff")
    A("s_mov_b32 s45, 0x00ff00ff")
    A("s_waitcnt vmcnt(0)")
    A("v_lshlrev_b32 v9, 16, v9             ; x")
    A("v_mov_b32 v13, 0")
    A("s_barrier                            ; B4")
    A("s_barrier                            ; B5")
    if not rp: stamp(5)
    if x2d: A(f"s_sleep {x2d}")
    if mx:
        MS = 76 if stamps else 60
        def ld(i):
            so = "s46" if i < 4 else "s47"
            A(f"buffer_load_dwordx4 v[{32+4*i}:{35+4*i}], v14, s[32:35], {so} offen offset:{(i%4)*1024} {x2ld}")
        def chk(i):
            b = 32 + 4*i
            for r in range(b, b+4): A(f"v_xor_b32 v{r}, s41, v{r}")
            A(f"v_or3_b32 v15, v{b}, v{b+1}, v{b+2}")
            A(f"v_or_b32 v15, v15, v{b+3}")
            A(f"v_cmp_ne_u32_sdwa s[{MS+2*i}:{MS+2*i+1}], v15, v13 src0_sel:BYTE_0 src1_sel:DWORD")
        def anyleft():
            A(f"s_or_b64 s[42:43], s[{MS}:{MS+1}], s[{MS+2}:{MS+3}]")
            for i in range(2, 7): A(f"s_or_b64 s[42:43], s[42:43], s[{MS+2*i}:{MS+2*i+1}]")
        for i in range(7): ld(i)
        A("s_mov_b32 s49, 1")
        for i in range(7):
            A(f"s_waitcnt vmcnt({6-i})")
            chk(i)
            if i == 1: A("v_pk_add_f32 v[16:17], v[32:33], v[36:37]"); A("v_pk_add_f32 v[18:19], v[34:35], v[38:39]")
            if i >= 2: A(f"v_pk_add_f32 v[16:17], v[16:17], v[{32+4*i}:{33+4*i}]"); A(f"v_pk_add_f32 v[18:19], v[18:19], v[{34+4*i}:{35+4*i}]")
        anyleft()
        A("s_cbranch_scc0 L_x2ok")
        LB("L_x2poll")
        if x2s: A(f"s_sleep {x2s}")
        for i in range(7):
            A(f"s_mov_b64 exec, s[{MS+2*i}:{MS+2*i+1}]")
            A(f"s_cbranch_execz L_x2l{i}")
            ld(i)
            LB(f"L_x2l{i}")
        A("s_add_u32 s49, s49, 1")
        A("s_waitcnt vmcnt(0)")
        for i in range(7):
            A(f"s_mov_b64 exec, s[{MS+2*i}:{MS+2*i+1}]")
            A(f"s_cbranch_execz L_x2c{i}")
            chk(i)
            LB(f"L_x2c{i}")
        A("s_mov_b64 exec, -1")
        anyleft()
        A("s_cbranch_scc0 L_x2sum")
        A("s_cmp_lt_u32 s49, %d" % SPIN)
        A("s_cbranch_scc1 L_x2poll")
        LB("L_x2sum")
        A("v_pk_add_f32 v[16:17], v[32:33], v[36:37]"); A("v_pk_add_f32 v[18:19], v[34:35], v[38:39]")
        for i in range(2, 7):
            A(f"v_pk_add_f32 v[16:17], v[16:17], v[{32+4*i}:{33+4*i}]"); A(f"v_pk_add_f32 v[18:19], v[18:19], v[{34+4*i}:{35+4*i}]")
        A("s_nop 0")
    else:
        LB("L_x2poll")
        for i in range(7):
            so = "s46" if i < 4 else "s47"
            A(f"buffer_load_dwordx4 v[{32+4*i}:{35+4*i}], v14, s[32:35], {so} offen offset:{(i%4)*1024} {x2ld}")
        A("s_add_u32 s49, s49, 1")
        for i in range(7):
            A(f"s_waitcnt vmcnt({6-i})")
            b = 32 + 4*i
            for r in range(b, b+4): A(f"v_xor_b32 v{r}, s41, v{r}")
            if i == 0:
                A(f"v_or3_b32 v15, v{b}, v{b+1}, v{b+2}")
                A(f"v_or_b32 v15, v15, v{b+3}")
            else:
                A(f"v_or3_b32 v15, v15, v{b}, v{b+1}")
                A(f"v_or3_b32 v15, v15, v{b+2}, v{b+3}")
                src = 32 if i == 1 else 16
                A(f"v_pk_add_f32 v[16:17], v[{src}:{src+1}], v[{b}:{b+1}]")
                A(f"v_pk_add_f32 v[18:19], v[{src+2}:{src+3}], v[{b+2}:{b+3}]")
        A("v_and_b32 v15, 0xff, v15")
        A("v_cmp_ne_u32 vcc, 0, v15")
        A("s_cbranch_vccz L_x2ok")
        A("s_cmp_lt_u32 s49, %d" % SPIN)
        A("s_cbranch_scc1 L_x2poll")
    LB("L_x2ok")
    if not rp: stamp(6)
    A("v_permlane32_swap_b32 v16, v17")
    A("v_permlane32_swap_b32 v18, v19")
    A("v_add_f32 v16, v16, v17")
    A("v_add_f32 v18, v18, v19")
    A("s_nop 1")
    A("v_permlane16_swap_b32 v16, v18")
    A("v_add_f32 v16, v16, v18")
    A("s_nop 1")
    A("v_add_f32_dpp v16, v16, v16 row_ror:8 row_mask:0xf bank_mask:0xf")
    A("s_mov_b64 exec, s[44:45]")
    A("v_cvt_pk_bf16_f32 v16, v16, v16")
    A("v_and_b32 v16, 0xffff0000, v16       ; y")
    A("v_mul_f32 v16, v16, v10")
    A("v_cvt_pk_bf16_f32 v16, v16, v16")
    A("v_and_b32 v16, 0xffff0000, v16       ; y*sigmoid")
    A("v_fma_f32 v16, v9, 0, v16            ; upd = x*0 + y")
    A("v_add_f32 v16, v9, v16")
    A("v_cvt_pk_bf16_f32 v16, v16, v16")
    A(f"buffer_store_short v16, v7, s[36:39], 0 offen{outpol}")
    A("s_cmp_lg_u32 s50, 0")
    A("s_cbranch_scc1 L_noep")
    A("v_mov_b32 v18, s40")
    A("v_mov_b32 v17, 0")
    A("s_mov_b64 exec, 1")
    A("buffer_store_dword v18, v17, s[32:35], 0 offen sc1")
    LB("L_noep")
    stamp(7)
    LB("L_fin")
    import diag
    if dg: diag.epilogue(A, LB, dg)
    elif gamp: diag.gamp(A, LB, gamp)
    elif gpair: diag.gpair(A, LB, gpair)
    elif stamps: diag.dump(A, LB)
    LB("L_end")
    A("s_endpgm")
    if align:
        L = L[:main_end] + L[route_beg:route_end] + [".p2align 12"] + L[main_end:route_beg] + L[route_end:]
    L.extend(slow)
    body = "\n".join(L)
    pad = ".p2align 12\n.fill 832, 4, 0xbf800000            ; the kernel starts a 4 KB page (instruction prefetch stops at page ends)\n" if align else ""
    return f"""{HEAD}; @launch grid=(256,1,1) block=(384,1,1) lds={LDSB or LDS_BYTES}
.amdgcn_target "amdgcn-amd-amdhsa--gfx950"
.text
.globl {KN}
{pad}.p2align 8
.type {KN},@function
{KN}:
{body}
.section .rodata,"a"
.p2align 6
.amdhsa_kernel {KN}
  .amdhsa_next_free_vgpr 160
  .amdhsa_next_free_sgpr 96
  .amdhsa_accum_offset 160
  .amdhsa_group_segment_fixed_size 0
  .amdhsa_kernarg_size 64
  .amdhsa_user_sgpr_count 2
  .amdhsa_user_sgpr_kernarg_segment_ptr 1
  .amdhsa_system_sgpr_workgroup_id_x 1
  .amdhsa_float_denorm_mode_32 3
.end_amdhsa_kernel
"""
if __name__ == "__main__":
    import sys, json
    kw = json.loads(sys.argv[2]) if len(sys.argv) > 2 else {}
    open(sys.argv[1] if len(sys.argv) > 1 else "standalone__moe_arch_mod__sampling.s", "w").write(gen(**kw))
```

```python
KN = "standalone__moe_arch_mod__sampling_kernel"
HEAD = open("standalone__moe_arch_mod__sampling.s.ref").read().split("; Override launch")[0]

O_IDX = 0x1000
O_EX1F = 0x20000
O_EX2 = 0x100000
O_EX1 = 0x300000
WS_REC = 0x500000
L_XS = 0
L_RED = 8192
L_HB = 16384
L_KEY = 17408
L_FLAG = 17408 + 32
LDS_BYTES = 17408 + 64
SPIN = 40000
NRX = 4

def gen(pol="nt", xpol="", D=10, LS=16, NF=12, stamps=False, outpol="", D0=3, WA=10, WM1=2, WM2=1, PK=None,
        KT=21, KT3=17, dg=None, gamp=None, cpf=3, tt="o", fsleep=1, cst1=False, WA3=None, rack=True, RD=(1,2,3,7), KB=None, KB3=None, SA=None, SB=None, E1=True, st=True, x1pol="", rst=True, K0=None, NP=0, DL=9, DI=None, rp=False, FS=0, RM=None, align=True, mx=True, x2d=0, x2s=0, x2ld="sc1", x2st="sc1", nob5=False, gpair=None, WM3=None, DUP0=False, LD=0, PERM=None, LDSB=None, sdp=True):
    RM = {int(k): v for k, v in RM.items()} if RM else {d: i for i, d in enumerate(RD)}
    RD = list(RM)
    if gamp or dg or gpair: stamps = True
    L = []
    def A(s): L.append("  " + s)
    def LB(s): L.append(s + ":")
    def stamp(i):
        if stamps: A(f"s_memrealtime s[{60+2*i}:{61+2*i}]")
    pol = (" " + pol) if pol else ""
    xpol = (" " + xpol) if xpol else ""
    outpol = (" " + outpol) if outpol else ""
    REPS = 64 * LS
    XR = 80
    RAW = 16; FR = 80; XB = 96; ACC = 112; W2 = 128
    F2 = 40; HA = 72
    IDR = 40
    def raw(s, i): return RAW + 16*s + 2*i
    def frag(s, j): return (FR if s == 0 else RAW + 16*(s-1)) + 4*j
    def raw2(s, i): return W2 + 16*s + 2*i
    def frag2(s, j): return F2 + 16*s + 4*j
    def perms(rawf, fragf, s):
        for e in range(2):
            for p in range(4):
                A(f"v_perm_b32 v{fragf(s,2*e)+p}, v{rawf(s,2*p+1)+e}, v{rawf(s,2*p)+e}, s42")
            for p in range(4):
                A(f"v_perm_b32 v{fragf(s,2*e+1)+p}, v{rawf(s,2*p+1)+e}, v{rawf(s,2*p)+e}, s43")
    def w1load(n):
        s, i = divmod(n, 8)
        A(f"buffer_load_dwordx2 v[{raw(s,i)}:{raw(s,i)+1}], v3, s[24:27], s44 offen{pol}")
        A("s_addk_i32 s44, 7168" if i < 7 else "s_add_u32 s44, s44, %d" % (25*7168))
    def w2load(n):
        s, i = divmod(n, 8)
        p, b = divmod(i, 2)
        row = 2*s + (p >> 1) + 8*(p & 1) + 4*b
        A("s_add_u32 s47, s53, %d" % (row*2048))
        A(f"buffer_load_dwordx2 v[{raw2(s,i)}:{raw2(s,i)+1}], v10, s[28:31], s47 offen{pol}")

    stamp(0)
    A("s_cmp_ge_u32 s2, 256")
    A("s_cbranch_scc1 L_w5x")
    A("s_load_dwordx16 s[4:19], s[0:1], 0")
    A("v_lshrrev_b32 v1, 6, v0")
    A("v_and_b32 v0, 63, v0                 ; lane")
    A("v_readfirstlane_b32 s3, v1           ; wave")
    if PERM:
        A("s_lshl_b32 s22, s2, 2")
        A("s_lshr_b32 s22, 0x%x, s22" % sum(v << (4*i) for i, v in enumerate(PERM)))
    else:
        A("s_sub_u32 s22, s2, %d" % LD)
    A("s_and_b32 s22, s22, 7")
    A("s_lshr_b32 s23, s2, 3")
    A("s_lshr_b32 s44, s23, 2")
    A("s_mul_i32 s45, s22, 6")
    A("s_sub_u32 s45, s45, 6")
    A("s_lshl_b32 s46, s22, 3")
    A("s_sub_u32 s46, s46, 16")
    A("s_cmp_lt_u32 s22, 5")
    A("s_cselect_b32 s45, s45, s46")
    A("s_cselect_b32 s46, 24, 32")
    A("s_add_u32 s45, s45, s44")
    A("s_add_u32 s44, s45, 4")
    A("s_mul_i32 s44, s44, 37")
    A("s_lshr_b32 s44, s44, 8")
    A("s_add_u32 s20, s45, s44")
    A("s_and_b32 s45, s23, 0x18")
    A("s_add_u32 s45, s45, 3")
    A("s_cmp_eq_u32 s45, 27")
    A("s_cselect_b32 s45, 55, s45")
    A("s_lshl_b32 s44, s22, 3")
    A("s_add_u32 s44, s44, 19")
    A("s_cmp_eq_u32 s22, 0")
    A("s_cselect_b32 s44, s45, s44")
    A("s_cselect_b32 s46, 0, s46")
    if not DUP0: A("s_cselect_b32 s58, 0, 1")
    A("s_cmp_ge_u32 s23, s46")
    A("s_cselect_b32 s20, s44, s20")
    A("s_cselect_b32 s57, 1, 0")
    A("s_cselect_b32 s21, 7, 3")
    A("s_and_b32 s21, s21, s23              ; part")
    if DUP0: A("s_mov_b32 s58, s57")
    else: A("s_and_b32 s58, s58, s57")
    A("s_mov_b32 s27, 0x20000")
    A("s_cmp_lt_u32 s3, 4")
    A("s_cbranch_scc1 L_c")
    A("s_mov_b32 s30, 524288")
    A("s_mov_b32 s31, 0x20000")
    A("v_lshlrev_b32 v14, 4, v0             ; lane*16")
    A("s_cmp_eq_u32 s58, 1")
    A("s_cbranch_scc1 L_rt")
    A("s_cmp_eq_u32 s3, 4")
    A("s_cbranch_scc1 L_r")
    if st: A("s_branch L_w5")
    LB("L_w5x")
    A("s_endpgm")
    LB("L_rt")
    A("s_setprio 3")
    A("s_lshl_b32 s52, s22, 3")
    if DUP0:
        A("s_and_b32 s44, s23, 0x18")
        A("s_add_u32 s44, s44, 8")
        A("s_cmp_eq_u32 s22, 0")
        A("s_cselect_b32 s52, s44, s52")
    A("s_add_u32 s52, s52, s21")
    A("s_lshl_b32 s52, s52, 1")
    A("s_add_u32 s52, s52, s3")
    A("s_sub_u32 s52, s52, 20")
    A("s_lshl_b32 s44, s52, 13")
    A("s_add_u32 s45, s44, 4096")
    A("s_movk_i32 s26, 2048")
    A("s_waitcnt lgkmcnt(0)")
    if rst:
        A("s_load_dword s41, s[4:5], s44")
        A("s_load_dword s42, s[6:7], 0")
    A("s_mov_b64 s[28:29], s[4:5]")
    A("s_mov_b64 s[24:25], s[6:7]")
    A("s_load_dword s40, s[18:19], 0        ; epoch")
    A(f"buffer_load_dwordx4 v[16:19], v14, s[24:27], 0 offen")
    A(f"buffer_load_dwordx4 v[20:23], v14, s[24:27], 0 offen offset:1024")
    for i in range(8):
        A(f"buffer_load_dwordx4 v[{XR+4*i}:{XR+4*i+3}], v14, s[28:31], {'s44' if i < 4 else 's45'} offen offset:{(i%4)*1024}{xpol}")
    A("s_barrier                            ; B0")
    A("s_branch L_route")
    LB("L_c")
    if cpf is not None:
        A("s_getpc_b64 s[46:47]")
        LB("L_pc")
        A(f"s_cmp_lg_u32 s3, {cpf}")
        A("s_cbranch_scc1 L_nopf")
        A("v_lshlrev_b32 v2, 7, v0")
        A("v_min_u32 v2, L_last - L_pc - 256, v2")
        A("global_load_dword v159, v2, s[46:47] offset:256")
        LB("L_nopf")
    A("v_mov_b32 v4, 0")
    if st or KB is not None:
        for r in (5, 6, 7): A(f"v_mov_b32 v{r}, 0")
        A(f"ds_write_b128 v4, v[4:7] offset:{L_FLAG}")
    else:
        A(f"ds_write_b32 v4, v4 offset:{L_FLAG}")
    A("s_mov_b32 s26, 7340032")
    A("v_lshrrev_b32 v1, 4, v0              ; g")
    A("v_and_b32 v2, 15, v0                 ; n")
    A("v_mul_u32_u24 v3, %d, v1" % (8*7168))
    A("v_lshl_add_u32 v3, v2, 3, v3         ; voffset")
    A("s_lshr_b32 s44, s21, 1")
    A("s_lshl_b32 s44, s44, 2")
    A("s_add_u32 s44, s44, s3")
    A("s_lshr_b32 s45, %d, s57" % (128*7168))
    A("s_mul_i32 s44, s44, s45")
    A("s_lshl_b32 s45, s20, 7")
    A("s_add_u32 s44, s44, s45              ; soffset")
    A("s_bitcmp1_b32 s21, 0")
    A("s_waitcnt lgkmcnt(0)")
    A("s_cselect_b64 s[24:25], s[10:11], s[8:9]")
    A("s_cmp_eq_u32 s58, 0")
    A("s_cbranch_scc1 L_nb0")
    A("s_barrier")
    LB("L_nb0")
    if not cst1: stamp(1)
    DI = DI or D
    for n in range(DI):
        w1load(n)
        if n == D0 - 1:
            A("s_cmp_eq_u32 s58, 0")
            A("s_cbranch_scc1 L_nb0b")
            A("s_barrier")
            LB("L_nb0b")
    A("s_load_dword s40, s[18:19], 0        ; epoch")
    if sdp:
        A("s_getpc_b64 s[46:47]")
        LB("L_pc2")
        A("s_lshl_b32 s45, s23, 1")
        A("s_and_b32 s48, s3, 1")
        A("s_add_u32 s45, s45, s48")
        A("s_lshl_b32 s45, s45, 7")
        A("s_min_u32 s45, s45, L_last - L_pc2")
        A("s_load_dword s41, s[46:47], s45")
    if stamps:
        for i in range(2, 8): A(f"s_mov_b32 s{60+2*i}, 0")
        A("s_getreg_b32 s59, hwreg(HW_REG_HW_ID)")
    A("s_mov_b64 s[32:33], s[18:19]")
    A("s_mov_b32 s34, %d" % WS_REC)
    A("s_mov_b32 s35, 0x20000")
    A("s_mov_b32 s42, 0x05040100")
    A("s_mov_b32 s43, 0x07060302")
    A("v_and_b32 v8, 7, v0")
    A("v_lshl_add_u32 v13, v1, 3, v8")
    A("v_lshlrev_b32 v13, 4, v13")
    A("s_lshl_b32 s45, s3, 11")
    A("v_add_u32 v4, s45, v13")
    A("s_lshr_b32 s45, s45, s57")
    A("v_add_u32 v5, s45, v13")
    A("v_lshlrev_b32 v6, 3, v0")
    A("s_lshl_b32 s45, s3, 9")
    A("v_add_u32 v6, s45, v6                ; w*512 + lane*8")
    A("v_lshrrev_b32 v7, 1, v0")
    A("v_lshlrev_b32 v7, 4, v7")
    A("v_and_b32 v9, 1, v0")
    A("v_lshl_add_u32 v7, v9, 2, v7")
    A("s_lshr_b32 s45, s3, 1")
    A("s_lshl_b32 s45, s45, 9")
    A("s_and_b32 s46, s3, 1")
    A("s_lshl_b32 s46, s46, 3")
    A("s_add_u32 s45, s45, s46")
    A("v_add_u32 v7, s45, v7")
    A("s_mov_b64 s[28:29], s[12:13]")
    A("s_mov_b32 s30, 7340032")
    A("s_mov_b32 s31, 0x20000")
    A("v_lshlrev_b32 v10, 15, v1            ; g*16*2048")
    A("v_lshl_add_u32 v10, v2, 3, v10")
    A("v_lshrrev_b32 v11, 3, v2")
    A("v_lshl_add_u32 v11, v1, 7, v11       ; 4g*32 + (n>>3)")
    A("v_mul_u32_u24 v11, 7168, v11")
    A("v_lshl_add_u32 v11, v8, 4, v11       ; + (n&7)*16")
    A("s_lshl_b32 s53, s21, 2")
    A("s_lshr_b32 s53, s53, s57")
    A("s_add_u32 s53, s53, s3")
    A("s_lshr_b32 s45, s3, 1")
    A("s_and_b32 s45, s45, s57")
    A("s_lshl_b32 s45, s45, 30")
    A("v_or_b32 v10, s45, v10")
    A("v_or_b32 v11, s45, v11")
    A("s_mul_i32 s52, s53, %d" % (2*7168))
    A("s_lshl_b32 s46, s20, 7")
    A("s_add_u32 s52, s52, s46")
    A("s_add_u32 s52, s52, %d" % O_EX2)
    A("s_lshl_b32 s53, s53, 7")
    A("s_lshl_b32 s46, s20, 17              ; ct*64*2048")
    A("s_add_u32 s53, s53, s46")
    A("s_lshl_b32 s45, s20, 14")
    A("s_lshl_b32 s46, s21, 11")
    A("s_add_u32 s45, s45, %d               ; group base" % O_EX1F)
    A("s_add_u32 s46, s46, s45")
    A("s_mov_b32 s48, 0xffffff00")
    A("s_mov_b32 s51, 0xbfb8aa3b            ; -log2(e)")
    A("s_mov_b32 s49, 0")
    A("s_getreg_b32 s54, hwreg(HW_REG_XCC_ID, 0, 3)")
    A("v_mov_b32 v12, 1")
    depth = DI
    first = True
    for n in range(DI, 16):
        if depth < D and not first and (n - DI) % 2 == 1:
            depth += 1
        else:
            A(f"s_waitcnt vmcnt({depth-1})")
        first = False
        if n == DI and cst1: stamp(1)
        if n == KT and KT < 16 and SA is None: A(f"ds_write_b32 v12, v12 offset:{L_FLAG - 1}")
        if n == (K0 or DI) and st: A(f"ds_write_b32 v12, v12 offset:{L_FLAG + 7}")
        w1load(n)
    assert depth == D
    A("s_cmp_eq_u32 s57, 1")
    A("s_cbranch_scc1 L_cb")

    slow = []
    def cpath(NS, sfx, K, WA, K2, WM1, WM2):
        NL = 8*NS
        WB = 16 - WA - WM1 - WM2
        assert WB >= 0
        done = 0
        if NS == 2: stamp(2)
        for n in range(16, NL + WA):
            A(f"s_waitcnt vmcnt({D-1})")
            if n < NL: w1load(n)
            else: w2load(n - NL)
            if n == K and SA is None and KT >= 16:
                A(f"ds_write_b32 v12, v12 offset:{L_FLAG - 1}")
            if n == K2:
                A(f"ds_write_b32 v12, v12 offset:{L_FLAG + 3}")
            if n == NL - 1: stamp(2)
            complete = n - D + 1
            while done < NS and 8*done + 8 <= complete:
                perms(raw, frag, done); done += 1
        A("s_waitcnt lgkmcnt(0)")
        A("s_add_u32 s40, s40, 1                ; tag32")
        A("s_and_b32 s41, s40, 0xff")
        A("s_lshl_b32 s55, s40, 3")
        A("s_and_b32 s55, s55, 0xf8")
        A("s_or_b32 s54, s54, s55")
        A("v_mov_b32 v9, s41")
        A("v_mov_b32 v12, s54")
        while done < NS:
            A(f"s_waitcnt vmcnt({NL + WA - 8*done - 8})")
            perms(raw, frag, done); done += 1
        A("s_barrier                            ; B2")
        stamp(3)
        for s in range(NS):
            A(f"ds_read_b128 v[{XB+4*s}:{XB+4*s+3}], v5 offset:{L_XS + 512*s}")
        for n in range(WA, WA + WM1): w2load(n)
        for s in range(NS):
            A(f"s_waitcnt lgkmcnt({NS-1-s})")
            for j in range(4):
                c = "0" if s == 0 else f"v[{ACC+4*j}:{ACC+4*j+3}]"
                A(f"v_mfma_f32_16x16x32_bf16 v[{ACC+4*j}:{ACC+4*j+3}], v[{frag(s,j)}:{frag(s,j)+3}], v[{XB+4*s}:{XB+4*s+3}], {c}")
        A("s_mov_b32 exec_lo, 0x00ff00ff")
        A("s_mov_b32 exec_hi, 0x00ff00ff")
        A("s_nop 2")
        for j in range(4):
            A(f"ds_write_b128 v4, v[{ACC+4*j}:{ACC+4*j+3}] offset:{L_RED + 512*j}")
        A("s_mov_b64 exec, -1")
        for n in range(WA + WM1, WA + WM1 + WM2): w2load(n)
        A("s_waitcnt lgkmcnt(0)")
        A("s_barrier                            ; B3")
        for w in range(4):
            A(f"ds_read_b64 v[{16+2*w}:{17+2*w}], v6 offset:{L_RED + 2048*w}")
        A("s_waitcnt lgkmcnt(2)")
        A("v_pk_add_f32 v[16:17], v[16:17], v[18:19]")
        A("s_waitcnt lgkmcnt(0)")
        A("v_pk_add_f32 v[20:21], v[20:21], v[22:23]")
        A("v_pk_add_f32 v[16:17], v[16:17], v[20:21]")
        A("v_and_or_b32 v16, v16, s48, v12")
        A("v_and_or_b32 v17, v17, s48, v12")
        A("buffer_store_dwordx2 v[16:17], v6, s[32:35], s46 offen" + (" " + x1pol if x1pol else ""))
        stamp(4)
        for n in range(16 - WB, 16): w2load(n)
        pk = WB if PK is None else PK
        after7 = 8 + (1 if 16 - WB >= 8 else 0)
        A(f"s_waitcnt vmcnt({min(max(pk, 0), after7) if pk > after7 else after7})")
        perms(raw2, frag2, 0)
        if pk < after7: A(f"s_waitcnt vmcnt({pk})")
        NB = 4 if NS == 4 else 8
        LB("L_x1poll" + sfx)
        for b in range(NB):
            if b and b % 2 == 0: A(f"s_add_u32 s47, s45, {b*2048}")
            A(f"buffer_load_dwordx2 v[{24+2*b}:{25+2*b}], v6, s[32:35], {'s45' if b < 2 else 's47'} offen offset:{(b%2)*2048} sc1")
        A("s_add_u32 s49, s49, 1")
        A("s_waitcnt vmcnt(0)")
        for r in range(24, 24+2*NB): A(f"v_xor_b32 v{r}, s54, v{r}")
        A("v_or3_b32 v8, v24, v25, v26")
        for r in range(27, 24+2*NB-1, 2): A(f"v_or3_b32 v8, v8, v{r}, v{r+1}")
        A(f"v_or_b32 v8, v8, v{24+2*NB-1}")
        A("v_and_b32 v8, 0xff, v8")
        A("v_cmp_ne_u32 vcc, 0, v8")
        A("s_cbranch_vccnz L_x1no" + sfx)
        LB("L_x1ok" + sfx)
        stamp(5)
        if NB == 8:
            A("v_pk_add_f32 v[24:25], v[24:25], v[32:33]")
            A("v_pk_add_f32 v[26:27], v[26:27], v[34:35]")
            A("v_pk_add_f32 v[28:29], v[28:29], v[36:37]")
            A("v_pk_add_f32 v[30:31], v[30:31], v[38:39]")
        S = []
        def B(s): S.append("  " + s)
        S.append("L_x1no" + sfx + ":")
        B(f"s_cmp_lt_u32 s49, {NF}")
        B("s_cbranch_scc1 L_x1poll" + sfx)
        B("v_lshlrev_b32 v8, 1, v6")
        B("s_lshl_b32 s50, s20, 15")
        B("s_add_u32 s50, s50, %d" % O_EX1)
        B(f"s_cmp_lg_u32 s49, {NF}")
        B("s_cbranch_scc1 L_x1ns" + sfx)
        B("v_and_b32 v96, s48, v16")
        B("v_and_b32 v97, s48, v17")
        B("v_mov_b32 v98, s40")
        B("v_mov_b32 v99, s40")
        B("s_lshl_b32 s47, s21, 12")
        B("s_add_u32 s47, s47, s50")
        B("buffer_store_dwordx4 v[96:99], v8, s[32:35], s47 offen sc1")
        B("s_waitcnt vmcnt(0)")
        S.append("L_x1ns" + sfx + ":")
        for b in range(NB):
            B(f"buffer_load_dwordx4 v[{96+4*b}:{99+4*b}], v8, s[32:35], s50 offen sc1")
            B("s_add_u32 s50, s50, 4096")
        B("s_waitcnt vmcnt(0)")
        B("v_mov_b32 v8, 0")
        for b in range(NB):
            B(f"v_xor_b32 v{98+4*b}, s40, v{98+4*b}")
            B(f"v_xor_b32 v{99+4*b}, s40, v{99+4*b}")
            B(f"v_or3_b32 v8, v8, v{98+4*b}, v{99+4*b}")
            B(f"v_mov_b32 v{24+2*b}, v{96+4*b}")
            B(f"v_mov_b32 v{25+2*b}, v{97+4*b}")
        B("v_cmp_ne_u32 vcc, 0, v8")
        B("s_cbranch_vccz L_x1ok" + sfx)
        B("s_cmp_lt_u32 s49, %d" % SPIN)
        B("s_cbranch_scc1 L_x1poll" + sfx)
        if sfx == "b": S.append("L_last:")
        B("s_branch L_x1ok" + sfx)
        slow.extend(S)
    cpath(4, "a", KT, WA, KB, WM1, WM2)
    LB("L_h")
    A("v_pk_add_f32 v[24:25], v[24:25], v[28:29]   ; gate")
    A("v_pk_add_f32 v[26:27], v[26:27], v[30:31]   ; up")
    A("v_cvt_pk_bf16_f32 v8, v24, v25")
    A("v_cvt_pk_bf16_f32 v12, v26, v27")
    A("v_lshlrev_b32 v18, 16, v8")
    A("v_and_b32 v19, 0xffff0000, v8")
    A("v_mul_f32 v20, s51, v18")
    A("v_mul_f32 v21, s51, v19")
    A("v_exp_f32 v20, v20")
    A("v_exp_f32 v21, v21")
    A("v_lshlrev_b32 v14, 16, v12")
    A("v_add_f32 v20, 1.0, v20")
    A("v_add_f32 v21, 1.0, v21")
    A("v_rcp_f32 v20, v20")
    A("v_rcp_f32 v21, v21")
    A("v_and_b32 v15, 0xffff0000, v12")
    A("v_mul_f32 v18, v18, v20")
    A("v_mul_f32 v19, v19, v21")
    A("v_cvt_pk_bf16_f32 v8, v18, v19        ; silu")
    A("v_lshlrev_b32 v18, 16, v8")
    A("v_and_b32 v19, 0xffff0000, v8")
    A("v_mul_f32 v18, v18, v14")
    A("v_mul_f32 v19, v19, v15")
    A("v_cvt_pk_bf16_f32 v8, v18, v19        ; h")
    A(f"ds_write_b32 v7, v8 offset:{L_HB}")
    perms(raw2, frag2, 1)
    A("s_waitcnt lgkmcnt(0)")
    A("s_barrier                            ; B4")
    for s in range(2):
        A(f"ds_read_b128 v[{HA+4*s}:{HA+4*s+3}], v13 offset:{L_HB + 512*s}")
    for s in range(2):
        A(f"s_waitcnt lgkmcnt({1-s})")
        for j in range(4):
            c = "0" if s == 0 else f"v[{ACC+4*j}:{ACC+4*j+3}]"
            A(f"v_mfma_f32_16x16x32_bf16 v[{ACC+4*j}:{ACC+4*j+3}], v[{HA+4*s}:{HA+4*s+3}], v[{frag2(s,j)}:{frag2(s,j)+3}], {c}")
    A("s_mov_b32 exec_lo, -1")
    A("s_mov_b32 exec_hi, 0")
    A("s_nop 5")
    for r in range(4):
        for j in range(4):
            A(f"v_and_or_b32 v{20+4*r+j}, v{ACC+4*j+r}, s48, v9")
        A(f"buffer_store_dwordx4 v[{20+4*r}:{23+4*r}], v11, s[32:35], s52 offen {x2st}")
        if r < 3: A("s_add_u32 s52, s52, %d" % (32*7168))
    stamp(6)
    if not nob5: A("s_waitcnt vmcnt(0)")
    A("s_barrier                            ; B5")
    stamp(7)
    if stamps: A("s_branch L_fin")
    else: A("s_endpgm")
    main_end = len(L)
    LB("L_cb")
    cpath(2, "b", KT3, WA3 if WA3 is not None else WA, KB3, *(WM3 or (WM1, WM2)))
    A("s_branch L_h")

    def rsetup():
        A("s_mov_b64 s[32:33], s[18:19]")
        A("s_mov_b32 s34, %d" % WS_REC)
        A("s_mov_b32 s35, 0x20000")
        A("s_mov_b64 s[36:37], s[14:15]")
        A("s_mov_b32 s38, 524288")
        A("s_mov_b32 s39, 0x20000")
        A("v_and_b32 v4, 7, v0")
        if stamps:
            for i in range(2, 8): A(f"s_mov_b32 s{60+2*i}, 0")
            A("s_mov_b32 s59, 0")
            A("s_mov_b32 s49, 0")
    def idload():
        A("s_lshl_b32 s53, s50, 11")
        A(f"buffer_load_dwordx4 v[{IDR}:{IDR+3}], v14, s[28:31], s53 offen{xpol}")
        A(f"buffer_load_dwordx4 v[{IDR+4}:{IDR+7}], v14, s[28:31], s53 offen offset:1024{xpol}")
    def pretouch():
        A("s_lshl_b32 s45, s20, 14")
        A("s_lshl_b32 s46, s21, 11")
        A("s_add_u32 s46, s46, s45")
        A("s_add_u32 s48, s46, %d               ; own L2-local block" % O_EX1F)
        A("buffer_load_dwordx4 v[24:27], v14, s[32:35], s48 offen")
        A("buffer_load_dwordx4 v[28:31], v14, s[32:35], s48 offen offset:1024")
        if tt: A("v_mov_b32 v32, 0")
        if "o" in tt: A("buffer_load_dword v33, v32, s[36:39], s53 offen")
        if "e" in tt:
            A("s_mov_b32 s45, 0x2f0000")
            A("buffer_load_dword v35, v32, s[32:35], s45 offen")
        if "d" in tt:
            A("s_lshl_b32 s45, s20, 17")
            A("v_mov_b32 v36, s45")
            A("global_load_dword v37, v36, s[12:13]")
    def touches():
        A("s_lshl_b32 s45, s2, 11")
        A("s_lshl_b32 s46, s20, 17")
        A("s_mov_b32 s47, 0x2f0000")
        A("s_load_dword s41, s[4:5], s45")
        A("s_load_dword s42, s[12:13], s46")
        A("s_load_dword s43, s[14:15], s45")
        A("s_load_dword s44, s[18:19], s47")
        A("s_waitcnt lgkmcnt(0)")
    def fwait(nm, off):
        A("s_mov_b32 s49, 0")
        LB("L_fwait" + nm)
        if fsleep: A(f"s_sleep {fsleep}")
        A(f"ds_read_b32 v9, v8 offset:{off}")
        A("s_add_u32 s49, s49, 1")
        A("s_cmp_ge_u32 s49, %d" % SPIN)
        A("s_waitcnt lgkmcnt(0)")
        A("v_cmp_eq_u32 vcc, 0, v9")
        A("s_cbranch_scc1 L_fok" + nm)
        A("s_cbranch_vccnz L_fwait" + nm)
        LB("L_fok" + nm)
    def psetup():
        A("v_mul_u32_u24 v12, %d, v0            ; poll offset" % LS)
        A("s_mul_i32 s47, s22, %d" % REPS)
        A("s_add_u32 s47, s47, %d               ; this die's replica" % O_IDX)
        A("v_lshrrev_b32 v11, 3, v0")
        A("s_lshr_b32 s45, s21, 1")
        A("s_sub_u32 s46, 10, s57")
        A("s_lshl_b32 s45, s45, s46")
    LB("L_w5")
    if st:
        A("v_mov_b32 v8, 0")
        fwait("0", L_FLAG + 8)
        touches()
    A("s_endpgm")
    LB("L_r")
    A("v_mov_b32 v8, 0")
    A("s_mov_b32 s50, s2                    ; slice")
    A("s_waitcnt lgkmcnt(0)")
    A("s_load_dword s40, s[18:19], 0        ; epoch")
    A("s_mov_b64 s[28:29], s[4:5]")
    rsetup()
    stamp(1)
    psetup()
    if SA is None:
        fwait("a", L_FLAG)
        if FS: A(f"s_sleep {FS}")
    else:
        if E1:
            A("s_waitcnt vmcnt(0) lgkmcnt(0)")
            stamp(1)
        if SA: A(f"s_sleep {SA}")
        A("s_waitcnt lgkmcnt(0)")
    A("s_add_u32 s40, s40, 1")
    stamp(2)
    if NP:
        for k in range(NP):
            if k: A(f"s_sleep {DL}")
            A(f"buffer_load_dwordx2 v[{16+2*k}:{17+2*k}], v12, s[32:35], s47 offen sc1")
        A("s_mov_b32 s49, 0")
        LB("L_ipolln")
        for k in range(NP):
            A("s_add_u32 s49, s49, 1")
            A(f"s_waitcnt vmcnt({NP-1})")
            A(f"v_cmp_ne_u32 vcc, s40, v{17+2*k}")
            A(f"v_mov_b32 v8, v{16+2*k}")
            A("s_cbranch_vccz L_iok")
            A(f"buffer_load_dwordx2 v[{16+2*k}:{17+2*k}], v12, s[32:35], s47 offen sc1")
        A("s_cmp_lt_u32 s49, %d" % SPIN)
        A("s_cbranch_scc1 L_ipolln")
        A("s_branch L_iok")
    elif KB is not None or SB is not None:
        A(f"buffer_load_dwordx2 v[16:17], v12, s[32:35], s47 offen sc1")
        if SB is None: fwait("b", L_FLAG + 4)
        else: A(f"s_sleep {SB}")
        A("s_mov_b32 s49, 0")
        LB("L_ipoll2")
        A(f"buffer_load_dwordx2 v[18:19], v12, s[32:35], s47 offen sc1")
        A("s_add_u32 s49, s49, 1")
        A(f"s_waitcnt vmcnt(1)")
        A(f"v_cmp_ne_u32 vcc, s40, v17")
        A("v_mov_b32 v8, v16")
        A("s_cbranch_vccz L_iok")
        A(f"buffer_load_dwordx2 v[16:17], v12, s[32:35], s47 offen sc1")
        A("s_add_u32 s49, s49, 1")
        A("s_cmp_ge_u32 s49, %d" % SPIN)
        A(f"s_waitcnt vmcnt(1)")
        A(f"v_cmp_ne_u32 vcc, s40, v19")
        A("v_mov_b32 v8, v18")
        A("s_cbranch_scc1 L_iok")
        A("s_cbranch_vccnz L_ipoll2")
        A("s_branch L_iok")
    else:
        A("s_branch L_ip0")
    route_beg = len(L)
    LB("L_route")
    stamp(1)
    rsetup()
    A("s_and_b32 s45, s52, 7")
    A("s_lshl_b32 s46, s45, 3")
    A("s_lshr_b32 s52, s52, 3               ; batch")
    A("s_add_u32 s46, s46, s52")
    A("s_mul_i32 s46, s46, %d" % LS)
    A("s_add_u32 s46, s46, %d               ; slot" % O_IDX)
    A("s_lshl_b32 s45, s45, 2")
    A("v_mul_u32_u24 v5, %d, v0             ; replica offset" % REPS)
    A("v_lshrrev_b32 v10, 5, v0")
    A("v_bfe_u32 v11, v0, 4, 1")
    A("v_lshl_add_u32 v10, v11, 1, v10")
    A("v_add_u32 v10, s45, v10")
    A("v_xor_b32 v10, 31, v10")
    for t in range(4):
        for hlf in range(2):
            A(f"s_waitcnt vmcnt({7 - 2*t - hlf})")
            if rp and t == 0 and hlf == 0: stamp(5)
            if rp and t == 3 and hlf == 1: stamp(6)
            for k in range(4):
                c = "0" if (hlf == 0 and k == 0) else f"v{6+t}"
                A(f"v_dot2_f32_bf16 v{6+t}, v{XR+8*t+4*hlf+k}, v{16+4*hlf+k}, {c}")
    A("s_waitcnt lgkmcnt(0)")
    if rp: stamp(4)
    A("s_add_u32 s40, s40, 1")
    A("s_nop 0")
    A("v_permlane32_swap_b32 v6, v7")
    A("v_permlane32_swap_b32 v8, v9")
    A("v_add_f32 v6, v6, v7")
    A("v_add_f32 v8, v8, v9")
    A("s_nop 1")
    A("v_permlane16_swap_b32 v6, v8")
    A("v_add_f32 v6, v6, v8")
    A("s_nop 1")
    A("v_add_f32_dpp v6, v6, v6 quad_perm:[1,0,3,2] row_mask:0xf bank_mask:0xf")
    A("s_nop 1")
    A("v_add_f32_dpp v6, v6, v6 quad_perm:[2,3,0,1] row_mask:0xf bank_mask:0xf")
    A("s_nop 1")
    A("v_add_f32_dpp v6, v6, v6 row_half_mirror row_mask:0xf bank_mask:0xf")
    A("s_nop 1")
    A("v_add_f32_dpp v6, v6, v6 row_mirror row_mask:0xf bank_mask:0xf")
    A("v_cvt_pk_bf16_f32 v7, v6, v6")
    A("v_and_b32 v7, 0xffff0000, v7          ; r (bf16)")
    A("v_ashrrev_i32 v6, 31, v7")
    A("v_or_b32 v6, 0x80000000, v6")
    A("v_xor_b32 v6, v6, v7")
    A("v_cmp_o_f32 vcc, v7, v7")
    A("v_and_b32 v6, 0xffff0000, v6")
    A("s_nop 0")
    A("v_cndmask_b32 v6, 0, v6, vcc")
    A("v_or_b32 v6, v10, v6")
    A("v_mov_b32 v7, v6")
    A("s_nop 1")
    A("v_permlane16_swap_b32 v6, v7")
    A("v_max_u32 v6, v6, v7")
    A("v_mov_b32 v7, v6")
    A("s_nop 1")
    A("v_permlane32_swap_b32 v6, v7")
    A("v_max_u32 v6, v6, v7")
    A("v_mov_b32 v7, s40")
    A("s_mov_b64 exec, 0xff")
    A("buffer_store_dwordx2 v[6:7], v5, s[32:35], s46 offen sc1")
    A("s_mov_b64 exec, -1")
    if rp: stamp(3)
    A("s_barrier                            ; B0b")
    stamp(2)
    A("s_setprio 0")
    A("s_branch L_rpub")
    route_end = len(L)
    LB("L_rpub")
    A("s_cmp_eq_u32 s3, 4")
    A("s_cbranch_scc1 L_r4")
    if st: touches()
    A("s_endpgm")
    LB("L_r4")
    A("s_mov_b32 s50, s2                    ; slice")
    psetup()
    if rack: A(f"s_waitcnt vmcnt(0)")
    LB("L_ip0")
    A("s_mov_b32 s49, 0")
    LB("L_ipoll")
    A(f"buffer_load_dwordx2 v[8:9], v12, s[32:35], s47 offen sc1")
    A("s_add_u32 s49, s49, 1")
    A("s_cmp_ge_u32 s49, %d" % SPIN)
    A(f"s_waitcnt vmcnt(0)")
    A(f"v_cmp_ne_u32 vcc, s40, v9")
    A("s_cbranch_scc1 L_iok")
    A("s_cbranch_vccnz L_ipoll")
    LB("L_iok")
    if not rp: stamp(3)
    if stamps: A("s_mov_b32 s59, s49")
    A("s_mov_b32 m0, %d" % L_XS)
    A("s_nop 0")
    A("v_max_u32_dpp v8, v8, v8 row_ror:8 row_mask:0xf bank_mask:0xf")
    A("v_mov_b32 v9, v8")
    A("s_cmp_eq_u32 s57, 1")
    A("s_nop 0")
    A("v_permlane16_swap_b32 v8, v9")
    A("v_max_u32 v8, v8, v9")
    A("v_mov_b32 v9, v8")
    A("s_nop 1")
    A("v_permlane32_swap_b32 v8, v9")
    A("v_max_u32 v8, v8, v9")
    A("v_and_b32 v10, 31, v8")
    A("v_xor_b32 v10, 31, v10")
    A("v_lshl_add_u32 v10, v4, 5, v10       ; row")
    A("v_lshlrev_b32 v10, 11, v10")
    A("v_lshl_add_u32 v10, v11, 4, v10      ; + chunk*16")
    A("v_lshlrev_b32 v9, 2, v4")
    for i in range(8):
        if i == 4: A("s_cbranch_scc1 L_dmadone")
        A(f"buffer_load_dwordx4 v10, s[28:31], s45 offen{xpol} lds")
        if i < 7:
            A("s_mov_b32 m0, %d" % (L_XS + 1024*(i+1)))
            A("v_add_u32 v10, 128, v10")
    LB("L_dmadone")
    A(f"ds_write_b32 v9, v8 offset:{L_KEY}")
    idload()
    pretouch()
    LB("L_b2")
    A("s_lshr_b32 s51, s50, 5")
    A("s_lshl_b32 s45, s51, 2")
    A("v_mov_b32 v5, s45")
    A(f"s_waitcnt vmcnt({4 + len(tt)}) lgkmcnt(0)")
    A("s_barrier                            ; B2")
    if not rp: stamp(4)
    A(f"ds_read_b32 v6, v5 offset:{L_KEY}")
    A(f"s_waitcnt vmcnt({2 + len(tt)})")
    for r in range(IDR, IDR+8):
        A(f"v_lshlrev_b32 v16, 16, v{r}")
        A(f"v_and_b32 v17, 0xffff0000, v{r}")
        A("v_pk_fma_f32 v[16:17], v[16:17], 0, v[16:17] op_sel_hi:[1,0,1]")
        A(f"v_cvt_pk_bf16_f32 v{r}, v16, v17    ; x + x*0")
    A("s_and_b32 s41, s40, 0xff")
    A("v_lshrrev_b32 v7, 5, v0")
    A("v_bfe_u32 v8, v0, 4, 1")
    A("v_lshl_add_u32 v7, v8, 1, v7         ; e")
    A("v_lshl_add_u32 v7, v4, 2, v7         ; 4*pos + e")
    A("s_and_b32 s46, s50, 31")
    A("s_lshl_b32 s45, s46, 5")
    A("v_add_u32 v7, s45, v7                ; column")
    A("s_waitcnt lgkmcnt(0)")
    A("s_barrier                            ; B3")
    A("v_and_b32 v8, 31, v6")
    A("v_xor_b32 v8, 31, v8")
    A("v_cmp_ne_u32 vcc, s46, v8")
    A("s_lshl_b32 s45, s51, 5")
    A("v_add_u32 v8, s45, v8                ; row")
    A("v_lshlrev_b32 v8, 10, v8")
    A("v_add_u32 v7, v8, v7")
    A("v_lshlrev_b32 v7, 1, v7")
    A("buffer_load_ushort v9, v7, s[28:31], 0 offen")
    A("s_cbranch_vccz L_sel")
    A(f"buffer_store_dwordx4 v[{IDR}:{IDR+3}], v14, s[36:39], s53 offen{outpol}")
    A(f"buffer_store_dwordx4 v[{IDR+4}:{IDR+7}], v14, s[36:39], s53 offen offset:1024{outpol}")
    LB("L_sel")
    A("v_lshrrev_b32 v10, 16, v6")
    A("v_xor_b32 v11, 0xffff, v10")
    A("v_and_b32 v12, 0x7fff, v10")
    A("v_cmp_gt_i32 vcc, 0, v6")
    A("s_mov_b32 s45, 0xbfb8aa3b")
    A("s_nop 0")
    A("v_cndmask_b32 v10, v11, v12, vcc")
    A("v_lshlrev_b32 v10, 16, v10           ; r")
    A("v_mul_f32 v10, s45, v10")
    A("v_exp_f32 v10, v10")
    A("s_nop 0")
    A("v_add_f32 v10, 1.0, v10")
    A("v_rcp_f32 v10, v10")
    A("s_nop 0")
    A("v_cvt_pk_bf16_f32 v10, v10, v10")
    A("v_and_b32 v10, 0xffff0000, v10       ; sigmoid")
    A("s_mul_i32 s46, s50, 7168")
    A("s_add_u32 s46, s46, %d" % O_EX2)
    A("s_add_u32 s47, s46, 4096")
    A("s_mov_b32 s49, 0")
    A("s_mov_b32 s44, 0x00ff00ff")
    A("s_mov_b32 s45, 0x00ff00ff")
    A("s_waitcnt vmcnt(0)")
    A("v_lshlrev_b32 v9, 16, v9             ; x")
    A("v_mov_b32 v13, 0")
    A("s_barrier                            ; B4")
    A("s_barrier                            ; B5")
    if not rp: stamp(5)
    if x2d: A(f"s_sleep {x2d}")
    if mx:
        MS = 76 if stamps else 60
        def ld(i):
            so = "s46" if i < 4 else "s47"
            A(f"buffer_load_dwordx4 v[{32+4*i}:{35+4*i}], v14, s[32:35], {so} offen offset:{(i%4)*1024} {x2ld}")
        def chk(i):
            b = 32 + 4*i
            for r in range(b, b+4): A(f"v_xor_b32 v{r}, s41, v{r}")
            A(f"v_or3_b32 v15, v{b}, v{b+1}, v{b+2}")
            A(f"v_or_b32 v15, v15, v{b+3}")
            A(f"v_cmp_ne_u32_sdwa s[{MS+2*i}:{MS+2*i+1}], v15, v13 src0_sel:BYTE_0 src1_sel:DWORD")
        def anyleft():
            A(f"s_or_b64 s[42:43], s[{MS}:{MS+1}], s[{MS+2}:{MS+3}]")
            for i in range(2, 7): A(f"s_or_b64 s[42:43], s[42:43], s[{MS+2*i}:{MS+2*i+1}]")
        for i in range(7): ld(i)
        A("s_mov_b32 s49, 1")
        for i in range(7):
            A(f"s_waitcnt vmcnt({6-i})")
            chk(i)
            if i == 1: A("v_pk_add_f32 v[16:17], v[32:33], v[36:37]"); A("v_pk_add_f32 v[18:19], v[34:35], v[38:39]")
            if i >= 2: A(f"v_pk_add_f32 v[16:17], v[16:17], v[{32+4*i}:{33+4*i}]"); A(f"v_pk_add_f32 v[18:19], v[18:19], v[{34+4*i}:{35+4*i}]")
        anyleft()
        A("s_cbranch_scc0 L_x2ok")
        LB("L_x2poll")
        if x2s: A(f"s_sleep {x2s}")
        for i in range(7):
            A(f"s_mov_b64 exec, s[{MS+2*i}:{MS+2*i+1}]")
            A(f"s_cbranch_execz L_x2l{i}")
            ld(i)
            LB(f"L_x2l{i}")
        A("s_add_u32 s49, s49, 1")
        A("s_waitcnt vmcnt(0)")
        for i in range(7):
            A(f"s_mov_b64 exec, s[{MS+2*i}:{MS+2*i+1}]")
            A(f"s_cbranch_execz L_x2c{i}")
            chk(i)
            LB(f"L_x2c{i}")
        A("s_mov_b64 exec, -1")
        anyleft()
        A("s_cbranch_scc0 L_x2sum")
        A("s_cmp_lt_u32 s49, %d" % SPIN)
        A("s_cbranch_scc1 L_x2poll")
        LB("L_x2sum")
        A("v_pk_add_f32 v[16:17], v[32:33], v[36:37]"); A("v_pk_add_f32 v[18:19], v[34:35], v[38:39]")
        for i in range(2, 7):
            A(f"v_pk_add_f32 v[16:17], v[16:17], v[{32+4*i}:{33+4*i}]"); A(f"v_pk_add_f32 v[18:19], v[18:19], v[{34+4*i}:{35+4*i}]")
        A("s_nop 0")
    else:
        LB("L_x2poll")
        for i in range(7):
            so = "s46" if i < 4 else "s47"
            A(f"buffer_load_dwordx4 v[{32+4*i}:{35+4*i}], v14, s[32:35], {so} offen offset:{(i%4)*1024} {x2ld}")
        A("s_add_u32 s49, s49, 1")
        for i in range(7):
            A(f"s_waitcnt vmcnt({6-i})")
            b = 32 + 4*i
            for r in range(b, b+4): A(f"v_xor_b32 v{r}, s41, v{r}")
            if i == 0:
                A(f"v_or3_b32 v15, v{b}, v{b+1}, v{b+2}")
                A(f"v_or_b32 v15, v15, v{b+3}")
            else:
                A(f"v_or3_b32 v15, v15, v{b}, v{b+1}")
                A(f"v_or3_b32 v15, v15, v{b+2}, v{b+3}")
                src = 32 if i == 1 else 16
                A(f"v_pk_add_f32 v[16:17], v[{src}:{src+1}], v[{b}:{b+1}]")
                A(f"v_pk_add_f32 v[18:19], v[{src+2}:{src+3}], v[{b+2}:{b+3}]")
        A("v_and_b32 v15, 0xff, v15")
        A("v_cmp_ne_u32 vcc, 0, v15")
        A("s_cbranch_vccz L_x2ok")
        A("s_cmp_lt_u32 s49, %d" % SPIN)
        A("s_cbranch_scc1 L_x2poll")
    LB("L_x2ok")
    if not rp: stamp(6)
    A("v_permlane32_swap_b32 v16, v17")
    A("v_permlane32_swap_b32 v18, v19")
    A("v_add_f32 v16, v16, v17")
    A("v_add_f32 v18, v18, v19")
    A("s_nop 1")
    A("v_permlane16_swap_b32 v16, v18")
    A("v_add_f32 v16, v16, v18")
    A("s_nop 1")
    A("v_add_f32_dpp v16, v16, v16 row_ror:8 row_mask:0xf bank_mask:0xf")
    A("s_mov_b64 exec, s[44:45]")
    A("v_cvt_pk_bf16_f32 v16, v16, v16")
    A("v_and_b32 v16, 0xffff0000, v16       ; y")
    A("v_mul_f32 v16, v16, v10")
    A("v_cvt_pk_bf16_f32 v16, v16, v16")
    A("v_and_b32 v16, 0xffff0000, v16       ; y*sigmoid")
    A("v_fma_f32 v16, v9, 0, v16            ; upd = x*0 + y")
    A("v_add_f32 v16, v9, v16")
    A("v_cvt_pk_bf16_f32 v16, v16, v16")
    A(f"buffer_store_short v16, v7, s[36:39], 0 offen{outpol}")
    A("s_cmp_lg_u32 s50, 0")
    A("s_cbranch_scc1 L_noep")
    A("v_mov_b32 v18, s40")
    A("v_mov_b32 v17, 0")
    A("s_mov_b64 exec, 1")
    A("buffer_store_dword v18, v17, s[32:35], 0 offen sc1")
    LB("L_noep")
    stamp(7)
    LB("L_fin")
    import diag
    if dg: diag.epilogue(A, LB, dg)
    elif gamp: diag.gamp(A, LB, gamp)
    elif gpair: diag.gpair(A, LB, gpair)
    elif stamps: diag.dump(A, LB)
    LB("L_end")
    A("s_endpgm")
    if align:
        L = L[:main_end] + L[route_beg:route_end] + [".p2align 12"] + L[main_end:route_beg] + L[route_end:]
    L.extend(slow)
    body = "\n".join(L)
    pad = ".p2align 12\n.fill 832, 4, 0xbf800000            ; the kernel starts a 4 KB page (instruction prefetch stops at page ends)\n" if align else ""
    return f"""{HEAD}; @launch grid=(256,1,1) block=(384,1,1) lds={LDSB or LDS_BYTES}
.amdgcn_target "amdgcn-amd-amdhsa--gfx950"
.text
.globl {KN}
{pad}.p2align 8
.type {KN},@function
{KN}:
{body}
.section .rodata,"a"
.p2align 6
.amdhsa_kernel {KN}
  .amdhsa_next_free_vgpr 160
  .amdhsa_next_free_sgpr 96
  .amdhsa_accum_offset 160
  .amdhsa_group_segment_fixed_size 0
  .amdhsa_kernarg_size 64
  .amdhsa_user_sgpr_count 2
  .amdhsa_user_sgpr_kernarg_segment_ptr 1
  .amdhsa_system_sgpr_workgroup_id_x 1
  .amdhsa_float_denorm_mode_32 3
.end_amdhsa_kernel
"""
if __name__ == "__main__":
    import sys, json
    kw = json.loads(sys.argv[2]) if len(sys.argv) > 2 else {}
    open(sys.argv[1] if len(sys.argv) > 1 else "standalone__moe_arch_mod__sampling.s", "w").write(gen(**kw))
```

```python
def epilogue(A, LB, stats, nwg=252, gatherwave=4, invalid=(228,236,244,252), extra=("s49","s59")):
    A("s_waitcnt lgkmcnt(0) vmcnt(0)")
    A("s_mov_b64 exec, -1")
    A("s_barrier")
    A("s_lshl_b32 s20, s3, 8")
    A("s_add_u32 s20, s20, s2")
    A("s_lshl_b32 s20, s20, 6")
    A("s_add_u32 s18, s18, 0x8000000")
    A("s_addc_u32 s19, s19, 0")
    for i in range(8): A(f"v_mov_b32 v{16+i}, s{60+2*i}")
    A(f"v_mov_b32 v24, {extra[0]}")
    A(f"v_mov_b32 v25, {extra[1]}")
    A("v_mov_b32 v3, s20")
    A("s_mov_b64 exec, 1")
    A("global_store_dwordx4 v3, v[16:19], s[18:19] sc1")
    A("global_store_dwordx4 v3, v[20:23], s[18:19] offset:16 sc1")
    A("global_store_dwordx2 v3, v[24:25], s[18:19] offset:32 sc1")
    A("s_waitcnt vmcnt(0)")
    A("s_barrier")
    A(f"s_cmp_lg_u32 s3, {gatherwave}")
    A("s_cbranch_scc1 L_end")
    A("v_mov_b32 v3, 0")
    A("v_mov_b32 v18, 1")
    A("global_atomic_add v19, v3, v18, s[16:17] offset:128 sc0 sc1")
    A("s_waitcnt vmcnt(0)")
    A("v_readfirstlane_b32 s20, v19")
    A(f"s_cmp_lg_u32 s20, {nwg-1}")
    A("s_cbranch_scc1 L_end")
    A("s_mov_b64 exec, -1")
    A("v_mbcnt_lo_u32_b32 v0, -1, 0")
    A("v_mbcnt_hi_u32_b32 v0, -1, v0")
    for i in range(4):
        A(f"v_add_u32 v{4+i}, {64*i}, v0")
        for bad in invalid:
            if bad // 64 == i:
                A(f"s_mov_b32 s20, {bad}")
                A(f"v_cmp_eq_u32 vcc, s20, v{4+i}")
                A("s_nop 1")
                A(f"v_cndmask_b32 v{4+i}, v{4+i}, {bad & 7}, vcc")
        A(f"v_lshlrev_b32 v{4+i}, 6, v{4+i}")
    def gather(role, k, op, dst):
        A(f"s_add_u32 s22, s18, {role*256*64 + 4*k}")
        A("s_addc_u32 s23, s19, 0")
        for i in range(4): A(f"global_load_dword v{8+i}, v{4+i}, s[22:23] sc1")
        A("s_waitcnt vmcnt(0)")
        if op == "min":
            for i in range(4):
                A(f"v_cmp_eq_u32 vcc, 0, v{8+i}")
                A("s_nop 1")
                A(f"v_cndmask_b32 v{8+i}, v{8+i}, -1, vcc")
        o = f"v_{op}_u32"
        A(f"{o} v8, v8, v9"); A(f"{o} v10, v10, v11"); A(f"{o} v8, v8, v10")
        A("s_nop 1")
        A(f"{o}_dpp v8, v8, v8 row_ror:8 row_mask:0xf bank_mask:0xf")
        A("v_mov_b32 v9, v8"); A("s_nop 1")
        A("v_permlane16_swap_b32 v8, v9"); A(f"{o} v8, v8, v9")
        A("v_mov_b32 v9, v8"); A("s_nop 1")
        A("v_permlane32_swap_b32 v8, v9"); A(f"{o} v{dst}, v8, v9")
    gather(0, 0, "min", 30)
    gather(4, 0, "min", 31)
    A("v_min_u32 v30, v30, v31")
    A("s_nop 1")
    A("v_min_u32_dpp v30, v30, v30 row_ror:4 row_mask:0xf bank_mask:0xf")
    A("s_nop 1")
    A("v_min_u32_dpp v30, v30, v30 row_ror:2 row_mask:0xf bank_mask:0xf")
    A("s_nop 1")
    A("v_min_u32_dpp v30, v30, v30 row_ror:1 row_mask:0xf bank_mask:0xf")
    for q, (role, k, op) in enumerate(stats):
        gather(role, k, op, 32)
        if k < 8:
            A("v_sub_u32 v32, v32, v30")
            A("v_add_u32 v32, 2, v32")
            A("v_ashrrev_i32 v32, 2, v32")
            A("v_max_i32 v32, 0, v32")
        A("v_min_u32 v32, 255, v32")
        A(f"v_add_u32 v33, {8*q}, v0")
        A("s_mov_b64 exec, 0xff")
        A("global_store_byte v33, v32, s[16:17]")
        A("s_mov_b64 exec, -1")

def dump(A, LB):
    A("s_waitcnt lgkmcnt(0)")
    A("s_mov_b64 exec, -1")
    A("s_lshl_b32 s20, s3, 8")
    A("s_add_u32 s20, s20, s2")
    A("s_lshl_b32 s20, s20, 6")
    A("s_add_u32 s20, s20, 0x8000000")
    A("s_add_u32 s18, s18, s20")
    A("s_addc_u32 s19, s19, 0")
    for i in range(8): A(f"v_mov_b32 v{16+i}, s{60+2*i}")
    A("v_mov_b32 v24, s49")
    A("v_mov_b32 v25, s59")
    A("v_mov_b32 v3, 0")
    A("s_mov_b64 exec, 1")
    A("global_store_dwordx4 v3, v[16:19], s[18:19]")
    A("global_store_dwordx4 v3, v[20:23], s[18:19] offset:16")
    A("global_store_dwordx2 v3, v[24:25], s[18:19] offset:32")

def gamp(A, LB, g):
    k, wv, fac, cnt = g[:4]
    die = g[4] if len(g) > 4 else None
    A("s_waitcnt lgkmcnt(0) vmcnt(0)")
    A("s_mov_b64 exec, -1")
    A("s_barrier")
    A(f"s_cmp_lg_u32 s3, {wv}")
    A("s_cbranch_scc1 L_end")
    A("s_mov_b64 exec, 1")
    A("s_not_b32 s20, s60")
    A("v_mov_b32 v16, s20")
    A(f"v_mov_b32 v17, s{60+2*k}" if k >= 0 else f"v_mov_b32 v17, s{49 if k in (-1,-4) else 59}")
    if die in ("r", "n"):
        A(f"s_cmp_eq_u32 s58, {1 if die == 'r' else 0}")
        A("s_cselect_b32 s21, -1, 0")
        A("v_and_b32 v17, s21, v17")
    elif die is not None:
        A("s_and_b32 s21, s2, 7")
        A(f"s_cmp_eq_u32 s21, {die}")
        A("s_cselect_b32 s21, -1, 0")
        A("v_and_b32 v17, s21, v17")
    A("v_mov_b32 v3, 0")
    A("v_mov_b32 v18, 1")
    A("global_atomic_umax v3, v16, s[16:17] sc1")
    A(f"global_atomic_{'add' if k in (-3,-4) else 'umax'} v3, v17, s[16:17] offset:64 sc1")
    A("s_waitcnt vmcnt(0)")
    A("global_atomic_add v19, v3, v18, s[16:17] offset:128 sc0 sc1")
    A("s_waitcnt vmcnt(0)")
    A("v_readfirstlane_b32 s20, v19")
    A(f"s_cmp_lg_u32 s20, {cnt-1}")
    A("s_cbranch_scc1 L_end")
    A("v_mov_b32 v18, 0")
    A("global_atomic_umax v16, v3, v18, s[16:17] sc0 sc1")
    A("global_atomic_umax v17, v3, v18, s[16:17] offset:64 sc0 sc1")
    A("s_waitcnt vmcnt(0)")
    A("v_readfirstlane_b32 s20, v16")
    A("v_readfirstlane_b32 s21, v17")
    A("s_not_b32 s20, s20")
    if k >= 0: A("s_sub_u32 s20, s21, s20")
    else: A("s_mov_b32 s20, s21")
    A("v_mov_b32 v18, s20")
    A("global_store_dword v3, v18, s[16:17] offset:4")
    A("s_min_u32 s20, s20, 3000")
    A(f"s_mul_i32 s20, s20, {fac}")
    A("s_memrealtime s[22:23]")
    A("s_waitcnt lgkmcnt(0)")
    LB("L_amp")
    A("s_memrealtime s[24:25]")
    A("s_waitcnt lgkmcnt(0)")
    A("s_sub_u32 s21, s24, s22")
    A("s_cmp_lt_u32 s21, s20")
    A("s_cbranch_scc1 L_amp")

def gpair(A, LB, g):
    da, db, cnt = g
    A("s_waitcnt lgkmcnt(0) vmcnt(0)")
    A("s_mov_b64 exec, -1")
    A("s_barrier")
    A("s_cmp_lg_u32 s3, 4")
    A("s_cbranch_scc1 L_end")
    A("s_mov_b64 exec, 1")
    A("s_not_b32 s20, s60")
    A("v_mov_b32 v16, s20")
    A("s_and_b32 s21, s2, 7")
    A(f"s_cmp_eq_u32 s21, {da}")
    A("s_cselect_b32 s22, s20, 0")
    A(f"s_cmp_eq_u32 s21, {db}")
    A("s_cselect_b32 s23, s20, 0")
    A("v_mov_b32 v17, s22")
    A("v_mov_b32 v20, s23")
    A("v_mov_b32 v3, 0")
    A("v_mov_b32 v18, 1")
    A("global_atomic_umax v3, v16, s[16:17] sc1")
    A("global_atomic_umax v3, v17, s[16:17] offset:64 sc1")
    A("global_atomic_umax v3, v20, s[16:17] offset:192 sc1")
    A("s_waitcnt vmcnt(0)")
    A("global_atomic_add v19, v3, v18, s[16:17] offset:128 sc0 sc1")
    A("s_waitcnt vmcnt(0)")
    A("v_readfirstlane_b32 s20, v19")
    A(f"s_cmp_lg_u32 s20, {cnt-1}")
    A("s_cbranch_scc1 L_end")
    A("v_mov_b32 v18, 0")
    A("global_atomic_umax v16, v3, v18, s[16:17] sc0 sc1")
    A("global_atomic_umax v17, v3, v18, s[16:17] offset:64 sc0 sc1")
    A("global_atomic_umax v20, v3, v18, s[16:17] offset:192 sc0 sc1")
    A("s_waitcnt vmcnt(0)")
    A("v_readfirstlane_b32 s20, v16")
    A("v_readfirstlane_b32 s21, v17")
    A("v_readfirstlane_b32 s22, v20")
    A("s_sub_u32 s21, s20, s21")
    A("s_sub_u32 s22, s20, s22")
    for r in (21, 22):
        A(f"s_add_u32 s{r}, s{r}, 2")
        A(f"s_lshr_b32 s{r}, s{r}, 2")
        A(f"s_min_u32 s{r}, s{r}, 31")
    A("s_lshl_b32 s22, s22, 5")
    A("s_add_u32 s20, s21, s22")
    A("v_mov_b32 v18, s20")
    A("global_store_dword v3, v18, s[16:17] offset:4")
    A("s_mul_i32 s20, s20, 200")
    A("s_memrealtime s[22:23]")
    A("s_waitcnt lgkmcnt(0)")
    LB("L_amp")
    A("s_memrealtime s[24:25]")
    A("s_waitcnt lgkmcnt(0)")
    A("s_sub_u32 s21, s24, s22")
    A("s_cmp_lt_u32 s21, s20")
    A("s_cbranch_scc1 L_amp")
```

```python
KN = "standalone__moe_arch_mod__sampling_kernel"
HEAD = open("standalone__moe_arch_mod__sampling.s.ref").read().split("; Override launch")[0]

O_IDX = 0x1000
O_EX1F = 0x20000
O_EX2 = 0x100000
O_EX1 = 0x300000
WS_REC = 0x500000
L_XS = 0
L_RED = 8192
L_HB = 16384
L_KEY = 17408
L_FLAG = 17408 + 32
LDS_BYTES = 17408 + 64
SPIN = 40000
NRX = 4

def gen(pol="nt", xpol="", D=10, LS=16, NF=12, stamps=False, outpol="", D0=3, WA=10, WM1=2, WM2=1, PK=None,
        KT=21, KT3=17, dg=None, gamp=None, cpf=3, tt="o", fsleep=1, cst1=False, WA3=None, rack=True, RD=(1,2,3,7), KB=None, KB3=None, SA=None, SB=None, E1=True, st=True, x1pol="", rst=True, K0=None, NP=0, DL=9, DI=None, rp=False, FS=0, RM=None, align=True, mx=True, x2d=0, x2s=0, x2ld="sc1", x2st="sc1", nob5=False, gpair=None, lag0=0, WM3=None, DUP0=False, LD=0, PERM=None, LDSB=None, sdp=True, D3=None):
    RM = {int(k): v for k, v in RM.items()} if RM else {d: i for i, d in enumerate(RD)}
    RD = list(RM)
    if gamp or dg or gpair: stamps = True
    L = []
    def A(s): L.append("  " + s)
    def LB(s): L.append(s + ":")
    def stamp(i):
        if stamps: A(f"s_memrealtime s[{60+2*i}:{61+2*i}]")
    pol = (" " + pol) if pol else ""
    xpol = (" " + xpol) if xpol else ""
    outpol = (" " + outpol) if outpol else ""
    REPS = 64 * LS
    XR = 80
    RAW = 16; FR = 80; XB = 96; ACC = 112; W2 = 128
    F2 = 40; HA = 72
    IDR = 40
    def raw(s, i): return RAW + 16*s + 2*i
    def frag(s, j): return (FR if s == 0 else RAW + 16*(s-1)) + 4*j
    def raw2(s, i): return W2 + 16*s + 2*i
    def frag2(s, j): return F2 + 16*s + 4*j
    def perms(rawf, fragf, s):
        for e in range(2):
            for p in range(4):
                A(f"v_perm_b32 v{fragf(s,2*e)+p}, v{rawf(s,2*p+1)+e}, v{rawf(s,2*p)+e}, s42")
            for p in range(4):
                A(f"v_perm_b32 v{fragf(s,2*e+1)+p}, v{rawf(s,2*p+1)+e}, v{rawf(s,2*p)+e}, s43")
    def w1load(n):
        s, i = divmod(n, 8)
        A(f"buffer_load_dwordx2 v[{raw(s,i)}:{raw(s,i)+1}], v3, s[24:27], s44 offen{pol}")
        A("s_addk_i32 s44, 7168" if i < 7 else "s_add_u32 s44, s44, %d" % (25*7168))
    def w2load(n):
        s, i = divmod(n, 8)
        p, b = divmod(i, 2)
        row = 2*s + (p >> 1) + 8*(p & 1) + 4*b
        A("s_add_u32 s47, s53, %d" % (row*2048))
        A(f"buffer_load_dwordx2 v[{raw2(s,i)}:{raw2(s,i)+1}], v10, s[28:31], s47 offen{pol}")

    if lag0:
        A("s_and_b32 s3, s2, 7")
        A("s_cmp_lg_u32 s3, 0")
        A("s_cbranch_scc1 L_nolag")
        A(f"s_sleep {lag0}")
        LB("L_nolag")
    stamp(0)
    A("s_cmp_ge_u32 s2, 256")
    A("s_cbranch_scc1 L_w5x")
    A("s_load_dwordx16 s[4:19], s[0:1], 0")
    A("v_lshrrev_b32 v1, 6, v0")
    A("v_and_b32 v0, 63, v0                 ; lane")
    A("v_readfirstlane_b32 s3, v1           ; wave")
    if PERM:
        A("s_lshl_b32 s22, s2, 2")
        A("s_lshr_b32 s22, 0x%x, s22" % sum(v << (4*i) for i, v in enumerate(PERM)))
    else:
        A("s_sub_u32 s22, s2, %d" % LD)
    A("s_and_b32 s22, s22, 7")
    A("s_lshr_b32 s23, s2, 3")
    A("s_lshr_b32 s44, s23, 2")
    A("s_mul_i32 s45, s22, 6")
    A("s_sub_u32 s45, s45, 6")
    A("s_lshl_b32 s46, s22, 3")
    A("s_sub_u32 s46, s46, 16")
    A("s_cmp_lt_u32 s22, 5")
    A("s_cselect_b32 s45, s45, s46")
    A("s_cselect_b32 s46, 24, 32")
    A("s_add_u32 s45, s45, s44")
    A("s_add_u32 s44, s45, 4")
    A("s_mul_i32 s44, s44, 37")
    A("s_lshr_b32 s44, s44, 8")
    A("s_add_u32 s20, s45, s44")
    A("s_and_b32 s45, s23, 0x18")
    A("s_add_u32 s45, s45, 3")
    A("s_cmp_eq_u32 s45, 27")
    A("s_cselect_b32 s45, 55, s45")
    A("s_lshl_b32 s44, s22, 3")
    A("s_add_u32 s44, s44, 19")
    A("s_cmp_eq_u32 s22, 0")
    A("s_cselect_b32 s44, s45, s44")
    A("s_cselect_b32 s46, 0, s46")
    if not DUP0: A("s_cselect_b32 s58, 0, 1")
    A("s_cmp_ge_u32 s23, s46")
    A("s_cselect_b32 s20, s44, s20")
    A("s_cselect_b32 s57, 1, 0")
    A("s_cselect_b32 s21, 7, 3")
    A("s_and_b32 s21, s21, s23              ; part")
    if DUP0: A("s_mov_b32 s58, s57")
    else: A("s_and_b32 s58, s58, s57")
    A("s_mov_b32 s27, 0x20000")
    A("s_cmp_lt_u32 s3, 4")
    A("s_cbranch_scc1 L_c")
    A("s_mov_b32 s30, 524288")
    A("s_mov_b32 s31, 0x20000")
    A("v_lshlrev_b32 v14, 4, v0             ; lane*16")
    A("s_cmp_eq_u32 s58, 1")
    A("s_cbranch_scc1 L_rt")
    A("s_cmp_eq_u32 s3, 4")
    A("s_cbranch_scc1 L_r")
    if st: A("s_branch L_w5")
    LB("L_w5x")
    A("s_endpgm")
    LB("L_rt")
    A("s_setprio 3")
    A("s_lshl_b32 s52, s22, 3")
    if DUP0:
        A("s_and_b32 s44, s23, 0x18")
        A("s_add_u32 s44, s44, 8")
        A("s_cmp_eq_u32 s22, 0")
        A("s_cselect_b32 s52, s44, s52")
    A("s_add_u32 s52, s52, s21")
    A("s_lshl_b32 s52, s52, 1")
    A("s_add_u32 s52, s52, s3")
    A("s_sub_u32 s52, s52, 20")
    A("s_lshl_b32 s44, s52, 13")
    A("s_add_u32 s45, s44, 4096")
    A("s_movk_i32 s26, 2048")
    A("s_waitcnt lgkmcnt(0)")
    if rst:
        A("s_load_dword s41, s[4:5], s44")
        A("s_load_dword s42, s[6:7], 0")
    A("s_mov_b64 s[28:29], s[4:5]")
    A("s_mov_b64 s[24:25], s[6:7]")
    A("s_load_dword s40, s[18:19], 0        ; epoch")
    A(f"buffer_load_dwordx4 v[16:19], v14, s[24:27], 0 offen")
    A(f"buffer_load_dwordx4 v[20:23], v14, s[24:27], 0 offen offset:1024")
    for i in range(8):
        A(f"buffer_load_dwordx4 v[{XR+4*i}:{XR+4*i+3}], v14, s[28:31], {'s44' if i < 4 else 's45'} offen offset:{(i%4)*1024}{xpol}")
    A("s_barrier                            ; B0")
    A("s_branch L_route")
    LB("L_c")
    if cpf is not None:
        A("s_getpc_b64 s[46:47]")
        LB("L_pc")
        A(f"s_cmp_lg_u32 s3, {cpf}")
        A("s_cbranch_scc1 L_nopf")
        A("v_lshlrev_b32 v2, 7, v0")
        A("v_min_u32 v2, L_last - L_pc - 256, v2")
        A("global_load_dword v159, v2, s[46:47] offset:256")
        LB("L_nopf")
    A("v_mov_b32 v4, 0")
    if st or KB is not None:
        for r in (5, 6, 7): A(f"v_mov_b32 v{r}, 0")
        A(f"ds_write_b128 v4, v[4:7] offset:{L_FLAG}")
    else:
        A(f"ds_write_b32 v4, v4 offset:{L_FLAG}")
    A("s_mov_b32 s26, 7340032")
    A("v_lshrrev_b32 v1, 4, v0              ; g")
    A("v_and_b32 v2, 15, v0                 ; n")
    A("v_mul_u32_u24 v3, %d, v1" % (8*7168))
    A("v_lshl_add_u32 v3, v2, 3, v3         ; voffset")
    A("s_lshr_b32 s44, s21, 1")
    A("s_lshl_b32 s44, s44, 2")
    A("s_add_u32 s44, s44, s3")
    A("s_lshr_b32 s45, %d, s57" % (128*7168))
    A("s_mul_i32 s44, s44, s45")
    A("s_lshl_b32 s45, s20, 7")
    A("s_add_u32 s44, s44, s45              ; soffset")
    A("s_bitcmp1_b32 s21, 0")
    A("s_waitcnt lgkmcnt(0)")
    A("s_cselect_b64 s[24:25], s[10:11], s[8:9]")
    A("s_cmp_eq_u32 s58, 0")
    A("s_cbranch_scc1 L_nb0")
    A("s_barrier")
    LB("L_nb0")
    if not cst1: stamp(1)
    DI = DI or D
    for n in range(DI):
        w1load(n)
        if n == D0 - 1:
            A("s_cmp_eq_u32 s58, 0")
            A("s_cbranch_scc1 L_nb0b")
            A("s_barrier")
            LB("L_nb0b")
    A("s_load_dword s40, s[18:19], 0        ; epoch")
    if sdp:
        A("s_getpc_b64 s[46:47]")
        LB("L_pc2")
        A("s_lshl_b32 s45, s23, 1")
        A("s_and_b32 s48, s3, 1")
        A("s_add_u32 s45, s45, s48")
        A("s_lshl_b32 s45, s45, 7")
        A("s_min_u32 s45, s45, L_last - L_pc2")
        A("s_load_dword s41, s[46:47], s45")
    if stamps:
        for i in range(2, 8): A(f"s_mov_b32 s{60+2*i}, 0")
        A("s_getreg_b32 s59, hwreg(HW_REG_HW_ID)")
    A("s_mov_b64 s[32:33], s[18:19]")
    A("s_mov_b32 s34, %d" % WS_REC)
    A("s_mov_b32 s35, 0x20000")
    A("s_mov_b32 s42, 0x05040100")
    A("s_mov_b32 s43, 0x07060302")
    A("v_and_b32 v8, 7, v0")
    A("v_lshl_add_u32 v13, v1, 3, v8")
    A("v_lshlrev_b32 v13, 4, v13")
    A("s_lshl_b32 s45, s3, 11")
    A("v_add_u32 v4, s45, v13")
    A("s_lshr_b32 s45, s45, s57")
    A("v_add_u32 v5, s45, v13")
    A("v_lshlrev_b32 v6, 3, v0")
    A("s_lshl_b32 s45, s3, 9")
    A("v_add_u32 v6, s45, v6                ; w*512 + lane*8")
    A("v_lshrrev_b32 v7, 1, v0")
    A("v_lshlrev_b32 v7, 4, v7")
    A("v_and_b32 v9, 1, v0")
    A("v_lshl_add_u32 v7, v9, 2, v7")
    A("s_lshr_b32 s45, s3, 1")
    A("s_lshl_b32 s45, s45, 9")
    A("s_and_b32 s46, s3, 1")
    A("s_lshl_b32 s46, s46, 3")
    A("s_add_u32 s45, s45, s46")
    A("v_add_u32 v7, s45, v7")
    A("s_mov_b64 s[28:29], s[12:13]")
    A("s_mov_b32 s30, 7340032")
    A("s_mov_b32 s31, 0x20000")
    A("v_lshlrev_b32 v10, 15, v1            ; g*16*2048")
    A("v_lshl_add_u32 v10, v2, 3, v10")
    A("v_lshrrev_b32 v11, 3, v2")
    A("v_lshl_add_u32 v11, v1, 7, v11       ; 4g*32 + (n>>3)")
    A("v_mul_u32_u24 v11, 7168, v11")
    A("v_lshl_add_u32 v11, v8, 4, v11       ; + (n&7)*16")
    A("s_lshl_b32 s53, s21, 2")
    A("s_lshr_b32 s53, s53, s57")
    A("s_add_u32 s53, s53, s3")
    A("s_lshr_b32 s45, s3, 1")
    A("s_and_b32 s45, s45, s57")
    A("s_lshl_b32 s45, s45, 30")
    A("v_or_b32 v10, s45, v10")
    A("v_or_b32 v11, s45, v11")
    A("s_mul_i32 s52, s53, %d" % (2*7168))
    A("s_lshl_b32 s46, s20, 7")
    A("s_add_u32 s52, s52, s46")
    A("s_add_u32 s52, s52, %d" % O_EX2)
    A("s_lshl_b32 s53, s53, 7")
    A("s_lshl_b32 s46, s20, 17              ; ct*64*2048")
    A("s_add_u32 s53, s53, s46")
    A("s_lshl_b32 s45, s20, 14")
    A("s_lshl_b32 s46, s21, 11")
    A("s_add_u32 s45, s45, %d               ; group base" % O_EX1F)
    A("s_add_u32 s46, s46, s45")
    A("s_mov_b32 s48, 0xffffff00")
    A("s_mov_b32 s51, 0xbfb8aa3b            ; -log2(e)")
    A("s_mov_b32 s49, 0")
    A("s_getreg_b32 s54, hwreg(HW_REG_XCC_ID, 0, 3)")
    A("v_mov_b32 v12, 1")
    depth = DI
    first = True
    for n in range(DI, 16):
        if depth < D and not first and (n - DI) % 2 == 1:
            depth += 1
        else:
            A(f"s_waitcnt vmcnt({depth-1})")
        first = False
        if n == DI and cst1: stamp(1)
        if n == KT and KT < 16 and SA is None: A(f"ds_write_b32 v12, v12 offset:{L_FLAG - 1}")
        if n == (K0 or DI) and st: A(f"ds_write_b32 v12, v12 offset:{L_FLAG + 7}")
        w1load(n)
    assert depth == D
    A("s_cmp_eq_u32 s57, 1")
    A("s_cbranch_scc1 L_cb")

    slow = []
    def cpath(NS, sfx, K, WA, K2, WM1, WM2):
        NL = 8*NS
        WB = 16 - WA - WM1 - WM2
        assert WB >= 0
        done = 0
        if NS == 2: stamp(2)
        DD = D3 if (NS == 2 and D3) else D
        for n in range(16, NL + WA):
            if n >= DD: A(f"s_waitcnt vmcnt({DD-1})")
            if n < NL: w1load(n)
            else: w2load(n - NL)
            if n == K and SA is None and KT >= 16:
                A(f"ds_write_b32 v12, v12 offset:{L_FLAG - 1}")
            if n == K2:
                A(f"ds_write_b32 v12, v12 offset:{L_FLAG + 3}")
            if n == NL - 1: stamp(2)
            complete = n - DD + 1
            while done < NS and 8*done + 8 <= complete:
                perms(raw, frag, done); done += 1
        A("s_waitcnt lgkmcnt(0)")
        A("s_add_u32 s40, s40, 1                ; tag32")
        A("s_and_b32 s41, s40, 0xff")
        A("s_lshl_b32 s55, s40, 3")
        A("s_and_b32 s55, s55, 0xf8")
        A("s_or_b32 s54, s54, s55")
        A("v_mov_b32 v9, s41")
        A("v_mov_b32 v12, s54")
        while done < NS:
            A(f"s_waitcnt vmcnt({NL + WA - 8*done - 8})")
            perms(raw, frag, done); done += 1
        A("s_barrier                            ; B2")
        stamp(3)
        for s in range(NS):
            A(f"ds_read_b128 v[{XB+4*s}:{XB+4*s+3}], v5 offset:{L_XS + 512*s}")
        for n in range(WA, WA + WM1): w2load(n)
        for s in range(NS):
            A(f"s_waitcnt lgkmcnt({NS-1-s})")
            for j in range(4):
                c = "0" if s == 0 else f"v[{ACC+4*j}:{ACC+4*j+3}]"
                A(f"v_mfma_f32_16x16x32_bf16 v[{ACC+4*j}:{ACC+4*j+3}], v[{frag(s,j)}:{frag(s,j)+3}], v[{XB+4*s}:{XB+4*s+3}], {c}")
        A("s_mov_b32 exec_lo, 0x00ff00ff")
        A("s_mov_b32 exec_hi, 0x00ff00ff")
        A("s_nop 2")
        for j in range(4):
            A(f"ds_write_b128 v4, v[{ACC+4*j}:{ACC+4*j+3}] offset:{L_RED + 512*j}")
        A("s_mov_b64 exec, -1")
        for n in range(WA + WM1, WA + WM1 + WM2): w2load(n)
        A("s_waitcnt lgkmcnt(0)")
        A("s_barrier                            ; B3")
        for w in range(4):
            A(f"ds_read_b64 v[{16+2*w}:{17+2*w}], v6 offset:{L_RED + 2048*w}")
        A("s_waitcnt lgkmcnt(2)")
        A("v_pk_add_f32 v[16:17], v[16:17], v[18:19]")
        A("s_waitcnt lgkmcnt(0)")
        A("v_pk_add_f32 v[20:21], v[20:21], v[22:23]")
        A("v_pk_add_f32 v[16:17], v[16:17], v[20:21]")
        A("v_and_or_b32 v16, v16, s48, v12")
        A("v_and_or_b32 v17, v17, s48, v12")
        A("buffer_store_dwordx2 v[16:17], v6, s[32:35], s46 offen" + (" " + x1pol if x1pol else ""))
        stamp(4)
        for n in range(16 - WB, 16): w2load(n)
        pk = WB if PK is None else PK
        after7 = 8 + (1 if 16 - WB >= 8 else 0)
        A(f"s_waitcnt vmcnt({min(max(pk, 0), after7) if pk > after7 else after7})")
        perms(raw2, frag2, 0)
        if pk < after7: A(f"s_waitcnt vmcnt({pk})")
        NB = 4 if NS == 4 else 8
        LB("L_x1poll" + sfx)
        for b in range(NB):
            if b and b % 2 == 0: A(f"s_add_u32 s47, s45, {b*2048}")
            A(f"buffer_load_dwordx2 v[{24+2*b}:{25+2*b}], v6, s[32:35], {'s45' if b < 2 else 's47'} offen offset:{(b%2)*2048} sc1")
        A("s_add_u32 s49, s49, 1")
        A("s_waitcnt vmcnt(0)")
        for r in range(24, 24+2*NB): A(f"v_xor_b32 v{r}, s54, v{r}")
        A("v_or3_b32 v8, v24, v25, v26")
        for r in range(27, 24+2*NB-1, 2): A(f"v_or3_b32 v8, v8, v{r}, v{r+1}")
        A(f"v_or_b32 v8, v8, v{24+2*NB-1}")
        A("v_and_b32 v8, 0xff, v8")
        A("v_cmp_ne_u32 vcc, 0, v8")
        A("s_cbranch_vccnz L_x1no" + sfx)
        LB("L_x1ok" + sfx)
        stamp(5)
        if NB == 8:
            A("v_pk_add_f32 v[24:25], v[24:25], v[32:33]")
            A("v_pk_add_f32 v[26:27], v[26:27], v[34:35]")
            A("v_pk_add_f32 v[28:29], v[28:29], v[36:37]")
            A("v_pk_add_f32 v[30:31], v[30:31], v[38:39]")
        S = []
        def B(s): S.append("  " + s)
        S.append("L_x1no" + sfx + ":")
        B(f"s_cmp_lt_u32 s49, {NF}")
        B("s_cbranch_scc1 L_x1poll" + sfx)
        B("v_lshlrev_b32 v8, 1, v6")
        B("s_lshl_b32 s50, s20, 15")
        B("s_add_u32 s50, s50, %d" % O_EX1)
        B(f"s_cmp_lg_u32 s49, {NF}")
        B("s_cbranch_scc1 L_x1ns" + sfx)
        B("v_and_b32 v96, s48, v16")
        B("v_and_b32 v97, s48, v17")
        B("v_mov_b32 v98, s40")
        B("v_mov_b32 v99, s40")
        B("s_lshl_b32 s47, s21, 12")
        B("s_add_u32 s47, s47, s50")
        B("buffer_store_dwordx4 v[96:99], v8, s[32:35], s47 offen sc1")
        B("s_waitcnt vmcnt(0)")
        S.append("L_x1ns" + sfx + ":")
        for b in range(NB):
            B(f"buffer_load_dwordx4 v[{96+4*b}:{99+4*b}], v8, s[32:35], s50 offen sc1")
            B("s_add_u32 s50, s50, 4096")
        B("s_waitcnt vmcnt(0)")
        B("v_mov_b32 v8, 0")
        for b in range(NB):
            B(f"v_xor_b32 v{98+4*b}, s40, v{98+4*b}")
            B(f"v_xor_b32 v{99+4*b}, s40, v{99+4*b}")
            B(f"v_or3_b32 v8, v8, v{98+4*b}, v{99+4*b}")
            B(f"v_mov_b32 v{24+2*b}, v{96+4*b}")
            B(f"v_mov_b32 v{25+2*b}, v{97+4*b}")
        B("v_cmp_ne_u32 vcc, 0, v8")
        B("s_cbranch_vccz L_x1ok" + sfx)
        B("s_cmp_lt_u32 s49, %d" % SPIN)
        B("s_cbranch_scc1 L_x1poll" + sfx)
        if sfx == "b": S.append("L_last:")
        B("s_branch L_x1ok" + sfx)
        slow.extend(S)
    cpath(4, "a", KT, WA, KB, WM1, WM2)
    LB("L_h")
    A("v_pk_add_f32 v[24:25], v[24:25], v[28:29]   ; gate")
    A("v_pk_add_f32 v[26:27], v[26:27], v[30:31]   ; up")
    A("v_cvt_pk_bf16_f32 v8, v24, v25")
    A("v_cvt_pk_bf16_f32 v12, v26, v27")
    A("v_lshlrev_b32 v18, 16, v8")
    A("v_and_b32 v19, 0xffff0000, v8")
    A("v_mul_f32 v20, s51, v18")
    A("v_mul_f32 v21, s51, v19")
    A("v_exp_f32 v20, v20")
    A("v_exp_f32 v21, v21")
    A("v_lshlrev_b32 v14, 16, v12")
    A("v_add_f32 v20, 1.0, v20")
    A("v_add_f32 v21, 1.0, v21")
    A("v_rcp_f32 v20, v20")
    A("v_rcp_f32 v21, v21")
    A("v_and_b32 v15, 0xffff0000, v12")
    A("v_mul_f32 v18, v18, v20")
    A("v_mul_f32 v19, v19, v21")
    A("v_cvt_pk_bf16_f32 v8, v18, v19        ; silu")
    A("v_lshlrev_b32 v18, 16, v8")
    A("v_and_b32 v19, 0xffff0000, v8")
    A("v_mul_f32 v18, v18, v14")
    A("v_mul_f32 v19, v19, v15")
    A("v_cvt_pk_bf16_f32 v8, v18, v19        ; h")
    A(f"ds_write_b32 v7, v8 offset:{L_HB}")
    perms(raw2, frag2, 1)
    A("s_waitcnt lgkmcnt(0)")
    A("s_barrier                            ; B4")
    for s in range(2):
        A(f"ds_read_b128 v[{HA+4*s}:{HA+4*s+3}], v13 offset:{L_HB + 512*s}")
    for s in range(2):
        A(f"s_waitcnt lgkmcnt({1-s})")
        for j in range(4):
            c = "0" if s == 0 else f"v[{ACC+4*j}:{ACC+4*j+3}]"
            A(f"v_mfma_f32_16x16x32_bf16 v[{ACC+4*j}:{ACC+4*j+3}], v[{HA+4*s}:{HA+4*s+3}], v[{frag2(s,j)}:{frag2(s,j)+3}], {c}")
    A("s_mov_b32 exec_lo, -1")
    A("s_mov_b32 exec_hi, 0")
    A("s_nop 5")
    for r in range(4):
        for j in range(4):
            A(f"v_and_or_b32 v{20+4*r+j}, v{ACC+4*j+r}, s48, v9")
        A(f"buffer_store_dwordx4 v[{20+4*r}:{23+4*r}], v11, s[32:35], s52 offen {x2st}")
        if r < 3: A("s_add_u32 s52, s52, %d" % (32*7168))
    stamp(6)
    if not nob5: A("s_waitcnt vmcnt(0)")
    A("s_barrier                            ; B5")
    stamp(7)
    if stamps: A("s_branch L_fin")
    else: A("s_endpgm")
    main_end = len(L)
    LB("L_cb")
    cpath(2, "b", KT3, WA3 if WA3 is not None else WA, KB3, *(WM3 or (WM1, WM2)))
    A("s_branch L_h")

    def rsetup():
        A("s_mov_b64 s[32:33], s[18:19]")
        A("s_mov_b32 s34, %d" % WS_REC)
        A("s_mov_b32 s35, 0x20000")
        A("s_mov_b64 s[36:37], s[14:15]")
        A("s_mov_b32 s38, 524288")
        A("s_mov_b32 s39, 0x20000")
        A("v_and_b32 v4, 7, v0")
        if stamps:
            for i in range(2, 8): A(f"s_mov_b32 s{60+2*i}, 0")
            A("s_mov_b32 s59, 0")
            A("s_mov_b32 s49, 0")
    def idload():
        A("s_lshl_b32 s53, s50, 11")
        A(f"buffer_load_dwordx4 v[{IDR}:{IDR+3}], v14, s[28:31], s53 offen{xpol}")
        A(f"buffer_load_dwordx4 v[{IDR+4}:{IDR+7}], v14, s[28:31], s53 offen offset:1024{xpol}")
    def pretouch():
        A("s_lshl_b32 s45, s20, 14")
        A("s_lshl_b32 s46, s21, 11")
        A("s_add_u32 s46, s46, s45")
        A("s_add_u32 s48, s46, %d               ; own L2-local block" % O_EX1F)
        A("buffer_load_dwordx4 v[24:27], v14, s[32:35], s48 offen")
        A("buffer_load_dwordx4 v[28:31], v14, s[32:35], s48 offen offset:1024")
        if tt: A("v_mov_b32 v32, 0")
        if "o" in tt: A("buffer_load_dword v33, v32, s[36:39], s53 offen")
        if "e" in tt:
            A("s_mov_b32 s45, 0x2f0000")
            A("buffer_load_dword v35, v32, s[32:35], s45 offen")
        if "d" in tt:
            A("s_lshl_b32 s45, s20, 17")
            A("v_mov_b32 v36, s45")
            A("global_load_dword v37, v36, s[12:13]")
    def touches():
        A("s_lshl_b32 s45, s2, 11")
        A("s_lshl_b32 s46, s20, 17")
        A("s_mov_b32 s47, 0x2f0000")
        A("s_load_dword s41, s[4:5], s45")
        A("s_load_dword s42, s[12:13], s46")
        A("s_load_dword s43, s[14:15], s45")
        A("s_load_dword s44, s[18:19], s47")
        A("s_waitcnt lgkmcnt(0)")
    def fwait(nm, off):
        A("s_mov_b32 s49, 0")
        LB("L_fwait" + nm)
        if fsleep: A(f"s_sleep {fsleep}")
        A(f"ds_read_b32 v9, v8 offset:{off}")
        A("s_add_u32 s49, s49, 1")
        A("s_cmp_ge_u32 s49, %d" % SPIN)
        A("s_waitcnt lgkmcnt(0)")
        A("v_cmp_eq_u32 vcc, 0, v9")
        A("s_cbranch_scc1 L_fok" + nm)
        A("s_cbranch_vccnz L_fwait" + nm)
        LB("L_fok" + nm)
    def psetup():
        A("v_mul_u32_u24 v12, %d, v0            ; poll offset" % LS)
        A("s_mul_i32 s47, s22, %d" % REPS)
        A("s_add_u32 s47, s47, %d               ; this die's replica" % O_IDX)
        A("v_lshrrev_b32 v11, 3, v0")
        A("s_lshr_b32 s45, s21, 1")
        A("s_sub_u32 s46, 10, s57")
        A("s_lshl_b32 s45, s45, s46")
    LB("L_w5")
    if st:
        A("v_mov_b32 v8, 0")
        fwait("0", L_FLAG + 8)
        touches()
    A("s_endpgm")
    LB("L_r")
    A("v_mov_b32 v8, 0")
    A("s_mov_b32 s50, s2                    ; slice")
    A("s_waitcnt lgkmcnt(0)")
    A("s_load_dword s40, s[18:19], 0        ; epoch")
    A("s_mov_b64 s[28:29], s[4:5]")
    rsetup()
    stamp(1)
    psetup()
    if SA is None:
        fwait("a", L_FLAG)
        if FS: A(f"s_sleep {FS}")
    else:
        if E1:
            A("s_waitcnt vmcnt(0) lgkmcnt(0)")
            stamp(1)
        if SA: A(f"s_sleep {SA}")
        A("s_waitcnt lgkmcnt(0)")
    A("s_add_u32 s40, s40, 1")
    stamp(2)
    if NP:
        for k in range(NP):
            if k: A(f"s_sleep {DL}")
            A(f"buffer_load_dwordx2 v[{16+2*k}:{17+2*k}], v12, s[32:35], s47 offen sc1")
        A("s_mov_b32 s49, 0")
        LB("L_ipolln")
        for k in range(NP):
            A("s_add_u32 s49, s49, 1")
            A(f"s_waitcnt vmcnt({NP-1})")
            A(f"v_cmp_ne_u32 vcc, s40, v{17+2*k}")
            A(f"v_mov_b32 v8, v{16+2*k}")
            A("s_cbranch_vccz L_iok")
            A(f"buffer_load_dwordx2 v[{16+2*k}:{17+2*k}], v12, s[32:35], s47 offen sc1")
        A("s_cmp_lt_u32 s49, %d" % SPIN)
        A("s_cbranch_scc1 L_ipolln")
        A("s_branch L_iok")
    elif KB is not None or SB is not None:
        A(f"buffer_load_dwordx2 v[16:17], v12, s[32:35], s47 offen sc1")
        if SB is None: fwait("b", L_FLAG + 4)
        else: A(f"s_sleep {SB}")
        A("s_mov_b32 s49, 0")
        LB("L_ipoll2")
        A(f"buffer_load_dwordx2 v[18:19], v12, s[32:35], s47 offen sc1")
        A("s_add_u32 s49, s49, 1")
        A(f"s_waitcnt vmcnt(1)")
        A(f"v_cmp_ne_u32 vcc, s40, v17")
        A("v_mov_b32 v8, v16")
        A("s_cbranch_vccz L_iok")
        A(f"buffer_load_dwordx2 v[16:17], v12, s[32:35], s47 offen sc1")
        A("s_add_u32 s49, s49, 1")
        A("s_cmp_ge_u32 s49, %d" % SPIN)
        A(f"s_waitcnt vmcnt(1)")
        A(f"v_cmp_ne_u32 vcc, s40, v19")
        A("v_mov_b32 v8, v18")
        A("s_cbranch_scc1 L_iok")
        A("s_cbranch_vccnz L_ipoll2")
        A("s_branch L_iok")
    else:
        A("s_branch L_ip0")
    route_beg = len(L)
    LB("L_route")
    stamp(1)
    rsetup()
    A("s_and_b32 s45, s52, 7")
    A("s_lshl_b32 s46, s45, 3")
    A("s_lshr_b32 s52, s52, 3               ; batch")
    A("s_add_u32 s46, s46, s52")
    A("s_mul_i32 s46, s46, %d" % LS)
    A("s_add_u32 s46, s46, %d               ; slot" % O_IDX)
    A("s_lshl_b32 s45, s45, 2")
    A("v_mul_u32_u24 v5, %d, v0             ; replica offset" % REPS)
    A("v_lshrrev_b32 v10, 5, v0")
    A("v_bfe_u32 v11, v0, 4, 1")
    A("v_lshl_add_u32 v10, v11, 1, v10")
    A("v_add_u32 v10, s45, v10")
    A("v_xor_b32 v10, 31, v10")
    for t in range(4):
        for hlf in range(2):
            A(f"s_waitcnt vmcnt({7 - 2*t - hlf})")
            if rp and t == 0 and hlf == 0: stamp(5)
            if rp and t == 3 and hlf == 1: stamp(6)
            for k in range(4):
                c = "0" if (hlf == 0 and k == 0) else f"v{6+t}"
                A(f"v_dot2_f32_bf16 v{6+t}, v{XR+8*t+4*hlf+k}, v{16+4*hlf+k}, {c}")
    A("s_waitcnt lgkmcnt(0)")
    if rp: stamp(4)
    A("s_add_u32 s40, s40, 1")
    A("s_nop 0")
    A("v_permlane32_swap_b32 v6, v7")
    A("v_permlane32_swap_b32 v8, v9")
    A("v_add_f32 v6, v6, v7")
    A("v_add_f32 v8, v8, v9")
    A("s_nop 1")
    A("v_permlane16_swap_b32 v6, v8")
    A("v_add_f32 v6, v6, v8")
    A("s_nop 1")
    A("v_add_f32_dpp v6, v6, v6 quad_perm:[1,0,3,2] row_mask:0xf bank_mask:0xf")
    A("s_nop 1")
    A("v_add_f32_dpp v6, v6, v6 quad_perm:[2,3,0,1] row_mask:0xf bank_mask:0xf")
    A("s_nop 1")
    A("v_add_f32_dpp v6, v6, v6 row_half_mirror row_mask:0xf bank_mask:0xf")
    A("s_nop 1")
    A("v_add_f32_dpp v6, v6, v6 row_mirror row_mask:0xf bank_mask:0xf")
    A("v_cvt_pk_bf16_f32 v7, v6, v6")
    A("v_and_b32 v7, 0xffff0000, v7          ; r (bf16)")
    A("v_ashrrev_i32 v6, 31, v7")
    A("v_or_b32 v6, 0x80000000, v6")
    A("v_xor_b32 v6, v6, v7")
    A("v_cmp_o_f32 vcc, v7, v7")
    A("v_and_b32 v6, 0xffff0000, v6")
    A("s_nop 0")
    A("v_cndmask_b32 v6, 0, v6, vcc")
    A("v_or_b32 v6, v10, v6")
    A("v_mov_b32 v7, v6")
    A("s_nop 1")
    A("v_permlane16_swap_b32 v6, v7")
    A("v_max_u32 v6, v6, v7")
    A("v_mov_b32 v7, v6")
    A("s_nop 1")
    A("v_permlane32_swap_b32 v6, v7")
    A("v_max_u32 v6, v6, v7")
    A("v_mov_b32 v7, s40")
    A("s_mov_b64 exec, 0xff")
    A("buffer_store_dwordx2 v[6:7], v5, s[32:35], s46 offen sc1")
    A("s_mov_b64 exec, -1")
    if rp: stamp(3)
    A("s_barrier                            ; B0b")
    stamp(2)
    A("s_setprio 0")
    A("s_branch L_rpub")
    route_end = len(L)
    LB("L_rpub")
    A("s_cmp_eq_u32 s3, 4")
    A("s_cbranch_scc1 L_r4")
    if st: touches()
    A("s_endpgm")
    LB("L_r4")
    A("s_mov_b32 s50, s2                    ; slice")
    psetup()
    if rack: A(f"s_waitcnt vmcnt(0)")
    LB("L_ip0")
    A("s_mov_b32 s49, 0")
    LB("L_ipoll")
    A(f"buffer_load_dwordx2 v[8:9], v12, s[32:35], s47 offen sc1")
    A("s_add_u32 s49, s49, 1")
    A("s_cmp_ge_u32 s49, %d" % SPIN)
    A(f"s_waitcnt vmcnt(0)")
    A(f"v_cmp_ne_u32 vcc, s40, v9")
    A("s_cbranch_scc1 L_iok")
    A("s_cbranch_vccnz L_ipoll")
    LB("L_iok")
    if not rp: stamp(3)
    if stamps: A("s_mov_b32 s59, s49")
    A("s_mov_b32 m0, %d" % L_XS)
    A("s_nop 0")
    A("v_max_u32_dpp v8, v8, v8 row_ror:8 row_mask:0xf bank_mask:0xf")
    A("v_mov_b32 v9, v8")
    A("s_cmp_eq_u32 s57, 1")
    A("s_nop 0")
    A("v_permlane16_swap_b32 v8, v9")
    A("v_max_u32 v8, v8, v9")
    A("v_mov_b32 v9, v8")
    A("s_nop 1")
    A("v_permlane32_swap_b32 v8, v9")
    A("v_max_u32 v8, v8, v9")
    A("v_and_b32 v10, 31, v8")
    A("v_xor_b32 v10, 31, v10")
    A("v_lshl_add_u32 v10, v4, 5, v10       ; row")
    A("v_lshlrev_b32 v10, 11, v10")
    A("v_lshl_add_u32 v10, v11, 4, v10      ; + chunk*16")
    A("v_lshlrev_b32 v9, 2, v4")
    for i in range(8):
        if i == 4: A("s_cbranch_scc1 L_dmadone")
        A(f"buffer_load_dwordx4 v10, s[28:31], s45 offen{xpol} lds")
        if i < 7:
            A("s_mov_b32 m0, %d" % (L_XS + 1024*(i+1)))
            A("v_add_u32 v10, 128, v10")
    LB("L_dmadone")
    A(f"ds_write_b32 v9, v8 offset:{L_KEY}")
    idload()
    pretouch()
    LB("L_b2")
    A("s_lshr_b32 s51, s50, 5")
    A("s_lshl_b32 s45, s51, 2")
    A("v_mov_b32 v5, s45")
    A(f"s_waitcnt vmcnt({4 + len(tt)}) lgkmcnt(0)")
    A("s_barrier                            ; B2")
    if not rp: stamp(4)
    A(f"ds_read_b32 v6, v5 offset:{L_KEY}")
    A(f"s_waitcnt vmcnt({2 + len(tt)})")
    for r in range(IDR, IDR+8):
        A(f"v_lshlrev_b32 v16, 16, v{r}")
        A(f"v_and_b32 v17, 0xffff0000, v{r}")
        A("v_pk_fma_f32 v[16:17], v[16:17], 0, v[16:17] op_sel_hi:[1,0,1]")
        A(f"v_cvt_pk_bf16_f32 v{r}, v16, v17    ; x + x*0")
    A("s_and_b32 s41, s40, 0xff")
    A("v_lshrrev_b32 v7, 5, v0")
    A("v_bfe_u32 v8, v0, 4, 1")
    A("v_lshl_add_u32 v7, v8, 1, v7         ; e")
    A("v_lshl_add_u32 v7, v4, 2, v7         ; 4*pos + e")
    A("s_and_b32 s46, s50, 31")
    A("s_lshl_b32 s45, s46, 5")
    A("v_add_u32 v7, s45, v7                ; column")
    A("s_waitcnt lgkmcnt(0)")
    A("s_barrier                            ; B3")
    A("v_and_b32 v8, 31, v6")
    A("v_xor_b32 v8, 31, v8")
    A("v_cmp_ne_u32 vcc, s46, v8")
    A("s_lshl_b32 s45, s51, 5")
    A("v_add_u32 v8, s45, v8                ; row")
    A("v_lshlrev_b32 v8, 10, v8")
    A("v_add_u32 v7, v8, v7")
    A("v_lshlrev_b32 v7, 1, v7")
    A("buffer_load_ushort v9, v7, s[28:31], 0 offen")
    A("s_cbranch_vccz L_sel")
    A(f"buffer_store_dwordx4 v[{IDR}:{IDR+3}], v14, s[36:39], s53 offen{outpol}")
    A(f"buffer_store_dwordx4 v[{IDR+4}:{IDR+7}], v14, s[36:39], s53 offen offset:1024{outpol}")
    LB("L_sel")
    A("v_lshrrev_b32 v10, 16, v6")
    A("v_xor_b32 v11, 0xffff, v10")
    A("v_and_b32 v12, 0x7fff, v10")
    A("v_cmp_gt_i32 vcc, 0, v6")
    A("s_mov_b32 s45, 0xbfb8aa3b")
    A("s_nop 0")
    A("v_cndmask_b32 v10, v11, v12, vcc")
    A("v_lshlrev_b32 v10, 16, v10           ; r")
    A("v_mul_f32 v10, s45, v10")
    A("v_exp_f32 v10, v10")
    A("s_nop 0")
    A("v_add_f32 v10, 1.0, v10")
    A("v_rcp_f32 v10, v10")
    A("s_nop 0")
    A("v_cvt_pk_bf16_f32 v10, v10, v10")
    A("v_and_b32 v10, 0xffff0000, v10       ; sigmoid")
    A("s_mul_i32 s46, s50, 7168")
    A("s_add_u32 s46, s46, %d" % O_EX2)
    A("s_add_u32 s47, s46, 4096")
    A("s_mov_b32 s49, 0")
    A("s_mov_b32 s44, 0x00ff00ff")
    A("s_mov_b32 s45, 0x00ff00ff")
    A("s_waitcnt vmcnt(0)")
    A("v_lshlrev_b32 v9, 16, v9             ; x")
    A("v_mov_b32 v13, 0")
    A("s_barrier                            ; B4")
    A("s_barrier                            ; B5")
    if not rp: stamp(5)
    if x2d: A(f"s_sleep {x2d}")
    if mx:
        MS = 76 if stamps else 60
        def ld(i):
            so = "s46" if i < 4 else "s47"
            A(f"buffer_load_dwordx4 v[{32+4*i}:{35+4*i}], v14, s[32:35], {so} offen offset:{(i%4)*1024} {x2ld}")
        def chk(i):
            b = 32 + 4*i
            for r in range(b, b+4): A(f"v_xor_b32 v{r}, s41, v{r}")
            A(f"v_or3_b32 v15, v{b}, v{b+1}, v{b+2}")
            A(f"v_or_b32 v15, v15, v{b+3}")
            A(f"v_cmp_ne_u32_sdwa s[{MS+2*i}:{MS+2*i+1}], v15, v13 src0_sel:BYTE_0 src1_sel:DWORD")
        def anyleft():
            A(f"s_or_b64 s[42:43], s[{MS}:{MS+1}], s[{MS+2}:{MS+3}]")
            for i in range(2, 7): A(f"s_or_b64 s[42:43], s[42:43], s[{MS+2*i}:{MS+2*i+1}]")
        for i in range(7): ld(i)
        A("s_mov_b32 s49, 1")
        for i in range(7):
            A(f"s_waitcnt vmcnt({6-i})")
            chk(i)
            if i == 1: A("v_pk_add_f32 v[16:17], v[32:33], v[36:37]"); A("v_pk_add_f32 v[18:19], v[34:35], v[38:39]")
            if i >= 2: A(f"v_pk_add_f32 v[16:17], v[16:17], v[{32+4*i}:{33+4*i}]"); A(f"v_pk_add_f32 v[18:19], v[18:19], v[{34+4*i}:{35+4*i}]")
        anyleft()
        A("s_cbranch_scc0 L_x2ok")
        LB("L_x2poll")
        if x2s: A(f"s_sleep {x2s}")
        for i in range(7):
            A(f"s_mov_b64 exec, s[{MS+2*i}:{MS+2*i+1}]")
            A(f"s_cbranch_execz L_x2l{i}")
            ld(i)
            LB(f"L_x2l{i}")
        A("s_add_u32 s49, s49, 1")
        A("s_waitcnt vmcnt(0)")
        for i in range(7):
            A(f"s_mov_b64 exec, s[{MS+2*i}:{MS+2*i+1}]")
            A(f"s_cbranch_execz L_x2c{i}")
            chk(i)
            LB(f"L_x2c{i}")
        A("s_mov_b64 exec, -1")
        anyleft()
        A("s_cbranch_scc0 L_x2sum")
        A("s_cmp_lt_u32 s49, %d" % SPIN)
        A("s_cbranch_scc1 L_x2poll")
        LB("L_x2sum")
        A("v_pk_add_f32 v[16:17], v[32:33], v[36:37]"); A("v_pk_add_f32 v[18:19], v[34:35], v[38:39]")
        for i in range(2, 7):
            A(f"v_pk_add_f32 v[16:17], v[16:17], v[{32+4*i}:{33+4*i}]"); A(f"v_pk_add_f32 v[18:19], v[18:19], v[{34+4*i}:{35+4*i}]")
        A("s_nop 0")
    else:
        LB("L_x2poll")
        for i in range(7):
            so = "s46" if i < 4 else "s47"
            A(f"buffer_load_dwordx4 v[{32+4*i}:{35+4*i}], v14, s[32:35], {so} offen offset:{(i%4)*1024} {x2ld}")
        A("s_add_u32 s49, s49, 1")
        for i in range(7):
            A(f"s_waitcnt vmcnt({6-i})")
            b = 32 + 4*i
            for r in range(b, b+4): A(f"v_xor_b32 v{r}, s41, v{r}")
            if i == 0:
                A(f"v_or3_b32 v15, v{b}, v{b+1}, v{b+2}")
                A(f"v_or_b32 v15, v15, v{b+3}")
            else:
                A(f"v_or3_b32 v15, v15, v{b}, v{b+1}")
                A(f"v_or3_b32 v15, v15, v{b+2}, v{b+3}")
                src = 32 if i == 1 else 16
                A(f"v_pk_add_f32 v[16:17], v[{src}:{src+1}], v[{b}:{b+1}]")
                A(f"v_pk_add_f32 v[18:19], v[{src+2}:{src+3}], v[{b+2}:{b+3}]")
        A("v_and_b32 v15, 0xff, v15")
        A("v_cmp_ne_u32 vcc, 0, v15")
        A("s_cbranch_vccz L_x2ok")
        A("s_cmp_lt_u32 s49, %d" % SPIN)
        A("s_cbranch_scc1 L_x2poll")
    LB("L_x2ok")
    if not rp: stamp(6)
    A("v_permlane32_swap_b32 v16, v17")
    A("v_permlane32_swap_b32 v18, v19")
    A("v_add_f32 v16, v16, v17")
    A("v_add_f32 v18, v18, v19")
    A("s_nop 1")
    A("v_permlane16_swap_b32 v16, v18")
    A("v_add_f32 v16, v16, v18")
    A("s_nop 1")
    A("v_add_f32_dpp v16, v16, v16 row_ror:8 row_mask:0xf bank_mask:0xf")
    A("s_mov_b64 exec, s[44:45]")
    A("v_cvt_pk_bf16_f32 v16, v16, v16")
    A("v_and_b32 v16, 0xffff0000, v16       ; y")
    A("v_mul_f32 v16, v16, v10")
    A("v_cvt_pk_bf16_f32 v16, v16, v16")
    A("v_and_b32 v16, 0xffff0000, v16       ; y*sigmoid")
    A("v_fma_f32 v16, v9, 0, v16            ; upd = x*0 + y")
    A("v_add_f32 v16, v9, v16")
    A("v_cvt_pk_bf16_f32 v16, v16, v16")
    A(f"buffer_store_short v16, v7, s[36:39], 0 offen{outpol}")
    A("s_cmp_lg_u32 s50, 0")
    A("s_cbranch_scc1 L_noep")
    A("v_mov_b32 v18, s40")
    A("v_mov_b32 v17, 0")
    A("s_mov_b64 exec, 1")
    A("buffer_store_dword v18, v17, s[32:35], 0 offen sc1")
    LB("L_noep")
    stamp(7)
    LB("L_fin")
    import diag
    if dg: diag.epilogue(A, LB, dg)
    elif gamp: diag.gamp(A, LB, gamp)
    elif gpair: diag.gpair(A, LB, gpair)
    elif stamps: diag.dump(A, LB)
    LB("L_end")
    A("s_endpgm")
    if align:
        L = L[:main_end] + L[route_beg:route_end] + [".p2align 12"] + L[main_end:route_beg] + L[route_end:]
    L.extend(slow)
    body = "\n".join(L)
    pad = ".p2align 12\n.fill 832, 4, 0xbf800000            ; the kernel starts a 4 KB page (instruction prefetch stops at page ends)\n" if align else ""
    return f"""{HEAD}; @launch grid=(256,1,1) block=(384,1,1) lds={LDSB or LDS_BYTES}
.amdgcn_target "amdgcn-amd-amdhsa--gfx950"
.text
.globl {KN}
{pad}.p2align 8
.type {KN},@function
{KN}:
{body}
.section .rodata,"a"
.p2align 6
.amdhsa_kernel {KN}
  .amdhsa_next_free_vgpr 160
  .amdhsa_next_free_sgpr 96
  .amdhsa_accum_offset 160
  .amdhsa_group_segment_fixed_size 0
  .amdhsa_kernarg_size 64
  .amdhsa_user_sgpr_count 2
  .amdhsa_user_sgpr_kernarg_segment_ptr 1
  .amdhsa_system_sgpr_workgroup_id_x 1
  .amdhsa_float_denorm_mode_32 3
.end_amdhsa_kernel
"""
if __name__ == "__main__":
    import sys, json
    kw = json.loads(sys.argv[2]) if len(sys.argv) > 2 else {}
    open(sys.argv[1] if len(sys.argv) > 1 else "standalone__moe_arch_mod__sampling.s", "w").write(gen(**kw))
```

```python
KN = "standalone__moe_arch_mod__sampling_kernel"
HEAD = open("standalone__moe_arch_mod__sampling.s.ref").read().split("; Override launch")[0]

O_IDX = 0x1000
O_EX1F = 0x20000
O_EX2 = 0x100000
O_EX1 = 0x300000
WS_REC = 0x500000
L_XS = 0
L_RED = 8192
L_HB = 16384
L_KEY = 17408
L_FLAG = 17408 + 32
LDS_BYTES = 17408 + 64
SPIN = 40000
NRX = 4

def gen(pol="nt", xpol="", D=10, LS=16, NF=12, stamps=False, outpol="", D0=3, WA=10, WM1=2, WM2=1, PK=None,
        KT=21, KT3=17, dg=None, gamp=None, cpf=3, tt="o", fsleep=1, cst1=False, WA3=None, rack=True, RD=(1,2,3,7), KB=None, KB3=None, SA=None, SB=None, E1=True, st=True, x1pol="", rst=True, K0=None, NP=0, DL=9, DI=None, rp=False, FS=0, RM=None, align=True, mx=True, x2d=0, x2s=0, x2ld="sc1", x2st="sc1", nob5=False, gpair=None, lag0=0, WM3=None, DUP0=False, LD=0, PERM=None, LDSB=None, sdp=True, D3=None, DS=None, D3W=None, BX=None, DX=32, BX3=None, idx_first=True, MAP="A"):
    RM = {int(k): v for k, v in RM.items()} if RM else {d: i for i, d in enumerate(RD)}
    RD = list(RM)
    if gamp or dg or gpair: stamps = True
    L = []
    def A(s): L.append("  " + s)
    def LB(s): L.append(s + ":")
    def stamp(i):
        if stamps: A(f"s_memrealtime s[{60+2*i}:{61+2*i}]")
    pol = (" " + pol) if pol else ""
    xpol = (" " + xpol) if xpol else ""
    outpol = (" " + outpol) if outpol else ""
    REPS = 64 * LS
    XR = 80
    RAW = 16; FR = 80; XB = 96; ACC = 112; W2 = 128
    F2 = 40; HA = 72
    IDR = 40
    def raw(s, i): return RAW + 16*s + 2*i
    def frag(s, j): return (FR if s == 0 else RAW + 16*(s-1)) + 4*j
    def raw2(s, i): return W2 + 16*s + 2*i
    def frag2(s, j): return F2 + 16*s + 4*j
    def perms(rawf, fragf, s):
        for e in range(2):
            for p in range(4):
                A(f"v_perm_b32 v{fragf(s,2*e)+p}, v{rawf(s,2*p+1)+e}, v{rawf(s,2*p)+e}, s42")
            for p in range(4):
                A(f"v_perm_b32 v{fragf(s,2*e+1)+p}, v{rawf(s,2*p+1)+e}, v{rawf(s,2*p)+e}, s43")
    def w1load(n):
        s, i = divmod(n, 8)
        A(f"buffer_load_dwordx2 v[{raw(s,i)}:{raw(s,i)+1}], v3, s[24:27], s44 offen{pol}")
        A("s_addk_i32 s44, 7168" if i < 7 else "s_add_u32 s44, s44, %d" % (25*7168))
    def w2load(n):
        s, i = divmod(n, 8)
        p, b = divmod(i, 2)
        row = 2*s + (p >> 1) + 8*(p & 1) + 4*b
        A("s_add_u32 s47, s53, %d" % (row*2048))
        A(f"buffer_load_dwordx2 v[{raw2(s,i)}:{raw2(s,i)+1}], v10, s[28:31], s47 offen{pol}")

    if lag0:
        A("s_and_b32 s3, s2, 7")
        A("s_cmp_lg_u32 s3, 0")
        A("s_cbranch_scc1 L_nolag")
        A(f"s_sleep {lag0}")
        LB("L_nolag")
    stamp(0)
    A("s_cmp_ge_u32 s2, 256")
    A("s_cbranch_scc1 L_w5x")
    A("s_load_dwordx16 s[4:19], s[0:1], 0")
    A("v_lshrrev_b32 v1, 6, v0")
    A("v_and_b32 v0, 63, v0                 ; lane")
    A("v_readfirstlane_b32 s3, v1           ; wave")
    if PERM:
        A("s_lshl_b32 s22, s2, 2")
        A("s_lshr_b32 s22, 0x%x, s22" % sum(v << (4*i) for i, v in enumerate(PERM)))
    else:
        A("s_sub_u32 s22, s2, %d" % LD)
    A("s_and_b32 s22, s22, 7")
    if MAP == "B":
        A("s_lshr_b32 s23, s2, 3")
        A("s_lshr_b32 s44, s23, 2")
        A("s_mul_i32 s45, s22, 6")
        A("s_add_u32 s45, s45, s44")
        A("s_add_u32 s44, s45, 4")
        A("s_mul_i32 s44, s44, 37")
        A("s_lshr_b32 s44, s44, 8")
        A("s_add_u32 s20, s45, s44")
        A("s_lshl_b32 s44, s22, 3")
        A("s_add_u32 s44, s44, 3")
        A("s_min_u32 s44, s44, 55")
        A("s_cmp_ge_u32 s23, 24")
        A("s_cselect_b32 s20, s44, s20")
        A("s_cselect_b32 s57, 1, 0")
        A("s_cselect_b32 s21, 7, 3")
        A("s_and_b32 s21, s21, s23              ; part")
        if DUP0: A("s_mov_b32 s58, s57")
        else:
            A("s_cmp_lt_u32 s22, 4")
            A("s_cselect_b32 s58, s57, 0")
    else:
        A("s_lshr_b32 s23, s2, 3")
        A("s_lshr_b32 s44, s23, 2")
        A("s_mul_i32 s45, s22, 6")
        A("s_sub_u32 s45, s45, 6")
        A("s_lshl_b32 s46, s22, 3")
        A("s_sub_u32 s46, s46, 16")
        A("s_cmp_lt_u32 s22, 5")
        A("s_cselect_b32 s45, s45, s46")
        A("s_cselect_b32 s46, 24, 32")
        A("s_add_u32 s45, s45, s44")
        A("s_add_u32 s44, s45, 4")
        A("s_mul_i32 s44, s44, 37")
        A("s_lshr_b32 s44, s44, 8")
        A("s_add_u32 s20, s45, s44")
        A("s_and_b32 s45, s23, 0x18")
        A("s_add_u32 s45, s45, 3")
        A("s_cmp_eq_u32 s45, 27")
        A("s_cselect_b32 s45, 55, s45")
        A("s_lshl_b32 s44, s22, 3")
        A("s_add_u32 s44, s44, 19")
        A("s_cmp_eq_u32 s22, 0")
        A("s_cselect_b32 s44, s45, s44")
        A("s_cselect_b32 s46, 0, s46")
        if not DUP0: A("s_cselect_b32 s58, 0, 1")
        A("s_cmp_ge_u32 s23, s46")
        A("s_cselect_b32 s20, s44, s20")
        A("s_cselect_b32 s57, 1, 0")
        A("s_cselect_b32 s21, 7, 3")
        A("s_and_b32 s21, s21, s23              ; part")
        if DUP0: A("s_mov_b32 s58, s57")
        else: A("s_and_b32 s58, s58, s57")
    A("s_mov_b32 s27, 0x20000")
    A("s_cmp_lt_u32 s3, 4")
    A("s_cbranch_scc1 L_c")
    A("s_mov_b32 s30, 524288")
    A("s_mov_b32 s31, 0x20000")
    A("v_lshlrev_b32 v14, 4, v0             ; lane*16")
    A("s_cmp_eq_u32 s58, 1")
    A("s_cbranch_scc1 L_rt")
    A("s_cmp_eq_u32 s3, 4")
    A("s_cbranch_scc1 L_r")
    if st: A("s_branch L_w5")
    LB("L_w5x")
    A("s_endpgm")
    LB("L_rt")
    A("s_setprio 3")
    if MAP == "B":
        A("s_and_b32 s52, s22, 3")
        A("s_add_u32 s52, s52, 1")
        A("s_lshl_b32 s52, s52, 3")
    else: A("s_lshl_b32 s52, s22, 3")
    if DUP0 and MAP != "B":
        A("s_and_b32 s44, s23, 0x18")
        A("s_add_u32 s44, s44, 8")
        A("s_cmp_eq_u32 s22, 0")
        A("s_cselect_b32 s52, s44, s52")
    A("s_add_u32 s52, s52, s21")
    A("s_lshl_b32 s52, s52, 1")
    A("s_add_u32 s52, s52, s3")
    A("s_sub_u32 s52, s52, 20")
    A("s_lshl_b32 s44, s52, 13")
    A("s_add_u32 s45, s44, 4096")
    A("s_movk_i32 s26, 2048")
    A("s_waitcnt lgkmcnt(0)")
    if rst:
        A("s_load_dword s41, s[4:5], s44")
        A("s_load_dword s42, s[6:7], 0")
    A("s_mov_b64 s[28:29], s[4:5]")
    A("s_mov_b64 s[24:25], s[6:7]")
    A("s_load_dword s40, s[18:19], 0        ; epoch")
    A(f"buffer_load_dwordx4 v[16:19], v14, s[24:27], 0 offen")
    A(f"buffer_load_dwordx4 v[20:23], v14, s[24:27], 0 offen offset:1024")
    for i in range(8):
        A(f"buffer_load_dwordx4 v[{XR+4*i}:{XR+4*i+3}], v14, s[28:31], {'s44' if i < 4 else 's45'} offen offset:{(i%4)*1024}{xpol}")
    A("s_barrier                            ; B0")
    A("s_branch L_route")
    LB("L_c")
    if cpf is not None:
        A("s_getpc_b64 s[46:47]")
        LB("L_pc")
        A(f"s_cmp_lg_u32 s3, {cpf}")
        A("s_cbranch_scc1 L_nopf")
        A("v_lshlrev_b32 v2, 7, v0")
        A("v_min_u32 v2, L_last - L_pc - 256, v2")
        A("global_load_dword v159, v2, s[46:47] offset:256")
        LB("L_nopf")
    A("v_mov_b32 v4, 0")
    if st or KB is not None:
        for r in (5, 6, 7): A(f"v_mov_b32 v{r}, 0")
        A(f"ds_write_b128 v4, v[4:7] offset:{L_FLAG}")
    else:
        A(f"ds_write_b32 v4, v4 offset:{L_FLAG}")
    A("s_mov_b32 s26, 7340032")
    A("v_lshrrev_b32 v1, 4, v0              ; g")
    A("v_and_b32 v2, 15, v0                 ; n")
    A("v_mul_u32_u24 v3, %d, v1" % (8*7168))
    A("v_lshl_add_u32 v3, v2, 3, v3         ; voffset")
    A("s_lshr_b32 s44, s21, 1")
    A("s_lshl_b32 s44, s44, 2")
    A("s_add_u32 s44, s44, s3")
    A("s_lshr_b32 s45, %d, s57" % (128*7168))
    A("s_mul_i32 s44, s44, s45")
    A("s_lshl_b32 s45, s20, 7")
    A("s_add_u32 s44, s44, s45              ; soffset")
    A("s_bitcmp1_b32 s21, 0")
    A("s_waitcnt lgkmcnt(0)")
    A("s_cselect_b64 s[24:25], s[10:11], s[8:9]")
    A("s_cmp_eq_u32 s58, 0")
    A("s_cbranch_scc1 L_nb0")
    A("s_barrier")
    LB("L_nb0")
    if not cst1: stamp(1)
    DI = DI or D
    for n in range(DI):
        w1load(n)
        if n == D0 - 1 and D0 < DI:
            A("s_cmp_eq_u32 s58, 0")
            A("s_cbranch_scc1 L_nb0b")
            A("s_barrier")
            LB("L_nb0b")
    A("s_load_dword s40, s[18:19], 0        ; epoch")
    if sdp:
        A("s_getpc_b64 s[46:47]")
        LB("L_pc2")
        A("s_lshl_b32 s45, s23, 1")
        A("s_and_b32 s48, s3, 1")
        A("s_add_u32 s45, s45, s48")
        A("s_lshl_b32 s45, s45, 7")
        A("s_min_u32 s45, s45, L_last - L_pc2")
        A("s_load_dword s41, s[46:47], s45")
    if stamps:
        for i in range(2, 8): A(f"s_mov_b32 s{60+2*i}, 0")
        A("s_getreg_b32 s59, hwreg(HW_REG_HW_ID)")
    A("s_mov_b64 s[32:33], s[18:19]")
    A("s_mov_b32 s34, %d" % WS_REC)
    A("s_mov_b32 s35, 0x20000")
    A("s_mov_b32 s42, 0x05040100")
    A("s_mov_b32 s43, 0x07060302")
    A("v_and_b32 v8, 7, v0")
    A("v_lshl_add_u32 v13, v1, 3, v8")
    A("v_lshlrev_b32 v13, 4, v13")
    A("s_lshl_b32 s45, s3, 11")
    A("v_add_u32 v4, s45, v13")
    A("s_lshr_b32 s45, s45, s57")
    A("v_add_u32 v5, s45, v13")
    A("v_lshlrev_b32 v6, 3, v0")
    A("s_lshl_b32 s45, s3, 9")
    A("v_add_u32 v6, s45, v6                ; w*512 + lane*8")
    A("v_lshrrev_b32 v7, 1, v0")
    A("v_lshlrev_b32 v7, 4, v7")
    A("v_and_b32 v9, 1, v0")
    A("v_lshl_add_u32 v7, v9, 2, v7")
    A("s_lshr_b32 s45, s3, 1")
    A("s_lshl_b32 s45, s45, 9")
    A("s_and_b32 s46, s3, 1")
    A("s_lshl_b32 s46, s46, 3")
    A("s_add_u32 s45, s45, s46")
    A("v_add_u32 v7, s45, v7")
    A("s_mov_b64 s[28:29], s[12:13]")
    A("s_mov_b32 s30, 7340032")
    A("s_mov_b32 s31, 0x20000")
    A("v_lshlrev_b32 v10, 15, v1            ; g*16*2048")
    A("v_lshl_add_u32 v10, v2, 3, v10")
    A("v_lshrrev_b32 v11, 3, v2")
    A("v_lshl_add_u32 v11, v1, 7, v11       ; 4g*32 + (n>>3)")
    A("v_mul_u32_u24 v11, 7168, v11")
    A("v_lshl_add_u32 v11, v8, 4, v11       ; + (n&7)*16")
    A("s_lshl_b32 s53, s21, 2")
    A("s_lshr_b32 s53, s53, s57")
    A("s_add_u32 s53, s53, s3")
    A("s_lshr_b32 s45, s3, 1")
    A("s_and_b32 s45, s45, s57")
    A("s_lshl_b32 s45, s45, 30")
    A("v_or_b32 v10, s45, v10")
    A("v_or_b32 v11, s45, v11")
    A("s_mul_i32 s52, s53, %d" % (2*7168))
    A("s_lshl_b32 s46, s20, 7")
    A("s_add_u32 s52, s52, s46")
    A("s_add_u32 s52, s52, %d" % O_EX2)
    A("s_lshl_b32 s53, s53, 7")
    A("s_lshl_b32 s46, s20, 17              ; ct*64*2048")
    A("s_add_u32 s53, s53, s46")
    A("s_lshl_b32 s45, s20, 14")
    A("s_lshl_b32 s46, s21, 11")
    A("s_add_u32 s45, s45, %d               ; group base" % O_EX1F)
    A("s_add_u32 s46, s46, s45")
    A("s_mov_b32 s48, 0xffffff00")
    A("s_mov_b32 s51, 0xbfb8aa3b            ; -log2(e)")
    A("s_mov_b32 s49, 0")
    A("s_getreg_b32 s54, hwreg(HW_REG_XCC_ID, 0, 3)")
    A("v_mov_b32 v12, 1")
    A("s_cmp_eq_u32 s57, 1")
    A("s_cbranch_scc1 L_cb")

    slow = []
    def cpath(NS, sfx, K, WA, K2, WM1, WM2):
        NL = 8*NS
        WB = 16 - WA - WM1 - WM2
        assert WB >= 0
        done = 0
        DD = D3 if (NS == 2 and D3) else D
        DW = D3W if (NS == 2 and D3W) else DD
        landed = 0
        if NS == 2 and D0 >= DI:
            if not DUP0:
                A("s_cmp_eq_u32 s58, 0")
                A("s_cbranch_scc1 L_nb0b")
            A("s_barrier")
            LB("L_nb0b")
        for n in range(DI, NL + WA):
            dn = min(DD if n < NL else DW, DI + (n - DI + 1) // 2) if n < NL or DW <= DD else DW
            if DS and NS == 4:
                if DS[0] <= n < DS[1]: dn = DS[2]
                elif n >= DS[1]: dn = min(DD, DS[2] + (n - DS[1] + 1) * (DS[3] if len(DS) > 3 else 1))
            bx = BX if NS == 4 else BX3
            if bx is not None and n >= NL + bx:
                if n == NL + bx: A("s_barrier")
                dn = DX
            if n - dn + 1 > landed:
                A(f"s_waitcnt vmcnt({dn-1})")
                landed = n - dn + 1
            if n == DI:
                if cst1: stamp(1)
                if st: A(f"ds_write_b32 v12, v12 offset:{L_FLAG + 7}")
            if n < NL: w1load(n)
            else: w2load(n - NL)
            if n == K and SA is None:
                A(f"ds_write_b32 v12, v12 offset:{L_FLAG - 1}")
            if n == K2:
                A(f"ds_write_b32 v12, v12 offset:{L_FLAG + 3}")
            if n == NL - 1: stamp(2)
            while done < NS and 8*done + 8 <= landed:
                perms(raw, frag, done); done += 1
        if BX is not None and NS == 2 and BX3 is None: A("s_barrier                            ; BX")
        A("s_waitcnt lgkmcnt(0)")
        A("s_add_u32 s40, s40, 1                ; tag32")
        A("s_and_b32 s41, s40, 0xff")
        A("s_lshl_b32 s55, s40, 3")
        A("s_and_b32 s55, s55, 0xf8")
        A("s_or_b32 s54, s54, s55")
        A("v_mov_b32 v9, s41")
        A("v_mov_b32 v12, s54")
        while done < NS:
            A(f"s_waitcnt vmcnt({NL + WA - 8*done - 8})")
            perms(raw, frag, done); done += 1
        A("s_barrier                            ; B2")
        stamp(3)
        for s in range(NS):
            A(f"ds_read_b128 v[{XB+4*s}:{XB+4*s+3}], v5 offset:{L_XS + 512*s}")
        for n in range(WA, WA + WM1): w2load(n)
        for s in range(NS):
            A(f"s_waitcnt lgkmcnt({NS-1-s})")
            for j in range(4):
                c = "0" if s == 0 else f"v[{ACC+4*j}:{ACC+4*j+3}]"
                A(f"v_mfma_f32_16x16x32_bf16 v[{ACC+4*j}:{ACC+4*j+3}], v[{frag(s,j)}:{frag(s,j)+3}], v[{XB+4*s}:{XB+4*s+3}], {c}")
        A("s_mov_b32 exec_lo, 0x00ff00ff")
        A("s_mov_b32 exec_hi, 0x00ff00ff")
        A("s_nop 2")
        for j in range(4):
            A(f"ds_write_b128 v4, v[{ACC+4*j}:{ACC+4*j+3}] offset:{L_RED + 512*j}")
        A("s_mov_b64 exec, -1")
        for n in range(WA + WM1, WA + WM1 + WM2): w2load(n)
        A("s_waitcnt lgkmcnt(0)")
        A("s_barrier                            ; B3")
        for w in range(4):
            A(f"ds_read_b64 v[{16+2*w}:{17+2*w}], v6 offset:{L_RED + 2048*w}")
        A("s_waitcnt lgkmcnt(2)")
        A("v_pk_add_f32 v[16:17], v[16:17], v[18:19]")
        A("s_waitcnt lgkmcnt(0)")
        A("v_pk_add_f32 v[20:21], v[20:21], v[22:23]")
        A("v_pk_add_f32 v[16:17], v[16:17], v[20:21]")
        A("v_and_or_b32 v16, v16, s48, v12")
        A("v_and_or_b32 v17, v17, s48, v12")
        A("buffer_store_dwordx2 v[16:17], v6, s[32:35], s46 offen" + (" " + x1pol if x1pol else ""))
        stamp(4)
        for n in range(16 - WB, 16): w2load(n)
        pk = WB if PK is None else PK
        after7 = 8 + (1 if 16 - WB >= 8 else 0)
        A(f"s_waitcnt vmcnt({min(max(pk, 0), after7) if pk > after7 else after7})")
        perms(raw2, frag2, 0)
        if pk < after7: A(f"s_waitcnt vmcnt({pk})")
        NB = 4 if NS == 4 else 8
        LB("L_x1poll" + sfx)
        for b in range(NB):
            if b and b % 2 == 0: A(f"s_add_u32 s47, s45, {b*2048}")
            A(f"buffer_load_dwordx2 v[{24+2*b}:{25+2*b}], v6, s[32:35], {'s45' if b < 2 else 's47'} offen offset:{(b%2)*2048} sc1")
        A("s_add_u32 s49, s49, 1")
        A("s_waitcnt vmcnt(0)")
        for r in range(24, 24+2*NB): A(f"v_xor_b32 v{r}, s54, v{r}")
        A("v_or3_b32 v8, v24, v25, v26")
        for r in range(27, 24+2*NB-1, 2): A(f"v_or3_b32 v8, v8, v{r}, v{r+1}")
        A(f"v_or_b32 v8, v8, v{24+2*NB-1}")
        A("v_and_b32 v8, 0xff, v8")
        A("v_cmp_ne_u32 vcc, 0, v8")
        A("s_cbranch_vccnz L_x1no" + sfx)
        LB("L_x1ok" + sfx)
        stamp(5)
        if NB == 8:
            A("v_pk_add_f32 v[24:25], v[24:25], v[32:33]")
            A("v_pk_add_f32 v[26:27], v[26:27], v[34:35]")
            A("v_pk_add_f32 v[28:29], v[28:29], v[36:37]")
            A("v_pk_add_f32 v[30:31], v[30:31], v[38:39]")
        S = []
        def B(s): S.append("  " + s)
        S.append("L_x1no" + sfx + ":")
        B(f"s_cmp_lt_u32 s49, {NF}")
        B("s_cbranch_scc1 L_x1poll" + sfx)
        B("v_lshlrev_b32 v8, 1, v6")
        B("s_lshl_b32 s50, s20, 15")
        B("s_add_u32 s50, s50, %d" % O_EX1)
        B(f"s_cmp_lg_u32 s49, {NF}")
        B("s_cbranch_scc1 L_x1ns" + sfx)
        B("v_and_b32 v96, s48, v16")
        B("v_and_b32 v97, s48, v17")
        B("v_mov_b32 v98, s40")
        B("v_mov_b32 v99, s40")
        B("s_lshl_b32 s47, s21, 12")
        B("s_add_u32 s47, s47, s50")
        B("buffer_store_dwordx4 v[96:99], v8, s[32:35], s47 offen sc1")
        B("s_waitcnt vmcnt(0)")
        S.append("L_x1ns" + sfx + ":")
        for b in range(NB):
            B(f"buffer_load_dwordx4 v[{96+4*b}:{99+4*b}], v8, s[32:35], s50 offen sc1")
            B("s_add_u32 s50, s50, 4096")
        B("s_waitcnt vmcnt(0)")
        B("v_mov_b32 v8, 0")
        for b in range(NB):
            B(f"v_xor_b32 v{98+4*b}, s40, v{98+4*b}")
            B(f"v_xor_b32 v{99+4*b}, s40, v{99+4*b}")
            B(f"v_or3_b32 v8, v8, v{98+4*b}, v{99+4*b}")
            B(f"v_mov_b32 v{24+2*b}, v{96+4*b}")
            B(f"v_mov_b32 v{25+2*b}, v{97+4*b}")
        B("v_cmp_ne_u32 vcc, 0, v8")
        B("s_cbranch_vccz L_x1ok" + sfx)
        B("s_cmp_lt_u32 s49, %d" % SPIN)
        B("s_cbranch_scc1 L_x1poll" + sfx)
        if sfx == "b": S.append("L_last:")
        B("s_branch L_x1ok" + sfx)
        slow.extend(S)
    cpath(4, "a", KT, WA, KB, WM1, WM2)
    LB("L_h")
    A("v_pk_add_f32 v[24:25], v[24:25], v[28:29]   ; gate")
    A("v_pk_add_f32 v[26:27], v[26:27], v[30:31]   ; up")
    A("v_cvt_pk_bf16_f32 v8, v24, v25")
    A("v_cvt_pk_bf16_f32 v12, v26, v27")
    A("v_lshlrev_b32 v18, 16, v8")
    A("v_and_b32 v19, 0xffff0000, v8")
    A("v_mul_f32 v20, s51, v18")
    A("v_mul_f32 v21, s51, v19")
    A("v_exp_f32 v20, v20")
    A("v_exp_f32 v21, v21")
    A("v_lshlrev_b32 v14, 16, v12")
    A("v_add_f32 v20, 1.0, v20")
    A("v_add_f32 v21, 1.0, v21")
    A("v_rcp_f32 v20, v20")
    A("v_rcp_f32 v21, v21")
    A("v_and_b32 v15, 0xffff0000, v12")
    A("v_mul_f32 v18, v18, v20")
    A("v_mul_f32 v19, v19, v21")
    A("v_cvt_pk_bf16_f32 v8, v18, v19        ; silu")
    A("v_lshlrev_b32 v18, 16, v8")
    A("v_and_b32 v19, 0xffff0000, v8")
    A("v_mul_f32 v18, v18, v14")
    A("v_mul_f32 v19, v19, v15")
    A("v_cvt_pk_bf16_f32 v8, v18, v19        ; h")
    A(f"ds_write_b32 v7, v8 offset:{L_HB}")
    perms(raw2, frag2, 1)
    A("s_waitcnt lgkmcnt(0)")
    A("s_barrier                            ; B4")
    for s in range(2):
        A(f"ds_read_b128 v[{HA+4*s}:{HA+4*s+3}], v13 offset:{L_HB + 512*s}")
    for s in range(2):
        A(f"s_waitcnt lgkmcnt({1-s})")
        for j in range(4):
            c = "0" if s == 0 else f"v[{ACC+4*j}:{ACC+4*j+3}]"
            A(f"v_mfma_f32_16x16x32_bf16 v[{ACC+4*j}:{ACC+4*j+3}], v[{HA+4*s}:{HA+4*s+3}], v[{frag2(s,j)}:{frag2(s,j)+3}], {c}")
    A("s_mov_b32 exec_lo, -1")
    A("s_mov_b32 exec_hi, 0")
    A("s_nop 5")
    for r in range(4):
        for j in range(4):
            A(f"v_and_or_b32 v{20+4*r+j}, v{ACC+4*j+r}, s48, v9")
        A(f"buffer_store_dwordx4 v[{20+4*r}:{23+4*r}], v11, s[32:35], s52 offen {x2st}")
        if r < 3: A("s_add_u32 s52, s52, %d" % (32*7168))
    stamp(6)
    if not nob5: A("s_waitcnt vmcnt(0)")
    A("s_barrier                            ; B5")
    stamp(7)
    if stamps: A("s_branch L_fin")
    else: A("s_endpgm")
    main_end = len(L)
    LB("L_cb")
    cpath(2, "b", KT if KT < 16 else KT3, WA3 if WA3 is not None else WA, KB3, *(WM3 or (WM1, WM2)))
    A("s_branch L_h")

    def rsetup():
        A("s_mov_b64 s[32:33], s[18:19]")
        A("s_mov_b32 s34, %d" % WS_REC)
        A("s_mov_b32 s35, 0x20000")
        A("s_mov_b64 s[36:37], s[14:15]")
        A("s_mov_b32 s38, 524288")
        A("s_mov_b32 s39, 0x20000")
        A("v_and_b32 v4, 7, v0")
        if stamps:
            for i in range(2, 8): A(f"s_mov_b32 s{60+2*i}, 0")
            A("s_mov_b32 s59, 0")
            A("s_mov_b32 s49, 0")
    def idload():
        A("s_lshl_b32 s53, s50, 11")
        A(f"buffer_load_dwordx4 v[{IDR}:{IDR+3}], v14, s[28:31], s53 offen{xpol}")
        A(f"buffer_load_dwordx4 v[{IDR+4}:{IDR+7}], v14, s[28:31], s53 offen offset:1024{xpol}")
    def pretouch():
        A("s_lshl_b32 s45, s20, 14")
        A("s_lshl_b32 s46, s21, 11")
        A("s_add_u32 s46, s46, s45")
        A("s_add_u32 s48, s46, %d               ; own L2-local block" % O_EX1F)
        A("buffer_load_dwordx4 v[24:27], v14, s[32:35], s48 offen")
        A("buffer_load_dwordx4 v[28:31], v14, s[32:35], s48 offen offset:1024")
        if tt: A("v_mov_b32 v32, 0")
        if "o" in tt: A("buffer_load_dword v33, v32, s[36:39], s53 offen")
        if "e" in tt:
            A("s_mov_b32 s45, 0x2f0000")
            A("buffer_load_dword v35, v32, s[32:35], s45 offen")
        if "d" in tt:
            A("s_lshl_b32 s45, s20, 17")
            A("v_mov_b32 v36, s45")
            A("global_load_dword v37, v36, s[12:13]")
    def touches():
        A("s_lshl_b32 s45, s2, 11")
        A("s_lshl_b32 s46, s20, 17")
        A("s_mov_b32 s47, 0x2f0000")
        A("s_load_dword s41, s[4:5], s45")
        A("s_load_dword s42, s[12:13], s46")
        A("s_load_dword s43, s[14:15], s45")
        A("s_load_dword s44, s[18:19], s47")
        A("s_waitcnt lgkmcnt(0)")
    def fwait(nm, off):
        A("s_mov_b32 s49, 0")
        LB("L_fwait" + nm)
        if fsleep: A(f"s_sleep {fsleep}")
        A(f"ds_read_b32 v9, v8 offset:{off}")
        A("s_add_u32 s49, s49, 1")
        A("s_cmp_ge_u32 s49, %d" % SPIN)
        A("s_waitcnt lgkmcnt(0)")
        A("v_cmp_eq_u32 vcc, 0, v9")
        A("s_cbranch_scc1 L_fok" + nm)
        A("s_cbranch_vccnz L_fwait" + nm)
        LB("L_fok" + nm)
    def psetup():
        A("v_mul_u32_u24 v12, %d, v0            ; poll offset" % LS)
        A("s_mul_i32 s47, s22, %d" % REPS)
        A("s_add_u32 s47, s47, %d               ; this die's replica" % O_IDX)
        A("v_lshrrev_b32 v11, 3, v0")
        A("s_lshr_b32 s45, s21, 1")
        A("s_sub_u32 s46, 10, s57")
        A("s_lshl_b32 s45, s45, s46")
    LB("L_w5")
    if st:
        A("v_mov_b32 v8, 0")
        fwait("0", L_FLAG + 8)
        touches()
    A("s_endpgm")
    LB("L_r")
    A("v_mov_b32 v8, 0")
    A("s_mov_b32 s50, s2                    ; slice")
    A("s_waitcnt lgkmcnt(0)")
    A("s_load_dword s40, s[18:19], 0        ; epoch")
    A("s_mov_b64 s[28:29], s[4:5]")
    rsetup()
    stamp(1)
    psetup()
    if SA is None:
        fwait("a", L_FLAG)
        if FS: A(f"s_sleep {FS}")
    else:
        if E1:
            A("s_waitcnt vmcnt(0) lgkmcnt(0)")
            stamp(1)
        if SA: A(f"s_sleep {SA}")
        A("s_waitcnt lgkmcnt(0)")
    A("s_add_u32 s40, s40, 1")
    stamp(2)
    if NP:
        for k in range(NP):
            if k: A(f"s_sleep {DL}")
            A(f"buffer_load_dwordx2 v[{16+2*k}:{17+2*k}], v12, s[32:35], s47 offen sc1")
        A("s_mov_b32 s49, 0")
        LB("L_ipolln")
        for k in range(NP):
            A("s_add_u32 s49, s49, 1")
            A(f"s_waitcnt vmcnt({NP-1})")
            A(f"v_cmp_ne_u32 vcc, s40, v{17+2*k}")
            A(f"v_mov_b32 v8, v{16+2*k}")
            A("s_cbranch_vccz L_iok")
            A(f"buffer_load_dwordx2 v[{16+2*k}:{17+2*k}], v12, s[32:35], s47 offen sc1")
        A("s_cmp_lt_u32 s49, %d" % SPIN)
        A("s_cbranch_scc1 L_ipolln")
        A("s_branch L_iok")
    elif KB is not None or SB is not None:
        A(f"buffer_load_dwordx2 v[16:17], v12, s[32:35], s47 offen sc1")
        if SB is None: fwait("b", L_FLAG + 4)
        else: A(f"s_sleep {SB}")
        A("s_mov_b32 s49, 0")
        LB("L_ipoll2")
        A(f"buffer_load_dwordx2 v[18:19], v12, s[32:35], s47 offen sc1")
        A("s_add_u32 s49, s49, 1")
        A(f"s_waitcnt vmcnt(1)")
        A(f"v_cmp_ne_u32 vcc, s40, v17")
        A("v_mov_b32 v8, v16")
        A("s_cbranch_vccz L_iok")
        A(f"buffer_load_dwordx2 v[16:17], v12, s[32:35], s47 offen sc1")
        A("s_add_u32 s49, s49, 1")
        A("s_cmp_ge_u32 s49, %d" % SPIN)
        A(f"s_waitcnt vmcnt(1)")
        A(f"v_cmp_ne_u32 vcc, s40, v19")
        A("v_mov_b32 v8, v18")
        A("s_cbranch_scc1 L_iok")
        A("s_cbranch_vccnz L_ipoll2")
        A("s_branch L_iok")
    else:
        A("s_branch L_ip0")
    route_beg = len(L)
    LB("L_route")
    stamp(1)
    rsetup()
    A("s_and_b32 s45, s52, 7")
    A("s_lshl_b32 s46, s45, 3")
    A("s_lshr_b32 s52, s52, 3               ; batch")
    A("s_add_u32 s46, s46, s52")
    A("s_mul_i32 s46, s46, %d" % LS)
    A("s_add_u32 s46, s46, %d               ; slot" % O_IDX)
    A("s_lshl_b32 s45, s45, 2")
    A("v_mul_u32_u24 v5, %d, v0             ; replica offset" % REPS)
    A("v_lshrrev_b32 v10, 5, v0")
    A("v_bfe_u32 v11, v0, 4, 1")
    A("v_lshl_add_u32 v10, v11, 1, v10")
    A("v_add_u32 v10, s45, v10")
    A("v_xor_b32 v10, 31, v10")
    for t in range(4):
        for hlf in range(2):
            A(f"s_waitcnt vmcnt({7 - 2*t - hlf})")
            if rp and t == 0 and hlf == 0: stamp(5)
            if rp and t == 3 and hlf == 1: stamp(6)
            for k in range(4):
                c = "0" if (hlf == 0 and k == 0) else f"v{6+t}"
                A(f"v_dot2_f32_bf16 v{6+t}, v{XR+8*t+4*hlf+k}, v{16+4*hlf+k}, {c}")
    A("s_waitcnt lgkmcnt(0)")
    if rp: stamp(4)
    A("s_add_u32 s40, s40, 1")
    A("s_nop 0")
    A("v_permlane32_swap_b32 v6, v7")
    A("v_permlane32_swap_b32 v8, v9")
    A("v_add_f32 v6, v6, v7")
    A("v_add_f32 v8, v8, v9")
    A("s_nop 1")
    A("v_permlane16_swap_b32 v6, v8")
    A("v_add_f32 v6, v6, v8")
    A("s_nop 1")
    A("v_add_f32_dpp v6, v6, v6 quad_perm:[1,0,3,2] row_mask:0xf bank_mask:0xf")
    A("s_nop 1")
    A("v_add_f32_dpp v6, v6, v6 quad_perm:[2,3,0,1] row_mask:0xf bank_mask:0xf")
    A("s_nop 1")
    A("v_add_f32_dpp v6, v6, v6 row_half_mirror row_mask:0xf bank_mask:0xf")
    A("s_nop 1")
    A("v_add_f32_dpp v6, v6, v6 row_mirror row_mask:0xf bank_mask:0xf")
    A("v_cvt_pk_bf16_f32 v7, v6, v6")
    A("v_and_b32 v7, 0xffff0000, v7          ; r (bf16)")
    A("v_ashrrev_i32 v6, 31, v7")
    A("v_or_b32 v6, 0x80000000, v6")
    A("v_xor_b32 v6, v6, v7")
    A("v_cmp_o_f32 vcc, v7, v7")
    A("v_and_b32 v6, 0xffff0000, v6")
    A("s_nop 0")
    A("v_cndmask_b32 v6, 0, v6, vcc")
    A("v_or_b32 v6, v10, v6")
    A("v_mov_b32 v7, v6")
    A("s_nop 1")
    A("v_permlane16_swap_b32 v6, v7")
    A("v_max_u32 v6, v6, v7")
    A("v_mov_b32 v7, v6")
    A("s_nop 1")
    A("v_permlane32_swap_b32 v6, v7")
    A("v_max_u32 v6, v6, v7")
    A("v_mov_b32 v7, s40")
    A("s_mov_b64 exec, 0xff")
    A("buffer_store_dwordx2 v[6:7], v5, s[32:35], s46 offen sc1")
    A("s_mov_b64 exec, -1")
    if rp: stamp(3)
    A("s_barrier                            ; B0b")
    stamp(2)
    A("s_setprio 0")
    A("s_branch L_rpub")
    route_end = len(L)
    LB("L_rpub")
    A("s_cmp_eq_u32 s3, 4")
    A("s_cbranch_scc1 L_r4")
    if st: touches()
    A("s_endpgm")
    LB("L_r4")
    A("s_mov_b32 s50, s2                    ; slice")
    psetup()
    if rack: A(f"s_waitcnt vmcnt(0)")
    LB("L_ip0")
    A("s_mov_b32 s49, 0")
    LB("L_ipoll")
    A(f"buffer_load_dwordx2 v[8:9], v12, s[32:35], s47 offen sc1")
    A("s_add_u32 s49, s49, 1")
    A("s_cmp_ge_u32 s49, %d" % SPIN)
    A(f"s_waitcnt vmcnt(0)")
    A(f"v_cmp_ne_u32 vcc, s40, v9")
    A("s_cbranch_scc1 L_iok")
    A("s_cbranch_vccnz L_ipoll")
    LB("L_iok")
    if not rp: stamp(3)
    if stamps: A("s_mov_b32 s59, s49")
    A("s_mov_b32 m0, %d" % L_XS)
    A("s_nop 0")
    A("v_max_u32_dpp v8, v8, v8 row_ror:8 row_mask:0xf bank_mask:0xf")
    A("v_mov_b32 v9, v8")
    A("s_cmp_eq_u32 s57, 1")
    A("s_nop 0")
    A("v_permlane16_swap_b32 v8, v9")
    A("v_max_u32 v8, v8, v9")
    A("v_mov_b32 v9, v8")
    A("s_nop 1")
    A("v_permlane32_swap_b32 v8, v9")
    A("v_max_u32 v8, v8, v9")
    A("v_and_b32 v10, 31, v8")
    A("v_xor_b32 v10, 31, v10")
    A("v_lshl_add_u32 v10, v4, 5, v10       ; row")
    A("v_lshlrev_b32 v10, 11, v10")
    A("v_lshl_add_u32 v10, v11, 4, v10      ; + chunk*16")
    A("v_lshlrev_b32 v9, 2, v4")
    for i in range(8):
        if i == 4: A("s_cbranch_scc1 L_dmadone")
        A(f"buffer_load_dwordx4 v10, s[28:31], s45 offen{xpol} lds")
        if i < 7:
            A("s_mov_b32 m0, %d" % (L_XS + 1024*(i+1)))
            A("v_add_u32 v10, 128, v10")
    LB("L_dmadone")
    if BX is not None and not idx_first: A("s_barrier                            ; BX")
    A(f"ds_write_b32 v9, v8 offset:{L_KEY}")
    idload()
    pretouch()
    if BX is not None and idx_first: A("s_barrier                            ; BX")
    LB("L_b2")
    A("s_lshr_b32 s51, s50, 5")
    A("s_lshl_b32 s45, s51, 2")
    A("v_mov_b32 v5, s45")
    A(f"s_waitcnt vmcnt({4 + len(tt)}) lgkmcnt(0)")
    A("s_barrier                            ; B2")
    if not rp: stamp(4)
    A(f"ds_read_b32 v6, v5 offset:{L_KEY}")
    A(f"s_waitcnt vmcnt({2 + len(tt)})")
    for r in range(IDR, IDR+8):
        A(f"v_lshlrev_b32 v16, 16, v{r}")
        A(f"v_and_b32 v17, 0xffff0000, v{r}")
        A("v_pk_fma_f32 v[16:17], v[16:17], 0, v[16:17] op_sel_hi:[1,0,1]")
        A(f"v_cvt_pk_bf16_f32 v{r}, v16, v17    ; x + x*0")
    A("s_and_b32 s41, s40, 0xff")
    A("v_lshrrev_b32 v7, 5, v0")
    A("v_bfe_u32 v8, v0, 4, 1")
    A("v_lshl_add_u32 v7, v8, 1, v7         ; e")
    A("v_lshl_add_u32 v7, v4, 2, v7         ; 4*pos + e")
    A("s_and_b32 s46, s50, 31")
    A("s_lshl_b32 s45, s46, 5")
    A("v_add_u32 v7, s45, v7                ; column")
    A("s_waitcnt lgkmcnt(0)")
    A("s_barrier                            ; B3")
    A("v_and_b32 v8, 31, v6")
    A("v_xor_b32 v8, 31, v8")
    A("v_cmp_ne_u32 vcc, s46, v8")
    A("s_lshl_b32 s45, s51, 5")
    A("v_add_u32 v8, s45, v8                ; row")
    A("v_lshlrev_b32 v8, 10, v8")
    A("v_add_u32 v7, v8, v7")
    A("v_lshlrev_b32 v7, 1, v7")
    A("buffer_load_ushort v9, v7, s[28:31], 0 offen")
    A("s_cbranch_vccz L_sel")
    A(f"buffer_store_dwordx4 v[{IDR}:{IDR+3}], v14, s[36:39], s53 offen{outpol}")
    A(f"buffer_store_dwordx4 v[{IDR+4}:{IDR+7}], v14, s[36:39], s53 offen offset:1024{outpol}")
    LB("L_sel")
    A("v_lshrrev_b32 v10, 16, v6")
    A("v_xor_b32 v11, 0xffff, v10")
    A("v_and_b32 v12, 0x7fff, v10")
    A("v_cmp_gt_i32 vcc, 0, v6")
    A("s_mov_b32 s45, 0xbfb8aa3b")
    A("s_nop 0")
    A("v_cndmask_b32 v10, v11, v12, vcc")
    A("v_lshlrev_b32 v10, 16, v10           ; r")
    A("v_mul_f32 v10, s45, v10")
    A("v_exp_f32 v10, v10")
    A("s_nop 0")
    A("v_add_f32 v10, 1.0, v10")
    A("v_rcp_f32 v10, v10")
    A("s_nop 0")
    A("v_cvt_pk_bf16_f32 v10, v10, v10")
    A("v_and_b32 v10, 0xffff0000, v10       ; sigmoid")
    A("s_mul_i32 s46, s50, 7168")
    A("s_add_u32 s46, s46, %d" % O_EX2)
    A("s_add_u32 s47, s46, 4096")
    A("s_mov_b32 s49, 0")
    A("s_mov_b32 s44, 0x00ff00ff")
    A("s_mov_b32 s45, 0x00ff00ff")
    A("s_waitcnt vmcnt(0)")
    A("v_lshlrev_b32 v9, 16, v9             ; x")
    A("v_mov_b32 v13, 0")
    A("s_barrier                            ; B4")
    A("s_barrier                            ; B5")
    if not rp: stamp(5)
    if x2d: A(f"s_sleep {x2d}")
    if mx:
        MS = 76 if stamps else 60
        def ld(i):
            so = "s46" if i < 4 else "s47"
            A(f"buffer_load_dwordx4 v[{32+4*i}:{35+4*i}], v14, s[32:35], {so} offen offset:{(i%4)*1024} {x2ld}")
        def chk(i):
            b = 32 + 4*i
            for r in range(b, b+4): A(f"v_xor_b32 v{r}, s41, v{r}")
            A(f"v_or3_b32 v15, v{b}, v{b+1}, v{b+2}")
            A(f"v_or_b32 v15, v15, v{b+3}")
            A(f"v_cmp_ne_u32_sdwa s[{MS+2*i}:{MS+2*i+1}], v15, v13 src0_sel:BYTE_0 src1_sel:DWORD")
        def anyleft():
            A(f"s_or_b64 s[42:43], s[{MS}:{MS+1}], s[{MS+2}:{MS+3}]")
            for i in range(2, 7): A(f"s_or_b64 s[42:43], s[42:43], s[{MS+2*i}:{MS+2*i+1}]")
        for i in range(7): ld(i)
        A("s_mov_b32 s49, 1")
        for i in range(7):
            A(f"s_waitcnt vmcnt({6-i})")
            chk(i)
            if i == 1: A("v_pk_add_f32 v[16:17], v[32:33], v[36:37]"); A("v_pk_add_f32 v[18:19], v[34:35], v[38:39]")
            if i >= 2: A(f"v_pk_add_f32 v[16:17], v[16:17], v[{32+4*i}:{33+4*i}]"); A(f"v_pk_add_f32 v[18:19], v[18:19], v[{34+4*i}:{35+4*i}]")
        anyleft()
        A("s_cbranch_scc0 L_x2ok")
        LB("L_x2poll")
        if x2s: A(f"s_sleep {x2s}")
        for i in range(7):
            A(f"s_mov_b64 exec, s[{MS+2*i}:{MS+2*i+1}]")
            A(f"s_cbranch_execz L_x2l{i}")
            ld(i)
            LB(f"L_x2l{i}")
        A("s_add_u32 s49, s49, 1")
        A("s_waitcnt vmcnt(0)")
        for i in range(7):
            A(f"s_mov_b64 exec, s[{MS+2*i}:{MS+2*i+1}]")
            A(f"s_cbranch_execz L_x2c{i}")
            chk(i)
            LB(f"L_x2c{i}")
        A("s_mov_b64 exec, -1")
        anyleft()
        A("s_cbranch_scc0 L_x2sum")
        A("s_cmp_lt_u32 s49, %d" % SPIN)
        A("s_cbranch_scc1 L_x2poll")
        LB("L_x2sum")
        A("v_pk_add_f32 v[16:17], v[32:33], v[36:37]"); A("v_pk_add_f32 v[18:19], v[34:35], v[38:39]")
        for i in range(2, 7):
            A(f"v_pk_add_f32 v[16:17], v[16:17], v[{32+4*i}:{33+4*i}]"); A(f"v_pk_add_f32 v[18:19], v[18:19], v[{34+4*i}:{35+4*i}]")
        A("s_nop 0")
    else:
        LB("L_x2poll")
        for i in range(7):
            so = "s46" if i < 4 else "s47"
            A(f"buffer_load_dwordx4 v[{32+4*i}:{35+4*i}], v14, s[32:35], {so} offen offset:{(i%4)*1024} {x2ld}")
        A("s_add_u32 s49, s49, 1")
        for i in range(7):
            A(f"s_waitcnt vmcnt({6-i})")
            b = 32 + 4*i
            for r in range(b, b+4): A(f"v_xor_b32 v{r}, s41, v{r}")
            if i == 0:
                A(f"v_or3_b32 v15, v{b}, v{b+1}, v{b+2}")
                A(f"v_or_b32 v15, v15, v{b+3}")
            else:
                A(f"v_or3_b32 v15, v15, v{b}, v{b+1}")
                A(f"v_or3_b32 v15, v15, v{b+2}, v{b+3}")
                src = 32 if i == 1 else 16
                A(f"v_pk_add_f32 v[16:17], v[{src}:{src+1}], v[{b}:{b+1}]")
                A(f"v_pk_add_f32 v[18:19], v[{src+2}:{src+3}], v[{b+2}:{b+3}]")
        A("v_and_b32 v15, 0xff, v15")
        A("v_cmp_ne_u32 vcc, 0, v15")
        A("s_cbranch_vccz L_x2ok")
        A("s_cmp_lt_u32 s49, %d" % SPIN)
        A("s_cbranch_scc1 L_x2poll")
    LB("L_x2ok")
    if not rp: stamp(6)
    A("v_permlane32_swap_b32 v16, v17")
    A("v_permlane32_swap_b32 v18, v19")
    A("v_add_f32 v16, v16, v17")
    A("v_add_f32 v18, v18, v19")
    A("s_nop 1")
    A("v_permlane16_swap_b32 v16, v18")
    A("v_add_f32 v16, v16, v18")
    A("s_nop 1")
    A("v_add_f32_dpp v16, v16, v16 row_ror:8 row_mask:0xf bank_mask:0xf")
    A("s_mov_b64 exec, s[44:45]")
    A("v_cvt_pk_bf16_f32 v16, v16, v16")
    A("v_and_b32 v16, 0xffff0000, v16       ; y")
    A("v_mul_f32 v16, v16, v10")
    A("v_cvt_pk_bf16_f32 v16, v16, v16")
    A("v_and_b32 v16, 0xffff0000, v16       ; y*sigmoid")
    A("v_fma_f32 v16, v9, 0, v16            ; upd = x*0 + y")
    A("v_add_f32 v16, v9, v16")
    A("v_cvt_pk_bf16_f32 v16, v16, v16")
    A(f"buffer_store_short v16, v7, s[36:39], 0 offen{outpol}")
    A("s_cmp_lg_u32 s50, 0")
    A("s_cbranch_scc1 L_noep")
    A("v_mov_b32 v18, s40")
    A("v_mov_b32 v17, 0")
    A("s_mov_b64 exec, 1")
    A("buffer_store_dword v18, v17, s[32:35], 0 offen sc1")
    LB("L_noep")
    stamp(7)
    LB("L_fin")
    import diag
    if dg: diag.epilogue(A, LB, dg)
    elif gamp: diag.gamp(A, LB, gamp)
    elif gpair: diag.gpair(A, LB, gpair)
    elif stamps: diag.dump(A, LB)
    LB("L_end")
    A("s_endpgm")
    if align:
        L = L[:main_end] + L[route_beg:route_end] + [".p2align 12"] + L[main_end:route_beg] + L[route_end:]
    L.extend(slow)
    body = "\n".join(L)
    pad = ".p2align 12\n.fill 832, 4, 0xbf800000            ; the kernel starts a 4 KB page (instruction prefetch stops at page ends)\n" if align else ""
    return f"""{HEAD}; @launch grid=(256,1,1) block=(384,1,1) lds={LDSB or LDS_BYTES}
.amdgcn_target "amdgcn-amd-amdhsa--gfx950"
.text
.globl {KN}
{pad}.p2align 8
.type {KN},@function
{KN}:
{body}
.section .rodata,"a"
.p2align 6
.amdhsa_kernel {KN}
  .amdhsa_next_free_vgpr 160
  .amdhsa_next_free_sgpr 96
  .amdhsa_accum_offset 160
  .amdhsa_group_segment_fixed_size 0
  .amdhsa_kernarg_size 64
  .amdhsa_user_sgpr_count 2
  .amdhsa_user_sgpr_kernarg_segment_ptr 1
  .amdhsa_system_sgpr_workgroup_id_x 1
  .amdhsa_float_denorm_mode_32 3
.end_amdhsa_kernel
"""
if __name__ == "__main__":
    import sys, json
    kw = json.loads(sys.argv[2]) if len(sys.argv) > 2 else {}
    open(sys.argv[1] if len(sys.argv) > 1 else "standalone__moe_arch_mod__sampling.s", "w").write(gen(**kw))
```

```python
KN = "standalone__moe_arch_mod__sampling_kernel"
HEAD = open("standalone__moe_arch_mod__sampling.s.ref").read().split("; Override launch")[0]

O_IDX = 0x1000
O_EX1F = 0x20000
O_EX2 = 0x100000
O_EX1 = 0x300000
WS_REC = 0x500000
L_XS = 0
L_RED = 8192
L_HB = 16384
L_KEY = 17408
L_FLAG = 17408 + 32
LDS_BYTES = 17408 + 64
SPIN = 40000

DOC = """; MoD sampling block: route (argmax of x.w_r per batch), SwiGLU FFN on the 8 selected rows, residual update.
"""

def gen(pol="nt", xpol="", D=10, DI=6, D3=8, D3W=12, BX=4, BX3=8, DX=32, LS=16, NF=12, PK=3, FS=38, fsleep=1,
        outpol="sc1", finpol="", x1pol="", x2d=27, PERM=(7,0,1,2,4,5,6,3), align=True, prog=True, early_id=True,
        stamps=False, dg=None, gamp=None, cst1=True, lag0=0, MAP="B", DUP0=True, X2S=8192, nob5=False, mx=False, x2s=0, b4=True):
    if gamp or dg: stamps = True
    L = []
    def A(s): L.append("  " + s)
    def LB(s): L.append(s + ":")
    def stamp(i):
        if stamps: A(f"s_memrealtime s[{60+2*i}:{61+2*i}]")
    sp = lambda p: (" " + p) if p else ""
    pol, xpol, outpol, finpol, x1pol = map(sp, (pol, xpol, outpol, finpol, x1pol))
    REPS = 64 * LS
    XR = 80
    RAW = 16; FR = 80; XB = 96; ACC = 112; W2 = 128
    F2 = 40; HA = 72
    IDR = 40
    def raw(s, i): return RAW + 16*s + 2*i
    def frag(s, j): return (FR if s == 0 else RAW + 16*(s-1)) + 4*j
    def raw2(s, i): return W2 + 16*s + 2*i
    def frag2(s, j): return F2 + 16*s + 4*j
    def perm_pair(rawf, fragf, s, p):
        for e in range(2):
            A(f"v_perm_b32 v{fragf(s,2*e)+p}, v{rawf(s,2*p+1)+e}, v{rawf(s,2*p)+e}, s42")
            A(f"v_perm_b32 v{fragf(s,2*e+1)+p}, v{rawf(s,2*p+1)+e}, v{rawf(s,2*p)+e}, s43")
    def perms(rawf, fragf, s):
        for p in range(4): perm_pair(rawf, fragf, s, p)
    def w1load(n):
        s, i = divmod(n, 8)
        A(f"buffer_load_dwordx2 v[{raw(s,i)}:{raw(s,i)+1}], v3, s[24:27], s44 offen{pol}")
        A("s_addk_i32 s44, 7168" if i < 7 else "s_add_u32 s44, s44, %d" % (25*7168))
    def w2load(n):
        s, i = divmod(n, 8)
        p, b = divmod(i, 2)
        row = 2*s + (p >> 1) + 8*(p & 1) + 4*b
        A("s_add_u32 s47, s53, %d" % (row*2048))
        A(f"buffer_load_dwordx2 v[{raw2(s,i)}:{raw2(s,i)+1}], v10, s[28:31], s47 offen{pol}")

    if lag0:
        A("s_and_b32 s3, s2, 7")
        A("s_cmp_lg_u32 s3, 0")
        A("s_cbranch_scc1 L_nolag")
        A(f"s_sleep {lag0}")
        LB("L_nolag")
    stamp(0)
    A("s_cmp_ge_u32 s2, 256")
    A("s_cbranch_scc1 L_exit")
    A("s_load_dwordx16 s[4:19], s[0:1], 0")
    A("v_lshrrev_b32 v1, 6, v0")
    A("v_and_b32 v0, 63, v0                 ; lane")
    A("v_readfirstlane_b32 s3, v1           ; wave")
    A("s_lshl_b32 s22, s2, 2")
    A("s_lshr_b32 s22, 0x%x, s22" % sum(v << (4*i) for i, v in enumerate(PERM)))
    A("s_and_b32 s22, s22, 7")
    A("s_lshr_b32 s23, s2, 3")
    A("s_lshr_b32 s44, s23, 2")
    A("s_mul_i32 s45, s22, 6")
    A("s_add_u32 s45, s45, s44")
    A("s_add_u32 s44, s45, 4")
    A("s_mul_i32 s44, s44, 37")
    A("s_lshr_b32 s44, s44, 8")
    A("s_add_u32 s20, s45, s44")
    A("s_lshl_b32 s44, s22, 3")
    A("s_add_u32 s44, s44, 3")
    A("s_min_u32 s44, s44, 55")
    A("s_cmp_ge_u32 s23, 24")
    A("s_cselect_b32 s20, s44, s20")
    A("s_cselect_b32 s57, 1, 0")
    A("s_cselect_b32 s21, 7, 3")
    A("s_and_b32 s21, s21, s23              ; part")
    if stamps: A("s_mov_b32 s58, s57")
    A("s_mov_b32 s27, 0x20000")
    A("s_cmp_lt_u32 s3, 4")
    A("s_cbranch_scc1 L_c")
    A("s_mov_b32 s30, 524288")
    A("s_mov_b32 s31, 0x20000")
    A("v_lshlrev_b32 v14, 4, v0             ; lane*16")
    A("s_cmp_eq_u32 s57, 1")
    A("s_cbranch_scc1 L_rt")
    A("s_cmp_eq_u32 s3, 4")
    A("s_cbranch_scc1 L_r")
    LB("L_exit")
    A("s_endpgm")
    LB("L_rt")
    A("s_setprio 3")
    A("s_and_b32 s52, s22, 3")
    A("s_lshl_b32 s52, s52, 3")
    A("s_add_u32 s52, s52, s21")
    A("s_lshl_b32 s52, s52, 1")
    A("s_add_u32 s52, s52, s3")
    A("s_sub_u32 s52, s52, 4")
    A("s_lshl_b32 s44, s52, 13")
    A("s_add_u32 s45, s44, 4096")
    A("s_movk_i32 s26, 2048")
    A("s_waitcnt lgkmcnt(0)")
    A("s_mov_b64 s[28:29], s[4:5]")
    A("s_mov_b64 s[24:25], s[6:7]")
    A("s_load_dword s40, s[18:19], 0        ; epoch")
    A(f"buffer_load_dwordx4 v[16:19], v14, s[24:27], 0 offen")
    A(f"buffer_load_dwordx4 v[20:23], v14, s[24:27], 0 offen offset:1024")
    for i in range(8):
        A(f"buffer_load_dwordx4 v[{XR+4*i}:{XR+4*i+3}], v14, s[28:31], {'s44' if i < 4 else 's45'} offen offset:{(i%4)*1024}{xpol}")
    A("s_barrier                            ; B0")
    A("s_branch L_route")
    LB("L_c")
    A("v_mov_b32 v4, 0")
    A(f"ds_write_b32 v4, v4 offset:{L_FLAG}")
    A("s_mov_b32 s26, 7340032")
    A("v_lshrrev_b32 v1, 4, v0              ; g")
    A("v_and_b32 v2, 15, v0                 ; n")
    A("v_mul_u32_u24 v3, %d, v1" % (8*7168))
    A("v_lshl_add_u32 v3, v2, 3, v3         ; voffset")
    A("s_lshr_b32 s44, s21, 1")
    A("s_lshl_b32 s44, s44, 2")
    A("s_add_u32 s44, s44, s3")
    A("s_lshr_b32 s45, %d, s57" % (128*7168))
    A("s_mul_i32 s44, s44, s45")
    A("s_lshl_b32 s45, s20, 7")
    A("s_add_u32 s44, s44, s45              ; soffset")
    A("s_bitcmp1_b32 s21, 0")
    A("s_waitcnt lgkmcnt(0)")
    A("s_cselect_b64 s[24:25], s[10:11], s[8:9]")
    A("s_cmp_eq_u32 s57, 0")
    A("s_cbranch_scc1 L_nb0")
    A("s_barrier")
    LB("L_nb0")
    if not cst1: stamp(1)
    for n in range(DI): w1load(n)
    A("s_load_dword s40, s[18:19], 0        ; epoch")
    if stamps:
        for i in range(2, 8): A(f"s_mov_b32 s{60+2*i}, 0")
        A("s_getreg_b32 s59, hwreg(HW_REG_HW_ID)")
    A("s_mov_b64 s[32:33], s[18:19]")
    A("s_mov_b32 s34, %d" % WS_REC)
    A("s_mov_b32 s35, 0x20000")
    A("s_mov_b32 s42, 0x05040100")
    A("s_mov_b32 s43, 0x07060302")
    A("v_and_b32 v8, 7, v0")
    A("v_lshl_add_u32 v13, v1, 3, v8")
    A("v_lshlrev_b32 v13, 4, v13")
    A("s_lshl_b32 s45, s3, 11")
    A("v_add_u32 v4, s45, v13")
    A("s_lshr_b32 s45, s45, s57")
    A("v_add_u32 v5, s45, v13")
    A("v_lshlrev_b32 v6, 3, v0")
    A("s_lshl_b32 s45, s3, 9")
    A("v_add_u32 v6, s45, v6                ; w*512 + lane*8")
    A("v_lshrrev_b32 v7, 1, v0")
    A("v_lshlrev_b32 v7, 4, v7")
    A("v_and_b32 v9, 1, v0")
    A("v_lshl_add_u32 v7, v9, 2, v7")
    A("s_lshr_b32 s45, s3, 1")
    A("s_lshl_b32 s45, s45, 9")
    A("s_and_b32 s46, s3, 1")
    A("s_lshl_b32 s46, s46, 3")
    A("s_add_u32 s45, s45, s46")
    A("v_add_u32 v7, s45, v7")
    A("s_mov_b64 s[28:29], s[12:13]")
    A("s_mov_b32 s30, 7340032")
    A("s_mov_b32 s31, 0x20000")
    A("v_lshlrev_b32 v10, 15, v1            ; g*16*2048")
    A("v_lshl_add_u32 v10, v2, 3, v10")
    A("v_lshrrev_b32 v11, 3, v2")
    A("v_lshl_add_u32 v11, v1, 7, v11       ; 4g*32 + (n>>3)")
    A("v_mul_u32_u24 v11, %d, v11" % X2S)
    A("v_lshl_add_u32 v11, v8, 4, v11       ; + (n&7)*16")
    A("s_lshl_b32 s53, s21, 2")
    A("s_lshr_b32 s53, s53, s57")
    A("s_add_u32 s53, s53, s3")
    A("s_lshr_b32 s45, s3, 1")
    A("s_and_b32 s45, s45, s57")
    A("s_lshl_b32 s45, s45, 30")
    A("v_or_b32 v10, s45, v10")
    A("v_or_b32 v11, s45, v11")
    A("s_mul_i32 s52, s53, %d" % (2*X2S))
    A("s_lshl_b32 s46, s20, 7")
    A("s_add_u32 s52, s52, s46")
    A("s_add_u32 s52, s52, %d" % O_EX2)
    A("s_lshl_b32 s53, s53, 7")
    A("s_lshl_b32 s46, s20, 17              ; tile*64*2048")
    A("s_add_u32 s53, s53, s46")
    A("s_lshl_b32 s45, s20, 14")
    A("s_lshl_b32 s46, s21, 11")
    A("s_add_u32 s45, s45, %d               ; group base" % O_EX1F)
    A("s_add_u32 s46, s46, s45")
    A("s_mov_b32 s48, 0xffffff00")
    A("s_mov_b32 s50, 0xbfb8aa3b            ; -log2(e)")
    A("s_mov_b32 s51, 0xbfb8aa3b")
    A("s_mov_b32 s49, 0")
    A("s_getreg_b32 s54, hwreg(HW_REG_XCC_ID, 0, 3)")
    A("v_mov_b32 v12, 1")
    A("s_cmp_eq_u32 s57, 1")
    A("s_cbranch_scc1 L_cb")

    slow = []
    def cpath(NS, sfx, DD, DW, bx):
        NL = 8*NS
        done = 0
        landed = 0
        if NS == 2: A("s_barrier")
        for n in range(DI, NL + 16):
            dn = min(DD, DI + (n - DI + 1) // 2) if n < NL else DW
            if n >= NL + bx:
                if n == NL + bx: A("s_barrier")
                dn = DX
            if n - dn + 1 > landed:
                A(f"s_waitcnt vmcnt({dn-1})")
                landed = n - dn + 1
            if n == DI and cst1: stamp(1)
            if n < NL: w1load(n)
            else: w2load(n - NL)
            if n == DI and NS == 4:
                A(f"ds_write_b32 v12, v12 offset:{L_FLAG - 1}")
            if n == NL - 1: stamp(2)
            while done < NS and 8*done + 8 <= landed:
                perms(raw, frag, done); done += 1
        A("s_waitcnt lgkmcnt(0)")
        A("s_add_u32 s40, s40, 1                ; tag32")
        A("s_and_b32 s41, s40, 0xff")
        A("s_lshl_b32 s55, s40, 3")
        A("s_and_b32 s55, s55, 0xf8")
        A("s_or_b32 s54, s54, s55")
        A("v_mov_b32 v9, s41")
        A("v_mov_b32 v12, s54")
        while done < NS:
            A(f"s_waitcnt vmcnt({NL + 16 - 8*done - 8})")
            perms(raw, frag, done); done += 1
        A("s_barrier")
        stamp(3)
        for s in range(NS):
            A(f"ds_read_b128 v[{XB+4*s}:{XB+4*s+3}], v5 offset:{L_XS + 512*s}")
        for s in range(NS):
            A(f"s_waitcnt lgkmcnt({NS-1-s})")
            for j in range(4):
                c = "0" if s == 0 else f"v[{ACC+4*j}:{ACC+4*j+3}]"
                A(f"v_mfma_f32_16x16x32_bf16 v[{ACC+4*j}:{ACC+4*j+3}], v[{frag(s,j)}:{frag(s,j)+3}], v[{XB+4*s}:{XB+4*s+3}], {c}")
        A("s_mov_b32 exec_lo, 0x00ff00ff")
        A("s_mov_b32 exec_hi, 0x00ff00ff")
        A("s_nop 2")
        for j in range(4):
            A(f"ds_write_b128 v4, v[{ACC+4*j}:{ACC+4*j+3}] offset:{L_RED + 512*j}")
        A("s_mov_b64 exec, -1")
        A("s_waitcnt lgkmcnt(0)")
        A("s_barrier                            ; B3")
        for w in range(2):
            A(f"ds_read2st64_b64 v[{16+4*w}:{19+4*w}], v6 offset0:{(L_RED + 4096*w)//512} offset1:{(L_RED + 4096*w + 2048)//512}")
        A("s_waitcnt lgkmcnt(1)")
        A("v_pk_add_f32 v[16:17], v[16:17], v[18:19]")
        A("s_waitcnt lgkmcnt(0)")
        A("v_pk_add_f32 v[20:21], v[20:21], v[22:23]")
        A("v_pk_add_f32 v[16:17], v[16:17], v[20:21]")
        A("v_and_or_b32 v16, v16, s48, v12")
        A("v_and_or_b32 v17, v17, s48, v12")
        A(f"buffer_store_dwordx2 v[16:17], v6, s[32:35], s46 offen{x1pol}")
        stamp(4)
        NB = 4 if NS == 4 else 8
        pairs = [(s, p) for s in range(2) for p in range(4)]
        k = 0
        A("s_waitcnt vmcnt(9)")
        while k < 4: perm_pair(raw2, frag2, *pairs[k]); k += 1
        if prog:
            while 17 - 2*(k+1) >= PK:
                A(f"s_waitcnt vmcnt({17 - 2*(k+1)})")
                perm_pair(raw2, frag2, *pairs[k]); k += 1
        if not prog or 17 - 2*k > PK: A(f"s_waitcnt vmcnt({PK})")
        def polls():
            for b in range(NB):
                if b and b % 2 == 0: A(f"s_add_u32 s47, s45, {b*2048}")
                A(f"buffer_load_dwordx2 v[{24+2*b}:{25+2*b}], v6, s[32:35], {'s45' if b < 2 else 's47'} offen offset:{(b%2)*2048} sc1")
        if prog:
            polls()
            while k < 8:
                A(f"s_waitcnt vmcnt({NB + 17 - 2*(k+1)})")
                perm_pair(raw2, frag2, *pairs[k]); k += 1
            A(f"s_branch L_x1chk{sfx}")
        LB("L_x1poll" + sfx)
        polls()
        LB("L_x1chk" + sfx)
        A("s_add_u32 s49, s49, 1")
        A("s_waitcnt vmcnt(0)")
        for r in range(24, 24+2*NB): A(f"v_xor_b32 v{r}, s54, v{r}")
        A("v_or3_b32 v8, v24, v25, v26")
        for r in range(27, 24+2*NB-1, 2): A(f"v_or3_b32 v8, v8, v{r}, v{r+1}")
        A(f"v_or_b32 v8, v8, v{24+2*NB-1}")
        A("v_and_b32 v8, 0xff, v8")
        A("v_cmp_ne_u32 vcc, 0, v8")
        A("s_cbranch_vccnz L_x1no" + sfx)
        LB("L_x1ok" + sfx)
        stamp(5)
        if NB == 8:
            A("v_pk_add_f32 v[24:25], v[24:25], v[32:33]")
            A("v_pk_add_f32 v[26:27], v[26:27], v[34:35]")
            A("v_pk_add_f32 v[28:29], v[28:29], v[36:37]")
            A("v_pk_add_f32 v[30:31], v[30:31], v[38:39]")
        S = []
        def B(s): S.append("  " + s)
        S.append("L_x1no" + sfx + ":")
        B(f"s_cmp_lt_u32 s49, {NF}")
        B("s_cbranch_scc1 L_x1poll" + sfx)
        B("v_lshlrev_b32 v8, 1, v6")
        B("s_lshl_b32 s56, s20, 15")
        B("s_add_u32 s56, s56, %d" % O_EX1)
        B(f"s_cmp_lg_u32 s49, {NF}")
        B("s_cbranch_scc1 L_x1ns" + sfx)
        B("v_and_b32 v96, s48, v16")
        B("v_and_b32 v97, s48, v17")
        B("v_mov_b32 v98, s40")
        B("v_mov_b32 v99, s40")
        B("s_lshl_b32 s47, s21, 12")
        B("s_add_u32 s47, s47, s56")
        B("buffer_store_dwordx4 v[96:99], v8, s[32:35], s47 offen sc1")
        B("s_waitcnt vmcnt(0)")
        S.append("L_x1ns" + sfx + ":")
        for b in range(NB):
            B(f"buffer_load_dwordx4 v[{96+4*b}:{99+4*b}], v8, s[32:35], s56 offen sc1")
            B("s_add_u32 s56, s56, 4096")
        B("s_waitcnt vmcnt(0)")
        B("v_mov_b32 v8, 0")
        for b in range(NB):
            B(f"v_xor_b32 v{98+4*b}, s40, v{98+4*b}")
            B(f"v_xor_b32 v{99+4*b}, s40, v{99+4*b}")
            B(f"v_or3_b32 v8, v8, v{98+4*b}, v{99+4*b}")
            B(f"v_mov_b32 v{24+2*b}, v{96+4*b}")
            B(f"v_mov_b32 v{25+2*b}, v{97+4*b}")
        B("v_cmp_ne_u32 vcc, 0, v8")
        B("s_cbranch_vccz L_x1ok" + sfx)
        B("s_cmp_lt_u32 s49, %d" % SPIN)
        B("s_cbranch_scc1 L_x1poll" + sfx)
        B("s_branch L_x1ok" + sfx)
        slow.extend(S)
        return k
    ka = cpath(4, "a", D, D, BX)
    LB("L_h")
    A("v_pk_add_f32 v[24:25], v[24:25], v[28:29]   ; gate")
    A("v_pk_add_f32 v[26:27], v[26:27], v[30:31]   ; up")
    A("v_cvt_pk_bf16_f32 v8, v24, v25")
    A("v_cvt_pk_bf16_f32 v12, v26, v27")
    A("v_lshlrev_b32 v18, 16, v8")
    A("v_and_b32 v19, 0xffff0000, v8")
    A("v_pk_mul_f32 v[20:21], v[18:19], s[50:51]")
    A("v_exp_f32 v20, v20")
    A("v_exp_f32 v21, v21")
    A("v_lshlrev_b32 v14, 16, v12")
    A("v_pk_add_f32 v[20:21], v[20:21], 1.0 op_sel_hi:[1,0]")
    A("v_rcp_f32 v20, v20")
    A("v_rcp_f32 v21, v21")
    A("v_and_b32 v15, 0xffff0000, v12")
    A("v_pk_mul_f32 v[18:19], v[18:19], v[20:21]")
    A("v_cvt_pk_bf16_f32 v8, v18, v19        ; silu")
    A("v_lshlrev_b32 v18, 16, v8")
    A("v_and_b32 v19, 0xffff0000, v8")
    A("v_pk_mul_f32 v[18:19], v[18:19], v[14:15]")
    A("v_cvt_pk_bf16_f32 v8, v18, v19        ; h")
    A(f"ds_write_b32 v7, v8 offset:{L_HB}")
    for k in range(ka, 8): perm_pair(raw2, frag2, *divmod(k, 4))
    A("s_waitcnt lgkmcnt(0)")
    A("s_barrier                            ; B4")
    for s in range(2):
        A(f"ds_read_b128 v[{HA+4*s}:{HA+4*s+3}], v13 offset:{L_HB + 512*s}")
    for s in range(2):
        A(f"s_waitcnt lgkmcnt({1-s})")
        for j in range(4):
            c = "0" if s == 0 else f"v[{ACC+4*j}:{ACC+4*j+3}]"
            A(f"v_mfma_f32_16x16x32_bf16 v[{ACC+4*j}:{ACC+4*j+3}], v[{HA+4*s}:{HA+4*s+3}], v[{frag2(s,j)}:{frag2(s,j)+3}], {c}")
    A("s_mov_b32 exec_lo, -1")
    A("s_mov_b32 exec_hi, 0")
    A("s_nop 2")
    for r in range(4):
        for j in range(4):
            A(f"v_and_or_b32 v{20+4*r+j}, v{ACC+4*j+r}, s48, v9")
        A(f"buffer_store_dwordx4 v[{20+4*r}:{23+4*r}], v11, s[32:35], s52 offen sc1")
        if r < 3: A("s_add_u32 s52, s52, %d" % (32*X2S))
    stamp(6)
    if not (nob5 or b4): A("s_waitcnt vmcnt(0)")
    if not b4: A("s_barrier                            ; B5")
    stamp(7)
    if stamps: A("s_branch L_fin")
    else: A("s_endpgm")

    def rsetup():
        A("s_mov_b64 s[32:33], s[18:19]")
        A("s_mov_b32 s34, %d" % WS_REC)
        A("s_mov_b32 s35, 0x20000")
        A("s_mov_b64 s[36:37], s[14:15]")
        A("s_mov_b32 s38, 524288")
        A("s_mov_b32 s39, 0x20000")
        A("v_and_b32 v4, 7, v0")
        if stamps:
            for i in range(2, 8): A(f"s_mov_b32 s{60+2*i}, 0")
            A("s_mov_b32 s59, 0")
            A("s_mov_b32 s49, 0")
    LB("L_route")
    stamp(1)
    rsetup()
    A("s_and_b32 s45, s52, 7")
    A("s_lshl_b32 s46, s45, 3")
    A("s_lshr_b32 s52, s52, 3               ; batch")
    A("s_add_u32 s46, s46, s52")
    A("s_mul_i32 s46, s46, %d" % LS)
    A("s_add_u32 s46, s46, %d               ; slot" % O_IDX)
    A("s_lshl_b32 s45, s45, 2")
    A("v_mul_u32_u24 v5, %d, v0             ; replica offset" % REPS)
    A("v_lshrrev_b32 v10, 5, v0")
    A("v_bfe_u32 v11, v0, 4, 1")
    A("v_lshl_add_u32 v10, v11, 1, v10")
    A("v_add_u32 v10, s45, v10")
    A("v_xor_b32 v10, 31, v10")
    for t in range(4):
        for hlf in range(2):
            A(f"s_waitcnt vmcnt({7 - 2*t - hlf})")
            for k in range(4):
                c = "0" if (hlf == 0 and k == 0) else f"v{6+t}"
                A(f"v_dot2_f32_bf16 v{6+t}, v{XR+8*t+4*hlf+k}, v{16+4*hlf+k}, {c}")
    A("s_waitcnt lgkmcnt(0)")
    A("s_add_u32 s40, s40, 1")
    A("s_nop 0")
    A("v_permlane32_swap_b32 v6, v7")
    A("v_permlane32_swap_b32 v8, v9")
    A("v_add_f32 v6, v6, v7")
    A("v_add_f32 v8, v8, v9")
    A("s_nop 1")
    A("v_permlane16_swap_b32 v6, v8")
    A("v_add_f32 v6, v6, v8")
    A("s_nop 1")
    A("v_add_f32_dpp v6, v6, v6 quad_perm:[1,0,3,2] row_mask:0xf bank_mask:0xf")
    A("s_nop 1")
    A("v_add_f32_dpp v6, v6, v6 quad_perm:[2,3,0,1] row_mask:0xf bank_mask:0xf")
    A("s_nop 1")
    A("v_add_f32_dpp v6, v6, v6 row_half_mirror row_mask:0xf bank_mask:0xf")
    A("s_nop 1")
    A("v_add_f32_dpp v6, v6, v6 row_mirror row_mask:0xf bank_mask:0xf")
    A("v_cvt_pk_bf16_f32 v7, v6, v6")
    A("v_and_b32 v7, 0xffff0000, v7          ; r (bf16)")
    A("v_ashrrev_i32 v6, 31, v7")
    A("v_or_b32 v6, 0x80000000, v6")
    A("v_xor_b32 v6, v6, v7")
    A("v_cmp_o_f32 vcc, v7, v7")
    A("v_and_b32 v6, 0xffff0000, v6")
    A("s_nop 0")
    A("v_cndmask_b32 v6, 0, v6, vcc")
    A("v_or_b32 v6, v10, v6")
    A("v_mov_b32 v7, v6")
    A("s_nop 1")
    A("v_permlane16_swap_b32 v6, v7")
    A("v_max_u32 v6, v6, v7")
    A("v_mov_b32 v7, v6")
    A("s_nop 1")
    A("v_permlane32_swap_b32 v6, v7")
    A("v_max_u32 v6, v6, v7")
    A("v_mov_b32 v7, s40")
    A("s_mov_b64 exec, 0xff")
    A("buffer_store_dwordx2 v[6:7], v5, s[32:35], s46 offen sc1")
    A("s_mov_b64 exec, -1")
    A("s_barrier                            ; B0b")
    stamp(2)
    A("s_setprio 0")
    A("s_cmp_eq_u32 s3, 4")
    A("s_cbranch_scc1 L_r4")
    A("s_endpgm")
    if align: L.append(".p2align 12")
    LB("L_cb")
    kb = cpath(2, "b", D3, D3W, BX3)
    assert ka == kb
    A("s_branch L_h")

    def idload():
        A(f"buffer_load_dwordx4 v[{IDR}:{IDR+3}], v14, s[28:31], s53 offen{xpol}")
        A(f"buffer_load_dwordx4 v[{IDR+4}:{IDR+7}], v14, s[28:31], s53 offen offset:1024{xpol}")
    def idconv():
        for r in range(IDR, IDR+8):
            A(f"v_lshlrev_b32 v16, 16, v{r}")
            A(f"v_and_b32 v17, 0xffff0000, v{r}")
            A("v_pk_fma_f32 v[16:17], v[16:17], 0, v[16:17] op_sel_hi:[1,0,1]")
            A(f"v_cvt_pk_bf16_f32 v{r}, v16, v17    ; x + x*0")
    def psetup():
        A("s_lshl_b32 s53, s2, 11")
        A("v_mul_u32_u24 v12, %d, v0            ; poll offset" % LS)
        A("s_mul_i32 s47, s22, %d" % REPS)
        A("s_add_u32 s47, s47, %d               ; this group's replica" % O_IDX)
        A("v_lshrrev_b32 v11, 3, v0")
        A("s_lshr_b32 s45, s21, 1")
        A("s_sub_u32 s46, 10, s57")
        A("s_lshl_b32 s45, s45, s46")
        A("s_lshl_b32 s48, s20, 14")
        A("s_lshl_b32 s46, s21, 11")
        A("s_add_u32 s48, s48, s46")
        A("s_add_u32 s48, s48, %d               ; own L2-local block" % O_EX1F)
        A("s_lshr_b32 s51, s2, 5")
    LB("L_r4")
    psetup()
    if early_id: idload()
    A(f"s_waitcnt vmcnt({2 if early_id else 0})")
    A("s_branch L_ip0")
    LB("L_r")
    A("v_mov_b32 v8, 0")
    A("s_waitcnt lgkmcnt(0)")
    A("s_load_dword s40, s[18:19], 0        ; epoch")
    A("s_mov_b64 s[28:29], s[4:5]")
    rsetup()
    stamp(1)
    psetup()
    A("s_mov_b32 s49, 0")
    LB("L_fwait")
    if fsleep: A(f"s_sleep {fsleep}")
    A(f"ds_read_b32 v9, v8 offset:{L_FLAG}")
    A("s_add_u32 s49, s49, 1")
    A("s_cmp_ge_u32 s49, %d" % SPIN)
    A("s_waitcnt lgkmcnt(0)")
    A("v_cmp_eq_u32 vcc, 0, v9")
    A("s_cbranch_scc1 L_fok")
    A("s_cbranch_vccnz L_fwait")
    LB("L_fok")
    if early_id: idload()
    A("s_add_u32 s40, s40, 1")
    if FS: A(f"s_sleep {FS}")
    stamp(2)
    LB("L_ip0")
    A("s_mov_b32 s49, 0")
    if early_id:
        A(f"buffer_load_dwordx2 v[8:9], v12, s[32:35], s47 offen sc1")
        A("s_waitcnt vmcnt(1)")
        idconv()
        A("s_branch L_ichk")
    LB("L_ipoll")
    A(f"buffer_load_dwordx2 v[8:9], v12, s[32:35], s47 offen sc1")
    LB("L_ichk")
    A("s_add_u32 s49, s49, 1")
    A("s_cmp_ge_u32 s49, %d" % SPIN)
    A(f"s_waitcnt vmcnt(0)")
    A(f"v_cmp_ne_u32 vcc, s40, v9")
    A("s_cbranch_scc1 L_iok")
    A("s_cbranch_vccnz L_ipoll")
    LB("L_iok")
    stamp(3)
    if stamps: A("s_mov_b32 s59, s49")
    A("v_max_u32_dpp v8, v8, v8 row_ror:8 row_mask:0xf bank_mask:0xf")
    A("v_mov_b32 v9, v8")
    A("s_mov_b32 m0, %d" % L_XS)
    A("s_cmp_eq_u32 s57, 1")
    A("v_permlane16_swap_b32 v8, v9")
    A("v_max_u32 v8, v8, v9")
    A("v_mov_b32 v9, v8")
    A("s_nop 1")
    A("v_permlane32_swap_b32 v8, v9")
    A("v_max_u32 v6, v8, v9")
    A("v_and_b32 v10, 31, v6")
    A("v_xor_b32 v10, 31, v10")
    A("v_lshl_add_u32 v10, v4, 5, v10       ; row")
    A("v_lshlrev_b32 v10, 11, v10")
    A("v_lshl_add_u32 v10, v11, 4, v10      ; + chunk*16")
    for i in range(8):
        if i == 4: A("s_cbranch_scc1 L_dmadone")
        A(f"buffer_load_dwordx4 v10, s[28:31], s45 offen{xpol} lds")
        if i < 7:
            A("s_mov_b32 m0, %d" % (L_XS + 1024*(i+1)))
            A("v_add_u32 v10, 128, v10")
    LB("L_dmadone")
    if not early_id: idload()
    A("buffer_load_dwordx4 v[24:27], v14, s[32:35], s48 offen")
    A("buffer_load_dwordx4 v[28:31], v14, s[32:35], s48 offen offset:1024")
    A("s_barrier                            ; BX")
    A("v_readlane_b32 s55, v6, s51")
    A("s_and_b32 s46, s2, 31")
    A("s_and_b32 s54, s55, 31")
    A("s_xor_b32 s54, s54, 31")
    A("s_cmp_eq_u32 s54, s46")
    A("s_cselect_b32 s56, 0x40000000, s53")
    if early_id:
        A(f"buffer_store_dwordx4 v[{IDR}:{IDR+3}], v14, s[36:39], s56 offen{outpol}")
        A(f"buffer_store_dwordx4 v[{IDR+4}:{IDR+7}], v14, s[36:39], s56 offen offset:1024{outpol}")
    A("v_lshrrev_b32 v7, 5, v0")
    A("v_bfe_u32 v8, v0, 4, 1")
    A("v_lshl_add_u32 v7, v8, 1, v7         ; e")
    A("v_lshl_add_u32 v7, v4, 2, v7         ; 4*pos + e")
    A("s_lshl_b32 s45, s51, 5")
    A("s_add_u32 s45, s45, s54")
    A("s_lshl_b32 s45, s45, 5")
    A("s_add_u32 s45, s45, s46")
    A("s_lshl_b32 s45, s45, 5")
    A("v_add_u32 v7, s45, v7")
    A("v_lshlrev_b32 v7, 1, v7")
    A("buffer_load_ushort v9, v7, s[28:31], 0 offen")
    A("s_waitcnt vmcnt(5)")
    A("s_barrier                            ; B2")
    stamp(4)
    if not early_id:
        A("s_waitcnt vmcnt(3)")
        idconv()
    A("s_lshr_b32 s44, s55, 16")
    A("s_xor_b32 s45, s44, 0xffff")
    A("s_and_b32 s44, s44, 0x7fff")
    A("s_cmp_lt_i32 s55, 0")
    A("s_cselect_b32 s44, s44, s45")
    A("s_lshl_b32 s44, s44, 16              ; r")
    A("v_mov_b32 v10, 0xbfb8aa3b")
    A("v_mul_f32 v10, s44, v10")
    A("v_exp_f32 v10, v10")
    A("s_and_b32 s41, s40, 0xff")
    A("v_add_f32 v10, 1.0, v10")
    A("v_rcp_f32 v10, v10")
    A("s_barrier                            ; B3")
    if not early_id:
        A(f"buffer_store_dwordx4 v[{IDR}:{IDR+3}], v14, s[36:39], s56 offen{outpol}")
        A(f"buffer_store_dwordx4 v[{IDR+4}:{IDR+7}], v14, s[36:39], s56 offen offset:1024{outpol}")
    A("v_cvt_pk_bf16_f32 v10, v10, v10")
    A("v_and_b32 v10, 0xffff0000, v10       ; sigmoid")
    A("s_mul_i32 s46, s2, %d" % X2S)
    A("s_add_u32 s46, s46, %d" % O_EX2)
    A("s_add_u32 s47, s46, 4096")
    A("s_mov_b32 s49, 0")
    A("s_mov_b32 s44, 0x00ff00ff")
    A("s_mov_b32 s45, 0x00ff00ff")
    A("s_waitcnt vmcnt(0)")
    A("v_lshlrev_b32 v9, 16, v9             ; x")
    if mx: A("v_mov_b32 v13, 0")
    A("s_barrier                            ; B4")
    if not b4: A("s_barrier")
    stamp(5)
    if x2d: A(f"s_sleep {x2d}")
    if mx:
        MS = 76 if stamps else 60
        def ld(i):
            so = "s46" if i < 4 else "s47"
            A(f"buffer_load_dwordx4 v[{32+4*i}:{35+4*i}], v14, s[32:35], {so} offen offset:{(i%4)*1024} sc1")
        def chk(i):
            b = 32 + 4*i
            for r in range(b, b+4): A(f"v_xor_b32 v{r}, s41, v{r}")
            A(f"v_or3_b32 v15, v{b}, v{b+1}, v{b+2}")
            A(f"v_or_b32 v15, v15, v{b+3}")
            A(f"v_cmp_ne_u32_sdwa s[{MS+2*i}:{MS+2*i+1}], v15, v13 src0_sel:BYTE_0 src1_sel:DWORD")
        def anyleft():
            A(f"s_or_b64 s[42:43], s[{MS}:{MS+1}], s[{MS+2}:{MS+3}]")
            for i in range(2, 7): A(f"s_or_b64 s[42:43], s[42:43], s[{MS+2*i}:{MS+2*i+1}]")
        for i in range(7): ld(i)
        A("s_mov_b32 s49, 1")
        for i in range(7):
            A(f"s_waitcnt vmcnt({6-i})")
            chk(i)
            if i == 1: A("v_pk_add_f32 v[16:17], v[32:33], v[36:37]"); A("v_pk_add_f32 v[18:19], v[34:35], v[38:39]")
            if i >= 2: A(f"v_pk_add_f32 v[16:17], v[16:17], v[{32+4*i}:{33+4*i}]"); A(f"v_pk_add_f32 v[18:19], v[18:19], v[{34+4*i}:{35+4*i}]")
        anyleft()
        A("s_cbranch_scc0 L_x2ok")
        LB("L_x2poll")
        if x2s: A(f"s_sleep {x2s}")
        for i in range(7):
            A(f"s_mov_b64 exec, s[{MS+2*i}:{MS+2*i+1}]")
            A(f"s_cbranch_execz L_x2l{i}")
            ld(i)
            LB(f"L_x2l{i}")
        A("s_add_u32 s49, s49, 1")
        A("s_waitcnt vmcnt(0)")
        for i in range(7):
            A(f"s_mov_b64 exec, s[{MS+2*i}:{MS+2*i+1}]")
            A(f"s_cbranch_execz L_x2c{i}")
            chk(i)
            LB(f"L_x2c{i}")
        A("s_mov_b64 exec, -1")
        anyleft()
        A("s_cbranch_scc0 L_x2sum")
        A("s_cmp_lt_u32 s49, %d" % SPIN)
        A("s_cbranch_scc1 L_x2poll")
        LB("L_x2sum")
        A("v_pk_add_f32 v[16:17], v[32:33], v[36:37]"); A("v_pk_add_f32 v[18:19], v[34:35], v[38:39]")
        for i in range(2, 7):
            A(f"v_pk_add_f32 v[16:17], v[16:17], v[{32+4*i}:{33+4*i}]"); A(f"v_pk_add_f32 v[18:19], v[18:19], v[{34+4*i}:{35+4*i}]")
        A("s_nop 0")
    else:
        LB("L_x2poll")
        for i in range(7):
            so = "s46" if i < 4 else "s47"
            A(f"buffer_load_dwordx4 v[{32+4*i}:{35+4*i}], v14, s[32:35], {so} offen offset:{(i%4)*1024} sc1")
        A("s_add_u32 s49, s49, 1")
        for i in range(7):
            A(f"s_waitcnt vmcnt({6-i})")
            b = 32 + 4*i
            for r in range(b, b+4): A(f"v_xor_b32 v{r}, s41, v{r}")
            if i == 0:
                A(f"v_or3_b32 v15, v{b}, v{b+1}, v{b+2}")
                A(f"v_or_b32 v15, v15, v{b+3}")
            else:
                A(f"v_or3_b32 v15, v15, v{b}, v{b+1}")
                A(f"v_or3_b32 v15, v15, v{b+2}, v{b+3}")
                src = 32 if i == 1 else 16
                A(f"v_pk_add_f32 v[16:17], v[{src}:{src+1}], v[{b}:{b+1}]")
                A(f"v_pk_add_f32 v[18:19], v[{src+2}:{src+3}], v[{b+2}:{b+3}]")
        A("v_and_b32 v15, 0xff, v15")
        A("v_cmp_ne_u32 vcc, 0, v15")
        A("s_cbranch_vccz L_x2ok")
        if x2s: A(f"s_sleep {x2s}")
        A("s_cmp_lt_u32 s49, %d" % SPIN)
        A("s_cbranch_scc1 L_x2poll")
    LB("L_x2ok")
    stamp(6)
    A("v_permlane32_swap_b32 v16, v17")
    A("v_permlane32_swap_b32 v18, v19")
    A("v_add_f32 v16, v16, v17")
    A("v_add_f32 v18, v18, v19")
    A("s_nop 1")
    A("v_permlane16_swap_b32 v16, v18")
    A("v_add_f32 v16, v16, v18")
    A("s_nop 1")
    A("v_add_f32_dpp v16, v16, v16 row_ror:8 row_mask:0xf bank_mask:0xf")
    A("s_mov_b64 exec, s[44:45]")
    A("v_cvt_pk_bf16_f32 v16, v16, v16")
    A("v_and_b32 v16, 0xffff0000, v16       ; y")
    A("v_mul_f32 v16, v16, v10")
    A("v_cvt_pk_bf16_f32 v16, v16, v16")
    A("v_and_b32 v16, 0xffff0000, v16       ; y*sigmoid")
    A("v_fma_f32 v16, v9, 0, v16            ; upd = x*0 + y")
    A("v_add_f32 v16, v9, v16")
    A("v_cvt_pk_bf16_f32 v16, v16, v16")
    A(f"buffer_store_short v16, v7, s[36:39], 0 offen{finpol}")
    A("s_cmp_lg_u32 s2, 0")
    A("s_cbranch_scc1 L_noep")
    A("v_mov_b32 v18, s40")
    A("v_mov_b32 v17, 0")
    A("s_mov_b64 exec, 1")
    A("buffer_store_dword v18, v17, s[32:35], 0 offen sc1")
    LB("L_noep")
    stamp(7)
    LB("L_fin")
    if stamps:
        import diag
        if dg: diag.epilogue(A, LB, dg, nwg=256, invalid=())
        elif gamp: diag.gamp(A, LB, gamp)
        else:
            A("s_barrier")
            diag.dump(A, LB)
    LB("L_end")
    A("s_endpgm")
    L.extend(slow)
    body = "\n".join(L)
    pad = ".p2align 12\n.fill 832, 4, 0xbf800000            ; the kernel starts a 4 KB page (instruction prefetch stops at page ends)\n" if align else ""
    return f"""{HEAD}; @launch grid=(256,1,1) block=(384,1,1) lds={LDS_BYTES}
{DOC}.amdgcn_target "amdgcn-amd-amdhsa--gfx950"
.text
.globl {KN}
{pad}.p2align 8
.type {KN},@function
{KN}:
{body}
.section .rodata,"a"
.p2align 6
.amdhsa_kernel {KN}
  .amdhsa_next_free_vgpr 160
  .amdhsa_next_free_sgpr 96
  .amdhsa_accum_offset 160
  .amdhsa_group_segment_fixed_size 0
  .amdhsa_kernarg_size 64
  .amdhsa_user_sgpr_count 2
  .amdhsa_user_sgpr_kernarg_segment_ptr 1
  .amdhsa_system_sgpr_workgroup_id_x 1
  .amdhsa_float_denorm_mode_32 3
.end_amdhsa_kernel
"""
if __name__ == "__main__":
    import sys, json
    kw = json.loads(sys.argv[2]) if len(sys.argv) > 2 else {}
    open(sys.argv[1] if len(sys.argv) > 1 else "standalone__moe_arch_mod__sampling.s", "w").write(gen(**kw))
```

```python
KN = "standalone__moe_arch_mod__sampling_kernel"
HEAD = open("standalone__moe_arch_mod__sampling.s.ref").read().split("; Override launch")[0]

O_IDX = 0x1000
O_EX1F = 0x20000
O_EX2 = 0x100000
O_EX1 = 0x300000
WS_REC = 0x500000
L_XS = 0
L_RED = 8192
L_HB = 16384
L_KEY = 17408
L_FLAG = 17408 + 32
LDS_BYTES = 17408 + 64
SPIN = 40000

DOC = """; MoD sampling block: route (argmax of x.w_r per batch), SwiGLU FFN on the 8 selected rows, residual update.
"""

def gen(pol="nt", xpol="", D=10, DI=6, D3=8, D3W=12, BX=4, BX3=8, DX=32, LS=16, NF=12, PK=3, FS=38, fsleep=1,
        outpol="sc1", finpol="", x1pol="", x2d=27, PERM=(7,0,1,2,4,5,6,3), align=True, prog=True, early_id=True,
        stamps=False, dg=None, gamp=None, cst1=True, lag0=0, MAP="B", DUP0=True, X2S=8192, nob5=False, mx=False, x2s=0, b4=True, rlag=0, IS=0):
    if gamp or dg: stamps = True
    L = []
    def A(s): L.append("  " + s)
    def LB(s): L.append(s + ":")
    def stamp(i):
        if stamps: A(f"s_memrealtime s[{60+2*i}:{61+2*i}]")
    sp = lambda p: (" " + p) if p else ""
    pol, xpol, outpol, finpol, x1pol = map(sp, (pol, xpol, outpol, finpol, x1pol))
    REPS = 64 * LS
    XR = 80
    RAW = 16; FR = 80; XB = 96; ACC = 112; W2 = 128
    F2 = 40; HA = 72
    IDR = 40
    def raw(s, i): return RAW + 16*s + 2*i
    def frag(s, j): return (FR if s == 0 else RAW + 16*(s-1)) + 4*j
    def raw2(s, i): return W2 + 16*s + 2*i
    def frag2(s, j): return F2 + 16*s + 4*j
    def perm_pair(rawf, fragf, s, p):
        for e in range(2):
            A(f"v_perm_b32 v{fragf(s,2*e)+p}, v{rawf(s,2*p+1)+e}, v{rawf(s,2*p)+e}, s42")
            A(f"v_perm_b32 v{fragf(s,2*e+1)+p}, v{rawf(s,2*p+1)+e}, v{rawf(s,2*p)+e}, s43")
    def perms(rawf, fragf, s):
        for p in range(4): perm_pair(rawf, fragf, s, p)
    def w1load(n):
        s, i = divmod(n, 8)
        A(f"buffer_load_dwordx2 v[{raw(s,i)}:{raw(s,i)+1}], v3, s[24:27], s44 offen{pol}")
        A("s_addk_i32 s44, 7168" if i < 7 else "s_add_u32 s44, s44, %d" % (25*7168))
    def w2load(n):
        s, i = divmod(n, 8)
        p, b = divmod(i, 2)
        row = 2*s + (p >> 1) + 8*(p & 1) + 4*b
        A("s_add_u32 s47, s53, %d" % (row*2048))
        A(f"buffer_load_dwordx2 v[{raw2(s,i)}:{raw2(s,i)+1}], v10, s[28:31], s47 offen{pol}")

    if lag0:
        A("s_and_b32 s3, s2, 7")
        A("s_cmp_lg_u32 s3, 0")
        A("s_cbranch_scc1 L_nolag")
        A(f"s_sleep {lag0}")
        LB("L_nolag")
    stamp(0)
    A("s_cmp_ge_u32 s2, 256")
    A("s_cbranch_scc1 L_exit")
    A("s_load_dwordx16 s[4:19], s[0:1], 0")
    A("v_lshrrev_b32 v1, 6, v0")
    A("v_and_b32 v0, 63, v0                 ; lane")
    A("v_readfirstlane_b32 s3, v1           ; wave")
    A("s_lshl_b32 s22, s2, 2")
    A("s_lshr_b32 s22, 0x%x, s22" % sum(v << (4*i) for i, v in enumerate(PERM)))
    A("s_and_b32 s22, s22, 7")
    A("s_lshr_b32 s23, s2, 3")
    A("s_lshr_b32 s44, s23, 2")
    A("s_mul_i32 s45, s22, 6")
    A("s_add_u32 s45, s45, s44")
    A("s_add_u32 s44, s45, 4")
    A("s_mul_i32 s44, s44, 37")
    A("s_lshr_b32 s44, s44, 8")
    A("s_add_u32 s20, s45, s44")
    A("s_lshl_b32 s44, s22, 3")
    A("s_add_u32 s44, s44, 3")
    A("s_min_u32 s44, s44, 55")
    A("s_cmp_ge_u32 s23, 24")
    A("s_cselect_b32 s20, s44, s20")
    A("s_cselect_b32 s57, 1, 0")
    A("s_cselect_b32 s21, 7, 3")
    A("s_and_b32 s21, s21, s23              ; part")
    if stamps: A("s_mov_b32 s58, s57")
    A("s_mov_b32 s27, 0x20000")
    A("s_cmp_lt_u32 s3, 4")
    A("s_cbranch_scc1 L_c")
    A("s_mov_b32 s30, 524288")
    A("s_mov_b32 s31, 0x20000")
    A("v_lshlrev_b32 v14, 4, v0             ; lane*16")
    A("s_cmp_eq_u32 s57, 1")
    A("s_cbranch_scc1 L_rt")
    A("s_cmp_eq_u32 s3, 4")
    A("s_cbranch_scc1 L_r")
    LB("L_exit")
    A("s_endpgm")
    LB("L_rt")
    A("s_setprio 3")
    A("s_and_b32 s52, s22, 3")
    A("s_lshl_b32 s52, s52, 3")
    A("s_add_u32 s52, s52, s21")
    A("s_lshl_b32 s52, s52, 1")
    A("s_add_u32 s52, s52, s3")
    A("s_sub_u32 s52, s52, 4")
    A("s_lshl_b32 s44, s52, 13")
    A("s_add_u32 s45, s44, 4096")
    A("s_movk_i32 s26, 2048")
    A("s_waitcnt lgkmcnt(0)")
    A("s_mov_b64 s[28:29], s[4:5]")
    A("s_mov_b64 s[24:25], s[6:7]")
    A("s_load_dword s40, s[18:19], 0        ; epoch")
    A(f"buffer_load_dwordx4 v[16:19], v14, s[24:27], 0 offen")
    A(f"buffer_load_dwordx4 v[20:23], v14, s[24:27], 0 offen offset:1024")
    for i in range(8):
        A(f"buffer_load_dwordx4 v[{XR+4*i}:{XR+4*i+3}], v14, s[28:31], {'s44' if i < 4 else 's45'} offen offset:{(i%4)*1024}{xpol}")
    A("s_barrier                            ; B0")
    A("s_branch L_route")
    LB("L_c")
    A("v_mov_b32 v4, 0")
    A(f"ds_write_b32 v4, v4 offset:{L_FLAG}")
    A("s_mov_b32 s26, 7340032")
    A("v_lshrrev_b32 v1, 4, v0              ; g")
    A("v_and_b32 v2, 15, v0                 ; n")
    A("v_mul_u32_u24 v3, %d, v1" % (8*7168))
    A("v_lshl_add_u32 v3, v2, 3, v3         ; voffset")
    A("s_lshr_b32 s44, s21, 1")
    A("s_lshl_b32 s44, s44, 2")
    A("s_add_u32 s44, s44, s3")
    A("s_lshr_b32 s45, %d, s57" % (128*7168))
    A("s_mul_i32 s44, s44, s45")
    A("s_lshl_b32 s45, s20, 7")
    A("s_add_u32 s44, s44, s45              ; soffset")
    A("s_bitcmp1_b32 s21, 0")
    A("s_waitcnt lgkmcnt(0)")
    A("s_cselect_b64 s[24:25], s[10:11], s[8:9]")
    A("s_cmp_eq_u32 s57, 0")
    A("s_cbranch_scc1 L_nb0")
    A("s_barrier")
    LB("L_nb0")
    if not cst1: stamp(1)
    for n in range(DI): w1load(n)
    A("s_load_dword s40, s[18:19], 0        ; epoch")
    if stamps:
        for i in range(2, 8): A(f"s_mov_b32 s{60+2*i}, 0")
        A("s_getreg_b32 s59, hwreg(HW_REG_HW_ID)")
    A("s_mov_b64 s[32:33], s[18:19]")
    A("s_mov_b32 s34, %d" % WS_REC)
    A("s_mov_b32 s35, 0x20000")
    A("s_mov_b32 s42, 0x05040100")
    A("s_mov_b32 s43, 0x07060302")
    A("v_and_b32 v8, 7, v0")
    A("v_lshl_add_u32 v13, v1, 3, v8")
    A("v_lshlrev_b32 v13, 4, v13")
    A("s_lshl_b32 s45, s3, 11")
    A("v_add_u32 v4, s45, v13")
    A("s_lshr_b32 s45, s45, s57")
    A("v_add_u32 v5, s45, v13")
    A("v_lshlrev_b32 v6, 3, v0")
    A("s_lshl_b32 s45, s3, 9")
    A("v_add_u32 v6, s45, v6                ; w*512 + lane*8")
    A("v_lshrrev_b32 v7, 1, v0")
    A("v_lshlrev_b32 v7, 4, v7")
    A("v_and_b32 v9, 1, v0")
    A("v_lshl_add_u32 v7, v9, 2, v7")
    A("s_lshr_b32 s45, s3, 1")
    A("s_lshl_b32 s45, s45, 9")
    A("s_and_b32 s46, s3, 1")
    A("s_lshl_b32 s46, s46, 3")
    A("s_add_u32 s45, s45, s46")
    A("v_add_u32 v7, s45, v7")
    A("s_mov_b64 s[28:29], s[12:13]")
    A("s_mov_b32 s30, 7340032")
    A("s_mov_b32 s31, 0x20000")
    A("v_lshlrev_b32 v10, 15, v1            ; g*16*2048")
    A("v_lshl_add_u32 v10, v2, 3, v10")
    A("v_lshrrev_b32 v11, 3, v2")
    A("v_lshl_add_u32 v11, v1, 7, v11       ; 4g*32 + (n>>3)")
    A("v_mul_u32_u24 v11, %d, v11" % X2S)
    A("v_lshl_add_u32 v11, v8, 4, v11       ; + (n&7)*16")
    A("s_lshl_b32 s53, s21, 2")
    A("s_lshr_b32 s53, s53, s57")
    A("s_add_u32 s53, s53, s3")
    A("s_lshr_b32 s45, s3, 1")
    A("s_and_b32 s45, s45, s57")
    A("s_lshl_b32 s45, s45, 30")
    A("v_or_b32 v10, s45, v10")
    A("v_or_b32 v11, s45, v11")
    A("s_mul_i32 s52, s53, %d" % (2*X2S))
    A("s_lshl_b32 s46, s20, 7")
    A("s_add_u32 s52, s52, s46")
    A("s_add_u32 s52, s52, %d" % O_EX2)
    A("s_lshl_b32 s53, s53, 7")
    A("s_lshl_b32 s46, s20, 17              ; tile*64*2048")
    A("s_add_u32 s53, s53, s46")
    A("s_lshl_b32 s45, s20, 14")
    A("s_lshl_b32 s46, s21, 11")
    A("s_add_u32 s45, s45, %d               ; group base" % O_EX1F)
    A("s_add_u32 s46, s46, s45")
    A("s_mov_b32 s48, 0xffffff00")
    A("s_mov_b32 s50, 0xbfb8aa3b            ; -log2(e)")
    A("s_mov_b32 s51, 0xbfb8aa3b")
    A("s_mov_b32 s49, 0")
    A("s_getreg_b32 s54, hwreg(HW_REG_XCC_ID, 0, 3)")
    A("v_mov_b32 v12, 1")
    A("s_cmp_eq_u32 s57, 1")
    A("s_cbranch_scc1 L_cb")

    slow = []
    def cpath(NS, sfx, DD, DW, bx):
        NL = 8*NS
        done = 0
        landed = 0
        if NS == 2: A("s_barrier")
        for n in range(DI, NL + 16):
            dn = min(DD, DI + (n - DI + 1) // 2) if n < NL else DW
            if n >= NL + bx:
                if n == NL + bx: A("s_barrier")
                dn = DX
            if n - dn + 1 > landed:
                A(f"s_waitcnt vmcnt({dn-1})")
                landed = n - dn + 1
            if n == DI and cst1: stamp(1)
            if n < NL: w1load(n)
            else: w2load(n - NL)
            if n == DI and NS == 4:
                A(f"ds_write_b32 v12, v12 offset:{L_FLAG - 1}")
            if n == NL - 1: stamp(2)
            while done < NS and 8*done + 8 <= landed:
                perms(raw, frag, done); done += 1
        A("s_waitcnt lgkmcnt(0)")
        A("s_add_u32 s40, s40, 8                ; tag32")
        A("s_and_b32 s41, s40, 0xff")
        A("s_and_b32 s55, s40, 0xf8")
        A("s_or_b32 s54, s54, s55")
        A("v_mov_b32 v9, s41")
        A("v_mov_b32 v12, s54")
        while done < NS:
            A(f"s_waitcnt vmcnt({NL + 16 - 8*done - 8})")
            perms(raw, frag, done); done += 1
        A("s_barrier")
        stamp(3)
        for s in range(NS):
            A(f"ds_read_b128 v[{XB+4*s}:{XB+4*s+3}], v5 offset:{L_XS + 512*s}")
        for s in range(NS):
            A(f"s_waitcnt lgkmcnt({NS-1-s})")
            for j in range(4):
                c = "0" if s == 0 else f"v[{ACC+4*j}:{ACC+4*j+3}]"
                A(f"v_mfma_f32_16x16x32_bf16 v[{ACC+4*j}:{ACC+4*j+3}], v[{frag(s,j)}:{frag(s,j)+3}], v[{XB+4*s}:{XB+4*s+3}], {c}")
        A("s_mov_b32 exec_lo, 0x00ff00ff")
        A("s_mov_b32 exec_hi, 0x00ff00ff")
        A("s_nop 2")
        for j in range(4):
            A(f"ds_write_b128 v4, v[{ACC+4*j}:{ACC+4*j+3}] offset:{L_RED + 512*j}")
        A("s_mov_b64 exec, -1")
        A("s_waitcnt lgkmcnt(0)")
        A("s_barrier                            ; B3")
        for w in range(2):
            A(f"ds_read2st64_b64 v[{16+4*w}:{19+4*w}], v6 offset0:{(L_RED + 4096*w)//512} offset1:{(L_RED + 4096*w + 2048)//512}")
        A("s_waitcnt lgkmcnt(1)")
        A("v_pk_add_f32 v[16:17], v[16:17], v[18:19]")
        A("s_waitcnt lgkmcnt(0)")
        A("v_pk_add_f32 v[20:21], v[20:21], v[22:23]")
        A("v_pk_add_f32 v[16:17], v[16:17], v[20:21]")
        A("v_and_or_b32 v16, v16, s48, v12")
        A("v_and_or_b32 v17, v17, s48, v12")
        A(f"buffer_store_dwordx2 v[16:17], v6, s[32:35], s46 offen{x1pol}")
        stamp(4)
        NB = 4 if NS == 4 else 8
        pairs = [(s, p) for s in range(2) for p in range(4)]
        k = 0
        A("s_waitcnt vmcnt(9)")
        while k < 4: perm_pair(raw2, frag2, *pairs[k]); k += 1
        if prog:
            while 17 - 2*(k+1) >= PK:
                A(f"s_waitcnt vmcnt({17 - 2*(k+1)})")
                perm_pair(raw2, frag2, *pairs[k]); k += 1
        if not prog or 17 - 2*k > PK: A(f"s_waitcnt vmcnt({PK})")
        def polls():
            for b in range(NB):
                if b and b % 2 == 0: A(f"s_add_u32 s47, s45, {b*2048}")
                A(f"buffer_load_dwordx2 v[{24+2*b}:{25+2*b}], v6, s[32:35], {'s45' if b < 2 else 's47'} offen offset:{(b%2)*2048} sc1")
        if prog:
            polls()
            while k < 8:
                A(f"s_waitcnt vmcnt({NB + 17 - 2*(k+1)})")
                perm_pair(raw2, frag2, *pairs[k]); k += 1
            A(f"s_branch L_x1chk{sfx}")
        LB("L_x1poll" + sfx)
        polls()
        LB("L_x1chk" + sfx)
        A("s_add_u32 s49, s49, 1")
        A("s_waitcnt vmcnt(0)")
        for r in range(24, 24+2*NB): A(f"v_xor_b32 v{r}, s54, v{r}")
        A("v_or3_b32 v8, v24, v25, v26")
        for r in range(27, 24+2*NB-1, 2): A(f"v_or3_b32 v8, v8, v{r}, v{r+1}")
        A(f"v_or_b32 v8, v8, v{24+2*NB-1}")
        A("v_and_b32 v8, 0xff, v8")
        A("v_cmp_ne_u32 vcc, 0, v8")
        A("s_cbranch_vccnz L_x1no" + sfx)
        LB("L_x1ok" + sfx)
        stamp(5)
        if NB == 8:
            A("v_pk_add_f32 v[24:25], v[24:25], v[32:33]")
            A("v_pk_add_f32 v[26:27], v[26:27], v[34:35]")
            A("v_pk_add_f32 v[28:29], v[28:29], v[36:37]")
            A("v_pk_add_f32 v[30:31], v[30:31], v[38:39]")
        S = []
        def B(s): S.append("  " + s)
        S.append("L_x1no" + sfx + ":")
        B(f"s_cmp_lt_u32 s49, {NF}")
        B("s_cbranch_scc1 L_x1poll" + sfx)
        B("v_lshlrev_b32 v8, 1, v6")
        B("s_lshl_b32 s56, s20, 15")
        B("s_add_u32 s56, s56, %d" % O_EX1)
        B(f"s_cmp_lg_u32 s49, {NF}")
        B("s_cbranch_scc1 L_x1ns" + sfx)
        B("v_and_b32 v96, s48, v16")
        B("v_and_b32 v97, s48, v17")
        B("v_mov_b32 v98, s40")
        B("v_mov_b32 v99, s40")
        B("s_lshl_b32 s47, s21, 12")
        B("s_add_u32 s47, s47, s56")
        B("buffer_store_dwordx4 v[96:99], v8, s[32:35], s47 offen sc1")
        B("s_waitcnt vmcnt(0)")
        S.append("L_x1ns" + sfx + ":")
        for b in range(NB):
            B(f"buffer_load_dwordx4 v[{96+4*b}:{99+4*b}], v8, s[32:35], s56 offen sc1")
            B("s_add_u32 s56, s56, 4096")
        B("s_waitcnt vmcnt(0)")
        B("v_mov_b32 v8, 0")
        for b in range(NB):
            B(f"v_xor_b32 v{98+4*b}, s40, v{98+4*b}")
            B(f"v_xor_b32 v{99+4*b}, s40, v{99+4*b}")
            B(f"v_or3_b32 v8, v8, v{98+4*b}, v{99+4*b}")
            B(f"v_mov_b32 v{24+2*b}, v{96+4*b}")
            B(f"v_mov_b32 v{25+2*b}, v{97+4*b}")
        B("v_cmp_ne_u32 vcc, 0, v8")
        B("s_cbranch_vccz L_x1ok" + sfx)
        B("s_cmp_lt_u32 s49, %d" % SPIN)
        B("s_cbranch_scc1 L_x1poll" + sfx)
        B("s_branch L_x1ok" + sfx)
        slow.extend(S)
        return k
    ka = cpath(4, "a", D, D, BX)
    LB("L_h")
    A("v_pk_add_f32 v[24:25], v[24:25], v[28:29]   ; gate")
    A("v_pk_add_f32 v[26:27], v[26:27], v[30:31]   ; up")
    A("v_cvt_pk_bf16_f32 v8, v24, v25")
    A("v_cvt_pk_bf16_f32 v12, v26, v27")
    A("v_lshlrev_b32 v18, 16, v8")
    A("v_and_b32 v19, 0xffff0000, v8")
    A("v_pk_mul_f32 v[20:21], v[18:19], s[50:51]")
    A("v_exp_f32 v20, v20")
    A("v_exp_f32 v21, v21")
    A("v_lshlrev_b32 v14, 16, v12")
    A("v_pk_add_f32 v[20:21], v[20:21], 1.0 op_sel_hi:[1,0]")
    A("v_rcp_f32 v20, v20")
    A("v_rcp_f32 v21, v21")
    A("v_and_b32 v15, 0xffff0000, v12")
    A("v_pk_mul_f32 v[18:19], v[18:19], v[20:21]")
    A("v_cvt_pk_bf16_f32 v8, v18, v19        ; silu")
    A("v_lshlrev_b32 v18, 16, v8")
    A("v_and_b32 v19, 0xffff0000, v8")
    A("v_pk_mul_f32 v[18:19], v[18:19], v[14:15]")
    A("v_cvt_pk_bf16_f32 v8, v18, v19        ; h")
    A(f"ds_write_b32 v7, v8 offset:{L_HB}")
    for k in range(ka, 8): perm_pair(raw2, frag2, *divmod(k, 4))
    A("s_waitcnt lgkmcnt(0)")
    A("s_barrier                            ; B4")
    for s in range(2):
        A(f"ds_read_b128 v[{HA+4*s}:{HA+4*s+3}], v13 offset:{L_HB + 512*s}")
    for s in range(2):
        A(f"s_waitcnt lgkmcnt({1-s})")
        for j in range(4):
            c = "0" if s == 0 else f"v[{ACC+4*j}:{ACC+4*j+3}]"
            A(f"v_mfma_f32_16x16x32_bf16 v[{ACC+4*j}:{ACC+4*j+3}], v[{HA+4*s}:{HA+4*s+3}], v[{frag2(s,j)}:{frag2(s,j)+3}], {c}")
    A("s_mov_b32 exec_lo, -1")
    A("s_mov_b32 exec_hi, 0")
    A("s_nop 2")
    for r in range(4):
        for j in range(4):
            A(f"v_and_or_b32 v{20+4*r+j}, v{ACC+4*j+r}, s48, v9")
        A(f"buffer_store_dwordx4 v[{20+4*r}:{23+4*r}], v11, s[32:35], s52 offen sc1")
        if r < 3: A("s_add_u32 s52, s52, %d" % (32*X2S))
    stamp(6)
    if not (nob5 or b4): A("s_waitcnt vmcnt(0)")
    if not b4: A("s_barrier                            ; B5")
    stamp(7)
    if stamps: A("s_branch L_fin")
    else: A("s_endpgm")

    def rsetup():
        A("s_mov_b64 s[32:33], s[18:19]")
        A("s_mov_b32 s34, %d" % WS_REC)
        A("s_mov_b32 s35, 0x20000")
        A("s_mov_b64 s[36:37], s[14:15]")
        A("s_mov_b32 s38, 524288")
        A("s_mov_b32 s39, 0x20000")
        A("v_and_b32 v4, 7, v0")
        if stamps:
            for i in range(2, 8): A(f"s_mov_b32 s{60+2*i}, 0")
            A("s_mov_b32 s59, 0")
            A("s_mov_b32 s49, 0")
    LB("L_route")
    stamp(1)
    rsetup()
    A("s_and_b32 s45, s52, 7")
    A("s_lshl_b32 s46, s45, 3")
    A("s_lshr_b32 s52, s52, 3               ; batch")
    A("s_add_u32 s46, s46, s52")
    A("s_mul_i32 s46, s46, %d" % LS)
    A("s_add_u32 s46, s46, %d               ; slot" % O_IDX)
    A("s_lshl_b32 s45, s45, 2")
    A("v_mul_u32_u24 v5, %d, v0             ; replica offset" % REPS)
    A("v_lshrrev_b32 v10, 5, v0")
    A("v_bfe_u32 v11, v0, 4, 1")
    A("v_lshl_add_u32 v10, v11, 1, v10")
    A("v_add_u32 v10, s45, v10")
    A("v_xor_b32 v10, 31, v10")
    for t in range(4):
        for hlf in range(2):
            A(f"s_waitcnt vmcnt({7 - 2*t - hlf})")
            for k in range(4):
                c = "0" if (hlf == 0 and k == 0) else f"v{6+t}"
                A(f"v_dot2_f32_bf16 v{6+t}, v{XR+8*t+4*hlf+k}, v{16+4*hlf+k}, {c}")
    A("s_waitcnt lgkmcnt(0)")
    A("s_add_u32 s40, s40, 8")
    A("s_nop 0")
    A("v_permlane32_swap_b32 v6, v7")
    A("v_permlane32_swap_b32 v8, v9")
    A("v_add_f32 v6, v6, v7")
    A("v_add_f32 v8, v8, v9")
    A("s_nop 1")
    A("v_permlane16_swap_b32 v6, v8")
    A("v_add_f32 v6, v6, v8")
    A("s_nop 1")
    A("v_add_f32_dpp v6, v6, v6 quad_perm:[1,0,3,2] row_mask:0xf bank_mask:0xf")
    A("s_nop 1")
    A("v_add_f32_dpp v6, v6, v6 quad_perm:[2,3,0,1] row_mask:0xf bank_mask:0xf")
    A("s_nop 1")
    A("v_add_f32_dpp v6, v6, v6 row_half_mirror row_mask:0xf bank_mask:0xf")
    A("s_nop 1")
    A("v_add_f32_dpp v6, v6, v6 row_mirror row_mask:0xf bank_mask:0xf")
    A("v_cvt_pk_bf16_f32 v7, v6, v6")
    A("v_and_b32 v7, 0xffff0000, v7          ; r (bf16)")
    A("v_ashrrev_i32 v6, 31, v7")
    A("v_or_b32 v6, 0x80000000, v6")
    A("v_xor_b32 v6, v6, v7")
    A("v_cmp_o_f32 vcc, v7, v7")
    A("v_and_b32 v6, 0xffff0000, v6")
    A("s_nop 0")
    A("v_cndmask_b32 v6, 0, v6, vcc")
    A("v_or_b32 v6, v10, v6")
    A("v_mov_b32 v7, v6")
    A("s_nop 1")
    A("v_permlane16_swap_b32 v6, v7")
    A("v_max_u32 v6, v6, v7")
    A("v_mov_b32 v7, v6")
    A("s_nop 1")
    A("v_permlane32_swap_b32 v6, v7")
    A("v_max_u32 v6, v6, v7")
    A("v_mov_b32 v7, s40")
    if rlag: A(f"s_sleep {rlag}")
    A("s_mov_b64 exec, 0xff")
    A("buffer_store_dwordx2 v[6:7], v5, s[32:35], s46 offen sc1")
    A("s_mov_b64 exec, -1")
    A("s_barrier                            ; B0b")
    stamp(2)
    A("s_setprio 0")
    A("s_cmp_eq_u32 s3, 4")
    A("s_cbranch_scc1 L_r4")
    A("s_endpgm")
    if align: L.append(".p2align 12")
    LB("L_cb")
    kb = cpath(2, "b", D3, D3W, BX3)
    assert ka == kb
    A("s_branch L_h")

    def idload():
        A(f"buffer_load_dwordx4 v[{IDR}:{IDR+3}], v14, s[28:31], s53 offen{xpol}")
        A(f"buffer_load_dwordx4 v[{IDR+4}:{IDR+7}], v14, s[28:31], s53 offen offset:1024{xpol}")
    def idconv():
        for r in range(IDR, IDR+8):
            A(f"v_lshlrev_b32 v16, 16, v{r}")
            A(f"v_and_b32 v17, 0xffff0000, v{r}")
            A("v_pk_fma_f32 v[16:17], v[16:17], 0, v[16:17] op_sel_hi:[1,0,1]")
            A(f"v_cvt_pk_bf16_f32 v{r}, v16, v17    ; x + x*0")
    def psetup():
        A("s_lshl_b32 s53, s2, 11")
        A("v_mul_u32_u24 v12, %d, v0            ; poll offset" % LS)
        A("s_mul_i32 s47, s22, %d" % REPS)
        A("s_add_u32 s47, s47, %d               ; this group's replica" % O_IDX)
        A("v_lshrrev_b32 v11, 3, v0")
        A("s_lshr_b32 s45, s21, 1")
        A("s_sub_u32 s46, 10, s57")
        A("s_lshl_b32 s45, s45, s46")
        A("s_lshl_b32 s48, s20, 14")
        A("s_lshl_b32 s46, s21, 11")
        A("s_add_u32 s48, s48, s46")
        A("s_add_u32 s48, s48, %d               ; own L2-local block" % O_EX1F)
        A("s_lshr_b32 s51, s2, 5")
    LB("L_r4")
    psetup()
    if early_id: idload()
    A(f"s_waitcnt vmcnt({2 if early_id else 0})")
    A("s_branch L_ip0")
    LB("L_r")
    A("v_mov_b32 v8, 0")
    A("s_waitcnt lgkmcnt(0)")
    A("s_load_dword s40, s[18:19], 0        ; epoch")
    A("s_mov_b64 s[28:29], s[4:5]")
    rsetup()
    stamp(1)
    psetup()
    A("s_mov_b32 s49, 0")
    LB("L_fwait")
    if fsleep: A(f"s_sleep {fsleep}")
    A(f"ds_read_b32 v9, v8 offset:{L_FLAG}")
    A("s_add_u32 s49, s49, 1")
    A("s_cmp_ge_u32 s49, %d" % SPIN)
    A("s_waitcnt lgkmcnt(0)")
    A("v_cmp_eq_u32 vcc, 0, v9")
    A("s_cbranch_scc1 L_fok")
    A("s_cbranch_vccnz L_fwait")
    LB("L_fok")
    if early_id: idload()
    A("s_add_u32 s40, s40, 8")
    if FS: A(f"s_sleep {FS}")
    stamp(2)
    LB("L_ip0")
    A("s_mov_b32 s49, 0")
    if early_id:
        A(f"buffer_load_dwordx2 v[8:9], v12, s[32:35], s47 offen sc1")
        A("s_waitcnt vmcnt(1)")
        idconv()
        A("s_branch L_ichk")
    LB("L_ipoll")
    if IS: A(f"s_sleep {IS}")
    A(f"buffer_load_dwordx2 v[8:9], v12, s[32:35], s47 offen sc1")
    LB("L_ichk")
    A("s_add_u32 s49, s49, 1")
    A("s_cmp_ge_u32 s49, %d" % SPIN)
    A(f"s_waitcnt vmcnt(0)")
    A(f"v_cmp_ne_u32 vcc, s40, v9")
    A("s_cbranch_scc1 L_iok")
    A("s_cbranch_vccnz L_ipoll")
    LB("L_iok")
    stamp(3)
    if stamps: A("s_mov_b32 s59, s49")
    A("v_max_u32_dpp v8, v8, v8 row_ror:8 row_mask:0xf bank_mask:0xf")
    A("v_mov_b32 v9, v8")
    A("s_mov_b32 m0, %d" % L_XS)
    A("s_cmp_eq_u32 s57, 1")
    A("v_permlane16_swap_b32 v8, v9")
    A("v_max_u32 v8, v8, v9")
    A("v_mov_b32 v9, v8")
    A("s_nop 1")
    A("v_permlane32_swap_b32 v8, v9")
    A("v_max_u32 v6, v8, v9")
    A("v_and_b32 v10, 31, v6")
    A("v_xor_b32 v10, 31, v10")
    A("v_lshl_add_u32 v10, v4, 5, v10       ; row")
    A("v_lshlrev_b32 v10, 11, v10")
    A("v_lshl_add_u32 v10, v11, 4, v10      ; + chunk*16")
    for i in range(8):
        if i == 4: A("s_cbranch_scc1 L_dmadone")
        A(f"buffer_load_dwordx4 v10, s[28:31], s45 offen{xpol} lds")
        if i < 7:
            A("s_mov_b32 m0, %d" % (L_XS + 1024*(i+1)))
            A("v_add_u32 v10, 128, v10")
    LB("L_dmadone")
    if not early_id: idload()
    A("buffer_load_dwordx4 v[24:27], v14, s[32:35], s48 offen")
    A("buffer_load_dwordx4 v[28:31], v14, s[32:35], s48 offen offset:1024")
    A("s_barrier                            ; BX")
    A("v_readlane_b32 s55, v6, s51")
    A("s_and_b32 s46, s2, 31")
    A("s_and_b32 s54, s55, 31")
    A("s_xor_b32 s54, s54, 31")
    A("s_cmp_eq_u32 s54, s46")
    A("s_cselect_b32 s56, 0x40000000, s53")
    if early_id:
        A(f"buffer_store_dwordx4 v[{IDR}:{IDR+3}], v14, s[36:39], s56 offen{outpol}")
        A(f"buffer_store_dwordx4 v[{IDR+4}:{IDR+7}], v14, s[36:39], s56 offen offset:1024{outpol}")
    A("v_lshrrev_b32 v7, 5, v0")
    A("v_bfe_u32 v8, v0, 4, 1")
    A("v_lshl_add_u32 v7, v8, 1, v7         ; e")
    A("v_lshl_add_u32 v7, v4, 2, v7         ; 4*pos + e")
    A("s_lshl_b32 s45, s51, 5")
    A("s_add_u32 s45, s45, s54")
    A("s_lshl_b32 s45, s45, 5")
    A("s_add_u32 s45, s45, s46")
    A("s_lshl_b32 s45, s45, 5")
    A("v_add_u32 v7, s45, v7")
    A("v_lshlrev_b32 v7, 1, v7")
    A("buffer_load_ushort v9, v7, s[28:31], 0 offen")
    A("s_waitcnt vmcnt(5)")
    A("s_barrier                            ; B2")
    stamp(4)
    if not early_id:
        A("s_waitcnt vmcnt(3)")
        idconv()
    A("s_lshr_b32 s44, s55, 16")
    A("s_xor_b32 s45, s44, 0xffff")
    A("s_and_b32 s44, s44, 0x7fff")
    A("s_cmp_lt_i32 s55, 0")
    A("s_cselect_b32 s44, s44, s45")
    A("s_lshl_b32 s44, s44, 16              ; r")
    A("v_mov_b32 v10, 0xbfb8aa3b")
    A("v_mul_f32 v10, s44, v10")
    A("v_exp_f32 v10, v10")
    A("s_and_b32 s41, s40, 0xff")
    A("v_add_f32 v10, 1.0, v10")
    A("v_rcp_f32 v10, v10")
    A("s_barrier                            ; B3")
    if not early_id:
        A(f"buffer_store_dwordx4 v[{IDR}:{IDR+3}], v14, s[36:39], s56 offen{outpol}")
        A(f"buffer_store_dwordx4 v[{IDR+4}:{IDR+7}], v14, s[36:39], s56 offen offset:1024{outpol}")
    A("v_cvt_pk_bf16_f32 v10, v10, v10")
    A("v_and_b32 v10, 0xffff0000, v10       ; sigmoid")
    A("s_mul_i32 s46, s2, %d" % X2S)
    A("s_add_u32 s46, s46, %d" % O_EX2)
    A("s_add_u32 s47, s46, 4096")
    A("s_mov_b32 s49, 0")
    A("s_mov_b32 s44, 0x00ff00ff")
    A("s_mov_b32 s45, 0x00ff00ff")
    A("s_waitcnt vmcnt(0)")
    A("v_lshlrev_b32 v9, 16, v9             ; x")
    if mx: A("v_mov_b32 v13, 0")
    A("s_barrier                            ; B4")
    if not b4: A("s_barrier")
    stamp(5)
    if x2d: A(f"s_sleep {x2d}")
    if mx:
        MS = 76 if stamps else 60
        def ld(i):
            so = "s46" if i < 4 else "s47"
            A(f"buffer_load_dwordx4 v[{32+4*i}:{35+4*i}], v14, s[32:35], {so} offen offset:{(i%4)*1024} sc1")
        def chk(i):
            b = 32 + 4*i
            for r in range(b, b+4): A(f"v_xor_b32 v{r}, s41, v{r}")
            A(f"v_or3_b32 v15, v{b}, v{b+1}, v{b+2}")
            A(f"v_or_b32 v15, v15, v{b+3}")
            A(f"v_cmp_ne_u32_sdwa s[{MS+2*i}:{MS+2*i+1}], v15, v13 src0_sel:BYTE_0 src1_sel:DWORD")
        def anyleft():
            A(f"s_or_b64 s[42:43], s[{MS}:{MS+1}], s[{MS+2}:{MS+3}]")
            for i in range(2, 7): A(f"s_or_b64 s[42:43], s[42:43], s[{MS+2*i}:{MS+2*i+1}]")
        for i in range(7): ld(i)
        A("s_mov_b32 s49, 1")
        for i in range(7):
            A(f"s_waitcnt vmcnt({6-i})")
            chk(i)
            if i == 1: A("v_pk_add_f32 v[16:17], v[32:33], v[36:37]"); A("v_pk_add_f32 v[18:19], v[34:35], v[38:39]")
            if i >= 2: A(f"v_pk_add_f32 v[16:17], v[16:17], v[{32+4*i}:{33+4*i}]"); A(f"v_pk_add_f32 v[18:19], v[18:19], v[{34+4*i}:{35+4*i}]")
        anyleft()
        A("s_cbranch_scc0 L_x2ok")
        LB("L_x2poll")
        if x2s: A(f"s_sleep {x2s}")
        for i in range(7):
            A(f"s_mov_b64 exec, s[{MS+2*i}:{MS+2*i+1}]")
            A(f"s_cbranch_execz L_x2l{i}")
            ld(i)
            LB(f"L_x2l{i}")
        A("s_add_u32 s49, s49, 1")
        A("s_waitcnt vmcnt(0)")
        for i in range(7):
            A(f"s_mov_b64 exec, s[{MS+2*i}:{MS+2*i+1}]")
            A(f"s_cbranch_execz L_x2c{i}")
            chk(i)
            LB(f"L_x2c{i}")
        A("s_mov_b64 exec, -1")
        anyleft()
        A("s_cbranch_scc0 L_x2sum")
        A("s_cmp_lt_u32 s49, %d" % SPIN)
        A("s_cbranch_scc1 L_x2poll")
        LB("L_x2sum")
        A("v_pk_add_f32 v[16:17], v[32:33], v[36:37]"); A("v_pk_add_f32 v[18:19], v[34:35], v[38:39]")
        for i in range(2, 7):
            A(f"v_pk_add_f32 v[16:17], v[16:17], v[{32+4*i}:{33+4*i}]"); A(f"v_pk_add_f32 v[18:19], v[18:19], v[{34+4*i}:{35+4*i}]")
        A("s_nop 0")
    else:
        LB("L_x2poll")
        for i in range(7):
            so = "s46" if i < 4 else "s47"
            A(f"buffer_load_dwordx4 v[{32+4*i}:{35+4*i}], v14, s[32:35], {so} offen offset:{(i%4)*1024} sc1")
        A("s_add_u32 s49, s49, 1")
        for i in range(7):
            A(f"s_waitcnt vmcnt({6-i})")
            b = 32 + 4*i
            for r in range(b, b+4): A(f"v_xor_b32 v{r}, s41, v{r}")
            if i == 0:
                A(f"v_or3_b32 v15, v{b}, v{b+1}, v{b+2}")
                A(f"v_or_b32 v15, v15, v{b+3}")
            else:
                A(f"v_or3_b32 v15, v15, v{b}, v{b+1}")
                A(f"v_or3_b32 v15, v15, v{b+2}, v{b+3}")
                src = 32 if i == 1 else 16
                A(f"v_pk_add_f32 v[16:17], v[{src}:{src+1}], v[{b}:{b+1}]")
                A(f"v_pk_add_f32 v[18:19], v[{src+2}:{src+3}], v[{b+2}:{b+3}]")
        A("v_and_b32 v15, 0xff, v15")
        A("v_cmp_ne_u32 vcc, 0, v15")
        A("s_cbranch_vccz L_x2ok")
        if x2s: A(f"s_sleep {x2s}")
        A("s_cmp_lt_u32 s49, %d" % SPIN)
        A("s_cbranch_scc1 L_x2poll")
    LB("L_x2ok")
    stamp(6)
    A("v_permlane32_swap_b32 v16, v17")
    A("v_permlane32_swap_b32 v18, v19")
    A("v_add_f32 v16, v16, v17")
    A("v_add_f32 v18, v18, v19")
    A("s_nop 1")
    A("v_permlane16_swap_b32 v16, v18")
    A("v_add_f32 v16, v16, v18")
    A("s_nop 1")
    A("v_add_f32_dpp v16, v16, v16 row_ror:8 row_mask:0xf bank_mask:0xf")
    A("s_mov_b64 exec, s[44:45]")
    A("v_cvt_pk_bf16_f32 v16, v16, v16")
    A("v_and_b32 v16, 0xffff0000, v16       ; y")
    A("v_mul_f32 v16, v16, v10")
    A("v_cvt_pk_bf16_f32 v16, v16, v16")
    A("v_and_b32 v16, 0xffff0000, v16       ; y*sigmoid")
    A("v_fma_f32 v16, v9, 0, v16            ; upd = x*0 + y")
    A("v_add_f32 v16, v9, v16")
    A("v_cvt_pk_bf16_f32 v16, v16, v16")
    A(f"buffer_store_short v16, v7, s[36:39], 0 offen{finpol}")
    A("s_cmp_lg_u32 s2, 0")
    A("s_cbranch_scc1 L_noep")
    A("v_mov_b32 v18, s40")
    A("v_mov_b32 v17, 0")
    A("s_mov_b64 exec, 1")
    A("buffer_store_dword v18, v17, s[32:35], 0 offen sc1")
    LB("L_noep")
    stamp(7)
    LB("L_fin")
    if stamps:
        import diag
        if dg: diag.epilogue(A, LB, dg, nwg=256, invalid=())
        elif gamp: diag.gamp(A, LB, gamp)
        else:
            A("s_barrier")
            diag.dump(A, LB)
    LB("L_end")
    A("s_endpgm")
    L.extend(slow)
    body = "\n".join(L)
    pad = ".p2align 12\n.fill 832, 4, 0xbf800000            ; the kernel starts a 4 KB page (instruction prefetch stops at page ends)\n" if align else ""
    return f"""{HEAD}; @launch grid=(256,1,1) block=(384,1,1) lds={LDS_BYTES}
{DOC}.amdgcn_target "amdgcn-amd-amdhsa--gfx950"
.text
.globl {KN}
{pad}.p2align 8
.type {KN},@function
{KN}:
{body}
.section .rodata,"a"
.p2align 6
.amdhsa_kernel {KN}
  .amdhsa_next_free_vgpr 160
  .amdhsa_next_free_sgpr 96
  .amdhsa_accum_offset 160
  .amdhsa_group_segment_fixed_size 0
  .amdhsa_kernarg_size 64
  .amdhsa_user_sgpr_count 2
  .amdhsa_user_sgpr_kernarg_segment_ptr 1
  .amdhsa_system_sgpr_workgroup_id_x 1
  .amdhsa_float_denorm_mode_32 3
.end_amdhsa_kernel
"""
if __name__ == "__main__":
    import sys, json
    kw = json.loads(sys.argv[2]) if len(sys.argv) > 2 else {}
    open(sys.argv[1] if len(sys.argv) > 1 else "standalone__moe_arch_mod__sampling.s", "w").write(gen(**kw))
```

```python
KN = "standalone__moe_arch_mod__sampling_kernel"
HEAD = open("standalone__moe_arch_mod__sampling.s.ref").read().split("; Override launch")[0]

O_IDX = 0x1000
O_EX1F = 0x20000
O_EX2 = 0x100000
O_EX1 = 0x300000
WS_REC = 0x500000
L_XS = 0
L_RED = 8192
L_HB = 16384
L_KEY = 17408
L_FLAG = 17408 + 32
LDS_BYTES = 17408 + 64
SPIN = 40000

DOC = """; MoD sampling block: route (argmax of x.w_r per batch), SwiGLU FFN on the 8 selected rows, residual update.
"""

def gen(pol="nt", xpol="", D=10, DI=6, D3=8, D3W=12, BX=4, BX3=8, DX=32, LS=16, NF=12, PK=3, FS=38, fsleep=1,
        outpol="sc1", finpol="", x1pol="", x2d=27, PERM=(7,0,1,2,4,5,6,3), align=True, prog=True, early_id=True,
        stamps=False, dg=None, gamp=None, cst1=True, lag0=0, MAP="B", DUP0=True, X2S=8192, nob5=False, mx=False, x2s=0, b4=True, rlag=0, IS=0, ipf=0):
    if gamp or dg: stamps = True
    L = []
    def A(s): L.append("  " + s)
    def LB(s): L.append(s + ":")
    def stamp(i):
        if stamps: A(f"s_memrealtime s[{60+2*i}:{61+2*i}]")
    sp = lambda p: (" " + p) if p else ""
    pol, xpol, outpol, finpol, x1pol = map(sp, (pol, xpol, outpol, finpol, x1pol))
    REPS = 64 * LS
    XR = 80
    RAW = 16; FR = 80; XB = 96; ACC = 112; W2 = 128
    F2 = 40; HA = 72
    IDR = 40
    def raw(s, i): return RAW + 16*s + 2*i
    def frag(s, j): return (FR if s == 0 else RAW + 16*(s-1)) + 4*j
    def raw2(s, i): return W2 + 16*s + 2*i
    def frag2(s, j): return F2 + 16*s + 4*j
    def perm_pair(rawf, fragf, s, p):
        for e in range(2):
            A(f"v_perm_b32 v{fragf(s,2*e)+p}, v{rawf(s,2*p+1)+e}, v{rawf(s,2*p)+e}, s42")
            A(f"v_perm_b32 v{fragf(s,2*e+1)+p}, v{rawf(s,2*p+1)+e}, v{rawf(s,2*p)+e}, s43")
    def perms(rawf, fragf, s):
        for p in range(4): perm_pair(rawf, fragf, s, p)
    def w1load(n):
        s, i = divmod(n, 8)
        A(f"buffer_load_dwordx2 v[{raw(s,i)}:{raw(s,i)+1}], v3, s[24:27], s44 offen{pol}")
        A("s_addk_i32 s44, 7168" if i < 7 else "s_add_u32 s44, s44, %d" % (25*7168))
    def w2load(n):
        s, i = divmod(n, 8)
        p, b = divmod(i, 2)
        row = 2*s + (p >> 1) + 8*(p & 1) + 4*b
        A("s_add_u32 s47, s53, %d" % (row*2048))
        A(f"buffer_load_dwordx2 v[{raw2(s,i)}:{raw2(s,i)+1}], v10, s[28:31], s47 offen{pol}")

    if lag0:
        A("s_and_b32 s3, s2, 7")
        A("s_cmp_lg_u32 s3, 0")
        A("s_cbranch_scc1 L_nolag")
        A(f"s_sleep {lag0}")
        LB("L_nolag")
    stamp(0)
    A("s_cmp_ge_u32 s2, 256")
    A("s_cbranch_scc1 L_exit")
    A("s_load_dwordx16 s[4:19], s[0:1], 0")
    A("v_lshrrev_b32 v1, 6, v0")
    A("v_and_b32 v0, 63, v0                 ; lane")
    A("v_readfirstlane_b32 s3, v1           ; wave")
    A("s_lshl_b32 s22, s2, 2")
    A("s_lshr_b32 s22, 0x%x, s22" % sum(v << (4*i) for i, v in enumerate(PERM)))
    A("s_and_b32 s22, s22, 7")
    A("s_lshr_b32 s23, s2, 3")
    A("s_lshr_b32 s44, s23, 2")
    A("s_mul_i32 s45, s22, 6")
    A("s_add_u32 s45, s45, s44")
    A("s_add_u32 s44, s45, 4")
    A("s_mul_i32 s44, s44, 37")
    A("s_lshr_b32 s44, s44, 8")
    A("s_add_u32 s20, s45, s44")
    A("s_lshl_b32 s44, s22, 3")
    A("s_add_u32 s44, s44, 3")
    A("s_min_u32 s44, s44, 55")
    A("s_cmp_ge_u32 s23, 24")
    A("s_cselect_b32 s20, s44, s20")
    A("s_cselect_b32 s57, 1, 0")
    A("s_cselect_b32 s21, 7, 3")
    A("s_and_b32 s21, s21, s23              ; part")
    if stamps: A("s_mov_b32 s58, s57")
    A("s_mov_b32 s27, 0x20000")
    A("s_cmp_lt_u32 s3, 4")
    A("s_cbranch_scc1 L_c")
    A("s_mov_b32 s30, 524288")
    A("s_mov_b32 s31, 0x20000")
    A("v_lshlrev_b32 v14, 4, v0             ; lane*16")
    A("s_cmp_eq_u32 s57, 1")
    A("s_cbranch_scc1 L_rt")
    A("s_cmp_eq_u32 s3, 4")
    A("s_cbranch_scc1 L_r")
    LB("L_exit")
    A("s_endpgm")
    LB("L_rt")
    A("s_setprio 3")
    A("s_and_b32 s52, s22, 3")
    A("s_lshl_b32 s52, s52, 3")
    A("s_add_u32 s52, s52, s21")
    A("s_lshl_b32 s52, s52, 1")
    A("s_add_u32 s52, s52, s3")
    A("s_sub_u32 s52, s52, 4")
    A("s_lshl_b32 s44, s52, 13")
    A("s_add_u32 s45, s44, 4096")
    A("s_movk_i32 s26, 2048")
    A("s_waitcnt lgkmcnt(0)")
    A("s_mov_b64 s[28:29], s[4:5]")
    A("s_mov_b64 s[24:25], s[6:7]")
    A("s_load_dword s40, s[18:19], 0        ; epoch")
    A(f"buffer_load_dwordx4 v[16:19], v14, s[24:27], 0 offen")
    A(f"buffer_load_dwordx4 v[20:23], v14, s[24:27], 0 offen offset:1024")
    for i in range(8):
        A(f"buffer_load_dwordx4 v[{XR+4*i}:{XR+4*i+3}], v14, s[28:31], {'s44' if i < 4 else 's45'} offen offset:{(i%4)*1024}{xpol}")
    A("s_barrier                            ; B0")
    A("s_branch L_route")
    LB("L_c")
    A("v_mov_b32 v4, 0")
    A(f"ds_write_b32 v4, v4 offset:{L_FLAG}")
    A("s_mov_b32 s26, 7340032")
    A("v_lshrrev_b32 v1, 4, v0              ; g")
    A("v_and_b32 v2, 15, v0                 ; n")
    A("v_mul_u32_u24 v3, %d, v1" % (8*7168))
    A("v_lshl_add_u32 v3, v2, 3, v3         ; voffset")
    A("s_lshr_b32 s44, s21, 1")
    A("s_lshl_b32 s44, s44, 2")
    A("s_add_u32 s44, s44, s3")
    A("s_lshr_b32 s45, %d, s57" % (128*7168))
    A("s_mul_i32 s44, s44, s45")
    A("s_lshl_b32 s45, s20, 7")
    A("s_add_u32 s44, s44, s45              ; soffset")
    A("s_bitcmp1_b32 s21, 0")
    A("s_waitcnt lgkmcnt(0)")
    A("s_cselect_b64 s[24:25], s[10:11], s[8:9]")
    A("s_cmp_eq_u32 s57, 0")
    A("s_cbranch_scc1 L_nb0")
    A("s_barrier")
    LB("L_nb0")
    if not cst1: stamp(1)
    for n in range(DI): w1load(n)
    A("s_load_dword s40, s[18:19], 0        ; epoch")
    if stamps:
        for i in range(2, 8): A(f"s_mov_b32 s{60+2*i}, 0")
        A("s_getreg_b32 s59, hwreg(HW_REG_HW_ID)")
    A("s_mov_b64 s[32:33], s[18:19]")
    A("s_mov_b32 s34, %d" % WS_REC)
    A("s_mov_b32 s35, 0x20000")
    A("s_mov_b32 s42, 0x05040100")
    A("s_mov_b32 s43, 0x07060302")
    A("v_and_b32 v8, 7, v0")
    A("v_lshl_add_u32 v13, v1, 3, v8")
    A("v_lshlrev_b32 v13, 4, v13")
    A("s_lshl_b32 s45, s3, 11")
    A("v_add_u32 v4, s45, v13")
    A("s_lshr_b32 s45, s45, s57")
    A("v_add_u32 v5, s45, v13")
    A("v_lshlrev_b32 v6, 3, v0")
    A("s_lshl_b32 s45, s3, 9")
    A("v_add_u32 v6, s45, v6                ; w*512 + lane*8")
    A("v_lshrrev_b32 v7, 1, v0")
    A("v_lshlrev_b32 v7, 4, v7")
    A("v_and_b32 v9, 1, v0")
    A("v_lshl_add_u32 v7, v9, 2, v7")
    A("s_lshr_b32 s45, s3, 1")
    A("s_lshl_b32 s45, s45, 9")
    A("s_and_b32 s46, s3, 1")
    A("s_lshl_b32 s46, s46, 3")
    A("s_add_u32 s45, s45, s46")
    A("v_add_u32 v7, s45, v7")
    A("s_mov_b64 s[28:29], s[12:13]")
    A("s_mov_b32 s30, 7340032")
    A("s_mov_b32 s31, 0x20000")
    A("v_lshlrev_b32 v10, 15, v1            ; g*16*2048")
    A("v_lshl_add_u32 v10, v2, 3, v10")
    A("v_lshrrev_b32 v11, 3, v2")
    A("v_lshl_add_u32 v11, v1, 7, v11       ; 4g*32 + (n>>3)")
    A("v_mul_u32_u24 v11, %d, v11" % X2S)
    A("v_lshl_add_u32 v11, v8, 4, v11       ; + (n&7)*16")
    A("s_lshl_b32 s53, s21, 2")
    A("s_lshr_b32 s53, s53, s57")
    A("s_add_u32 s53, s53, s3")
    A("s_lshr_b32 s45, s3, 1")
    A("s_and_b32 s45, s45, s57")
    A("s_lshl_b32 s45, s45, 30")
    A("v_or_b32 v10, s45, v10")
    A("v_or_b32 v11, s45, v11")
    A("s_mul_i32 s52, s53, %d" % (2*X2S))
    A("s_lshl_b32 s46, s20, 7")
    A("s_add_u32 s52, s52, s46")
    A("s_add_u32 s52, s52, %d" % O_EX2)
    A("s_lshl_b32 s53, s53, 7")
    A("s_lshl_b32 s46, s20, 17              ; tile*64*2048")
    A("s_add_u32 s53, s53, s46")
    A("s_lshl_b32 s45, s20, 14")
    A("s_lshl_b32 s46, s21, 11")
    A("s_add_u32 s45, s45, %d               ; group base" % O_EX1F)
    A("s_add_u32 s46, s46, s45")
    A("s_mov_b32 s48, 0xffffff00")
    A("s_mov_b32 s50, 0xbfb8aa3b            ; -log2(e)")
    A("s_mov_b32 s51, 0xbfb8aa3b")
    A("s_mov_b32 s49, 0")
    A("s_getreg_b32 s54, hwreg(HW_REG_XCC_ID, 0, 3)")
    A("v_mov_b32 v12, 1")
    A("s_cmp_eq_u32 s57, 1")
    A("s_cbranch_scc1 L_cb")

    slow = []
    def cpath(NS, sfx, DD, DW, bx):
        NL = 8*NS
        done = 0
        landed = 0
        if NS == 2: A("s_barrier")
        for n in range(DI, NL + 16):
            dn = min(DD, DI + (n - DI + 1) // 2) if n < NL else DW
            if n >= NL + bx:
                if n == NL + bx: A("s_barrier")
                dn = DX
            if n - dn + 1 > landed:
                A(f"s_waitcnt vmcnt({dn-1})")
                landed = n - dn + 1
            if n == DI and cst1: stamp(1)
            if n < NL: w1load(n)
            else: w2load(n - NL)
            if n == DI and NS == 4:
                A(f"ds_write_b32 v12, v12 offset:{L_FLAG - 1}")
            if n == NL - 1: stamp(2)
            while done < NS and 8*done + 8 <= landed:
                perms(raw, frag, done); done += 1
        A("s_waitcnt lgkmcnt(0)")
        A("s_add_u32 s40, s40, 8                ; tag32")
        A("s_and_b32 s41, s40, 0xff")
        A("s_and_b32 s55, s40, 0xf8")
        A("s_or_b32 s54, s54, s55")
        A("v_mov_b32 v9, s41")
        A("v_mov_b32 v12, s54")
        while done < NS:
            A(f"s_waitcnt vmcnt({NL + 16 - 8*done - 8})")
            perms(raw, frag, done); done += 1
        A("s_barrier")
        stamp(3)
        for s in range(NS):
            A(f"ds_read_b128 v[{XB+4*s}:{XB+4*s+3}], v5 offset:{L_XS + 512*s}")
        for s in range(NS):
            A(f"s_waitcnt lgkmcnt({NS-1-s})")
            for j in range(4):
                c = "0" if s == 0 else f"v[{ACC+4*j}:{ACC+4*j+3}]"
                A(f"v_mfma_f32_16x16x32_bf16 v[{ACC+4*j}:{ACC+4*j+3}], v[{frag(s,j)}:{frag(s,j)+3}], v[{XB+4*s}:{XB+4*s+3}], {c}")
        A("s_mov_b32 exec_lo, 0x00ff00ff")
        A("s_mov_b32 exec_hi, 0x00ff00ff")
        A("s_nop 2")
        for j in range(4):
            A(f"ds_write_b128 v4, v[{ACC+4*j}:{ACC+4*j+3}] offset:{L_RED + 512*j}")
        A("s_mov_b64 exec, -1")
        A("s_waitcnt lgkmcnt(0)")
        A("s_barrier                            ; B3")
        for w in range(2):
            A(f"ds_read2st64_b64 v[{16+4*w}:{19+4*w}], v6 offset0:{(L_RED + 4096*w)//512} offset1:{(L_RED + 4096*w + 2048)//512}")
        A("s_waitcnt lgkmcnt(1)")
        A("v_pk_add_f32 v[16:17], v[16:17], v[18:19]")
        A("s_waitcnt lgkmcnt(0)")
        A("v_pk_add_f32 v[20:21], v[20:21], v[22:23]")
        A("v_pk_add_f32 v[16:17], v[16:17], v[20:21]")
        A("v_and_or_b32 v16, v16, s48, v12")
        A("v_and_or_b32 v17, v17, s48, v12")
        A(f"buffer_store_dwordx2 v[16:17], v6, s[32:35], s46 offen{x1pol}")
        stamp(4)
        NB = 4 if NS == 4 else 8
        pairs = [(s, p) for s in range(2) for p in range(4)]
        k = 0
        A("s_waitcnt vmcnt(9)")
        while k < 4: perm_pair(raw2, frag2, *pairs[k]); k += 1
        if prog:
            while 17 - 2*(k+1) >= PK:
                A(f"s_waitcnt vmcnt({17 - 2*(k+1)})")
                perm_pair(raw2, frag2, *pairs[k]); k += 1
        if not prog or 17 - 2*k > PK: A(f"s_waitcnt vmcnt({PK})")
        def polls():
            for b in range(NB):
                if b and b % 2 == 0: A(f"s_add_u32 s47, s45, {b*2048}")
                A(f"buffer_load_dwordx2 v[{24+2*b}:{25+2*b}], v6, s[32:35], {'s45' if b < 2 else 's47'} offen offset:{(b%2)*2048} sc1")
        if prog:
            polls()
            while k < 8:
                A(f"s_waitcnt vmcnt({NB + 17 - 2*(k+1)})")
                perm_pair(raw2, frag2, *pairs[k]); k += 1
            A(f"s_branch L_x1chk{sfx}")
        LB("L_x1poll" + sfx)
        polls()
        LB("L_x1chk" + sfx)
        A("s_add_u32 s49, s49, 1")
        A("s_waitcnt vmcnt(0)")
        for r in range(24, 24+2*NB): A(f"v_xor_b32 v{r}, s54, v{r}")
        A("v_or3_b32 v8, v24, v25, v26")
        for r in range(27, 24+2*NB-1, 2): A(f"v_or3_b32 v8, v8, v{r}, v{r+1}")
        A(f"v_or_b32 v8, v8, v{24+2*NB-1}")
        A("v_and_b32 v8, 0xff, v8")
        A("v_cmp_ne_u32 vcc, 0, v8")
        A("s_cbranch_vccnz L_x1no" + sfx)
        LB("L_x1ok" + sfx)
        stamp(5)
        if NB == 8:
            A("v_pk_add_f32 v[24:25], v[24:25], v[32:33]")
            A("v_pk_add_f32 v[26:27], v[26:27], v[34:35]")
            A("v_pk_add_f32 v[28:29], v[28:29], v[36:37]")
            A("v_pk_add_f32 v[30:31], v[30:31], v[38:39]")
        S = []
        def B(s): S.append("  " + s)
        S.append("L_x1no" + sfx + ":")
        B(f"s_cmp_lt_u32 s49, {NF}")
        B("s_cbranch_scc1 L_x1poll" + sfx)
        B("v_lshlrev_b32 v8, 1, v6")
        B("s_lshl_b32 s56, s20, 15")
        B("s_add_u32 s56, s56, %d" % O_EX1)
        B(f"s_cmp_lg_u32 s49, {NF}")
        B("s_cbranch_scc1 L_x1ns" + sfx)
        B("v_and_b32 v96, s48, v16")
        B("v_and_b32 v97, s48, v17")
        B("v_mov_b32 v98, s40")
        B("v_mov_b32 v99, s40")
        B("s_lshl_b32 s47, s21, 12")
        B("s_add_u32 s47, s47, s56")
        B("buffer_store_dwordx4 v[96:99], v8, s[32:35], s47 offen sc1")
        B("s_waitcnt vmcnt(0)")
        S.append("L_x1ns" + sfx + ":")
        for b in range(NB):
            B(f"buffer_load_dwordx4 v[{96+4*b}:{99+4*b}], v8, s[32:35], s56 offen sc1")
            B("s_add_u32 s56, s56, 4096")
        B("s_waitcnt vmcnt(0)")
        B("v_mov_b32 v8, 0")
        for b in range(NB):
            B(f"v_xor_b32 v{98+4*b}, s40, v{98+4*b}")
            B(f"v_xor_b32 v{99+4*b}, s40, v{99+4*b}")
            B(f"v_or3_b32 v8, v8, v{98+4*b}, v{99+4*b}")
            B(f"v_mov_b32 v{24+2*b}, v{96+4*b}")
            B(f"v_mov_b32 v{25+2*b}, v{97+4*b}")
        B("v_cmp_ne_u32 vcc, 0, v8")
        B("s_cbranch_vccz L_x1ok" + sfx)
        B("s_cmp_lt_u32 s49, %d" % SPIN)
        B("s_cbranch_scc1 L_x1poll" + sfx)
        B("s_branch L_x1ok" + sfx)
        slow.extend(S)
        return k
    ka = cpath(4, "a", D, D, BX)
    LB("L_h")
    A("v_pk_add_f32 v[24:25], v[24:25], v[28:29]   ; gate")
    A("v_pk_add_f32 v[26:27], v[26:27], v[30:31]   ; up")
    A("v_cvt_pk_bf16_f32 v8, v24, v25")
    A("v_cvt_pk_bf16_f32 v12, v26, v27")
    A("v_lshlrev_b32 v18, 16, v8")
    A("v_and_b32 v19, 0xffff0000, v8")
    A("v_pk_mul_f32 v[20:21], v[18:19], s[50:51]")
    A("v_exp_f32 v20, v20")
    A("v_exp_f32 v21, v21")
    A("v_lshlrev_b32 v14, 16, v12")
    A("v_pk_add_f32 v[20:21], v[20:21], 1.0 op_sel_hi:[1,0]")
    A("v_rcp_f32 v20, v20")
    A("v_rcp_f32 v21, v21")
    A("v_and_b32 v15, 0xffff0000, v12")
    A("v_pk_mul_f32 v[18:19], v[18:19], v[20:21]")
    A("v_cvt_pk_bf16_f32 v8, v18, v19        ; silu")
    A("v_lshlrev_b32 v18, 16, v8")
    A("v_and_b32 v19, 0xffff0000, v8")
    A("v_pk_mul_f32 v[18:19], v[18:19], v[14:15]")
    A("v_cvt_pk_bf16_f32 v8, v18, v19        ; h")
    A(f"ds_write_b32 v7, v8 offset:{L_HB}")
    for k in range(ka, 8): perm_pair(raw2, frag2, *divmod(k, 4))
    A("s_waitcnt lgkmcnt(0)")
    A("s_barrier                            ; B4")
    for s in range(2):
        A(f"ds_read_b128 v[{HA+4*s}:{HA+4*s+3}], v13 offset:{L_HB + 512*s}")
    for s in range(2):
        A(f"s_waitcnt lgkmcnt({1-s})")
        for j in range(4):
            c = "0" if s == 0 else f"v[{ACC+4*j}:{ACC+4*j+3}]"
            A(f"v_mfma_f32_16x16x32_bf16 v[{ACC+4*j}:{ACC+4*j+3}], v[{HA+4*s}:{HA+4*s+3}], v[{frag2(s,j)}:{frag2(s,j)+3}], {c}")
    A("s_mov_b32 exec_lo, -1")
    A("s_mov_b32 exec_hi, 0")
    A("s_nop 2")
    for r in range(4):
        for j in range(4):
            A(f"v_and_or_b32 v{20+4*r+j}, v{ACC+4*j+r}, s48, v9")
        A(f"buffer_store_dwordx4 v[{20+4*r}:{23+4*r}], v11, s[32:35], s52 offen sc1")
        if r < 3: A("s_add_u32 s52, s52, %d" % (32*X2S))
    stamp(6)
    if not (nob5 or b4): A("s_waitcnt vmcnt(0)")
    if not b4: A("s_barrier                            ; B5")
    stamp(7)
    if stamps: A("s_branch L_fin")
    else: A("s_endpgm")

    def rsetup():
        A("s_mov_b64 s[32:33], s[18:19]")
        A("s_mov_b32 s34, %d" % WS_REC)
        A("s_mov_b32 s35, 0x20000")
        A("s_mov_b64 s[36:37], s[14:15]")
        A("s_mov_b32 s38, 524288")
        A("s_mov_b32 s39, 0x20000")
        A("v_and_b32 v4, 7, v0")
        if stamps:
            for i in range(2, 8): A(f"s_mov_b32 s{60+2*i}, 0")
            A("s_mov_b32 s59, 0")
            A("s_mov_b32 s49, 0")
    LB("L_route")
    stamp(1)
    rsetup()
    A("s_and_b32 s45, s52, 7")
    A("s_lshl_b32 s46, s45, 3")
    A("s_lshr_b32 s52, s52, 3               ; batch")
    A("s_add_u32 s46, s46, s52")
    A("s_mul_i32 s46, s46, %d" % LS)
    A("s_add_u32 s46, s46, %d               ; slot" % O_IDX)
    A("s_lshl_b32 s45, s45, 2")
    A("v_mul_u32_u24 v5, %d, v0             ; replica offset" % REPS)
    if ipf:
        A("s_mov_b64 exec, 0xff")
        A("buffer_load_dword v13, v5, s[32:35], s46 offen sc1")
        A("s_mov_b64 exec, -1")
    A("v_lshrrev_b32 v10, 5, v0")
    A("v_bfe_u32 v11, v0, 4, 1")
    A("v_lshl_add_u32 v10, v11, 1, v10")
    A("v_add_u32 v10, s45, v10")
    A("v_xor_b32 v10, 31, v10")
    for t in range(4):
        for hlf in range(2):
            A(f"s_waitcnt vmcnt({7 - 2*t - hlf + (1 if ipf else 0)})")
            for k in range(4):
                c = "0" if (hlf == 0 and k == 0) else f"v{6+t}"
                A(f"v_dot2_f32_bf16 v{6+t}, v{XR+8*t+4*hlf+k}, v{16+4*hlf+k}, {c}")
    A("s_waitcnt lgkmcnt(0)")
    A("s_add_u32 s40, s40, 8")
    A("s_nop 0")
    A("v_permlane32_swap_b32 v6, v7")
    A("v_permlane32_swap_b32 v8, v9")
    A("v_add_f32 v6, v6, v7")
    A("v_add_f32 v8, v8, v9")
    A("s_nop 1")
    A("v_permlane16_swap_b32 v6, v8")
    A("v_add_f32 v6, v6, v8")
    A("s_nop 1")
    A("v_add_f32_dpp v6, v6, v6 quad_perm:[1,0,3,2] row_mask:0xf bank_mask:0xf")
    A("s_nop 1")
    A("v_add_f32_dpp v6, v6, v6 quad_perm:[2,3,0,1] row_mask:0xf bank_mask:0xf")
    A("s_nop 1")
    A("v_add_f32_dpp v6, v6, v6 row_half_mirror row_mask:0xf bank_mask:0xf")
    A("s_nop 1")
    A("v_add_f32_dpp v6, v6, v6 row_mirror row_mask:0xf bank_mask:0xf")
    A("v_cvt_pk_bf16_f32 v7, v6, v6")
    A("v_and_b32 v7, 0xffff0000, v7          ; r (bf16)")
    A("v_ashrrev_i32 v6, 31, v7")
    A("v_or_b32 v6, 0x80000000, v6")
    A("v_xor_b32 v6, v6, v7")
    A("v_cmp_o_f32 vcc, v7, v7")
    A("v_and_b32 v6, 0xffff0000, v6")
    A("s_nop 0")
    A("v_cndmask_b32 v6, 0, v6, vcc")
    A("v_or_b32 v6, v10, v6")
    A("v_mov_b32 v7, v6")
    A("s_nop 1")
    A("v_permlane16_swap_b32 v6, v7")
    A("v_max_u32 v6, v6, v7")
    A("v_mov_b32 v7, v6")
    A("s_nop 1")
    A("v_permlane32_swap_b32 v6, v7")
    A("v_max_u32 v6, v6, v7")
    A("v_mov_b32 v7, s40")
    if rlag: A(f"s_sleep {rlag}")
    A("s_mov_b64 exec, 0xff")
    A("buffer_store_dwordx2 v[6:7], v5, s[32:35], s46 offen sc1")
    A("s_mov_b64 exec, -1")
    A("s_barrier                            ; B0b")
    stamp(2)
    A("s_setprio 0")
    A("s_cmp_eq_u32 s3, 4")
    A("s_cbranch_scc1 L_r4")
    A("s_endpgm")
    if align: L.append(".p2align 12")
    LB("L_cb")
    kb = cpath(2, "b", D3, D3W, BX3)
    assert ka == kb
    A("s_branch L_h")

    def idload():
        A(f"buffer_load_dwordx4 v[{IDR}:{IDR+3}], v14, s[28:31], s53 offen{xpol}")
        A(f"buffer_load_dwordx4 v[{IDR+4}:{IDR+7}], v14, s[28:31], s53 offen offset:1024{xpol}")
    def idconv():
        for r in range(IDR, IDR+8):
            A(f"v_lshlrev_b32 v16, 16, v{r}")
            A(f"v_and_b32 v17, 0xffff0000, v{r}")
            A("v_pk_fma_f32 v[16:17], v[16:17], 0, v[16:17] op_sel_hi:[1,0,1]")
            A(f"v_cvt_pk_bf16_f32 v{r}, v16, v17    ; x + x*0")
    def psetup():
        A("s_lshl_b32 s53, s2, 11")
        A("v_mul_u32_u24 v12, %d, v0            ; poll offset" % LS)
        A("s_mul_i32 s47, s22, %d" % REPS)
        A("s_add_u32 s47, s47, %d               ; this group's replica" % O_IDX)
        A("v_lshrrev_b32 v11, 3, v0")
        A("s_lshr_b32 s45, s21, 1")
        A("s_sub_u32 s46, 10, s57")
        A("s_lshl_b32 s45, s45, s46")
        A("s_lshl_b32 s48, s20, 14")
        A("s_lshl_b32 s46, s21, 11")
        A("s_add_u32 s48, s48, s46")
        A("s_add_u32 s48, s48, %d               ; own L2-local block" % O_EX1F)
        A("s_lshr_b32 s51, s2, 5")
    LB("L_r4")
    psetup()
    if early_id: idload()
    A(f"s_waitcnt vmcnt({2 if early_id else 0})")
    A("s_branch L_ip0")
    LB("L_r")
    A("v_mov_b32 v8, 0")
    A("s_waitcnt lgkmcnt(0)")
    A("s_load_dword s40, s[18:19], 0        ; epoch")
    A("s_mov_b64 s[28:29], s[4:5]")
    rsetup()
    stamp(1)
    psetup()
    A("s_mov_b32 s49, 0")
    LB("L_fwait")
    if fsleep: A(f"s_sleep {fsleep}")
    A(f"ds_read_b32 v9, v8 offset:{L_FLAG}")
    A("s_add_u32 s49, s49, 1")
    A("s_cmp_ge_u32 s49, %d" % SPIN)
    A("s_waitcnt lgkmcnt(0)")
    A("v_cmp_eq_u32 vcc, 0, v9")
    A("s_cbranch_scc1 L_fok")
    A("s_cbranch_vccnz L_fwait")
    LB("L_fok")
    if early_id: idload()
    A("s_add_u32 s40, s40, 8")
    if FS: A(f"s_sleep {FS}")
    stamp(2)
    LB("L_ip0")
    A("s_mov_b32 s49, 0")
    if early_id:
        A(f"buffer_load_dwordx2 v[8:9], v12, s[32:35], s47 offen sc1")
        A("s_waitcnt vmcnt(1)")
        idconv()
        A("s_branch L_ichk")
    LB("L_ipoll")
    if IS: A(f"s_sleep {IS}")
    A(f"buffer_load_dwordx2 v[8:9], v12, s[32:35], s47 offen sc1")
    LB("L_ichk")
    A("s_add_u32 s49, s49, 1")
    A("s_cmp_ge_u32 s49, %d" % SPIN)
    A(f"s_waitcnt vmcnt(0)")
    A(f"v_cmp_ne_u32 vcc, s40, v9")
    A("s_cbranch_scc1 L_iok")
    A("s_cbranch_vccnz L_ipoll")
    LB("L_iok")
    stamp(3)
    if stamps: A("s_mov_b32 s59, s49")
    A("v_max_u32_dpp v8, v8, v8 row_ror:8 row_mask:0xf bank_mask:0xf")
    A("v_mov_b32 v9, v8")
    A("s_mov_b32 m0, %d" % L_XS)
    A("s_cmp_eq_u32 s57, 1")
    A("v_permlane16_swap_b32 v8, v9")
    A("v_max_u32 v8, v8, v9")
    A("v_mov_b32 v9, v8")
    A("s_nop 1")
    A("v_permlane32_swap_b32 v8, v9")
    A("v_max_u32 v6, v8, v9")
    A("v_and_b32 v10, 31, v6")
    A("v_xor_b32 v10, 31, v10")
    A("v_lshl_add_u32 v10, v4, 5, v10       ; row")
    A("v_lshlrev_b32 v10, 11, v10")
    A("v_lshl_add_u32 v10, v11, 4, v10      ; + chunk*16")
    for i in range(8):
        if i == 4: A("s_cbranch_scc1 L_dmadone")
        A(f"buffer_load_dwordx4 v10, s[28:31], s45 offen{xpol} lds")
        if i < 7:
            A("s_mov_b32 m0, %d" % (L_XS + 1024*(i+1)))
            A("v_add_u32 v10, 128, v10")
    LB("L_dmadone")
    if not early_id: idload()
    A("buffer_load_dwordx4 v[24:27], v14, s[32:35], s48 offen")
    A("buffer_load_dwordx4 v[28:31], v14, s[32:35], s48 offen offset:1024")
    A("s_barrier                            ; BX")
    A("v_readlane_b32 s55, v6, s51")
    A("s_and_b32 s46, s2, 31")
    A("s_and_b32 s54, s55, 31")
    A("s_xor_b32 s54, s54, 31")
    A("s_cmp_eq_u32 s54, s46")
    A("s_cselect_b32 s56, 0x40000000, s53")
    if early_id:
        A(f"buffer_store_dwordx4 v[{IDR}:{IDR+3}], v14, s[36:39], s56 offen{outpol}")
        A(f"buffer_store_dwordx4 v[{IDR+4}:{IDR+7}], v14, s[36:39], s56 offen offset:1024{outpol}")
    A("v_lshrrev_b32 v7, 5, v0")
    A("v_bfe_u32 v8, v0, 4, 1")
    A("v_lshl_add_u32 v7, v8, 1, v7         ; e")
    A("v_lshl_add_u32 v7, v4, 2, v7         ; 4*pos + e")
    A("s_lshl_b32 s45, s51, 5")
    A("s_add_u32 s45, s45, s54")
    A("s_lshl_b32 s45, s45, 5")
    A("s_add_u32 s45, s45, s46")
    A("s_lshl_b32 s45, s45, 5")
    A("v_add_u32 v7, s45, v7")
    A("v_lshlrev_b32 v7, 1, v7")
    A("buffer_load_ushort v9, v7, s[28:31], 0 offen")
    A("s_waitcnt vmcnt(5)")
    A("s_barrier                            ; B2")
    stamp(4)
    if not early_id:
        A("s_waitcnt vmcnt(3)")
        idconv()
    A("s_lshr_b32 s44, s55, 16")
    A("s_xor_b32 s45, s44, 0xffff")
    A("s_and_b32 s44, s44, 0x7fff")
    A("s_cmp_lt_i32 s55, 0")
    A("s_cselect_b32 s44, s44, s45")
    A("s_lshl_b32 s44, s44, 16              ; r")
    A("v_mov_b32 v10, 0xbfb8aa3b")
    A("v_mul_f32 v10, s44, v10")
    A("v_exp_f32 v10, v10")
    A("s_and_b32 s41, s40, 0xff")
    A("v_add_f32 v10, 1.0, v10")
    A("v_rcp_f32 v10, v10")
    A("s_barrier                            ; B3")
    if not early_id:
        A(f"buffer_store_dwordx4 v[{IDR}:{IDR+3}], v14, s[36:39], s56 offen{outpol}")
        A(f"buffer_store_dwordx4 v[{IDR+4}:{IDR+7}], v14, s[36:39], s56 offen offset:1024{outpol}")
    A("v_cvt_pk_bf16_f32 v10, v10, v10")
    A("v_and_b32 v10, 0xffff0000, v10       ; sigmoid")
    A("s_mul_i32 s46, s2, %d" % X2S)
    A("s_add_u32 s46, s46, %d" % O_EX2)
    A("s_add_u32 s47, s46, 4096")
    A("s_mov_b32 s49, 0")
    A("s_mov_b32 s44, 0x00ff00ff")
    A("s_mov_b32 s45, 0x00ff00ff")
    A("s_waitcnt vmcnt(0)")
    A("v_lshlrev_b32 v9, 16, v9             ; x")
    if mx: A("v_mov_b32 v13, 0")
    A("s_barrier                            ; B4")
    if not b4: A("s_barrier")
    stamp(5)
    if x2d: A(f"s_sleep {x2d}")
    if mx:
        MS = 76 if stamps else 60
        def ld(i):
            so = "s46" if i < 4 else "s47"
            A(f"buffer_load_dwordx4 v[{32+4*i}:{35+4*i}], v14, s[32:35], {so} offen offset:{(i%4)*1024} sc1")
        def chk(i):
            b = 32 + 4*i
            for r in range(b, b+4): A(f"v_xor_b32 v{r}, s41, v{r}")
            A(f"v_or3_b32 v15, v{b}, v{b+1}, v{b+2}")
            A(f"v_or_b32 v15, v15, v{b+3}")
            A(f"v_cmp_ne_u32_sdwa s[{MS+2*i}:{MS+2*i+1}], v15, v13 src0_sel:BYTE_0 src1_sel:DWORD")
        def anyleft():
            A(f"s_or_b64 s[42:43], s[{MS}:{MS+1}], s[{MS+2}:{MS+3}]")
            for i in range(2, 7): A(f"s_or_b64 s[42:43], s[42:43], s[{MS+2*i}:{MS+2*i+1}]")
        for i in range(7): ld(i)
        A("s_mov_b32 s49, 1")
        for i in range(7):
            A(f"s_waitcnt vmcnt({6-i})")
            chk(i)
            if i == 1: A("v_pk_add_f32 v[16:17], v[32:33], v[36:37]"); A("v_pk_add_f32 v[18:19], v[34:35], v[38:39]")
            if i >= 2: A(f"v_pk_add_f32 v[16:17], v[16:17], v[{32+4*i}:{33+4*i}]"); A(f"v_pk_add_f32 v[18:19], v[18:19], v[{34+4*i}:{35+4*i}]")
        anyleft()
        A("s_cbranch_scc0 L_x2ok")
        LB("L_x2poll")
        if x2s: A(f"s_sleep {x2s}")
        for i in range(7):
            A(f"s_mov_b64 exec, s[{MS+2*i}:{MS+2*i+1}]")
            A(f"s_cbranch_execz L_x2l{i}")
            ld(i)
            LB(f"L_x2l{i}")
        A("s_add_u32 s49, s49, 1")
        A("s_waitcnt vmcnt(0)")
        for i in range(7):
            A(f"s_mov_b64 exec, s[{MS+2*i}:{MS+2*i+1}]")
            A(f"s_cbranch_execz L_x2c{i}")
            chk(i)
            LB(f"L_x2c{i}")
        A("s_mov_b64 exec, -1")
        anyleft()
        A("s_cbranch_scc0 L_x2sum")
        A("s_cmp_lt_u32 s49, %d" % SPIN)
        A("s_cbranch_scc1 L_x2poll")
        LB("L_x2sum")
        A("v_pk_add_f32 v[16:17], v[32:33], v[36:37]"); A("v_pk_add_f32 v[18:19], v[34:35], v[38:39]")
        for i in range(2, 7):
            A(f"v_pk_add_f32 v[16:17], v[16:17], v[{32+4*i}:{33+4*i}]"); A(f"v_pk_add_f32 v[18:19], v[18:19], v[{34+4*i}:{35+4*i}]")
        A("s_nop 0")
    else:
        LB("L_x2poll")
        for i in range(7):
            so = "s46" if i < 4 else "s47"
            A(f"buffer_load_dwordx4 v[{32+4*i}:{35+4*i}], v14, s[32:35], {so} offen offset:{(i%4)*1024} sc1")
        A("s_add_u32 s49, s49, 1")
        for i in range(7):
            A(f"s_waitcnt vmcnt({6-i})")
            b = 32 + 4*i
            for r in range(b, b+4): A(f"v_xor_b32 v{r}, s41, v{r}")
            if i == 0:
                A(f"v_or3_b32 v15, v{b}, v{b+1}, v{b+2}")
                A(f"v_or_b32 v15, v15, v{b+3}")
            else:
                A(f"v_or3_b32 v15, v15, v{b}, v{b+1}")
                A(f"v_or3_b32 v15, v15, v{b+2}, v{b+3}")
                src = 32 if i == 1 else 16
                A(f"v_pk_add_f32 v[16:17], v[{src}:{src+1}], v[{b}:{b+1}]")
                A(f"v_pk_add_f32 v[18:19], v[{src+2}:{src+3}], v[{b+2}:{b+3}]")
        A("v_and_b32 v15, 0xff, v15")
        A("v_cmp_ne_u32 vcc, 0, v15")
        A("s_cbranch_vccz L_x2ok")
        if x2s: A(f"s_sleep {x2s}")
        A("s_cmp_lt_u32 s49, %d" % SPIN)
        A("s_cbranch_scc1 L_x2poll")
    LB("L_x2ok")
    stamp(6)
    A("v_permlane32_swap_b32 v16, v17")
    A("v_permlane32_swap_b32 v18, v19")
    A("v_add_f32 v16, v16, v17")
    A("v_add_f32 v18, v18, v19")
    A("s_nop 1")
    A("v_permlane16_swap_b32 v16, v18")
    A("v_add_f32 v16, v16, v18")
    A("s_nop 1")
    A("v_add_f32_dpp v16, v16, v16 row_ror:8 row_mask:0xf bank_mask:0xf")
    A("s_mov_b64 exec, s[44:45]")
    A("v_cvt_pk_bf16_f32 v16, v16, v16")
    A("v_and_b32 v16, 0xffff0000, v16       ; y")
    A("v_mul_f32 v16, v16, v10")
    A("v_cvt_pk_bf16_f32 v16, v16, v16")
    A("v_and_b32 v16, 0xffff0000, v16       ; y*sigmoid")
    A("v_fma_f32 v16, v9, 0, v16            ; upd = x*0 + y")
    A("v_add_f32 v16, v9, v16")
    A("v_cvt_pk_bf16_f32 v16, v16, v16")
    A(f"buffer_store_short v16, v7, s[36:39], 0 offen{finpol}")
    A("s_cmp_lg_u32 s2, 0")
    A("s_cbranch_scc1 L_noep")
    A("v_mov_b32 v18, s40")
    A("v_mov_b32 v17, 0")
    A("s_mov_b64 exec, 1")
    A("buffer_store_dword v18, v17, s[32:35], 0 offen sc1")
    LB("L_noep")
    stamp(7)
    LB("L_fin")
    if stamps:
        import diag
        if dg: diag.epilogue(A, LB, dg, nwg=256, invalid=())
        elif gamp: diag.gamp(A, LB, gamp)
        else:
            A("s_barrier")
            diag.dump(A, LB)
    LB("L_end")
    A("s_endpgm")
    L.extend(slow)
    body = "\n".join(L)
    pad = ".p2align 12\n.fill 832, 4, 0xbf800000            ; the kernel starts a 4 KB page (instruction prefetch stops at page ends)\n" if align else ""
    return f"""{HEAD}; @launch grid=(256,1,1) block=(384,1,1) lds={LDS_BYTES}
{DOC}.amdgcn_target "amdgcn-amd-amdhsa--gfx950"
.text
.globl {KN}
{pad}.p2align 8
.type {KN},@function
{KN}:
{body}
.section .rodata,"a"
.p2align 6
.amdhsa_kernel {KN}
  .amdhsa_next_free_vgpr 160
  .amdhsa_next_free_sgpr 96
  .amdhsa_accum_offset 160
  .amdhsa_group_segment_fixed_size 0
  .amdhsa_kernarg_size 64
  .amdhsa_user_sgpr_count 2
  .amdhsa_user_sgpr_kernarg_segment_ptr 1
  .amdhsa_system_sgpr_workgroup_id_x 1
  .amdhsa_float_denorm_mode_32 3
.end_amdhsa_kernel
"""
if __name__ == "__main__":
    import sys, json
    kw = json.loads(sys.argv[2]) if len(sys.argv) > 2 else {}
    open(sys.argv[1] if len(sys.argv) > 1 else "standalone__moe_arch_mod__sampling.s", "w").write(gen(**kw))
```

```python
def epilogue(A, LB, stats, nwg=252, gatherwave=4, invalid=(228,236,244,252), extra=("s49","s59")):
    A("s_waitcnt lgkmcnt(0) vmcnt(0)")
    A("s_mov_b64 exec, -1")
    A("s_barrier")
    A("s_lshl_b32 s20, s3, 8")
    A("s_add_u32 s20, s20, s2")
    A("s_lshl_b32 s20, s20, 6")
    A("s_add_u32 s18, s18, 0x8000000")
    A("s_addc_u32 s19, s19, 0")
    for i in range(8): A(f"v_mov_b32 v{16+i}, s{60+2*i}")
    A(f"v_mov_b32 v24, {extra[0]}")
    A(f"v_mov_b32 v25, {extra[1]}")
    A("v_mov_b32 v3, s20")
    A("s_mov_b64 exec, 1")
    A("global_store_dwordx4 v3, v[16:19], s[18:19] sc1")
    A("global_store_dwordx4 v3, v[20:23], s[18:19] offset:16 sc1")
    A("global_store_dwordx2 v3, v[24:25], s[18:19] offset:32 sc1")
    A("s_waitcnt vmcnt(0)")
    A("s_barrier")
    A(f"s_cmp_lg_u32 s3, {gatherwave}")
    A("s_cbranch_scc1 L_end")
    A("v_mov_b32 v3, 0")
    A("v_mov_b32 v18, 1")
    A("global_atomic_add v19, v3, v18, s[16:17] offset:128 sc0 sc1")
    A("s_waitcnt vmcnt(0)")
    A("v_readfirstlane_b32 s20, v19")
    A(f"s_cmp_lg_u32 s20, {nwg-1}")
    A("s_cbranch_scc1 L_end")
    A("s_mov_b64 exec, -1")
    A("v_mbcnt_lo_u32_b32 v0, -1, 0")
    A("v_mbcnt_hi_u32_b32 v0, -1, v0")
    for i in range(4):
        A(f"v_add_u32 v{4+i}, {64*i}, v0")
        for bad in invalid:
            if bad // 64 == i:
                A(f"s_mov_b32 s20, {bad}")
                A(f"v_cmp_eq_u32 vcc, s20, v{4+i}")
                A("s_nop 1")
                A(f"v_cndmask_b32 v{4+i}, v{4+i}, {bad & 7}, vcc")
        A(f"v_lshlrev_b32 v{4+i}, 6, v{4+i}")
    def gather(role, k, op, dst):
        A(f"s_add_u32 s22, s18, {role*256*64 + 4*k}")
        A("s_addc_u32 s23, s19, 0")
        for i in range(4): A(f"global_load_dword v{8+i}, v{4+i}, s[22:23] sc1")
        A("s_waitcnt vmcnt(0)")
        if op == "min":
            for i in range(4):
                A(f"v_cmp_eq_u32 vcc, 0, v{8+i}")
                A("s_nop 1")
                A(f"v_cndmask_b32 v{8+i}, v{8+i}, -1, vcc")
        o = f"v_{op}_u32"
        A(f"{o} v8, v8, v9"); A(f"{o} v10, v10, v11"); A(f"{o} v8, v8, v10")
        A("s_nop 1")
        A(f"{o}_dpp v8, v8, v8 row_ror:8 row_mask:0xf bank_mask:0xf")
        A("v_mov_b32 v9, v8"); A("s_nop 1")
        A("v_permlane16_swap_b32 v8, v9"); A(f"{o} v8, v8, v9")
        A("v_mov_b32 v9, v8"); A("s_nop 1")
        A("v_permlane32_swap_b32 v8, v9"); A(f"{o} v{dst}, v8, v9")
    gather(0, 0, "min", 30)
    gather(4, 0, "min", 31)
    A("v_min_u32 v30, v30, v31")
    A("s_nop 1")
    A("v_min_u32_dpp v30, v30, v30 row_ror:4 row_mask:0xf bank_mask:0xf")
    A("s_nop 1")
    A("v_min_u32_dpp v30, v30, v30 row_ror:2 row_mask:0xf bank_mask:0xf")
    A("s_nop 1")
    A("v_min_u32_dpp v30, v30, v30 row_ror:1 row_mask:0xf bank_mask:0xf")
    for q, (role, k, op) in enumerate(stats):
        gather(role, k, op, 32)
        if k < 8:
            A("v_sub_u32 v32, v32, v30")
            A("v_add_u32 v32, 2, v32")
            A("v_ashrrev_i32 v32, 2, v32")
            A("v_max_i32 v32, 0, v32")
        A("v_min_u32 v32, 255, v32")
        A(f"v_add_u32 v33, {8*q}, v0")
        A("s_mov_b64 exec, 0xff")
        A("global_store_byte v33, v32, s[16:17]")
        A("s_mov_b64 exec, -1")

def dump(A, LB):
    A("s_waitcnt lgkmcnt(0)")
    A("s_mov_b64 exec, -1")
    A("s_lshl_b32 s20, s3, 8")
    A("s_add_u32 s20, s20, s2")
    A("s_lshl_b32 s20, s20, 6")
    A("s_add_u32 s20, s20, 0x8000000")
    A("s_add_u32 s18, s18, s20")
    A("s_addc_u32 s19, s19, 0")
    for i in range(8): A(f"v_mov_b32 v{16+i}, s{60+2*i}")
    A("v_mov_b32 v24, s49")
    A("v_mov_b32 v25, s59")
    A("v_mov_b32 v3, 0")
    A("s_mov_b64 exec, 1")
    A("global_store_dwordx4 v3, v[16:19], s[18:19]")
    A("global_store_dwordx4 v3, v[20:23], s[18:19] offset:16")
    A("global_store_dwordx2 v3, v[24:25], s[18:19] offset:32")

def gamp(A, LB, g):
    k, wv, fac, cnt = g[:4]
    die = g[4] if len(g) > 4 else None
    A("s_waitcnt lgkmcnt(0) vmcnt(0)")
    A("s_mov_b64 exec, -1")
    A("s_barrier")
    A(f"s_cmp_lg_u32 s3, {wv}")
    A("s_cbranch_scc1 L_end")
    A("s_mov_b64 exec, 1")
    A("s_not_b32 s20, s60")
    A("v_mov_b32 v16, s20")
    A(f"v_mov_b32 v17, s{60+2*k}" if k >= 0 else f"v_mov_b32 v17, s{49 if k in (-1,-4) else 59}")
    if die in ("r", "n"):
        A(f"s_cmp_eq_u32 s58, {1 if die == 'r' else 0}")
        A("s_cselect_b32 s21, -1, 0")
        A("v_and_b32 v17, s21, v17")
    elif die == "l":
        A("s_cmp_gt_u32 s57, s58")
        A("s_cselect_b32 s21, -1, 0")
        A("v_and_b32 v17, s21, v17")
    elif die is not None:
        A("s_and_b32 s21, s2, 7")
        A(f"s_cmp_eq_u32 s21, {die}")
        A("s_cselect_b32 s21, -1, 0")
        A("v_and_b32 v17, s21, v17")
    A("v_mov_b32 v3, 0")
    A("v_mov_b32 v18, 1")
    A("global_atomic_umax v3, v16, s[16:17] sc1")
    A(f"global_atomic_{'add' if k in (-3,-4) else 'umax'} v3, v17, s[16:17] offset:64 sc1")
    A("s_waitcnt vmcnt(0)")
    A("global_atomic_add v19, v3, v18, s[16:17] offset:128 sc0 sc1")
    A("s_waitcnt vmcnt(0)")
    A("v_readfirstlane_b32 s20, v19")
    A(f"s_cmp_lg_u32 s20, {cnt-1}")
    A("s_cbranch_scc1 L_end")
    A("v_mov_b32 v18, 0")
    A("global_atomic_umax v16, v3, v18, s[16:17] sc0 sc1")
    A("global_atomic_umax v17, v3, v18, s[16:17] offset:64 sc0 sc1")
    A("s_waitcnt vmcnt(0)")
    A("v_readfirstlane_b32 s20, v16")
    A("v_readfirstlane_b32 s21, v17")
    A("s_not_b32 s20, s20")
    if k >= 0: A("s_sub_u32 s20, s21, s20")
    else: A("s_mov_b32 s20, s21")
    A("v_mov_b32 v18, s20")
    A("global_store_dword v3, v18, s[16:17] offset:4")
    A("s_min_u32 s20, s20, 3000")
    A(f"s_mul_i32 s20, s20, {fac}")
    A("s_memrealtime s[22:23]")
    A("s_waitcnt lgkmcnt(0)")
    LB("L_amp")
    A("s_memrealtime s[24:25]")
    A("s_waitcnt lgkmcnt(0)")
    A("s_sub_u32 s21, s24, s22")
    A("s_cmp_lt_u32 s21, s20")
    A("s_cbranch_scc1 L_amp")

def gpair(A, LB, g):
    da, db, cnt = g
    A("s_waitcnt lgkmcnt(0) vmcnt(0)")
    A("s_mov_b64 exec, -1")
    A("s_barrier")
    A("s_cmp_lg_u32 s3, 4")
    A("s_cbranch_scc1 L_end")
    A("s_mov_b64 exec, 1")
    A("s_not_b32 s20, s60")
    A("v_mov_b32 v16, s20")
    A("s_and_b32 s21, s2, 7")
    A(f"s_cmp_eq_u32 s21, {da}")
    A("s_cselect_b32 s22, s20, 0")
    A(f"s_cmp_eq_u32 s21, {db}")
    A("s_cselect_b32 s23, s20, 0")
    A("v_mov_b32 v17, s22")
    A("v_mov_b32 v20, s23")
    A("v_mov_b32 v3, 0")
    A("v_mov_b32 v18, 1")
    A("global_atomic_umax v3, v16, s[16:17] sc1")
    A("global_atomic_umax v3, v17, s[16:17] offset:64 sc1")
    A("global_atomic_umax v3, v20, s[16:17] offset:192 sc1")
    A("s_waitcnt vmcnt(0)")
    A("global_atomic_add v19, v3, v18, s[16:17] offset:128 sc0 sc1")
    A("s_waitcnt vmcnt(0)")
    A("v_readfirstlane_b32 s20, v19")
    A(f"s_cmp_lg_u32 s20, {cnt-1}")
    A("s_cbranch_scc1 L_end")
    A("v_mov_b32 v18, 0")
    A("global_atomic_umax v16, v3, v18, s[16:17] sc0 sc1")
    A("global_atomic_umax v17, v3, v18, s[16:17] offset:64 sc0 sc1")
    A("global_atomic_umax v20, v3, v18, s[16:17] offset:192 sc0 sc1")
    A("s_waitcnt vmcnt(0)")
    A("v_readfirstlane_b32 s20, v16")
    A("v_readfirstlane_b32 s21, v17")
    A("v_readfirstlane_b32 s22, v20")
    A("s_sub_u32 s21, s20, s21")
    A("s_sub_u32 s22, s20, s22")
    for r in (21, 22):
        A(f"s_add_u32 s{r}, s{r}, 2")
        A(f"s_lshr_b32 s{r}, s{r}, 2")
        A(f"s_min_u32 s{r}, s{r}, 31")
    A("s_lshl_b32 s22, s22, 5")
    A("s_add_u32 s20, s21, s22")
    A("v_mov_b32 v18, s20")
    A("global_store_dword v3, v18, s[16:17] offset:4")
    A("s_mul_i32 s20, s20, 200")
    A("s_memrealtime s[22:23]")
    A("s_waitcnt lgkmcnt(0)")
    LB("L_amp")
    A("s_memrealtime s[24:25]")
    A("s_waitcnt lgkmcnt(0)")
    A("s_sub_u32 s21, s24, s22")
    A("s_cmp_lt_u32 s21, s20")
    A("s_cbranch_scc1 L_amp")
```

```python
KN = "standalone__moe_arch_mod__sampling_kernel"
HEAD = open("standalone__moe_arch_mod__sampling.s.ref").read().split("; Override launch")[0]

O_IDX = 0x1000
O_LDR = 0x12000
O_EX1F = 0x20000
O_EX2 = 0x100000
O_EX1 = 0x300000
WS_REC = 0x500000
L_XS = 0
L_RED = 8192
L_HB = 16384
L_KEY = 17408
L_FLAG = 17408 + 32
LDS_BYTES = 17408 + 64
SPIN = 40000

DOC = """; MoD sampling block: route (argmax of x.w_r per batch), SwiGLU FFN on the 8 selected rows, residual update.
"""

def gen(pol="nt", xpol="", D=10, DI=6, D3=8, D3W=12, BX=4, BX3=8, DX=32, LS=16, NF=12, PK=3, FS=38, fsleep=1,
        outpol="sc1", finpol="", x1pol="", x2d=27, PERM=(7,0,1,2,4,5,6,3), align=True, prog=True, early_id=True,
        stamps=False, dg=None, gamp=None, cst1=True, lag0=0, MAP="B", DUP0=True, X2S=8192, nob5=False, mx=False, x2s=0, b4=True, rlag=0, IS=0, ipf=0, FS0=None, X20=None, late2=0, late3=0, D0=None, pace=None, pace3=None, DT=None, em=0, ldr=True, NSP=None, ssl=2, hold=None, mc=True, SF=36, NC=16, lid='pre', lw=None, D3B=None, hx=False, D3X=None, R3=1, wg=None, NLD=1, LF=40, RF=0, CW=0, lp=1, lps=5, NR=8, FA=1, full=False, rpol='sc1', LBR=16, nodup=False):
    if gamp or dg: stamps = True
    if NSP is None: NSP = NC - 1
    L = []
    def A(s): L.append("  " + s)
    def LB(s): L.append(s + ":")
    def stamp(i):
        if stamps: A(f"s_memrealtime s[{60+2*i}:{61+2*i}]")
    sp = lambda p: (" " + p) if p else ""
    pol, xpol, outpol, finpol, x1pol = map(sp, (pol, xpol, outpol, finpol, x1pol))
    REPS = 64 * LS
    XR = 80
    RAW = 16; FR = 80; XB = 96; ACC = 112; W2 = 128
    F2 = 40; HA = 72
    IDR = 40
    def raw(s, i): return RAW + 16*s + 2*i
    def frag(s, j): return (FR if s == 0 else RAW + 16*(s-1)) + 4*j
    def raw2(s, i): return W2 + 16*s + 2*i
    def frag2(s, j): return F2 + 16*s + 4*j
    def perm_pair(rawf, fragf, s, p):
        for e in range(2):
            A(f"v_perm_b32 v{fragf(s,2*e)+p}, v{rawf(s,2*p+1)+e}, v{rawf(s,2*p)+e}, s42")
            A(f"v_perm_b32 v{fragf(s,2*e+1)+p}, v{rawf(s,2*p+1)+e}, v{rawf(s,2*p)+e}, s43")
    def perms(rawf, fragf, s):
        for p in range(4): perm_pair(rawf, fragf, s, p)
    def w1load(n):
        s, i = divmod(n, 8)
        A(f"buffer_load_dwordx2 v[{raw(s,i)}:{raw(s,i)+1}], v3, s[24:27], s44 offen{pol}")
        A("s_addk_i32 s44, 7168" if i < 7 else "s_add_u32 s44, s44, %d" % (25*7168))
    def w2load(n):
        s, i = divmod(n, 8)
        p, b = divmod(i, 2)
        row = 2*s + (p >> 1) + 8*(p & 1) + 4*b
        A("s_add_u32 s47, s53, %d" % (row*2048))
        A(f"buffer_load_dwordx2 v[{raw2(s,i)}:{raw2(s,i)+1}], v10, s[28:31], s47 offen{pol}")

    if lag0:
        A("s_and_b32 s3, s2, 7")
        A("s_cmp_lg_u32 s3, 0")
        A("s_cbranch_scc1 L_nolag")
        A(f"s_sleep {lag0}")
        LB("L_nolag")
    stamp(0)
    A("s_cmp_ge_u32 s2, 256")
    A("s_cbranch_scc1 L_exit")
    A("s_load_dwordx16 s[4:19], s[0:1], 0")
    A("v_lshrrev_b32 v1, 6, v0")
    A("v_and_b32 v0, 63, v0                 ; lane")
    A("v_readfirstlane_b32 s3, v1           ; wave")
    A("s_lshl_b32 s22, s2, 2")
    A("s_lshr_b32 s22, 0x%x, s22" % sum(v << (4*i) for i, v in enumerate(PERM)))
    A("s_and_b32 s22, s22, 7")
    A("s_lshr_b32 s23, s2, 3")
    A("s_lshr_b32 s44, s23, 2")
    A("s_mul_i32 s45, s22, 6")
    A("s_add_u32 s45, s45, s44")
    A("s_add_u32 s44, s45, 4")
    A("s_mul_i32 s44, s44, 37")
    A("s_lshr_b32 s44, s44, 8")
    A("s_add_u32 s20, s45, s44")
    A("s_lshl_b32 s44, s22, 3")
    A("s_add_u32 s44, s44, 3")
    A("s_min_u32 s44, s44, 55")
    A("s_cmp_ge_u32 s23, 24")
    A("s_cselect_b32 s20, s44, s20")
    A("s_cselect_b32 s57, 1, 0")
    A("s_cselect_b32 s21, 7, 3")
    A("s_and_b32 s21, s21, s23              ; part")
    A(f"s_cmp_ge_u32 s23, {24 + NLD}")
    A("s_cselect_b32 s58, 1, 0")
    A("s_mov_b32 s27, 0x20000")
    A("s_cmp_lt_u32 s3, 4")
    A("s_cbranch_scc1 L_c")
    A("s_mov_b32 s30, 524288")
    A("s_mov_b32 s31, 0x20000")
    A("v_lshlrev_b32 v14, 4, v0             ; lane*16")
    A("s_cmp_eq_u32 s58, 1")
    A("s_cbranch_scc1 L_rt")
    A("s_cmp_eq_u32 s3, 4")
    A("s_cbranch_scc1 L_r")
    LB("L_exit")
    A("s_endpgm")
    LB("L_rt")
    A("s_setprio 3")
    A(f"s_mul_i32 s52, s22, {8 - NLD}")
    A("s_add_u32 s52, s52, s21")
    A("s_lshl_b32 s52, s52, 1")
    A("s_add_u32 s52, s52, s3")
    A(f"s_sub_u32 s52, s52, {4 + 2*NLD}")
    A("s_and_b32 s52, s52, 63")
    A("s_lshl_b32 s44, s52, 13")
    A("s_add_u32 s45, s44, 4096")
    A("s_movk_i32 s26, 2048")
    A("s_waitcnt lgkmcnt(0)")
    A("s_mov_b64 s[28:29], s[4:5]")
    A("s_mov_b64 s[24:25], s[6:7]")
    A("s_load_dword s40, s[18:19], 0        ; epoch")
    A(f"buffer_load_dwordx4 v[16:19], v14, s[24:27], 0 offen")
    A(f"buffer_load_dwordx4 v[20:23], v14, s[24:27], 0 offen offset:1024")
    for i in range(8):
        A(f"buffer_load_dwordx4 v[{XR+4*i}:{XR+4*i+3}], v14, s[28:31], {'s44' if i < 4 else 's45'} offen offset:{(i%4)*1024}{xpol}")
    A("s_barrier                            ; B0")
    A("s_branch L_route")
    LB("L_c")
    A("v_mov_b32 v4, 0")
    A(f"ds_write_b32 v4, v4 offset:{L_FLAG}")
    A("s_mov_b32 s26, 7340032")
    A("v_lshrrev_b32 v1, 4, v0              ; g")
    A("v_and_b32 v2, 15, v0                 ; n")
    A("v_mul_u32_u24 v3, %d, v1" % (8*7168))
    A("v_lshl_add_u32 v3, v2, 3, v3         ; voffset")
    A("s_lshr_b32 s44, s21, 1")
    A("s_lshl_b32 s44, s44, 2")
    A("s_add_u32 s44, s44, s3")
    A("s_lshr_b32 s45, %d, s57" % (128*7168))
    A("s_mul_i32 s44, s44, s45")
    A("s_lshl_b32 s45, s20, 7")
    A("s_add_u32 s44, s44, s45              ; soffset")
    A("s_bitcmp1_b32 s21, 0")
    A("s_waitcnt lgkmcnt(0)")
    A("s_cselect_b64 s[24:25], s[10:11], s[8:9]")
    A("s_cmp_eq_u32 s58, 0")
    A("s_cbranch_scc1 L_nb0")
    A("s_barrier")
    LB("L_nb0")
    if not cst1: stamp(1)
    for n in range(DI): w1load(n)
    A("s_load_dword s40, s[18:19], 0        ; epoch")
    if stamps:
        A("s_getreg_b32 s59, hwreg(HW_REG_HW_ID)")
    A("s_mov_b64 s[32:33], s[18:19]")
    A("s_mov_b32 s34, %d" % WS_REC)
    A("s_mov_b32 s35, 0x20000")
    A("s_mov_b32 s42, 0x05040100")
    A("s_mov_b32 s43, 0x07060302")
    A("v_and_b32 v8, 7, v0")
    A("v_lshl_add_u32 v13, v1, 3, v8")
    A("v_lshlrev_b32 v13, 4, v13")
    A("s_lshl_b32 s45, s3, 11")
    A("v_add_u32 v4, s45, v13")
    A("s_lshr_b32 s45, s45, s57")
    A("v_add_u32 v5, s45, v13")
    A("v_lshlrev_b32 v6, 3, v0")
    A("s_lshl_b32 s45, s3, 9")
    A("v_add_u32 v6, s45, v6                ; w*512 + lane*8")
    A("v_lshrrev_b32 v7, 1, v0")
    A("v_lshlrev_b32 v7, 4, v7")
    A("v_and_b32 v9, 1, v0")
    A("v_lshl_add_u32 v7, v9, 2, v7")
    A("s_lshr_b32 s45, s3, 1")
    A("s_lshl_b32 s45, s45, 9")
    A("s_and_b32 s46, s3, 1")
    A("s_lshl_b32 s46, s46, 3")
    A("s_add_u32 s45, s45, s46")
    A("v_add_u32 v7, s45, v7")
    A("s_mov_b64 s[28:29], s[12:13]")
    A("s_mov_b32 s30, 7340032")
    A("s_mov_b32 s31, 0x20000")
    A("v_lshlrev_b32 v10, 15, v1            ; g*16*2048")
    A("v_lshl_add_u32 v10, v2, 3, v10")
    A("v_lshrrev_b32 v11, 3, v2")
    A("v_lshl_add_u32 v11, v1, 7, v11       ; 4g*32 + (n>>3)")
    A("v_mul_u32_u24 v11, %d, v11" % X2S)
    A("v_lshl_add_u32 v11, v8, 4, v11       ; + (n&7)*16")
    A("s_lshl_b32 s53, s21, 2")
    A("s_lshr_b32 s53, s53, s57")
    A("s_add_u32 s53, s53, s3")
    A("s_lshr_b32 s45, s3, 1")
    A("s_and_b32 s45, s45, s57")
    A("s_lshl_b32 s45, s45, 30")
    A("v_or_b32 v10, s45, v10")
    A("v_or_b32 v11, s45, v11")
    A("s_mul_i32 s52, s53, %d" % (2*X2S))
    A("s_lshl_b32 s46, s20, 7")
    A("s_add_u32 s52, s52, s46")
    A("s_add_u32 s52, s52, %d" % O_EX2)
    A("s_lshl_b32 s53, s53, 7")
    A("s_lshl_b32 s46, s20, 17              ; tile*64*2048")
    A("s_add_u32 s53, s53, s46")
    A("s_lshl_b32 s45, s20, 14")
    A("s_lshl_b32 s46, s21, 11")
    A("s_add_u32 s45, s45, %d               ; group base" % O_EX1F)
    A("s_add_u32 s46, s46, s45")
    A("s_mov_b32 s48, 0xffffff00")
    A("s_mov_b32 s50, 0xbfb8aa3b            ; -log2(e)")
    A("s_mov_b32 s51, 0xbfb8aa3b")
    A("s_mov_b32 s49, 0")
    A("s_getreg_b32 s54, hwreg(HW_REG_XCC_ID, 0, 3)")
    A("v_mov_b32 v12, 1")
    A("v_cmp_eq_u32 vcc, s57, v12")
    A("s_cmp_eq_u32 s58, 1")
    A("s_cbranch_scc1 L_cb")

    slow = []; st = {}
    def cpath(NS, sfx, DD, DW, bx):
        NL = 8*NS
        done = 0
        landed = 0
        if NS == 2: A("s_barrier")
        lt = late2 if NS == 4 else late3
        if D0 and NS == 4:
            A(f"s_cmp_eq_u32 s22, {PERM[0]}")
            A("s_cselect_b64 vcc, -1, 0")
        landed0 = 1
        for n in range(DI, NL + 16 - lt):
            dn = min(DD, DI + (n - DI + 1) * (R3 if NS == 2 else 1) // 2) if n < NL else DW
            if n >= NL + bx:
                if n == NL + bx:
                    A("s_barrier")
                    if NS == 2:
                        LB("L_bx"); st["done"] = done
                dn = DX
                if wg is not None and NS == 4 and n == NL + bx: dn = bx + wg + 1
            if NS == 2 and hold is not None:
                if n == DI + hold: A("s_barrier                            ; " + ("BX: the keys and the selected rows are in the queue" if hx else "B0c: the first look at the scores is in the queue"))
                if D3B and DI + hold <= n < NL: dn = D3B
                if D3X and n >= NL: dn = D3X
            if DT and NS == 4 and DT[0] <= n < NL + bx: dn = min(DT[1], DD + (n - DT[0] + 1) * DT[2] // 2)
            pc = pace if NS == 4 else pace3
            if pc and DI < n < NL + bx:
                dn = pc[2]
                if (n - DI) % pc[0] == 0 or pc[0] == 1: A(f"s_sleep {pc[1]}")
            if D0 and NS == 4 and n > DI + 1 and n < NL + bx:
                d0 = min(D0[0] + (n & 1), DI + (n - DI + 1) * D0[1] // 2)
                if n >= NL: d0 = dn = max(dn, 12)
                if n - dn + 1 > landed0 and d0 > dn:
                    A(f"s_cbranch_vccnz L_d0_{n}")
                    A(f"s_waitcnt vmcnt({dn-1})")
                    LB(f"L_d0_{n}")
                    landed0 = n - dn + 1
                dn = max(dn, d0)
            if n - dn + 1 > landed:
                A(f"s_waitcnt vmcnt({dn-1})")
                landed = n - dn + 1
            if n == DI and cst1: stamp(1)
            if n == LBR and NS == 4:
                assert done == 0
                A("s_cbranch_vccnz L_cc")
            if n < NL: w1load(n)
            else: w2load(n - NL)
            if n == DI and NS == 4:
                A(f"ds_write_b32 v12, v12 offset:{L_FLAG - 1}")
            if n == NL - 1: stamp(2)
            while done < NS and 8*done + 8 <= landed:
                perms(raw, frag, done); done += 1
        A("s_waitcnt lgkmcnt(0)")
        A("s_add_u32 s40, s40, 8                ; tag32")
        A("s_and_b32 s41, s40, 0xff")
        A("s_and_b32 s55, s40, 0xf8")
        A("s_or_b32 s54, s54, s55")
        A("v_mov_b32 v9, s41")
        A("v_mov_b32 v12, s54")
        if NL + 16 - lt <= NL + bx: A("s_barrier                            ; BX")
        while done < NS - (1 if em and NS == 4 else 0):
            A(f"s_waitcnt vmcnt({NL + 16 - lt - 8*done - 8})")
            perms(raw, frag, done); done += 1
        A("s_barrier")
        stamp(3)
        for n in range(16 - lt, 16): w2load(n)
        for s in range(NS):
            A(f"ds_read_b128 v[{XB+4*s}:{XB+4*s+3}], v5 offset:{L_XS + 512*s}")
        for s in range(NS):
            late = done < NS
            if late and em == 1 and s == NS - 1:
                A("s_waitcnt vmcnt(16)")
                perms(raw, frag, NS - 1)
            if late and em == 2 and s == NS - 2: A("s_waitcnt vmcnt(16)")
            A(f"s_waitcnt lgkmcnt({NS-1-s})")
            for j in range(4):
                c = "0" if s == 0 else f"v[{ACC+4*j}:{ACC+4*j+3}]"
                A(f"v_mfma_f32_16x16x32_bf16 v[{ACC+4*j}:{ACC+4*j+3}], v[{frag(s,j)}:{frag(s,j)+3}], v[{XB+4*s}:{XB+4*s+3}], {c}")
                if late and em == 2 and s == NS - 2: perm_pair(raw, frag, NS - 1, j)
        A("s_mov_b32 exec_lo, 0x00ff00ff")
        A("s_mov_b32 exec_hi, 0x00ff00ff")
        A("s_nop 2")
        for j in range(4):
            A(f"ds_write_b128 v4, v[{ACC+4*j}:{ACC+4*j+3}] offset:{L_RED + 512*j}")
        A("s_mov_b64 exec, -1")
        A("s_waitcnt lgkmcnt(0)")
        A("s_barrier                            ; B3")
        for w in range(2):
            A(f"ds_read2st64_b64 v[{16+4*w}:{19+4*w}], v6 offset0:{(L_RED + 4096*w)//512} offset1:{(L_RED + 4096*w + 2048)//512}")
        A("s_waitcnt lgkmcnt(1)")
        A("v_pk_add_f32 v[16:17], v[16:17], v[18:19]")
        A("s_waitcnt lgkmcnt(0)")
        A("v_pk_add_f32 v[20:21], v[20:21], v[22:23]")
        A("v_pk_add_f32 v[16:17], v[16:17], v[20:21]")
        A("v_and_or_b32 v16, v16, s48, v12")
        A("v_and_or_b32 v17, v17, s48, v12")
        A(f"buffer_store_dwordx2 v[16:17], v6, s[32:35], s46 offen{x1pol}")
        stamp(4)
        NB = 4 if NS == 4 else 8
        pairs = [(s, p) for s in range(2) for p in range(4)]
        k = 0
        A("s_waitcnt vmcnt(9)")
        while k < 4: perm_pair(raw2, frag2, *pairs[k]); k += 1
        if prog:
            while 17 - 2*(k+1) >= PK:
                A(f"s_waitcnt vmcnt({17 - 2*(k+1)})")
                perm_pair(raw2, frag2, *pairs[k]); k += 1
        if not prog or 17 - 2*k > PK: A(f"s_waitcnt vmcnt({PK})")
        def polls():
            for b in range(NB):
                if b and b % 2 == 0: A(f"s_add_u32 s47, s45, {b*2048}")
                A(f"buffer_load_dwordx2 v[{24+2*b}:{25+2*b}], v6, s[32:35], {'s45' if b < 2 else 's47'} offen offset:{(b%2)*2048} sc1")
        if prog:
            polls()
            while k < 8:
                A(f"s_waitcnt vmcnt({NB + 17 - 2*(k+1)})")
                perm_pair(raw2, frag2, *pairs[k]); k += 1
            A(f"s_branch L_x1chk{sfx}")
        LB("L_x1poll" + sfx)
        polls()
        LB("L_x1chk" + sfx)
        A("s_add_u32 s49, s49, 1")
        A("s_waitcnt vmcnt(0)")
        for r in range(24, 24+2*NB): A(f"v_xor_b32 v{r}, s54, v{r}")
        A("v_or3_b32 v8, v24, v25, v26")
        for r in range(27, 24+2*NB-1, 2): A(f"v_or3_b32 v8, v8, v{r}, v{r+1}")
        A(f"v_or_b32 v8, v8, v{24+2*NB-1}")
        A("v_and_b32 v8, 0xff, v8")
        A("v_cmp_ne_u32 vcc, 0, v8")
        A("s_cbranch_vccnz L_x1no" + sfx)
        LB("L_x1ok" + sfx)
        stamp(5)
        if NB == 8:
            A("v_pk_add_f32 v[24:25], v[24:25], v[32:33]")
            A("v_pk_add_f32 v[26:27], v[26:27], v[34:35]")
            A("v_pk_add_f32 v[28:29], v[28:29], v[36:37]")
            A("v_pk_add_f32 v[30:31], v[30:31], v[38:39]")
        S = []
        def B(s): S.append("  " + s)
        S.append("L_x1no" + sfx + ":")
        B(f"s_cmp_lt_u32 s49, {NF}")
        B("s_cbranch_scc1 L_x1poll" + sfx)
        B("v_lshlrev_b32 v8, 1, v6")
        B("s_lshl_b32 s56, s20, 15")
        B("s_add_u32 s56, s56, %d" % O_EX1)
        B(f"s_cmp_lg_u32 s49, {NF}")
        B("s_cbranch_scc1 L_x1ns" + sfx)
        B("v_and_b32 v96, s48, v16")
        B("v_and_b32 v97, s48, v17")
        B("v_mov_b32 v98, s40")
        B("v_mov_b32 v99, s40")
        B("s_lshl_b32 s47, s21, 12")
        B("s_add_u32 s47, s47, s56")
        B("buffer_store_dwordx4 v[96:99], v8, s[32:35], s47 offen sc1")
        B("s_waitcnt vmcnt(0)")
        S.append("L_x1ns" + sfx + ":")
        for b in range(NB):
            B(f"buffer_load_dwordx4 v[{96+4*b}:{99+4*b}], v8, s[32:35], s56 offen sc1")
            B("s_add_u32 s56, s56, 4096")
        B("s_waitcnt vmcnt(0)")
        B("v_mov_b32 v8, 0")
        for b in range(NB):
            B(f"v_xor_b32 v{98+4*b}, s40, v{98+4*b}")
            B(f"v_xor_b32 v{99+4*b}, s40, v{99+4*b}")
            B(f"v_or3_b32 v8, v8, v{98+4*b}, v{99+4*b}")
            B(f"v_mov_b32 v{24+2*b}, v{96+4*b}")
            B(f"v_mov_b32 v{25+2*b}, v{97+4*b}")
        B("v_cmp_ne_u32 vcc, 0, v8")
        B("s_cbranch_vccz L_x1ok" + sfx)
        B("s_cmp_lt_u32 s49, %d" % SPIN)
        B("s_cbranch_scc1 L_x1poll" + sfx)
        B("s_branch L_x1ok" + sfx)
        slow.extend(S)
        return k
    ka = cpath(4, "a", D, D, BX)
    LB("L_h")
    A("v_pk_add_f32 v[24:25], v[24:25], v[28:29]   ; gate")
    A("v_pk_add_f32 v[26:27], v[26:27], v[30:31]   ; up")
    A("v_cvt_pk_bf16_f32 v8, v24, v25")
    A("v_cvt_pk_bf16_f32 v12, v26, v27")
    A("v_lshlrev_b32 v18, 16, v8")
    A("v_and_b32 v19, 0xffff0000, v8")
    A("v_pk_mul_f32 v[20:21], v[18:19], s[50:51]")
    A("v_exp_f32 v20, v20")
    A("v_exp_f32 v21, v21")
    A("v_lshlrev_b32 v14, 16, v12")
    A("v_pk_add_f32 v[20:21], v[20:21], 1.0 op_sel_hi:[1,0]")
    A("v_rcp_f32 v20, v20")
    A("v_rcp_f32 v21, v21")
    A("v_and_b32 v15, 0xffff0000, v12")
    A("v_pk_mul_f32 v[18:19], v[18:19], v[20:21]")
    A("v_cvt_pk_bf16_f32 v8, v18, v19        ; silu")
    A("v_lshlrev_b32 v18, 16, v8")
    A("v_and_b32 v19, 0xffff0000, v8")
    A("v_pk_mul_f32 v[18:19], v[18:19], v[14:15]")
    A("v_cvt_pk_bf16_f32 v8, v18, v19        ; h")
    A(f"ds_write_b32 v7, v8 offset:{L_HB}")
    for k in range(ka, 8): perm_pair(raw2, frag2, *divmod(k, 4))
    A("s_waitcnt lgkmcnt(0)")
    A("s_barrier                            ; B4")
    for s in range(2):
        A(f"ds_read_b128 v[{HA+4*s}:{HA+4*s+3}], v13 offset:{L_HB + 512*s}")
    for s in range(2):
        A(f"s_waitcnt lgkmcnt({1-s})")
        for j in range(4):
            c = "0" if s == 0 else f"v[{ACC+4*j}:{ACC+4*j+3}]"
            A(f"v_mfma_f32_16x16x32_bf16 v[{ACC+4*j}:{ACC+4*j+3}], v[{HA+4*s}:{HA+4*s+3}], v[{frag2(s,j)}:{frag2(s,j)+3}], {c}")
    A("s_mov_b32 exec_lo, -1")
    A("s_mov_b32 exec_hi, 0")
    A("s_nop 2")
    for r in range(4):
        for j in range(4):
            A(f"v_and_or_b32 v{20+4*r+j}, v{ACC+4*j+r}, s48, v9")
        A(f"buffer_store_dwordx4 v[{20+4*r}:{23+4*r}], v11, s[32:35], s52 offen sc1")
        if r < 3: A("s_add_u32 s52, s52, %d" % (32*X2S))
    stamp(6)
    if not (nob5 or b4): A("s_waitcnt vmcnt(0)")
    if not b4: A("s_barrier                            ; B5")
    stamp(7)
    if stamps: A("s_branch L_fin")
    else: A("s_endpgm")

    def rsetup():
        A("s_mov_b64 s[32:33], s[18:19]")
        A("s_mov_b32 s34, %d" % WS_REC)
        A("s_mov_b32 s35, 0x20000")
        A("s_mov_b64 s[36:37], s[14:15]")
        A("s_mov_b32 s38, 524288")
        A("s_mov_b32 s39, 0x20000")
        A("v_and_b32 v4, 7, v0")
        if stamps:
            A("s_mov_b32 s59, 0")
            A("s_mov_b32 s49, 0")
    LB("L_route")
    rsetup()
    A("s_and_b32 s45, s52, 7")
    A("s_lshl_b32 s46, s45, 3")
    A("s_lshr_b32 s52, s52, 3               ; batch")
    A("s_add_u32 s46, s46, s52")
    A("s_mul_i32 s46, s46, %d" % LS)
    A("s_add_u32 s46, s46, %d               ; slot" % O_IDX)
    A("s_lshl_b32 s45, s45, 2")
    A("v_mul_u32_u24 v5, %d, v0             ; replica offset" % (8 if full else REPS))
    if ipf:
        A("s_mov_b64 exec, 0xff")
        A("buffer_load_dword v13, v5, s[32:35], s46 offen sc1")
        A("s_mov_b64 exec, -1")
    A("v_lshrrev_b32 v10, 5, v0")
    A("v_bfe_u32 v11, v0, 4, 1")
    A("v_lshl_add_u32 v10, v11, 1, v10")
    A("v_add_u32 v10, s45, v10")
    A("v_xor_b32 v10, 31, v10")
    for t in range(4):
        for hlf in range(2):
            A(f"s_waitcnt vmcnt({7 - 2*t - hlf + (1 if ipf else 0)})")
            for k in range(4):
                c = "0" if (hlf == 0 and k == 0) else f"v{6+t}"
                A(f"v_dot2_f32_bf16 v{6+t}, v{XR+8*t+4*hlf+k}, v{16+4*hlf+k}, {c}")
    A("s_waitcnt lgkmcnt(0)")
    A("s_add_u32 s40, s40, 8")
    A("s_nop 0")
    A("v_permlane32_swap_b32 v6, v7")
    A("v_permlane32_swap_b32 v8, v9")
    A("v_add_f32 v6, v6, v7")
    A("v_add_f32 v8, v8, v9")
    A("s_nop 1")
    A("v_permlane16_swap_b32 v6, v8")
    A("v_add_f32 v6, v6, v8")
    A("s_nop 1")
    A("v_add_f32_dpp v6, v6, v6 quad_perm:[1,0,3,2] row_mask:0xf bank_mask:0xf")
    A("s_nop 1")
    A("v_add_f32_dpp v6, v6, v6 quad_perm:[2,3,0,1] row_mask:0xf bank_mask:0xf")
    A("s_nop 1")
    A("v_add_f32_dpp v6, v6, v6 row_half_mirror row_mask:0xf bank_mask:0xf")
    A("s_nop 1")
    A("v_add_f32_dpp v6, v6, v6 row_mirror row_mask:0xf bank_mask:0xf")
    A("v_cvt_pk_bf16_f32 v7, v6, v6")
    A("v_and_b32 v7, 0xffff0000, v7          ; r (bf16)")
    A("v_ashrrev_i32 v6, 31, v7")
    A("v_or_b32 v6, 0x80000000, v6")
    A("v_xor_b32 v6, v6, v7")
    A("v_cmp_o_f32 vcc, v7, v7")
    A("v_and_b32 v6, 0xffff0000, v6")
    A("s_nop 0")
    A("v_cndmask_b32 v6, 0, v6, vcc")
    A("v_or_b32 v6, v10, v6")
    A("v_mov_b32 v7, v6")
    A("s_nop 1")
    A("v_permlane16_swap_b32 v6, v7")
    A("v_max_u32 v6, v6, v7")
    A("v_mov_b32 v7, v6")
    A("s_nop 1")
    A("v_permlane32_swap_b32 v6, v7")
    A("v_max_u32 v6, v6, v7")
    A("v_mov_b32 v7, s40")
    if rlag: A(f"s_sleep {rlag}")
    A("s_mov_b64 exec, 0x%x" % ((1 << (LS // 8 if full else NR)) - 1))
    A(f"buffer_store_dwordx2 v[6:7], v5, s[32:35], s46 offen {rpol}")
    A("s_mov_b64 exec, -1")
    A("s_barrier                            ; B0b")
    stamp(1)
    A("s_setprio 0")
    A("s_cmp_eq_u32 s3, 4")
    A("s_cbranch_scc1 L_r4")
    A("s_endpgm")
    if align: L.append(".p2align 12" if not (D0 or pace) else ".p2align 6")
    LB("L_cb")
    kb = cpath(2, "b", D3, D3W, BX3)
    assert ka == kb
    A("s_branch L_h")
    LB("L_cc")
    if LBR == 16: stamp(2)
    for n in range(CW): w2load(n)
    for d in range(st["done"]):
        A(f"s_waitcnt vmcnt({LBR - 8 - 8*d + CW})")
        perms(raw, frag, d)
    A("s_barrier                            ; BX")
    for n in range(LBR, 16): w1load(n)
    if LBR < 16: stamp(2)
    for n in range(CW, BX3): w2load(n)
    A("s_branch L_bx")

    def idload():
        A(f"buffer_load_dwordx4 v[{IDR}:{IDR+3}], v14, s[28:31], s53 offen{xpol}")
        A(f"buffer_load_dwordx4 v[{IDR+4}:{IDR+7}], v14, s[28:31], s53 offen offset:1024{xpol}")
    def idconv():
        for r in range(IDR, IDR+8):
            A(f"v_lshlrev_b32 v16, 16, v{r}")
            A(f"v_and_b32 v17, 0xffff0000, v{r}")
            A("v_pk_fma_f32 v[16:17], v[16:17], 0, v[16:17] op_sel_hi:[1,0,1]")
            A(f"v_cvt_pk_bf16_f32 v{r}, v16, v17    ; x + x*0")
    def psetup():
        A("s_lshl_b32 s53, s2, 11")
        A("v_mul_u32_u24 v12, %d, v0            ; poll offset" % LS)
        if NR < 8:
            A(f"s_and_b32 s47, s22, {NR - 1}")
            A("s_mul_i32 s47, s47, %d" % REPS)
        else: A("s_mul_i32 s47, s22, %d" % REPS)
        A("s_add_u32 s47, s47, %d               ; this group's replica" % O_IDX)
        A("v_lshrrev_b32 v11, 3, v0")
        A("s_lshr_b32 s45, s21, 1")
        A("s_sub_u32 s46, 10, s57")
        A("s_lshl_b32 s45, s45, s46")
        A("s_lshl_b32 s48, s20, 14")
        A("s_lshl_b32 s46, s21, 11")
        A("s_add_u32 s48, s48, s46")
        A("s_add_u32 s48, s48, %d               ; own L2-local block" % O_EX1F)
        A("s_lshr_b32 s51, s2, 5")
        if ldr:
            A("s_getreg_b32 s42, hwreg(HW_REG_XCC_ID, 0, 3)")
            A("v_lshlrev_b32 v13, 3, v0")
            A("s_lshl_b32 s42, s42, %d" % ({16: 10, 32: 11}[NC] if mc else 8))
            A("s_add_u32 s42, s42, %d               ; this die's copy of the keys" % O_LDR)
    LB("L_r")
    A("s_waitcnt lgkmcnt(0)")
    A("s_load_dword s40, s[18:19], 0        ; epoch")
    A("s_mov_b64 s[28:29], s[4:5]")
    rsetup()
    stamp(1)
    LB("L_r4")
    psetup()
    for i in range(NC // 16): A(f"buffer_load_dwordx4 v[{16+4*i}:{19+4*i}], v14, s[32:35], s42 offen offset:{1024*i}")
    A("s_cmp_eq_u32 s58, 1")
    A("s_cbranch_scc1 L_rr")
    A("v_mov_b32 v8, 0")
    A("s_mov_b32 s49, 0")
    LB("L_fwait")
    if fsleep: A(f"s_sleep {fsleep}")
    A(f"ds_read_b32 v9, v8 offset:{L_FLAG}")
    A("s_add_u32 s49, s49, 1")
    A("s_cmp_ge_u32 s49, %d" % SPIN)
    A("s_waitcnt lgkmcnt(0)")
    A("v_cmp_eq_u32 vcc, 0, v9")
    A("s_cbranch_scc1 L_fok")
    A("s_cbranch_vccnz L_fwait")
    LB("L_fok")
    idload()
    A("s_add_u32 s40, s40, 8")
    A("s_cmp_eq_u32 s57, 1")
    A("s_cbranch_scc1 L_lead")
    if SF - RF: A(f"s_sleep {SF - RF}")
    A("s_branch L_sp0")
    LB("L_rr")
    idload()
    LB("L_sp0")
    if RF: A(f"s_sleep {RF}")
    stamp(2)
    A("s_mov_b32 s49, 0")
    A("s_mov_b32 s46, s42")
    LB("L_spoll")
    if ssl: A(f"s_sleep {ssl}")
    A("s_load_dwordx16 s[76:91], s[18:19], s46")
    A("s_add_u32 s46, s46, 64")
    A("s_add_u32 s49, s49, 1")
    A(f"s_cmp_gt_u32 s49, {NSP}")
    A("s_cbranch_scc1 L_ip0")
    A("s_waitcnt lgkmcnt(0)")
    A("s_xor_b32 s43, s77, s40")
    for i in range(1, 8):
        A(f"s_xor_b32 s44, s{77+2*i}, s40")
        A("s_or_b32 s43, s43, s44")
    A("s_cbranch_scc1 L_spoll")
    stamp(3)
    if stamps: A("s_mov_b32 s59, s49")
    A("s_mov_b32 exec_lo, 0x01010101")
    A("s_mov_b32 exec_hi, 0x01010101")
    for i in range(8):
        A(f"v_mov_b32 v6, s{76+2*i}")
        A("s_lshl_b64 exec, exec, 1" if i < 7 else "s_mov_b64 exec, -1")
    A("s_branch L_sok")
    LB("L_lead")
    if LF: A(f"s_sleep {LF}")
    stamp(2)
    LB("L_ip0")
    A("s_waitcnt lgkmcnt(0)")
    A("s_mov_b32 s49, 0")
    LB("L_ipoll")
    if IS: A(f"s_sleep {IS}")
    A(f"buffer_load_dwordx2 v[8:9], v12, s[32:35], s47 offen sc1")
    LB("L_ichk")
    A("s_add_u32 s49, s49, 1")
    A("s_cmp_ge_u32 s49, %d" % SPIN)
    A(f"s_waitcnt vmcnt(0)")
    A(f"v_cmp_ne_u32 vcc, s40, v9")
    A("s_cbranch_scc1 L_iok")
    A("s_cbranch_vccnz L_ipoll")
    LB("L_iok")
    stamp(3)
    if stamps: A("s_mov_b32 s59, s49")
    A("v_max_u32_dpp v8, v8, v8 row_ror:8 row_mask:0xf bank_mask:0xf")
    A("v_mov_b32 v9, v8")
    if ldr:
        A("v_mov_b32 v7, s40")
        A("s_nop 0")
    else:
        A("s_mov_b32 m0, %d" % L_XS)
        A("s_cmp_eq_u32 s57, 1")
    A("v_permlane16_swap_b32 v8, v9")
    A("v_max_u32 v8, v8, v9")
    A("v_mov_b32 v9, v8")
    A("s_nop 1")
    A("v_permlane32_swap_b32 v8, v9")
    A("v_max_u32 v6, v8, v9")
    if ldr:
        if mc:
            for i in range(NC // 8): A(f"buffer_store_dwordx2 v[6:7], v13, s[32:35], s42 offen offset:{512*i}")
        else:
            A("s_mov_b64 exec, 0xff")
            A("buffer_store_dwordx2 v[6:7], v13, s[32:35], s42 offen")
            A("s_mov_b64 exec, -1")
        LB("L_sok")
        A("s_mov_b32 m0, %d" % L_XS)
        A("s_cmp_eq_u32 s57, 1")
    A("v_and_b32 v10, 31, v6")
    A("v_xor_b32 v10, 31, v10")
    A("v_lshl_add_u32 v10, v4, 5, v10       ; row")
    A("v_lshlrev_b32 v10, 11, v10")
    A("v_lshl_add_u32 v10, v11, 4, v10      ; + chunk*16")
    for i in range(8):
        if i == 4: A("s_cbranch_scc1 L_dmadone")
        A(f"buffer_load_dwordx4 v10, s[28:31], s45 offen{xpol} lds")
        if i < 7:
            A("s_mov_b32 m0, %d" % (L_XS + 1024*(i+1)))
            A("v_add_u32 v10, 128, v10")
    LB("L_dmadone")
    if not early_id: idload()
    A("buffer_load_dwordx4 v[24:27], v14, s[32:35], s48 offen")
    A("buffer_load_dwordx4 v[28:31], v14, s[32:35], s48 offen offset:1024")
    A("s_barrier                            ; BX")
    A("v_readlane_b32 s55, v6, s51")
    A("s_and_b32 s46, s2, 31")
    A("s_and_b32 s54, s55, 31")
    A("s_xor_b32 s54, s54, 31")
    A("s_cmp_eq_u32 s54, s46")
    A("s_cselect_b32 s56, 0x40000000, s53")
    if ldr:
        A("s_waitcnt vmcnt(10)")
        A("s_cmp_eq_u32 s57, 0")
        A("s_cbranch_scc1 L_idw")
        A("s_waitcnt vmcnt(6)")
        LB("L_idw")
        idconv()
    if early_id:
        A(f"buffer_store_dwordx4 v[{IDR}:{IDR+3}], v14, s[36:39], s56 offen{outpol}")
        A(f"buffer_store_dwordx4 v[{IDR+4}:{IDR+7}], v14, s[36:39], s56 offen offset:1024{outpol}")
    A("v_lshrrev_b32 v7, 5, v0")
    A("v_bfe_u32 v8, v0, 4, 1")
    A("v_lshl_add_u32 v7, v8, 1, v7         ; e")
    A("v_lshl_add_u32 v7, v4, 2, v7         ; 4*pos + e")
    A("s_lshl_b32 s45, s51, 5")
    A("s_add_u32 s45, s45, s54")
    A("s_lshl_b32 s45, s45, 5")
    A("s_add_u32 s45, s45, s46")
    A("s_lshl_b32 s45, s45, 5")
    A("v_add_u32 v7, s45, v7")
    A("v_lshlrev_b32 v7, 1, v7")
    A("buffer_load_ushort v9, v7, s[28:31], 0 offen")
    A("s_waitcnt vmcnt(5)")
    A("s_barrier                            ; B2")
    stamp(4)
    if not early_id:
        A("s_waitcnt vmcnt(3)")
        idconv()
    A("s_lshr_b32 s44, s55, 16")
    A("s_xor_b32 s45, s44, 0xffff")
    A("s_and_b32 s44, s44, 0x7fff")
    A("s_cmp_lt_i32 s55, 0")
    A("s_cselect_b32 s44, s44, s45")
    A("s_lshl_b32 s44, s44, 16              ; r")
    A("v_mov_b32 v10, 0xbfb8aa3b")
    A("v_mul_f32 v10, s44, v10")
    A("v_exp_f32 v10, v10")
    A("s_and_b32 s41, s40, 0xff")
    A("v_add_f32 v10, 1.0, v10")
    A("v_rcp_f32 v10, v10")
    A("s_barrier                            ; B3")
    if not early_id:
        A(f"buffer_store_dwordx4 v[{IDR}:{IDR+3}], v14, s[36:39], s56 offen{outpol}")
        A(f"buffer_store_dwordx4 v[{IDR+4}:{IDR+7}], v14, s[36:39], s56 offen offset:1024{outpol}")
    A("v_cvt_pk_bf16_f32 v10, v10, v10")
    A("v_and_b32 v10, 0xffff0000, v10       ; sigmoid")
    A("s_mul_i32 s46, s2, %d" % X2S)
    A("s_add_u32 s46, s46, %d" % O_EX2)
    A("s_add_u32 s47, s46, 4096")
    A("s_mov_b32 s49, 0")
    A("s_mov_b32 s44, 0x00ff00ff")
    A("s_mov_b32 s45, 0x00ff00ff")
    A("s_waitcnt vmcnt(0)")
    A("v_lshlrev_b32 v9, 16, v9             ; x")
    if mx: A("v_mov_b32 v13, 0")
    A("s_barrier                            ; B4")
    if not b4: A("s_barrier")
    stamp(5)
    if X20 is not None:
        A(f"s_cmp_eq_u32 s22, {PERM[0]}")
        A("s_cbranch_scc1 L_x20")
        A(f"s_sleep {x2d - X20}")
        LB("L_x20")
        if X20: A(f"s_sleep {X20}")
    elif x2d: A(f"s_sleep {x2d}")
    if mx:
        MS = 76 if stamps else 60
        def ld(i):
            so = "s46" if i < 4 else "s47"
            A(f"buffer_load_dwordx4 v[{32+4*i}:{35+4*i}], v14, s[32:35], {so} offen offset:{(i%4)*1024} sc1")
        def chk(i):
            b = 32 + 4*i
            for r in range(b, b+4): A(f"v_xor_b32 v{r}, s41, v{r}")
            A(f"v_or3_b32 v15, v{b}, v{b+1}, v{b+2}")
            A(f"v_or_b32 v15, v15, v{b+3}")
            A(f"v_cmp_ne_u32_sdwa s[{MS+2*i}:{MS+2*i+1}], v15, v13 src0_sel:BYTE_0 src1_sel:DWORD")
        def anyleft():
            A(f"s_or_b64 s[42:43], s[{MS}:{MS+1}], s[{MS+2}:{MS+3}]")
            for i in range(2, 7): A(f"s_or_b64 s[42:43], s[42:43], s[{MS+2*i}:{MS+2*i+1}]")
        for i in range(7): ld(i)
        A("s_mov_b32 s49, 1")
        for i in range(7):
            A(f"s_waitcnt vmcnt({6-i})")
            chk(i)
            if i == 1: A("v_pk_add_f32 v[16:17], v[32:33], v[36:37]"); A("v_pk_add_f32 v[18:19], v[34:35], v[38:39]")
            if i >= 2: A(f"v_pk_add_f32 v[16:17], v[16:17], v[{32+4*i}:{33+4*i}]"); A(f"v_pk_add_f32 v[18:19], v[18:19], v[{34+4*i}:{35+4*i}]")
        anyleft()
        A("s_cbranch_scc0 L_x2ok")
        LB("L_x2poll")
        if x2s: A(f"s_sleep {x2s}")
        for i in range(7):
            A(f"s_mov_b64 exec, s[{MS+2*i}:{MS+2*i+1}]")
            A(f"s_cbranch_execz L_x2l{i}")
            ld(i)
            LB(f"L_x2l{i}")
        A("s_add_u32 s49, s49, 1")
        A("s_waitcnt vmcnt(0)")
        for i in range(7):
            A(f"s_mov_b64 exec, s[{MS+2*i}:{MS+2*i+1}]")
            A(f"s_cbranch_execz L_x2c{i}")
            chk(i)
            LB(f"L_x2c{i}")
        A("s_mov_b64 exec, -1")
        anyleft()
        A("s_cbranch_scc0 L_x2sum")
        A("s_cmp_lt_u32 s49, %d" % SPIN)
        A("s_cbranch_scc1 L_x2poll")
        LB("L_x2sum")
        A("v_pk_add_f32 v[16:17], v[32:33], v[36:37]"); A("v_pk_add_f32 v[18:19], v[34:35], v[38:39]")
        for i in range(2, 7):
            A(f"v_pk_add_f32 v[16:17], v[16:17], v[{32+4*i}:{33+4*i}]"); A(f"v_pk_add_f32 v[18:19], v[18:19], v[{34+4*i}:{35+4*i}]")
        A("s_nop 0")
    else:
        LB("L_x2poll")
        for i in range(7):
            so = "s46" if i < 4 else "s47"
            A(f"buffer_load_dwordx4 v[{32+4*i}:{35+4*i}], v14, s[32:35], {so} offen offset:{(i%4)*1024} sc1")
        A("s_add_u32 s49, s49, 1")
        for i in range(7):
            A(f"s_waitcnt vmcnt({6-i})")
            b = 32 + 4*i
            for r in range(b, b+4): A(f"v_xor_b32 v{r}, s41, v{r}")
            if i == 0:
                A(f"v_or3_b32 v15, v{b}, v{b+1}, v{b+2}")
                A(f"v_or_b32 v15, v15, v{b+3}")
            else:
                A(f"v_or3_b32 v15, v15, v{b}, v{b+1}")
                A(f"v_or3_b32 v15, v15, v{b+2}, v{b+3}")
                src = 32 if i == 1 else 16
                A(f"v_pk_add_f32 v[16:17], v[{src}:{src+1}], v[{b}:{b+1}]")
                A(f"v_pk_add_f32 v[18:19], v[{src+2}:{src+3}], v[{b+2}:{b+3}]")
        A("v_and_b32 v15, 0xff, v15")
        A("v_cmp_ne_u32 vcc, 0, v15")
        A("s_cbranch_vccz L_x2ok")
        if x2s: A(f"s_sleep {x2s}")
        A("s_cmp_lt_u32 s49, %d" % SPIN)
        A("s_cbranch_scc1 L_x2poll")
    LB("L_x2ok")
    stamp(6)
    A("v_permlane32_swap_b32 v16, v17")
    A("v_permlane32_swap_b32 v18, v19")
    A("v_add_f32 v16, v16, v17")
    A("v_add_f32 v18, v18, v19")
    A("s_nop 1")
    A("v_permlane16_swap_b32 v16, v18")
    A("v_add_f32 v16, v16, v18")
    A("s_nop 1")
    A("v_add_f32_dpp v16, v16, v16 row_ror:8 row_mask:0xf bank_mask:0xf")
    A("s_mov_b64 exec, s[44:45]")
    A("v_cvt_pk_bf16_f32 v16, v16, v16")
    A("v_and_b32 v16, 0xffff0000, v16       ; y")
    A("v_mul_f32 v16, v16, v10")
    A("v_cvt_pk_bf16_f32 v16, v16, v16")
    A("v_and_b32 v16, 0xffff0000, v16       ; y*sigmoid")
    A("v_fma_f32 v16, v9, 0, v16            ; upd = x*0 + y")
    A("v_add_f32 v16, v9, v16")
    A("v_cvt_pk_bf16_f32 v16, v16, v16")
    A(f"buffer_store_short v16, v7, s[36:39], 0 offen{finpol}")
    A("s_cmp_lg_u32 s2, 0")
    A("s_cbranch_scc1 L_noep")
    A("v_mov_b32 v18, s40")
    A("v_mov_b32 v17, 0")
    A("s_mov_b64 exec, 1")
    A("buffer_store_dword v18, v17, s[32:35], 0 offen sc1")
    LB("L_noep")
    stamp(7)
    LB("L_fin")
    if stamps:
        import diag
        if dg: diag.epilogue(A, LB, dg, nwg=256, invalid=())
        elif gamp: diag.gamp(A, LB, gamp)
        else:
            A("s_barrier")
            diag.dump(A, LB)
    LB("L_end")
    A("s_endpgm")
    L.extend(slow)
    body = "\n".join(L)
    pad = ".p2align 12\n.fill 832, 4, 0xbf800000            ; the kernel starts a 4 KB page (instruction prefetch stops at page ends)\n" if align else ""
    return f"""{HEAD}; @launch grid=(256,1,1) block=(384,1,1) lds={LDS_BYTES}
{DOC}.amdgcn_target "amdgcn-amd-amdhsa--gfx950"
.text
.globl {KN}
{pad}.p2align 8
.type {KN},@function
{KN}:
{body}
.section .rodata,"a"
.p2align 6
.amdhsa_kernel {KN}
  .amdhsa_next_free_vgpr 160
  .amdhsa_next_free_sgpr 96
  .amdhsa_accum_offset 160
  .amdhsa_group_segment_fixed_size 0
  .amdhsa_kernarg_size 64
  .amdhsa_user_sgpr_count 2
  .amdhsa_user_sgpr_kernarg_segment_ptr 1
  .amdhsa_system_sgpr_workgroup_id_x 1
  .amdhsa_float_denorm_mode_32 3
.end_amdhsa_kernel
"""
if __name__ == "__main__":
    import sys, json
    kw = json.loads(sys.argv[2]) if len(sys.argv) > 2 else {}
    open(sys.argv[1] if len(sys.argv) > 1 else "standalone__moe_arch_mod__sampling.s", "w").write(gen(**kw))
```

```python
KN = "standalone__moe_arch_mod__sampling_kernel"
HEAD = open("standalone__moe_arch_mod__sampling.s.ref").read().split("; Override launch")[0]

O_IDX = 0x1000
O_LDR = 0x12000
O_EX1F = 0x20000
O_EX2 = 0x100000
O_EX1 = 0x300000
WS_REC = 0x500000
L_XS = 0
L_RED = 8192
L_HB = 16384
L_KEY = 17408
L_FLAG = 17408 + 32
LDS_BYTES = 17408 + 64
SPIN = 40000

DOC = """; MoD sampling block: route (argmax of x.w_r per batch), SwiGLU FFN on the 8 selected rows, residual update.
"""

def gen(pol="nt", xpol="", D=10, DI=6, D3=8, D3W=12, BX=4, BX3=8, DX=32, LS=16, NF=12, PK=3, FS=38, fsleep=1,
        outpol="sc1", finpol="", x1pol="", x2d=27, PERM=(7,0,1,2,4,5,6,3), align=True, prog=True, early_id=True,
        stamps=False, dg=None, gamp=None, cst1=True, lag0=0, MAP="B", DUP0=True, X2S=8192, nob5=False, mx=False, x2s=0, b4=True, rlag=0, IS=0, ipf=0, FS0=None, X20=None, late2=0, late3=0, D0=None, pace=None, pace3=None, DT=None, em=0, ldr=True, NSP=None, ssl=2, hold=None, mc=True, SF=36, NC=16, lid='pre', lw=None, D3B=None, hx=False, D3X=None, R3=1, wg=None, NLD=1, LF=40, RF=0, CW=0, lp=1, lps=5, NR=8, FA=1, full=False, rpol='sc1', LBR=16, nodup=False, nr0=False, PK3=None, KP=4, LF0=None, sib=None):
    if gamp or dg: stamps = True
    if NSP is None: NSP = NC - 1
    L = []
    def A(s): L.append("  " + s)
    def LB(s): L.append(s + ":")
    def stamp(i):
        if stamps: A(f"s_memrealtime s[{60+2*i}:{61+2*i}]")
    sp = lambda p: (" " + p) if p else ""
    pol, xpol, outpol, finpol, x1pol = map(sp, (pol, xpol, outpol, finpol, x1pol))
    REPS = 64 * LS
    XR = 80
    RAW = 16; FR = 80; XB = 96; ACC = 112; W2 = 128
    F2 = 40; HA = 72
    IDR = 40
    def raw(s, i): return RAW + 16*s + 2*i
    def frag(s, j): return (FR if s == 0 else RAW + 16*(s-1)) + 4*j
    def raw2(s, i): return W2 + 16*s + 2*i
    def frag2(s, j): return F2 + 16*s + 4*j
    def perm_pair(rawf, fragf, s, p):
        for e in range(2):
            A(f"v_perm_b32 v{fragf(s,2*e)+p}, v{rawf(s,2*p+1)+e}, v{rawf(s,2*p)+e}, s42")
            A(f"v_perm_b32 v{fragf(s,2*e+1)+p}, v{rawf(s,2*p+1)+e}, v{rawf(s,2*p)+e}, s43")
    def perms(rawf, fragf, s):
        for p in range(4): perm_pair(rawf, fragf, s, p)
    def w1load(n):
        s, i = divmod(n, 8)
        A(f"buffer_load_dwordx2 v[{raw(s,i)}:{raw(s,i)+1}], v3, s[24:27], s44 offen{pol}")
        A("s_addk_i32 s44, 7168" if i < 7 else "s_add_u32 s44, s44, %d" % (25*7168))
    def w2load(n):
        s, i = divmod(n, 8)
        p, b = divmod(i, 2)
        row = 2*s + (p >> 1) + 8*(p & 1) + 4*b
        A("s_add_u32 s47, s53, %d" % (row*2048))
        A(f"buffer_load_dwordx2 v[{raw2(s,i)}:{raw2(s,i)+1}], v10, s[28:31], s47 offen{pol}")

    if lag0:
        A("s_and_b32 s3, s2, 7")
        A("s_cmp_lg_u32 s3, 0")
        A("s_cbranch_scc1 L_nolag")
        A(f"s_sleep {lag0}")
        LB("L_nolag")
    stamp(0)
    A("s_cmp_ge_u32 s2, 256")
    A("s_cbranch_scc1 L_exit")
    A("s_load_dwordx16 s[4:19], s[0:1], 0")
    A("v_lshrrev_b32 v1, 6, v0")
    A("v_and_b32 v0, 63, v0                 ; lane")
    A("v_readfirstlane_b32 s3, v1           ; wave")
    A("s_lshl_b32 s22, s2, 2")
    A("s_lshr_b32 s22, 0x%x, s22" % sum(v << (4*i) for i, v in enumerate(PERM)))
    A("s_and_b32 s22, s22, 7")
    A("s_lshr_b32 s23, s2, 3")
    A("s_lshr_b32 s44, s23, 2")
    A("s_mul_i32 s45, s22, 6")
    A("s_add_u32 s45, s45, s44")
    A("s_add_u32 s44, s45, 4")
    A("s_mul_i32 s44, s44, 37")
    A("s_lshr_b32 s44, s44, 8")
    A("s_add_u32 s20, s45, s44")
    A("s_lshl_b32 s44, s22, 3")
    A("s_add_u32 s44, s44, 3")
    A("s_min_u32 s44, s44, 55")
    A("s_cmp_ge_u32 s23, 24")
    A("s_cselect_b32 s20, s44, s20")
    A("s_cselect_b32 s57, 1, 0")
    A("s_cselect_b32 s21, 7, 3")
    A("s_and_b32 s21, s21, s23              ; part")
    A(f"s_cmp_ge_u32 s23, {24 + NLD}")
    A("s_cselect_b32 s58, 1, 0")
    A("s_mov_b32 s27, 0x20000")
    A("s_cmp_lt_u32 s3, 4")
    A("s_cbranch_scc1 L_c")
    A("s_mov_b32 s30, 524288")
    A("s_mov_b32 s31, 0x20000")
    A("v_lshlrev_b32 v14, 4, v0             ; lane*16")
    A("s_cmp_eq_u32 s58, 1")
    A("s_cbranch_scc1 L_rt")
    A("s_cmp_eq_u32 s3, 4")
    A("s_cbranch_scc1 L_r")
    LB("L_exit")
    A("s_endpgm")
    LB("L_rt")
    A("s_setprio 3")
    A(f"s_mul_i32 s52, s22, {8 - NLD}")
    A("s_add_u32 s52, s52, s21")
    A("s_lshl_b32 s52, s52, 1")
    A("s_add_u32 s52, s52, s3")
    A(f"s_sub_u32 s52, s52, {4 + 2*NLD}")
    A("s_and_b32 s52, s52, 63")
    A("s_lshl_b32 s44, s52, 13")
    A("s_add_u32 s45, s44, 4096")
    A("s_movk_i32 s26, 2048")
    A("s_waitcnt lgkmcnt(0)")
    A("s_mov_b64 s[28:29], s[4:5]")
    A("s_mov_b64 s[24:25], s[6:7]")
    A("s_load_dword s40, s[18:19], 0        ; epoch")
    A(f"buffer_load_dwordx4 v[16:19], v14, s[24:27], 0 offen")
    A(f"buffer_load_dwordx4 v[20:23], v14, s[24:27], 0 offen offset:1024")
    for i in range(8):
        A(f"buffer_load_dwordx4 v[{XR+4*i}:{XR+4*i+3}], v14, s[28:31], {'s44' if i < 4 else 's45'} offen offset:{(i%4)*1024}{xpol}")
    A("s_barrier                            ; B0")
    A("s_branch L_route")
    LB("L_c")
    A("v_mov_b32 v4, 0")
    A(f"ds_write_b32 v4, v4 offset:{L_FLAG}")
    A("s_mov_b32 s26, 7340032")
    A("v_lshrrev_b32 v1, 4, v0              ; g")
    A("v_and_b32 v2, 15, v0                 ; n")
    A("v_mul_u32_u24 v3, %d, v1" % (8*7168))
    A("v_lshl_add_u32 v3, v2, 3, v3         ; voffset")
    A("s_lshr_b32 s44, s21, 1")
    A("s_lshl_b32 s44, s44, 2")
    A("s_add_u32 s44, s44, s3")
    A("s_lshr_b32 s45, %d, s57" % (128*7168))
    A("s_mul_i32 s44, s44, s45")
    A("s_lshl_b32 s45, s20, 7")
    A("s_add_u32 s44, s44, s45              ; soffset")
    A("s_bitcmp1_b32 s21, 0")
    A("s_waitcnt lgkmcnt(0)")
    A("s_cselect_b64 s[24:25], s[10:11], s[8:9]")
    A("s_cmp_eq_u32 s58, 0")
    A("s_cbranch_scc1 L_nb0")
    A("s_barrier")
    LB("L_nb0")
    if not cst1: stamp(1)
    for n in range(DI): w1load(n)
    A("s_load_dword s40, s[18:19], 0        ; epoch")
    if stamps:
        A("s_getreg_b32 s59, hwreg(HW_REG_HW_ID)")
    A("s_mov_b64 s[32:33], s[18:19]")
    A("s_mov_b32 s34, %d" % WS_REC)
    A("s_mov_b32 s35, 0x20000")
    A("s_mov_b32 s42, 0x05040100")
    A("s_mov_b32 s43, 0x07060302")
    A("v_and_b32 v8, 7, v0")
    A("v_lshl_add_u32 v13, v1, 3, v8")
    A("v_lshlrev_b32 v13, 4, v13")
    A("s_lshl_b32 s45, s3, 11")
    A("v_add_u32 v4, s45, v13")
    A("s_lshr_b32 s45, s45, s57")
    A("v_add_u32 v5, s45, v13")
    A("v_lshlrev_b32 v6, 3, v0")
    A("s_lshl_b32 s45, s3, 9")
    A("v_add_u32 v6, s45, v6                ; w*512 + lane*8")
    A("v_lshrrev_b32 v7, 1, v0")
    A("v_lshlrev_b32 v7, 4, v7")
    A("v_and_b32 v9, 1, v0")
    A("v_lshl_add_u32 v7, v9, 2, v7")
    A("s_lshr_b32 s45, s3, 1")
    A("s_lshl_b32 s45, s45, 9")
    A("s_and_b32 s46, s3, 1")
    A("s_lshl_b32 s46, s46, 3")
    A("s_add_u32 s45, s45, s46")
    A("v_add_u32 v7, s45, v7")
    A("s_mov_b64 s[28:29], s[12:13]")
    A("s_mov_b32 s30, 7340032")
    A("s_mov_b32 s31, 0x20000")
    A("v_lshlrev_b32 v10, 15, v1            ; g*16*2048")
    A("v_lshl_add_u32 v10, v2, 3, v10")
    A("v_lshrrev_b32 v11, 3, v2")
    A("v_lshl_add_u32 v11, v1, 7, v11       ; 4g*32 + (n>>3)")
    A("v_mul_u32_u24 v11, %d, v11" % X2S)
    A("v_lshl_add_u32 v11, v8, 4, v11       ; + (n&7)*16")
    A("s_lshl_b32 s53, s21, 2")
    A("s_lshr_b32 s53, s53, s57")
    A("s_add_u32 s53, s53, s3")
    A("s_lshr_b32 s45, s3, 1")
    A("s_and_b32 s45, s45, s57")
    A("s_lshl_b32 s45, s45, 30")
    A("v_or_b32 v10, s45, v10")
    A("v_or_b32 v11, s45, v11")
    A("s_mul_i32 s52, s53, %d" % (2*X2S))
    A("s_lshl_b32 s46, s20, 7")
    A("s_add_u32 s52, s52, s46")
    A("s_add_u32 s52, s52, %d" % O_EX2)
    A("s_lshl_b32 s53, s53, 7")
    A("s_lshl_b32 s46, s20, 17              ; tile*64*2048")
    A("s_add_u32 s53, s53, s46")
    A("s_lshl_b32 s45, s20, 14")
    A("s_lshl_b32 s46, s21, 11")
    A("s_add_u32 s45, s45, %d               ; group base" % O_EX1F)
    A("s_add_u32 s46, s46, s45")
    A("s_mov_b32 s48, 0xffffff00")
    A("s_mov_b32 s50, 0xbfb8aa3b            ; -log2(e)")
    A("s_mov_b32 s51, 0xbfb8aa3b")
    A("s_mov_b32 s49, 0")
    A("s_getreg_b32 s54, hwreg(HW_REG_XCC_ID, 0, 3)")
    A("v_mov_b32 v12, 1")
    if not D0: A("v_cmp_eq_u32 vcc, s57, v12")
    A("s_cmp_eq_u32 s58, 1")
    A("s_cbranch_scc1 L_cb")

    slow = []; st = {}
    def cpath(NS, sfx, DD, DW, bx):
        NL = 8*NS
        done = 0
        landed = 0
        if NS == 2: A("s_barrier")
        lt = late2 if NS == 4 else late3
        if D0 and NS == 4:
            A(f"s_cmp_eq_u32 s22, {PERM[0]}")
            A("s_cselect_b64 vcc, -1, 0")
        landed0 = 1
        for n in range(DI, NL + 16 - lt):
            dn = min(DD, DI + (n - DI + 1) * (R3 if NS == 2 else 1) // 2) if n < NL else DW
            if n >= NL + bx:
                if n == NL + bx:
                    A("s_barrier")
                    if NS == 2:
                        LB("L_bx"); st["done"] = done
                dn = DX
                if wg is not None and NS == 4 and n == NL + bx: dn = bx + wg + 1
            if NS == 2 and hold is not None:
                if n == DI + hold: A("s_barrier                            ; " + ("BX: the keys and the selected rows are in the queue" if hx else "B0c: the first look at the scores is in the queue"))
                if D3B and DI + hold <= n < NL: dn = D3B
                if D3X and n >= NL: dn = D3X
            if DT and NS == 4 and DT[0] <= n < NL + bx: dn = min(DT[1], DD + (n - DT[0] + 1) * DT[2] // 2)
            pc = pace if NS == 4 else pace3
            if pc and DI < n < NL + bx:
                dn = pc[2]
                if (n - DI) % pc[0] == 0 or pc[0] == 1: A(f"s_sleep {pc[1]}")
            if D0 and NS == 4 and n > DI + 1 and n < NL + bx:
                d0 = min(D0[0] + (n & 1), DI + (n - DI + 1) * D0[1] // 2)
                if n >= NL: d0 = dn = max(dn, 12)
                if n - dn + 1 > landed0 and d0 > dn:
                    A(f"s_cbranch_vccnz L_d0_{n}")
                    A(f"s_waitcnt vmcnt({dn-1})")
                    LB(f"L_d0_{n}")
                    landed0 = n - dn + 1
                dn = max(dn, d0)
            if n - dn + 1 > landed:
                A(f"s_waitcnt vmcnt({dn-1})")
                landed = n - dn + 1
            if n == DI and cst1: stamp(1)
            if n == LBR and NS == 4:
                assert done == 0
                if D0:
                    A("s_cmp_eq_u32 s57, 1")
                    A("s_cbranch_scc1 L_cc")
                else: A("s_cbranch_vccnz L_cc")
            if n < NL: w1load(n)
            else: w2load(n - NL)
            if n == DI and NS == 4:
                A(f"ds_write_b32 v12, v12 offset:{L_FLAG - 1}")
            if n == NL - 1: stamp(2)
            while done < NS and 8*done + 8 <= landed:
                perms(raw, frag, done); done += 1
        A("s_waitcnt lgkmcnt(0)")
        A("s_add_u32 s40, s40, 8                ; tag32")
        A("s_and_b32 s41, s40, 0xff")
        A("s_and_b32 s55, s40, 0xf8")
        A("s_or_b32 s54, s54, s55")
        A("v_mov_b32 v9, s41")
        A("v_mov_b32 v12, s54")
        if NL + 16 - lt <= NL + bx: A("s_barrier                            ; BX")
        while done < NS - (1 if em and NS == 4 else 0):
            A(f"s_waitcnt vmcnt({NL + 16 - lt - 8*done - 8})")
            perms(raw, frag, done); done += 1
        A("s_barrier")
        stamp(3)
        for n in range(16 - lt, 16): w2load(n)
        for s in range(NS):
            A(f"ds_read_b128 v[{XB+4*s}:{XB+4*s+3}], v5 offset:{L_XS + 512*s}")
        for s in range(NS):
            late = done < NS
            if late and em == 1 and s == NS - 1:
                A("s_waitcnt vmcnt(16)")
                perms(raw, frag, NS - 1)
            if late and em == 2 and s == NS - 2: A("s_waitcnt vmcnt(16)")
            A(f"s_waitcnt lgkmcnt({NS-1-s})")
            for j in range(4):
                c = "0" if s == 0 else f"v[{ACC+4*j}:{ACC+4*j+3}]"
                A(f"v_mfma_f32_16x16x32_bf16 v[{ACC+4*j}:{ACC+4*j+3}], v[{frag(s,j)}:{frag(s,j)+3}], v[{XB+4*s}:{XB+4*s+3}], {c}")
                if late and em == 2 and s == NS - 2: perm_pair(raw, frag, NS - 1, j)
        A("s_mov_b32 exec_lo, 0x00ff00ff")
        A("s_mov_b32 exec_hi, 0x00ff00ff")
        A("s_nop 2")
        for j in range(4):
            A(f"ds_write_b128 v4, v[{ACC+4*j}:{ACC+4*j+3}] offset:{L_RED + 512*j}")
        A("s_mov_b64 exec, -1")
        A("s_waitcnt lgkmcnt(0)")
        A("s_barrier                            ; B3")
        for w in range(2):
            A(f"ds_read2st64_b64 v[{16+4*w}:{19+4*w}], v6 offset0:{(L_RED + 4096*w)//512} offset1:{(L_RED + 4096*w + 2048)//512}")
        A("s_waitcnt lgkmcnt(1)")
        A("v_pk_add_f32 v[16:17], v[16:17], v[18:19]")
        A("s_waitcnt lgkmcnt(0)")
        A("v_pk_add_f32 v[20:21], v[20:21], v[22:23]")
        A("v_pk_add_f32 v[16:17], v[16:17], v[20:21]")
        A("v_and_or_b32 v16, v16, s48, v12")
        A("v_and_or_b32 v17, v17, s48, v12")
        A(f"buffer_store_dwordx2 v[16:17], v6, s[32:35], s46 offen{x1pol}")
        stamp(4)
        NB = 4 if NS == 4 else 8
        pairs = [(s, p) for s in range(2) for p in range(4)]
        k = 0
        PKx = PK3 if (NS == 2 and PK3 is not None) else PK
        if KP:
            A(f"s_waitcnt vmcnt({17 - 2*KP})")
            while k < KP: perm_pair(raw2, frag2, *pairs[k]); k += 1
        if prog:
            while 17 - 2*(k+1) >= PK:
                A(f"s_waitcnt vmcnt({17 - 2*(k+1)})")
                perm_pair(raw2, frag2, *pairs[k]); k += 1
        if not prog or 17 - 2*k > PK: A(f"s_waitcnt vmcnt({PKx})")
        def polls():
            for b in range(NB):
                if b and b % 2 == 0: A(f"s_add_u32 s47, s45, {b*2048}")
                A(f"buffer_load_dwordx2 v[{24+2*b}:{25+2*b}], v6, s[32:35], {'s45' if b < 2 else 's47'} offen offset:{(b%2)*2048} sc1")
        if prog:
            polls()
            while k < 8:
                A(f"s_waitcnt vmcnt({NB + 17 - 2*(k+1)})")
                perm_pair(raw2, frag2, *pairs[k]); k += 1
            A(f"s_branch L_x1chk{sfx}")
        LB("L_x1poll" + sfx)
        polls()
        LB("L_x1chk" + sfx)
        A("s_add_u32 s49, s49, 1")
        A("s_waitcnt vmcnt(0)")
        for r in range(24, 24+2*NB): A(f"v_xor_b32 v{r}, s54, v{r}")
        A("v_or3_b32 v8, v24, v25, v26")
        for r in range(27, 24+2*NB-1, 2): A(f"v_or3_b32 v8, v8, v{r}, v{r+1}")
        A(f"v_or_b32 v8, v8, v{24+2*NB-1}")
        A("v_and_b32 v8, 0xff, v8")
        A("v_cmp_ne_u32 vcc, 0, v8")
        A("s_cbranch_vccnz L_x1no" + sfx)
        LB("L_x1ok" + sfx)
        stamp(5)
        if NB == 8:
            A("v_pk_add_f32 v[24:25], v[24:25], v[32:33]")
            A("v_pk_add_f32 v[26:27], v[26:27], v[34:35]")
            A("v_pk_add_f32 v[28:29], v[28:29], v[36:37]")
            A("v_pk_add_f32 v[30:31], v[30:31], v[38:39]")
        S = []
        def B(s): S.append("  " + s)
        S.append("L_x1no" + sfx + ":")
        B(f"s_cmp_lt_u32 s49, {NF}")
        B("s_cbranch_scc1 L_x1poll" + sfx)
        B("v_lshlrev_b32 v8, 1, v6")
        B("s_lshl_b32 s56, s20, 15")
        B("s_add_u32 s56, s56, %d" % O_EX1)
        B(f"s_cmp_lg_u32 s49, {NF}")
        B("s_cbranch_scc1 L_x1ns" + sfx)
        B("v_and_b32 v96, s48, v16")
        B("v_and_b32 v97, s48, v17")
        B("v_mov_b32 v98, s40")
        B("v_mov_b32 v99, s40")
        B("s_lshl_b32 s47, s21, 12")
        B("s_add_u32 s47, s47, s56")
        B("buffer_store_dwordx4 v[96:99], v8, s[32:35], s47 offen sc1")
        B("s_waitcnt vmcnt(0)")
        S.append("L_x1ns" + sfx + ":")
        for b in range(NB):
            B(f"buffer_load_dwordx4 v[{96+4*b}:{99+4*b}], v8, s[32:35], s56 offen sc1")
            B("s_add_u32 s56, s56, 4096")
        B("s_waitcnt vmcnt(0)")
        B("v_mov_b32 v8, 0")
        for b in range(NB):
            B(f"v_xor_b32 v{98+4*b}, s40, v{98+4*b}")
            B(f"v_xor_b32 v{99+4*b}, s40, v{99+4*b}")
            B(f"v_or3_b32 v8, v8, v{98+4*b}, v{99+4*b}")
            B(f"v_mov_b32 v{24+2*b}, v{96+4*b}")
            B(f"v_mov_b32 v{25+2*b}, v{97+4*b}")
        B("v_cmp_ne_u32 vcc, 0, v8")
        B("s_cbranch_vccz L_x1ok" + sfx)
        B("s_cmp_lt_u32 s49, %d" % SPIN)
        B("s_cbranch_scc1 L_x1poll" + sfx)
        B("s_branch L_x1ok" + sfx)
        slow.extend(S)
        return k
    ka = cpath(4, "a", D, D, BX)
    LB("L_h")
    A("v_pk_add_f32 v[24:25], v[24:25], v[28:29]   ; gate")
    A("v_pk_add_f32 v[26:27], v[26:27], v[30:31]   ; up")
    A("v_cvt_pk_bf16_f32 v8, v24, v25")
    A("v_cvt_pk_bf16_f32 v12, v26, v27")
    A("v_lshlrev_b32 v18, 16, v8")
    A("v_and_b32 v19, 0xffff0000, v8")
    A("v_pk_mul_f32 v[20:21], v[18:19], s[50:51]")
    A("v_exp_f32 v20, v20")
    A("v_exp_f32 v21, v21")
    A("v_lshlrev_b32 v14, 16, v12")
    A("v_pk_add_f32 v[20:21], v[20:21], 1.0 op_sel_hi:[1,0]")
    A("v_rcp_f32 v20, v20")
    A("v_rcp_f32 v21, v21")
    A("v_and_b32 v15, 0xffff0000, v12")
    A("v_pk_mul_f32 v[18:19], v[18:19], v[20:21]")
    A("v_cvt_pk_bf16_f32 v8, v18, v19        ; silu")
    A("v_lshlrev_b32 v18, 16, v8")
    A("v_and_b32 v19, 0xffff0000, v8")
    A("v_pk_mul_f32 v[18:19], v[18:19], v[14:15]")
    A("v_cvt_pk_bf16_f32 v8, v18, v19        ; h")
    A(f"ds_write_b32 v7, v8 offset:{L_HB}")
    for k in range(ka, 8): perm_pair(raw2, frag2, *divmod(k, 4))
    A("s_waitcnt lgkmcnt(0)")
    A("s_barrier                            ; B4")
    for s in range(2):
        A(f"ds_read_b128 v[{HA+4*s}:{HA+4*s+3}], v13 offset:{L_HB + 512*s}")
    for s in range(2):
        A(f"s_waitcnt lgkmcnt({1-s})")
        for j in range(4):
            c = "0" if s == 0 else f"v[{ACC+4*j}:{ACC+4*j+3}]"
            A(f"v_mfma_f32_16x16x32_bf16 v[{ACC+4*j}:{ACC+4*j+3}], v[{HA+4*s}:{HA+4*s+3}], v[{frag2(s,j)}:{frag2(s,j)+3}], {c}")
    A("s_mov_b32 exec_lo, -1")
    A("s_mov_b32 exec_hi, 0")
    A("s_nop 2")
    for r in range(4):
        for j in range(4):
            A(f"v_and_or_b32 v{20+4*r+j}, v{ACC+4*j+r}, s48, v9")
        A(f"buffer_store_dwordx4 v[{20+4*r}:{23+4*r}], v11, s[32:35], s52 offen sc1")
        if r < 3: A("s_add_u32 s52, s52, %d" % (32*X2S))
    stamp(6)
    if not (nob5 or b4): A("s_waitcnt vmcnt(0)")
    if not b4: A("s_barrier                            ; B5")
    stamp(7)
    if stamps: A("s_branch L_fin")
    else: A("s_endpgm")

    def rsetup():
        A("s_mov_b64 s[32:33], s[18:19]")
        A("s_mov_b32 s34, %d" % WS_REC)
        A("s_mov_b32 s35, 0x20000")
        A("s_mov_b64 s[36:37], s[14:15]")
        A("s_mov_b32 s38, 524288")
        A("s_mov_b32 s39, 0x20000")
        A("v_and_b32 v4, 7, v0")
        if stamps:
            A("s_mov_b32 s59, 0")
            A("s_mov_b32 s49, 0")
    LB("L_route")
    rsetup()
    A("s_and_b32 s45, s52, 7")
    A("s_lshl_b32 s46, s45, 3")
    A("s_lshr_b32 s52, s52, 3               ; batch")
    A("s_add_u32 s46, s46, s52")
    A("s_mul_i32 s46, s46, %d" % LS)
    A("s_add_u32 s46, s46, %d               ; slot" % O_IDX)
    A("s_lshl_b32 s45, s45, 2")
    A("v_mul_u32_u24 v5, %d, v0             ; replica offset" % (8 if full else REPS))
    if ipf:
        A("s_mov_b64 exec, 0xff")
        A("buffer_load_dword v13, v5, s[32:35], s46 offen sc1")
        A("s_mov_b64 exec, -1")
    A("v_lshrrev_b32 v10, 5, v0")
    A("v_bfe_u32 v11, v0, 4, 1")
    A("v_lshl_add_u32 v10, v11, 1, v10")
    A("v_add_u32 v10, s45, v10")
    A("v_xor_b32 v10, 31, v10")
    for t in range(4):
        for hlf in range(2):
            A(f"s_waitcnt vmcnt({7 - 2*t - hlf + (1 if ipf else 0)})")
            for k in range(4):
                c = "0" if (hlf == 0 and k == 0) else f"v{6+t}"
                A(f"v_dot2_f32_bf16 v{6+t}, v{XR+8*t+4*hlf+k}, v{16+4*hlf+k}, {c}")
    A("s_waitcnt lgkmcnt(0)")
    A("s_add_u32 s40, s40, 8")
    A("s_nop 0")
    A("v_permlane32_swap_b32 v6, v7")
    A("v_permlane32_swap_b32 v8, v9")
    A("v_add_f32 v6, v6, v7")
    A("v_add_f32 v8, v8, v9")
    A("s_nop 1")
    A("v_permlane16_swap_b32 v6, v8")
    A("v_add_f32 v6, v6, v8")
    A("s_nop 1")
    A("v_add_f32_dpp v6, v6, v6 quad_perm:[1,0,3,2] row_mask:0xf bank_mask:0xf")
    A("s_nop 1")
    A("v_add_f32_dpp v6, v6, v6 quad_perm:[2,3,0,1] row_mask:0xf bank_mask:0xf")
    A("s_nop 1")
    A("v_add_f32_dpp v6, v6, v6 row_half_mirror row_mask:0xf bank_mask:0xf")
    A("s_nop 1")
    A("v_add_f32_dpp v6, v6, v6 row_mirror row_mask:0xf bank_mask:0xf")
    A("v_cvt_pk_bf16_f32 v7, v6, v6")
    A("v_and_b32 v7, 0xffff0000, v7          ; r (bf16)")
    A("v_ashrrev_i32 v6, 31, v7")
    A("v_or_b32 v6, 0x80000000, v6")
    A("v_xor_b32 v6, v6, v7")
    A("v_cmp_o_f32 vcc, v7, v7")
    A("v_and_b32 v6, 0xffff0000, v6")
    A("s_nop 0")
    A("v_cndmask_b32 v6, 0, v6, vcc")
    A("v_or_b32 v6, v10, v6")
    A("v_mov_b32 v7, v6")
    A("s_nop 1")
    A("v_permlane16_swap_b32 v6, v7")
    A("v_max_u32 v6, v6, v7")
    A("v_mov_b32 v7, v6")
    A("s_nop 1")
    A("v_permlane32_swap_b32 v6, v7")
    A("v_max_u32 v6, v6, v7")
    A("v_mov_b32 v7, s40")
    if rlag: A(f"s_sleep {rlag}")
    A("s_mov_b64 exec, 0x%x" % ((1 << (LS // 8 if full else NR)) - 1))
    A(f"buffer_store_dwordx2 v[6:7], v5, s[32:35], s46 offen {rpol}")
    A("s_mov_b64 exec, -1")
    A("s_barrier                            ; B0b")
    stamp(1)
    A("s_setprio 0")
    A("s_cmp_eq_u32 s3, 4")
    A("s_cbranch_scc1 L_r4")
    A("s_endpgm")
    if align: L.append(".p2align 12" if not (D0 or pace) else ".p2align 6")
    LB("L_cb")
    kb = cpath(2, "b", D3, D3W, BX3)
    assert ka == kb
    A("s_branch L_h")
    LB("L_cc")
    if LBR == 16: stamp(2)
    for n in range(CW): w2load(n)
    for d in range(st["done"]):
        A(f"s_waitcnt vmcnt({LBR - 8 - 8*d + CW})")
        perms(raw, frag, d)
    A("s_barrier                            ; BX")
    for n in range(LBR, 16): w1load(n)
    if LBR < 16: stamp(2)
    for n in range(CW, BX3): w2load(n)
    A("s_branch L_bx")

    def idload():
        A(f"buffer_load_dwordx4 v[{IDR}:{IDR+3}], v14, s[28:31], s53 offen{xpol}")
        A(f"buffer_load_dwordx4 v[{IDR+4}:{IDR+7}], v14, s[28:31], s53 offen offset:1024{xpol}")
    def idconv():
        for r in range(IDR, IDR+8):
            A(f"v_lshlrev_b32 v16, 16, v{r}")
            A(f"v_and_b32 v17, 0xffff0000, v{r}")
            A("v_pk_fma_f32 v[16:17], v[16:17], 0, v[16:17] op_sel_hi:[1,0,1]")
            A(f"v_cvt_pk_bf16_f32 v{r}, v16, v17    ; x + x*0")
    def psetup():
        A("s_lshl_b32 s53, s2, 11")
        A("v_mul_u32_u24 v12, %d, v0            ; poll offset" % LS)
        if NR < 8:
            A(f"s_and_b32 s47, s22, {NR - 1}")
            A("s_mul_i32 s47, s47, %d" % REPS)
        else: A("s_mul_i32 s47, s22, %d" % REPS)
        A("s_add_u32 s47, s47, %d               ; this group's replica" % O_IDX)
        A("v_lshrrev_b32 v11, 3, v0")
        A("s_lshr_b32 s45, s21, 1")
        A("s_sub_u32 s46, 10, s57")
        A("s_lshl_b32 s45, s45, s46")
        A("s_lshl_b32 s48, s20, 14")
        A("s_lshl_b32 s46, s21, 11")
        A("s_add_u32 s48, s48, s46")
        A("s_add_u32 s48, s48, %d               ; own L2-local block" % O_EX1F)
        A("s_lshr_b32 s51, s2, 5")
        if ldr:
            A("s_getreg_b32 s42, hwreg(HW_REG_XCC_ID, 0, 3)")
            A("v_lshlrev_b32 v13, 3, v0")
            A("s_lshl_b32 s42, s42, %d" % ({16: 10, 32: 11}[NC] if mc else 8))
            A("s_add_u32 s42, s42, %d               ; this die's copy of the keys" % O_LDR)
    LB("L_r")
    A("s_waitcnt lgkmcnt(0)")
    A("s_load_dword s40, s[18:19], 0        ; epoch")
    A("s_mov_b64 s[28:29], s[4:5]")
    rsetup()
    stamp(1)
    LB("L_r4")
    psetup()
    for i in range(NC // 16): A(f"buffer_load_dwordx4 v[{16+4*i}:{19+4*i}], v14, s[32:35], s42 offen offset:{1024*i}")
    A("s_cmp_eq_u32 s58, 1")
    A("s_cbranch_scc1 L_rr")
    A("v_mov_b32 v8, 0")
    A("s_mov_b32 s49, 0")
    LB("L_fwait")
    if fsleep: A(f"s_sleep {fsleep}")
    A(f"ds_read_b32 v9, v8 offset:{L_FLAG}")
    A("s_add_u32 s49, s49, 1")
    A("s_cmp_ge_u32 s49, %d" % SPIN)
    A("s_waitcnt lgkmcnt(0)")
    A("v_cmp_eq_u32 vcc, 0, v9")
    A("s_cbranch_scc1 L_fok")
    A("s_cbranch_vccnz L_fwait")
    LB("L_fok")
    idload()
    A("s_add_u32 s40, s40, 8")
    A("s_cmp_eq_u32 s57, 1")
    A("s_cbranch_scc1 L_lead")
    if SF - RF: A(f"s_sleep {SF - RF}")
    A("s_branch L_sp0")
    LB("L_rr")
    idload()
    LB("L_sp0")
    if RF: A(f"s_sleep {RF}")
    stamp(2)
    A("s_mov_b32 s49, 0")
    if sib is not None:
        A(f"s_getreg_b32 s41, hwreg(HW_REG_HW_ID, {8 + sib}, 1)")
        A(f"s_mul_i32 s46, s41, {64*(NC-1)}")
        A("s_add_u32 s46, s46, s42")
        A("s_lshl_b32 s41, s41, 7")
        A("s_sub_u32 s41, 64, s41")
    else: A("s_mov_b32 s46, s42")
    LB("L_spoll")
    if ssl: A(f"s_sleep {ssl}")
    A("s_load_dwordx16 s[76:91], s[18:19], s46")
    A("s_add_u32 s46, s46, %s               ; the scalar cache keeps what it has seen: another copy next time" % ("64" if sib is None else "s41"))
    A("s_add_u32 s49, s49, 1")
    A(f"s_cmp_gt_u32 s49, {NSP}")
    A("s_cbranch_scc1 L_ip0")
    A("s_waitcnt lgkmcnt(0)")
    A("s_xor_b32 s43, s77, s40")
    for i in range(1, 8):
        A(f"s_xor_b32 s44, s{77+2*i}, s40")
        A("s_or_b32 s43, s43, s44")
    A("s_cbranch_scc1 L_spoll")
    stamp(3)
    if stamps: A("s_mov_b32 s59, s49")
    A("s_mov_b32 exec_lo, 0x01010101")
    A("s_mov_b32 exec_hi, 0x01010101")
    for i in range(8):
        A(f"v_mov_b32 v6, s{76+2*i}")
        A("s_lshl_b64 exec, exec, 1" if i < 7 else "s_mov_b64 exec, -1")
    A("s_branch L_sok")
    LB("L_lead")
    if LF0 is not None:
        A(f"s_cmp_eq_u32 s22, {PERM[0]}")
        A("s_cbranch_scc1 L_lf0")
        A(f"s_sleep {LF - LF0}")
        LB("L_lf0")
        A(f"s_sleep {LF0}")
    elif LF: A(f"s_sleep {LF}")
    stamp(2)
    LB("L_ip0")
    A("s_waitcnt lgkmcnt(0)")
    A("s_mov_b32 s49, 0")
    LB("L_ipoll")
    if IS: A(f"s_sleep {IS}")
    A(f"buffer_load_dwordx2 v[8:9], v12, s[32:35], s47 offen sc1")
    LB("L_ichk")
    A("s_add_u32 s49, s49, 1")
    A("s_cmp_ge_u32 s49, %d" % SPIN)
    A(f"s_waitcnt vmcnt(0)")
    A(f"v_cmp_ne_u32 vcc, s40, v9")
    A("s_cbranch_scc1 L_iok")
    A("s_cbranch_vccnz L_ipoll")
    LB("L_iok")
    stamp(3)
    if stamps: A("s_mov_b32 s59, s49")
    A("v_max_u32_dpp v8, v8, v8 row_ror:8 row_mask:0xf bank_mask:0xf")
    A("v_mov_b32 v9, v8")
    if ldr:
        A("v_mov_b32 v7, s40")
        A("s_nop 0")
    else:
        A("s_mov_b32 m0, %d" % L_XS)
        A("s_cmp_eq_u32 s57, 1")
    A("v_permlane16_swap_b32 v8, v9")
    A("v_max_u32 v8, v8, v9")
    A("v_mov_b32 v9, v8")
    A("s_nop 1")
    A("v_permlane32_swap_b32 v8, v9")
    A("v_max_u32 v6, v8, v9")
    if ldr:
        if mc:
            for i in range(NC // 8): A(f"buffer_store_dwordx2 v[6:7], v13, s[32:35], s42 offen offset:{512*i}")
        else:
            A("s_mov_b64 exec, 0xff")
            A("buffer_store_dwordx2 v[6:7], v13, s[32:35], s42 offen")
            A("s_mov_b64 exec, -1")
        LB("L_sok")
        A("s_mov_b32 m0, %d" % L_XS)
        A("s_cmp_eq_u32 s57, 1")
    A("v_and_b32 v10, 31, v6")
    A("v_xor_b32 v10, 31, v10")
    A("v_lshl_add_u32 v10, v4, 5, v10       ; row")
    A("v_lshlrev_b32 v10, 11, v10")
    A("v_lshl_add_u32 v10, v11, 4, v10      ; + chunk*16")
    for i in range(8):
        if i == 4: A("s_cbranch_scc1 L_dmadone")
        A(f"buffer_load_dwordx4 v10, s[28:31], s45 offen{xpol} lds")
        if i < 7:
            A("s_mov_b32 m0, %d" % (L_XS + 1024*(i+1)))
            A("v_add_u32 v10, 128, v10")
    LB("L_dmadone")
    if not early_id: idload()
    A("buffer_load_dwordx4 v[24:27], v14, s[32:35], s48 offen")
    A("buffer_load_dwordx4 v[28:31], v14, s[32:35], s48 offen offset:1024")
    A("s_barrier                            ; BX")
    A("v_readlane_b32 s55, v6, s51")
    A("s_and_b32 s46, s2, 31")
    A("s_and_b32 s54, s55, 31")
    A("s_xor_b32 s54, s54, 31")
    A("s_cmp_eq_u32 s54, s46")
    A("s_cselect_b32 s56, 0x40000000, s53")
    if ldr:
        A("s_waitcnt vmcnt(10)")
        A("s_cmp_eq_u32 s57, 0")
        A("s_cbranch_scc1 L_idw")
        A("s_waitcnt vmcnt(6)")
        LB("L_idw")
        idconv()
    if early_id:
        A(f"buffer_store_dwordx4 v[{IDR}:{IDR+3}], v14, s[36:39], s56 offen{outpol}")
        A(f"buffer_store_dwordx4 v[{IDR+4}:{IDR+7}], v14, s[36:39], s56 offen offset:1024{outpol}")
    A("v_lshrrev_b32 v7, 5, v0")
    A("v_bfe_u32 v8, v0, 4, 1")
    A("v_lshl_add_u32 v7, v8, 1, v7         ; e")
    A("v_lshl_add_u32 v7, v4, 2, v7         ; 4*pos + e")
    A("s_lshl_b32 s45, s51, 5")
    A("s_add_u32 s45, s45, s54")
    A("s_lshl_b32 s45, s45, 5")
    A("s_add_u32 s45, s45, s46")
    A("s_lshl_b32 s45, s45, 5")
    A("v_add_u32 v7, s45, v7")
    A("v_lshlrev_b32 v7, 1, v7")
    A("buffer_load_ushort v9, v7, s[28:31], 0 offen")
    A("s_waitcnt vmcnt(5)")
    A("s_barrier                            ; B2")
    stamp(4)
    if not early_id:
        A("s_waitcnt vmcnt(3)")
        idconv()
    A("s_lshr_b32 s44, s55, 16")
    A("s_xor_b32 s45, s44, 0xffff")
    A("s_and_b32 s44, s44, 0x7fff")
    A("s_cmp_lt_i32 s55, 0")
    A("s_cselect_b32 s44, s44, s45")
    A("s_lshl_b32 s44, s44, 16              ; r")
    A("v_mov_b32 v10, 0xbfb8aa3b")
    A("v_mul_f32 v10, s44, v10")
    A("v_exp_f32 v10, v10")
    A("s_and_b32 s41, s40, 0xff")
    A("v_add_f32 v10, 1.0, v10")
    A("v_rcp_f32 v10, v10")
    A("s_barrier                            ; B3")
    if not early_id:
        A(f"buffer_store_dwordx4 v[{IDR}:{IDR+3}], v14, s[36:39], s56 offen{outpol}")
        A(f"buffer_store_dwordx4 v[{IDR+4}:{IDR+7}], v14, s[36:39], s56 offen offset:1024{outpol}")
    A("v_cvt_pk_bf16_f32 v10, v10, v10")
    A("v_and_b32 v10, 0xffff0000, v10       ; sigmoid")
    A("s_mul_i32 s46, s2, %d" % X2S)
    A("s_add_u32 s46, s46, %d" % O_EX2)
    A("s_add_u32 s47, s46, 4096")
    A("s_mov_b32 s49, 0")
    A("s_mov_b32 s44, 0x00ff00ff")
    A("s_mov_b32 s45, 0x00ff00ff")
    A("s_waitcnt vmcnt(0)")
    A("v_lshlrev_b32 v9, 16, v9             ; x")
    if mx: A("v_mov_b32 v13, 0")
    A("s_barrier                            ; B4")
    if not b4: A("s_barrier")
    stamp(5)
    if X20 is not None:
        A(f"s_cmp_eq_u32 s22, {PERM[0]}")
        A("s_cbranch_scc1 L_x20")
        A(f"s_sleep {x2d - X20}")
        LB("L_x20")
        if X20: A(f"s_sleep {X20}")
    elif x2d: A(f"s_sleep {x2d}")
    if mx:
        MS = 76 if stamps else 60
        def ld(i):
            so = "s46" if i < 4 else "s47"
            A(f"buffer_load_dwordx4 v[{32+4*i}:{35+4*i}], v14, s[32:35], {so} offen offset:{(i%4)*1024} sc1")
        def chk(i):
            b = 32 + 4*i
            for r in range(b, b+4): A(f"v_xor_b32 v{r}, s41, v{r}")
            A(f"v_or3_b32 v15, v{b}, v{b+1}, v{b+2}")
            A(f"v_or_b32 v15, v15, v{b+3}")
            A(f"v_cmp_ne_u32_sdwa s[{MS+2*i}:{MS+2*i+1}], v15, v13 src0_sel:BYTE_0 src1_sel:DWORD")
        def anyleft():
            A(f"s_or_b64 s[42:43], s[{MS}:{MS+1}], s[{MS+2}:{MS+3}]")
            for i in range(2, 7): A(f"s_or_b64 s[42:43], s[42:43], s[{MS+2*i}:{MS+2*i+1}]")
        for i in range(7): ld(i)
        A("s_mov_b32 s49, 1")
        for i in range(7):
            A(f"s_waitcnt vmcnt({6-i})")
            chk(i)
            if i == 1: A("v_pk_add_f32 v[16:17], v[32:33], v[36:37]"); A("v_pk_add_f32 v[18:19], v[34:35], v[38:39]")
            if i >= 2: A(f"v_pk_add_f32 v[16:17], v[16:17], v[{32+4*i}:{33+4*i}]"); A(f"v_pk_add_f32 v[18:19], v[18:19], v[{34+4*i}:{35+4*i}]")
        anyleft()
        A("s_cbranch_scc0 L_x2ok")
        LB("L_x2poll")
        if x2s: A(f"s_sleep {x2s}")
        for i in range(7):
            A(f"s_mov_b64 exec, s[{MS+2*i}:{MS+2*i+1}]")
            A(f"s_cbranch_execz L_x2l{i}")
            ld(i)
            LB(f"L_x2l{i}")
        A("s_add_u32 s49, s49, 1")
        A("s_waitcnt vmcnt(0)")
        for i in range(7):
            A(f"s_mov_b64 exec, s[{MS+2*i}:{MS+2*i+1}]")
            A(f"s_cbranch_execz L_x2c{i}")
            chk(i)
            LB(f"L_x2c{i}")
        A("s_mov_b64 exec, -1")
        anyleft()
        A("s_cbranch_scc0 L_x2sum")
        A("s_cmp_lt_u32 s49, %d" % SPIN)
        A("s_cbranch_scc1 L_x2poll")
        LB("L_x2sum")
        A("v_pk_add_f32 v[16:17], v[32:33], v[36:37]"); A("v_pk_add_f32 v[18:19], v[34:35], v[38:39]")
        for i in range(2, 7):
            A(f"v_pk_add_f32 v[16:17], v[16:17], v[{32+4*i}:{33+4*i}]"); A(f"v_pk_add_f32 v[18:19], v[18:19], v[{34+4*i}:{35+4*i}]")
        A("s_nop 0")
    else:
        LB("L_x2poll")
        for i in range(7):
            so = "s46" if i < 4 else "s47"
            A(f"buffer_load_dwordx4 v[{32+4*i}:{35+4*i}], v14, s[32:35], {so} offen offset:{(i%4)*1024} sc1")
        A("s_add_u32 s49, s49, 1")
        for i in range(7):
            A(f"s_waitcnt vmcnt({6-i})")
            b = 32 + 4*i
            for r in range(b, b+4): A(f"v_xor_b32 v{r}, s41, v{r}")
            if i == 0:
                A(f"v_or3_b32 v15, v{b}, v{b+1}, v{b+2}")
                A(f"v_or_b32 v15, v15, v{b+3}")
            else:
                A(f"v_or3_b32 v15, v15, v{b}, v{b+1}")
                A(f"v_or3_b32 v15, v15, v{b+2}, v{b+3}")
                src = 32 if i == 1 else 16
                A(f"v_pk_add_f32 v[16:17], v[{src}:{src+1}], v[{b}:{b+1}]")
                A(f"v_pk_add_f32 v[18:19], v[{src+2}:{src+3}], v[{b+2}:{b+3}]")
        A("v_and_b32 v15, 0xff, v15")
        A("v_cmp_ne_u32 vcc, 0, v15")
        A("s_cbranch_vccz L_x2ok")
        if x2s: A(f"s_sleep {x2s}")
        A("s_cmp_lt_u32 s49, %d" % SPIN)
        A("s_cbranch_scc1 L_x2poll")
    LB("L_x2ok")
    stamp(6)
    A("v_permlane32_swap_b32 v16, v17")
    A("v_permlane32_swap_b32 v18, v19")
    A("v_add_f32 v16, v16, v17")
    A("v_add_f32 v18, v18, v19")
    A("s_nop 1")
    A("v_permlane16_swap_b32 v16, v18")
    A("v_add_f32 v16, v16, v18")
    A("s_nop 1")
    A("v_add_f32_dpp v16, v16, v16 row_ror:8 row_mask:0xf bank_mask:0xf")
    A("s_mov_b64 exec, s[44:45]")
    A("v_cvt_pk_bf16_f32 v16, v16, v16")
    A("v_and_b32 v16, 0xffff0000, v16       ; y")
    A("v_mul_f32 v16, v16, v10")
    A("v_cvt_pk_bf16_f32 v16, v16, v16")
    A("v_and_b32 v16, 0xffff0000, v16       ; y*sigmoid")
    A("v_fma_f32 v16, v9, 0, v16            ; upd = x*0 + y")
    A("v_add_f32 v16, v9, v16")
    A("v_cvt_pk_bf16_f32 v16, v16, v16")
    A(f"buffer_store_short v16, v7, s[36:39], 0 offen{finpol}")
    A("s_cmp_lg_u32 s2, 0")
    A("s_cbranch_scc1 L_noep")
    A("v_mov_b32 v18, s40")
    A("v_mov_b32 v17, 0")
    A("s_mov_b64 exec, 1")
    A("buffer_store_dword v18, v17, s[32:35], 0 offen sc1")
    LB("L_noep")
    stamp(7)
    LB("L_fin")
    if stamps:
        import diag
        if dg: diag.epilogue(A, LB, dg, nwg=256, invalid=())
        elif gamp: diag.gamp(A, LB, gamp)
        else:
            A("s_barrier")
            diag.dump(A, LB)
    LB("L_end")
    A("s_endpgm")
    L.extend(slow)
    body = "\n".join(L)
    pad = ".p2align 12\n.fill 832, 4, 0xbf800000            ; the kernel starts a 4 KB page (instruction prefetch stops at page ends)\n" if align else ""
    return f"""{HEAD}; @launch grid=(256,1,1) block=(384,1,1) lds={LDS_BYTES}
{DOC}.amdgcn_target "amdgcn-amd-amdhsa--gfx950"
.text
.globl {KN}
{pad}.p2align 8
.type {KN},@function
{KN}:
{body}
.section .rodata,"a"
.p2align 6
.amdhsa_kernel {KN}
  .amdhsa_next_free_vgpr 160
  .amdhsa_next_free_sgpr 96
  .amdhsa_accum_offset 160
  .amdhsa_group_segment_fixed_size 0
  .amdhsa_kernarg_size 64
  .amdhsa_user_sgpr_count 2
  .amdhsa_user_sgpr_kernarg_segment_ptr 1
  .amdhsa_system_sgpr_workgroup_id_x 1
  .amdhsa_float_denorm_mode_32 3
.end_amdhsa_kernel
"""
if __name__ == "__main__":
    import sys, json
    kw = json.loads(sys.argv[2]) if len(sys.argv) > 2 else {}
    open(sys.argv[1] if len(sys.argv) > 1 else "standalone__moe_arch_mod__sampling.s", "w").write(gen(**kw))
```

```python
def epilogue(A, LB, stats, nwg=252, gatherwave=4, invalid=(228,236,244,252), extra=("s49","s59")):
    A("s_waitcnt lgkmcnt(0) vmcnt(0)")
    A("s_mov_b64 exec, -1")
    A("s_barrier")
    A("s_lshl_b32 s20, s3, 8")
    A("s_add_u32 s20, s20, s2")
    A("s_lshl_b32 s20, s20, 6")
    A("s_add_u32 s18, s18, 0x8000000")
    A("s_addc_u32 s19, s19, 0")
    for i in range(8): A(f"v_mov_b32 v{16+i}, s{60+2*i}")
    A(f"v_mov_b32 v24, {extra[0]}")
    A(f"v_mov_b32 v25, {extra[1]}")
    A("v_mov_b32 v3, s20")
    A("s_mov_b64 exec, 1")
    A("global_store_dwordx4 v3, v[16:19], s[18:19] sc1")
    A("global_store_dwordx4 v3, v[20:23], s[18:19] offset:16 sc1")
    A("global_store_dwordx2 v3, v[24:25], s[18:19] offset:32 sc1")
    A("s_waitcnt vmcnt(0)")
    A("s_barrier")
    A(f"s_cmp_lg_u32 s3, {gatherwave}")
    A("s_cbranch_scc1 L_end")
    A("v_mov_b32 v3, 0")
    A("v_mov_b32 v18, 1")
    A("global_atomic_add v19, v3, v18, s[16:17] offset:128 sc0 sc1")
    A("s_waitcnt vmcnt(0)")
    A("v_readfirstlane_b32 s20, v19")
    A(f"s_cmp_lg_u32 s20, {nwg-1}")
    A("s_cbranch_scc1 L_end")
    A("s_mov_b64 exec, -1")
    A("v_mbcnt_lo_u32_b32 v0, -1, 0")
    A("v_mbcnt_hi_u32_b32 v0, -1, v0")
    for i in range(4):
        A(f"v_add_u32 v{4+i}, {64*i}, v0")
        for bad in invalid:
            if bad // 64 == i:
                A(f"s_mov_b32 s20, {bad}")
                A(f"v_cmp_eq_u32 vcc, s20, v{4+i}")
                A("s_nop 1")
                A(f"v_cndmask_b32 v{4+i}, v{4+i}, {bad & 7}, vcc")
        A(f"v_lshlrev_b32 v{4+i}, 6, v{4+i}")
    def gather(role, k, op, dst):
        A(f"s_add_u32 s22, s18, {role*256*64 + 4*k}")
        A("s_addc_u32 s23, s19, 0")
        for i in range(4): A(f"global_load_dword v{8+i}, v{4+i}, s[22:23] sc1")
        A("s_waitcnt vmcnt(0)")
        if op == "min":
            for i in range(4):
                A(f"v_cmp_eq_u32 vcc, 0, v{8+i}")
                A("s_nop 1")
                A(f"v_cndmask_b32 v{8+i}, v{8+i}, -1, vcc")
        o = f"v_{op}_u32"
        A(f"{o} v8, v8, v9"); A(f"{o} v10, v10, v11"); A(f"{o} v8, v8, v10")
        A("s_nop 1")
        A(f"{o}_dpp v8, v8, v8 row_ror:8 row_mask:0xf bank_mask:0xf")
        A("v_mov_b32 v9, v8"); A("s_nop 1")
        A("v_permlane16_swap_b32 v8, v9"); A(f"{o} v8, v8, v9")
        A("v_mov_b32 v9, v8"); A("s_nop 1")
        A("v_permlane32_swap_b32 v8, v9"); A(f"{o} v{dst}, v8, v9")
    gather(0, 0, "min", 30)
    gather(4, 0, "min", 31)
    A("v_min_u32 v30, v30, v31")
    A("s_nop 1")
    A("v_min_u32_dpp v30, v30, v30 row_ror:4 row_mask:0xf bank_mask:0xf")
    A("s_nop 1")
    A("v_min_u32_dpp v30, v30, v30 row_ror:2 row_mask:0xf bank_mask:0xf")
    A("s_nop 1")
    A("v_min_u32_dpp v30, v30, v30 row_ror:1 row_mask:0xf bank_mask:0xf")
    for q, (role, k, op) in enumerate(stats):
        gather(role, k, op, 32)
        if k < 8:
            A("v_sub_u32 v32, v32, v30")
            A("v_add_u32 v32, 2, v32")
            A("v_ashrrev_i32 v32, 2, v32")
            A("v_max_i32 v32, 0, v32")
        A("v_min_u32 v32, 255, v32")
        A(f"v_add_u32 v33, {8*q}, v0")
        A("s_mov_b64 exec, 0xff")
        A("global_store_byte v33, v32, s[16:17]")
        A("s_mov_b64 exec, -1")

def dump(A, LB):
    A("s_waitcnt lgkmcnt(0)")
    A("s_mov_b64 exec, -1")
    A("s_lshl_b32 s20, s3, 8")
    A("s_add_u32 s20, s20, s2")
    A("s_lshl_b32 s20, s20, 6")
    A("s_add_u32 s20, s20, 0x8000000")
    A("s_add_u32 s18, s18, s20")
    A("s_addc_u32 s19, s19, 0")
    for i in range(8): A(f"v_mov_b32 v{16+i}, s{60+2*i}")
    A("v_mov_b32 v24, s49")
    A("v_mov_b32 v25, s59")
    A("v_mov_b32 v3, 0")
    A("s_mov_b64 exec, 1")
    A("global_store_dwordx4 v3, v[16:19], s[18:19]")
    A("global_store_dwordx4 v3, v[20:23], s[18:19] offset:16")
    A("global_store_dwordx2 v3, v[24:25], s[18:19] offset:32")

def gamp(A, LB, g):
    k, wv, fac, cnt = g[:4]
    die = g[4] if len(g) > 4 else None
    A("s_waitcnt lgkmcnt(0) vmcnt(0)")
    A("s_mov_b64 exec, -1")
    A("s_barrier")
    A(f"s_cmp_lg_u32 s3, {wv}")
    A("s_cbranch_scc1 L_end")
    A("s_mov_b64 exec, 1")
    A("s_not_b32 s20, s60")
    A("v_mov_b32 v16, s20")
    pair = None
    if isinstance(k, (list, tuple)):
        pair = k; k = -4 if pair[2] == "add" else -1
        A(f"s_sub_u32 s21, s{60+2*pair[1]}, s{60+2*pair[0]}")
        A("v_mov_b32 v17, s21")
    else: A(f"v_mov_b32 v17, s{60+2*k}" if k >= 0 else f"v_mov_b32 v17, s{49 if k in (-1,-4) else 59}")
    if die in ("r", "n"):
        A(f"s_cmp_eq_u32 s58, {1 if die == 'r' else 0}")
        A("s_cselect_b32 s21, -1, 0")
        A("v_and_b32 v17, s21, v17")
    elif die == "l":
        A("s_cmp_gt_u32 s57, s58")
        A("s_cselect_b32 s21, -1, 0")
        A("v_and_b32 v17, s21, v17")
    elif die is not None:
        A("s_and_b32 s21, s2, 7")
        A(f"s_cmp_eq_u32 s21, {die}")
        A("s_cselect_b32 s21, -1, 0")
        A("v_and_b32 v17, s21, v17")
    A("v_mov_b32 v3, 0")
    A("v_mov_b32 v18, 1")
    A("global_atomic_umax v3, v16, s[16:17] sc1")
    A(f"global_atomic_{'add' if k in (-3,-4) else 'umax'} v3, v17, s[16:17] offset:64 sc1")
    A("s_waitcnt vmcnt(0)")
    A("global_atomic_add v19, v3, v18, s[16:17] offset:128 sc0 sc1")
    A("s_waitcnt vmcnt(0)")
    A("v_readfirstlane_b32 s20, v19")
    A(f"s_cmp_lg_u32 s20, {cnt-1}")
    A("s_cbranch_scc1 L_end")
    A("v_mov_b32 v18, 0")
    A("global_atomic_umax v16, v3, v18, s[16:17] sc0 sc1")
    A("global_atomic_umax v17, v3, v18, s[16:17] offset:64 sc0 sc1")
    A("s_waitcnt vmcnt(0)")
    A("v_readfirstlane_b32 s20, v16")
    A("v_readfirstlane_b32 s21, v17")
    A("s_not_b32 s20, s20")
    if k >= 0: A("s_sub_u32 s20, s21, s20")
    else: A("s_mov_b32 s20, s21")
    A("v_mov_b32 v18, s20")
    A("global_store_dword v3, v18, s[16:17] offset:4")
    A("s_min_u32 s20, s20, %d" % (30000 if pair else 3000))
    A(f"s_mul_i32 s20, s20, {fac}")
    A("s_memrealtime s[22:23]")
    A("s_waitcnt lgkmcnt(0)")
    LB("L_amp")
    A("s_memrealtime s[24:25]")
    A("s_waitcnt lgkmcnt(0)")
    A("s_sub_u32 s21, s24, s22")
    A("s_cmp_lt_u32 s21, s20")
    A("s_cbranch_scc1 L_amp")

def gpair(A, LB, g):
    da, db, cnt = g
    A("s_waitcnt lgkmcnt(0) vmcnt(0)")
    A("s_mov_b64 exec, -1")
    A("s_barrier")
    A("s_cmp_lg_u32 s3, 4")
    A("s_cbranch_scc1 L_end")
    A("s_mov_b64 exec, 1")
    A("s_not_b32 s20, s60")
    A("v_mov_b32 v16, s20")
    A("s_and_b32 s21, s2, 7")
    A(f"s_cmp_eq_u32 s21, {da}")
    A("s_cselect_b32 s22, s20, 0")
    A(f"s_cmp_eq_u32 s21, {db}")
    A("s_cselect_b32 s23, s20, 0")
    A("v_mov_b32 v17, s22")
    A("v_mov_b32 v20, s23")
    A("v_mov_b32 v3, 0")
    A("v_mov_b32 v18, 1")
    A("global_atomic_umax v3, v16, s[16:17] sc1")
    A("global_atomic_umax v3, v17, s[16:17] offset:64 sc1")
    A("global_atomic_umax v3, v20, s[16:17] offset:192 sc1")
    A("s_waitcnt vmcnt(0)")
    A("global_atomic_add v19, v3, v18, s[16:17] offset:128 sc0 sc1")
    A("s_waitcnt vmcnt(0)")
    A("v_readfirstlane_b32 s20, v19")
    A(f"s_cmp_lg_u32 s20, {cnt-1}")
    A("s_cbranch_scc1 L_end")
    A("v_mov_b32 v18, 0")
    A("global_atomic_umax v16, v3, v18, s[16:17] sc0 sc1")
    A("global_atomic_umax v17, v3, v18, s[16:17] offset:64 sc0 sc1")
    A("global_atomic_umax v20, v3, v18, s[16:17] offset:192 sc0 sc1")
    A("s_waitcnt vmcnt(0)")
    A("v_readfirstlane_b32 s20, v16")
    A("v_readfirstlane_b32 s21, v17")
    A("v_readfirstlane_b32 s22, v20")
    A("s_sub_u32 s21, s20, s21")
    A("s_sub_u32 s22, s20, s22")
    for r in (21, 22):
        A(f"s_add_u32 s{r}, s{r}, 2")
        A(f"s_lshr_b32 s{r}, s{r}, 2")
        A(f"s_min_u32 s{r}, s{r}, 31")
    A("s_lshl_b32 s22, s22, 5")
    A("s_add_u32 s20, s21, s22")
    A("v_mov_b32 v18, s20")
    A("global_store_dword v3, v18, s[16:17] offset:4")
    A("s_mul_i32 s20, s20, 200")
    A("s_memrealtime s[22:23]")
    A("s_waitcnt lgkmcnt(0)")
    LB("L_amp")
    A("s_memrealtime s[24:25]")
    A("s_waitcnt lgkmcnt(0)")
    A("s_sub_u32 s21, s24, s22")
    A("s_cmp_lt_u32 s21, s20")
    A("s_cbranch_scc1 L_amp")
```

```python
KN = "standalone__moe_arch_mod__sampling_kernel"
HEAD = open("standalone__moe_arch_mod__sampling.s.ref").read().split("; Override launch")[0]

O_IDX = 0x1000
O_LDR = 0x12000
O_EX1F = 0x20000
O_EX2 = 0x100000
O_EX1 = 0x300000
WS_REC = 0x500000
L_XS = 0
L_RED = 8192
L_HB = 16384
L_KEY = 17408
L_FLAG = 17408 + 32
LDS_BYTES = 17408 + 64
SPIN = 40000

DOC = """; MoD sampling block: route (argmax of x.w_r per batch), SwiGLU FFN on the 8 selected rows, residual update.
"""

def gen(pol="nt", xpol="", D=10, DI=6, D3=8, D3W=12, BX=4, BX3=8, DX=32, LS=16, NF=12, PK=3, FS=38, fsleep=1,
        outpol="sc1", finpol="", x1pol="", x2d=27, PERM=(7,0,1,2,4,5,6,3), align=True, prog=True, early_id=True,
        stamps=False, dg=None, gamp=None, cst1=True, lag0=0, MAP="B", DUP0=True, X2S=8192, nob5=False, mx=False, x2s=0, b4=True, rlag=0, IS=0, ipf=0, FS0=None, X20=None, late2=0, late3=0, D0=None, pace=None, pace3=None, DT=None, em=0, ldr=True, NSP=None, ssl=2, hold=None, mc=True, SF=36, NC=16, lid='pre', lw=None, D3B=None, hx=False, D3X=None, R3=1, wg=None, NLD=1, LF=40, RF=0, CW=0, lp=1, lps=5, NR=8, FA=1, full=False, rpol='sc1', LBR=16, nodup=False, nr0=False, PK3=None, KP=4, LF0=None, sib=None, xr=False, x1ld='sc1', pt=True, x1f=None, ptp='', skip=False, dum=False, ids='bx', idd=0, FK=None):
    if gamp or dg: stamps = True
    if NSP is None: NSP = NC - 1
    L = []
    def A(s): L.append("  " + s)
    def LB(s): L.append(s + ":")
    def stamp(i):
        if stamps: A(f"s_memrealtime s[{60+2*i}:{61+2*i}]")
    sp = lambda p: (" " + p) if p else ""
    pol, xpol, outpol, finpol, x1pol = map(sp, (pol, xpol, outpol, finpol, x1pol))
    REPS = 64 * LS
    XR = 80
    RAW = 16; FR = 80; XB = 96; ACC = 112; W2 = 128
    F2 = 40; HA = 72
    IDR = 40
    def raw(s, i): return RAW + 16*s + 2*i
    def frag(s, j): return (FR if s == 0 else RAW + 16*(s-1)) + 4*j
    def raw2(s, i): return W2 + 16*s + 2*i
    def frag2(s, j): return F2 + 16*s + 4*j
    def perm_pair(rawf, fragf, s, p):
        for e in range(2):
            A(f"v_perm_b32 v{fragf(s,2*e)+p}, v{rawf(s,2*p+1)+e}, v{rawf(s,2*p)+e}, s42")
            A(f"v_perm_b32 v{fragf(s,2*e+1)+p}, v{rawf(s,2*p+1)+e}, v{rawf(s,2*p)+e}, s43")
    def perms(rawf, fragf, s):
        for p in range(4): perm_pair(rawf, fragf, s, p)
    def w1load(n):
        s, i = divmod(n, 8)
        A(f"buffer_load_dwordx2 v[{raw(s,i)}:{raw(s,i)+1}], v3, s[24:27], s44 offen{pol}")
        A("s_addk_i32 s44, 7168" if i < 7 else "s_add_u32 s44, s44, %d" % (25*7168))
    def w2load(n):
        s, i = divmod(n, 8)
        p, b = divmod(i, 2)
        row = 2*s + (p >> 1) + 8*(p & 1) + 4*b
        A("s_add_u32 s47, s53, %d" % (row*2048))
        A(f"buffer_load_dwordx2 v[{raw2(s,i)}:{raw2(s,i)+1}], v10, s[28:31], s47 offen{pol}")

    if lag0:
        A("s_and_b32 s3, s2, 7")
        A("s_cmp_lg_u32 s3, 0")
        A("s_cbranch_scc1 L_nolag")
        A(f"s_sleep {lag0}")
        LB("L_nolag")
    stamp(0)
    A("s_cmp_ge_u32 s2, 256")
    A("s_cbranch_scc1 L_exit")
    A("s_load_dwordx16 s[4:19], s[0:1], 0")
    A("v_lshrrev_b32 v1, 6, v0")
    A("v_and_b32 v0, 63, v0                 ; lane")
    A("v_readfirstlane_b32 s3, v1           ; wave")
    A("s_lshl_b32 s22, s2, 2")
    A("s_lshr_b32 s22, 0x%x, s22" % sum(v << (4*i) for i, v in enumerate(PERM)))
    A("s_and_b32 s22, s22, 7")
    A("s_lshr_b32 s23, s2, 3")
    A("s_lshr_b32 s44, s23, 2")
    A("s_mul_i32 s45, s22, 6")
    A("s_add_u32 s45, s45, s44")
    A("s_add_u32 s44, s45, 4")
    A("s_mul_i32 s44, s44, 37")
    A("s_lshr_b32 s44, s44, 8")
    A("s_add_u32 s20, s45, s44")
    A("s_lshl_b32 s44, s22, 3")
    A("s_add_u32 s44, s44, 3")
    A("s_min_u32 s44, s44, 55")
    A("s_cmp_ge_u32 s23, 24")
    A("s_cselect_b32 s20, s44, s20")
    A("s_cselect_b32 s57, 1, 0")
    A("s_cselect_b32 s21, 7, 3")
    A("s_and_b32 s21, s21, s23              ; part")
    A(f"s_cmp_ge_u32 s23, {24 + NLD}")
    A("s_cselect_b32 s58, 1, 0")
    A("s_mov_b32 s27, 0x20000")
    A("s_cmp_lt_u32 s3, 4")
    A("s_cbranch_scc1 L_c")
    A("s_mov_b32 s30, 524288")
    A("s_mov_b32 s31, 0x20000")
    A("v_lshlrev_b32 v14, 4, v0             ; lane*16")
    A("s_cmp_eq_u32 s58, 1")
    A("s_cbranch_scc1 L_rt")
    A("s_cmp_eq_u32 s3, 4")
    A("s_cbranch_scc1 L_r")
    LB("L_exit")
    A("s_endpgm")
    LB("L_rt")
    A("s_setprio 3")
    A(f"s_mul_i32 s52, s22, {8 - NLD}")
    A("s_add_u32 s52, s52, s21")
    A("s_lshl_b32 s52, s52, 1")
    A("s_add_u32 s52, s52, s3")
    A(f"s_sub_u32 s52, s52, {4 + 2*NLD}")
    A("s_and_b32 s52, s52, 63")
    A("s_lshl_b32 s44, s52, 13")
    A("s_add_u32 s45, s44, 4096")
    A("s_movk_i32 s26, 2048")
    A("s_waitcnt lgkmcnt(0)")
    A("s_mov_b64 s[28:29], s[4:5]")
    A("s_mov_b64 s[24:25], s[6:7]")
    A("s_load_dword s40, s[18:19], 0        ; epoch")
    A(f"buffer_load_dwordx4 v[16:19], v14, s[24:27], 0 offen")
    A(f"buffer_load_dwordx4 v[20:23], v14, s[24:27], 0 offen offset:1024")
    for i in range(8):
        A(f"buffer_load_dwordx4 v[{XR+4*i}:{XR+4*i+3}], v14, s[28:31], {'s44' if i < 4 else 's45'} offen offset:{(i%4)*1024}{xpol}")
    A("s_barrier                            ; B0")
    A("s_branch L_route")
    LB("L_c")
    A("v_mov_b32 v4, 0")
    if FK:
        A("v_mov_b32 v5, 0")
        A(f"ds_write_b64 v4, v[4:5] offset:{L_FLAG}")
    else: A(f"ds_write_b32 v4, v4 offset:{L_FLAG}")
    A("s_mov_b32 s26, 7340032")
    A("v_lshrrev_b32 v1, 4, v0              ; g")
    A("v_and_b32 v2, 15, v0                 ; n")
    A("v_mul_u32_u24 v3, %d, v1" % (8*7168))
    A("v_lshl_add_u32 v3, v2, 3, v3         ; voffset")
    A("s_lshr_b32 s44, s21, 1")
    A("s_lshl_b32 s44, s44, 2")
    A("s_add_u32 s44, s44, s3")
    A("s_lshr_b32 s45, %d, s57" % (128*7168))
    A("s_mul_i32 s44, s44, s45")
    A("s_lshl_b32 s45, s20, 7")
    A("s_add_u32 s44, s44, s45              ; soffset")
    A("s_bitcmp1_b32 s21, 0")
    A("s_waitcnt lgkmcnt(0)")
    A("s_cselect_b64 s[24:25], s[10:11], s[8:9]")
    A("s_cmp_eq_u32 s58, 0")
    A("s_cbranch_scc1 L_nb0")
    A("s_barrier")
    LB("L_nb0")
    if not cst1: stamp(1)
    for n in range(DI): w1load(n)
    A("s_load_dword s40, s[18:19], 0        ; epoch")
    if stamps:
        A("s_getreg_b32 s59, hwreg(HW_REG_HW_ID)")
    A("s_mov_b64 s[32:33], s[18:19]")
    A("s_mov_b32 s34, %d" % WS_REC)
    A("s_mov_b32 s35, 0x20000")
    A("s_mov_b32 s42, 0x05040100")
    A("s_mov_b32 s43, 0x07060302")
    A("v_and_b32 v8, 7, v0")
    A("v_lshl_add_u32 v13, v1, 3, v8")
    A("v_lshlrev_b32 v13, 4, v13")
    A("s_lshl_b32 s45, s3, 11")
    A("v_add_u32 v4, s45, v13")
    A("s_lshr_b32 s45, s45, s57")
    A("v_add_u32 v5, s45, v13")
    A("v_lshlrev_b32 v6, 3, v0")
    A("s_lshl_b32 s45, s3, 9")
    A("v_add_u32 v6, s45, v6                ; w*512 + lane*8")
    A("v_lshrrev_b32 v7, 1, v0")
    A("v_lshlrev_b32 v7, 4, v7")
    A("v_and_b32 v9, 1, v0")
    A("v_lshl_add_u32 v7, v9, 2, v7")
    A("s_lshr_b32 s45, s3, 1")
    A("s_lshl_b32 s45, s45, 9")
    A("s_and_b32 s46, s3, 1")
    A("s_lshl_b32 s46, s46, 3")
    A("s_add_u32 s45, s45, s46")
    A("v_add_u32 v7, s45, v7")
    A("s_mov_b64 s[28:29], s[12:13]")
    A("s_mov_b32 s30, 7340032")
    A("s_mov_b32 s31, 0x20000")
    A("v_lshlrev_b32 v10, 15, v1            ; g*16*2048")
    A("v_lshl_add_u32 v10, v2, 3, v10")
    A("v_lshrrev_b32 v11, 3, v2")
    A("v_lshl_add_u32 v11, v1, 7, v11       ; 4g*32 + (n>>3)")
    A("v_mul_u32_u24 v11, %d, v11" % X2S)
    A("v_lshl_add_u32 v11, v8, 4, v11       ; + (n&7)*16")
    A("s_lshl_b32 s53, s21, 2")
    A("s_lshr_b32 s53, s53, s57")
    A("s_add_u32 s53, s53, s3")
    A("s_lshr_b32 s45, s3, 1")
    A("s_and_b32 s45, s45, s57")
    A("s_lshl_b32 s45, s45, 30")
    A("v_or_b32 v10, s45, v10")
    A("v_or_b32 v11, s45, v11")
    A("s_mul_i32 s52, s53, %d" % (2*X2S))
    A("s_lshl_b32 s46, s20, 7")
    A("s_add_u32 s52, s52, s46")
    A("s_add_u32 s52, s52, %d" % O_EX2)
    A("s_lshl_b32 s53, s53, 7")
    A("s_lshl_b32 s46, s20, 17              ; tile*64*2048")
    A("s_add_u32 s53, s53, s46")
    A("s_lshl_b32 s45, s20, 14")
    A("s_lshl_b32 s46, s21, 11")
    A("s_add_u32 s45, s45, %d               ; group base" % O_EX1F)
    A("s_add_u32 s46, s46, s45")
    A("s_mov_b32 s48, 0xffffff00")
    A("s_mov_b32 s50, 0xbfb8aa3b            ; -log2(e)")
    A("s_mov_b32 s51, 0xbfb8aa3b")
    A("s_mov_b32 s49, 0")
    A("s_getreg_b32 s54, hwreg(HW_REG_XCC_ID, 0, 3)")
    A("v_mov_b32 v12, 1")
    if not D0: A("v_cmp_eq_u32 vcc, s57, v12")
    A("s_cmp_eq_u32 s58, 1")
    A("s_cbranch_scc1 L_cb")

    slow = []; st = {}
    def cpath(NS, sfx, DD, DW, bx):
        NL = 8*NS
        done = 0
        landed = 0
        if NS == 2: A("s_barrier")
        lt = late2 if NS == 4 else late3
        if D0 and NS == 4:
            A(f"s_cmp_eq_u32 s22, {PERM[0]}")
            A("s_cselect_b64 vcc, -1, 0")
        landed0 = 1
        for n in range(DI, NL + 16 - lt):
            dn = min(DD, DI + (n - DI + 1) * (R3 if NS == 2 else 1) // 2) if n < NL else DW
            if n >= NL + bx:
                if n == NL + bx:
                    A("s_barrier")
                    if NS == 2:
                        LB("L_bx"); st["done"] = done
                dn = DX
                if wg is not None and NS == 4 and n == NL + bx: dn = bx + wg + 1
            if NS == 2 and hold is not None:
                if n == DI + hold: A("s_barrier                            ; " + ("BX: the keys and the selected rows are in the queue" if hx else "B0c: the first look at the scores is in the queue"))
                if D3B and DI + hold <= n < NL: dn = D3B
                if D3X and n >= NL: dn = D3X
            if DT and NS == 4 and DT[0] <= n < NL + bx: dn = min(DT[1], DD + (n - DT[0] + 1) * DT[2] // 2)
            pc = pace if NS == 4 else pace3
            if pc and DI < n < NL + bx:
                dn = pc[2]
                if (n - DI) % pc[0] == 0 or pc[0] == 1: A(f"s_sleep {pc[1]}")
            if D0 and NS == 4 and n > DI + 1 and n < NL + bx:
                d0 = min(D0[0] + (n & 1), DI + (n - DI + 1) * D0[1] // 2)
                if n >= NL: d0 = dn = max(dn, 12)
                if n - dn + 1 > landed0 and d0 > dn:
                    A(f"s_cbranch_vccnz L_d0_{n}")
                    A(f"s_waitcnt vmcnt({dn-1})")
                    LB(f"L_d0_{n}")
                    landed0 = n - dn + 1
                dn = max(dn, d0)
            if n - dn + 1 > landed:
                A(f"s_waitcnt vmcnt({dn-1})")
                landed = n - dn + 1
            if n == DI and cst1: stamp(1)
            if n == LBR and NS == 4:
                assert done == 0
                if D0:
                    A("s_cmp_eq_u32 s57, 1")
                    A("s_cbranch_scc1 L_cc")
                else: A("s_cbranch_vccnz L_cc")
            if n < NL: w1load(n)
            else: w2load(n - NL)
            if n == DI and NS == 4:
                A(f"ds_write_b32 v12, v12 offset:{L_FLAG - 1}")
            if n == NL - 1: stamp(2)
            while done < NS and 8*done + 8 <= landed:
                perms(raw, frag, done); done += 1
        A("s_waitcnt lgkmcnt(0)")
        A("s_add_u32 s40, s40, 8                ; tag32")
        A("s_and_b32 s41, s40, 0xff")
        A("s_and_b32 s55, s40, 0xf8")
        A("s_or_b32 s54, s54, s55")
        A("v_mov_b32 v9, s41")
        A("v_mov_b32 v12, s54")
        if skip:
            A("s_bitcmp1_b32 s21, 0")
            A("s_cselect_b64 s[22:23], -1, 0")
        if NL + 16 - lt <= NL + bx: A("s_barrier                            ; BX")
        while done < NS - (1 if em and NS == 4 else 0):
            A(f"s_waitcnt vmcnt({NL + 16 - lt - 8*done - 8})")
            perms(raw, frag, done); done += 1
        A("s_barrier")
        stamp(3)
        for n in range(16 - lt, 16): w2load(n)
        for s in range(NS):
            A(f"ds_read_b128 v[{XB+4*s}:{XB+4*s+3}], v5 offset:{L_XS + 512*s}")
        for s in range(NS):
            late = done < NS
            if late and em == 1 and s == NS - 1:
                A("s_waitcnt vmcnt(16)")
                perms(raw, frag, NS - 1)
            if late and em == 2 and s == NS - 2: A("s_waitcnt vmcnt(16)")
            A(f"s_waitcnt lgkmcnt({NS-1-s})")
            for j in range(4):
                c = "0" if s == 0 else f"v[{ACC+4*j}:{ACC+4*j+3}]"
                A(f"v_mfma_f32_16x16x32_bf16 v[{ACC+4*j}:{ACC+4*j+3}], v[{frag(s,j)}:{frag(s,j)+3}], v[{XB+4*s}:{XB+4*s+3}], {c}")
                if late and em == 2 and s == NS - 2: perm_pair(raw, frag, NS - 1, j)
        A("s_mov_b32 exec_lo, 0x00ff00ff")
        A("s_mov_b32 exec_hi, 0x00ff00ff")
        A("s_nop 2")
        for j in range(4):
            A(f"ds_write_b128 v4, v[{ACC+4*j}:{ACC+4*j+3}] offset:{L_RED + 512*j}")
        A("s_mov_b64 exec, -1")
        A("s_waitcnt lgkmcnt(0)")
        A("s_barrier                            ; B3")
        for w in range(2):
            A(f"ds_read2st64_b64 v[{16+4*w}:{19+4*w}], v6 offset0:{(L_RED + 4096*w)//512} offset1:{(L_RED + 4096*w + 2048)//512}")
        A("s_waitcnt lgkmcnt(1)")
        A("v_pk_add_f32 v[16:17], v[16:17], v[18:19]")
        A("s_waitcnt lgkmcnt(0)")
        A("v_pk_add_f32 v[20:21], v[20:21], v[22:23]")
        A("v_pk_add_f32 v[16:17], v[16:17], v[20:21]")
        A("v_and_or_b32 v16, v16, s48, v12")
        A("v_and_or_b32 v17, v17, s48, v12")
        A(f"buffer_store_dwordx2 v[16:17], v6, s[32:35], s46 offen{x1pol}")
        stamp(4)
        if skip:
            A("v_and_b32 v24, s48, v16")
            A("v_and_b32 v25, s48, v17")
        NB = 4 if NS == 4 else 8
        pairs = [(s, p) for s in range(2) for p in range(4)]
        k = 0
        PKx = PK3 if (NS == 2 and PK3 is not None) else PK
        if KP:
            A(f"s_waitcnt vmcnt({17 - 2*KP})")
            while k < KP: perm_pair(raw2, frag2, *pairs[k]); k += 1
        if prog:
            while 17 - 2*(k+1) >= PK:
                A(f"s_waitcnt vmcnt({17 - 2*(k+1)})")
                perm_pair(raw2, frag2, *pairs[k]); k += 1
        if not prog or 17 - 2*k > PK: A(f"s_waitcnt vmcnt({PKx})")
        def polls(x1ld=x1ld):
            if skip:
                for b in range(1, NB):
                    A(f"s_xor_b32 s47, s46, {b*2048}")
                    A(f"buffer_load_dwordx2 v[{24+2*b}:{25+2*b}], v6, s[32:35], s47 offen {x1ld}")
                if dum: A("buffer_load_dword v15, v6, s[32:35], s34 offen")
                return
            for b in range(NB):
                if b and b % 2 == 0: A(f"s_add_u32 s47, s45, {b*2048}")
                A(f"buffer_load_dwordx2 v[{24+2*b}:{25+2*b}], v6, s[32:35], {'s45' if b < 2 else 's47'} offen offset:{(b%2)*2048} {x1ld}")
        if prog:
            polls()
            while k < 8:
                A(f"s_waitcnt vmcnt({NB + 17 - 2*(k+1)})")
                perm_pair(raw2, frag2, *pairs[k]); k += 1
            A(f"s_branch L_x1chk{sfx}")
        if xr: stamp(1)
        if x1f is not None:
            if xr: stamp(7)
            polls(x1f)
            A(f"s_branch L_x1chk{sfx}")
        LB("L_x1poll" + sfx)
        if xr: stamp(7)
        polls()
        LB("L_x1chk" + sfx)
        A("s_add_u32 s49, s49, 1")
        A(f"s_waitcnt vmcnt({1 if dum else 0})")
        r0 = 26 if skip else 24
        for r in range(r0, 24+2*NB): A(f"v_xor_b32 v{r}, s54, v{r}")
        A(f"v_or3_b32 v8, v{r0}, v{r0+1}, v{r0+2}")
        for r in range(r0+3, 24+2*NB-1, 2): A(f"v_or3_b32 v8, v8, v{r}, v{r+1}")
        A(f"v_or_b32 v8, v8, v{24+2*NB-1}")
        A("v_and_b32 v8, 0xff, v8")
        A("v_cmp_ne_u32 vcc, 0, v8")
        A("s_cbranch_vccnz L_x1no" + sfx)
        LB("L_x1ok" + sfx)
        stamp(5)
        if NB == 8:
            A("v_pk_add_f32 v[24:25], v[24:25], v[32:33]")
            A("v_pk_add_f32 v[26:27], v[26:27], v[34:35]")
            A("v_pk_add_f32 v[28:29], v[28:29], v[36:37]")
            A("v_pk_add_f32 v[30:31], v[30:31], v[38:39]")
        S = []
        def B(s): S.append("  " + s)
        S.append("L_x1no" + sfx + ":")
        B(f"s_cmp_lt_u32 s49, {NF}")
        B("s_cbranch_scc1 L_x1poll" + sfx)
        B("v_lshlrev_b32 v8, 1, v6")
        B("s_lshl_b32 s56, s20, 15")
        B("s_add_u32 s56, s56, %d" % O_EX1)
        B(f"s_cmp_lg_u32 s49, {NF}")
        B("s_cbranch_scc1 L_x1ns" + sfx)
        B("v_and_b32 v96, s48, v16")
        B("v_and_b32 v97, s48, v17")
        B("v_mov_b32 v98, s40")
        B("v_mov_b32 v99, s40")
        B("s_lshl_b32 s47, s21, 12")
        B("s_add_u32 s47, s47, s56")
        B("buffer_store_dwordx4 v[96:99], v8, s[32:35], s47 offen sc1")
        B("s_waitcnt vmcnt(0)")
        S.append("L_x1ns" + sfx + ":")
        if skip:
            B("s_lshl_b32 s47, s21, 12")
            B("s_add_u32 s56, s56, s47")
        for b in range(NB):
            if skip:
                B(f"s_xor_b32 s47, s56, {b*4096}")
                B(f"buffer_load_dwordx4 v[{96+4*b}:{99+4*b}], v8, s[32:35], s47 offen sc1")
            else:
                B(f"buffer_load_dwordx4 v[{96+4*b}:{99+4*b}], v8, s[32:35], s56 offen sc1")
                B("s_add_u32 s56, s56, 4096")
        B("s_waitcnt vmcnt(0)")
        B("v_mov_b32 v8, 0")
        for b in range(NB):
            B(f"v_xor_b32 v{98+4*b}, s40, v{98+4*b}")
            B(f"v_xor_b32 v{99+4*b}, s40, v{99+4*b}")
            B(f"v_or3_b32 v8, v8, v{98+4*b}, v{99+4*b}")
            B(f"v_mov_b32 v{24+2*b}, v{96+4*b}")
            B(f"v_mov_b32 v{25+2*b}, v{97+4*b}")
        B("v_cmp_ne_u32 vcc, 0, v8")
        B("s_cbranch_vccz L_x1ok" + sfx)
        B("s_cmp_lt_u32 s49, %d" % SPIN)
        B("s_cbranch_scc1 L_x1poll" + sfx)
        B("s_branch L_x1ok" + sfx)
        slow.extend(S)
        return k
    ka = cpath(4, "a", D, D, BX)
    LB("L_h")
    A("v_pk_add_f32 v[24:25], v[24:25], v[28:29]   ; gate")
    A("v_pk_add_f32 v[26:27], v[26:27], v[30:31]   ; up")
    if skip:
        A("v_cvt_pk_bf16_f32 v18, v24, v25")
        A("v_cvt_pk_bf16_f32 v19, v26, v27")
        A("v_cndmask_b32 v8, v18, v19, s[22:23]  ; gate")
        A("v_cndmask_b32 v12, v19, v18, s[22:23] ; up")
    else:
        A("v_cvt_pk_bf16_f32 v8, v24, v25")
        A("v_cvt_pk_bf16_f32 v12, v26, v27")
    A("v_lshlrev_b32 v18, 16, v8")
    A("v_and_b32 v19, 0xffff0000, v8")
    A("v_pk_mul_f32 v[20:21], v[18:19], s[50:51]")
    A("v_exp_f32 v20, v20")
    A("v_exp_f32 v21, v21")
    A("v_lshlrev_b32 v14, 16, v12")
    A("v_pk_add_f32 v[20:21], v[20:21], 1.0 op_sel_hi:[1,0]")
    A("v_rcp_f32 v20, v20")
    A("v_rcp_f32 v21, v21")
    A("v_and_b32 v15, 0xffff0000, v12")
    A("v_pk_mul_f32 v[18:19], v[18:19], v[20:21]")
    A("v_cvt_pk_bf16_f32 v8, v18, v19        ; silu")
    A("v_lshlrev_b32 v18, 16, v8")
    A("v_and_b32 v19, 0xffff0000, v8")
    A("v_pk_mul_f32 v[18:19], v[18:19], v[14:15]")
    A("v_cvt_pk_bf16_f32 v8, v18, v19        ; h")
    A(f"ds_write_b32 v7, v8 offset:{L_HB}")
    for k in range(ka, 8): perm_pair(raw2, frag2, *divmod(k, 4))
    A("s_waitcnt lgkmcnt(0)")
    A("s_barrier                            ; B4")
    for s in range(2):
        A(f"ds_read_b128 v[{HA+4*s}:{HA+4*s+3}], v13 offset:{L_HB + 512*s}")
    for s in range(2):
        A(f"s_waitcnt lgkmcnt({1-s})")
        for j in range(4):
            c = "0" if s == 0 else f"v[{ACC+4*j}:{ACC+4*j+3}]"
            A(f"v_mfma_f32_16x16x32_bf16 v[{ACC+4*j}:{ACC+4*j+3}], v[{HA+4*s}:{HA+4*s+3}], v[{frag2(s,j)}:{frag2(s,j)+3}], {c}")
    A("s_mov_b32 exec_lo, -1")
    A("s_mov_b32 exec_hi, 0")
    A("s_nop 2")
    for r in range(4):
        for j in range(4):
            A(f"v_and_or_b32 v{20+4*r+j}, v{ACC+4*j+r}, s48, v9")
        A(f"buffer_store_dwordx4 v[{20+4*r}:{23+4*r}], v11, s[32:35], s52 offen sc1")
        if r < 3: A("s_add_u32 s52, s52, %d" % (32*X2S))
    stamp(6)
    if not (nob5 or b4): A("s_waitcnt vmcnt(0)")
    if not b4: A("s_barrier                            ; B5")
    if not xr: stamp(7)
    if stamps: A("s_branch L_fin")
    else: A("s_endpgm")

    def rsetup():
        A("s_mov_b64 s[32:33], s[18:19]")
        A("s_mov_b32 s34, %d" % WS_REC)
        A("s_mov_b32 s35, 0x20000")
        A("s_mov_b64 s[36:37], s[14:15]")
        A("s_mov_b32 s38, 524288")
        A("s_mov_b32 s39, 0x20000")
        A("v_and_b32 v4, 7, v0")
        if stamps:
            A("s_mov_b32 s59, 0")
            A("s_mov_b32 s49, 0")
    LB("L_route")
    rsetup()
    A("s_and_b32 s45, s52, 7")
    A("s_lshl_b32 s46, s45, 3")
    A("s_lshr_b32 s52, s52, 3               ; batch")
    A("s_add_u32 s46, s46, s52")
    A("s_mul_i32 s46, s46, %d" % LS)
    A("s_add_u32 s46, s46, %d               ; slot" % O_IDX)
    A("s_lshl_b32 s45, s45, 2")
    A("v_mul_u32_u24 v5, %d, v0             ; replica offset" % (8 if full else REPS))
    if ipf:
        A("s_mov_b64 exec, 0xff")
        A("buffer_load_dword v13, v5, s[32:35], s46 offen sc1")
        A("s_mov_b64 exec, -1")
    A("v_lshrrev_b32 v10, 5, v0")
    A("v_bfe_u32 v11, v0, 4, 1")
    A("v_lshl_add_u32 v10, v11, 1, v10")
    A("v_add_u32 v10, s45, v10")
    A("v_xor_b32 v10, 31, v10")
    for t in range(4):
        for hlf in range(2):
            A(f"s_waitcnt vmcnt({7 - 2*t - hlf + (1 if ipf else 0)})")
            for k in range(4):
                c = "0" if (hlf == 0 and k == 0) else f"v{6+t}"
                A(f"v_dot2_f32_bf16 v{6+t}, v{XR+8*t+4*hlf+k}, v{16+4*hlf+k}, {c}")
    A("s_waitcnt lgkmcnt(0)")
    A("s_add_u32 s40, s40, 8")
    A("s_nop 0")
    A("v_permlane32_swap_b32 v6, v7")
    A("v_permlane32_swap_b32 v8, v9")
    A("v_add_f32 v6, v6, v7")
    A("v_add_f32 v8, v8, v9")
    A("s_nop 1")
    A("v_permlane16_swap_b32 v6, v8")
    A("v_add_f32 v6, v6, v8")
    A("s_nop 1")
    A("v_add_f32_dpp v6, v6, v6 quad_perm:[1,0,3,2] row_mask:0xf bank_mask:0xf")
    A("s_nop 1")
    A("v_add_f32_dpp v6, v6, v6 quad_perm:[2,3,0,1] row_mask:0xf bank_mask:0xf")
    A("s_nop 1")
    A("v_add_f32_dpp v6, v6, v6 row_half_mirror row_mask:0xf bank_mask:0xf")
    A("s_nop 1")
    A("v_add_f32_dpp v6, v6, v6 row_mirror row_mask:0xf bank_mask:0xf")
    A("v_cvt_pk_bf16_f32 v7, v6, v6")
    A("v_and_b32 v7, 0xffff0000, v7          ; r (bf16)")
    A("v_ashrrev_i32 v6, 31, v7")
    A("v_or_b32 v6, 0x80000000, v6")
    A("v_xor_b32 v6, v6, v7")
    A("v_cmp_o_f32 vcc, v7, v7")
    A("v_and_b32 v6, 0xffff0000, v6")
    A("s_nop 0")
    A("v_cndmask_b32 v6, 0, v6, vcc")
    A("v_or_b32 v6, v10, v6")
    A("v_mov_b32 v7, v6")
    A("s_nop 1")
    A("v_permlane16_swap_b32 v6, v7")
    A("v_max_u32 v6, v6, v7")
    A("v_mov_b32 v7, v6")
    A("s_nop 1")
    A("v_permlane32_swap_b32 v6, v7")
    A("v_max_u32 v6, v6, v7")
    A("v_mov_b32 v7, s40")
    if rlag: A(f"s_sleep {rlag}")
    A("s_mov_b64 exec, 0x%x" % ((1 << (LS // 8 if full else NR)) - 1))
    A(f"buffer_store_dwordx2 v[6:7], v5, s[32:35], s46 offen {rpol}")
    A("s_mov_b64 exec, -1")
    A("s_barrier                            ; B0b")
    stamp(1)
    A("s_setprio 0")
    A("s_cmp_eq_u32 s3, 4")
    A("s_cbranch_scc1 L_r4")
    A("s_endpgm")
    if align: L.append(".p2align 12" if not (D0 or pace) else ".p2align 6")
    LB("L_cb")
    kb = cpath(2, "b", D3, D3W, BX3)
    assert ka == kb
    A("s_branch L_h")
    LB("L_cc")
    if LBR == 16: stamp(2)
    for n in range(CW): w2load(n)
    for d in range(st["done"]):
        A(f"s_waitcnt vmcnt({LBR - 8 - 8*d + CW})")
        perms(raw, frag, d)
    if FK:
        A(f"s_waitcnt vmcnt({LBR - FK + CW})")
        A(f"ds_write_b32 v12, v12 offset:{L_FLAG + 3}")
    A("s_barrier                            ; BX")
    for n in range(LBR, 16): w1load(n)
    if LBR < 16: stamp(2)
    for n in range(CW, BX3): w2load(n)
    A("s_branch L_bx")

    def idload():
        A(f"buffer_load_dwordx4 v[{IDR}:{IDR+3}], v14, s[28:31], s53 offen{xpol}")
        A(f"buffer_load_dwordx4 v[{IDR+4}:{IDR+7}], v14, s[28:31], s53 offen offset:1024{xpol}")
    def idconv():
        for r in range(IDR, IDR+8):
            A(f"v_lshlrev_b32 v16, 16, v{r}")
            A(f"v_and_b32 v17, 0xffff0000, v{r}")
            A("v_pk_fma_f32 v[16:17], v[16:17], 0, v[16:17] op_sel_hi:[1,0,1]")
            A(f"v_cvt_pk_bf16_f32 v{r}, v16, v17    ; x + x*0")
    def psetup():
        A("s_lshl_b32 s53, s2, 11")
        A("v_mul_u32_u24 v12, %d, v0            ; poll offset" % LS)
        if NR < 8:
            A(f"s_and_b32 s47, s22, {NR - 1}")
            A("s_mul_i32 s47, s47, %d" % REPS)
        else: A("s_mul_i32 s47, s22, %d" % REPS)
        A("s_add_u32 s47, s47, %d               ; this group's replica" % O_IDX)
        A("v_lshrrev_b32 v11, 3, v0")
        A("s_lshr_b32 s45, s21, 1")
        A("s_sub_u32 s46, 10, s57")
        A("s_lshl_b32 s45, s45, s46")
        A("s_lshl_b32 s48, s20, 14")
        A("s_lshl_b32 s46, s21, 11")
        A("s_add_u32 s48, s48, s46")
        A("s_add_u32 s48, s48, %d               ; own L2-local block" % O_EX1F)
        A("s_lshr_b32 s51, s2, 5")
        if ldr:
            A("s_getreg_b32 s42, hwreg(HW_REG_XCC_ID, 0, 3)")
            A("v_lshlrev_b32 v13, 3, v0")
            A("s_lshl_b32 s42, s42, %d" % ({16: 10, 32: 11}[NC] if mc else 8))
            A("s_add_u32 s42, s42, %d               ; this die's copy of the keys" % O_LDR)
    LB("L_r")
    A("s_waitcnt lgkmcnt(0)")
    A("s_load_dword s40, s[18:19], 0        ; epoch")
    A("s_mov_b64 s[28:29], s[4:5]")
    rsetup()
    stamp(1)
    LB("L_r4")
    psetup()
    for i in range(NC // 16): A(f"buffer_load_dwordx4 v[{16+4*i}:{19+4*i}], v14, s[32:35], s42 offen offset:{1024*i}")
    A("s_cmp_eq_u32 s58, 1")
    A("s_cbranch_scc1 L_rr")
    A("v_mov_b32 v8, 0")
    A("s_mov_b32 s49, 0")
    LB("L_fwait")
    if fsleep: A(f"s_sleep {fsleep}")
    A(f"ds_read_b32 v9, v8 offset:{L_FLAG}")
    A("s_add_u32 s49, s49, 1")
    A("s_cmp_ge_u32 s49, %d" % SPIN)
    A("s_waitcnt lgkmcnt(0)")
    A("v_cmp_eq_u32 vcc, 0, v9")
    A("s_cbranch_scc1 L_fok")
    A("s_cbranch_vccnz L_fwait")
    LB("L_fok")
    idload()
    A("s_add_u32 s40, s40, 8")
    A("s_cmp_eq_u32 s57, 1")
    A("s_cbranch_scc1 L_lead")
    if SF - RF: A(f"s_sleep {SF - RF}")
    A("s_branch L_sp0")
    LB("L_rr")
    idload()
    LB("L_sp0")
    if RF: A(f"s_sleep {RF}")
    stamp(2)
    A("s_mov_b32 s49, 0")
    if sib is not None:
        A(f"s_getreg_b32 s41, hwreg(HW_REG_HW_ID, {8 + sib}, 1)")
        A(f"s_mul_i32 s46, s41, {64*(NC-1)}")
        A("s_add_u32 s46, s46, s42")
        A("s_lshl_b32 s41, s41, 7")
        A("s_sub_u32 s41, 64, s41")
    else: A("s_mov_b32 s46, s42")
    LB("L_spoll")
    if ssl: A(f"s_sleep {ssl}")
    A("s_load_dwordx16 s[76:91], s[18:19], s46")
    A("s_add_u32 s46, s46, %s               ; the scalar cache keeps what it has seen: another copy next time" % ("64" if sib is None else "s41"))
    A("s_add_u32 s49, s49, 1")
    A(f"s_cmp_gt_u32 s49, {NSP}")
    A("s_cbranch_scc1 L_ip0")
    A("s_waitcnt lgkmcnt(0)")
    A("s_xor_b32 s43, s77, s40")
    for i in range(1, 8):
        A(f"s_xor_b32 s44, s{77+2*i}, s40")
        A("s_or_b32 s43, s43, s44")
    A("s_cbranch_scc1 L_spoll")
    stamp(3)
    if stamps: A("s_mov_b32 s59, s49")
    A("s_mov_b32 exec_lo, 0x01010101")
    A("s_mov_b32 exec_hi, 0x01010101")
    for i in range(8):
        A(f"v_mov_b32 v6, s{76+2*i}")
        A("s_lshl_b64 exec, exec, 1" if i < 7 else "s_mov_b64 exec, -1")
    A("s_branch L_sok")
    LB("L_lead")
    if FK:
        A("s_mov_b32 s49, 0")
        LB("L_fw2")
        if fsleep: A(f"s_sleep {fsleep}")
        A(f"ds_read_b32 v9, v8 offset:{L_FLAG + 4}")
        A("s_add_u32 s49, s49, 1")
        A("s_cmp_ge_u32 s49, %d" % SPIN)
        A("s_waitcnt lgkmcnt(0)")
        A("v_cmp_eq_u32 vcc, 0, v9")
        A("s_cbranch_scc1 L_fo2")
        A("s_cbranch_vccnz L_fw2")
        LB("L_fo2")
    if LF0 is not None:
        A(f"s_cmp_eq_u32 s22, {PERM[0]}")
        A("s_cbranch_scc1 L_lf0")
        A(f"s_sleep {LF - LF0}")
        LB("L_lf0")
        A(f"s_sleep {LF0}")
    elif LF: A(f"s_sleep {LF}")
    stamp(2)
    LB("L_ip0")
    A("s_waitcnt lgkmcnt(0)")
    A("s_mov_b32 s49, 0")
    LB("L_ipoll")
    if IS: A(f"s_sleep {IS}")
    A(f"buffer_load_dwordx2 v[8:9], v12, s[32:35], s47 offen sc1")
    LB("L_ichk")
    A("s_add_u32 s49, s49, 1")
    A("s_cmp_ge_u32 s49, %d" % SPIN)
    A(f"s_waitcnt vmcnt(0)")
    A(f"v_cmp_ne_u32 vcc, s40, v9")
    A("s_cbranch_scc1 L_iok")
    A("s_cbranch_vccnz L_ipoll")
    LB("L_iok")
    stamp(3)
    if stamps: A("s_mov_b32 s59, s49")
    A("v_max_u32_dpp v8, v8, v8 row_ror:8 row_mask:0xf bank_mask:0xf")
    A("v_mov_b32 v9, v8")
    if ldr:
        A("v_mov_b32 v7, s40")
        A("s_nop 0")
    else:
        A("s_mov_b32 m0, %d" % L_XS)
        A("s_cmp_eq_u32 s57, 1")
    A("v_permlane16_swap_b32 v8, v9")
    A("v_max_u32 v8, v8, v9")
    A("v_mov_b32 v9, v8")
    A("s_nop 1")
    A("v_permlane32_swap_b32 v8, v9")
    A("v_max_u32 v6, v8, v9")
    if ldr:
        if mc:
            for i in range(NC // 8): A(f"buffer_store_dwordx2 v[6:7], v13, s[32:35], s42 offen offset:{512*i}")
        else:
            A("s_mov_b64 exec, 0xff")
            A("buffer_store_dwordx2 v[6:7], v13, s[32:35], s42 offen")
            A("s_mov_b64 exec, -1")
        LB("L_sok")
        A("s_mov_b32 m0, %d" % L_XS)
        A("s_cmp_eq_u32 s57, 1")
    A("v_and_b32 v10, 31, v6")
    A("v_xor_b32 v10, 31, v10")
    A("v_lshl_add_u32 v10, v4, 5, v10       ; row")
    A("v_lshlrev_b32 v10, 11, v10")
    A("v_lshl_add_u32 v10, v11, 4, v10      ; + chunk*16")
    for i in range(8):
        if i == 4: A("s_cbranch_scc1 L_dmadone")
        A(f"buffer_load_dwordx4 v10, s[28:31], s45 offen{xpol} lds")
        if i < 7:
            A("s_mov_b32 m0, %d" % (L_XS + 1024*(i+1)))
            A("v_add_u32 v10, 128, v10")
    LB("L_dmadone")
    if not early_id: idload()
    pto = "s48" if pt else "s56"
    if not pt: A("s_mov_b32 s56, 0x40000000")
    A(f"buffer_load_dwordx4 v[24:27], v14, s[32:35], {pto} offen {ptp}")
    A(f"buffer_load_dwordx4 v[28:31], v14, s[32:35], {pto} offen offset:1024 {ptp}")
    A("s_barrier                            ; BX")
    A("v_readlane_b32 s55, v6, s51")
    A("s_and_b32 s46, s2, 31")
    A("s_and_b32 s54, s55, 31")
    A("s_xor_b32 s54, s54, 31")
    A("s_cmp_eq_u32 s54, s46")
    A("s_cselect_b32 s56, 0x40000000, s53")
    if ldr:
        A("s_waitcnt vmcnt(10)")
        A("s_cmp_eq_u32 s57, 0")
        A("s_cbranch_scc1 L_idw")
        A("s_waitcnt vmcnt(6)")
        LB("L_idw")
        idconv()
    def idstore():
        A(f"buffer_store_dwordx4 v[{IDR}:{IDR+3}], v14, s[36:39], s56 offen{outpol}")
        A(f"buffer_store_dwordx4 v[{IDR+4}:{IDR+7}], v14, s[36:39], s56 offen offset:1024{outpol}")
    if ids == 'bx': idstore()
    A("v_lshrrev_b32 v7, 5, v0")
    A("v_bfe_u32 v8, v0, 4, 1")
    A("v_lshl_add_u32 v7, v8, 1, v7         ; e")
    A("v_lshl_add_u32 v7, v4, 2, v7         ; 4*pos + e")
    A("s_lshl_b32 s45, s51, 5")
    A("s_add_u32 s45, s45, s54")
    A("s_lshl_b32 s45, s45, 5")
    A("s_add_u32 s45, s45, s46")
    A("s_lshl_b32 s45, s45, 5")
    A("v_add_u32 v7, s45, v7")
    A("v_lshlrev_b32 v7, 1, v7")
    A("buffer_load_ushort v9, v7, s[28:31], 0 offen")
    A(f"s_waitcnt vmcnt({5 if ids == 'bx' else 3})")
    A("s_barrier                            ; B2")
    stamp(4)
    if not early_id:
        A("s_waitcnt vmcnt(3)")
        idconv()
    A("s_lshr_b32 s44, s55, 16")
    A("s_xor_b32 s45, s44, 0xffff")
    A("s_and_b32 s44, s44, 0x7fff")
    A("s_cmp_lt_i32 s55, 0")
    A("s_cselect_b32 s44, s44, s45")
    A("s_lshl_b32 s44, s44, 16              ; r")
    A("v_mov_b32 v10, 0xbfb8aa3b")
    A("v_mul_f32 v10, s44, v10")
    A("v_exp_f32 v10, v10")
    A("s_and_b32 s41, s40, 0xff")
    A("v_add_f32 v10, 1.0, v10")
    A("v_rcp_f32 v10, v10")
    if ids == 'b2': idstore()
    A("s_barrier                            ; B3")
    if ids == 'b3':
        if idd: A(f"s_sleep {idd}")
        idstore()
    if not early_id:
        A(f"buffer_store_dwordx4 v[{IDR}:{IDR+3}], v14, s[36:39], s56 offen{outpol}")
        A(f"buffer_store_dwordx4 v[{IDR+4}:{IDR+7}], v14, s[36:39], s56 offen offset:1024{outpol}")
    A("v_cvt_pk_bf16_f32 v10, v10, v10")
    A("v_and_b32 v10, 0xffff0000, v10       ; sigmoid")
    A("s_mul_i32 s46, s2, %d" % X2S)
    A("s_add_u32 s46, s46, %d" % O_EX2)
    A("s_add_u32 s47, s46, 4096")
    A("s_mov_b32 s49, 0")
    A("s_mov_b32 s44, 0x00ff00ff")
    A("s_mov_b32 s45, 0x00ff00ff")
    A("s_waitcnt vmcnt(%d)" % (2 if ids in ('b2', 'b3') else 0))
    A("v_lshlrev_b32 v9, 16, v9             ; x")
    if mx: A("v_mov_b32 v13, 0")
    A("s_barrier                            ; B4")
    if not b4: A("s_barrier")
    stamp(5)
    if ids == 'b4': idstore()
    if X20 is not None:
        A(f"s_cmp_eq_u32 s22, {PERM[0]}")
        A("s_cbranch_scc1 L_x20")
        A(f"s_sleep {x2d - X20}")
        LB("L_x20")
        if X20: A(f"s_sleep {X20}")
    elif x2d: A(f"s_sleep {x2d}")
    if mx:
        MS = 76 if stamps else 60
        def ld(i):
            so = "s46" if i < 4 else "s47"
            A(f"buffer_load_dwordx4 v[{32+4*i}:{35+4*i}], v14, s[32:35], {so} offen offset:{(i%4)*1024} sc1")
        def chk(i):
            b = 32 + 4*i
            for r in range(b, b+4): A(f"v_xor_b32 v{r}, s41, v{r}")
            A(f"v_or3_b32 v15, v{b}, v{b+1}, v{b+2}")
            A(f"v_or_b32 v15, v15, v{b+3}")
            A(f"v_cmp_ne_u32_sdwa s[{MS+2*i}:{MS+2*i+1}], v15, v13 src0_sel:BYTE_0 src1_sel:DWORD")
        def anyleft():
            A(f"s_or_b64 s[42:43], s[{MS}:{MS+1}], s[{MS+2}:{MS+3}]")
            for i in range(2, 7): A(f"s_or_b64 s[42:43], s[42:43], s[{MS+2*i}:{MS+2*i+1}]")
        for i in range(7): ld(i)
        A("s_mov_b32 s49, 1")
        for i in range(7):
            A(f"s_waitcnt vmcnt({6-i})")
            chk(i)
            if i == 1: A("v_pk_add_f32 v[16:17], v[32:33], v[36:37]"); A("v_pk_add_f32 v[18:19], v[34:35], v[38:39]")
            if i >= 2: A(f"v_pk_add_f32 v[16:17], v[16:17], v[{32+4*i}:{33+4*i}]"); A(f"v_pk_add_f32 v[18:19], v[18:19], v[{34+4*i}:{35+4*i}]")
        anyleft()
        A("s_cbranch_scc0 L_x2ok")
        LB("L_x2poll")
        if x2s: A(f"s_sleep {x2s}")
        for i in range(7):
            A(f"s_mov_b64 exec, s[{MS+2*i}:{MS+2*i+1}]")
            A(f"s_cbranch_execz L_x2l{i}")
            ld(i)
            LB(f"L_x2l{i}")
        A("s_add_u32 s49, s49, 1")
        A("s_waitcnt vmcnt(0)")
        for i in range(7):
            A(f"s_mov_b64 exec, s[{MS+2*i}:{MS+2*i+1}]")
            A(f"s_cbranch_execz L_x2c{i}")
            chk(i)
            LB(f"L_x2c{i}")
        A("s_mov_b64 exec, -1")
        anyleft()
        A("s_cbranch_scc0 L_x2sum")
        A("s_cmp_lt_u32 s49, %d" % SPIN)
        A("s_cbranch_scc1 L_x2poll")
        LB("L_x2sum")
        A("v_pk_add_f32 v[16:17], v[32:33], v[36:37]"); A("v_pk_add_f32 v[18:19], v[34:35], v[38:39]")
        for i in range(2, 7):
            A(f"v_pk_add_f32 v[16:17], v[16:17], v[{32+4*i}:{33+4*i}]"); A(f"v_pk_add_f32 v[18:19], v[18:19], v[{34+4*i}:{35+4*i}]")
        A("s_nop 0")
    else:
        LB("L_x2poll")
        for i in range(7):
            so = "s46" if i < 4 else "s47"
            A(f"buffer_load_dwordx4 v[{32+4*i}:{35+4*i}], v14, s[32:35], {so} offen offset:{(i%4)*1024} sc1")
        A("s_add_u32 s49, s49, 1")
        for i in range(7):
            A(f"s_waitcnt vmcnt({6-i})")
            b = 32 + 4*i
            for r in range(b, b+4): A(f"v_xor_b32 v{r}, s41, v{r}")
            if i == 0:
                A(f"v_or3_b32 v15, v{b}, v{b+1}, v{b+2}")
                A(f"v_or_b32 v15, v15, v{b+3}")
            else:
                A(f"v_or3_b32 v15, v15, v{b}, v{b+1}")
                A(f"v_or3_b32 v15, v15, v{b+2}, v{b+3}")
                src = 32 if i == 1 else 16
                A(f"v_pk_add_f32 v[16:17], v[{src}:{src+1}], v[{b}:{b+1}]")
                A(f"v_pk_add_f32 v[18:19], v[{src+2}:{src+3}], v[{b+2}:{b+3}]")
        A("v_and_b32 v15, 0xff, v15")
        A("v_cmp_ne_u32 vcc, 0, v15")
        A("s_cbranch_vccz L_x2ok")
        if x2s: A(f"s_sleep {x2s}")
        A("s_cmp_lt_u32 s49, %d" % SPIN)
        A("s_cbranch_scc1 L_x2poll")
    LB("L_x2ok")
    stamp(6)
    A("v_permlane32_swap_b32 v16, v17")
    A("v_permlane32_swap_b32 v18, v19")
    A("v_add_f32 v16, v16, v17")
    A("v_add_f32 v18, v18, v19")
    A("s_nop 1")
    A("v_permlane16_swap_b32 v16, v18")
    A("v_add_f32 v16, v16, v18")
    A("s_nop 1")
    A("v_add_f32_dpp v16, v16, v16 row_ror:8 row_mask:0xf bank_mask:0xf")
    A("s_mov_b64 exec, s[44:45]")
    A("v_cvt_pk_bf16_f32 v16, v16, v16")
    A("v_and_b32 v16, 0xffff0000, v16       ; y")
    A("v_mul_f32 v16, v16, v10")
    A("v_cvt_pk_bf16_f32 v16, v16, v16")
    A("v_and_b32 v16, 0xffff0000, v16       ; y*sigmoid")
    A("v_fma_f32 v16, v9, 0, v16            ; upd = x*0 + y")
    A("v_add_f32 v16, v9, v16")
    A("v_cvt_pk_bf16_f32 v16, v16, v16")
    A(f"buffer_store_short v16, v7, s[36:39], 0 offen{finpol}")
    A("s_cmp_lg_u32 s2, 0")
    A("s_cbranch_scc1 L_noep")
    A("v_mov_b32 v18, s40")
    A("v_mov_b32 v17, 0")
    A("s_mov_b64 exec, 1")
    A("buffer_store_dword v18, v17, s[32:35], 0 offen sc1")
    LB("L_noep")
    stamp(7)
    LB("L_fin")
    if stamps:
        import diag
        if dg: diag.epilogue(A, LB, dg, nwg=256, invalid=())
        elif gamp: diag.gamp(A, LB, gamp)
        else:
            A("s_barrier")
            diag.dump(A, LB)
    LB("L_end")
    A("s_endpgm")
    L.extend(slow)
    body = "\n".join(L)
    pad = ".p2align 12\n.fill 832, 4, 0xbf800000            ; the kernel starts a 4 KB page (instruction prefetch stops at page ends)\n" if align else ""
    return f"""{HEAD}; @launch grid=(256,1,1) block=(384,1,1) lds={LDS_BYTES}
{DOC}.amdgcn_target "amdgcn-amd-amdhsa--gfx950"
.text
.globl {KN}
{pad}.p2align 8
.type {KN},@function
{KN}:
{body}
.section .rodata,"a"
.p2align 6
.amdhsa_kernel {KN}
  .amdhsa_next_free_vgpr 160
  .amdhsa_next_free_sgpr 96
  .amdhsa_accum_offset 160
  .amdhsa_group_segment_fixed_size 0
  .amdhsa_kernarg_size 64
  .amdhsa_user_sgpr_count 2
  .amdhsa_user_sgpr_kernarg_segment_ptr 1
  .amdhsa_system_sgpr_workgroup_id_x 1
  .amdhsa_float_denorm_mode_32 3
.end_amdhsa_kernel
"""
if __name__ == "__main__":
    import sys, json
    kw = json.loads(sys.argv[2]) if len(sys.argv) > 2 else {}
    open(sys.argv[1] if len(sys.argv) > 1 else "standalone__moe_arch_mod__sampling.s", "w").write(gen(**kw))
```

```python
KN = "standalone__moe_arch_mod__sampling_kernel"
HEAD = open("standalone__moe_arch_mod__sampling.s.ref").read().split("; Override launch")[0]

O_IDX = 0x1000
O_LDR = 0x12000
O_EX1F = 0x20000
O_EX2 = 0x100000
O_EX1 = 0x300000
WS_REC = 0x500000
L_XS = 0
L_RED = 8192
L_HB = 16384
L_KEY = 17408
L_FLAG = 17408 + 32
LDS_BYTES = 17408 + 64
SPIN = 40000

DOC = """; MoD sampling block: route (argmax of x.w_r per batch), SwiGLU FFN on the 8 selected rows, residual update.
"""

def gen(pol="nt", xpol="", D=11, DI=6, D3=8, D3W=12, BX=7, BX3=8, DX=32, LS=8, NF=12, PK=3, FS=38, fsleep=1,
        outpol="sc1", finpol="", x1pol="", x2d=27, PERM=(7,0,1,2,4,5,6,3), align=True, prog=False, early_id=True,
        stamps=False, dg=None, gamp=None, cst1=True, lag0=0, MAP="B", DUP0=True, X2S=8192, nob5=False, mx=False, x2s=0, b4=True, rlag=0, IS=6, ipf=0, FS0=None, X20=None, late2=0, late3=0, D0=None, pace=None, pace3=None, DT=None, em=1, ldr=True, NSP=None, ssl=1, hold=None, mc=True, SF=28, NC=32, lid='pre', lw=None, D3B=None, hx=False, D3X=None, R3=1, wg=None, NLD=2, LF=0, RF=0, CW=0, lp=1, lps=5, NR=1, FA=1, full=False, rpol='sc1', LBR=16, nodup=False, nr0=False, PK3=None, KP=4, LF0=None, sib=None, xr=False, x1ld='sc1', pt=True, x1f=None, ptp='', skip=False, dum=False, ids='bx', idd=0, FK=16, arr=None, rk=None, xpf=False, is0=False):
    if gamp or dg: stamps = True
    if NSP is None: NSP = NC - 1
    L = []
    def A(s): L.append("  " + s)
    def LB(s): L.append(s + ":")
    def stamp(i):
        if stamps: A(f"s_memrealtime s[{60+2*i}:{61+2*i}]")
    sp = lambda p: (" " + p) if p else ""
    pol, xpol, outpol, finpol, x1pol = map(sp, (pol, xpol, outpol, finpol, x1pol))
    REPS = 64 * LS
    XR = 80
    RAW = 16; FR = 80; XB = 96; ACC = 112; W2 = 128
    F2 = 40; HA = 72
    IDR = 40
    def raw(s, i): return RAW + 16*s + 2*i
    def frag(s, j): return (FR if s == 0 else RAW + 16*(s-1)) + 4*j
    def raw2(s, i): return W2 + 16*s + 2*i
    def frag2(s, j): return F2 + 16*s + 4*j
    def perm_pair(rawf, fragf, s, p):
        for e in range(2):
            A(f"v_perm_b32 v{fragf(s,2*e)+p}, v{rawf(s,2*p+1)+e}, v{rawf(s,2*p)+e}, s42")
            A(f"v_perm_b32 v{fragf(s,2*e+1)+p}, v{rawf(s,2*p+1)+e}, v{rawf(s,2*p)+e}, s43")
    def perms(rawf, fragf, s):
        for p in range(4): perm_pair(rawf, fragf, s, p)
    def w1load(n):
        s, i = divmod(n, 8)
        A(f"buffer_load_dwordx2 v[{raw(s,i)}:{raw(s,i)+1}], v3, s[24:27], s44 offen{pol}")
        A("s_addk_i32 s44, 7168" if i < 7 else "s_add_u32 s44, s44, %d" % (25*7168))
    def w2load(n):
        s, i = divmod(n, 8)
        p, b = divmod(i, 2)
        row = 2*s + (p >> 1) + 8*(p & 1) + 4*b
        A("s_add_u32 s47, s53, %d" % (row*2048))
        A(f"buffer_load_dwordx2 v[{raw2(s,i)}:{raw2(s,i)+1}], v10, s[28:31], s47 offen{pol}")

    if lag0:
        A("s_and_b32 s3, s2, 7")
        A("s_cmp_lg_u32 s3, 0")
        A("s_cbranch_scc1 L_nolag")
        A(f"s_sleep {lag0}")
        LB("L_nolag")
    stamp(0)
    A("s_cmp_ge_u32 s2, 256")
    A("s_cbranch_scc1 L_exit")
    A("s_load_dwordx16 s[4:19], s[0:1], 0")
    A("v_lshrrev_b32 v1, 6, v0")
    A("v_and_b32 v0, 63, v0                 ; lane")
    A("v_readfirstlane_b32 s3, v1           ; wave")
    A("s_lshl_b32 s22, s2, 2")
    A("s_lshr_b32 s22, 0x%x, s22" % sum(v << (4*i) for i, v in enumerate(PERM)))
    A("s_and_b32 s22, s22, 7")
    A("s_lshr_b32 s23, s2, 3")
    A("s_lshr_b32 s44, s23, 2")
    A("s_mul_i32 s45, s22, 6")
    A("s_add_u32 s45, s45, s44")
    A("s_add_u32 s44, s45, 4")
    A("s_mul_i32 s44, s44, 37")
    A("s_lshr_b32 s44, s44, 8")
    A("s_add_u32 s20, s45, s44")
    A("s_lshl_b32 s44, s22, 3")
    A("s_add_u32 s44, s44, 3")
    A("s_min_u32 s44, s44, 55")
    A("s_cmp_ge_u32 s23, 24")
    A("s_cselect_b32 s20, s44, s20")
    A("s_cselect_b32 s57, 1, 0")
    A("s_cselect_b32 s21, 7, 3")
    A("s_and_b32 s21, s21, s23              ; part")
    A(f"s_cmp_ge_u32 s23, {24 + NLD}")
    A("s_cselect_b32 s58, 1, 0")
    A("s_mov_b32 s27, 0x20000")
    A("s_cmp_lt_u32 s3, 4")
    A("s_cbranch_scc1 L_c")
    A("s_mov_b32 s30, 524288")
    A("s_mov_b32 s31, 0x20000")
    A("v_lshlrev_b32 v14, 4, v0             ; lane*16")
    A("s_cmp_eq_u32 s58, 1")
    A("s_cbranch_scc1 L_rt")
    A("s_cmp_eq_u32 s3, 4")
    A("s_cbranch_scc1 L_r")
    LB("L_exit")
    A("s_endpgm")
    LB("L_rt")
    A("s_setprio 3")
    A(f"s_mul_i32 s52, s22, {8 - NLD}")
    A("s_add_u32 s52, s52, s21")
    A("s_lshl_b32 s52, s52, 1")
    A("s_add_u32 s52, s52, s3")
    A(f"s_sub_u32 s52, s52, {4 + 2*NLD}")
    A("s_and_b32 s52, s52, 63")
    A("s_lshl_b32 s44, s52, 13")
    A("s_add_u32 s45, s44, 4096")
    A("s_movk_i32 s26, 2048")
    A("s_waitcnt lgkmcnt(0)")
    A("s_mov_b64 s[28:29], s[4:5]")
    A("s_mov_b64 s[24:25], s[6:7]")
    A("s_load_dword s40, s[18:19], 0        ; epoch")
    A(f"buffer_load_dwordx4 v[16:19], v14, s[24:27], 0 offen")
    A(f"buffer_load_dwordx4 v[20:23], v14, s[24:27], 0 offen offset:1024")
    for i in range(8):
        A(f"buffer_load_dwordx4 v[{XR+4*i}:{XR+4*i+3}], v14, s[28:31], {'s44' if i < 4 else 's45'} offen offset:{(i%4)*1024}{xpol}")
    A("s_barrier                            ; B0")
    A("s_branch L_route")
    LB("L_c")
    A("v_mov_b32 v4, 0")
    if FK:
        A("v_mov_b32 v5, 0")
        A(f"ds_write_b64 v4, v[4:5] offset:{L_FLAG}")
    else: A(f"ds_write_b32 v4, v4 offset:{L_FLAG}")
    A("s_mov_b32 s26, 7340032")
    A("v_lshrrev_b32 v1, 4, v0              ; g")
    A("v_and_b32 v2, 15, v0                 ; n")
    A("v_mul_u32_u24 v3, %d, v1" % (8*7168))
    A("v_lshl_add_u32 v3, v2, 3, v3         ; voffset")
    A("s_lshr_b32 s44, s21, 1")
    A("s_lshl_b32 s44, s44, 2")
    A("s_add_u32 s44, s44, s3")
    A("s_lshr_b32 s45, %d, s57" % (128*7168))
    A("s_mul_i32 s44, s44, s45")
    A("s_lshl_b32 s45, s20, 7")
    A("s_add_u32 s44, s44, s45              ; soffset")
    A("s_bitcmp1_b32 s21, 0")
    A("s_waitcnt lgkmcnt(0)")
    A("s_cselect_b64 s[24:25], s[10:11], s[8:9]")
    A("s_cmp_eq_u32 s58, 0")
    A("s_cbranch_scc1 L_nb0")
    A("s_barrier")
    LB("L_nb0")
    if not cst1: stamp(1)
    for n in range(DI): w1load(n)
    A("s_load_dword s40, s[18:19], 0        ; epoch")
    if stamps:
        A("s_getreg_b32 s59, hwreg(HW_REG_HW_ID)")
    A("s_mov_b64 s[32:33], s[18:19]")
    A("s_mov_b32 s34, %d" % WS_REC)
    A("s_mov_b32 s35, 0x20000")
    A("s_mov_b32 s42, 0x05040100")
    A("s_mov_b32 s43, 0x07060302")
    A("v_and_b32 v8, 7, v0")
    A("v_lshl_add_u32 v13, v1, 3, v8")
    A("v_lshlrev_b32 v13, 4, v13")
    A("s_lshl_b32 s45, s3, 11")
    A("v_add_u32 v4, s45, v13")
    A("s_lshr_b32 s45, s45, s57")
    A("v_add_u32 v5, s45, v13")
    A("v_lshlrev_b32 v6, 3, v0")
    A("s_lshl_b32 s45, s3, 9")
    A("v_add_u32 v6, s45, v6                ; w*512 + lane*8")
    A("v_lshrrev_b32 v7, 1, v0")
    A("v_lshlrev_b32 v7, 4, v7")
    A("v_and_b32 v9, 1, v0")
    A("v_lshl_add_u32 v7, v9, 2, v7")
    A("s_lshr_b32 s45, s3, 1")
    A("s_lshl_b32 s45, s45, 9")
    A("s_and_b32 s46, s3, 1")
    A("s_lshl_b32 s46, s46, 3")
    A("s_add_u32 s45, s45, s46")
    A("v_add_u32 v7, s45, v7")
    A("s_mov_b64 s[28:29], s[12:13]")
    A("s_mov_b32 s30, 7340032")
    A("s_mov_b32 s31, 0x20000")
    A("v_lshlrev_b32 v10, 15, v1            ; g*16*2048")
    A("v_lshl_add_u32 v10, v2, 3, v10")
    A("v_lshrrev_b32 v11, 3, v2")
    A("v_lshl_add_u32 v11, v1, 7, v11       ; 4g*32 + (n>>3)")
    A("v_mul_u32_u24 v11, %d, v11" % X2S)
    A("v_lshl_add_u32 v11, v8, 4, v11       ; + (n&7)*16")
    A("s_lshl_b32 s53, s21, 2")
    A("s_lshr_b32 s53, s53, s57")
    A("s_add_u32 s53, s53, s3")
    A("s_lshr_b32 s45, s3, 1")
    A("s_and_b32 s45, s45, s57")
    A("s_lshl_b32 s45, s45, 30")
    A("v_or_b32 v10, s45, v10")
    A("v_or_b32 v11, s45, v11")
    A("s_mul_i32 s52, s53, %d" % (2*X2S))
    A("s_lshl_b32 s46, s20, 7")
    A("s_add_u32 s52, s52, s46")
    A("s_add_u32 s52, s52, %d" % O_EX2)
    A("s_lshl_b32 s53, s53, 7")
    A("s_lshl_b32 s46, s20, 17              ; tile*64*2048")
    A("s_add_u32 s53, s53, s46")
    A("s_lshl_b32 s45, s20, 14")
    A("s_lshl_b32 s46, s21, 11")
    A("s_add_u32 s45, s45, %d               ; group base" % O_EX1F)
    A("s_add_u32 s46, s46, s45")
    A("s_mov_b32 s48, 0xffffff00")
    A("s_mov_b32 s50, 0xbfb8aa3b            ; -log2(e)")
    A("s_mov_b32 s51, 0xbfb8aa3b")
    A("s_mov_b32 s49, 0")
    A("s_getreg_b32 s54, hwreg(HW_REG_XCC_ID, 0, 3)")
    A("v_mov_b32 v12, 1")
    if not D0: A("v_cmp_eq_u32 vcc, s57, v12")
    A("s_cmp_eq_u32 s58, 1")
    A("s_cbranch_scc1 L_cb")

    slow = []; st = {}
    def cpath(NS, sfx, DD, DW, bx):
        NL = 8*NS
        done = 0
        landed = 0
        if NS == 2: A("s_barrier")
        lt = late2 if NS == 4 else late3
        if D0 and NS == 4:
            A(f"s_cmp_eq_u32 s22, {PERM[0]}")
            A("s_cselect_b64 vcc, -1, 0")
        landed0 = 1
        for n in range(DI, NL + 16 - lt):
            dn = min(DD, DI + (n - DI + 1) * (R3 if NS == 2 else 1) // 2) if n < NL else DW
            if n >= NL + bx:
                if n == NL + bx:
                    A("s_barrier")
                    if NS == 2:
                        LB("L_bx"); st["done"] = done
                dn = DX
                if wg is not None and NS == 4 and n == NL + bx: dn = bx + wg + 1
            if NS == 2 and hold is not None:
                if n == DI + hold: A("s_barrier                            ; " + ("BX: the keys and the selected rows are in the queue" if hx else "B0c: the first look at the scores is in the queue"))
                if D3B and DI + hold <= n < NL: dn = D3B
                if D3X and n >= NL: dn = D3X
            if DT and NS == 4 and DT[0] <= n < NL + bx: dn = min(DT[1], DD + (n - DT[0] + 1) * DT[2] // 2)
            pc = pace if NS == 4 else pace3
            if pc and DI < n < NL + bx:
                dn = pc[2]
                if (n - DI) % pc[0] == 0 or pc[0] == 1: A(f"s_sleep {pc[1]}")
            if D0 and NS == 4 and n > DI + 1 and n < NL + bx:
                d0 = min(D0[0] + (n & 1), DI + (n - DI + 1) * D0[1] // 2)
                if n >= NL: d0 = dn = max(dn, 12)
                if n - dn + 1 > landed0 and d0 > dn:
                    A(f"s_cbranch_vccnz L_d0_{n}")
                    A(f"s_waitcnt vmcnt({dn-1})")
                    LB(f"L_d0_{n}")
                    landed0 = n - dn + 1
                dn = max(dn, d0)
            if n - dn + 1 > landed:
                A(f"s_waitcnt vmcnt({dn-1})")
                landed = n - dn + 1
            if n == DI and cst1: stamp(1)
            if n == LBR and NS == 4:
                assert done == 0
                if D0:
                    A("s_cmp_eq_u32 s57, 1")
                    A("s_cbranch_scc1 L_cc")
                else: A("s_cbranch_vccnz L_cc")
            if n < NL: w1load(n)
            else: w2load(n - NL)
            if n == DI and NS == 4:
                A(f"ds_write_b32 v12, v12 offset:{L_FLAG - 1}")
            if n == NL - 1: stamp(2)
            while done < NS and 8*done + 8 <= landed:
                perms(raw, frag, done); done += 1
        A("s_waitcnt lgkmcnt(0)")
        A("s_add_u32 s40, s40, 8                ; tag32")
        A("s_and_b32 s41, s40, 0xff")
        A("s_and_b32 s55, s40, 0xf8")
        A("s_or_b32 s54, s54, s55")
        A("v_mov_b32 v9, s41")
        A("v_mov_b32 v12, s54")
        if skip:
            A("s_bitcmp1_b32 s21, 0")
            A("s_cselect_b64 s[22:23], -1, 0")
        if NL + 16 - lt <= NL + bx: A("s_barrier                            ; BX")
        while done < NS - (1 if em and NS == 4 else 0):
            A(f"s_waitcnt vmcnt({NL + 16 - lt - 8*done - 8})")
            perms(raw, frag, done); done += 1
        A("s_barrier")
        stamp(3)
        for n in range(16 - lt, 16): w2load(n)
        for s in range(NS):
            A(f"ds_read_b128 v[{XB+4*s}:{XB+4*s+3}], v5 offset:{L_XS + 512*s}")
        for s in range(NS):
            late = done < NS
            if late and em == 1 and s == NS - 1:
                A("s_waitcnt vmcnt(16)")
                perms(raw, frag, NS - 1)
            if late and em == 2 and s == NS - 2: A("s_waitcnt vmcnt(16)")
            A(f"s_waitcnt lgkmcnt({NS-1-s})")
            for j in range(4):
                c = "0" if s == 0 else f"v[{ACC+4*j}:{ACC+4*j+3}]"
                A(f"v_mfma_f32_16x16x32_bf16 v[{ACC+4*j}:{ACC+4*j+3}], v[{frag(s,j)}:{frag(s,j)+3}], v[{XB+4*s}:{XB+4*s+3}], {c}")
                if late and em == 2 and s == NS - 2: perm_pair(raw, frag, NS - 1, j)
        A("s_mov_b32 exec_lo, 0x00ff00ff")
        A("s_mov_b32 exec_hi, 0x00ff00ff")
        A("s_nop 2")
        for j in range(4):
            A(f"ds_write_b128 v4, v[{ACC+4*j}:{ACC+4*j+3}] offset:{L_RED + 512*j}")
        A("s_mov_b64 exec, -1")
        A("s_waitcnt lgkmcnt(0)")
        A("s_barrier                            ; B3")
        for w in range(2):
            A(f"ds_read2st64_b64 v[{16+4*w}:{19+4*w}], v6 offset0:{(L_RED + 4096*w)//512} offset1:{(L_RED + 4096*w + 2048)//512}")
        A("s_waitcnt lgkmcnt(1)")
        A("v_pk_add_f32 v[16:17], v[16:17], v[18:19]")
        A("s_waitcnt lgkmcnt(0)")
        A("v_pk_add_f32 v[20:21], v[20:21], v[22:23]")
        A("v_pk_add_f32 v[16:17], v[16:17], v[20:21]")
        A("v_and_or_b32 v16, v16, s48, v12")
        A("v_and_or_b32 v17, v17, s48, v12")
        A(f"buffer_store_dwordx2 v[16:17], v6, s[32:35], s46 offen{x1pol}")
        stamp(4)
        if skip:
            A("v_and_b32 v24, s48, v16")
            A("v_and_b32 v25, s48, v17")
        NB = 4 if NS == 4 else 8
        pairs = [(s, p) for s in range(2) for p in range(4)]
        k = 0
        PKx = PK3 if (NS == 2 and PK3 is not None) else PK
        if KP:
            A(f"s_waitcnt vmcnt({17 - 2*KP})")
            while k < KP: perm_pair(raw2, frag2, *pairs[k]); k += 1
        if prog:
            while 17 - 2*(k+1) >= PK:
                A(f"s_waitcnt vmcnt({17 - 2*(k+1)})")
                perm_pair(raw2, frag2, *pairs[k]); k += 1
        if not prog or 17 - 2*k > PK: A(f"s_waitcnt vmcnt({PKx})")
        def polls(x1ld=x1ld):
            if skip:
                for b in range(1, NB):
                    A(f"s_xor_b32 s47, s46, {b*2048}")
                    A(f"buffer_load_dwordx2 v[{24+2*b}:{25+2*b}], v6, s[32:35], s47 offen {x1ld}")
                if dum: A("buffer_load_dword v15, v6, s[32:35], s34 offen")
                return
            for b in range(NB):
                if b and b % 2 == 0: A(f"s_add_u32 s47, s45, {b*2048}")
                A(f"buffer_load_dwordx2 v[{24+2*b}:{25+2*b}], v6, s[32:35], {'s45' if b < 2 else 's47'} offen offset:{(b%2)*2048} {x1ld}")
        if prog:
            polls()
            while k < 8:
                A(f"s_waitcnt vmcnt({NB + 17 - 2*(k+1)})")
                perm_pair(raw2, frag2, *pairs[k]); k += 1
            A(f"s_branch L_x1chk{sfx}")
        if xr: stamp(1)
        if x1f is not None:
            if xr: stamp(7)
            polls(x1f)
            A(f"s_branch L_x1chk{sfx}")
        LB("L_x1poll" + sfx)
        if xr: stamp(7)
        polls()
        LB("L_x1chk" + sfx)
        A("s_add_u32 s49, s49, 1")
        A(f"s_waitcnt vmcnt({1 if dum else 0})")
        r0 = 26 if skip else 24
        for r in range(r0, 24+2*NB): A(f"v_xor_b32 v{r}, s54, v{r}")
        A(f"v_or3_b32 v8, v{r0}, v{r0+1}, v{r0+2}")
        for r in range(r0+3, 24+2*NB-1, 2): A(f"v_or3_b32 v8, v8, v{r}, v{r+1}")
        A(f"v_or_b32 v8, v8, v{24+2*NB-1}")
        A("v_and_b32 v8, 0xff, v8")
        A("v_cmp_ne_u32 vcc, 0, v8")
        A("s_cbranch_vccnz L_x1no" + sfx)
        LB("L_x1ok" + sfx)
        stamp(5)
        if NB == 8:
            A("v_pk_add_f32 v[24:25], v[24:25], v[32:33]")
            A("v_pk_add_f32 v[26:27], v[26:27], v[34:35]")
            A("v_pk_add_f32 v[28:29], v[28:29], v[36:37]")
            A("v_pk_add_f32 v[30:31], v[30:31], v[38:39]")
        S = []
        def B(s): S.append("  " + s)
        S.append("L_x1no" + sfx + ":")
        B(f"s_cmp_lt_u32 s49, {NF}")
        B("s_cbranch_scc1 L_x1poll" + sfx)
        B("v_lshlrev_b32 v8, 1, v6")
        B("s_lshl_b32 s56, s20, 15")
        B("s_add_u32 s56, s56, %d" % O_EX1)
        B(f"s_cmp_lg_u32 s49, {NF}")
        B("s_cbranch_scc1 L_x1ns" + sfx)
        B("v_and_b32 v96, s48, v16")
        B("v_and_b32 v97, s48, v17")
        B("v_mov_b32 v98, s40")
        B("v_mov_b32 v99, s40")
        B("s_lshl_b32 s47, s21, 12")
        B("s_add_u32 s47, s47, s56")
        B("buffer_store_dwordx4 v[96:99], v8, s[32:35], s47 offen sc1")
        B("s_waitcnt vmcnt(0)")
        S.append("L_x1ns" + sfx + ":")
        if skip:
            B("s_lshl_b32 s47, s21, 12")
            B("s_add_u32 s56, s56, s47")
        for b in range(NB):
            if skip:
                B(f"s_xor_b32 s47, s56, {b*4096}")
                B(f"buffer_load_dwordx4 v[{96+4*b}:{99+4*b}], v8, s[32:35], s47 offen sc1")
            else:
                B(f"buffer_load_dwordx4 v[{96+4*b}:{99+4*b}], v8, s[32:35], s56 offen sc1")
                B("s_add_u32 s56, s56, 4096")
        B("s_waitcnt vmcnt(0)")
        B("v_mov_b32 v8, 0")
        for b in range(NB):
            B(f"v_xor_b32 v{98+4*b}, s40, v{98+4*b}")
            B(f"v_xor_b32 v{99+4*b}, s40, v{99+4*b}")
            B(f"v_or3_b32 v8, v8, v{98+4*b}, v{99+4*b}")
            B(f"v_mov_b32 v{24+2*b}, v{96+4*b}")
            B(f"v_mov_b32 v{25+2*b}, v{97+4*b}")
        B("v_cmp_ne_u32 vcc, 0, v8")
        B("s_cbranch_vccz L_x1ok" + sfx)
        B("s_cmp_lt_u32 s49, %d" % SPIN)
        B("s_cbranch_scc1 L_x1poll" + sfx)
        B("s_branch L_x1ok" + sfx)
        slow.extend(S)
        return k
    ka = cpath(4, "a", D, D, BX)
    LB("L_h")
    A("v_pk_add_f32 v[24:25], v[24:25], v[28:29]   ; gate")
    A("v_pk_add_f32 v[26:27], v[26:27], v[30:31]   ; up")
    if skip:
        A("v_cvt_pk_bf16_f32 v18, v24, v25")
        A("v_cvt_pk_bf16_f32 v19, v26, v27")
        A("v_cndmask_b32 v8, v18, v19, s[22:23]  ; gate")
        A("v_cndmask_b32 v12, v19, v18, s[22:23] ; up")
    else:
        A("v_cvt_pk_bf16_f32 v8, v24, v25")
        A("v_cvt_pk_bf16_f32 v12, v26, v27")
    A("v_lshlrev_b32 v18, 16, v8")
    A("v_and_b32 v19, 0xffff0000, v8")
    A("v_pk_mul_f32 v[20:21], v[18:19], s[50:51]")
    A("v_exp_f32 v20, v20")
    A("v_exp_f32 v21, v21")
    A("v_lshlrev_b32 v14, 16, v12")
    A("v_pk_add_f32 v[20:21], v[20:21], 1.0 op_sel_hi:[1,0]")
    A("v_rcp_f32 v20, v20")
    A("v_rcp_f32 v21, v21")
    A("v_and_b32 v15, 0xffff0000, v12")
    A("v_pk_mul_f32 v[18:19], v[18:19], v[20:21]")
    A("v_cvt_pk_bf16_f32 v8, v18, v19        ; silu")
    A("v_lshlrev_b32 v18, 16, v8")
    A("v_and_b32 v19, 0xffff0000, v8")
    A("v_pk_mul_f32 v[18:19], v[18:19], v[14:15]")
    A("v_cvt_pk_bf16_f32 v8, v18, v19        ; h")
    A(f"ds_write_b32 v7, v8 offset:{L_HB}")
    for k in range(ka, 8): perm_pair(raw2, frag2, *divmod(k, 4))
    A("s_waitcnt lgkmcnt(0)")
    A("s_barrier                            ; B4")
    for s in range(2):
        A(f"ds_read_b128 v[{HA+4*s}:{HA+4*s+3}], v13 offset:{L_HB + 512*s}")
    for s in range(2):
        A(f"s_waitcnt lgkmcnt({1-s})")
        for j in range(4):
            c = "0" if s == 0 else f"v[{ACC+4*j}:{ACC+4*j+3}]"
            A(f"v_mfma_f32_16x16x32_bf16 v[{ACC+4*j}:{ACC+4*j+3}], v[{HA+4*s}:{HA+4*s+3}], v[{frag2(s,j)}:{frag2(s,j)+3}], {c}")
    A("s_mov_b32 exec_lo, -1")
    A("s_mov_b32 exec_hi, 0")
    A("s_nop 2")
    for r in range(4):
        for j in range(4):
            A(f"v_and_or_b32 v{20+4*r+j}, v{ACC+4*j+r}, s48, v9")
        A(f"buffer_store_dwordx4 v[{20+4*r}:{23+4*r}], v11, s[32:35], s52 offen sc1")
        if r < 3: A("s_add_u32 s52, s52, %d" % (32*X2S))
    stamp(6)
    if not (nob5 or b4): A("s_waitcnt vmcnt(0)")
    if not b4: A("s_barrier                            ; B5")
    if not xr: stamp(7)
    if stamps: A("s_branch L_fin")
    else: A("s_endpgm")

    def rsetup():
        A("s_mov_b64 s[32:33], s[18:19]")
        A("s_mov_b32 s34, %d" % WS_REC)
        A("s_mov_b32 s35, 0x20000")
        A("s_mov_b64 s[36:37], s[14:15]")
        A("s_mov_b32 s38, 524288")
        A("s_mov_b32 s39, 0x20000")
        A("v_and_b32 v4, 7, v0")
        if stamps:
            A("s_mov_b32 s59, 0")
            A("s_mov_b32 s49, 0")
    LB("L_route")
    rsetup()
    A("s_and_b32 s45, s52, 7")
    A("s_lshl_b32 s46, s45, 3")
    A("s_lshr_b32 s52, s52, 3               ; batch")
    A("s_add_u32 s46, s46, s52")
    A("s_mul_i32 s46, s46, %d" % LS)
    A("s_add_u32 s46, s46, %d               ; slot" % O_IDX)
    A("s_lshl_b32 s45, s45, 2")
    if NR > 1 or full: A("v_mul_u32_u24 v5, %d, v0             ; replica offset" % (8 if full else REPS))
    if ipf:
        A("s_mov_b64 exec, 0xff")
        A("buffer_load_dword v13, v5, s[32:35], s46 offen sc1")
        A("s_mov_b64 exec, -1")
    A("v_lshrrev_b32 v10, 5, v0")
    A("v_bfe_u32 v11, v0, 4, 1")
    A("v_lshl_add_u32 v10, v11, 1, v10")
    A("v_add_u32 v10, s45, v10")
    A("v_xor_b32 v10, 31, v10")
    for t in range(4):
        for hlf in range(2):
            A(f"s_waitcnt vmcnt({7 - 2*t - hlf + (1 if ipf else 0)})")
            for k in range(4):
                c = "0" if (hlf == 0 and k == 0) else f"v{6+t}"
                A(f"v_dot2_f32_bf16 v{6+t}, v{XR+8*t+4*hlf+k}, v{16+4*hlf+k}, {c}")
    A("s_waitcnt lgkmcnt(0)")
    A("s_add_u32 s40, s40, 8")
    A("s_nop 0")
    A("v_permlane32_swap_b32 v6, v7")
    A("v_permlane32_swap_b32 v8, v9")
    A("v_add_f32 v6, v6, v7")
    A("v_add_f32 v8, v8, v9")
    A("s_nop 1")
    A("v_permlane16_swap_b32 v6, v8")
    A("v_add_f32 v6, v6, v8")
    A("s_nop 1")
    A("v_add_f32_dpp v6, v6, v6 quad_perm:[1,0,3,2] row_mask:0xf bank_mask:0xf")
    A("s_nop 1")
    A("v_add_f32_dpp v6, v6, v6 quad_perm:[2,3,0,1] row_mask:0xf bank_mask:0xf")
    A("s_nop 1")
    A("v_add_f32_dpp v6, v6, v6 row_half_mirror row_mask:0xf bank_mask:0xf")
    A("s_nop 1")
    A("v_add_f32_dpp v6, v6, v6 row_mirror row_mask:0xf bank_mask:0xf")
    A("v_cvt_pk_bf16_f32 v7, v6, v6")
    A("v_and_b32 v7, 0xffff0000, v7          ; r (bf16)")
    A("v_ashrrev_i32 v6, 31, v7")
    A("v_or_b32 v6, 0x80000000, v6")
    A("v_xor_b32 v6, v6, v7")
    A("v_cmp_o_f32 vcc, v7, v7")
    A("v_and_b32 v6, 0xffff0000, v6")
    A("s_nop 0")
    A("v_cndmask_b32 v6, 0, v6, vcc")
    A("v_or_b32 v6, v10, v6")
    A("v_mov_b32 v7, v6")
    A("s_nop 1")
    A("v_permlane16_swap_b32 v6, v7")
    A("v_max_u32 v6, v6, v7")
    A("v_mov_b32 v7, v6")
    A("s_nop 1")
    A("v_permlane32_swap_b32 v6, v7")
    A("v_max_u32 v6, v6, v7")
    A("v_mov_b32 v7, s40")
    if rlag: A(f"s_sleep {rlag}")
    A("s_mov_b64 exec, 0x%x" % ((1 << (LS // 8 if full else NR)) - 1))
    if NR > 1 or full: A(f"buffer_store_dwordx2 v[6:7], v5, s[32:35], s46 offen {rpol}")
    else: A(f"buffer_store_dwordx2 v[6:7], off, s[32:35], s46 {rpol}")
    A("s_mov_b64 exec, -1")
    A("s_barrier                            ; B0b")
    stamp(1)
    A("s_setprio 0")
    A("s_cmp_eq_u32 s3, 4")
    A("s_cbranch_scc1 L_r4")
    A("s_endpgm")
    if align: L.append(".p2align 12" if not (D0 or pace) else ".p2align 6")
    LB("L_cb")
    kb = cpath(2, "b", D3, D3W, BX3)
    assert ka == kb
    A("s_branch L_h")
    LB("L_cc")
    if LBR == 16: stamp(2)
    for n in range(CW): w2load(n)
    for d in range(st["done"]):
        A(f"s_waitcnt vmcnt({LBR - 8 - 8*d + CW})")
        perms(raw, frag, d)
    if FK:
        A(f"s_waitcnt vmcnt({LBR - FK + CW})")
        A(f"ds_write_b32 v12, v12 offset:{L_FLAG + 3}")
    A("s_barrier                            ; BX")
    for n in range(LBR, 16): w1load(n)
    if LBR < 16: stamp(2)
    for n in range(CW, BX3): w2load(n)
    A("s_branch L_bx")

    def idload():
        A(f"buffer_load_dwordx4 v[{IDR}:{IDR+3}], v14, s[28:31], s53 offen{xpol}")
        A(f"buffer_load_dwordx4 v[{IDR+4}:{IDR+7}], v14, s[28:31], s53 offen offset:1024{xpol}")
    def idconv():
        for r in range(IDR, IDR+8):
            A(f"v_lshlrev_b32 v16, 16, v{r}")
            A(f"v_and_b32 v17, 0xffff0000, v{r}")
            A("v_pk_fma_f32 v[16:17], v[16:17], 0, v[16:17] op_sel_hi:[1,0,1]")
            A(f"v_cvt_pk_bf16_f32 v{r}, v16, v17    ; x + x*0")
    def psetup():
        A("s_lshl_b32 s53, s2, 11")
        A("v_mul_u32_u24 v12, %d, v0            ; poll offset" % LS)
        if NR == 1: A("s_movk_i32 s47, %d                 ; the scores" % O_IDX)
        else:
            if NR < 8:
                A(f"s_and_b32 s47, s22, {NR - 1}")
                A("s_mul_i32 s47, s47, %d" % REPS)
            else: A("s_mul_i32 s47, s22, %d" % REPS)
            A("s_add_u32 s47, s47, %d               ; this group's replica" % O_IDX)
        A("v_lshrrev_b32 v11, 3, v0")
        A("s_lshr_b32 s45, s21, 1")
        A("s_sub_u32 s46, 10, s57")
        A("s_lshl_b32 s45, s45, s46")
        A("s_lshl_b32 s48, s20, 14")
        A("s_lshl_b32 s46, s21, 11")
        A("s_add_u32 s48, s48, s46")
        A("s_add_u32 s48, s48, %d               ; own L2-local block" % O_EX1F)
        A("s_lshr_b32 s51, s2, 5")
        if ldr:
            A("s_getreg_b32 s42, hwreg(HW_REG_XCC_ID, 0, 3)")
            A("v_lshlrev_b32 v13, 3, v0")
            A("s_lshl_b32 s42, s42, %d" % (12 if (arr or rk) else {16: 10, 32: 11}[NC] if mc else 8))
            A("s_add_u32 s42, s42, %d               ; this die's copy of the keys" % O_LDR)
    LB("L_r")
    A("s_waitcnt lgkmcnt(0)")
    A("s_load_dword s40, s[18:19], 0        ; epoch")
    A("s_mov_b64 s[28:29], s[4:5]")
    rsetup()
    stamp(1)
    LB("L_r4")
    psetup()
    for i in range(NC // 16): A(f"buffer_load_dwordx4 v[{16+4*i}:{19+4*i}], v14, s[32:35], s42 offen offset:{1024*i}")
    if arr or rk: A("buffer_load_dword v24, v13, s[32:35], s42 offen offset:2048")
    A("s_cmp_eq_u32 s58, 1")
    A("s_cbranch_scc1 L_rr")
    A("v_mov_b32 v8, 0")
    A("s_mov_b32 s49, 0")
    LB("L_fwait")
    if fsleep: A(f"s_sleep {fsleep}")
    A(f"ds_read_b32 v9, v8 offset:{L_FLAG}")
    A("s_add_u32 s49, s49, 1")
    A("s_cmp_ge_u32 s49, %d" % SPIN)
    A("s_waitcnt lgkmcnt(0)")
    A("v_cmp_eq_u32 vcc, 0, v9")
    A("s_cbranch_scc1 L_fok")
    A("s_cbranch_vccnz L_fwait")
    LB("L_fok")
    idload()
    A("s_add_u32 s40, s40, 8")
    A("s_cmp_eq_u32 s57, 1")
    A("s_cbranch_scc1 L_lead")
    if SF - RF: A(f"s_sleep {SF - RF}")
    A("s_branch L_sp0")
    LB("L_rr")
    idload()
    LB("L_sp0")
    if RF: A(f"s_sleep {RF}")
    stamp(2)
    A("s_mov_b32 s49, 0")
    if sib is not None:
        A(f"s_getreg_b32 s41, hwreg(HW_REG_HW_ID, {8 + sib}, 1)")
        A(f"s_mul_i32 s46, s41, {64*(NC-1)}")
        A("s_add_u32 s46, s46, s42")
        A("s_lshl_b32 s41, s41, 7")
        A("s_sub_u32 s41, 64, s41")
    else: A("s_mov_b32 s46, s42")
    LB("L_spoll")
    if ssl: A(f"s_sleep {ssl}")
    A("s_load_dwordx16 s[76:91], s[18:19], s46")
    A("s_add_u32 s46, s46, %s               ; the scalar cache keeps what it has seen: another copy next time" % ("64" if sib is None else "s41"))
    A("s_add_u32 s49, s49, 1")
    A(f"s_cmp_gt_u32 s49, {NSP}")
    A("s_cbranch_scc1 L_ip0")
    A("s_waitcnt lgkmcnt(0)")
    A("s_xor_b32 s43, s77, s40")
    for i in range(1, 8):
        A(f"s_xor_b32 s44, s{77+2*i}, s40")
        A("s_or_b32 s43, s43, s44")
    A("s_cbranch_scc1 L_spoll")
    stamp(3)
    if stamps: A("s_mov_b32 s59, s49")
    A("s_mov_b32 exec_lo, 0x01010101")
    A("s_mov_b32 exec_hi, 0x01010101")
    for i in range(8):
        A(f"v_mov_b32 v6, s{76+2*i}")
        A("s_lshl_b64 exec, exec, 1" if i < 7 else "s_mov_b64 exec, -1")
    A("s_branch L_sok")
    LB("L_lead")
    if FK:
        A("s_mov_b32 s49, 0")
        LB("L_fw2")
        if fsleep: A(f"s_sleep {fsleep}")
        A(f"ds_read_b32 v9, v8 offset:{L_FLAG + 4}")
        A("s_add_u32 s49, s49, 1")
        A("s_cmp_ge_u32 s49, %d" % SPIN)
        A("s_waitcnt lgkmcnt(0)")
        A("v_cmp_eq_u32 vcc, 0, v9")
        A("s_cbranch_scc1 L_fo2")
        A("s_cbranch_vccnz L_fw2")
        LB("L_fo2")
    if LF0 is not None:
        A(f"s_cmp_eq_u32 s22, {PERM[0]}")
        A("s_cbranch_scc1 L_lf0")
        A(f"s_sleep {LF - LF0}")
        LB("L_lf0")
        A(f"s_sleep {LF0}")
    elif LF: A(f"s_sleep {LF}")
    stamp(2)
    LB("L_ip0")
    A("s_waitcnt lgkmcnt(0)")
    A("s_mov_b32 s49, 0")
    if not is0: A("s_branch L_ipl")
    LB("L_ipoll")
    if IS: A(f"s_sleep {IS}")
    if not is0: LB("L_ipl")
    A(f"buffer_load_dwordx2 v[8:9], v12, s[32:35], s47 offen sc1")
    LB("L_ichk")
    A("s_add_u32 s49, s49, 1")
    A("s_cmp_ge_u32 s49, %d" % SPIN)
    A(f"s_waitcnt vmcnt(0)")
    A(f"v_cmp_ne_u32 vcc, s40, v9")
    A("s_cbranch_scc1 L_iok")
    A("s_cbranch_vccnz L_ipoll")
    LB("L_iok")
    stamp(3)
    if stamps: A("s_mov_b32 s59, s49")
    A("v_max_u32_dpp v8, v8, v8 row_ror:8 row_mask:0xf bank_mask:0xf")
    A("v_mov_b32 v9, v8")
    if ldr:
        A("v_mov_b32 v7, s40")
        A("s_nop 0")
    else:
        A("s_mov_b32 m0, %d" % L_XS)
        A("s_cmp_eq_u32 s57, 1")
    A("v_permlane16_swap_b32 v8, v9")
    A("v_max_u32 v8, v8, v9")
    A("v_mov_b32 v9, v8")
    A("s_nop 1")
    A("v_permlane32_swap_b32 v8, v9")
    A("v_max_u32 v6, v8, v9")
    if ldr:
        if rk:
            A("v_mov_b32 v8, 0")
            A("buffer_store_dword v8, off, s[32:35], s42 offset:2048")
        if mc:
            for i in range(NC // 8): A(f"buffer_store_dwordx2 v[6:7], v13, s[32:35], s42 offen offset:{512*i}")
        else:
            A("s_mov_b64 exec, 0xff")
            A("buffer_store_dwordx2 v[6:7], v13, s[32:35], s42 offen")
            A("s_mov_b64 exec, -1")
        if xpf:
            A("v_and_b32 v15, 31, v6")
            A("v_xor_b32 v15, 31, v15")
            A("v_lshl_add_u32 v15, v4, 5, v15")
            A("v_lshlrev_b32 v15, 11, v15")
            A("v_lshl_add_u32 v15, v11, 7, v15")
            A("buffer_load_dword v32, v15, s[28:31], 0 offen")
            A("buffer_load_dword v33, v15, s[28:31], 0 offen offset:1024")
        LB("L_sok")
        A("s_mov_b32 m0, %d" % L_XS)
        A("s_cmp_eq_u32 s57, 1")
    A("v_and_b32 v10, 31, v6")
    A("v_xor_b32 v10, 31, v10")
    A("v_lshl_add_u32 v10, v4, 5, v10       ; row")
    A("v_lshlrev_b32 v10, 11, v10")
    A("v_lshl_add_u32 v10, v11, 4, v10      ; + chunk*16")
    for i in range(8):
        if i == 4: A("s_cbranch_scc1 L_dmadone")
        A(f"buffer_load_dwordx4 v10, s[28:31], s45 offen{xpol} lds")
        if i < 7:
            A("s_mov_b32 m0, %d" % (L_XS + 1024*(i+1)))
            A("v_add_u32 v10, 128, v10")
    LB("L_dmadone")
    if not early_id: idload()
    pto = "s48" if pt else "s56"
    if not pt: A("s_mov_b32 s56, 0x40000000")
    A(f"buffer_load_dwordx4 v[24:27], v14, s[32:35], {pto} offen {ptp}")
    A(f"buffer_load_dwordx4 v[28:31], v14, s[32:35], {pto} offen offset:1024 {ptp}")
    A("s_barrier                            ; BX")
    A("v_readlane_b32 s55, v6, s51")
    A("s_and_b32 s46, s2, 31")
    A("s_and_b32 s54, s55, 31")
    A("s_xor_b32 s54, s54, 31")
    A("s_cmp_eq_u32 s54, s46")
    A("s_cselect_b32 s56, 0x40000000, s53")
    if ldr:
        A("s_waitcnt vmcnt(10)")
        A("s_cmp_eq_u32 s57, 0")
        A("s_cbranch_scc1 L_idw")
        A("s_waitcnt vmcnt(6)")
        LB("L_idw")
        idconv()
    def idstore():
        A(f"buffer_store_dwordx4 v[{IDR}:{IDR+3}], v14, s[36:39], s56 offen{outpol}")
        A(f"buffer_store_dwordx4 v[{IDR+4}:{IDR+7}], v14, s[36:39], s56 offen offset:1024{outpol}")
    if ids == 'bx': idstore()
    A("v_lshrrev_b32 v7, 5, v0")
    A("v_bfe_u32 v8, v0, 4, 1")
    A("v_lshl_add_u32 v7, v8, 1, v7         ; e")
    A("v_lshl_add_u32 v7, v4, 2, v7         ; 4*pos + e")
    A("s_lshl_b32 s45, s51, 5")
    A("s_add_u32 s45, s45, s54")
    A("s_lshl_b32 s45, s45, 5")
    A("s_add_u32 s45, s45, s46")
    A("s_lshl_b32 s45, s45, 5")
    A("v_add_u32 v7, s45, v7")
    A("v_lshlrev_b32 v7, 1, v7")
    A("buffer_load_ushort v9, v7, s[28:31], 0 offen")
    A(f"s_waitcnt vmcnt({5 if ids == 'bx' else 3})")
    A("s_barrier                            ; B2")
    stamp(4)
    if not early_id:
        A("s_waitcnt vmcnt(3)")
        idconv()
    A("s_lshr_b32 s44, s55, 16")
    A("s_xor_b32 s45, s44, 0xffff")
    A("s_and_b32 s44, s44, 0x7fff")
    A("s_cmp_lt_i32 s55, 0")
    A("s_cselect_b32 s44, s44, s45")
    A("s_lshl_b32 s44, s44, 16              ; r")
    A("v_mov_b32 v10, 0xbfb8aa3b")
    A("v_mul_f32 v10, s44, v10")
    A("v_exp_f32 v10, v10")
    A("s_and_b32 s41, s40, 0xff")
    A("v_add_f32 v10, 1.0, v10")
    A("v_rcp_f32 v10, v10")
    if ids == 'b2': idstore()
    A("s_barrier                            ; B3")
    if ids == 'b3':
        if idd: A(f"s_sleep {idd}")
        idstore()
    if not early_id:
        A(f"buffer_store_dwordx4 v[{IDR}:{IDR+3}], v14, s[36:39], s56 offen{outpol}")
        A(f"buffer_store_dwordx4 v[{IDR+4}:{IDR+7}], v14, s[36:39], s56 offen offset:1024{outpol}")
    A("v_cvt_pk_bf16_f32 v10, v10, v10")
    A("v_and_b32 v10, 0xffff0000, v10       ; sigmoid")
    A("s_mul_i32 s46, s2, %d" % X2S)
    A("s_add_u32 s46, s46, %d" % O_EX2)
    A("s_add_u32 s47, s46, 4096")
    A("s_mov_b32 s49, 0")
    A("s_mov_b32 s44, 0x00ff00ff")
    A("s_mov_b32 s45, 0x00ff00ff")
    A("s_waitcnt vmcnt(%d)" % (2 if ids in ('b2', 'b3') else 0))
    A("v_lshlrev_b32 v9, 16, v9             ; x")
    if arr:
        A("v_and_b32 v13, 31, v0")
        A("v_lshlrev_b32 v13, 2, v13")
        A("v_mov_b32 v12, s40")
        A("s_lshl_b32 s43, s23, 2")
        A("s_add_u32 s43, s43, s42")
        A("s_mov_b64 exec, 1")
    if rk:
        A("v_mov_b32 v12, 1")
        A("s_mov_b64 exec, 1")
    A("s_barrier                            ; B4")
    if rk:
        A("buffer_atomic_add v12, off, s[32:35], s42 offset:2048 sc0")
        A("s_mov_b64 exec, -1")
    if arr:
        A("buffer_store_dword v12, off, s[32:35], s43 offset:2048")
        A("s_mov_b64 exec, -1")
    if not b4: A("s_barrier")
    stamp(5)
    if ids == 'b4': idstore()
    if X20 is not None:
        A(f"s_cmp_eq_u32 s22, {PERM[0]}")
        A("s_cbranch_scc1 L_x20")
        A(f"s_sleep {x2d - X20}")
        LB("L_x20")
        if X20: A(f"s_sleep {X20}")
    elif rk:
        A("s_waitcnt vmcnt(0)")
        A("v_readfirstlane_b32 s43, v12")
        stamp(4)
        A("s_min_u32 s43, s43, 31")
        if stamps: A("s_mov_b32 s59, s43")
        A(f"s_mul_i32 s43, s43, {rk[1]}")
        A("s_lshr_b32 s43, s43, 4")
        A(f"s_sub_i32 s43, {rk[0]}, s43")
        A(f"s_max_i32 s43, s43, {rk[2]}")
        if len(rk) > 3: A(f"s_min_i32 s43, s43, {rk[3]}")
        LB("L_rk")
        A("s_sleep 1")
        A("s_sub_u32 s43, s43, 1")
        A("s_cmp_gt_i32 s43, 0")
        A("s_cbranch_scc1 L_rk")
    elif arr:
        LB("L_arr")
        if len(arr) > 2 and arr[2]: A(f"s_sleep {arr[2]}")
        A("buffer_load_dword v15, v13, s[32:35], s42 offen offset:2048 sc1")
        A("s_add_u32 s49, s49, 1")
        A(f"s_cmp_ge_u32 s49, {arr[0]}")
        A("s_waitcnt vmcnt(0)")
        A("v_cmp_ne_u32 vcc, s40, v15")
        A("s_cbranch_scc1 L_aok")
        A("s_cbranch_vccnz L_arr")
        LB("L_aok")
        if stamps: A("s_mov_b32 s59, s49")
        A("s_mov_b32 s49, 0")
        if arr[1]: A(f"s_sleep {arr[1]}")
        stamp(4)
    elif x2d: A(f"s_sleep {x2d}")
    if mx:
        MS = 76 if stamps else 60
        def ld(i):
            so = "s46" if i < 4 else "s47"
            A(f"buffer_load_dwordx4 v[{32+4*i}:{35+4*i}], v14, s[32:35], {so} offen offset:{(i%4)*1024} sc1")
        def chk(i):
            b = 32 + 4*i
            for r in range(b, b+4): A(f"v_xor_b32 v{r}, s41, v{r}")
            A(f"v_or3_b32 v15, v{b}, v{b+1}, v{b+2}")
            A(f"v_or_b32 v15, v15, v{b+3}")
            A(f"v_cmp_ne_u32_sdwa s[{MS+2*i}:{MS+2*i+1}], v15, v13 src0_sel:BYTE_0 src1_sel:DWORD")
        def anyleft():
            A(f"s_or_b64 s[42:43], s[{MS}:{MS+1}], s[{MS+2}:{MS+3}]")
            for i in range(2, 7): A(f"s_or_b64 s[42:43], s[42:43], s[{MS+2*i}:{MS+2*i+1}]")
        for i in range(7): ld(i)
        A("s_mov_b32 s49, 1")
        for i in range(7):
            A(f"s_waitcnt vmcnt({6-i})")
            chk(i)
            if i == 1: A("v_pk_add_f32 v[16:17], v[32:33], v[36:37]"); A("v_pk_add_f32 v[18:19], v[34:35], v[38:39]")
            if i >= 2: A(f"v_pk_add_f32 v[16:17], v[16:17], v[{32+4*i}:{33+4*i}]"); A(f"v_pk_add_f32 v[18:19], v[18:19], v[{34+4*i}:{35+4*i}]")
        anyleft()
        A("s_cbranch_scc0 L_x2ok")
        LB("L_x2poll")
        if x2s: A(f"s_sleep {x2s}")
        for i in range(7):
            A(f"s_mov_b64 exec, s[{MS+2*i}:{MS+2*i+1}]")
            A(f"s_cbranch_execz L_x2l{i}")
            ld(i)
            LB(f"L_x2l{i}")
        A("s_add_u32 s49, s49, 1")
        A("s_waitcnt vmcnt(0)")
        for i in range(7):
            A(f"s_mov_b64 exec, s[{MS+2*i}:{MS+2*i+1}]")
            A(f"s_cbranch_execz L_x2c{i}")
            chk(i)
            LB(f"L_x2c{i}")
        A("s_mov_b64 exec, -1")
        anyleft()
        A("s_cbranch_scc0 L_x2sum")
        A("s_cmp_lt_u32 s49, %d" % SPIN)
        A("s_cbranch_scc1 L_x2poll")
        LB("L_x2sum")
        A("v_pk_add_f32 v[16:17], v[32:33], v[36:37]"); A("v_pk_add_f32 v[18:19], v[34:35], v[38:39]")
        for i in range(2, 7):
            A(f"v_pk_add_f32 v[16:17], v[16:17], v[{32+4*i}:{33+4*i}]"); A(f"v_pk_add_f32 v[18:19], v[18:19], v[{34+4*i}:{35+4*i}]")
        A("s_nop 0")
    else:
        LB("L_x2poll")
        for i in range(7):
            so = "s46" if i < 4 else "s47"
            A(f"buffer_load_dwordx4 v[{32+4*i}:{35+4*i}], v14, s[32:35], {so} offen offset:{(i%4)*1024} sc1")
        A("s_add_u32 s49, s49, 1")
        for i in range(7):
            A(f"s_waitcnt vmcnt({6-i})")
            b = 32 + 4*i
            for r in range(b, b+4): A(f"v_xor_b32 v{r}, s41, v{r}")
            if i == 0:
                A(f"v_or3_b32 v15, v{b}, v{b+1}, v{b+2}")
                A(f"v_or_b32 v15, v15, v{b+3}")
            else:
                A(f"v_or3_b32 v15, v15, v{b}, v{b+1}")
                A(f"v_or3_b32 v15, v15, v{b+2}, v{b+3}")
                src = 32 if i == 1 else 16
                A(f"v_pk_add_f32 v[16:17], v[{src}:{src+1}], v[{b}:{b+1}]")
                A(f"v_pk_add_f32 v[18:19], v[{src+2}:{src+3}], v[{b+2}:{b+3}]")
        A("v_and_b32 v15, 0xff, v15")
        A("v_cmp_ne_u32 vcc, 0, v15")
        A("s_cbranch_vccz L_x2ok")
        if x2s: A(f"s_sleep {x2s}")
        A("s_cmp_lt_u32 s49, %d" % SPIN)
        A("s_cbranch_scc1 L_x2poll")
    LB("L_x2ok")
    stamp(6)
    A("v_permlane32_swap_b32 v16, v17")
    A("v_permlane32_swap_b32 v18, v19")
    A("v_add_f32 v16, v16, v17")
    A("v_add_f32 v18, v18, v19")
    A("s_nop 1")
    A("v_permlane16_swap_b32 v16, v18")
    A("v_add_f32 v16, v16, v18")
    A("s_nop 1")
    A("v_add_f32_dpp v16, v16, v16 row_ror:8 row_mask:0xf bank_mask:0xf")
    A("s_mov_b64 exec, s[44:45]")
    A("v_cvt_pk_bf16_f32 v16, v16, v16")
    A("v_and_b32 v16, 0xffff0000, v16       ; y")
    A("v_mul_f32 v16, v16, v10")
    A("v_cvt_pk_bf16_f32 v16, v16, v16")
    A("v_and_b32 v16, 0xffff0000, v16       ; y*sigmoid")
    A("v_fma_f32 v16, v9, 0, v16            ; upd = x*0 + y")
    A("v_add_f32 v16, v9, v16")
    A("v_cvt_pk_bf16_f32 v16, v16, v16")
    A(f"buffer_store_short v16, v7, s[36:39], 0 offen{finpol}")
    A("s_cmp_lg_u32 s2, 0")
    A("s_cbranch_scc1 L_noep")
    A("v_mov_b32 v18, s40")
    A("v_mov_b32 v17, 0")
    A("s_mov_b64 exec, 1")
    A("buffer_store_dword v18, v17, s[32:35], 0 offen sc1")
    LB("L_noep")
    stamp(7)
    LB("L_fin")
    if stamps:
        import diag
        if dg: diag.epilogue(A, LB, dg, nwg=256, invalid=())
        elif gamp: diag.gamp(A, LB, gamp)
        else:
            A("s_barrier")
            diag.dump(A, LB)
    LB("L_end")
    A("s_endpgm")
    L.extend(slow)
    body = "\n".join(L)
    pad = ".p2align 12\n.fill 832, 4, 0xbf800000            ; the kernel starts a 4 KB page (instruction prefetch stops at page ends)\n" if align else ""
    return f"""{HEAD}; @launch grid=(256,1,1) block=(384,1,1) lds={LDS_BYTES}
{DOC}.amdgcn_target "amdgcn-amd-amdhsa--gfx950"
.text
.globl {KN}
{pad}.p2align 8
.type {KN},@function
{KN}:
{body}
.section .rodata,"a"
.p2align 6
.amdhsa_kernel {KN}
  .amdhsa_next_free_vgpr 160
  .amdhsa_next_free_sgpr 96
  .amdhsa_accum_offset 160
  .amdhsa_group_segment_fixed_size 0
  .amdhsa_kernarg_size 64
  .amdhsa_user_sgpr_count 2
  .amdhsa_user_sgpr_kernarg_segment_ptr 1
  .amdhsa_system_sgpr_workgroup_id_x 1
  .amdhsa_float_denorm_mode_32 3
.end_amdhsa_kernel
"""
if __name__ == "__main__":
    import sys, json
    kw = json.loads(sys.argv[2]) if len(sys.argv) > 2 else {}
    open(sys.argv[1] if len(sys.argv) > 1 else "standalone__moe_arch_mod__sampling.s", "w").write(gen(**kw))
```

```python
KN = "standalone__moe_arch_mod__sampling_kernel"
HEAD = open("standalone__moe_arch_mod__sampling.s.ref").read().split("; Override launch")[0]

O_IDX = 0x1000
O_LDR = 0x12000
O_EX1F = 0x20000
O_EX2 = 0x100000
O_EX1 = 0x300000
WS_REC = 0x500000
L_XS = 0
L_RED = 8192
L_HB = 16384
L_KEY = 17408
L_FLAG = 17408 + 32
LDS_BYTES = 17408 + 64
SPIN = 40000

DOC = """; MoD sampling block: route (argmax of x.w_r per batch), SwiGLU FFN on the 8 selected rows, residual update.
"""

def gen(pol="nt", xpol="", D=11, DI=6, D3=8, D3W=12, BX=7, BX3=8, DX=32, LS=8, NF=12, PK=3, FS=38, fsleep=1,
        outpol="sc1", finpol="", x1pol="", x2d=27, PERM=(7,0,1,2,4,5,6,3), align=True, prog=False, early_id=True,
        stamps=False, dg=None, gamp=None, cst1=True, lag0=0, MAP="B", DUP0=True, X2S=8192, nob5=False, mx=False, x2s=0, b4=True, rlag=0, IS=6, ipf=0, FS0=None, X20=None, late2=0, late3=0, D0=None, pace=None, pace3=None, DT=None, em=1, ldr=True, NSP=None, ssl=1, hold=None, mc=True, SF=28, NC=32, lid='pre', lw=None, D3B=None, hx=False, D3X=None, R3=1, wg=None, NLD=2, LF=0, RF=0, CW=0, lp=1, lps=5, NR=1, FA=1, full=False, rpol='sc1', LBR=16, nodup=False, nr0=False, PK3=None, KP=4, LF0=None, sib=None, xr=False, x1ld='sc1', pt=True, x1f=None, ptp='', skip=False, dum=False, ids='bx', idd=0, FK=16, arr=None, rk=None, xpf=False, is0=False, eppol='', epw=0):
    if gamp or dg: stamps = True
    if NSP is None: NSP = NC - 1
    L = []
    def A(s): L.append("  " + s)
    def LB(s): L.append(s + ":")
    def stamp(i):
        if stamps: A(f"s_memrealtime s[{60+2*i}:{61+2*i}]")
    sp = lambda p: (" " + p) if p else ""
    pol, xpol, outpol, finpol, x1pol = map(sp, (pol, xpol, outpol, finpol, x1pol))
    REPS = 64 * LS
    XR = 80
    RAW = 16; FR = 80; XB = 96; ACC = 112; W2 = 128
    F2 = 40; HA = 72
    IDR = 40
    def raw(s, i): return RAW + 16*s + 2*i
    def frag(s, j): return (FR if s == 0 else RAW + 16*(s-1)) + 4*j
    def raw2(s, i): return W2 + 16*s + 2*i
    def frag2(s, j): return F2 + 16*s + 4*j
    def perm_pair(rawf, fragf, s, p):
        for e in range(2):
            A(f"v_perm_b32 v{fragf(s,2*e)+p}, v{rawf(s,2*p+1)+e}, v{rawf(s,2*p)+e}, s42")
            A(f"v_perm_b32 v{fragf(s,2*e+1)+p}, v{rawf(s,2*p+1)+e}, v{rawf(s,2*p)+e}, s43")
    def perms(rawf, fragf, s):
        for p in range(4): perm_pair(rawf, fragf, s, p)
    def w1load(n):
        s, i = divmod(n, 8)
        A(f"buffer_load_dwordx2 v[{raw(s,i)}:{raw(s,i)+1}], v3, s[24:27], s44 offen{pol}")
        A("s_addk_i32 s44, 7168" if i < 7 else "s_add_u32 s44, s44, %d" % (25*7168))
    def w2load(n):
        s, i = divmod(n, 8)
        p, b = divmod(i, 2)
        row = 2*s + (p >> 1) + 8*(p & 1) + 4*b
        A("s_add_u32 s47, s53, %d" % (row*2048))
        A(f"buffer_load_dwordx2 v[{raw2(s,i)}:{raw2(s,i)+1}], v10, s[28:31], s47 offen{pol}")

    if lag0:
        A("s_and_b32 s3, s2, 7")
        A("s_cmp_lg_u32 s3, 0")
        A("s_cbranch_scc1 L_nolag")
        A(f"s_sleep {lag0}")
        LB("L_nolag")
    stamp(0)
    A("s_cmp_ge_u32 s2, 256")
    A("s_cbranch_scc1 L_exit")
    A("s_load_dwordx16 s[4:19], s[0:1], 0")
    A("v_lshrrev_b32 v1, 6, v0")
    A("v_and_b32 v0, 63, v0                 ; lane")
    A("v_readfirstlane_b32 s3, v1           ; wave")
    A("s_lshl_b32 s22, s2, 2")
    A("s_lshr_b32 s22, 0x%x, s22" % sum(v << (4*i) for i, v in enumerate(PERM)))
    A("s_and_b32 s22, s22, 7")
    A("s_lshr_b32 s23, s2, 3")
    A("s_lshr_b32 s44, s23, 2")
    A("s_mul_i32 s45, s22, 6")
    A("s_add_u32 s45, s45, s44")
    A("s_add_u32 s44, s45, 4")
    A("s_mul_i32 s44, s44, 37")
    A("s_lshr_b32 s44, s44, 8")
    A("s_add_u32 s20, s45, s44")
    A("s_lshl_b32 s44, s22, 3")
    A("s_add_u32 s44, s44, 3")
    A("s_min_u32 s44, s44, 55")
    A("s_cmp_ge_u32 s23, 24")
    A("s_cselect_b32 s20, s44, s20")
    A("s_cselect_b32 s57, 1, 0")
    A("s_cselect_b32 s21, 7, 3")
    A("s_and_b32 s21, s21, s23              ; part")
    A(f"s_cmp_ge_u32 s23, {24 + NLD}")
    A("s_cselect_b32 s58, 1, 0")
    A("s_mov_b32 s27, 0x20000")
    A("s_cmp_lt_u32 s3, 4")
    A("s_cbranch_scc1 L_c")
    A("s_mov_b32 s30, 524288")
    A("s_mov_b32 s31, 0x20000")
    A("v_lshlrev_b32 v14, 4, v0             ; lane*16")
    A("s_cmp_eq_u32 s58, 1")
    A("s_cbranch_scc1 L_rt")
    A("s_cmp_eq_u32 s3, 4")
    A("s_cbranch_scc1 L_r")
    LB("L_exit")
    A("s_endpgm")
    LB("L_rt")
    A("s_setprio 3")
    A(f"s_mul_i32 s52, s22, {8 - NLD}")
    A("s_add_u32 s52, s52, s21")
    A("s_lshl_b32 s52, s52, 1")
    A("s_add_u32 s52, s52, s3")
    A(f"s_sub_u32 s52, s52, {4 + 2*NLD}")
    A("s_and_b32 s52, s52, 63")
    A("s_lshl_b32 s44, s52, 13")
    A("s_add_u32 s45, s44, 4096")
    A("s_movk_i32 s26, 2048")
    A("s_waitcnt lgkmcnt(0)")
    A("s_mov_b64 s[28:29], s[4:5]")
    A("s_mov_b64 s[24:25], s[6:7]")
    A("s_load_dword s40, s[18:19], 0        ; epoch")
    A(f"buffer_load_dwordx4 v[16:19], v14, s[24:27], 0 offen")
    A(f"buffer_load_dwordx4 v[20:23], v14, s[24:27], 0 offen offset:1024")
    for i in range(8):
        A(f"buffer_load_dwordx4 v[{XR+4*i}:{XR+4*i+3}], v14, s[28:31], {'s44' if i < 4 else 's45'} offen offset:{(i%4)*1024}{xpol}")
    A("s_barrier                            ; B0")
    A("s_branch L_route")
    LB("L_c")
    A("v_mov_b32 v4, 0")
    if FK:
        A("v_mov_b32 v5, 0")
        A(f"ds_write_b64 v4, v[4:5] offset:{L_FLAG}")
    else: A(f"ds_write_b32 v4, v4 offset:{L_FLAG}")
    A("s_mov_b32 s26, 7340032")
    A("v_lshrrev_b32 v1, 4, v0              ; g")
    A("v_and_b32 v2, 15, v0                 ; n")
    A("v_mul_u32_u24 v3, %d, v1" % (8*7168))
    A("v_lshl_add_u32 v3, v2, 3, v3         ; voffset")
    A("s_lshr_b32 s44, s21, 1")
    A("s_lshl_b32 s44, s44, 2")
    A("s_add_u32 s44, s44, s3")
    A("s_lshr_b32 s45, %d, s57" % (128*7168))
    A("s_mul_i32 s44, s44, s45")
    A("s_lshl_b32 s45, s20, 7")
    A("s_add_u32 s44, s44, s45              ; soffset")
    A("s_bitcmp1_b32 s21, 0")
    A("s_waitcnt lgkmcnt(0)")
    A("s_cselect_b64 s[24:25], s[10:11], s[8:9]")
    A("s_cmp_eq_u32 s58, 0")
    A("s_cbranch_scc1 L_nb0")
    A("s_barrier")
    LB("L_nb0")
    if not cst1: stamp(1)
    for n in range(DI): w1load(n)
    A("s_load_dword s40, s[18:19], 0        ; epoch")
    if stamps:
        A("s_getreg_b32 s59, hwreg(HW_REG_HW_ID)")
    A("s_mov_b64 s[32:33], s[18:19]")
    A("s_mov_b32 s34, %d" % WS_REC)
    A("s_mov_b32 s35, 0x20000")
    A("s_mov_b32 s42, 0x05040100")
    A("s_mov_b32 s43, 0x07060302")
    A("v_and_b32 v8, 7, v0")
    A("v_lshl_add_u32 v13, v1, 3, v8")
    A("v_lshlrev_b32 v13, 4, v13")
    A("s_lshl_b32 s45, s3, 11")
    A("v_add_u32 v4, s45, v13")
    A("s_lshr_b32 s45, s45, s57")
    A("v_add_u32 v5, s45, v13")
    A("v_lshlrev_b32 v6, 3, v0")
    A("s_lshl_b32 s45, s3, 9")
    A("v_add_u32 v6, s45, v6                ; w*512 + lane*8")
    A("v_lshrrev_b32 v7, 1, v0")
    A("v_lshlrev_b32 v7, 4, v7")
    A("v_and_b32 v9, 1, v0")
    A("v_lshl_add_u32 v7, v9, 2, v7")
    A("s_lshr_b32 s45, s3, 1")
    A("s_lshl_b32 s45, s45, 9")
    A("s_and_b32 s46, s3, 1")
    A("s_lshl_b32 s46, s46, 3")
    A("s_add_u32 s45, s45, s46")
    A("v_add_u32 v7, s45, v7")
    A("s_mov_b64 s[28:29], s[12:13]")
    A("s_mov_b32 s30, 7340032")
    A("s_mov_b32 s31, 0x20000")
    A("v_lshlrev_b32 v10, 15, v1            ; g*16*2048")
    A("v_lshl_add_u32 v10, v2, 3, v10")
    A("v_lshrrev_b32 v11, 3, v2")
    A("v_lshl_add_u32 v11, v1, 7, v11       ; 4g*32 + (n>>3)")
    A("v_mul_u32_u24 v11, %d, v11" % X2S)
    A("v_lshl_add_u32 v11, v8, 4, v11       ; + (n&7)*16")
    A("s_lshl_b32 s53, s21, 2")
    A("s_lshr_b32 s53, s53, s57")
    A("s_add_u32 s53, s53, s3")
    A("s_lshr_b32 s45, s3, 1")
    A("s_and_b32 s45, s45, s57")
    A("s_lshl_b32 s45, s45, 30")
    A("v_or_b32 v10, s45, v10")
    A("v_or_b32 v11, s45, v11")
    A("s_mul_i32 s52, s53, %d" % (2*X2S))
    A("s_lshl_b32 s46, s20, 7")
    A("s_add_u32 s52, s52, s46")
    A("s_add_u32 s52, s52, %d" % O_EX2)
    A("s_lshl_b32 s53, s53, 7")
    A("s_lshl_b32 s46, s20, 17              ; tile*64*2048")
    A("s_add_u32 s53, s53, s46")
    A("s_lshl_b32 s45, s20, 14")
    A("s_lshl_b32 s46, s21, 11")
    A("s_add_u32 s45, s45, %d               ; group base" % O_EX1F)
    A("s_add_u32 s46, s46, s45")
    A("s_mov_b32 s48, 0xffffff00")
    A("s_mov_b32 s50, 0xbfb8aa3b            ; -log2(e)")
    A("s_mov_b32 s51, 0xbfb8aa3b")
    A("s_mov_b32 s49, 0")
    A("s_getreg_b32 s54, hwreg(HW_REG_XCC_ID, 0, 3)")
    A("v_mov_b32 v12, 1")
    if not D0: A("v_cmp_eq_u32 vcc, s57, v12")
    A("s_cmp_eq_u32 s58, 1")
    A("s_cbranch_scc1 L_cb")

    slow = []; st = {}
    def cpath(NS, sfx, DD, DW, bx):
        NL = 8*NS
        done = 0
        landed = 0
        if NS == 2: A("s_barrier")
        lt = late2 if NS == 4 else late3
        if D0 and NS == 4:
            A(f"s_cmp_eq_u32 s22, {PERM[0]}")
            A("s_cselect_b64 vcc, -1, 0")
        landed0 = 1
        for n in range(DI, NL + 16 - lt):
            dn = min(DD, DI + (n - DI + 1) * (R3 if NS == 2 else 1) // 2) if n < NL else DW
            if n >= NL + bx:
                if n == NL + bx:
                    A("s_barrier")
                    if NS == 2:
                        LB("L_bx"); st["done"] = done
                dn = DX
                if wg is not None and NS == 4 and n == NL + bx: dn = bx + wg + 1
            if NS == 2 and hold is not None:
                if n == DI + hold: A("s_barrier                            ; " + ("BX: the keys and the selected rows are in the queue" if hx else "B0c: the first look at the scores is in the queue"))
                if D3B and DI + hold <= n < NL: dn = D3B
                if D3X and n >= NL: dn = D3X
            if DT and NS == 4 and DT[0] <= n < NL + bx: dn = min(DT[1], DD + (n - DT[0] + 1) * DT[2] // 2)
            pc = pace if NS == 4 else pace3
            if pc and DI < n < NL + bx:
                dn = pc[2]
                if (n - DI) % pc[0] == 0 or pc[0] == 1: A(f"s_sleep {pc[1]}")
            if D0 and NS == 4 and n > DI + 1 and n < NL + bx:
                d0 = min(D0[0] + (n & 1), DI + (n - DI + 1) * D0[1] // 2)
                if n >= NL: d0 = dn = max(dn, 12)
                if n - dn + 1 > landed0 and d0 > dn:
                    A(f"s_cbranch_vccnz L_d0_{n}")
                    A(f"s_waitcnt vmcnt({dn-1})")
                    LB(f"L_d0_{n}")
                    landed0 = n - dn + 1
                dn = max(dn, d0)
            if n - dn + 1 > landed:
                A(f"s_waitcnt vmcnt({dn-1})")
                landed = n - dn + 1
            if n == DI and cst1: stamp(1)
            if n == LBR and NS == 4:
                assert done == 0
                if D0:
                    A("s_cmp_eq_u32 s57, 1")
                    A("s_cbranch_scc1 L_cc")
                else: A("s_cbranch_vccnz L_cc")
            if n < NL: w1load(n)
            else: w2load(n - NL)
            if n == DI and NS == 4:
                A(f"ds_write_b32 v12, v12 offset:{L_FLAG - 1}")
            if n == NL - 1: stamp(2)
            while done < NS and 8*done + 8 <= landed:
                perms(raw, frag, done); done += 1
        A("s_waitcnt lgkmcnt(0)")
        A("s_add_u32 s40, s40, 8                ; tag32")
        A("s_and_b32 s41, s40, 0xff")
        A("s_and_b32 s55, s40, 0xf8")
        A("s_or_b32 s54, s54, s55")
        A("v_mov_b32 v9, s41")
        A("v_mov_b32 v12, s54")
        if skip:
            A("s_bitcmp1_b32 s21, 0")
            A("s_cselect_b64 s[22:23], -1, 0")
        if NL + 16 - lt <= NL + bx: A("s_barrier                            ; BX")
        while done < NS - (1 if em and NS == 4 else 0):
            A(f"s_waitcnt vmcnt({NL + 16 - lt - 8*done - 8})")
            perms(raw, frag, done); done += 1
        A("s_barrier")
        stamp(3)
        for n in range(16 - lt, 16): w2load(n)
        for s in range(NS):
            A(f"ds_read_b128 v[{XB+4*s}:{XB+4*s+3}], v5 offset:{L_XS + 512*s}")
        for s in range(NS):
            late = done < NS
            if late and em == 1 and s == NS - 1:
                A("s_waitcnt vmcnt(16)")
                perms(raw, frag, NS - 1)
            if late and em == 2 and s == NS - 2: A("s_waitcnt vmcnt(16)")
            A(f"s_waitcnt lgkmcnt({NS-1-s})")
            for j in range(4):
                c = "0" if s == 0 else f"v[{ACC+4*j}:{ACC+4*j+3}]"
                A(f"v_mfma_f32_16x16x32_bf16 v[{ACC+4*j}:{ACC+4*j+3}], v[{frag(s,j)}:{frag(s,j)+3}], v[{XB+4*s}:{XB+4*s+3}], {c}")
                if late and em == 2 and s == NS - 2: perm_pair(raw, frag, NS - 1, j)
        A("s_mov_b32 exec_lo, 0x00ff00ff")
        A("s_mov_b32 exec_hi, 0x00ff00ff")
        A("s_nop 2")
        for j in range(4):
            A(f"ds_write_b128 v4, v[{ACC+4*j}:{ACC+4*j+3}] offset:{L_RED + 512*j}")
        A("s_mov_b64 exec, -1")
        A("s_waitcnt lgkmcnt(0)")
        A("s_barrier                            ; B3")
        for w in range(2):
            A(f"ds_read2st64_b64 v[{16+4*w}:{19+4*w}], v6 offset0:{(L_RED + 4096*w)//512} offset1:{(L_RED + 4096*w + 2048)//512}")
        A("s_waitcnt lgkmcnt(1)")
        A("v_pk_add_f32 v[16:17], v[16:17], v[18:19]")
        A("s_waitcnt lgkmcnt(0)")
        A("v_pk_add_f32 v[20:21], v[20:21], v[22:23]")
        A("v_pk_add_f32 v[16:17], v[16:17], v[20:21]")
        A("v_and_or_b32 v16, v16, s48, v12")
        A("v_and_or_b32 v17, v17, s48, v12")
        A(f"buffer_store_dwordx2 v[16:17], v6, s[32:35], s46 offen{x1pol}")
        stamp(4)
        if skip:
            A("v_and_b32 v24, s48, v16")
            A("v_and_b32 v25, s48, v17")
        NB = 4 if NS == 4 else 8
        pairs = [(s, p) for s in range(2) for p in range(4)]
        k = 0
        PKx = PK3 if (NS == 2 and PK3 is not None) else PK
        if KP:
            A(f"s_waitcnt vmcnt({17 - 2*KP})")
            while k < KP: perm_pair(raw2, frag2, *pairs[k]); k += 1
        if prog:
            while 17 - 2*(k+1) >= PK:
                A(f"s_waitcnt vmcnt({17 - 2*(k+1)})")
                perm_pair(raw2, frag2, *pairs[k]); k += 1
        if not prog or 17 - 2*k > PK: A(f"s_waitcnt vmcnt({PKx})")
        def polls(x1ld=x1ld):
            if skip:
                for b in range(1, NB):
                    A(f"s_xor_b32 s47, s46, {b*2048}")
                    A(f"buffer_load_dwordx2 v[{24+2*b}:{25+2*b}], v6, s[32:35], s47 offen {x1ld}")
                if dum: A("buffer_load_dword v15, v6, s[32:35], s34 offen")
                return
            for b in range(NB):
                if b and b % 2 == 0: A(f"s_add_u32 s47, s45, {b*2048}")
                A(f"buffer_load_dwordx2 v[{24+2*b}:{25+2*b}], v6, s[32:35], {'s45' if b < 2 else 's47'} offen offset:{(b%2)*2048} {x1ld}")
        if prog:
            polls()
            while k < 8:
                A(f"s_waitcnt vmcnt({NB + 17 - 2*(k+1)})")
                perm_pair(raw2, frag2, *pairs[k]); k += 1
            A(f"s_branch L_x1chk{sfx}")
        if xr: stamp(1)
        if x1f is not None:
            if xr: stamp(7)
            polls(x1f)
            A(f"s_branch L_x1chk{sfx}")
        LB("L_x1poll" + sfx)
        if xr: stamp(7)
        polls()
        LB("L_x1chk" + sfx)
        A("s_add_u32 s49, s49, 1")
        A(f"s_waitcnt vmcnt({1 if dum else 0})")
        r0 = 26 if skip else 24
        for r in range(r0, 24+2*NB): A(f"v_xor_b32 v{r}, s54, v{r}")
        A(f"v_or3_b32 v8, v{r0}, v{r0+1}, v{r0+2}")
        for r in range(r0+3, 24+2*NB-1, 2): A(f"v_or3_b32 v8, v8, v{r}, v{r+1}")
        A(f"v_or_b32 v8, v8, v{24+2*NB-1}")
        A("v_and_b32 v8, 0xff, v8")
        A("v_cmp_ne_u32 vcc, 0, v8")
        A("s_cbranch_vccnz L_x1no" + sfx)
        LB("L_x1ok" + sfx)
        stamp(5)
        if NB == 8:
            A("v_pk_add_f32 v[24:25], v[24:25], v[32:33]")
            A("v_pk_add_f32 v[26:27], v[26:27], v[34:35]")
            A("v_pk_add_f32 v[28:29], v[28:29], v[36:37]")
            A("v_pk_add_f32 v[30:31], v[30:31], v[38:39]")
        S = []
        def B(s): S.append("  " + s)
        S.append("L_x1no" + sfx + ":")
        B(f"s_cmp_lt_u32 s49, {NF}")
        B("s_cbranch_scc1 L_x1poll" + sfx)
        B("v_lshlrev_b32 v8, 1, v6")
        B("s_lshl_b32 s56, s20, 15")
        B("s_add_u32 s56, s56, %d" % O_EX1)
        B(f"s_cmp_lg_u32 s49, {NF}")
        B("s_cbranch_scc1 L_x1ns" + sfx)
        B("v_and_b32 v96, s48, v16")
        B("v_and_b32 v97, s48, v17")
        B("v_mov_b32 v98, s40")
        B("v_mov_b32 v99, s40")
        B("s_lshl_b32 s47, s21, 12")
        B("s_add_u32 s47, s47, s56")
        B("buffer_store_dwordx4 v[96:99], v8, s[32:35], s47 offen sc1")
        B("s_waitcnt vmcnt(0)")
        S.append("L_x1ns" + sfx + ":")
        if skip:
            B("s_lshl_b32 s47, s21, 12")
            B("s_add_u32 s56, s56, s47")
        for b in range(NB):
            if skip:
                B(f"s_xor_b32 s47, s56, {b*4096}")
                B(f"buffer_load_dwordx4 v[{96+4*b}:{99+4*b}], v8, s[32:35], s47 offen sc1")
            else:
                B(f"buffer_load_dwordx4 v[{96+4*b}:{99+4*b}], v8, s[32:35], s56 offen sc1")
                B("s_add_u32 s56, s56, 4096")
        B("s_waitcnt vmcnt(0)")
        B("v_mov_b32 v8, 0")
        for b in range(NB):
            B(f"v_xor_b32 v{98+4*b}, s40, v{98+4*b}")
            B(f"v_xor_b32 v{99+4*b}, s40, v{99+4*b}")
            B(f"v_or3_b32 v8, v8, v{98+4*b}, v{99+4*b}")
            B(f"v_mov_b32 v{24+2*b}, v{96+4*b}")
            B(f"v_mov_b32 v{25+2*b}, v{97+4*b}")
        B("v_cmp_ne_u32 vcc, 0, v8")
        B("s_cbranch_vccz L_x1ok" + sfx)
        B("s_cmp_lt_u32 s49, %d" % SPIN)
        B("s_cbranch_scc1 L_x1poll" + sfx)
        B("s_branch L_x1ok" + sfx)
        slow.extend(S)
        return k
    ka = cpath(4, "a", D, D, BX)
    LB("L_h")
    A("v_pk_add_f32 v[24:25], v[24:25], v[28:29]   ; gate")
    A("v_pk_add_f32 v[26:27], v[26:27], v[30:31]   ; up")
    if skip:
        A("v_cvt_pk_bf16_f32 v18, v24, v25")
        A("v_cvt_pk_bf16_f32 v19, v26, v27")
        A("v_cndmask_b32 v8, v18, v19, s[22:23]  ; gate")
        A("v_cndmask_b32 v12, v19, v18, s[22:23] ; up")
    else:
        A("v_cvt_pk_bf16_f32 v8, v24, v25")
        A("v_cvt_pk_bf16_f32 v12, v26, v27")
    A("v_lshlrev_b32 v18, 16, v8")
    A("v_and_b32 v19, 0xffff0000, v8")
    A("v_pk_mul_f32 v[20:21], v[18:19], s[50:51]")
    A("v_exp_f32 v20, v20")
    A("v_exp_f32 v21, v21")
    A("v_lshlrev_b32 v14, 16, v12")
    A("v_pk_add_f32 v[20:21], v[20:21], 1.0 op_sel_hi:[1,0]")
    A("v_rcp_f32 v20, v20")
    A("v_rcp_f32 v21, v21")
    A("v_and_b32 v15, 0xffff0000, v12")
    A("v_pk_mul_f32 v[18:19], v[18:19], v[20:21]")
    A("v_cvt_pk_bf16_f32 v8, v18, v19        ; silu")
    A("v_lshlrev_b32 v18, 16, v8")
    A("v_and_b32 v19, 0xffff0000, v8")
    A("v_pk_mul_f32 v[18:19], v[18:19], v[14:15]")
    A("v_cvt_pk_bf16_f32 v8, v18, v19        ; h")
    A(f"ds_write_b32 v7, v8 offset:{L_HB}")
    for k in range(ka, 8): perm_pair(raw2, frag2, *divmod(k, 4))
    A("s_waitcnt lgkmcnt(0)")
    A("s_barrier                            ; B4")
    for s in range(2):
        A(f"ds_read_b128 v[{HA+4*s}:{HA+4*s+3}], v13 offset:{L_HB + 512*s}")
    for s in range(2):
        A(f"s_waitcnt lgkmcnt({1-s})")
        for j in range(4):
            c = "0" if s == 0 else f"v[{ACC+4*j}:{ACC+4*j+3}]"
            A(f"v_mfma_f32_16x16x32_bf16 v[{ACC+4*j}:{ACC+4*j+3}], v[{HA+4*s}:{HA+4*s+3}], v[{frag2(s,j)}:{frag2(s,j)+3}], {c}")
    A("s_mov_b32 exec_lo, -1")
    A("s_mov_b32 exec_hi, 0")
    A("s_nop 2")
    for r in range(4):
        for j in range(4):
            A(f"v_and_or_b32 v{20+4*r+j}, v{ACC+4*j+r}, s48, v9")
        A(f"buffer_store_dwordx4 v[{20+4*r}:{23+4*r}], v11, s[32:35], s52 offen sc1")
        if r < 3: A("s_add_u32 s52, s52, %d" % (32*X2S))
    stamp(6)
    if not (nob5 or b4): A("s_waitcnt vmcnt(0)")
    if not b4: A("s_barrier                            ; B5")
    if not xr: stamp(7)
    if stamps: A("s_branch L_fin")
    else: A("s_endpgm")

    def rsetup():
        A("s_mov_b64 s[32:33], s[18:19]")
        A("s_mov_b32 s34, %d" % WS_REC)
        A("s_mov_b32 s35, 0x20000")
        A("s_mov_b64 s[36:37], s[14:15]")
        A("s_mov_b32 s38, 524288")
        A("s_mov_b32 s39, 0x20000")
        A("v_and_b32 v4, 7, v0")
        if stamps:
            A("s_mov_b32 s59, 0")
            A("s_mov_b32 s49, 0")
    LB("L_route")
    rsetup()
    A("s_and_b32 s45, s52, 7")
    A("s_lshl_b32 s46, s45, 3")
    A("s_lshr_b32 s52, s52, 3               ; batch")
    A("s_add_u32 s46, s46, s52")
    A("s_mul_i32 s46, s46, %d" % LS)
    A("s_add_u32 s46, s46, %d               ; slot" % O_IDX)
    A("s_lshl_b32 s45, s45, 2")
    if NR > 1 or full: A("v_mul_u32_u24 v5, %d, v0             ; replica offset" % (8 if full else REPS))
    if ipf:
        A("s_mov_b64 exec, 0xff")
        A("buffer_load_dword v13, v5, s[32:35], s46 offen sc1")
        A("s_mov_b64 exec, -1")
    A("v_lshrrev_b32 v10, 5, v0")
    A("v_bfe_u32 v11, v0, 4, 1")
    A("v_lshl_add_u32 v10, v11, 1, v10")
    A("v_add_u32 v10, s45, v10")
    A("v_xor_b32 v10, 31, v10")
    for t in range(4):
        for hlf in range(2):
            A(f"s_waitcnt vmcnt({7 - 2*t - hlf + (1 if ipf else 0)})")
            for k in range(4):
                c = "0" if (hlf == 0 and k == 0) else f"v{6+t}"
                A(f"v_dot2_f32_bf16 v{6+t}, v{XR+8*t+4*hlf+k}, v{16+4*hlf+k}, {c}")
    A("s_waitcnt lgkmcnt(0)")
    A("s_add_u32 s40, s40, 8")
    A("s_nop 0")
    A("v_permlane32_swap_b32 v6, v7")
    A("v_permlane32_swap_b32 v8, v9")
    A("v_add_f32 v6, v6, v7")
    A("v_add_f32 v8, v8, v9")
    A("s_nop 1")
    A("v_permlane16_swap_b32 v6, v8")
    A("v_add_f32 v6, v6, v8")
    A("s_nop 1")
    A("v_add_f32_dpp v6, v6, v6 quad_perm:[1,0,3,2] row_mask:0xf bank_mask:0xf")
    A("s_nop 1")
    A("v_add_f32_dpp v6, v6, v6 quad_perm:[2,3,0,1] row_mask:0xf bank_mask:0xf")
    A("s_nop 1")
    A("v_add_f32_dpp v6, v6, v6 row_half_mirror row_mask:0xf bank_mask:0xf")
    A("s_nop 1")
    A("v_add_f32_dpp v6, v6, v6 row_mirror row_mask:0xf bank_mask:0xf")
    A("v_cvt_pk_bf16_f32 v7, v6, v6")
    A("v_and_b32 v7, 0xffff0000, v7          ; r (bf16)")
    A("v_ashrrev_i32 v6, 31, v7")
    A("v_or_b32 v6, 0x80000000, v6")
    A("v_xor_b32 v6, v6, v7")
    A("v_cmp_o_f32 vcc, v7, v7")
    A("v_and_b32 v6, 0xffff0000, v6")
    A("s_nop 0")
    A("v_cndmask_b32 v6, 0, v6, vcc")
    A("v_or_b32 v6, v10, v6")
    A("v_mov_b32 v7, v6")
    A("s_nop 1")
    A("v_permlane16_swap_b32 v6, v7")
    A("v_max_u32 v6, v6, v7")
    A("v_mov_b32 v7, v6")
    A("s_nop 1")
    A("v_permlane32_swap_b32 v6, v7")
    A("v_max_u32 v6, v6, v7")
    A("v_mov_b32 v7, s40")
    if rlag: A(f"s_sleep {rlag}")
    A("s_mov_b64 exec, 0x%x" % ((1 << (LS // 8 if full else NR)) - 1))
    if NR > 1 or full: A(f"buffer_store_dwordx2 v[6:7], v5, s[32:35], s46 offen {rpol}")
    else: A(f"buffer_store_dwordx2 v[6:7], off, s[32:35], s46 {rpol}")
    A("s_mov_b64 exec, -1")
    A("s_barrier                            ; B0b")
    stamp(1)
    A("s_setprio 0")
    A("s_cmp_eq_u32 s3, 4")
    A("s_cbranch_scc1 L_r4")
    A("s_endpgm")
    if align: L.append(".p2align 12" if not (D0 or pace) else ".p2align 6")
    LB("L_cb")
    kb = cpath(2, "b", D3, D3W, BX3)
    assert ka == kb
    A("s_branch L_h")
    LB("L_cc")
    if LBR == 16: stamp(2)
    for n in range(CW): w2load(n)
    for d in range(st["done"]):
        A(f"s_waitcnt vmcnt({LBR - 8 - 8*d + CW})")
        perms(raw, frag, d)
    if FK:
        A(f"s_waitcnt vmcnt({LBR - FK + CW})")
        A(f"ds_write_b32 v12, v12 offset:{L_FLAG + 3}")
    A("s_barrier                            ; BX")
    for n in range(LBR, 16): w1load(n)
    if LBR < 16: stamp(2)
    for n in range(CW, BX3): w2load(n)
    A("s_branch L_bx")

    def idload():
        A(f"buffer_load_dwordx4 v[{IDR}:{IDR+3}], v14, s[28:31], s53 offen{xpol}")
        A(f"buffer_load_dwordx4 v[{IDR+4}:{IDR+7}], v14, s[28:31], s53 offen offset:1024{xpol}")
    def idconv():
        for r in range(IDR, IDR+8):
            A(f"v_lshlrev_b32 v16, 16, v{r}")
            A(f"v_and_b32 v17, 0xffff0000, v{r}")
            A("v_pk_fma_f32 v[16:17], v[16:17], 0, v[16:17] op_sel_hi:[1,0,1]")
            A(f"v_cvt_pk_bf16_f32 v{r}, v16, v17    ; x + x*0")
    def psetup():
        A("s_lshl_b32 s53, s2, 11")
        A("v_mul_u32_u24 v12, %d, v0            ; poll offset" % LS)
        if NR == 1: A("s_movk_i32 s47, %d                 ; the scores" % O_IDX)
        else:
            if NR < 8:
                A(f"s_and_b32 s47, s22, {NR - 1}")
                A("s_mul_i32 s47, s47, %d" % REPS)
            else: A("s_mul_i32 s47, s22, %d" % REPS)
            A("s_add_u32 s47, s47, %d               ; this group's replica" % O_IDX)
        A("v_lshrrev_b32 v11, 3, v0")
        A("s_lshr_b32 s45, s21, 1")
        A("s_sub_u32 s46, 10, s57")
        A("s_lshl_b32 s45, s45, s46")
        A("s_lshl_b32 s48, s20, 14")
        A("s_lshl_b32 s46, s21, 11")
        A("s_add_u32 s48, s48, s46")
        A("s_add_u32 s48, s48, %d               ; own L2-local block" % O_EX1F)
        A("s_lshr_b32 s51, s2, 5")
        if ldr:
            A("s_getreg_b32 s42, hwreg(HW_REG_XCC_ID, 0, 3)")
            A("v_lshlrev_b32 v13, 3, v0")
            A("s_lshl_b32 s42, s42, %d" % (12 if (arr or rk) else {16: 10, 32: 11}[NC] if mc else 8))
            A("s_add_u32 s42, s42, %d               ; this die's copy of the keys" % O_LDR)
    LB("L_r")
    A("s_waitcnt lgkmcnt(0)")
    A("s_load_dword s40, s[18:19], 0        ; epoch")
    A("s_mov_b64 s[28:29], s[4:5]")
    rsetup()
    stamp(1)
    LB("L_r4")
    psetup()
    for i in range(NC // 16): A(f"buffer_load_dwordx4 v[{16+4*i}:{19+4*i}], v14, s[32:35], s42 offen offset:{1024*i}")
    if arr or rk: A("buffer_load_dword v24, v13, s[32:35], s42 offen offset:2048")
    A("s_cmp_eq_u32 s58, 1")
    A("s_cbranch_scc1 L_rr")
    A("v_mov_b32 v8, 0")
    A("s_mov_b32 s49, 0")
    LB("L_fwait")
    if fsleep: A(f"s_sleep {fsleep}")
    A(f"ds_read_b32 v9, v8 offset:{L_FLAG}")
    A("s_add_u32 s49, s49, 1")
    A("s_cmp_ge_u32 s49, %d" % SPIN)
    A("s_waitcnt lgkmcnt(0)")
    A("v_cmp_eq_u32 vcc, 0, v9")
    A("s_cbranch_scc1 L_fok")
    A("s_cbranch_vccnz L_fwait")
    LB("L_fok")
    idload()
    A("s_add_u32 s40, s40, 8")
    A("s_cmp_eq_u32 s57, 1")
    A("s_cbranch_scc1 L_lead")
    if SF - RF: A(f"s_sleep {SF - RF}")
    A("s_branch L_sp0")
    LB("L_rr")
    idload()
    LB("L_sp0")
    if RF: A(f"s_sleep {RF}")
    stamp(2)
    A("s_mov_b32 s49, 0")
    if sib is not None:
        A(f"s_getreg_b32 s41, hwreg(HW_REG_HW_ID, {8 + sib}, 1)")
        A(f"s_mul_i32 s46, s41, {64*(NC-1)}")
        A("s_add_u32 s46, s46, s42")
        A("s_lshl_b32 s41, s41, 7")
        A("s_sub_u32 s41, 64, s41")
    else: A("s_mov_b32 s46, s42")
    LB("L_spoll")
    if ssl: A(f"s_sleep {ssl}")
    A("s_load_dwordx16 s[76:91], s[18:19], s46")
    A("s_add_u32 s46, s46, %s               ; the scalar cache keeps what it has seen: another copy next time" % ("64" if sib is None else "s41"))
    A("s_add_u32 s49, s49, 1")
    A(f"s_cmp_gt_u32 s49, {NSP}")
    A("s_cbranch_scc1 L_ip0")
    A("s_waitcnt lgkmcnt(0)")
    A("s_xor_b32 s43, s77, s40")
    for i in range(1, 8):
        A(f"s_xor_b32 s44, s{77+2*i}, s40")
        A("s_or_b32 s43, s43, s44")
    A("s_cbranch_scc1 L_spoll")
    stamp(3)
    if stamps: A("s_mov_b32 s59, s49")
    A("s_mov_b32 exec_lo, 0x01010101")
    A("s_mov_b32 exec_hi, 0x01010101")
    for i in range(8):
        A(f"v_mov_b32 v6, s{76+2*i}")
        A("s_lshl_b64 exec, exec, 1" if i < 7 else "s_mov_b64 exec, -1")
    A("s_branch L_sok")
    LB("L_lead")
    if FK:
        A("s_mov_b32 s49, 0")
        LB("L_fw2")
        if fsleep: A(f"s_sleep {fsleep}")
        A(f"ds_read_b32 v9, v8 offset:{L_FLAG + 4}")
        A("s_add_u32 s49, s49, 1")
        A("s_cmp_ge_u32 s49, %d" % SPIN)
        A("s_waitcnt lgkmcnt(0)")
        A("v_cmp_eq_u32 vcc, 0, v9")
        A("s_cbranch_scc1 L_fo2")
        A("s_cbranch_vccnz L_fw2")
        LB("L_fo2")
    if LF0 is not None:
        A(f"s_cmp_eq_u32 s22, {PERM[0]}")
        A("s_cbranch_scc1 L_lf0")
        A(f"s_sleep {LF - LF0}")
        LB("L_lf0")
        A(f"s_sleep {LF0}")
    elif LF: A(f"s_sleep {LF}")
    stamp(2)
    LB("L_ip0")
    A("s_waitcnt lgkmcnt(0)")
    A("s_mov_b32 s49, 0")
    if not is0: A("s_branch L_ipl")
    LB("L_ipoll")
    if IS: A(f"s_sleep {IS}")
    if not is0: LB("L_ipl")
    A(f"buffer_load_dwordx2 v[8:9], v12, s[32:35], s47 offen sc1")
    LB("L_ichk")
    A("s_add_u32 s49, s49, 1")
    A("s_cmp_ge_u32 s49, %d" % SPIN)
    A(f"s_waitcnt vmcnt(0)")
    A(f"v_cmp_ne_u32 vcc, s40, v9")
    A("s_cbranch_scc1 L_iok")
    A("s_cbranch_vccnz L_ipoll")
    LB("L_iok")
    stamp(3)
    if stamps: A("s_mov_b32 s59, s49")
    A("v_max_u32_dpp v8, v8, v8 row_ror:8 row_mask:0xf bank_mask:0xf")
    A("v_mov_b32 v9, v8")
    if ldr:
        A("v_mov_b32 v7, s40")
        A("s_nop 0")
    else:
        A("s_mov_b32 m0, %d" % L_XS)
        A("s_cmp_eq_u32 s57, 1")
    A("v_permlane16_swap_b32 v8, v9")
    A("v_max_u32 v8, v8, v9")
    A("v_mov_b32 v9, v8")
    A("s_nop 1")
    A("v_permlane32_swap_b32 v8, v9")
    A("v_max_u32 v6, v8, v9")
    if ldr:
        if rk:
            A("v_mov_b32 v8, 0")
            A("buffer_store_dword v8, off, s[32:35], s42 offset:2048")
        if mc:
            for i in range(NC // 8): A(f"buffer_store_dwordx2 v[6:7], v13, s[32:35], s42 offen offset:{512*i}")
        else:
            A("s_mov_b64 exec, 0xff")
            A("buffer_store_dwordx2 v[6:7], v13, s[32:35], s42 offen")
            A("s_mov_b64 exec, -1")
        if xpf:
            A("v_and_b32 v15, 31, v6")
            A("v_xor_b32 v15, 31, v15")
            A("v_lshl_add_u32 v15, v4, 5, v15")
            A("v_lshlrev_b32 v15, 11, v15")
            A("v_lshl_add_u32 v15, v11, 7, v15")
            A("buffer_load_dword v32, v15, s[28:31], 0 offen")
            A("buffer_load_dword v33, v15, s[28:31], 0 offen offset:1024")
        LB("L_sok")
        A("s_mov_b32 m0, %d" % L_XS)
        A("s_cmp_eq_u32 s57, 1")
    A("v_and_b32 v10, 31, v6")
    A("v_xor_b32 v10, 31, v10")
    A("v_lshl_add_u32 v10, v4, 5, v10       ; row")
    A("v_lshlrev_b32 v10, 11, v10")
    A("v_lshl_add_u32 v10, v11, 4, v10      ; + chunk*16")
    for i in range(8):
        if i == 4: A("s_cbranch_scc1 L_dmadone")
        A(f"buffer_load_dwordx4 v10, s[28:31], s45 offen{xpol} lds")
        if i < 7:
            A("s_mov_b32 m0, %d" % (L_XS + 1024*(i+1)))
            A("v_add_u32 v10, 128, v10")
    LB("L_dmadone")
    if not early_id: idload()
    pto = "s48" if pt else "s56"
    if not pt: A("s_mov_b32 s56, 0x40000000")
    A(f"buffer_load_dwordx4 v[24:27], v14, s[32:35], {pto} offen {ptp}")
    A(f"buffer_load_dwordx4 v[28:31], v14, s[32:35], {pto} offen offset:1024 {ptp}")
    A("s_barrier                            ; BX")
    A("v_readlane_b32 s55, v6, s51")
    A("s_and_b32 s46, s2, 31")
    A("s_and_b32 s54, s55, 31")
    A("s_xor_b32 s54, s54, 31")
    A("s_cmp_eq_u32 s54, s46")
    A("s_cselect_b32 s56, 0x40000000, s53")
    if ldr:
        A("s_waitcnt vmcnt(10)")
        A("s_cmp_eq_u32 s57, 0")
        A("s_cbranch_scc1 L_idw")
        A("s_waitcnt vmcnt(6)")
        LB("L_idw")
        idconv()
    def idstore():
        A(f"buffer_store_dwordx4 v[{IDR}:{IDR+3}], v14, s[36:39], s56 offen{outpol}")
        A(f"buffer_store_dwordx4 v[{IDR+4}:{IDR+7}], v14, s[36:39], s56 offen offset:1024{outpol}")
    if ids == 'bx': idstore()
    A("v_lshrrev_b32 v7, 5, v0")
    A("v_bfe_u32 v8, v0, 4, 1")
    A("v_lshl_add_u32 v7, v8, 1, v7         ; e")
    A("v_lshl_add_u32 v7, v4, 2, v7         ; 4*pos + e")
    A("s_lshl_b32 s45, s51, 5")
    A("s_add_u32 s45, s45, s54")
    A("s_lshl_b32 s45, s45, 5")
    A("s_add_u32 s45, s45, s46")
    A("s_lshl_b32 s45, s45, 5")
    A("v_add_u32 v7, s45, v7")
    A("v_lshlrev_b32 v7, 1, v7")
    A("buffer_load_ushort v9, v7, s[28:31], 0 offen")
    A(f"s_waitcnt vmcnt({5 if ids == 'bx' else 3})")
    A("s_barrier                            ; B2")
    stamp(4)
    if not early_id:
        A("s_waitcnt vmcnt(3)")
        idconv()
    A("s_lshr_b32 s44, s55, 16")
    A("s_xor_b32 s45, s44, 0xffff")
    A("s_and_b32 s44, s44, 0x7fff")
    A("s_cmp_lt_i32 s55, 0")
    A("s_cselect_b32 s44, s44, s45")
    A("s_lshl_b32 s44, s44, 16              ; r")
    A("v_mov_b32 v10, 0xbfb8aa3b")
    A("v_mul_f32 v10, s44, v10")
    A("v_exp_f32 v10, v10")
    A("s_and_b32 s41, s40, 0xff")
    A("v_add_f32 v10, 1.0, v10")
    A("v_rcp_f32 v10, v10")
    if ids == 'b2': idstore()
    A("s_barrier                            ; B3")
    if ids == 'b3':
        if idd: A(f"s_sleep {idd}")
        idstore()
    if not early_id:
        A(f"buffer_store_dwordx4 v[{IDR}:{IDR+3}], v14, s[36:39], s56 offen{outpol}")
        A(f"buffer_store_dwordx4 v[{IDR+4}:{IDR+7}], v14, s[36:39], s56 offen offset:1024{outpol}")
    A("v_cvt_pk_bf16_f32 v10, v10, v10")
    A("v_and_b32 v10, 0xffff0000, v10       ; sigmoid")
    A("s_mul_i32 s46, s2, %d" % X2S)
    A("s_add_u32 s46, s46, %d" % O_EX2)
    A("s_add_u32 s47, s46, 4096")
    A("s_mov_b32 s49, 0")
    A("s_mov_b32 s44, 0x00ff00ff")
    A("s_mov_b32 s45, 0x00ff00ff")
    A("s_waitcnt vmcnt(%d)" % (2 if ids in ('b2', 'b3') else 0))
    A("v_lshlrev_b32 v9, 16, v9             ; x")
    if arr:
        A("v_and_b32 v13, 31, v0")
        A("v_lshlrev_b32 v13, 2, v13")
        A("v_mov_b32 v12, s40")
        A("s_lshl_b32 s43, s23, 2")
        A("s_add_u32 s43, s43, s42")
        A("s_mov_b64 exec, 1")
    if mx: A("v_mov_b32 v13, 0")
    if rk:
        A("v_mov_b32 v12, 1")
        A("s_mov_b64 exec, 1")
    A("s_barrier                            ; B4")
    if rk:
        A("buffer_atomic_add v12, off, s[32:35], s42 offset:2048 sc0")
        A("s_mov_b64 exec, -1")
    if arr:
        A("buffer_store_dword v12, off, s[32:35], s43 offset:2048")
        A("s_mov_b64 exec, -1")
    if not b4: A("s_barrier")
    stamp(5)
    if ids == 'b4': idstore()
    if X20 is not None:
        A(f"s_cmp_eq_u32 s22, {PERM[0]}")
        A("s_cbranch_scc1 L_x20")
        A(f"s_sleep {x2d - X20}")
        LB("L_x20")
        if X20: A(f"s_sleep {X20}")
    elif rk:
        A("s_waitcnt vmcnt(0)")
        A("v_readfirstlane_b32 s43, v12")
        stamp(4)
        A("s_min_u32 s43, s43, 31")
        if stamps: A("s_mov_b32 s59, s43")
        A(f"s_mul_i32 s43, s43, {rk[1]}")
        A("s_lshr_b32 s43, s43, 4")
        A(f"s_sub_i32 s43, {rk[0]}, s43")
        A(f"s_max_i32 s43, s43, {rk[2]}")
        if len(rk) > 3: A(f"s_min_i32 s43, s43, {rk[3]}")
        LB("L_rk")
        A("s_sleep 1")
        A("s_sub_u32 s43, s43, 1")
        A("s_cmp_gt_i32 s43, 0")
        A("s_cbranch_scc1 L_rk")
    elif arr:
        LB("L_arr")
        if len(arr) > 2 and arr[2]: A(f"s_sleep {arr[2]}")
        A("buffer_load_dword v15, v13, s[32:35], s42 offen offset:2048 sc1")
        A("s_add_u32 s49, s49, 1")
        A(f"s_cmp_ge_u32 s49, {arr[0]}")
        A("s_waitcnt vmcnt(0)")
        A("v_cmp_ne_u32 vcc, s40, v15")
        A("s_cbranch_scc1 L_aok")
        A("s_cbranch_vccnz L_arr")
        LB("L_aok")
        if stamps: A("s_mov_b32 s59, s49")
        A("s_mov_b32 s49, 0")
        if arr[1]: A(f"s_sleep {arr[1]}")
        stamp(4)
    elif x2d: A(f"s_sleep {x2d}")
    if mx:
        MS = 76 if stamps else 60
        def ld(i):
            so = "s46" if i < 4 else "s47"
            A(f"buffer_load_dwordx4 v[{32+4*i}:{35+4*i}], v14, s[32:35], {so} offen offset:{(i%4)*1024} sc1")
        def chk(i):
            b = 32 + 4*i
            for r in range(b, b+4): A(f"v_xor_b32 v{r}, s41, v{r}")
            A(f"v_or3_b32 v15, v{b}, v{b+1}, v{b+2}")
            A(f"v_or_b32 v15, v15, v{b+3}")
            A(f"v_cmp_ne_u32_sdwa s[{MS+2*i}:{MS+2*i+1}], v15, v13 src0_sel:BYTE_0 src1_sel:DWORD")
        def anyleft():
            A(f"s_or_b64 s[42:43], s[{MS}:{MS+1}], s[{MS+2}:{MS+3}]")
            for i in range(2, 7): A(f"s_or_b64 s[42:43], s[42:43], s[{MS+2*i}:{MS+2*i+1}]")
        for i in range(7): ld(i)
        A("s_mov_b32 s49, 1")
        for i in range(7):
            A(f"s_waitcnt vmcnt({6-i})")
            chk(i)
            if i == 1: A("v_pk_add_f32 v[16:17], v[32:33], v[36:37]"); A("v_pk_add_f32 v[18:19], v[34:35], v[38:39]")
            if i >= 2: A(f"v_pk_add_f32 v[16:17], v[16:17], v[{32+4*i}:{33+4*i}]"); A(f"v_pk_add_f32 v[18:19], v[18:19], v[{34+4*i}:{35+4*i}]")
        anyleft()
        A("s_cbranch_scc0 L_x2ok")
        LB("L_x2poll")
        if x2s: A(f"s_sleep {x2s}")
        for i in range(7):
            A(f"s_mov_b64 exec, s[{MS+2*i}:{MS+2*i+1}]")
            A(f"s_cbranch_execz L_x2l{i}")
            ld(i)
            LB(f"L_x2l{i}")
        A("s_add_u32 s49, s49, 1")
        A("s_waitcnt vmcnt(0)")
        for i in range(7):
            A(f"s_mov_b64 exec, s[{MS+2*i}:{MS+2*i+1}]")
            A(f"s_cbranch_execz L_x2c{i}")
            chk(i)
            LB(f"L_x2c{i}")
        A("s_mov_b64 exec, -1")
        anyleft()
        A("s_cbranch_scc0 L_x2sum")
        A("s_cmp_lt_u32 s49, %d" % SPIN)
        A("s_cbranch_scc1 L_x2poll")
        LB("L_x2sum")
        A("v_pk_add_f32 v[16:17], v[32:33], v[36:37]"); A("v_pk_add_f32 v[18:19], v[34:35], v[38:39]")
        for i in range(2, 7):
            A(f"v_pk_add_f32 v[16:17], v[16:17], v[{32+4*i}:{33+4*i}]"); A(f"v_pk_add_f32 v[18:19], v[18:19], v[{34+4*i}:{35+4*i}]")
        A("s_nop 0")
    else:
        LB("L_x2poll")
        for i in range(7):
            so = "s46" if i < 4 else "s47"
            A(f"buffer_load_dwordx4 v[{32+4*i}:{35+4*i}], v14, s[32:35], {so} offen offset:{(i%4)*1024} sc1")
        A("s_add_u32 s49, s49, 1")
        for i in range(7):
            A(f"s_waitcnt vmcnt({6-i})")
            b = 32 + 4*i
            for r in range(b, b+4): A(f"v_xor_b32 v{r}, s41, v{r}")
            if i == 0:
                A(f"v_or3_b32 v15, v{b}, v{b+1}, v{b+2}")
                A(f"v_or_b32 v15, v15, v{b+3}")
            else:
                A(f"v_or3_b32 v15, v15, v{b}, v{b+1}")
                A(f"v_or3_b32 v15, v15, v{b+2}, v{b+3}")
                src = 32 if i == 1 else 16
                A(f"v_pk_add_f32 v[16:17], v[{src}:{src+1}], v[{b}:{b+1}]")
                A(f"v_pk_add_f32 v[18:19], v[{src+2}:{src+3}], v[{b+2}:{b+3}]")
        A("v_and_b32 v15, 0xff, v15")
        A("v_cmp_ne_u32 vcc, 0, v15")
        A("s_cbranch_vccz L_x2ok")
        if x2s: A(f"s_sleep {x2s}")
        A("s_cmp_lt_u32 s49, %d" % SPIN)
        A("s_cbranch_scc1 L_x2poll")
    LB("L_x2ok")
    stamp(6)
    A("v_permlane32_swap_b32 v16, v17")
    A("v_permlane32_swap_b32 v18, v19")
    A("v_add_f32 v16, v16, v17")
    A("v_add_f32 v18, v18, v19")
    A("s_nop 1")
    A("v_permlane16_swap_b32 v16, v18")
    A("v_add_f32 v16, v16, v18")
    A("s_nop 1")
    A("v_add_f32_dpp v16, v16, v16 row_ror:8 row_mask:0xf bank_mask:0xf")
    A("s_mov_b64 exec, s[44:45]")
    A("v_cvt_pk_bf16_f32 v16, v16, v16")
    A("v_and_b32 v16, 0xffff0000, v16       ; y")
    A("v_mul_f32 v16, v16, v10")
    A("v_cvt_pk_bf16_f32 v16, v16, v16")
    A("v_and_b32 v16, 0xffff0000, v16       ; y*sigmoid")
    A("v_fma_f32 v16, v9, 0, v16            ; upd = x*0 + y")
    A("v_add_f32 v16, v9, v16")
    A("v_cvt_pk_bf16_f32 v16, v16, v16")
    A(f"buffer_store_short v16, v7, s[36:39], 0 offen{finpol}")
    A(f"s_cmp_lg_u32 s2, {epw}")
    A("s_cbranch_scc1 L_noep")
    A("v_mov_b32 v18, s40")
    A("s_mov_b64 exec, 1")
    A(f"buffer_store_dword v18, off, s[32:35], 0 {eppol}")
    LB("L_noep")
    stamp(7)
    LB("L_fin")
    if stamps:
        import diag
        if dg: diag.epilogue(A, LB, dg, nwg=256, invalid=())
        elif gamp: diag.gamp(A, LB, gamp)
        else:
            A("s_barrier")
            diag.dump(A, LB)
    LB("L_end")
    A("s_endpgm")
    L.extend(slow)
    body = "\n".join(L)
    pad = ".p2align 12\n.fill 832, 4, 0xbf800000            ; the kernel starts a 4 KB page (instruction prefetch stops at page ends)\n" if align else ""
    return f"""{HEAD}; @launch grid=(256,1,1) block=(384,1,1) lds={LDS_BYTES}
{DOC}.amdgcn_target "amdgcn-amd-amdhsa--gfx950"
.text
.globl {KN}
{pad}.p2align 8
.type {KN},@function
{KN}:
{body}
.section .rodata,"a"
.p2align 6
.amdhsa_kernel {KN}
  .amdhsa_next_free_vgpr 160
  .amdhsa_next_free_sgpr 96
  .amdhsa_accum_offset 160
  .amdhsa_group_segment_fixed_size 0
  .amdhsa_kernarg_size 64
  .amdhsa_user_sgpr_count 2
  .amdhsa_user_sgpr_kernarg_segment_ptr 1
  .amdhsa_system_sgpr_workgroup_id_x 1
  .amdhsa_float_denorm_mode_32 3
.end_amdhsa_kernel
"""
if __name__ == "__main__":
    import sys, json
    kw = json.loads(sys.argv[2]) if len(sys.argv) > 2 else {}
    open(sys.argv[1] if len(sys.argv) > 1 else "standalone__moe_arch_mod__sampling.s", "w").write(gen(**kw))
```

```python
KN = "standalone__moe_arch_mod__sampling_kernel"
HEAD = open("standalone__moe_arch_mod__sampling.s.ref").read().split("; Override launch")[0]

O_IDX = 0x1000
O_LDR = 0x12000
O_EX1F = 0x20000
O_EX2 = 0x100000
O_EX1 = 0x300000
WS_REC = 0x500000
L_XS = 0
L_RED = 8192
L_HB = 16384
L_KEY = 17408
L_FLAG = 17408 + 32
LDS_BYTES = 17408 + 64
SPIN = 40000

DOC = """; MoD sampling block: route (argmax of x.w_r per batch), SwiGLU FFN on the 8 selected rows, residual update.
"""

def gen(pol="nt", xpol="", D=11, DI=6, D3=8, D3W=12, BX=7, BX3=8, DX=32, LS=8, NF=12, PK=3, FS=38, fsleep=1,
        outpol="sc1", finpol="", x1pol="", x2d=27, PERM=(7,0,1,2,4,5,6,3), align=True, prog=False, early_id=True,
        stamps=False, dg=None, gamp=None, cst1=True, lag0=0, MAP="B", DUP0=True, X2S=8192, nob5=False, mx=False, x2s=0, b4=True, rlag=0, IS=6, ipf=0, FS0=None, X20=None, late2=0, late3=0, D0=None, pace=None, pace3=None, DT=None, em=1, ldr=True, NSP=None, ssl=1, hold=None, mc=True, SF=28, NC=32, lid='pre', lw=None, D3B=None, hx=False, D3X=None, R3=1, wg=None, NLD=2, LF=0, RF=0, CW=0, lp=1, lps=5, NR=1, FA=1, full=False, rpol='sc1', LBR=16, nodup=False, nr0=False, PK3=None, KP=4, LF0=None, sib=None, xr=False, x1ld='sc1', pt=True, x1f=None, ptp='', skip=False, dum=False, ids='bx', idd=0, FK=16, arr=None, rk=None, xpf=False, is0=False, eppol='', epw=193, idl=False, ptl=False, chk2=False, DWA=None):
    if gamp or dg: stamps = True
    if NSP is None: NSP = NC - 1
    L = []
    def A(s): L.append("  " + s)
    def LB(s): L.append(s + ":")
    def stamp(i):
        if stamps: A(f"s_memrealtime s[{60+2*i}:{61+2*i}]")
    sp = lambda p: (" " + p) if p else ""
    pol, xpol, outpol, finpol, x1pol = map(sp, (pol, xpol, outpol, finpol, x1pol))
    REPS = 64 * LS
    XR = 80
    RAW = 16; FR = 80; XB = 96; ACC = 112; W2 = 128
    F2 = 40; HA = 72
    IDR = 40
    def raw(s, i): return RAW + 16*s + 2*i
    def frag(s, j): return (FR if s == 0 else RAW + 16*(s-1)) + 4*j
    def raw2(s, i): return W2 + 16*s + 2*i
    def frag2(s, j): return F2 + 16*s + 4*j
    def perm_pair(rawf, fragf, s, p):
        for e in range(2):
            A(f"v_perm_b32 v{fragf(s,2*e)+p}, v{rawf(s,2*p+1)+e}, v{rawf(s,2*p)+e}, s42")
            A(f"v_perm_b32 v{fragf(s,2*e+1)+p}, v{rawf(s,2*p+1)+e}, v{rawf(s,2*p)+e}, s43")
    def perms(rawf, fragf, s):
        for p in range(4): perm_pair(rawf, fragf, s, p)
    def w1load(n):
        s, i = divmod(n, 8)
        A(f"buffer_load_dwordx2 v[{raw(s,i)}:{raw(s,i)+1}], v3, s[24:27], s44 offen{pol}")
        A("s_addk_i32 s44, 7168" if i < 7 else "s_add_u32 s44, s44, %d" % (25*7168))
    def w2load(n):
        s, i = divmod(n, 8)
        p, b = divmod(i, 2)
        row = 2*s + (p >> 1) + 8*(p & 1) + 4*b
        A("s_add_u32 s47, s53, %d" % (row*2048))
        A(f"buffer_load_dwordx2 v[{raw2(s,i)}:{raw2(s,i)+1}], v10, s[28:31], s47 offen{pol}")

    if lag0:
        A("s_and_b32 s3, s2, 7")
        A("s_cmp_lg_u32 s3, 0")
        A("s_cbranch_scc1 L_nolag")
        A(f"s_sleep {lag0}")
        LB("L_nolag")
    stamp(0)
    A("s_cmp_ge_u32 s2, 256")
    A("s_cbranch_scc1 L_exit")
    A("s_load_dwordx16 s[4:19], s[0:1], 0")
    A("v_lshrrev_b32 v1, 6, v0")
    A("v_and_b32 v0, 63, v0                 ; lane")
    A("v_readfirstlane_b32 s3, v1           ; wave")
    A("s_lshl_b32 s22, s2, 2")
    A("s_lshr_b32 s22, 0x%x, s22" % sum(v << (4*i) for i, v in enumerate(PERM)))
    A("s_and_b32 s22, s22, 7")
    A("s_lshr_b32 s23, s2, 3")
    A("s_lshr_b32 s44, s23, 2")
    A("s_mul_i32 s45, s22, 6")
    A("s_add_u32 s45, s45, s44")
    A("s_add_u32 s44, s45, 4")
    A("s_mul_i32 s44, s44, 37")
    A("s_lshr_b32 s44, s44, 8")
    A("s_add_u32 s20, s45, s44")
    A("s_lshl_b32 s44, s22, 3")
    A("s_add_u32 s44, s44, 3")
    A("s_min_u32 s44, s44, 55")
    A("s_cmp_ge_u32 s23, 24")
    A("s_cselect_b32 s20, s44, s20")
    A("s_cselect_b32 s57, 1, 0")
    A("s_cselect_b32 s21, 7, 3")
    A("s_and_b32 s21, s21, s23              ; part")
    A(f"s_cmp_ge_u32 s23, {24 + NLD}")
    A("s_cselect_b32 s58, 1, 0")
    A("s_mov_b32 s27, 0x20000")
    A("s_cmp_lt_u32 s3, 4")
    A("s_cbranch_scc1 L_c")
    A("s_mov_b32 s30, 524288")
    A("s_mov_b32 s31, 0x20000")
    A("v_lshlrev_b32 v14, 4, v0             ; lane*16")
    A("s_cmp_eq_u32 s58, 1")
    A("s_cbranch_scc1 L_rt")
    A("s_cmp_eq_u32 s3, 4")
    A("s_cbranch_scc1 L_r")
    LB("L_exit")
    A("s_endpgm")
    LB("L_rt")
    A("s_setprio 3")
    A(f"s_mul_i32 s52, s22, {8 - NLD}")
    A("s_add_u32 s52, s52, s21")
    A("s_lshl_b32 s52, s52, 1")
    A("s_add_u32 s52, s52, s3")
    A(f"s_sub_u32 s52, s52, {4 + 2*NLD}")
    A("s_and_b32 s52, s52, 63")
    A("s_lshl_b32 s44, s52, 13")
    A("s_add_u32 s45, s44, 4096")
    A("s_movk_i32 s26, 2048")
    A("s_waitcnt lgkmcnt(0)")
    A("s_mov_b64 s[28:29], s[4:5]")
    A("s_mov_b64 s[24:25], s[6:7]")
    A("s_load_dword s40, s[18:19], 0        ; epoch")
    A(f"buffer_load_dwordx4 v[16:19], v14, s[24:27], 0 offen")
    A(f"buffer_load_dwordx4 v[20:23], v14, s[24:27], 0 offen offset:1024")
    for i in range(8):
        A(f"buffer_load_dwordx4 v[{XR+4*i}:{XR+4*i+3}], v14, s[28:31], {'s44' if i < 4 else 's45'} offen offset:{(i%4)*1024}{xpol}")
    A("s_barrier                            ; B0")
    A("s_branch L_route")
    LB("L_c")
    A("v_mov_b32 v4, 0")
    if FK:
        A("v_mov_b32 v5, 0")
        A(f"ds_write_b64 v4, v[4:5] offset:{L_FLAG}")
    else: A(f"ds_write_b32 v4, v4 offset:{L_FLAG}")
    A("s_mov_b32 s26, 7340032")
    A("v_lshrrev_b32 v1, 4, v0              ; g")
    A("v_and_b32 v2, 15, v0                 ; n")
    A("v_mul_u32_u24 v3, %d, v1" % (8*7168))
    A("v_lshl_add_u32 v3, v2, 3, v3         ; voffset")
    A("s_lshr_b32 s44, s21, 1")
    A("s_lshl_b32 s44, s44, 2")
    A("s_add_u32 s44, s44, s3")
    A("s_lshr_b32 s45, %d, s57" % (128*7168))
    A("s_mul_i32 s44, s44, s45")
    A("s_lshl_b32 s45, s20, 7")
    A("s_add_u32 s44, s44, s45              ; soffset")
    A("s_bitcmp1_b32 s21, 0")
    A("s_waitcnt lgkmcnt(0)")
    A("s_cselect_b64 s[24:25], s[10:11], s[8:9]")
    A("s_cmp_eq_u32 s58, 0")
    A("s_cbranch_scc1 L_nb0")
    A("s_barrier")
    LB("L_nb0")
    if not cst1: stamp(1)
    for n in range(DI): w1load(n)
    A("s_load_dword s40, s[18:19], 0        ; epoch")
    if stamps:
        A("s_getreg_b32 s59, hwreg(HW_REG_HW_ID)")
    A("s_mov_b64 s[32:33], s[18:19]")
    A("s_mov_b32 s34, %d" % WS_REC)
    A("s_mov_b32 s35, 0x20000")
    A("s_mov_b32 s42, 0x05040100")
    A("s_mov_b32 s43, 0x07060302")
    A("v_and_b32 v8, 7, v0")
    A("v_lshl_add_u32 v13, v1, 3, v8")
    A("v_lshlrev_b32 v13, 4, v13")
    A("s_lshl_b32 s45, s3, 11")
    A("v_add_u32 v4, s45, v13")
    A("s_lshr_b32 s45, s45, s57")
    A("v_add_u32 v5, s45, v13")
    A("v_lshlrev_b32 v6, 3, v0")
    A("s_lshl_b32 s45, s3, 9")
    A("v_add_u32 v6, s45, v6                ; w*512 + lane*8")
    A("v_lshrrev_b32 v7, 1, v0")
    A("v_lshlrev_b32 v7, 4, v7")
    A("v_and_b32 v9, 1, v0")
    A("v_lshl_add_u32 v7, v9, 2, v7")
    A("s_lshr_b32 s45, s3, 1")
    A("s_lshl_b32 s45, s45, 9")
    A("s_and_b32 s46, s3, 1")
    A("s_lshl_b32 s46, s46, 3")
    A("s_add_u32 s45, s45, s46")
    A("v_add_u32 v7, s45, v7")
    A("s_mov_b64 s[28:29], s[12:13]")
    A("s_mov_b32 s30, 7340032")
    A("s_mov_b32 s31, 0x20000")
    A("v_lshlrev_b32 v10, 15, v1            ; g*16*2048")
    A("v_lshl_add_u32 v10, v2, 3, v10")
    A("v_lshrrev_b32 v11, 3, v2")
    A("v_lshl_add_u32 v11, v1, 7, v11       ; 4g*32 + (n>>3)")
    A("v_mul_u32_u24 v11, %d, v11" % X2S)
    A("v_lshl_add_u32 v11, v8, 4, v11       ; + (n&7)*16")
    A("s_lshl_b32 s53, s21, 2")
    A("s_lshr_b32 s53, s53, s57")
    A("s_add_u32 s53, s53, s3")
    A("s_lshr_b32 s45, s3, 1")
    A("s_and_b32 s45, s45, s57")
    A("s_lshl_b32 s45, s45, 30")
    A("v_or_b32 v10, s45, v10")
    A("v_or_b32 v11, s45, v11")
    A("s_mul_i32 s52, s53, %d" % (2*X2S))
    A("s_lshl_b32 s46, s20, 7")
    A("s_add_u32 s52, s52, s46")
    A("s_add_u32 s52, s52, %d" % O_EX2)
    A("s_lshl_b32 s53, s53, 7")
    A("s_lshl_b32 s46, s20, 17              ; tile*64*2048")
    A("s_add_u32 s53, s53, s46")
    A("s_lshl_b32 s45, s20, 14")
    A("s_lshl_b32 s46, s21, 11")
    A("s_add_u32 s45, s45, %d               ; group base" % O_EX1F)
    A("s_add_u32 s46, s46, s45")
    A("s_mov_b32 s48, 0xffffff00")
    A("s_mov_b32 s50, 0xbfb8aa3b            ; -log2(e)")
    A("s_mov_b32 s51, 0xbfb8aa3b")
    A("s_mov_b32 s49, 0")
    A("s_getreg_b32 s54, hwreg(HW_REG_XCC_ID, 0, 3)")
    A("v_mov_b32 v12, 1")
    if not D0: A("v_cmp_eq_u32 vcc, s57, v12")
    A("s_cmp_eq_u32 s58, 1")
    A("s_cbranch_scc1 L_cb")

    slow = []; st = {}
    def cpath(NS, sfx, DD, DW, bx):
        NL = 8*NS
        done = 0
        landed = 0
        if NS == 2: A("s_barrier")
        lt = late2 if NS == 4 else late3
        if D0 and NS == 4:
            A(f"s_cmp_eq_u32 s22, {PERM[0]}")
            A("s_cselect_b64 vcc, -1, 0")
        landed0 = 1
        for n in range(DI, NL + 16 - lt):
            dn = min(DD, DI + (n - DI + 1) * (R3 if NS == 2 else 1) // 2) if n < NL else DW
            if n >= NL + bx:
                if n == NL + bx:
                    A("s_barrier")
                    if NS == 2:
                        LB("L_bx"); st["done"] = done
                dn = DX
                if wg is not None and NS == 4 and n == NL + bx: dn = bx + wg + 1
            if NS == 2 and hold is not None:
                if n == DI + hold: A("s_barrier                            ; " + ("BX: the keys and the selected rows are in the queue" if hx else "B0c: the first look at the scores is in the queue"))
                if D3B and DI + hold <= n < NL: dn = D3B
                if D3X and n >= NL: dn = D3X
            if DT and NS == 4 and DT[0] <= n < NL + bx: dn = min(DT[1], DD + (n - DT[0] + 1) * DT[2] // 2)
            pc = pace if NS == 4 else pace3
            if pc and DI < n < NL + bx:
                dn = pc[2]
                if (n - DI) % pc[0] == 0 or pc[0] == 1: A(f"s_sleep {pc[1]}")
            if D0 and NS == 4 and n > DI + 1 and n < NL + bx:
                d0 = min(D0[0] + (n & 1), DI + (n - DI + 1) * D0[1] // 2)
                if n >= NL: d0 = dn = max(dn, 12)
                if n - dn + 1 > landed0 and d0 > dn:
                    A(f"s_cbranch_vccnz L_d0_{n}")
                    A(f"s_waitcnt vmcnt({dn-1})")
                    LB(f"L_d0_{n}")
                    landed0 = n - dn + 1
                dn = max(dn, d0)
            if n - dn + 1 > landed:
                A(f"s_waitcnt vmcnt({dn-1})")
                landed = n - dn + 1
            if n == DI and cst1: stamp(1)
            if n == LBR and NS == 4:
                assert done == 0
                if D0:
                    A("s_cmp_eq_u32 s57, 1")
                    A("s_cbranch_scc1 L_cc")
                else: A("s_cbranch_vccnz L_cc")
            if n < NL: w1load(n)
            else: w2load(n - NL)
            if n == DI and NS == 4:
                A(f"ds_write_b32 v12, v12 offset:{L_FLAG - 1}")
            if n == NL - 1: stamp(2)
            while done < NS and 8*done + 8 <= landed:
                perms(raw, frag, done); done += 1
        A("s_waitcnt lgkmcnt(0)")
        A("s_add_u32 s40, s40, 8                ; tag32")
        A("s_and_b32 s41, s40, 0xff")
        A("s_and_b32 s55, s40, 0xf8")
        A("s_or_b32 s54, s54, s55")
        A("v_mov_b32 v9, s41")
        A("v_mov_b32 v12, s54")
        if skip:
            A("s_bitcmp1_b32 s21, 0")
            A("s_cselect_b64 s[22:23], -1, 0")
        if NL + 16 - lt <= NL + bx: A("s_barrier                            ; BX")
        while done < NS - (1 if em and NS == 4 else 0):
            A(f"s_waitcnt vmcnt({NL + 16 - lt - 8*done - 8})")
            perms(raw, frag, done); done += 1
        A("s_barrier")
        stamp(3)
        for n in range(16 - lt, 16): w2load(n)
        for s in range(NS):
            A(f"ds_read_b128 v[{XB+4*s}:{XB+4*s+3}], v5 offset:{L_XS + 512*s}")
        for s in range(NS):
            late = done < NS
            if late and em == 1 and s == NS - 1:
                A("s_waitcnt vmcnt(16)")
                perms(raw, frag, NS - 1)
            if late and em == 2 and s == NS - 2: A("s_waitcnt vmcnt(16)")
            A(f"s_waitcnt lgkmcnt({NS-1-s})")
            for j in range(4):
                c = "0" if s == 0 else f"v[{ACC+4*j}:{ACC+4*j+3}]"
                A(f"v_mfma_f32_16x16x32_bf16 v[{ACC+4*j}:{ACC+4*j+3}], v[{frag(s,j)}:{frag(s,j)+3}], v[{XB+4*s}:{XB+4*s+3}], {c}")
                if late and em == 2 and s == NS - 2: perm_pair(raw, frag, NS - 1, j)
        A("s_mov_b32 exec_lo, 0x00ff00ff")
        A("s_mov_b32 exec_hi, 0x00ff00ff")
        A("s_nop 2")
        for j in range(4):
            A(f"ds_write_b128 v4, v[{ACC+4*j}:{ACC+4*j+3}] offset:{L_RED + 512*j}")
        A("s_mov_b64 exec, -1")
        A("s_waitcnt lgkmcnt(0)")
        A("s_barrier                            ; B3")
        for w in range(2):
            A(f"ds_read2st64_b64 v[{16+4*w}:{19+4*w}], v6 offset0:{(L_RED + 4096*w)//512} offset1:{(L_RED + 4096*w + 2048)//512}")
        A("s_waitcnt lgkmcnt(1)")
        A("v_pk_add_f32 v[16:17], v[16:17], v[18:19]")
        A("s_waitcnt lgkmcnt(0)")
        A("v_pk_add_f32 v[20:21], v[20:21], v[22:23]")
        A("v_pk_add_f32 v[16:17], v[16:17], v[20:21]")
        A("v_and_or_b32 v16, v16, s48, v12")
        A("v_and_or_b32 v17, v17, s48, v12")
        A(f"buffer_store_dwordx2 v[16:17], v6, s[32:35], s46 offen{x1pol}")
        stamp(4)
        if skip:
            A("v_and_b32 v24, s48, v16")
            A("v_and_b32 v25, s48, v17")
        NB = 4 if NS == 4 else 8
        pairs = [(s, p) for s in range(2) for p in range(4)]
        k = 0
        PKx = PK3 if (NS == 2 and PK3 is not None) else PK
        if KP:
            A(f"s_waitcnt vmcnt({17 - 2*KP})")
            while k < KP: perm_pair(raw2, frag2, *pairs[k]); k += 1
        if prog:
            while 17 - 2*(k+1) >= PK:
                A(f"s_waitcnt vmcnt({17 - 2*(k+1)})")
                perm_pair(raw2, frag2, *pairs[k]); k += 1
        if not prog or 17 - 2*k > PK: A(f"s_waitcnt vmcnt({PKx})")
        def polls(x1ld=x1ld):
            if skip:
                for b in range(1, NB):
                    A(f"s_xor_b32 s47, s46, {b*2048}")
                    A(f"buffer_load_dwordx2 v[{24+2*b}:{25+2*b}], v6, s[32:35], s47 offen {x1ld}")
                if dum: A("buffer_load_dword v15, v6, s[32:35], s34 offen")
                return
            for b in range(NB):
                if b and b % 2 == 0: A(f"s_add_u32 s47, s45, {b*2048}")
                A(f"buffer_load_dwordx2 v[{24+2*b}:{25+2*b}], v6, s[32:35], {'s45' if b < 2 else 's47'} offen offset:{(b%2)*2048} {x1ld}")
        if prog:
            polls()
            while k < 8:
                A(f"s_waitcnt vmcnt({NB + 17 - 2*(k+1)})")
                perm_pair(raw2, frag2, *pairs[k]); k += 1
            A(f"s_branch L_x1chk{sfx}")
        if xr: stamp(1)
        if x1f is not None:
            if xr: stamp(7)
            polls(x1f)
            A(f"s_branch L_x1chk{sfx}")
        LB("L_x1poll" + sfx)
        if xr: stamp(7)
        polls()
        LB("L_x1chk" + sfx)
        A("s_add_u32 s49, s49, 1")
        A(f"s_waitcnt vmcnt({1 if dum else 0})")
        r0 = 26 if skip else 24
        for r in range(r0, 24+2*NB): A(f"v_xor_b32 v{r}, s54, v{r}")
        A(f"v_or3_b32 v8, v{r0}, v{r0+1}, v{r0+2}")
        for r in range(r0+3, 24+2*NB-1, 2): A(f"v_or3_b32 v8, v8, v{r}, v{r+1}")
        A(f"v_or_b32 v8, v8, v{24+2*NB-1}")
        A("v_and_b32 v8, 0xff, v8")
        A("v_cmp_ne_u32 vcc, 0, v8")
        A("s_cbranch_vccnz L_x1no" + sfx)
        LB("L_x1ok" + sfx)
        stamp(5)
        if NB == 8:
            A("v_pk_add_f32 v[24:25], v[24:25], v[32:33]")
            A("v_pk_add_f32 v[26:27], v[26:27], v[34:35]")
            A("v_pk_add_f32 v[28:29], v[28:29], v[36:37]")
            A("v_pk_add_f32 v[30:31], v[30:31], v[38:39]")
        S = []
        def B(s): S.append("  " + s)
        S.append("L_x1no" + sfx + ":")
        B(f"s_cmp_lt_u32 s49, {NF}")
        B("s_cbranch_scc1 L_x1poll" + sfx)
        B("v_lshlrev_b32 v8, 1, v6")
        B("s_lshl_b32 s56, s20, 15")
        B("s_add_u32 s56, s56, %d" % O_EX1)
        B(f"s_cmp_lg_u32 s49, {NF}")
        B("s_cbranch_scc1 L_x1ns" + sfx)
        B("v_and_b32 v96, s48, v16")
        B("v_and_b32 v97, s48, v17")
        B("v_mov_b32 v98, s40")
        B("v_mov_b32 v99, s40")
        B("s_lshl_b32 s47, s21, 12")
        B("s_add_u32 s47, s47, s56")
        B("buffer_store_dwordx4 v[96:99], v8, s[32:35], s47 offen sc1")
        B("s_waitcnt vmcnt(0)")
        S.append("L_x1ns" + sfx + ":")
        if skip:
            B("s_lshl_b32 s47, s21, 12")
            B("s_add_u32 s56, s56, s47")
        for b in range(NB):
            if skip:
                B(f"s_xor_b32 s47, s56, {b*4096}")
                B(f"buffer_load_dwordx4 v[{96+4*b}:{99+4*b}], v8, s[32:35], s47 offen sc1")
            else:
                B(f"buffer_load_dwordx4 v[{96+4*b}:{99+4*b}], v8, s[32:35], s56 offen sc1")
                B("s_add_u32 s56, s56, 4096")
        B("s_waitcnt vmcnt(0)")
        B("v_mov_b32 v8, 0")
        for b in range(NB):
            B(f"v_xor_b32 v{98+4*b}, s40, v{98+4*b}")
            B(f"v_xor_b32 v{99+4*b}, s40, v{99+4*b}")
            B(f"v_or3_b32 v8, v8, v{98+4*b}, v{99+4*b}")
            B(f"v_mov_b32 v{24+2*b}, v{96+4*b}")
            B(f"v_mov_b32 v{25+2*b}, v{97+4*b}")
        B("v_cmp_ne_u32 vcc, 0, v8")
        B("s_cbranch_vccz L_x1ok" + sfx)
        B("s_cmp_lt_u32 s49, %d" % SPIN)
        B("s_cbranch_scc1 L_x1poll" + sfx)
        B("s_branch L_x1ok" + sfx)
        slow.extend(S)
        return k
    ka = cpath(4, "a", D, DWA or D, BX)
    LB("L_h")
    A("v_pk_add_f32 v[24:25], v[24:25], v[28:29]   ; gate")
    A("v_pk_add_f32 v[26:27], v[26:27], v[30:31]   ; up")
    if skip:
        A("v_cvt_pk_bf16_f32 v18, v24, v25")
        A("v_cvt_pk_bf16_f32 v19, v26, v27")
        A("v_cndmask_b32 v8, v18, v19, s[22:23]  ; gate")
        A("v_cndmask_b32 v12, v19, v18, s[22:23] ; up")
    else:
        A("v_cvt_pk_bf16_f32 v8, v24, v25")
        A("v_cvt_pk_bf16_f32 v12, v26, v27")
    A("v_lshlrev_b32 v18, 16, v8")
    A("v_and_b32 v19, 0xffff0000, v8")
    A("v_pk_mul_f32 v[20:21], v[18:19], s[50:51]")
    A("v_exp_f32 v20, v20")
    A("v_exp_f32 v21, v21")
    A("v_lshlrev_b32 v14, 16, v12")
    A("v_pk_add_f32 v[20:21], v[20:21], 1.0 op_sel_hi:[1,0]")
    A("v_rcp_f32 v20, v20")
    A("v_rcp_f32 v21, v21")
    A("v_and_b32 v15, 0xffff0000, v12")
    A("v_pk_mul_f32 v[18:19], v[18:19], v[20:21]")
    A("v_cvt_pk_bf16_f32 v8, v18, v19        ; silu")
    A("v_lshlrev_b32 v18, 16, v8")
    A("v_and_b32 v19, 0xffff0000, v8")
    A("v_pk_mul_f32 v[18:19], v[18:19], v[14:15]")
    A("v_cvt_pk_bf16_f32 v8, v18, v19        ; h")
    A(f"ds_write_b32 v7, v8 offset:{L_HB}")
    for k in range(ka, 8): perm_pair(raw2, frag2, *divmod(k, 4))
    A("s_waitcnt lgkmcnt(0)")
    A("s_barrier                            ; B4")
    for s in range(2):
        A(f"ds_read_b128 v[{HA+4*s}:{HA+4*s+3}], v13 offset:{L_HB + 512*s}")
    for s in range(2):
        A(f"s_waitcnt lgkmcnt({1-s})")
        for j in range(4):
            c = "0" if s == 0 else f"v[{ACC+4*j}:{ACC+4*j+3}]"
            A(f"v_mfma_f32_16x16x32_bf16 v[{ACC+4*j}:{ACC+4*j+3}], v[{HA+4*s}:{HA+4*s+3}], v[{frag2(s,j)}:{frag2(s,j)+3}], {c}")
    A("s_mov_b32 exec_lo, -1")
    A("s_mov_b32 exec_hi, 0")
    A("s_nop 2")
    for r in range(4):
        for j in range(4):
            A(f"v_and_or_b32 v{20+4*r+j}, v{ACC+4*j+r}, s48, v9")
        A(f"buffer_store_dwordx4 v[{20+4*r}:{23+4*r}], v11, s[32:35], s52 offen sc1")
        if r < 3: A("s_add_u32 s52, s52, %d" % (32*X2S))
    stamp(6)
    if not (nob5 or b4): A("s_waitcnt vmcnt(0)")
    if not b4: A("s_barrier                            ; B5")
    if not xr: stamp(7)
    if stamps: A("s_branch L_fin")
    else: A("s_endpgm")

    def rsetup():
        A("s_mov_b64 s[32:33], s[18:19]")
        A("s_mov_b32 s34, %d" % WS_REC)
        A("s_mov_b32 s35, 0x20000")
        A("s_mov_b64 s[36:37], s[14:15]")
        A("s_mov_b32 s38, 524288")
        A("s_mov_b32 s39, 0x20000")
        A("v_and_b32 v4, 7, v0")
        if stamps:
            A("s_mov_b32 s59, 0")
            A("s_mov_b32 s49, 0")
    LB("L_route")
    rsetup()
    A("s_and_b32 s45, s52, 7")
    A("s_lshl_b32 s46, s45, 3")
    A("s_lshr_b32 s52, s52, 3               ; batch")
    A("s_add_u32 s46, s46, s52")
    A("s_mul_i32 s46, s46, %d" % LS)
    A("s_add_u32 s46, s46, %d               ; slot" % O_IDX)
    A("s_lshl_b32 s45, s45, 2")
    if NR > 1 or full: A("v_mul_u32_u24 v5, %d, v0             ; replica offset" % (8 if full else REPS))
    if ipf:
        A("s_mov_b64 exec, 0xff")
        A("buffer_load_dword v13, v5, s[32:35], s46 offen sc1")
        A("s_mov_b64 exec, -1")
    A("v_lshrrev_b32 v10, 5, v0")
    A("v_bfe_u32 v11, v0, 4, 1")
    A("v_lshl_add_u32 v10, v11, 1, v10")
    A("v_add_u32 v10, s45, v10")
    A("v_xor_b32 v10, 31, v10")
    for t in range(4):
        for hlf in range(2):
            A(f"s_waitcnt vmcnt({7 - 2*t - hlf + (1 if ipf else 0)})")
            for k in range(4):
                c = "0" if (hlf == 0 and k == 0) else f"v{6+t}"
                A(f"v_dot2_f32_bf16 v{6+t}, v{XR+8*t+4*hlf+k}, v{16+4*hlf+k}, {c}")
    A("s_waitcnt lgkmcnt(0)")
    A("s_add_u32 s40, s40, 8")
    A("s_nop 0")
    A("v_permlane32_swap_b32 v6, v7")
    A("v_permlane32_swap_b32 v8, v9")
    A("v_add_f32 v6, v6, v7")
    A("v_add_f32 v8, v8, v9")
    A("s_nop 1")
    A("v_permlane16_swap_b32 v6, v8")
    A("v_add_f32 v6, v6, v8")
    A("s_nop 1")
    A("v_add_f32_dpp v6, v6, v6 quad_perm:[1,0,3,2] row_mask:0xf bank_mask:0xf")
    A("s_nop 1")
    A("v_add_f32_dpp v6, v6, v6 quad_perm:[2,3,0,1] row_mask:0xf bank_mask:0xf")
    A("s_nop 1")
    A("v_add_f32_dpp v6, v6, v6 row_half_mirror row_mask:0xf bank_mask:0xf")
    A("s_nop 1")
    A("v_add_f32_dpp v6, v6, v6 row_mirror row_mask:0xf bank_mask:0xf")
    A("v_cvt_pk_bf16_f32 v7, v6, v6")
    A("v_and_b32 v7, 0xffff0000, v7          ; r (bf16)")
    A("v_ashrrev_i32 v6, 31, v7")
    A("v_or_b32 v6, 0x80000000, v6")
    A("v_xor_b32 v6, v6, v7")
    A("v_cmp_o_f32 vcc, v7, v7")
    A("v_and_b32 v6, 0xffff0000, v6")
    A("s_nop 0")
    A("v_cndmask_b32 v6, 0, v6, vcc")
    A("v_or_b32 v6, v10, v6")
    A("v_mov_b32 v7, v6")
    A("s_nop 1")
    A("v_permlane16_swap_b32 v6, v7")
    A("v_max_u32 v6, v6, v7")
    A("v_mov_b32 v7, v6")
    A("s_nop 1")
    A("v_permlane32_swap_b32 v6, v7")
    A("v_max_u32 v6, v6, v7")
    A("v_mov_b32 v7, s40")
    if rlag: A(f"s_sleep {rlag}")
    A("s_mov_b64 exec, 0x%x" % ((1 << (LS // 8 if full else NR)) - 1))
    if NR > 1 or full: A(f"buffer_store_dwordx2 v[6:7], v5, s[32:35], s46 offen {rpol}")
    else: A(f"buffer_store_dwordx2 v[6:7], off, s[32:35], s46 {rpol}")
    A("s_mov_b64 exec, -1")
    A("s_barrier                            ; B0b")
    stamp(1)
    A("s_setprio 0")
    A("s_cmp_eq_u32 s3, 4")
    A("s_cbranch_scc1 L_r4")
    A("s_endpgm")
    if align: L.append(".p2align 12" if not (D0 or pace) else ".p2align 6")
    LB("L_cb")
    kb = cpath(2, "b", D3, D3W, BX3)
    assert ka == kb
    A("s_branch L_h")
    LB("L_cc")
    if LBR == 16: stamp(2)
    for n in range(CW): w2load(n)
    for d in range(st["done"]):
        A(f"s_waitcnt vmcnt({LBR - 8 - 8*d + CW})")
        perms(raw, frag, d)
    if FK:
        A(f"s_waitcnt vmcnt({LBR - FK + CW})")
        A(f"ds_write_b32 v12, v12 offset:{L_FLAG + 3}")
    A("s_barrier                            ; BX")
    for n in range(LBR, 16): w1load(n)
    if LBR < 16: stamp(2)
    for n in range(CW, BX3): w2load(n)
    A("s_branch L_bx")

    def idload():
        A(f"buffer_load_dwordx4 v[{IDR}:{IDR+3}], v14, s[28:31], s53 offen{xpol}")
        A(f"buffer_load_dwordx4 v[{IDR+4}:{IDR+7}], v14, s[28:31], s53 offen offset:1024{xpol}")
    def idconv():
        for r in range(IDR, IDR+8):
            A(f"v_lshlrev_b32 v16, 16, v{r}")
            A(f"v_and_b32 v17, 0xffff0000, v{r}")
            A("v_pk_fma_f32 v[16:17], v[16:17], 0, v[16:17] op_sel_hi:[1,0,1]")
            A(f"v_cvt_pk_bf16_f32 v{r}, v16, v17    ; x + x*0")
    def psetup():
        A("s_lshl_b32 s53, s2, 11")
        A("v_mul_u32_u24 v12, %d, v0            ; poll offset" % LS)
        if NR == 1: A("s_movk_i32 s47, %d                 ; the scores" % O_IDX)
        else:
            if NR < 8:
                A(f"s_and_b32 s47, s22, {NR - 1}")
                A("s_mul_i32 s47, s47, %d" % REPS)
            else: A("s_mul_i32 s47, s22, %d" % REPS)
            A("s_add_u32 s47, s47, %d               ; this group's replica" % O_IDX)
        A("v_lshrrev_b32 v11, 3, v0")
        A("s_lshr_b32 s45, s21, 1")
        A("s_sub_u32 s46, 10, s57")
        A("s_lshl_b32 s45, s45, s46")
        A("s_lshl_b32 s48, s20, 14")
        A("s_lshl_b32 s46, s21, 11")
        A("s_add_u32 s48, s48, s46")
        A("s_add_u32 s48, s48, %d               ; own L2-local block" % O_EX1F)
        A("s_lshr_b32 s51, s2, 5")
        if ldr:
            A("s_getreg_b32 s42, hwreg(HW_REG_XCC_ID, 0, 3)")
            A("v_lshlrev_b32 v13, 3, v0")
            A("s_lshl_b32 s42, s42, %d" % (12 if (arr or rk) else {16: 10, 32: 11}[NC] if mc else 8))
            A("s_add_u32 s42, s42, %d               ; this die's copy of the keys" % O_LDR)
    LB("L_r")
    A("s_waitcnt lgkmcnt(0)")
    A("s_load_dword s40, s[18:19], 0        ; epoch")
    A("s_mov_b64 s[28:29], s[4:5]")
    rsetup()
    stamp(1)
    LB("L_r4")
    psetup()
    if ptl:
        A("s_cmp_gt_u32 s57, s58")
        A("s_cbranch_scc0 L_npt")
    for i in range(NC // 16): A(f"buffer_load_dwordx4 v[{16+4*i}:{19+4*i}], v14, s[32:35], s42 offen offset:{1024*i}")
    if ptl: LB("L_npt")
    if arr or rk: A("buffer_load_dword v24, v13, s[32:35], s42 offen offset:2048")
    A("s_cmp_eq_u32 s58, 1")
    A("s_cbranch_scc1 L_rr")
    A("v_mov_b32 v8, 0")
    A("s_mov_b32 s49, 0")
    LB("L_fwait")
    if fsleep: A(f"s_sleep {fsleep}")
    A(f"ds_read_b32 v9, v8 offset:{L_FLAG}")
    A("s_add_u32 s49, s49, 1")
    A("s_cmp_ge_u32 s49, %d" % SPIN)
    A("s_waitcnt lgkmcnt(0)")
    A("v_cmp_eq_u32 vcc, 0, v9")
    A("s_cbranch_scc1 L_fok")
    A("s_cbranch_vccnz L_fwait")
    LB("L_fok")
    if not idl: idload()
    A("s_add_u32 s40, s40, 8")
    A("s_cmp_eq_u32 s57, 1")
    A("s_cbranch_scc1 L_lead")
    if SF - RF: A(f"s_sleep {SF - RF}")
    if not idl: A("s_branch L_sp0")
    LB("L_rr")
    idload()
    LB("L_sp0")
    if RF: A(f"s_sleep {RF}")
    stamp(2)
    A("s_mov_b32 s49, 0")
    if sib is not None:
        A(f"s_getreg_b32 s41, hwreg(HW_REG_HW_ID, {8 + sib}, 1)")
        A(f"s_mul_i32 s46, s41, {64*(NC-1)}")
        A("s_add_u32 s46, s46, s42")
        A("s_lshl_b32 s41, s41, 7")
        A("s_sub_u32 s41, 64, s41")
    else: A("s_mov_b32 s46, s42")
    LB("L_spoll")
    if ssl: A(f"s_sleep {ssl}")
    A("s_load_dwordx16 s[76:91], s[18:19], s46")
    A("s_add_u32 s46, s46, %s               ; the scalar cache keeps what it has seen: another copy next time" % ("64" if sib is None else "s41"))
    A("s_add_u32 s49, s49, 1")
    A(f"s_cmp_gt_u32 s49, {NSP}")
    A("s_cbranch_scc1 L_ip0")
    A("s_waitcnt lgkmcnt(0)")
    A("s_xor_b32 s43, s77, s40")
    for i in ((3, 4, 7) if chk2 else range(1, 8)):
        A(f"s_xor_b32 s44, s{77+2*i}, s40")
        A("s_or_b32 s43, s43, s44")
    A("s_cbranch_scc1 L_spoll")
    stamp(3)
    if stamps: A("s_mov_b32 s59, s49")
    A("s_mov_b32 exec_lo, 0x01010101")
    A("s_mov_b32 exec_hi, 0x01010101")
    for i in range(8):
        A(f"v_mov_b32 v6, s{76+2*i}")
        A("s_lshl_b64 exec, exec, 1" if i < 7 else "s_mov_b64 exec, -1")
    A("s_branch L_sok")
    LB("L_lead")
    if idl: idload()
    if FK:
        A("s_mov_b32 s49, 0")
        LB("L_fw2")
        if fsleep: A(f"s_sleep {fsleep}")
        A(f"ds_read_b32 v9, v8 offset:{L_FLAG + 4}")
        A("s_add_u32 s49, s49, 1")
        A("s_cmp_ge_u32 s49, %d" % SPIN)
        A("s_waitcnt lgkmcnt(0)")
        A("v_cmp_eq_u32 vcc, 0, v9")
        A("s_cbranch_scc1 L_fo2")
        A("s_cbranch_vccnz L_fw2")
        LB("L_fo2")
    if LF0 is not None:
        A(f"s_cmp_eq_u32 s22, {PERM[0]}")
        A("s_cbranch_scc1 L_lf0")
        A(f"s_sleep {LF - LF0}")
        LB("L_lf0")
        A(f"s_sleep {LF0}")
    elif LF: A(f"s_sleep {LF}")
    stamp(2)
    LB("L_ip0")
    A("s_waitcnt lgkmcnt(0)")
    A("s_mov_b32 s49, 0")
    if not is0: A("s_branch L_ipl")
    LB("L_ipoll")
    if IS: A(f"s_sleep {IS}")
    if not is0: LB("L_ipl")
    A(f"buffer_load_dwordx2 v[8:9], v12, s[32:35], s47 offen sc1")
    LB("L_ichk")
    A("s_add_u32 s49, s49, 1")
    A("s_cmp_ge_u32 s49, %d" % SPIN)
    A(f"s_waitcnt vmcnt(0)")
    A(f"v_cmp_ne_u32 vcc, s40, v9")
    A("s_cbranch_scc1 L_iok")
    A("s_cbranch_vccnz L_ipoll")
    LB("L_iok")
    stamp(3)
    if stamps: A("s_mov_b32 s59, s49")
    A("v_max_u32_dpp v8, v8, v8 row_ror:8 row_mask:0xf bank_mask:0xf")
    A("v_mov_b32 v9, v8")
    if ldr:
        A("v_mov_b32 v7, s40")
        A("s_nop 0")
    else:
        A("s_mov_b32 m0, %d" % L_XS)
        A("s_cmp_eq_u32 s57, 1")
    A("v_permlane16_swap_b32 v8, v9")
    A("v_max_u32 v8, v8, v9")
    A("v_mov_b32 v9, v8")
    A("s_nop 1")
    A("v_permlane32_swap_b32 v8, v9")
    A("v_max_u32 v6, v8, v9")
    if ldr:
        if rk:
            A("v_mov_b32 v8, 0")
            A("buffer_store_dword v8, off, s[32:35], s42 offset:2048")
        if mc:
            for i in range(NC // 8): A(f"buffer_store_dwordx2 v[6:7], v13, s[32:35], s42 offen offset:{512*i}")
        else:
            A("s_mov_b64 exec, 0xff")
            A("buffer_store_dwordx2 v[6:7], v13, s[32:35], s42 offen")
            A("s_mov_b64 exec, -1")
        if xpf:
            A("v_and_b32 v15, 31, v6")
            A("v_xor_b32 v15, 31, v15")
            A("v_lshl_add_u32 v15, v4, 5, v15")
            A("v_lshlrev_b32 v15, 11, v15")
            A("v_lshl_add_u32 v15, v11, 7, v15")
            A("buffer_load_dword v32, v15, s[28:31], 0 offen")
            A("buffer_load_dword v33, v15, s[28:31], 0 offen offset:1024")
        LB("L_sok")
        A("s_mov_b32 m0, %d" % L_XS)
        A("s_cmp_eq_u32 s57, 1")
    A("v_and_b32 v10, 31, v6")
    A("v_xor_b32 v10, 31, v10")
    A("v_lshl_add_u32 v10, v4, 5, v10       ; row")
    A("v_lshlrev_b32 v10, 11, v10")
    A("v_lshl_add_u32 v10, v11, 4, v10      ; + chunk*16")
    for i in range(8):
        if i == 4: A("s_cbranch_scc1 L_dmadone")
        A(f"buffer_load_dwordx4 v10, s[28:31], s45 offen{xpol} lds")
        if i < 7:
            A("s_mov_b32 m0, %d" % (L_XS + 1024*(i+1)))
            A("v_add_u32 v10, 128, v10")
    LB("L_dmadone")
    if not early_id: idload()
    pto = "s48" if pt else "s56"
    if not pt: A("s_mov_b32 s56, 0x40000000")
    A(f"buffer_load_dwordx4 v[24:27], v14, s[32:35], {pto} offen {ptp}")
    A(f"buffer_load_dwordx4 v[28:31], v14, s[32:35], {pto} offen offset:1024 {ptp}")
    A("s_barrier                            ; BX")
    A("v_readlane_b32 s55, v6, s51")
    A("s_and_b32 s46, s2, 31")
    A("s_and_b32 s54, s55, 31")
    A("s_xor_b32 s54, s54, 31")
    A("s_cmp_eq_u32 s54, s46")
    A("s_cselect_b32 s56, 0x40000000, s53")
    if ldr:
        A("s_waitcnt vmcnt(10)")
        A("s_cmp_eq_u32 s57, 0")
        A("s_cbranch_scc1 L_idw")
        A("s_waitcnt vmcnt(6)")
        LB("L_idw")
        idconv()
    def idstore():
        A(f"buffer_store_dwordx4 v[{IDR}:{IDR+3}], v14, s[36:39], s56 offen{outpol}")
        A(f"buffer_store_dwordx4 v[{IDR+4}:{IDR+7}], v14, s[36:39], s56 offen offset:1024{outpol}")
    if ids == 'bx': idstore()
    A("v_lshrrev_b32 v7, 5, v0")
    A("v_bfe_u32 v8, v0, 4, 1")
    A("v_lshl_add_u32 v7, v8, 1, v7         ; e")
    A("v_lshl_add_u32 v7, v4, 2, v7         ; 4*pos + e")
    A("s_lshl_b32 s45, s51, 5")
    A("s_add_u32 s45, s45, s54")
    A("s_lshl_b32 s45, s45, 5")
    A("s_add_u32 s45, s45, s46")
    A("s_lshl_b32 s45, s45, 5")
    A("v_add_u32 v7, s45, v7")
    A("v_lshlrev_b32 v7, 1, v7")
    A("buffer_load_ushort v9, v7, s[28:31], 0 offen")
    A(f"s_waitcnt vmcnt({5 if ids == 'bx' else 3})")
    A("s_barrier                            ; B2")
    stamp(4)
    if not early_id:
        A("s_waitcnt vmcnt(3)")
        idconv()
    A("s_lshr_b32 s44, s55, 16")
    A("s_xor_b32 s45, s44, 0xffff")
    A("s_and_b32 s44, s44, 0x7fff")
    A("s_cmp_lt_i32 s55, 0")
    A("s_cselect_b32 s44, s44, s45")
    A("s_lshl_b32 s44, s44, 16              ; r")
    A("v_mov_b32 v10, 0xbfb8aa3b")
    A("v_mul_f32 v10, s44, v10")
    A("v_exp_f32 v10, v10")
    A("s_and_b32 s41, s40, 0xff")
    A("v_add_f32 v10, 1.0, v10")
    A("v_rcp_f32 v10, v10")
    if ids == 'b2': idstore()
    A("s_barrier                            ; B3")
    if ids == 'b3':
        if idd: A(f"s_sleep {idd}")
        idstore()
    if not early_id:
        A(f"buffer_store_dwordx4 v[{IDR}:{IDR+3}], v14, s[36:39], s56 offen{outpol}")
        A(f"buffer_store_dwordx4 v[{IDR+4}:{IDR+7}], v14, s[36:39], s56 offen offset:1024{outpol}")
    A("v_cvt_pk_bf16_f32 v10, v10, v10")
    A("v_and_b32 v10, 0xffff0000, v10       ; sigmoid")
    A("s_mul_i32 s46, s2, %d" % X2S)
    A("s_add_u32 s46, s46, %d" % O_EX2)
    A("s_add_u32 s47, s46, 4096")
    A("s_mov_b32 s49, 0")
    A("s_mov_b32 s44, 0x00ff00ff")
    A("s_mov_b32 s45, 0x00ff00ff")
    A("s_waitcnt vmcnt(%d)" % (2 if ids in ('b2', 'b3') else 0))
    A("v_lshlrev_b32 v9, 16, v9             ; x")
    if arr:
        A("v_and_b32 v13, 31, v0")
        A("v_lshlrev_b32 v13, 2, v13")
        A("v_mov_b32 v12, s40")
        A("s_lshl_b32 s43, s23, 2")
        A("s_add_u32 s43, s43, s42")
        A("s_mov_b64 exec, 1")
    if mx: A("v_mov_b32 v13, 0")
    if rk:
        A("v_mov_b32 v12, 1")
        A("s_mov_b64 exec, 1")
    A("s_barrier                            ; B4")
    if rk:
        A("buffer_atomic_add v12, off, s[32:35], s42 offset:2048 sc0")
        A("s_mov_b64 exec, -1")
    if arr:
        A("buffer_store_dword v12, off, s[32:35], s43 offset:2048")
        A("s_mov_b64 exec, -1")
    if not b4: A("s_barrier")
    stamp(5)
    if ids == 'b4': idstore()
    if X20 is not None:
        A(f"s_cmp_eq_u32 s22, {PERM[0]}")
        A("s_cbranch_scc1 L_x20")
        A(f"s_sleep {x2d - X20}")
        LB("L_x20")
        if X20: A(f"s_sleep {X20}")
    elif rk:
        A("s_waitcnt vmcnt(0)")
        A("v_readfirstlane_b32 s43, v12")
        stamp(4)
        A("s_min_u32 s43, s43, 31")
        if stamps: A("s_mov_b32 s59, s43")
        A(f"s_mul_i32 s43, s43, {rk[1]}")
        A("s_lshr_b32 s43, s43, 4")
        A(f"s_sub_i32 s43, {rk[0]}, s43")
        A(f"s_max_i32 s43, s43, {rk[2]}")
        if len(rk) > 3: A(f"s_min_i32 s43, s43, {rk[3]}")
        LB("L_rk")
        A("s_sleep 1")
        A("s_sub_u32 s43, s43, 1")
        A("s_cmp_gt_i32 s43, 0")
        A("s_cbranch_scc1 L_rk")
    elif arr:
        LB("L_arr")
        if len(arr) > 2 and arr[2]: A(f"s_sleep {arr[2]}")
        A("buffer_load_dword v15, v13, s[32:35], s42 offen offset:2048 sc1")
        A("s_add_u32 s49, s49, 1")
        A(f"s_cmp_ge_u32 s49, {arr[0]}")
        A("s_waitcnt vmcnt(0)")
        A("v_cmp_ne_u32 vcc, s40, v15")
        A("s_cbranch_scc1 L_aok")
        A("s_cbranch_vccnz L_arr")
        LB("L_aok")
        if stamps: A("s_mov_b32 s59, s49")
        A("s_mov_b32 s49, 0")
        if arr[1]: A(f"s_sleep {arr[1]}")
        stamp(4)
    elif x2d: A(f"s_sleep {x2d}")
    if mx:
        MS = 76 if stamps else 60
        def ld(i):
            so = "s46" if i < 4 else "s47"
            A(f"buffer_load_dwordx4 v[{32+4*i}:{35+4*i}], v14, s[32:35], {so} offen offset:{(i%4)*1024} sc1")
        def chk(i):
            b = 32 + 4*i
            for r in range(b, b+4): A(f"v_xor_b32 v{r}, s41, v{r}")
            A(f"v_or3_b32 v15, v{b}, v{b+1}, v{b+2}")
            A(f"v_or_b32 v15, v15, v{b+3}")
            A(f"v_cmp_ne_u32_sdwa s[{MS+2*i}:{MS+2*i+1}], v15, v13 src0_sel:BYTE_0 src1_sel:DWORD")
        def anyleft():
            A(f"s_or_b64 s[42:43], s[{MS}:{MS+1}], s[{MS+2}:{MS+3}]")
            for i in range(2, 7): A(f"s_or_b64 s[42:43], s[42:43], s[{MS+2*i}:{MS+2*i+1}]")
        for i in range(7): ld(i)
        A("s_mov_b32 s49, 1")
        for i in range(7):
            A(f"s_waitcnt vmcnt({6-i})")
            chk(i)
            if i == 1: A("v_pk_add_f32 v[16:17], v[32:33], v[36:37]"); A("v_pk_add_f32 v[18:19], v[34:35], v[38:39]")
            if i >= 2: A(f"v_pk_add_f32 v[16:17], v[16:17], v[{32+4*i}:{33+4*i}]"); A(f"v_pk_add_f32 v[18:19], v[18:19], v[{34+4*i}:{35+4*i}]")
        anyleft()
        A("s_cbranch_scc0 L_x2ok")
        LB("L_x2poll")
        if x2s: A(f"s_sleep {x2s}")
        for i in range(7):
            A(f"s_mov_b64 exec, s[{MS+2*i}:{MS+2*i+1}]")
            A(f"s_cbranch_execz L_x2l{i}")
            ld(i)
            LB(f"L_x2l{i}")
        A("s_add_u32 s49, s49, 1")
        A("s_waitcnt vmcnt(0)")
        for i in range(7):
            A(f"s_mov_b64 exec, s[{MS+2*i}:{MS+2*i+1}]")
            A(f"s_cbranch_execz L_x2c{i}")
            chk(i)
            LB(f"L_x2c{i}")
        A("s_mov_b64 exec, -1")
        anyleft()
        A("s_cbranch_scc0 L_x2sum")
        A("s_cmp_lt_u32 s49, %d" % SPIN)
        A("s_cbranch_scc1 L_x2poll")
        LB("L_x2sum")
        A("v_pk_add_f32 v[16:17], v[32:33], v[36:37]"); A("v_pk_add_f32 v[18:19], v[34:35], v[38:39]")
        for i in range(2, 7):
            A(f"v_pk_add_f32 v[16:17], v[16:17], v[{32+4*i}:{33+4*i}]"); A(f"v_pk_add_f32 v[18:19], v[18:19], v[{34+4*i}:{35+4*i}]")
        A("s_nop 0")
    else:
        LB("L_x2poll")
        for i in range(7):
            so = "s46" if i < 4 else "s47"
            A(f"buffer_load_dwordx4 v[{32+4*i}:{35+4*i}], v14, s[32:35], {so} offen offset:{(i%4)*1024} sc1")
        A("s_add_u32 s49, s49, 1")
        for i in range(7):
            A(f"s_waitcnt vmcnt({6-i})")
            b = 32 + 4*i
            for r in range(b, b+4): A(f"v_xor_b32 v{r}, s41, v{r}")
            if i == 0:
                A(f"v_or3_b32 v15, v{b}, v{b+1}, v{b+2}")
                A(f"v_or_b32 v15, v15, v{b+3}")
            else:
                A(f"v_or3_b32 v15, v15, v{b}, v{b+1}")
                A(f"v_or3_b32 v15, v15, v{b+2}, v{b+3}")
                src = 32 if i == 1 else 16
                A(f"v_pk_add_f32 v[16:17], v[{src}:{src+1}], v[{b}:{b+1}]")
                A(f"v_pk_add_f32 v[18:19], v[{src+2}:{src+3}], v[{b+2}:{b+3}]")
        A("v_and_b32 v15, 0xff, v15")
        A("v_cmp_ne_u32 vcc, 0, v15")
        A("s_cbranch_vccz L_x2ok")
        if x2s: A(f"s_sleep {x2s}")
        A("s_cmp_lt_u32 s49, %d" % SPIN)
        A("s_cbranch_scc1 L_x2poll")
    LB("L_x2ok")
    stamp(6)
    A("v_permlane32_swap_b32 v16, v17")
    A("v_permlane32_swap_b32 v18, v19")
    A("v_add_f32 v16, v16, v17")
    A("v_add_f32 v18, v18, v19")
    A("s_nop 1")
    A("v_permlane16_swap_b32 v16, v18")
    A("v_add_f32 v16, v16, v18")
    A("s_nop 1")
    A("v_add_f32_dpp v16, v16, v16 row_ror:8 row_mask:0xf bank_mask:0xf")
    A("s_mov_b64 exec, s[44:45]")
    A("v_cvt_pk_bf16_f32 v16, v16, v16")
    A("v_and_b32 v16, 0xffff0000, v16       ; y")
    A("v_mul_f32 v16, v16, v10")
    A("v_cvt_pk_bf16_f32 v16, v16, v16")
    A("v_and_b32 v16, 0xffff0000, v16       ; y*sigmoid")
    A("v_fma_f32 v16, v9, 0, v16            ; upd = x*0 + y")
    A("v_add_f32 v16, v9, v16")
    A("v_cvt_pk_bf16_f32 v16, v16, v16")
    A(f"buffer_store_short v16, v7, s[36:39], 0 offen{finpol}")
    A(f"s_cmp_lg_u32 s2, {epw}")
    A("s_cbranch_scc1 L_noep")
    A("v_mov_b32 v18, s40")
    A("s_mov_b64 exec, 1")
    A(f"buffer_store_dword v18, off, s[32:35], 0 {eppol}")
    LB("L_noep")
    stamp(7)
    LB("L_fin")
    if stamps:
        import diag
        if dg: diag.epilogue(A, LB, dg, nwg=256, invalid=())
        elif gamp: diag.gamp(A, LB, gamp)
        else:
            A("s_barrier")
            diag.dump(A, LB)
    LB("L_end")
    A("s_endpgm")
    L.extend(slow)
    body = "\n".join(L)
    pad = ".p2align 12\n.fill 832, 4, 0xbf800000            ; the kernel starts a 4 KB page (instruction prefetch stops at page ends)\n" if align else ""
    return f"""{HEAD}; @launch grid=(256,1,1) block=(384,1,1) lds={LDS_BYTES}
{DOC}.amdgcn_target "amdgcn-amd-amdhsa--gfx950"
.text
.globl {KN}
{pad}.p2align 8
.type {KN},@function
{KN}:
{body}
.section .rodata,"a"
.p2align 6
.amdhsa_kernel {KN}
  .amdhsa_next_free_vgpr 160
  .amdhsa_next_free_sgpr 96
  .amdhsa_accum_offset 160
  .amdhsa_group_segment_fixed_size 0
  .amdhsa_kernarg_size 64
  .amdhsa_user_sgpr_count 2
  .amdhsa_user_sgpr_kernarg_segment_ptr 1
  .amdhsa_system_sgpr_workgroup_id_x 1
  .amdhsa_float_denorm_mode_32 3
.end_amdhsa_kernel
"""
if __name__ == "__main__":
    import sys, json
    kw = json.loads(sys.argv[2]) if len(sys.argv) > 2 else {}
    open(sys.argv[1] if len(sys.argv) > 1 else "standalone__moe_arch_mod__sampling.s", "w").write(gen(**kw))
```

```python
KN = "standalone__moe_arch_mod__sampling_kernel"
HEAD = open("standalone__moe_arch_mod__sampling.s.ref").read().split("; Override launch")[0]

O_IDX = 0x1000
O_LDR = 0x12000
O_EX1F = 0x20000
O_EX2 = 0x100000
O_EX1 = 0x300000
WS_REC = 0x500000
L_XS = 0
L_RED = 8192
L_HB = 16384
L_KEY = 17408
L_FLAG = 17408 + 32
LDS_BYTES = 17408 + 64
SPIN = 40000

DOC = """; MoD sampling block: route (argmax of x.w_r per batch), SwiGLU FFN on the 8 selected rows, residual update.
"""

def gen(pol="nt", xpol="", D=11, DI=6, D3=8, D3W=12, BX=7, BX3=8, DX=32, LS=8, NF=12, PK=3, FS=38, fsleep=1,
        outpol="sc1", finpol="", x1pol="", x2d=26, PERM=(7,0,1,2,4,5,6,3), align=True, prog=False, early_id=True,
        stamps=False, dg=None, gamp=None, cst1=True, lag0=0, MAP="B", DUP0=True, X2S=8192, nob5=False, mx=False, x2s=0, b4=True, rlag=0, IS=6, ipf=0, FS0=None, X20=None, late2=0, late3=0, D0=None, pace=None, pace3=None, DT=None, em=1, ldr=True, NSP=None, ssl=1, hold=None, mc=True, SF=28, NC=32, lid='pre', lw=None, D3B=None, hx=False, D3X=None, R3=1, wg=None, NLD=2, LF=0, RF=0, CW=0, lp=1, lps=5, NR=1, FA=1, full=False, rpol='sc1', LBR=16, nodup=False, nr0=False, PK3=None, KP=4, LF0=None, sib=None, xr=False, x1ld='sc1', pt=True, x1f=None, ptp='', skip=True, dum=False, ids='bx', idd=0, FK=16, arr=None, rk=None, xpf=False, is0=False, eppol='', epw=193, idl=False, ptl=False, chk2=False, DWA=None, scr=False, wb=None, r3e=0, uf=None, t2=2, t1x=True, sdwa=True, post=True, emk=2, cz=True, pre=True):
    if gamp or dg: stamps = True
    if NSP is None: NSP = NC - 1
    L = []
    def A(s): L.append("  " + s)
    def LB(s): L.append(s + ":")
    def stamp(i):
        if stamps: A(f"s_memrealtime s[{60+2*i}:{61+2*i}]")
    sp = lambda p: (" " + p) if p else ""
    pol, xpol, outpol, finpol, x1pol = map(sp, (pol, xpol, outpol, finpol, x1pol))
    REPS = 64 * LS
    XR = 80
    RAW = 16; FR = 80; XB = 96; ACC = 112; W2 = 128
    F2 = 40; HA = 72
    IDR = 40
    def raw(s, i): return RAW + 16*s + 2*i
    def frag(s, j): return (FR if s == 0 else RAW + 16*(s-1)) + 4*j
    def raw2(s, i): return W2 + 16*s + 2*i
    def frag2(s, j): return F2 + 16*s + 4*j
    def perm_pair(rawf, fragf, s, p):
        for e in range(2):
            A(f"v_perm_b32 v{fragf(s,2*e)+p}, v{rawf(s,2*p+1)+e}, v{rawf(s,2*p)+e}, s42")
            A(f"v_perm_b32 v{fragf(s,2*e+1)+p}, v{rawf(s,2*p+1)+e}, v{rawf(s,2*p)+e}, s43")
    def perms(rawf, fragf, s):
        for p in range(4): perm_pair(rawf, fragf, s, p)
    def w1load(n):
        s, i = divmod(n, 8)
        A(f"buffer_load_dwordx2 v[{raw(s,i)}:{raw(s,i)+1}], v3, s[24:27], s44 offen{pol}")
        A("s_addk_i32 s44, 7168" if i < 7 else "s_add_u32 s44, s44, %d" % (25*7168))
    def w2load(n):
        s, i = divmod(n, 8)
        p, b = divmod(i, 2)
        row = 2*s + (p >> 1) + 8*(p & 1) + 4*b
        A("s_add_u32 s47, s53, %d" % (row*2048))
        A(f"buffer_load_dwordx2 v[{raw2(s,i)}:{raw2(s,i)+1}], v10, s[28:31], s47 offen{pol}")

    if lag0:
        A("s_and_b32 s3, s2, 7")
        A("s_cmp_lg_u32 s3, 0")
        A("s_cbranch_scc1 L_nolag")
        A(f"s_sleep {lag0}")
        LB("L_nolag")
    stamp(0)
    A("s_cmp_ge_u32 s2, 256")
    A("s_cbranch_scc1 L_exit")
    A("s_load_dwordx16 s[4:19], s[0:1], 0")
    A("v_lshrrev_b32 v1, 6, v0")
    A("v_and_b32 v0, 63, v0                 ; lane")
    A("v_readfirstlane_b32 s3, v1           ; wave")
    A("s_lshl_b32 s22, s2, 2")
    A("s_lshr_b32 s22, 0x%x, s22" % sum(v << (4*i) for i, v in enumerate(PERM)))
    A("s_and_b32 s22, s22, 7")
    A("s_lshr_b32 s23, s2, 3")
    if scr:
        A("s_lshr_b32 s22, s2, 5")
        A("s_and_b32 s23, s2, 31")
    A("s_lshr_b32 s44, s23, 2")
    A("s_mul_i32 s45, s22, 6")
    A("s_add_u32 s45, s45, s44")
    A("s_add_u32 s44, s45, 4")
    A("s_mul_i32 s44, s44, 37")
    A("s_lshr_b32 s44, s44, 8")
    A("s_add_u32 s20, s45, s44")
    A("s_lshl_b32 s44, s22, 3")
    A("s_add_u32 s44, s44, 3")
    A("s_min_u32 s44, s44, 55")
    A("s_cmp_ge_u32 s23, 24")
    A("s_cselect_b32 s20, s44, s20")
    A("s_cselect_b32 s57, 1, 0")
    A("s_cselect_b32 s21, 7, 3")
    A("s_and_b32 s21, s21, s23              ; part")
    A(f"s_cmp_ge_u32 s23, {24 + NLD}")
    A("s_cselect_b32 s58, 1, 0")
    A("s_mov_b32 s27, 0x20000")
    A("s_cmp_lt_u32 s3, 4")
    A("s_cbranch_scc1 L_c")
    A("s_mov_b32 s30, 524288")
    A("s_mov_b32 s31, 0x20000")
    A("v_lshlrev_b32 v14, 4, v0             ; lane*16")
    A("s_cmp_eq_u32 s58, 1")
    A("s_cbranch_scc1 L_rt")
    A("s_cmp_eq_u32 s3, 4")
    A("s_cbranch_scc1 L_r")
    LB("L_exit")
    A("s_endpgm")
    LB("L_rt")
    A("s_setprio 3")
    A(f"s_mul_i32 s52, s22, {8 - NLD}")
    A("s_add_u32 s52, s52, s21")
    A("s_lshl_b32 s52, s52, 1")
    A("s_add_u32 s52, s52, s3")
    A(f"s_sub_u32 s52, s52, {4 + 2*NLD}")
    A("s_and_b32 s52, s52, 63")
    A("s_lshl_b32 s44, s52, 13")
    A("s_add_u32 s45, s44, 4096")
    A("s_movk_i32 s26, 2048")
    A("s_waitcnt lgkmcnt(0)")
    A("s_mov_b64 s[28:29], s[4:5]")
    A("s_mov_b64 s[24:25], s[6:7]")
    A("s_load_dword s40, s[18:19], 0        ; epoch")
    A(f"buffer_load_dwordx4 v[16:19], v14, s[24:27], 0 offen")
    A(f"buffer_load_dwordx4 v[20:23], v14, s[24:27], 0 offen offset:1024")
    for i in range(8):
        if r3e and i == 8 - 2*r3e:
            A("s_mov_b32 s45, 0x40000000")
        A(f"buffer_load_dwordx4 v[{XR+4*i}:{XR+4*i+3}], v14, s[28:31], {'s44' if i < 4 else 's45'} offen offset:{(i%4)*1024}{xpol}")
    A("s_barrier                            ; B0")
    A("s_branch L_route")
    LB("L_c")
    A("v_mov_b32 v4, 0")
    if FK and not uf:
        A("v_mov_b32 v5, 0")
        A(f"ds_write_b64 v4, v[4:5] offset:{L_FLAG}")
    else: A(f"ds_write_b32 v4, v4 offset:{L_FLAG}")
    A("s_mov_b32 s26, 7340032")
    A("v_lshrrev_b32 v1, 4, v0              ; g")
    A("v_and_b32 v2, 15, v0                 ; n")
    A("v_mul_u32_u24 v3, %d, v1" % (8*7168))
    A("v_lshl_add_u32 v3, v2, 3, v3         ; voffset")
    A("s_lshr_b32 s44, s21, 1")
    A("s_lshl_b32 s44, s44, 2")
    A("s_add_u32 s44, s44, s3")
    A("s_lshr_b32 s45, %d, s57" % (128*7168))
    A("s_mul_i32 s44, s44, s45")
    A("s_lshl_b32 s45, s20, 7")
    A("s_add_u32 s44, s44, s45              ; soffset")
    A("s_bitcmp1_b32 s21, 0")
    A("s_waitcnt lgkmcnt(0)")
    A("s_cselect_b64 s[24:25], s[10:11], s[8:9]")
    A("s_cmp_eq_u32 s58, 0")
    A("s_cbranch_scc1 L_nb0")
    A("s_barrier")
    LB("L_nb0")
    if not cst1: stamp(1)
    for n in range(DI): w1load(n)
    A("s_load_dword s40, s[18:19], 0        ; epoch")
    if stamps:
        A("s_getreg_b32 s59, hwreg(HW_REG_HW_ID)")
    A("s_mov_b64 s[32:33], s[18:19]")
    A("s_mov_b32 s34, %d" % WS_REC)
    A("s_mov_b32 s35, 0x20000")
    A("s_mov_b32 s42, 0x05040100")
    A("s_mov_b32 s43, 0x07060302")
    A("v_and_b32 v8, 7, v0")
    A("v_lshl_add_u32 v13, v1, 3, v8")
    A("v_lshlrev_b32 v13, 4, v13")
    A("s_lshl_b32 s45, s3, 11")
    A("v_add_u32 v4, s45, v13")
    A("s_lshr_b32 s45, s45, s57")
    A("v_add_u32 v5, s45, v13")
    A("v_lshlrev_b32 v6, 3, v0")
    A("s_lshl_b32 s45, s3, 9")
    A("v_add_u32 v6, s45, v6                ; w*512 + lane*8")
    A("v_lshrrev_b32 v7, 1, v0")
    A("v_lshlrev_b32 v7, 4, v7")
    A("v_and_b32 v9, 1, v0")
    A("v_lshl_add_u32 v7, v9, 2, v7")
    A("s_lshr_b32 s45, s3, 1")
    A("s_lshl_b32 s45, s45, 9")
    A("s_and_b32 s46, s3, 1")
    A("s_lshl_b32 s46, s46, 3")
    A("s_add_u32 s45, s45, s46")
    A("v_add_u32 v7, s45, v7")
    A("s_mov_b64 s[28:29], s[12:13]")
    A("s_mov_b32 s30, 7340032")
    A("s_mov_b32 s31, 0x20000")
    A("v_lshlrev_b32 v10, 15, v1            ; g*16*2048")
    A("v_lshl_add_u32 v10, v2, 3, v10")
    A("v_lshrrev_b32 v11, 3, v2")
    A("v_lshl_add_u32 v11, v1, 7, v11       ; 4g*32 + (n>>3)")
    A("v_mul_u32_u24 v11, %d, v11" % X2S)
    A("v_lshl_add_u32 v11, v8, 4, v11       ; + (n&7)*16")
    A("s_lshl_b32 s53, s21, 2")
    A("s_lshr_b32 s53, s53, s57")
    A("s_add_u32 s53, s53, s3")
    A("s_lshr_b32 s45, s3, 1")
    A("s_and_b32 s45, s45, s57")
    A("s_lshl_b32 s45, s45, 30")
    A("v_or_b32 v10, s45, v10")
    A("v_or_b32 v11, s45, v11")
    A("s_mul_i32 s52, s53, %d" % (2*X2S))
    A("s_lshl_b32 s46, s20, 7")
    A("s_add_u32 s52, s52, s46")
    A("s_add_u32 s52, s52, %d" % O_EX2)
    A("s_lshl_b32 s53, s53, 7")
    A("s_lshl_b32 s46, s20, 17              ; tile*64*2048")
    A("s_add_u32 s53, s53, s46")
    A("s_lshl_b32 s45, s20, 14")
    A("s_lshl_b32 s46, s21, 11")
    A("s_add_u32 s45, s45, %d               ; group base" % O_EX1F)
    A("s_add_u32 s46, s46, s45")
    A("s_mov_b32 s48, 0xffffff00")
    A("s_mov_b32 s50, 0xbfb8aa3b            ; -log2(e)")
    A("s_mov_b32 s51, 0xbfb8aa3b")
    A("s_mov_b32 s49, 0")
    A("s_getreg_b32 s54, hwreg(HW_REG_XCC_ID, 0, 3)")
    A("v_mov_b32 v12, 1")
    if not D0: A("v_cmp_eq_u32 vcc, s57, v12")
    A("s_cmp_eq_u32 s58, 1")
    A("s_cbranch_scc1 L_cb")

    slow = []; st = {}
    def cpath(NS, sfx, DD, DW, bx):
        NL = 8*NS
        done = 0
        landed = 0
        if NS == 2: A("s_barrier")
        lt = late2 if NS == 4 else late3
        if D0 and NS == 4:
            A(f"s_cmp_eq_u32 s22, {PERM[0]}")
            A("s_cselect_b64 vcc, -1, 0")
        landed0 = 1
        for n in range(DI, NL + 16 - lt):
            dn = min(DD, DI + (n - DI + 1) * (R3 if NS == 2 else 1) // 2) if n < NL else DW
            if n >= NL + bx:
                if n == NL + bx:
                    A("s_barrier")
                    if NS == 2:
                        LB("L_bx"); st["done"] = done
                dn = DX
                if wg is not None and NS == 4 and n == NL + bx: dn = bx + wg + 1
            if NS == 2 and hold is not None:
                if n == DI + hold: A("s_barrier                            ; " + ("BX: the keys and the selected rows are in the queue" if hx else "B0c: the first look at the scores is in the queue"))
                if D3B and DI + hold <= n < NL: dn = D3B
                if D3X and n >= NL: dn = D3X
            if DT and NS == 4 and DT[0] <= n < NL + bx: dn = min(DT[1], DD + (n - DT[0] + 1) * DT[2] // 2)
            pc = pace if NS == 4 else pace3
            if pc and DI < n < NL + bx:
                dn = pc[2]
                if (n - DI) % pc[0] == 0 or pc[0] == 1: A(f"s_sleep {pc[1]}")
            if D0 and NS == 4 and n > DI + 1 and n < NL + bx:
                d0 = min(D0[0] + (n & 1), DI + (n - DI + 1) * D0[1] // 2)
                if n >= NL: d0 = dn = max(dn, 12)
                if n - dn + 1 > landed0 and d0 > dn:
                    A(f"s_cbranch_vccnz L_d0_{n}")
                    A(f"s_waitcnt vmcnt({dn-1})")
                    LB(f"L_d0_{n}")
                    landed0 = n - dn + 1
                dn = max(dn, d0)
            if n - dn + 1 > landed:
                A(f"s_waitcnt vmcnt({dn-1})")
                landed = n - dn + 1
            if n == DI and cst1: stamp(1)
            if n == LBR and NS == 4:
                assert done == 0
                if D0:
                    A("s_cmp_eq_u32 s57, 1")
                    A("s_cbranch_scc1 L_cc")
                else: A("s_cbranch_vccnz L_cc")
            if n < NL: w1load(n)
            else: w2load(n - NL)
            if n == (uf or DI) and NS == 4:
                A(f"ds_write_b32 v12, v12 offset:{L_FLAG - 1}      ; " + ("the keys will not be long" if uf else "the first weights have landed"))
            if n == NL - 1: stamp(2)
            while done < NS and 8*done + 8 <= landed:
                perms(raw, frag, done); done += 1
        A("s_waitcnt lgkmcnt(0)")
        A("s_add_u32 s40, s40, 8                ; tag32")
        A("s_and_b32 s41, s40, 0xff")
        A("s_and_b32 s55, s40, 0xf8")
        A("s_or_b32 s54, s54, s55")
        A("v_mov_b32 v9, s41")
        A("v_mov_b32 v12, s54")
        if skip:
            A("s_bitcmp1_b32 s21, 0")
            A("s_cselect_b64 s[22:23], -1, 0")
        if pre:
            for b in range(1, 4 if NS == 4 else 8): A(f"s_xor_b32 s{75+b}, s46, {b*2048}" + ("           ; blocks of the other parts" if b == 1 else ""))
            for r in range(1, 4): A(f"s_add_u32 s{83+r}, s52, {r*32*X2S}")
        if NL + 16 - lt <= NL + bx: A("s_barrier                            ; BX")
        while done < NS - (1 if em and NS == 4 else 0):
            A(f"s_waitcnt vmcnt({NL + 16 - lt - 8*done - 8})")
            perms(raw, frag, done); done += 1
        if emk and done < NS:
            A(f"s_waitcnt vmcnt({16 + 8 - 2*emk})")
            for p in range(emk): perm_pair(raw, frag, NS - 1, p)
        A("s_barrier")
        stamp(3)
        for n in range(16 - lt, 16): w2load(n)
        for s in range(NS):
            A(f"ds_read_b128 v[{XB+4*s}:{XB+4*s+3}], v5 offset:{L_XS + 512*s}")
        for s in range(NS):
            late = done < NS
            if late and em == 1 and s == NS - 1:
                A("s_waitcnt vmcnt(16)")
                for p in range(emk, 4): perm_pair(raw, frag, NS - 1, p)
                if emk == 3: A("s_nop 0")
            if late and em == 2 and s == NS - 2: A("s_waitcnt vmcnt(16)")
            A(f"s_waitcnt lgkmcnt({NS-1-s})")
            for j in range(4):
                c = "0" if s == 0 else f"v[{ACC+4*j}:{ACC+4*j+3}]"
                A(f"v_mfma_f32_16x16x32_bf16 v[{ACC+4*j}:{ACC+4*j+3}], v[{frag(s,j)}:{frag(s,j)+3}], v[{XB+4*s}:{XB+4*s+3}], {c}")
                if late and em == 2 and s == NS - 2: perm_pair(raw, frag, NS - 1, j)
        A("s_mov_b32 exec_lo, 0x00ff00ff")
        A("s_mov_b32 exec_hi, 0x00ff00ff")
        A("s_nop 2")
        for j in range(4):
            A(f"ds_write_b128 v4, v[{ACC+4*j}:{ACC+4*j+3}] offset:{L_RED + 512*j}")
        A("s_mov_b64 exec, -1")
        A("s_waitcnt lgkmcnt(0)")
        A("s_barrier                            ; B3")
        for w in range(2):
            A(f"ds_read2st64_b64 v[{16+4*w}:{19+4*w}], v6 offset0:{(L_RED + 4096*w)//512} offset1:{(L_RED + 4096*w + 2048)//512}")
        A("s_waitcnt lgkmcnt(1)")
        A("v_pk_add_f32 v[16:17], v[16:17], v[18:19]")
        A("s_waitcnt lgkmcnt(0)")
        A("v_pk_add_f32 v[20:21], v[20:21], v[22:23]")
        A("v_pk_add_f32 v[16:17], v[16:17], v[20:21]")
        A("v_and_or_b32 v16, v16, s48, v12")
        if not t1x: A("v_and_or_b32 v17, v17, s48, v12")
        A(f"buffer_store_dwordx2 v[16:17], v6, s[32:35], s46 offen{x1pol}")
        stamp(4)
        if skip:
            A("v_and_b32 v24, s48, v16")
            A("v_mov_b32 v25, v17" if t1x else "v_and_b32 v25, s48, v17")
        NB = 4 if NS == 4 else 8
        pairs = [(s, p) for s in range(2) for p in range(4)]
        k = 0
        PKx = PK3 if (NS == 2 and PK3 is not None) else PK
        if KP and not post:
            A(f"s_waitcnt vmcnt({17 - 2*KP})")
            while k < KP: perm_pair(raw2, frag2, *pairs[k]); k += 1
        if prog:
            while 17 - 2*(k+1) >= PK:
                A(f"s_waitcnt vmcnt({17 - 2*(k+1)})")
                perm_pair(raw2, frag2, *pairs[k]); k += 1
        if not prog or 17 - 2*k > PK: A(f"s_waitcnt vmcnt({PKx})")
        def polls(x1ld=x1ld):
            if skip:
                for b in range(1, NB):
                    if not pre: A(f"s_xor_b32 s47, s46, {b*2048}")
                    A(f"buffer_load_dwordx2 v[{24+2*b}:{25+2*b}], v6, s[32:35], s{75+b if pre else 47} offen {x1ld}")
                if dum: A("buffer_load_dword v15, v6, s[32:35], s34 offen")
                return
            for b in range(NB):
                if b and b % 2 == 0: A(f"s_add_u32 s47, s45, {b*2048}")
                A(f"buffer_load_dwordx2 v[{24+2*b}:{25+2*b}], v6, s[32:35], {'s45' if b < 2 else 's47'} offen offset:{(b%2)*2048} {x1ld}")
        if prog:
            polls()
            while k < 8:
                A(f"s_waitcnt vmcnt({NB + 17 - 2*(k+1)})")
                perm_pair(raw2, frag2, *pairs[k]); k += 1
            A(f"s_branch L_x1chk{sfx}")
        if post:
            polls()
            while 17 - 2*(k+1) >= PKx: perm_pair(raw2, frag2, *pairs[k]); k += 1
            A(f"s_branch L_x1chk{sfx}")
            LB("L_x1re" + sfx)
            A(f"s_cmp_ge_u32 s49, {NF}")
            A(f"s_cbranch_scc1 L_x1no{sfx}")
        if xr: stamp(1)
        if x1f is not None:
            if xr: stamp(7)
            polls(x1f)
            A(f"s_branch L_x1chk{sfx}")
        LB("L_x1poll" + sfx)
        if xr: stamp(7)
        polls()
        LB("L_x1chk" + sfx)
        A("s_add_u32 s49, s49, 1")
        A(f"s_waitcnt vmcnt({1 if dum else 0})")
        r0 = 26 if skip else 24
        rs = list(range(r0, 24+2*NB, 2 if t1x else 1))
        for r in rs: A(f"v_xor_b32 v{r}, s54, v{r}")
        A(f"v_or3_b32 v8, v{rs[0]}, v{rs[1]}, v{rs[2]}")
        rs = rs[3:]
        while len(rs) > 1: A(f"v_or3_b32 v8, v8, v{rs[0]}, v{rs[1]}"); rs = rs[2:]
        if rs: A(f"v_or_b32 v8, v8, v{rs[0]}")
        if sdwa: A("v_cmp_ne_u32_sdwa vcc, v8, 0 src0_sel:BYTE_0 src1_sel:DWORD")
        else:
            A("v_and_b32 v8, 0xff, v8")
            A("v_cmp_ne_u32 vcc, 0, v8")
        A("s_cbranch_vccnz L_x1" + ("re" if post else "no") + sfx)
        LB("L_x1ok" + sfx)
        stamp(5)
        if NB == 8:
            A("v_pk_add_f32 v[24:25], v[24:25], v[32:33]")
            A("v_pk_add_f32 v[26:27], v[26:27], v[34:35]")
            A("v_pk_add_f32 v[28:29], v[28:29], v[36:37]")
            A("v_pk_add_f32 v[30:31], v[30:31], v[38:39]")
        S = []
        def B(s): S.append("  " + s)
        S.append("L_x1no" + sfx + ":")
        if not post:
            B(f"s_cmp_lt_u32 s49, {NF}")
            B("s_cbranch_scc1 L_x1poll" + sfx)
        B("v_lshlrev_b32 v8, 1, v6")
        B("s_lshl_b32 s56, s20, 15")
        B("s_add_u32 s56, s56, %d" % O_EX1)
        B(f"s_cmp_lg_u32 s49, {NF}")
        B("s_cbranch_scc1 L_x1ns" + sfx)
        B("v_and_b32 v96, s48, v16")
        B("v_mov_b32 v97, v17" if t1x else "v_and_b32 v97, s48, v17")
        B("v_mov_b32 v98, s40")
        B("v_mov_b32 v99, s40")
        B("s_lshl_b32 s47, s21, 12")
        B("s_add_u32 s47, s47, s56")
        B("buffer_store_dwordx4 v[96:99], v8, s[32:35], s47 offen sc1")
        B("s_waitcnt vmcnt(0)")
        S.append("L_x1ns" + sfx + ":")
        if skip:
            B("s_lshl_b32 s47, s21, 12")
            B("s_add_u32 s56, s56, s47")
        for b in range(NB):
            if skip:
                B(f"s_xor_b32 s47, s56, {b*4096}")
                B(f"buffer_load_dwordx4 v[{96+4*b}:{99+4*b}], v8, s[32:35], s47 offen sc1")
            else:
                B(f"buffer_load_dwordx4 v[{96+4*b}:{99+4*b}], v8, s[32:35], s56 offen sc1")
                B("s_add_u32 s56, s56, 4096")
        B("s_waitcnt vmcnt(0)")
        B("v_mov_b32 v8, 0")
        for b in range(NB):
            B(f"v_xor_b32 v{98+4*b}, s40, v{98+4*b}")
            B(f"v_xor_b32 v{99+4*b}, s40, v{99+4*b}")
            B(f"v_or3_b32 v8, v8, v{98+4*b}, v{99+4*b}")
            B(f"v_mov_b32 v{24+2*b}, v{96+4*b}")
            B(f"v_mov_b32 v{25+2*b}, v{97+4*b}")
        B("v_cmp_ne_u32 vcc, 0, v8")
        B("s_cbranch_vccz L_x1ok" + sfx)
        B("s_cmp_lt_u32 s49, %d" % SPIN)
        B("s_cbranch_scc1 L_x1poll" + sfx)
        B("s_branch L_x1ok" + sfx)
        slow.extend(S)
        return k
    ka = cpath(4, "a", D, DWA or D, BX)
    LB("L_h")
    A("v_pk_add_f32 v[24:25], v[24:25], v[28:29]")
    A("v_pk_add_f32 v[26:27], v[26:27], v[30:31]")
    if skip:
        A("v_cvt_pk_bf16_f32 v18, v24, v25")
        A("v_cvt_pk_bf16_f32 v19, v26, v27")
        A("v_cndmask_b32 v8, v18, v19, s[22:23]  ; gate")
        A("v_cndmask_b32 v12, v19, v18, s[22:23] ; up")
    else:
        A("v_cvt_pk_bf16_f32 v8, v24, v25")
        A("v_cvt_pk_bf16_f32 v12, v26, v27")
    A("v_lshlrev_b32 v18, 16, v8")
    A("v_and_b32 v19, 0xffff0000, v8")
    A("v_pk_mul_f32 v[20:21], v[18:19], s[50:51]")
    A("v_exp_f32 v20, v20")
    A("v_exp_f32 v21, v21")
    A("v_lshlrev_b32 v14, 16, v12")
    A("v_pk_add_f32 v[20:21], v[20:21], 1.0 op_sel_hi:[1,0]")
    A("v_rcp_f32 v20, v20")
    A("v_rcp_f32 v21, v21")
    A("v_and_b32 v15, 0xffff0000, v12")
    A("v_pk_mul_f32 v[18:19], v[18:19], v[20:21]")
    if cz:
        A("v_cvt_pk_bf16_f32 v18, 0, v18")
        A("v_cvt_pk_bf16_f32 v19, 0, v19")
    else:
        A("v_cvt_pk_bf16_f32 v8, v18, v19        ; silu")
        A("v_lshlrev_b32 v18, 16, v8")
        A("v_and_b32 v19, 0xffff0000, v8")
    A("v_pk_mul_f32 v[18:19], v[18:19], v[14:15]")
    A("v_cvt_pk_bf16_f32 v8, v18, v19        ; h")
    A(f"ds_write_b32 v7, v8 offset:{L_HB}")
    for k in range(ka, 8): perm_pair(raw2, frag2, *divmod(k, 4))
    A("s_waitcnt lgkmcnt(0)")
    A("s_barrier                            ; B4")
    for s in range(2):
        A(f"ds_read_b128 v[{HA+4*s}:{HA+4*s+3}], v13 offset:{L_HB + 512*s}")
    for s in range(2):
        A(f"s_waitcnt lgkmcnt({1-s})")
        for j in range(4):
            c = "0" if s == 0 else f"v[{ACC+4*j}:{ACC+4*j+3}]"
            A(f"v_mfma_f32_16x16x32_bf16 v[{ACC+4*j}:{ACC+4*j+3}], v[{HA+4*s}:{HA+4*s+3}], v[{frag2(s,j)}:{frag2(s,j)+3}], {c}")
    A("s_mov_b32 exec_lo, -1")
    A("s_mov_b32 exec_hi, 0")
    A("s_nop 2")
    for r in range(4):
        for j in range(4):
            if t2 and (j & 1 or (t2 == 1 and j)): A(f"v_mov_b32 v{20+4*r+j}, v{ACC+4*j+r}")
            else: A(f"v_and_or_b32 v{20+4*r+j}, v{ACC+4*j+r}, s48, v9")
        A(f"buffer_store_dwordx4 v[{20+4*r}:{23+4*r}], v11, s[32:35], s{83+r if pre and r else 52} offen sc1")
        if r < 3 and not pre: A("s_add_u32 s52, s52, %d" % (32*X2S))
    stamp(6)
    if wb:
        A("s_lshl_b32 s44, s23, 2")
        A("s_add_u32 s44, s44, s3")
        A(f"s_cmp_lg_u32 s44, {4*wb[0] + 3}")
        A("s_cbranch_scc1 L_nwb")
        if wb[2]: A(f"s_sleep {wb[2]}")
        A(f"buffer_wbl2 {wb[1]}")
        LB("L_nwb")
    if not (nob5 or b4): A("s_waitcnt vmcnt(0)")
    if not b4: A("s_barrier                            ; B5")
    if not xr: stamp(7)
    if stamps: A("s_branch L_fin")
    else: A("s_endpgm")

    def rsetup():
        A("s_mov_b64 s[32:33], s[18:19]")
        A("s_mov_b32 s34, %d" % WS_REC)
        A("s_mov_b32 s35, 0x20000")
        A("s_mov_b64 s[36:37], s[14:15]")
        A("s_mov_b32 s38, 524288")
        A("s_mov_b32 s39, 0x20000")
        A("v_and_b32 v4, 7, v0")
        if stamps:
            A("s_mov_b32 s59, 0")
            A("s_mov_b32 s49, 0")
    LB("L_route")
    rsetup()
    A("s_and_b32 s45, s52, 7")
    A("s_lshl_b32 s46, s45, 3")
    A("s_lshr_b32 s52, s52, 3               ; batch")
    A("s_add_u32 s46, s46, s52")
    A("s_mul_i32 s46, s46, %d" % LS)
    A("s_add_u32 s46, s46, %d               ; slot" % O_IDX)
    A("s_lshl_b32 s45, s45, 2")
    if NR > 1 or full: A("v_mul_u32_u24 v5, %d, v0             ; replica offset" % (8 if full else REPS))
    if ipf:
        A("s_mov_b64 exec, 0xff")
        A("buffer_load_dword v13, v5, s[32:35], s46 offen sc1")
        A("s_mov_b64 exec, -1")
    A("v_lshrrev_b32 v10, 5, v0")
    A("v_bfe_u32 v11, v0, 4, 1")
    A("v_lshl_add_u32 v10, v11, 1, v10")
    A("v_add_u32 v10, s45, v10")
    A("v_xor_b32 v10, 31, v10")
    for t in range(4):
        for hlf in range(2):
            A(f"s_waitcnt vmcnt({7 - 2*t - hlf + (1 if ipf else 0)})")
            for k in range(4):
                c = "0" if (hlf == 0 and k == 0) else f"v{6+t}"
                A(f"v_dot2_f32_bf16 v{6+t}, v{XR+8*t+4*hlf+k}, v{16+4*hlf+k}, {c}")
    A("s_waitcnt lgkmcnt(0)")
    A("s_add_u32 s40, s40, 8")
    A("s_nop 0")
    A("v_permlane32_swap_b32 v6, v7")
    A("v_permlane32_swap_b32 v8, v9")
    A("v_add_f32 v6, v6, v7")
    A("v_add_f32 v8, v8, v9")
    A("s_nop 1")
    A("v_permlane16_swap_b32 v6, v8")
    A("v_add_f32 v6, v6, v8")
    A("s_nop 1")
    A("v_add_f32_dpp v6, v6, v6 quad_perm:[1,0,3,2] row_mask:0xf bank_mask:0xf")
    A("s_nop 1")
    A("v_add_f32_dpp v6, v6, v6 quad_perm:[2,3,0,1] row_mask:0xf bank_mask:0xf")
    A("s_nop 1")
    A("v_add_f32_dpp v6, v6, v6 row_half_mirror row_mask:0xf bank_mask:0xf")
    A("s_nop 1")
    A("v_add_f32_dpp v6, v6, v6 row_mirror row_mask:0xf bank_mask:0xf")
    A("v_cvt_pk_bf16_f32 v7, v6, v6")
    A("v_and_b32 v7, 0xffff0000, v7          ; r (bf16)")
    A("v_ashrrev_i32 v6, 31, v7")
    A("v_or_b32 v6, 0x80000000, v6")
    A("v_xor_b32 v6, v6, v7")
    A("v_cmp_o_f32 vcc, v7, v7")
    A("v_and_b32 v6, 0xffff0000, v6")
    A("s_nop 0")
    A("v_cndmask_b32 v6, 0, v6, vcc")
    A("v_or_b32 v6, v10, v6")
    A("v_mov_b32 v7, v6")
    A("s_nop 1")
    A("v_permlane16_swap_b32 v6, v7")
    A("v_max_u32 v6, v6, v7")
    A("v_mov_b32 v7, v6")
    A("s_nop 1")
    A("v_permlane32_swap_b32 v6, v7")
    A("v_max_u32 v6, v6, v7")
    A("v_mov_b32 v7, s40")
    if rlag: A(f"s_sleep {rlag}")
    A("s_mov_b64 exec, 0x%x" % ((1 << (LS // 8 if full else NR)) - 1))
    if NR > 1 or full: A(f"buffer_store_dwordx2 v[6:7], v5, s[32:35], s46 offen {rpol}")
    else: A(f"buffer_store_dwordx2 v[6:7], off, s[32:35], s46 {rpol}")
    A("s_mov_b64 exec, -1")
    A("s_barrier                            ; B0b")
    stamp(1)
    A("s_setprio 0")
    A("s_cmp_eq_u32 s3, 4")
    A("s_cbranch_scc1 L_r4")
    A("s_endpgm")
    if align: L.append(".p2align 12" if not (D0 or pace) else ".p2align 6")
    LB("L_cb")
    kb = cpath(2, "b", D3, D3W, BX3)
    assert ka == kb
    A("s_branch L_h")
    LB("L_cc")
    if LBR == 16: stamp(2)
    for n in range(CW): w2load(n)
    for d in range(st["done"]):
        A(f"s_waitcnt vmcnt({LBR - 8 - 8*d + CW})")
        perms(raw, frag, d)
    if FK:
        A(f"s_waitcnt vmcnt({LBR - FK + CW})")
        A(f"ds_write_b32 v12, v12 offset:{L_FLAG + (-1 if uf else 3)}")
    A("s_barrier                            ; BX")
    for n in range(LBR, 16): w1load(n)
    if LBR < 16: stamp(2)
    for n in range(CW, BX3): w2load(n)
    A("s_branch L_bx")

    def idload():
        A(f"buffer_load_dwordx4 v[{IDR}:{IDR+3}], v14, s[28:31], s53 offen{xpol}")
        A(f"buffer_load_dwordx4 v[{IDR+4}:{IDR+7}], v14, s[28:31], s53 offen offset:1024{xpol}")
    def idconv():
        for r in range(IDR, IDR+8):
            A(f"v_lshlrev_b32 v16, 16, v{r}")
            A(f"v_and_b32 v17, 0xffff0000, v{r}")
            A("v_pk_fma_f32 v[16:17], v[16:17], 0, v[16:17] op_sel_hi:[1,0,1]")
            A(f"v_cvt_pk_bf16_f32 v{r}, v16, v17    ; x + x*0")
    def psetup():
        A("s_lshl_b32 s53, s2, 11")
        A("v_mul_u32_u24 v12, %d, v0            ; poll offset" % LS)
        if NR == 1: A("s_movk_i32 s47, %d                 ; the scores" % O_IDX)
        else:
            if NR < 8:
                A(f"s_and_b32 s47, s22, {NR - 1}")
                A("s_mul_i32 s47, s47, %d" % REPS)
            else: A("s_mul_i32 s47, s22, %d" % REPS)
            A("s_add_u32 s47, s47, %d               ; this group's replica" % O_IDX)
        A("v_lshrrev_b32 v11, 3, v0")
        A("s_lshr_b32 s45, s21, 1")
        A("s_sub_u32 s46, 10, s57")
        A("s_lshl_b32 s45, s45, s46")
        A("s_lshl_b32 s48, s20, 14")
        A("s_lshl_b32 s46, s21, 11")
        A("s_add_u32 s48, s48, s46")
        A("s_add_u32 s48, s48, %d               ; own L2-local block" % O_EX1F)
        A("s_lshr_b32 s51, s2, 5")
        if ldr:
            A("s_getreg_b32 s42, hwreg(HW_REG_XCC_ID, 0, 3)")
            A("v_lshlrev_b32 v13, 3, v0")
            A("s_lshl_b32 s42, s42, %d" % (12 if (arr or rk) else {16: 10, 32: 11}[NC] if mc else 8))
            A("s_add_u32 s42, s42, %d               ; this die's copy of the keys" % O_LDR)
    LB("L_r")
    A("s_waitcnt lgkmcnt(0)")
    A("s_load_dword s40, s[18:19], 0        ; epoch")
    A("s_mov_b64 s[28:29], s[4:5]")
    rsetup()
    stamp(1)
    LB("L_r4")
    psetup()
    if ptl:
        A("s_cmp_gt_u32 s57, s58")
        A("s_cbranch_scc0 L_npt")
    for i in range(NC // 16): A(f"buffer_load_dwordx4 v[{16+4*i}:{19+4*i}], v14, s[32:35], s42 offen offset:{1024*i}")
    if ptl: LB("L_npt")
    if arr or rk: A("buffer_load_dword v24, v13, s[32:35], s42 offen offset:2048")
    A("s_cmp_eq_u32 s58, 1")
    A("s_cbranch_scc1 L_rr")
    if uf:
        A("s_cmp_eq_u32 s57, 0")
        A("s_cbranch_scc1 L_nid")
        idload()
        LB("L_nid")
    A("v_mov_b32 v8, 0")
    A("s_mov_b32 s49, 0")
    LB("L_fwait")
    if fsleep: A(f"s_sleep {fsleep}")
    A(f"ds_read_b32 v9, v8 offset:{L_FLAG}")
    A("s_add_u32 s49, s49, 1")
    A("s_cmp_ge_u32 s49, %d" % SPIN)
    A("s_waitcnt lgkmcnt(0)")
    A("v_cmp_eq_u32 vcc, 0, v9")
    A("s_cbranch_scc1 L_fok")
    A("s_cbranch_vccnz L_fwait")
    LB("L_fok")
    if not (idl or uf): idload()
    A("s_add_u32 s40, s40, 8")
    A("s_cmp_eq_u32 s57, 1")
    A("s_cbranch_scc1 L_lead")
    if SF - RF and not uf: A(f"s_sleep {SF - RF}")
    if not (idl or uf): A("s_branch L_sp0")
    LB("L_rr")
    idload()
    LB("L_sp0")
    if RF: A(f"s_sleep {RF}")
    stamp(2)
    A("s_mov_b32 s49, 0")
    if sib is not None:
        A(f"s_getreg_b32 s41, hwreg(HW_REG_HW_ID, {8 + sib}, 1)")
        A(f"s_mul_i32 s46, s41, {64*(NC-1)}")
        A("s_add_u32 s46, s46, s42")
        A("s_lshl_b32 s41, s41, 7")
        A("s_sub_u32 s41, 64, s41")
    else: A("s_mov_b32 s46, s42")
    LB("L_spoll")
    if ssl: A(f"s_sleep {ssl}")
    A("s_load_dwordx16 s[76:91], s[18:19], s46")
    A("s_add_u32 s46, s46, %s               ; the scalar cache keeps what it has seen: another copy next time" % ("64" if sib is None else "s41"))
    A("s_add_u32 s49, s49, 1")
    A(f"s_cmp_gt_u32 s49, {NSP}")
    A("s_cbranch_scc1 L_ip0")
    A("s_waitcnt lgkmcnt(0)")
    A("s_xor_b32 s43, s77, s40")
    for i in ((3, 4, 7) if chk2 else range(1, 8)):
        A(f"s_xor_b32 s44, s{77+2*i}, s40")
        A("s_or_b32 s43, s43, s44")
    A("s_cbranch_scc1 L_spoll")
    stamp(3)
    if stamps: A("s_mov_b32 s59, s49")
    A("s_mov_b32 exec_lo, 0x01010101")
    A("s_mov_b32 exec_hi, 0x01010101")
    for i in range(8):
        A(f"v_mov_b32 v6, s{76+2*i}")
        A("s_lshl_b64 exec, exec, 1" if i < 7 else "s_mov_b64 exec, -1")
    A("s_branch L_sok")
    LB("L_lead")
    if idl: idload()
    if FK and not uf:
        A("s_mov_b32 s49, 0")
        LB("L_fw2")
        if fsleep: A(f"s_sleep {fsleep}")
        A(f"ds_read_b32 v9, v8 offset:{L_FLAG + 4}")
        A("s_add_u32 s49, s49, 1")
        A("s_cmp_ge_u32 s49, %d" % SPIN)
        A("s_waitcnt lgkmcnt(0)")
        A("v_cmp_eq_u32 vcc, 0, v9")
        A("s_cbranch_scc1 L_fo2")
        A("s_cbranch_vccnz L_fw2")
        LB("L_fo2")
    if LF0 is not None:
        A(f"s_cmp_eq_u32 s22, {PERM[0]}")
        A("s_cbranch_scc1 L_lf0")
        A(f"s_sleep {LF - LF0}")
        LB("L_lf0")
        A(f"s_sleep {LF0}")
    elif LF: A(f"s_sleep {LF}")
    stamp(2)
    LB("L_ip0")
    A("s_waitcnt lgkmcnt(0)")
    A("s_mov_b32 s49, 0")
    if not is0: A("s_branch L_ipl")
    LB("L_ipoll")
    if IS: A(f"s_sleep {IS}")
    if not is0: LB("L_ipl")
    A(f"buffer_load_dwordx2 v[8:9], v12, s[32:35], s47 offen sc1")
    LB("L_ichk")
    A("s_add_u32 s49, s49, 1")
    A("s_cmp_ge_u32 s49, %d" % SPIN)
    A(f"s_waitcnt vmcnt(0)")
    A(f"v_cmp_ne_u32 vcc, s40, v9")
    A("s_cbranch_scc1 L_iok")
    A("s_cbranch_vccnz L_ipoll")
    LB("L_iok")
    stamp(3)
    if stamps: A("s_mov_b32 s59, s49")
    A("v_max_u32_dpp v8, v8, v8 row_ror:8 row_mask:0xf bank_mask:0xf")
    A("v_mov_b32 v9, v8")
    if ldr:
        A("v_mov_b32 v7, s40")
        A("s_nop 0")
    else:
        A("s_mov_b32 m0, %d" % L_XS)
        A("s_cmp_eq_u32 s57, 1")
    A("v_permlane16_swap_b32 v8, v9")
    A("v_max_u32 v8, v8, v9")
    A("v_mov_b32 v9, v8")
    A("s_nop 1")
    A("v_permlane32_swap_b32 v8, v9")
    A("v_max_u32 v6, v8, v9")
    if ldr:
        if rk:
            A("v_mov_b32 v8, 0")
            A("buffer_store_dword v8, off, s[32:35], s42 offset:2048")
        if mc:
            for i in range(NC // 8): A(f"buffer_store_dwordx2 v[6:7], v13, s[32:35], s42 offen offset:{512*i}")
        else:
            A("s_mov_b64 exec, 0xff")
            A("buffer_store_dwordx2 v[6:7], v13, s[32:35], s42 offen")
            A("s_mov_b64 exec, -1")
        if xpf:
            A("v_and_b32 v15, 31, v6")
            A("v_xor_b32 v15, 31, v15")
            A("v_lshl_add_u32 v15, v4, 5, v15")
            A("v_lshlrev_b32 v15, 11, v15")
            A("v_lshl_add_u32 v15, v11, 7, v15")
            A("buffer_load_dword v32, v15, s[28:31], 0 offen")
            A("buffer_load_dword v33, v15, s[28:31], 0 offen offset:1024")
        LB("L_sok")
        A("s_mov_b32 m0, %d" % L_XS)
        A("s_cmp_eq_u32 s57, 1")
    A("v_and_b32 v10, 31, v6")
    A("v_xor_b32 v10, 31, v10")
    A("v_lshl_add_u32 v10, v4, 5, v10       ; row")
    A("v_lshlrev_b32 v10, 11, v10")
    A("v_lshl_add_u32 v10, v11, 4, v10      ; + chunk*16")
    for i in range(8):
        if i == 4: A("s_cbranch_scc1 L_dmadone")
        A(f"buffer_load_dwordx4 v10, s[28:31], s45 offen{xpol} lds")
        if i < 7:
            A("s_mov_b32 m0, %d" % (L_XS + 1024*(i+1)))
            A("v_add_u32 v10, 128, v10")
    LB("L_dmadone")
    if not early_id: idload()
    pto = "s48" if pt else "s56"
    if not pt: A("s_mov_b32 s56, 0x40000000")
    A(f"buffer_load_dwordx4 v[24:27], v14, s[32:35], {pto} offen {ptp}")
    A(f"buffer_load_dwordx4 v[28:31], v14, s[32:35], {pto} offen offset:1024 {ptp}")
    A("s_barrier                            ; BX")
    A("v_readlane_b32 s55, v6, s51")
    A("s_and_b32 s46, s2, 31")
    A("s_and_b32 s54, s55, 31")
    A("s_xor_b32 s54, s54, 31")
    A("s_cmp_eq_u32 s54, s46")
    A("s_cselect_b32 s56, 0x40000000, s53")
    if ldr:
        A("s_waitcnt vmcnt(10)")
        A("s_cmp_eq_u32 s57, 0")
        A("s_cbranch_scc1 L_idw")
        A("s_waitcnt vmcnt(6)")
        LB("L_idw")
        idconv()
    def idstore():
        A(f"buffer_store_dwordx4 v[{IDR}:{IDR+3}], v14, s[36:39], s56 offen{outpol}")
        A(f"buffer_store_dwordx4 v[{IDR+4}:{IDR+7}], v14, s[36:39], s56 offen offset:1024{outpol}")
    if ids == 'bx': idstore()
    A("v_lshrrev_b32 v7, 5, v0")
    A("v_bfe_u32 v8, v0, 4, 1")
    A("v_lshl_add_u32 v7, v8, 1, v7         ; e")
    A("v_lshl_add_u32 v7, v4, 2, v7         ; 4*pos + e")
    A("s_lshl_b32 s45, s51, 5")
    A("s_add_u32 s45, s45, s54")
    A("s_lshl_b32 s45, s45, 5")
    A("s_add_u32 s45, s45, s46")
    A("s_lshl_b32 s45, s45, 5")
    A("v_add_u32 v7, s45, v7")
    A("v_lshlrev_b32 v7, 1, v7")
    A("buffer_load_ushort v9, v7, s[28:31], 0 offen")
    A(f"s_waitcnt vmcnt({5 if ids == 'bx' else 3})")
    A("s_barrier                            ; B2")
    stamp(4)
    if not early_id:
        A("s_waitcnt vmcnt(3)")
        idconv()
    A("s_lshr_b32 s44, s55, 16")
    A("s_xor_b32 s45, s44, 0xffff")
    A("s_and_b32 s44, s44, 0x7fff")
    A("s_cmp_lt_i32 s55, 0")
    A("s_cselect_b32 s44, s44, s45")
    A("s_lshl_b32 s44, s44, 16              ; r")
    A("v_mov_b32 v10, 0xbfb8aa3b")
    A("v_mul_f32 v10, s44, v10")
    A("v_exp_f32 v10, v10")
    A("s_and_b32 s41, s40, 0xff")
    A("v_add_f32 v10, 1.0, v10")
    A("v_rcp_f32 v10, v10")
    if ids == 'b2': idstore()
    A("s_barrier                            ; B3")
    if ids == 'b3':
        if idd: A(f"s_sleep {idd}")
        idstore()
    if not early_id:
        A(f"buffer_store_dwordx4 v[{IDR}:{IDR+3}], v14, s[36:39], s56 offen{outpol}")
        A(f"buffer_store_dwordx4 v[{IDR+4}:{IDR+7}], v14, s[36:39], s56 offen offset:1024{outpol}")
    A("v_cvt_pk_bf16_f32 v10, v10, v10")
    A("v_and_b32 v10, 0xffff0000, v10       ; sigmoid")
    A("s_mul_i32 s46, s2, %d" % X2S)
    A("s_add_u32 s46, s46, %d" % O_EX2)
    A("s_add_u32 s47, s46, 4096")
    A("s_mov_b32 s49, 0")
    A("s_mov_b32 s44, 0x00ff00ff")
    A("s_mov_b32 s45, 0x00ff00ff")
    A("s_waitcnt vmcnt(%d)" % (2 if ids in ('b2', 'b3') else 0))
    A("v_lshlrev_b32 v9, 16, v9             ; x")
    if cz: A("v_fma_f32 v9, v9, 0, v9              ; x + x*0")
    if arr:
        A("v_and_b32 v13, 31, v0")
        A("v_lshlrev_b32 v13, 2, v13")
        A("v_mov_b32 v12, s40")
        A("s_lshl_b32 s43, s23, 2")
        A("s_add_u32 s43, s43, s42")
        A("s_mov_b64 exec, 1")
    if mx: A("v_mov_b32 v13, 0")
    if rk:
        A("v_mov_b32 v12, 1")
        A("s_mov_b64 exec, 1")
    A("s_barrier                            ; B4")
    if rk:
        A("buffer_atomic_add v12, off, s[32:35], s42 offset:2048 sc0")
        A("s_mov_b64 exec, -1")
    if arr:
        A("buffer_store_dword v12, off, s[32:35], s43 offset:2048")
        A("s_mov_b64 exec, -1")
    if not b4: A("s_barrier")
    stamp(5)
    if ids == 'b4': idstore()
    if X20 is not None:
        A(f"s_cmp_eq_u32 s22, {PERM[0]}")
        A("s_cbranch_scc1 L_x20")
        A(f"s_sleep {x2d - X20}")
        LB("L_x20")
        if X20: A(f"s_sleep {X20}")
    elif rk:
        A("s_waitcnt vmcnt(0)")
        A("v_readfirstlane_b32 s43, v12")
        stamp(4)
        A("s_min_u32 s43, s43, 31")
        if stamps: A("s_mov_b32 s59, s43")
        A(f"s_mul_i32 s43, s43, {rk[1]}")
        A("s_lshr_b32 s43, s43, 4")
        A(f"s_sub_i32 s43, {rk[0]}, s43")
        A(f"s_max_i32 s43, s43, {rk[2]}")
        if len(rk) > 3: A(f"s_min_i32 s43, s43, {rk[3]}")
        LB("L_rk")
        A("s_sleep 1")
        A("s_sub_u32 s43, s43, 1")
        A("s_cmp_gt_i32 s43, 0")
        A("s_cbranch_scc1 L_rk")
    elif arr:
        LB("L_arr")
        if len(arr) > 2 and arr[2]: A(f"s_sleep {arr[2]}")
        A("buffer_load_dword v15, v13, s[32:35], s42 offen offset:2048 sc1")
        A("s_add_u32 s49, s49, 1")
        A(f"s_cmp_ge_u32 s49, {arr[0]}")
        A("s_waitcnt vmcnt(0)")
        A("v_cmp_ne_u32 vcc, s40, v15")
        A("s_cbranch_scc1 L_aok")
        A("s_cbranch_vccnz L_arr")
        LB("L_aok")
        if stamps: A("s_mov_b32 s59, s49")
        A("s_mov_b32 s49, 0")
        if arr[1]: A(f"s_sleep {arr[1]}")
        stamp(4)
    elif x2d: A(f"s_sleep {x2d}")
    if mx:
        MS = 76 if stamps else 60
        def ld(i):
            so = "s46" if i < 4 else "s47"
            A(f"buffer_load_dwordx4 v[{32+4*i}:{35+4*i}], v14, s[32:35], {so} offen offset:{(i%4)*1024} sc1")
        def chk(i):
            b = 32 + 4*i
            for r in range(b, b+4): A(f"v_xor_b32 v{r}, s41, v{r}")
            A(f"v_or3_b32 v15, v{b}, v{b+1}, v{b+2}")
            A(f"v_or_b32 v15, v15, v{b+3}")
            A(f"v_cmp_ne_u32_sdwa s[{MS+2*i}:{MS+2*i+1}], v15, v13 src0_sel:BYTE_0 src1_sel:DWORD")
        def anyleft():
            A(f"s_or_b64 s[42:43], s[{MS}:{MS+1}], s[{MS+2}:{MS+3}]")
            for i in range(2, 7): A(f"s_or_b64 s[42:43], s[42:43], s[{MS+2*i}:{MS+2*i+1}]")
        for i in range(7): ld(i)
        A("s_mov_b32 s49, 1")
        for i in range(7):
            A(f"s_waitcnt vmcnt({6-i})")
            chk(i)
            if i == 1: A("v_pk_add_f32 v[16:17], v[32:33], v[36:37]"); A("v_pk_add_f32 v[18:19], v[34:35], v[38:39]")
            if i >= 2: A(f"v_pk_add_f32 v[16:17], v[16:17], v[{32+4*i}:{33+4*i}]"); A(f"v_pk_add_f32 v[18:19], v[18:19], v[{34+4*i}:{35+4*i}]")
        anyleft()
        A("s_cbranch_scc0 L_x2ok")
        LB("L_x2poll")
        if x2s: A(f"s_sleep {x2s}")
        for i in range(7):
            A(f"s_mov_b64 exec, s[{MS+2*i}:{MS+2*i+1}]")
            A(f"s_cbranch_execz L_x2l{i}")
            ld(i)
            LB(f"L_x2l{i}")
        A("s_add_u32 s49, s49, 1")
        A("s_waitcnt vmcnt(0)")
        for i in range(7):
            A(f"s_mov_b64 exec, s[{MS+2*i}:{MS+2*i+1}]")
            A(f"s_cbranch_execz L_x2c{i}")
            chk(i)
            LB(f"L_x2c{i}")
        A("s_mov_b64 exec, -1")
        anyleft()
        A("s_cbranch_scc0 L_x2sum")
        A("s_cmp_lt_u32 s49, %d" % SPIN)
        A("s_cbranch_scc1 L_x2poll")
        LB("L_x2sum")
        A("v_pk_add_f32 v[16:17], v[32:33], v[36:37]"); A("v_pk_add_f32 v[18:19], v[34:35], v[38:39]")
        for i in range(2, 7):
            A(f"v_pk_add_f32 v[16:17], v[16:17], v[{32+4*i}:{33+4*i}]"); A(f"v_pk_add_f32 v[18:19], v[18:19], v[{34+4*i}:{35+4*i}]")
        A("s_nop 0")
    else:
        if pre:
            A("s_branch L_x2poll")
            LB("L_x2re")
            A("s_cmp_ge_u32 s49, %d" % SPIN)
            A("s_cbranch_scc1 L_x2ok")
        LB("L_x2poll")
        for i in range(7):
            so = "s46" if i < 4 else "s47"
            A(f"buffer_load_dwordx4 v[{32+4*i}:{35+4*i}], v14, s[32:35], {so} offen offset:{(i%4)*1024} sc1")
        A("s_add_u32 s49, s49, 1")
        for i in range(7):
            A(f"s_waitcnt vmcnt({6-i})")
            b = 32 + 4*i
            for r in range(b, b+4, {0: 1, 2: 2, 1: 4}[t2]): A(f"v_xor_b32 v{r}, s41, v{r}")
            if t2 == 2: A(f"v_or_b32 v15, v{b}, v{b+2}" if i == 0 else f"v_or3_b32 v15, v15, v{b}, v{b+2}")
            elif t2 == 1:
                if i == 1: A(f"v_or_b32 v15, v{b-4}, v{b}")
                elif i in (3, 5): A(f"v_or3_b32 v15, v15, v{b-4}, v{b}")
                elif i == 6: A(f"v_or_b32 v15, v15, v{b}")
            elif i == 0:
                A(f"v_or3_b32 v15, v{b}, v{b+1}, v{b+2}")
                A(f"v_or_b32 v15, v15, v{b+3}")
            else:
                A(f"v_or3_b32 v15, v15, v{b}, v{b+1}")
                A(f"v_or3_b32 v15, v15, v{b+2}, v{b+3}")
            if i:
                src = 32 if i == 1 else 16
                A(f"v_pk_add_f32 v[16:17], v[{src}:{src+1}], v[{b}:{b+1}]")
                A(f"v_pk_add_f32 v[18:19], v[{src+2}:{src+3}], v[{b+2}:{b+3}]")
        if sdwa: A("v_cmp_ne_u32_sdwa vcc, v15, 0 src0_sel:BYTE_0 src1_sel:DWORD")
        else:
            A("v_and_b32 v15, 0xff, v15")
            A("v_cmp_ne_u32 vcc, 0, v15")
        if pre: A("s_cbranch_vccnz L_x2re")
        else:
            A("s_cbranch_vccz L_x2ok")
            if x2s: A(f"s_sleep {x2s}")
            A("s_cmp_lt_u32 s49, %d" % SPIN)
            A("s_cbranch_scc1 L_x2poll")
    LB("L_x2ok")
    stamp(6)
    A("v_permlane32_swap_b32 v16, v17")
    A("v_permlane32_swap_b32 v18, v19")
    A("v_add_f32 v16, v16, v17")
    A("v_add_f32 v18, v18, v19")
    A("s_nop 1")
    A("v_permlane16_swap_b32 v16, v18")
    A("v_add_f32 v16, v16, v18")
    A("s_nop 1")
    A("v_add_f32_dpp v16, v16, v16 row_ror:8 row_mask:0xf bank_mask:0xf")
    A("s_mov_b64 exec, s[44:45]")
    if cz:
        A("v_cvt_pk_bf16_f32 v16, 0, v16")
        A("v_mul_f32 v16, v16, v10")
        A("v_cvt_pk_bf16_f32 v16, 0, v16         ; y*sigmoid")
        A("v_add_f32 v16, v9, v16               ; x + (x*0 + y*sigmoid)")
    else:
        A("v_cvt_pk_bf16_f32 v16, v16, v16")
        A("v_and_b32 v16, 0xffff0000, v16       ; y")
        A("v_mul_f32 v16, v16, v10")
        A("v_cvt_pk_bf16_f32 v16, v16, v16")
        A("v_and_b32 v16, 0xffff0000, v16       ; y*sigmoid")
        A("v_fma_f32 v16, v9, 0, v16            ; upd = x*0 + y")
        A("v_add_f32 v16, v9, v16")
    A("v_cvt_pk_bf16_f32 v16, v16, v16")
    A(f"buffer_store_short v16, v7, s[36:39], 0 offen{finpol}")
    A(f"s_cmp_lg_u32 s2, {epw}")
    A("s_cbranch_scc1 L_noep")
    A("v_mov_b32 v18, s40")
    A("s_mov_b64 exec, 1")
    A(f"buffer_store_dword v18, off, s[32:35], 0 {eppol}")
    LB("L_noep")
    stamp(7)
    LB("L_fin")
    if stamps:
        import diag
        if dg: diag.epilogue(A, LB, dg, nwg=256, invalid=())
        elif gamp: diag.gamp(A, LB, gamp)
        else:
            A("s_barrier")
            diag.dump(A, LB)
    LB("L_end")
    A("s_endpgm")
    L.extend(slow)
    body = "\n".join(L)
    pad = ".p2align 12\n.fill 832, 4, 0xbf800000            ; the kernel starts a 4 KB page (instruction prefetch stops at page ends)\n" if align else ""
    return f"""{HEAD}; @launch grid=(256,1,1) block=(384,1,1) lds={LDS_BYTES}
{DOC}.amdgcn_target "amdgcn-amd-amdhsa--gfx950"
.text
.globl {KN}
{pad}.p2align 8
.type {KN},@function
{KN}:
{body}
.section .rodata,"a"
.p2align 6
.amdhsa_kernel {KN}
  .amdhsa_next_free_vgpr 160
  .amdhsa_next_free_sgpr 96
  .amdhsa_accum_offset 160
  .amdhsa_group_segment_fixed_size 0
  .amdhsa_kernarg_size 64
  .amdhsa_user_sgpr_count 2
  .amdhsa_user_sgpr_kernarg_segment_ptr 1
  .amdhsa_system_sgpr_workgroup_id_x 1
  .amdhsa_float_denorm_mode_32 3
.end_amdhsa_kernel
"""
if __name__ == "__main__":
    import sys, json
    kw = json.loads(sys.argv[2]) if len(sys.argv) > 2 else {}
    open(sys.argv[1] if len(sys.argv) > 1 else "standalone__moe_arch_mod__sampling.s", "w").write(gen(**kw))
```

```python
KN = "standalone__moe_arch_mod__sampling_kernel"
HEAD = open("standalone__moe_arch_mod__sampling.s.ref").read().split("; Override launch")[0]

O_IDX = 0x1000
O_LDR = 0x12000
O_EX1F = 0x20000
O_EX2 = 0x100000
O_EX1 = 0x300000
WS_REC = 0x500000
L_XS = 0
L_RED = 8192
L_HB = 16384
L_KEY = 17408
L_FLAG = 17408 + 32
LDS_BYTES = 17408 + 64
SPIN = 40000

DOC = """; MoD sampling block: route (argmax of x.w_r per batch), SwiGLU FFN on the 8 selected rows, residual update.
"""

def gen(pol="nt", xpol="", D=11, DI=6, D3=8, D3W=12, BX=7, BX3=8, DX=32, LS=8, NF=12, PK=3, FS=38, fsleep=1,
        outpol="sc1", finpol="", x1pol="", x2d=26, PERM=(7,0,1,2,4,5,6,3), align=True, prog=False, early_id=True,
        stamps=False, dg=None, gamp=None, cst1=True, lag0=0, MAP="B", DUP0=True, X2S=8192, nob5=False, mx=False, x2s=0, b4=True, rlag=0, IS=6, ipf=0, FS0=None, X20=None, late2=0, late3=0, D0=None, pace=None, pace3=None, DT=None, em=1, ldr=True, NSP=None, ssl=1, hold=None, mc=True, SF=28, NC=32, lid='pre', lw=None, D3B=None, hx=False, D3X=None, R3=1, wg=None, NLD=2, LF=0, RF=0, CW=0, lp=1, lps=5, NR=1, FA=1, full=False, rpol='sc1', LBR=16, nodup=False, nr0=False, PK3=None, KP=4, LF0=None, sib=None, xr=False, x1ld='sc1', pt=True, x1f=None, ptp='', skip=True, dum=False, ids='bx', idd=0, FK=16, arr=None, rk=None, xpf=False, is0=False, eppol='', epw=193, idl=False, ptl=False, chk2=False, DWA=None, scr=False, wb=None, r3e=0, uf=None, t2=2, t1x=True, sdwa=True, post=True, emk=3, cz=True, pre=True, own=True, cz4=True):
    if gamp or dg: stamps = True
    if NSP is None: NSP = NC - 1
    L = []
    def A(s): L.append("  " + s)
    def LB(s): L.append(s + ":")
    def stamp(i):
        if stamps: A(f"s_memrealtime s[{60+2*i}:{61+2*i}]")
    sp = lambda p: (" " + p) if p else ""
    pol, xpol, outpol, finpol, x1pol = map(sp, (pol, xpol, outpol, finpol, x1pol))
    REPS = 64 * LS
    XR = 80
    RAW = 16; FR = 80; XB = 96; ACC = 112; W2 = 128
    F2 = 40; HA = 72
    IDR = 40
    def raw(s, i): return RAW + 16*s + 2*i
    def frag(s, j): return (FR if s == 0 else RAW + 16*(s-1)) + 4*j
    def raw2(s, i): return W2 + 16*s + 2*i
    def frag2(s, j): return F2 + 16*s + 4*j
    def perm_pair(rawf, fragf, s, p):
        for e in range(2):
            A(f"v_perm_b32 v{fragf(s,2*e)+p}, v{rawf(s,2*p+1)+e}, v{rawf(s,2*p)+e}, s42")
            A(f"v_perm_b32 v{fragf(s,2*e+1)+p}, v{rawf(s,2*p+1)+e}, v{rawf(s,2*p)+e}, s43")
    def perms(rawf, fragf, s):
        for p in range(4): perm_pair(rawf, fragf, s, p)
    def w1load(n):
        s, i = divmod(n, 8)
        A(f"buffer_load_dwordx2 v[{raw(s,i)}:{raw(s,i)+1}], v3, s[24:27], s44 offen{pol}")
        A("s_addk_i32 s44, 7168" if i < 7 else "s_add_u32 s44, s44, %d" % (25*7168))
    def w2load(n):
        s, i = divmod(n, 8)
        p, b = divmod(i, 2)
        row = 2*s + (p >> 1) + 8*(p & 1) + 4*b
        A("s_add_u32 s47, s53, %d" % (row*2048))
        A(f"buffer_load_dwordx2 v[{raw2(s,i)}:{raw2(s,i)+1}], v10, s[28:31], s47 offen{pol}")

    if lag0:
        A("s_and_b32 s3, s2, 7")
        A("s_cmp_lg_u32 s3, 0")
        A("s_cbranch_scc1 L_nolag")
        A(f"s_sleep {lag0}")
        LB("L_nolag")
    stamp(0)
    A("s_cmp_ge_u32 s2, 256")
    A("s_cbranch_scc1 L_exit")
    A("s_load_dwordx16 s[4:19], s[0:1], 0")
    A("v_lshrrev_b32 v1, 6, v0")
    A("v_and_b32 v0, 63, v0                 ; lane")
    A("v_readfirstlane_b32 s3, v1           ; wave")
    A("s_lshl_b32 s22, s2, 2")
    A("s_lshr_b32 s22, 0x%x, s22" % sum(v << (4*i) for i, v in enumerate(PERM)))
    A("s_and_b32 s22, s22, 7")
    A("s_lshr_b32 s23, s2, 3")
    if scr:
        A("s_lshr_b32 s22, s2, 5")
        A("s_and_b32 s23, s2, 31")
    A("s_lshr_b32 s44, s23, 2")
    A("s_mul_i32 s45, s22, 6")
    A("s_add_u32 s45, s45, s44")
    A("s_add_u32 s44, s45, 4")
    A("s_mul_i32 s44, s44, 37")
    A("s_lshr_b32 s44, s44, 8")
    A("s_add_u32 s20, s45, s44")
    A("s_lshl_b32 s44, s22, 3")
    A("s_add_u32 s44, s44, 3")
    A("s_min_u32 s44, s44, 55")
    A("s_cmp_ge_u32 s23, 24")
    A("s_cselect_b32 s20, s44, s20")
    A("s_cselect_b32 s57, 1, 0")
    A("s_cselect_b32 s21, 7, 3")
    A("s_and_b32 s21, s21, s23              ; part")
    A(f"s_cmp_ge_u32 s23, {24 + NLD}")
    A("s_cselect_b32 s58, 1, 0")
    A("s_mov_b32 s27, 0x20000")
    A("s_cmp_lt_u32 s3, 4")
    A("s_cbranch_scc1 L_c")
    A("s_mov_b32 s30, 524288")
    A("s_mov_b32 s31, 0x20000")
    A("v_lshlrev_b32 v14, 4, v0             ; lane*16")
    A("s_cmp_eq_u32 s58, 1")
    A("s_cbranch_scc1 L_rt")
    A("s_cmp_eq_u32 s3, 4")
    A("s_cbranch_scc1 L_r")
    LB("L_exit")
    A("s_endpgm")
    LB("L_rt")
    A("s_setprio 3")
    A(f"s_mul_i32 s52, s22, {8 - NLD}")
    A("s_add_u32 s52, s52, s21")
    A("s_lshl_b32 s52, s52, 1")
    A("s_add_u32 s52, s52, s3")
    A(f"s_sub_u32 s52, s52, {4 + 2*NLD}")
    A("s_and_b32 s52, s52, 63")
    A("s_lshl_b32 s44, s52, 13")
    A("s_add_u32 s45, s44, 4096")
    A("s_movk_i32 s26, 2048")
    A("s_waitcnt lgkmcnt(0)")
    A("s_mov_b64 s[28:29], s[4:5]")
    A("s_mov_b64 s[24:25], s[6:7]")
    A("s_load_dword s40, s[18:19], 0        ; epoch")
    A(f"buffer_load_dwordx4 v[16:19], v14, s[24:27], 0 offen")
    A(f"buffer_load_dwordx4 v[20:23], v14, s[24:27], 0 offen offset:1024")
    for i in range(8):
        if r3e and i == 8 - 2*r3e:
            A("s_mov_b32 s45, 0x40000000")
        A(f"buffer_load_dwordx4 v[{XR+4*i}:{XR+4*i+3}], v14, s[28:31], {'s44' if i < 4 else 's45'} offen offset:{(i%4)*1024}{xpol}")
    A("s_barrier                            ; B0")
    A("s_branch L_route")
    LB("L_c")
    A("v_mov_b32 v4, 0")
    if FK and not uf:
        A("v_mov_b32 v5, 0")
        A(f"ds_write_b64 v4, v[4:5] offset:{L_FLAG}")
    else: A(f"ds_write_b32 v4, v4 offset:{L_FLAG}")
    A("s_mov_b32 s26, 7340032")
    A("v_lshrrev_b32 v1, 4, v0              ; g")
    A("v_and_b32 v2, 15, v0                 ; n")
    A("v_mul_u32_u24 v3, %d, v1" % (8*7168))
    A("v_lshl_add_u32 v3, v2, 3, v3         ; voffset")
    A("s_lshr_b32 s44, s21, 1")
    A("s_lshl_b32 s44, s44, 2")
    A("s_add_u32 s44, s44, s3")
    A("s_lshr_b32 s45, %d, s57" % (128*7168))
    A("s_mul_i32 s44, s44, s45")
    A("s_lshl_b32 s45, s20, 7")
    A("s_add_u32 s44, s44, s45              ; soffset")
    A("s_bitcmp1_b32 s21, 0")
    A("s_waitcnt lgkmcnt(0)")
    A("s_cselect_b64 s[24:25], s[10:11], s[8:9]")
    A("s_cmp_eq_u32 s58, 0")
    A("s_cbranch_scc1 L_nb0")
    A("s_barrier")
    LB("L_nb0")
    if not cst1: stamp(1)
    for n in range(DI): w1load(n)
    A("s_load_dword s40, s[18:19], 0        ; epoch")
    if stamps:
        A("s_getreg_b32 s59, hwreg(HW_REG_HW_ID)")
    A("s_mov_b64 s[32:33], s[18:19]")
    A("s_mov_b32 s34, %d" % WS_REC)
    A("s_mov_b32 s35, 0x20000")
    A("s_mov_b32 s42, 0x05040100")
    A("s_mov_b32 s43, 0x07060302")
    A("v_and_b32 v8, 7, v0")
    A("v_lshl_add_u32 v13, v1, 3, v8")
    A("v_lshlrev_b32 v13, 4, v13")
    A("s_lshl_b32 s45, s3, 11")
    A("v_add_u32 v4, s45, v13")
    A("s_lshr_b32 s45, s45, s57")
    A("v_add_u32 v5, s45, v13")
    A("v_lshlrev_b32 v6, 3, v0")
    A("s_lshl_b32 s45, s3, 9")
    A("v_add_u32 v6, s45, v6                ; w*512 + lane*8")
    A("v_lshrrev_b32 v7, 1, v0")
    A("v_lshlrev_b32 v7, 4, v7")
    A("v_and_b32 v9, 1, v0")
    A("v_lshl_add_u32 v7, v9, 2, v7")
    A("s_lshr_b32 s45, s3, 1")
    A("s_lshl_b32 s45, s45, 9")
    A("s_and_b32 s46, s3, 1")
    A("s_lshl_b32 s46, s46, 3")
    A("s_add_u32 s45, s45, s46")
    A("v_add_u32 v7, s45, v7")
    A("s_mov_b64 s[28:29], s[12:13]")
    A("s_mov_b32 s30, 7340032")
    A("s_mov_b32 s31, 0x20000")
    A("v_lshlrev_b32 v10, 15, v1            ; g*16*2048")
    A("v_lshl_add_u32 v10, v2, 3, v10")
    A("v_lshrrev_b32 v11, 3, v2")
    A("v_lshl_add_u32 v11, v1, 7, v11       ; 4g*32 + (n>>3)")
    A("v_mul_u32_u24 v11, %d, v11" % X2S)
    A("v_lshl_add_u32 v11, v8, 4, v11       ; + (n&7)*16")
    A("s_lshl_b32 s53, s21, 2")
    A("s_lshr_b32 s53, s53, s57")
    A("s_add_u32 s53, s53, s3")
    A("s_lshr_b32 s45, s3, 1")
    A("s_and_b32 s45, s45, s57")
    A("s_lshl_b32 s45, s45, 30")
    A("v_or_b32 v10, s45, v10")
    A("v_or_b32 v11, s45, v11")
    A("s_mul_i32 s52, s53, %d" % (2*X2S))
    A("s_lshl_b32 s46, s20, 7")
    A("s_add_u32 s52, s52, s46")
    A("s_add_u32 s52, s52, %d" % O_EX2)
    A("s_lshl_b32 s53, s53, 7")
    A("s_lshl_b32 s46, s20, 17              ; tile*64*2048")
    A("s_add_u32 s53, s53, s46")
    A("s_lshl_b32 s45, s20, 14")
    A("s_lshl_b32 s46, s21, 11")
    A("s_add_u32 s45, s45, %d               ; group base" % O_EX1F)
    A("s_add_u32 s46, s46, s45")
    A("s_mov_b32 s48, 0xffffff00")
    A("s_mov_b32 s50, 0xbfb8aa3b            ; -log2(e)")
    A("s_mov_b32 s51, 0xbfb8aa3b")
    A("s_mov_b32 s49, 0")
    A("s_getreg_b32 s54, hwreg(HW_REG_XCC_ID, 0, 3)")
    A("v_mov_b32 v12, 1")
    if not D0: A("v_cmp_eq_u32 vcc, s57, v12")
    A("s_cmp_eq_u32 s58, 1")
    A("s_cbranch_scc1 L_cb")

    slow = []; st = {}
    def cpath(NS, sfx, DD, DW, bx):
        NL = 8*NS
        done = 0
        landed = 0
        if NS == 2: A("s_barrier")
        lt = late2 if NS == 4 else late3
        if D0 and NS == 4:
            A(f"s_cmp_eq_u32 s22, {PERM[0]}")
            A("s_cselect_b64 vcc, -1, 0")
        landed0 = 1
        for n in range(DI, NL + 16 - lt):
            dn = min(DD, DI + (n - DI + 1) * (R3 if NS == 2 else 1) // 2) if n < NL else DW
            if n >= NL + bx:
                if n == NL + bx:
                    A("s_barrier")
                    if NS == 2:
                        LB("L_bx"); st["done"] = done
                dn = DX
                if wg is not None and NS == 4 and n == NL + bx: dn = bx + wg + 1
            if NS == 2 and hold is not None:
                if n == DI + hold: A("s_barrier                            ; " + ("BX: the keys and the selected rows are in the queue" if hx else "B0c: the first look at the scores is in the queue"))
                if D3B and DI + hold <= n < NL: dn = D3B
                if D3X and n >= NL: dn = D3X
            if DT and NS == 4 and DT[0] <= n < NL + bx: dn = min(DT[1], DD + (n - DT[0] + 1) * DT[2] // 2)
            pc = pace if NS == 4 else pace3
            if pc and DI < n < NL + bx:
                dn = pc[2]
                if (n - DI) % pc[0] == 0 or pc[0] == 1: A(f"s_sleep {pc[1]}")
            if D0 and NS == 4 and n > DI + 1 and n < NL + bx:
                d0 = min(D0[0] + (n & 1), DI + (n - DI + 1) * D0[1] // 2)
                if n >= NL: d0 = dn = max(dn, 12)
                if n - dn + 1 > landed0 and d0 > dn:
                    A(f"s_cbranch_vccnz L_d0_{n}")
                    A(f"s_waitcnt vmcnt({dn-1})")
                    LB(f"L_d0_{n}")
                    landed0 = n - dn + 1
                dn = max(dn, d0)
            if n - dn + 1 > landed:
                A(f"s_waitcnt vmcnt({dn-1})")
                landed = n - dn + 1
            if n == DI and cst1: stamp(1)
            if n == LBR and NS == 4:
                assert done == 0
                if D0:
                    A("s_cmp_eq_u32 s57, 1")
                    A("s_cbranch_scc1 L_cc")
                else: A("s_cbranch_vccnz L_cc")
            if n < NL: w1load(n)
            else: w2load(n - NL)
            if n == (uf or DI) and NS == 4:
                A(f"ds_write_b32 v12, v12 offset:{L_FLAG - 1}      ; " + ("the keys will not be long" if uf else "the first weights have landed"))
            if n == NL - 1: stamp(2)
            while done < NS and 8*done + 8 <= landed:
                perms(raw, frag, done); done += 1
        A("s_waitcnt lgkmcnt(0)")
        A("s_add_u32 s40, s40, 8                ; tag32")
        A("s_and_b32 s41, s40, 0xff")
        A("s_and_b32 s55, s40, 0xf8")
        A("s_or_b32 s54, s54, s55")
        A("v_mov_b32 v9, s41")
        A("v_mov_b32 v12, s54")
        if skip:
            A("s_bitcmp1_b32 s21, 0")
            A("s_cselect_b64 s[22:23], -1, 0")
        if pre:
            for b in range(1, 4 if NS == 4 else 8): A(f"s_xor_b32 s{75+b}, s46, {b*2048}" + ("           ; blocks of the other parts" if b == 1 else ""))
            for r in range(1, 4): A(f"s_add_u32 s{83+r}, s52, {r*32*X2S}")
        if NL + 16 - lt <= NL + bx: A("s_barrier                            ; BX")
        while done < NS - (1 if em and NS == 4 else 0):
            A(f"s_waitcnt vmcnt({NL + 16 - lt - 8*done - 8})")
            perms(raw, frag, done); done += 1
        if emk and done < NS:
            A(f"s_waitcnt vmcnt({16 + 8 - 2*emk})")
            for p in range(emk): perm_pair(raw, frag, NS - 1, p)
        A("s_barrier")
        stamp(3)
        for n in range(16 - lt, 16): w2load(n)
        for s in range(NS):
            A(f"ds_read_b128 v[{XB+4*s}:{XB+4*s+3}], v5 offset:{L_XS + 512*s}")
        for s in range(NS):
            late = done < NS
            if late and em == 1 and s == NS - 1:
                A("s_waitcnt vmcnt(16)")
                for p in range(emk, 4): perm_pair(raw, frag, NS - 1, p)
                if emk == 3: A("s_nop 0")
            if late and em == 2 and s == NS - 2: A("s_waitcnt vmcnt(16)")
            A(f"s_waitcnt lgkmcnt({NS-1-s})")
            for j in range(4):
                c = "0" if s == 0 else f"v[{ACC+4*j}:{ACC+4*j+3}]"
                A(f"v_mfma_f32_16x16x32_bf16 v[{ACC+4*j}:{ACC+4*j+3}], v[{frag(s,j)}:{frag(s,j)+3}], v[{XB+4*s}:{XB+4*s+3}], {c}")
                if late and em == 2 and s == NS - 2: perm_pair(raw, frag, NS - 1, j)
        A("s_mov_b32 exec_lo, 0x00ff00ff")
        A("s_mov_b32 exec_hi, 0x00ff00ff")
        A("s_nop 2")
        for j in range(4):
            A(f"ds_write_b128 v4, v[{ACC+4*j}:{ACC+4*j+3}] offset:{L_RED + 512*j}")
        A("s_mov_b64 exec, -1")
        A("s_waitcnt lgkmcnt(0)")
        A("s_barrier                            ; B3")
        for w in range(2):
            A(f"ds_read2st64_b64 v[{16+4*w}:{19+4*w}], v6 offset0:{(L_RED + 4096*w)//512} offset1:{(L_RED + 4096*w + 2048)//512}")
        A("s_waitcnt lgkmcnt(1)")
        A("v_pk_add_f32 v[16:17], v[16:17], v[18:19]")
        A("s_waitcnt lgkmcnt(0)")
        A("v_pk_add_f32 v[20:21], v[20:21], v[22:23]")
        A("v_pk_add_f32 v[16:17], v[16:17], v[20:21]")
        A("v_and_or_b32 v16, v16, s48, v12")
        if not t1x: A("v_and_or_b32 v17, v17, s48, v12")
        A(f"buffer_store_dwordx2 v[16:17], v6, s[32:35], s46 offen{x1pol}")
        stamp(4)
        def owns():
            A("v_and_b32 v24, s48, v16")
            A("v_mov_b32 v25, v17" if t1x else "v_and_b32 v25, s48, v17")
        if skip and not (own and post): owns()
        NB = 4 if NS == 4 else 8
        pairs = [(s, p) for s in range(2) for p in range(4)]
        k = 0
        PKx = PK3 if (NS == 2 and PK3 is not None) else PK
        if KP and not post:
            A(f"s_waitcnt vmcnt({17 - 2*KP})")
            while k < KP: perm_pair(raw2, frag2, *pairs[k]); k += 1
        if prog:
            while 17 - 2*(k+1) >= PK:
                A(f"s_waitcnt vmcnt({17 - 2*(k+1)})")
                perm_pair(raw2, frag2, *pairs[k]); k += 1
        if not prog or 17 - 2*k > PK: A(f"s_waitcnt vmcnt({PKx})")
        def polls(x1ld=x1ld):
            if skip:
                for b in range(1, NB):
                    if not pre: A(f"s_xor_b32 s47, s46, {b*2048}")
                    A(f"buffer_load_dwordx2 v[{24+2*b}:{25+2*b}], v6, s[32:35], s{75+b if pre else 47} offen {x1ld}")
                if dum: A("buffer_load_dword v15, v6, s[32:35], s34 offen")
                return
            for b in range(NB):
                if b and b % 2 == 0: A(f"s_add_u32 s47, s45, {b*2048}")
                A(f"buffer_load_dwordx2 v[{24+2*b}:{25+2*b}], v6, s[32:35], {'s45' if b < 2 else 's47'} offen offset:{(b%2)*2048} {x1ld}")
        if prog:
            polls()
            while k < 8:
                A(f"s_waitcnt vmcnt({NB + 17 - 2*(k+1)})")
                perm_pair(raw2, frag2, *pairs[k]); k += 1
            A(f"s_branch L_x1chk{sfx}")
        if post:
            polls()
            if skip and own: owns()
            while 17 - 2*(k+1) >= PKx: perm_pair(raw2, frag2, *pairs[k]); k += 1
            A(f"s_branch L_x1chk{sfx}")
            LB("L_x1re" + sfx)
            A(f"s_cmp_ge_u32 s49, {NF}")
            A(f"s_cbranch_scc1 L_x1no{sfx}")
        if xr: stamp(1)
        if x1f is not None:
            if xr: stamp(7)
            polls(x1f)
            A(f"s_branch L_x1chk{sfx}")
        LB("L_x1poll" + sfx)
        if xr: stamp(7)
        polls()
        LB("L_x1chk" + sfx)
        A("s_add_u32 s49, s49, 1")
        A(f"s_waitcnt vmcnt({1 if dum else 0})")
        r0 = 26 if skip else 24
        rs = list(range(r0, 24+2*NB, 2 if t1x else 1))
        for r in rs: A(f"v_xor_b32 v{r}, s54, v{r}")
        A(f"v_or3_b32 v8, v{rs[0]}, v{rs[1]}, v{rs[2]}")
        rs = rs[3:]
        while len(rs) > 1: A(f"v_or3_b32 v8, v8, v{rs[0]}, v{rs[1]}"); rs = rs[2:]
        if rs: A(f"v_or_b32 v8, v8, v{rs[0]}")
        if sdwa: A("v_cmp_ne_u32_sdwa vcc, v8, 0 src0_sel:BYTE_0 src1_sel:DWORD")
        else:
            A("v_and_b32 v8, 0xff, v8")
            A("v_cmp_ne_u32 vcc, 0, v8")
        A("s_cbranch_vccnz L_x1" + ("re" if post else "no") + sfx)
        LB("L_x1ok" + sfx)
        stamp(5)
        if NB == 8:
            A("v_pk_add_f32 v[24:25], v[24:25], v[32:33]")
            A("v_pk_add_f32 v[26:27], v[26:27], v[34:35]")
            A("v_pk_add_f32 v[28:29], v[28:29], v[36:37]")
            A("v_pk_add_f32 v[30:31], v[30:31], v[38:39]")
        S = []
        def B(s): S.append("  " + s)
        S.append("L_x1no" + sfx + ":")
        if not post:
            B(f"s_cmp_lt_u32 s49, {NF}")
            B("s_cbranch_scc1 L_x1poll" + sfx)
        B("v_lshlrev_b32 v8, 1, v6")
        B("s_lshl_b32 s56, s20, 15")
        B("s_add_u32 s56, s56, %d" % O_EX1)
        B(f"s_cmp_lg_u32 s49, {NF}")
        B("s_cbranch_scc1 L_x1ns" + sfx)
        B("v_and_b32 v96, s48, v16")
        B("v_mov_b32 v97, v17" if t1x else "v_and_b32 v97, s48, v17")
        B("v_mov_b32 v98, s40")
        B("v_mov_b32 v99, s40")
        B("s_lshl_b32 s47, s21, 12")
        B("s_add_u32 s47, s47, s56")
        B("buffer_store_dwordx4 v[96:99], v8, s[32:35], s47 offen sc1")
        B("s_waitcnt vmcnt(0)")
        S.append("L_x1ns" + sfx + ":")
        if skip:
            B("s_lshl_b32 s47, s21, 12")
            B("s_add_u32 s56, s56, s47")
        for b in range(NB):
            if skip:
                B(f"s_xor_b32 s47, s56, {b*4096}")
                B(f"buffer_load_dwordx4 v[{96+4*b}:{99+4*b}], v8, s[32:35], s47 offen sc1")
            else:
                B(f"buffer_load_dwordx4 v[{96+4*b}:{99+4*b}], v8, s[32:35], s56 offen sc1")
                B("s_add_u32 s56, s56, 4096")
        B("s_waitcnt vmcnt(0)")
        B("v_mov_b32 v8, 0")
        for b in range(NB):
            B(f"v_xor_b32 v{98+4*b}, s40, v{98+4*b}")
            B(f"v_xor_b32 v{99+4*b}, s40, v{99+4*b}")
            B(f"v_or3_b32 v8, v8, v{98+4*b}, v{99+4*b}")
            B(f"v_mov_b32 v{24+2*b}, v{96+4*b}")
            B(f"v_mov_b32 v{25+2*b}, v{97+4*b}")
        B("v_cmp_ne_u32 vcc, 0, v8")
        B("s_cbranch_vccz L_x1ok" + sfx)
        B("s_cmp_lt_u32 s49, %d" % SPIN)
        B("s_cbranch_scc1 L_x1poll" + sfx)
        B("s_branch L_x1ok" + sfx)
        slow.extend(S)
        return k
    ka = cpath(4, "a", D, DWA or D, BX)
    LB("L_h")
    A("v_pk_add_f32 v[24:25], v[24:25], v[28:29]")
    A("v_pk_add_f32 v[26:27], v[26:27], v[30:31]")
    if cz4:
        for i in range(4): A(f"v_cvt_pk_bf16_f32 v{24+i}, 0, v{24+i}" + ("       ; rounded to bf16 in the upper half" if i == 0 else ""))
        A("v_cndmask_b32 v18, v24, v26, s[22:23]  ; gate")
        A("v_cndmask_b32 v19, v25, v27, s[22:23]")
    elif skip:
        A("v_cvt_pk_bf16_f32 v18, v24, v25")
        A("v_cvt_pk_bf16_f32 v19, v26, v27")
        A("v_cndmask_b32 v8, v18, v19, s[22:23]  ; gate")
        A("v_cndmask_b32 v12, v19, v18, s[22:23] ; up")
    else:
        A("v_cvt_pk_bf16_f32 v8, v24, v25")
        A("v_cvt_pk_bf16_f32 v12, v26, v27")
    if not cz4:
        A("v_lshlrev_b32 v18, 16, v8")
        A("v_and_b32 v19, 0xffff0000, v8")
    A("v_pk_mul_f32 v[20:21], v[18:19], s[50:51]")
    A("v_exp_f32 v20, v20")
    A("v_exp_f32 v21, v21")
    A("v_cndmask_b32 v14, v26, v24, s[22:23]  ; up" if cz4 else "v_lshlrev_b32 v14, 16, v12")
    A("v_pk_add_f32 v[20:21], v[20:21], 1.0 op_sel_hi:[1,0]")
    A("v_rcp_f32 v20, v20")
    A("v_rcp_f32 v21, v21")
    A("v_cndmask_b32 v15, v27, v25, s[22:23]" if cz4 else "v_and_b32 v15, 0xffff0000, v12")
    A("v_pk_mul_f32 v[18:19], v[18:19], v[20:21]")
    if cz:
        A("v_cvt_pk_bf16_f32 v18, 0, v18")
        A("v_cvt_pk_bf16_f32 v19, 0, v19")
    else:
        A("v_cvt_pk_bf16_f32 v8, v18, v19        ; silu")
        A("v_lshlrev_b32 v18, 16, v8")
        A("v_and_b32 v19, 0xffff0000, v8")
    A("v_pk_mul_f32 v[18:19], v[18:19], v[14:15]")
    A("v_cvt_pk_bf16_f32 v8, v18, v19        ; h")
    A(f"ds_write_b32 v7, v8 offset:{L_HB}")
    for k in range(ka, 8): perm_pair(raw2, frag2, *divmod(k, 4))
    A("s_waitcnt lgkmcnt(0)")
    A("s_barrier                            ; B4")
    for s in range(2):
        A(f"ds_read_b128 v[{HA+4*s}:{HA+4*s+3}], v13 offset:{L_HB + 512*s}")
    for s in range(2):
        A(f"s_waitcnt lgkmcnt({1-s})")
        for j in range(4):
            c = "0" if s == 0 else f"v[{ACC+4*j}:{ACC+4*j+3}]"
            A(f"v_mfma_f32_16x16x32_bf16 v[{ACC+4*j}:{ACC+4*j+3}], v[{HA+4*s}:{HA+4*s+3}], v[{frag2(s,j)}:{frag2(s,j)+3}], {c}")
    A("s_mov_b32 exec_lo, -1")
    A("s_mov_b32 exec_hi, 0")
    A("s_nop 2")
    for r in range(4):
        for j in range(4):
            if t2 and (j & 1 or (t2 == 1 and j)): A(f"v_mov_b32 v{20+4*r+j}, v{ACC+4*j+r}")
            else: A(f"v_and_or_b32 v{20+4*r+j}, v{ACC+4*j+r}, s48, v9")
        A(f"buffer_store_dwordx4 v[{20+4*r}:{23+4*r}], v11, s[32:35], s{83+r if pre and r else 52} offen sc1")
        if r < 3 and not pre: A("s_add_u32 s52, s52, %d" % (32*X2S))
    stamp(6)
    if wb:
        A("s_lshl_b32 s44, s23, 2")
        A("s_add_u32 s44, s44, s3")
        A(f"s_cmp_lg_u32 s44, {4*wb[0] + 3}")
        A("s_cbranch_scc1 L_nwb")
        if wb[2]: A(f"s_sleep {wb[2]}")
        A(f"buffer_wbl2 {wb[1]}")
        LB("L_nwb")
    if not (nob5 or b4): A("s_waitcnt vmcnt(0)")
    if not b4: A("s_barrier                            ; B5")
    if not xr: stamp(7)
    if stamps: A("s_branch L_fin")
    else: A("s_endpgm")

    def rsetup():
        A("s_mov_b64 s[32:33], s[18:19]")
        A("s_mov_b32 s34, %d" % WS_REC)
        A("s_mov_b32 s35, 0x20000")
        A("s_mov_b64 s[36:37], s[14:15]")
        A("s_mov_b32 s38, 524288")
        A("s_mov_b32 s39, 0x20000")
        A("v_and_b32 v4, 7, v0")
        if stamps:
            A("s_mov_b32 s59, 0")
            A("s_mov_b32 s49, 0")
    LB("L_route")
    rsetup()
    A("s_and_b32 s45, s52, 7")
    A("s_lshl_b32 s46, s45, 3")
    A("s_lshr_b32 s52, s52, 3               ; batch")
    A("s_add_u32 s46, s46, s52")
    A("s_mul_i32 s46, s46, %d" % LS)
    A("s_add_u32 s46, s46, %d               ; slot" % O_IDX)
    A("s_lshl_b32 s45, s45, 2")
    if NR > 1 or full: A("v_mul_u32_u24 v5, %d, v0             ; replica offset" % (8 if full else REPS))
    if ipf:
        A("s_mov_b64 exec, 0xff")
        A("buffer_load_dword v13, v5, s[32:35], s46 offen sc1")
        A("s_mov_b64 exec, -1")
    A("v_lshrrev_b32 v10, 5, v0")
    A("v_bfe_u32 v11, v0, 4, 1")
    A("v_lshl_add_u32 v10, v11, 1, v10")
    A("v_add_u32 v10, s45, v10")
    A("v_xor_b32 v10, 31, v10")
    for t in range(4):
        for hlf in range(2):
            A(f"s_waitcnt vmcnt({7 - 2*t - hlf + (1 if ipf else 0)})")
            for k in range(4):
                c = "0" if (hlf == 0 and k == 0) else f"v{6+t}"
                A(f"v_dot2_f32_bf16 v{6+t}, v{XR+8*t+4*hlf+k}, v{16+4*hlf+k}, {c}")
    A("s_waitcnt lgkmcnt(0)")
    A("s_add_u32 s40, s40, 8")
    A("s_nop 0")
    A("v_permlane32_swap_b32 v6, v7")
    A("v_permlane32_swap_b32 v8, v9")
    A("v_add_f32 v6, v6, v7")
    A("v_add_f32 v8, v8, v9")
    A("s_nop 1")
    A("v_permlane16_swap_b32 v6, v8")
    A("v_add_f32 v6, v6, v8")
    A("s_nop 1")
    A("v_add_f32_dpp v6, v6, v6 quad_perm:[1,0,3,2] row_mask:0xf bank_mask:0xf")
    A("s_nop 1")
    A("v_add_f32_dpp v6, v6, v6 quad_perm:[2,3,0,1] row_mask:0xf bank_mask:0xf")
    A("s_nop 1")
    A("v_add_f32_dpp v6, v6, v6 row_half_mirror row_mask:0xf bank_mask:0xf")
    A("s_nop 1")
    A("v_add_f32_dpp v6, v6, v6 row_mirror row_mask:0xf bank_mask:0xf")
    A("v_cvt_pk_bf16_f32 v7, v6, v6")
    A("v_and_b32 v7, 0xffff0000, v7          ; r (bf16)")
    A("v_ashrrev_i32 v6, 31, v7")
    A("v_or_b32 v6, 0x80000000, v6")
    A("v_xor_b32 v6, v6, v7")
    A("v_cmp_o_f32 vcc, v7, v7")
    A("v_and_b32 v6, 0xffff0000, v6")
    A("s_nop 0")
    A("v_cndmask_b32 v6, 0, v6, vcc")
    A("v_or_b32 v6, v10, v6")
    A("v_mov_b32 v7, v6")
    A("s_nop 1")
    A("v_permlane16_swap_b32 v6, v7")
    A("v_max_u32 v6, v6, v7")
    A("v_mov_b32 v7, v6")
    A("s_nop 1")
    A("v_permlane32_swap_b32 v6, v7")
    A("v_max_u32 v6, v6, v7")
    A("v_mov_b32 v7, s40")
    if rlag: A(f"s_sleep {rlag}")
    A("s_mov_b64 exec, 0x%x" % ((1 << (LS // 8 if full else NR)) - 1))
    if NR > 1 or full: A(f"buffer_store_dwordx2 v[6:7], v5, s[32:35], s46 offen {rpol}")
    else: A(f"buffer_store_dwordx2 v[6:7], off, s[32:35], s46 {rpol}")
    A("s_mov_b64 exec, -1")
    A("s_barrier                            ; B0b")
    stamp(1)
    A("s_setprio 0")
    A("s_cmp_eq_u32 s3, 4")
    A("s_cbranch_scc1 L_r4")
    A("s_endpgm")
    if align: L.append(".p2align 12" if not (D0 or pace) else ".p2align 6")
    LB("L_cb")
    kb = cpath(2, "b", D3, D3W, BX3)
    assert ka == kb
    A("s_branch L_h")
    LB("L_cc")
    if LBR == 16: stamp(2)
    for n in range(CW): w2load(n)
    for d in range(st["done"]):
        A(f"s_waitcnt vmcnt({LBR - 8 - 8*d + CW})")
        perms(raw, frag, d)
    if FK:
        A(f"s_waitcnt vmcnt({LBR - FK + CW})")
        A(f"ds_write_b32 v12, v12 offset:{L_FLAG + (-1 if uf else 3)}")
    A("s_barrier                            ; BX")
    for n in range(LBR, 16): w1load(n)
    if LBR < 16: stamp(2)
    for n in range(CW, BX3): w2load(n)
    A("s_branch L_bx")

    def idload():
        A(f"buffer_load_dwordx4 v[{IDR}:{IDR+3}], v14, s[28:31], s53 offen{xpol}")
        A(f"buffer_load_dwordx4 v[{IDR+4}:{IDR+7}], v14, s[28:31], s53 offen offset:1024{xpol}")
    def idconv():
        for r in range(IDR, IDR+8):
            A(f"v_lshlrev_b32 v16, 16, v{r}")
            A(f"v_and_b32 v17, 0xffff0000, v{r}")
            A("v_pk_fma_f32 v[16:17], v[16:17], 0, v[16:17] op_sel_hi:[1,0,1]")
            A(f"v_cvt_pk_bf16_f32 v{r}, v16, v17    ; x + x*0")
    def psetup():
        A("s_lshl_b32 s53, s2, 11")
        A("v_mul_u32_u24 v12, %d, v0            ; poll offset" % LS)
        if NR == 1: A("s_movk_i32 s47, %d                 ; the scores" % O_IDX)
        else:
            if NR < 8:
                A(f"s_and_b32 s47, s22, {NR - 1}")
                A("s_mul_i32 s47, s47, %d" % REPS)
            else: A("s_mul_i32 s47, s22, %d" % REPS)
            A("s_add_u32 s47, s47, %d               ; this group's replica" % O_IDX)
        A("v_lshrrev_b32 v11, 3, v0")
        A("s_lshr_b32 s45, s21, 1")
        A("s_sub_u32 s46, 10, s57")
        A("s_lshl_b32 s45, s45, s46")
        A("s_lshl_b32 s48, s20, 14")
        A("s_lshl_b32 s46, s21, 11")
        A("s_add_u32 s48, s48, s46")
        A("s_add_u32 s48, s48, %d               ; own L2-local block" % O_EX1F)
        A("s_lshr_b32 s51, s2, 5")
        if ldr:
            A("s_getreg_b32 s42, hwreg(HW_REG_XCC_ID, 0, 3)")
            A("v_lshlrev_b32 v13, 3, v0")
            A("s_lshl_b32 s42, s42, %d" % (12 if (arr or rk) else {16: 10, 32: 11}[NC] if mc else 8))
            A("s_add_u32 s42, s42, %d               ; this die's copy of the keys" % O_LDR)
    LB("L_r")
    A("s_waitcnt lgkmcnt(0)")
    A("s_load_dword s40, s[18:19], 0        ; epoch")
    A("s_mov_b64 s[28:29], s[4:5]")
    rsetup()
    stamp(1)
    LB("L_r4")
    psetup()
    if ptl:
        A("s_cmp_gt_u32 s57, s58")
        A("s_cbranch_scc0 L_npt")
    for i in range(NC // 16): A(f"buffer_load_dwordx4 v[{16+4*i}:{19+4*i}], v14, s[32:35], s42 offen offset:{1024*i}")
    if ptl: LB("L_npt")
    if arr or rk: A("buffer_load_dword v24, v13, s[32:35], s42 offen offset:2048")
    A("s_cmp_eq_u32 s58, 1")
    A("s_cbranch_scc1 L_rr")
    if uf:
        A("s_cmp_eq_u32 s57, 0")
        A("s_cbranch_scc1 L_nid")
        idload()
        LB("L_nid")
    A("v_mov_b32 v8, 0")
    A("s_mov_b32 s49, 0")
    LB("L_fwait")
    if fsleep: A(f"s_sleep {fsleep}")
    A(f"ds_read_b32 v9, v8 offset:{L_FLAG}")
    A("s_add_u32 s49, s49, 1")
    A("s_cmp_ge_u32 s49, %d" % SPIN)
    A("s_waitcnt lgkmcnt(0)")
    A("v_cmp_eq_u32 vcc, 0, v9")
    A("s_cbranch_scc1 L_fok")
    A("s_cbranch_vccnz L_fwait")
    LB("L_fok")
    if not (idl or uf): idload()
    A("s_add_u32 s40, s40, 8")
    A("s_cmp_eq_u32 s57, 1")
    A("s_cbranch_scc1 L_lead")
    if SF - RF and not uf: A(f"s_sleep {SF - RF}")
    if not (idl or uf): A("s_branch L_sp0")
    LB("L_rr")
    idload()
    LB("L_sp0")
    if RF: A(f"s_sleep {RF}")
    stamp(2)
    A("s_mov_b32 s49, 0")
    if sib is not None:
        A(f"s_getreg_b32 s41, hwreg(HW_REG_HW_ID, {8 + sib}, 1)")
        A(f"s_mul_i32 s46, s41, {64*(NC-1)}")
        A("s_add_u32 s46, s46, s42")
        A("s_lshl_b32 s41, s41, 7")
        A("s_sub_u32 s41, 64, s41")
    else: A("s_mov_b32 s46, s42")
    LB("L_spoll")
    if ssl: A(f"s_sleep {ssl}")
    A("s_load_dwordx16 s[76:91], s[18:19], s46")
    A("s_add_u32 s46, s46, %s               ; the scalar cache keeps what it has seen: another copy next time" % ("64" if sib is None else "s41"))
    A("s_add_u32 s49, s49, 1")
    A(f"s_cmp_gt_u32 s49, {NSP}")
    A("s_cbranch_scc1 L_ip0")
    A("s_waitcnt lgkmcnt(0)")
    A("s_xor_b32 s43, s77, s40")
    for i in ((3, 4, 7) if chk2 else range(1, 8)):
        A(f"s_xor_b32 s44, s{77+2*i}, s40")
        A("s_or_b32 s43, s43, s44")
    A("s_cbranch_scc1 L_spoll")
    stamp(3)
    if stamps: A("s_mov_b32 s59, s49")
    A("s_mov_b32 exec_lo, 0x01010101")
    A("s_mov_b32 exec_hi, 0x01010101")
    for i in range(8):
        A(f"v_mov_b32 v6, s{76+2*i}")
        A("s_lshl_b64 exec, exec, 1" if i < 7 else "s_mov_b64 exec, -1")
    A("s_branch L_sok")
    LB("L_lead")
    if idl: idload()
    if FK and not uf:
        A("s_mov_b32 s49, 0")
        LB("L_fw2")
        if fsleep: A(f"s_sleep {fsleep}")
        A(f"ds_read_b32 v9, v8 offset:{L_FLAG + 4}")
        A("s_add_u32 s49, s49, 1")
        A("s_cmp_ge_u32 s49, %d" % SPIN)
        A("s_waitcnt lgkmcnt(0)")
        A("v_cmp_eq_u32 vcc, 0, v9")
        A("s_cbranch_scc1 L_fo2")
        A("s_cbranch_vccnz L_fw2")
        LB("L_fo2")
    if LF0 is not None:
        A(f"s_cmp_eq_u32 s22, {PERM[0]}")
        A("s_cbranch_scc1 L_lf0")
        A(f"s_sleep {LF - LF0}")
        LB("L_lf0")
        A(f"s_sleep {LF0}")
    elif LF: A(f"s_sleep {LF}")
    stamp(2)
    LB("L_ip0")
    A("s_waitcnt lgkmcnt(0)")
    A("s_mov_b32 s49, 0")
    if not is0: A("s_branch L_ipl")
    LB("L_ipoll")
    if IS: A(f"s_sleep {IS}")
    if not is0: LB("L_ipl")
    A(f"buffer_load_dwordx2 v[8:9], v12, s[32:35], s47 offen sc1")
    LB("L_ichk")
    A("s_add_u32 s49, s49, 1")
    A("s_cmp_ge_u32 s49, %d" % SPIN)
    A(f"s_waitcnt vmcnt(0)")
    A(f"v_cmp_ne_u32 vcc, s40, v9")
    A("s_cbranch_scc1 L_iok")
    A("s_cbranch_vccnz L_ipoll")
    LB("L_iok")
    stamp(3)
    if stamps: A("s_mov_b32 s59, s49")
    A("v_max_u32_dpp v8, v8, v8 row_ror:8 row_mask:0xf bank_mask:0xf")
    A("v_mov_b32 v9, v8")
    if ldr:
        A("v_mov_b32 v7, s40")
        A("s_nop 0")
    else:
        A("s_mov_b32 m0, %d" % L_XS)
        A("s_cmp_eq_u32 s57, 1")
    A("v_permlane16_swap_b32 v8, v9")
    A("v_max_u32 v8, v8, v9")
    A("v_mov_b32 v9, v8")
    A("s_nop 1")
    A("v_permlane32_swap_b32 v8, v9")
    A("v_max_u32 v6, v8, v9")
    if ldr:
        if rk:
            A("v_mov_b32 v8, 0")
            A("buffer_store_dword v8, off, s[32:35], s42 offset:2048")
        if mc:
            for i in range(NC // 8): A(f"buffer_store_dwordx2 v[6:7], v13, s[32:35], s42 offen offset:{512*i}")
        else:
            A("s_mov_b64 exec, 0xff")
            A("buffer_store_dwordx2 v[6:7], v13, s[32:35], s42 offen")
            A("s_mov_b64 exec, -1")
        if xpf:
            A("v_and_b32 v15, 31, v6")
            A("v_xor_b32 v15, 31, v15")
            A("v_lshl_add_u32 v15, v4, 5, v15")
            A("v_lshlrev_b32 v15, 11, v15")
            A("v_lshl_add_u32 v15, v11, 7, v15")
            A("buffer_load_dword v32, v15, s[28:31], 0 offen")
            A("buffer_load_dword v33, v15, s[28:31], 0 offen offset:1024")
        LB("L_sok")
        A("s_mov_b32 m0, %d" % L_XS)
        A("s_cmp_eq_u32 s57, 1")
    A("v_and_b32 v10, 31, v6")
    A("v_xor_b32 v10, 31, v10")
    A("v_lshl_add_u32 v10, v4, 5, v10       ; row")
    A("v_lshlrev_b32 v10, 11, v10")
    A("v_lshl_add_u32 v10, v11, 4, v10      ; + chunk*16")
    for i in range(8):
        if i == 4: A("s_cbranch_scc1 L_dmadone")
        A(f"buffer_load_dwordx4 v10, s[28:31], s45 offen{xpol} lds")
        if i < 7:
            A("s_mov_b32 m0, %d" % (L_XS + 1024*(i+1)))
            A("v_add_u32 v10, 128, v10")
    LB("L_dmadone")
    if not early_id: idload()
    pto = "s48" if pt else "s56"
    if not pt: A("s_mov_b32 s56, 0x40000000")
    A(f"buffer_load_dwordx4 v[24:27], v14, s[32:35], {pto} offen {ptp}")
    A(f"buffer_load_dwordx4 v[28:31], v14, s[32:35], {pto} offen offset:1024 {ptp}")
    A("s_barrier                            ; BX")
    A("v_readlane_b32 s55, v6, s51")
    A("s_and_b32 s46, s2, 31")
    A("s_and_b32 s54, s55, 31")
    A("s_xor_b32 s54, s54, 31")
    A("s_cmp_eq_u32 s54, s46")
    A("s_cselect_b32 s56, 0x40000000, s53")
    if ldr:
        A("s_waitcnt vmcnt(10)")
        A("s_cmp_eq_u32 s57, 0")
        A("s_cbranch_scc1 L_idw")
        A("s_waitcnt vmcnt(6)")
        LB("L_idw")
        idconv()
    def idstore():
        A(f"buffer_store_dwordx4 v[{IDR}:{IDR+3}], v14, s[36:39], s56 offen{outpol}")
        A(f"buffer_store_dwordx4 v[{IDR+4}:{IDR+7}], v14, s[36:39], s56 offen offset:1024{outpol}")
    if ids == 'bx': idstore()
    A("v_lshrrev_b32 v7, 5, v0")
    A("v_bfe_u32 v8, v0, 4, 1")
    A("v_lshl_add_u32 v7, v8, 1, v7         ; e")
    A("v_lshl_add_u32 v7, v4, 2, v7         ; 4*pos + e")
    A("s_lshl_b32 s45, s51, 5")
    A("s_add_u32 s45, s45, s54")
    A("s_lshl_b32 s45, s45, 5")
    A("s_add_u32 s45, s45, s46")
    A("s_lshl_b32 s45, s45, 5")
    A("v_add_u32 v7, s45, v7")
    A("v_lshlrev_b32 v7, 1, v7")
    A("buffer_load_ushort v9, v7, s[28:31], 0 offen")
    A(f"s_waitcnt vmcnt({5 if ids == 'bx' else 3})")
    A("s_barrier                            ; B2")
    stamp(4)
    if not early_id:
        A("s_waitcnt vmcnt(3)")
        idconv()
    A("s_lshr_b32 s44, s55, 16")
    A("s_xor_b32 s45, s44, 0xffff")
    A("s_and_b32 s44, s44, 0x7fff")
    A("s_cmp_lt_i32 s55, 0")
    A("s_cselect_b32 s44, s44, s45")
    A("s_lshl_b32 s44, s44, 16              ; r")
    A("v_mov_b32 v10, 0xbfb8aa3b")
    A("v_mul_f32 v10, s44, v10")
    A("v_exp_f32 v10, v10")
    A("s_and_b32 s41, s40, 0xff")
    A("v_add_f32 v10, 1.0, v10")
    A("v_rcp_f32 v10, v10")
    if ids == 'b2': idstore()
    A("s_barrier                            ; B3")
    if ids == 'b3':
        if idd: A(f"s_sleep {idd}")
        idstore()
    if not early_id:
        A(f"buffer_store_dwordx4 v[{IDR}:{IDR+3}], v14, s[36:39], s56 offen{outpol}")
        A(f"buffer_store_dwordx4 v[{IDR+4}:{IDR+7}], v14, s[36:39], s56 offen offset:1024{outpol}")
    A("v_cvt_pk_bf16_f32 v10, v10, v10")
    A("v_and_b32 v10, 0xffff0000, v10       ; sigmoid")
    A("s_mul_i32 s46, s2, %d" % X2S)
    A("s_add_u32 s46, s46, %d" % O_EX2)
    A("s_add_u32 s47, s46, 4096")
    A("s_mov_b32 s49, 0")
    A("s_mov_b32 s44, 0x00ff00ff")
    A("s_mov_b32 s45, 0x00ff00ff")
    A("s_waitcnt vmcnt(%d)" % (2 if ids in ('b2', 'b3') else 0))
    A("v_lshlrev_b32 v9, 16, v9             ; x")
    if cz: A("v_fma_f32 v9, v9, 0, v9              ; x + x*0")
    if arr:
        A("v_and_b32 v13, 31, v0")
        A("v_lshlrev_b32 v13, 2, v13")
        A("v_mov_b32 v12, s40")
        A("s_lshl_b32 s43, s23, 2")
        A("s_add_u32 s43, s43, s42")
        A("s_mov_b64 exec, 1")
    if mx: A("v_mov_b32 v13, 0")
    if rk:
        A("v_mov_b32 v12, 1")
        A("s_mov_b64 exec, 1")
    A("s_barrier                            ; B4")
    if rk:
        A("buffer_atomic_add v12, off, s[32:35], s42 offset:2048 sc0")
        A("s_mov_b64 exec, -1")
    if arr:
        A("buffer_store_dword v12, off, s[32:35], s43 offset:2048")
        A("s_mov_b64 exec, -1")
    if not b4: A("s_barrier")
    stamp(5)
    if ids == 'b4': idstore()
    if X20 is not None:
        A(f"s_cmp_eq_u32 s22, {PERM[0]}")
        A("s_cbranch_scc1 L_x20")
        A(f"s_sleep {x2d - X20}")
        LB("L_x20")
        if X20: A(f"s_sleep {X20}")
    elif rk:
        A("s_waitcnt vmcnt(0)")
        A("v_readfirstlane_b32 s43, v12")
        stamp(4)
        A("s_min_u32 s43, s43, 31")
        if stamps: A("s_mov_b32 s59, s43")
        A(f"s_mul_i32 s43, s43, {rk[1]}")
        A("s_lshr_b32 s43, s43, 4")
        A(f"s_sub_i32 s43, {rk[0]}, s43")
        A(f"s_max_i32 s43, s43, {rk[2]}")
        if len(rk) > 3: A(f"s_min_i32 s43, s43, {rk[3]}")
        LB("L_rk")
        A("s_sleep 1")
        A("s_sub_u32 s43, s43, 1")
        A("s_cmp_gt_i32 s43, 0")
        A("s_cbranch_scc1 L_rk")
    elif arr:
        LB("L_arr")
        if len(arr) > 2 and arr[2]: A(f"s_sleep {arr[2]}")
        A("buffer_load_dword v15, v13, s[32:35], s42 offen offset:2048 sc1")
        A("s_add_u32 s49, s49, 1")
        A(f"s_cmp_ge_u32 s49, {arr[0]}")
        A("s_waitcnt vmcnt(0)")
        A("v_cmp_ne_u32 vcc, s40, v15")
        A("s_cbranch_scc1 L_aok")
        A("s_cbranch_vccnz L_arr")
        LB("L_aok")
        if stamps: A("s_mov_b32 s59, s49")
        A("s_mov_b32 s49, 0")
        if arr[1]: A(f"s_sleep {arr[1]}")
        stamp(4)
    elif x2d: A(f"s_sleep {x2d}")
    if mx:
        MS = 76 if stamps else 60
        def ld(i):
            so = "s46" if i < 4 else "s47"
            A(f"buffer_load_dwordx4 v[{32+4*i}:{35+4*i}], v14, s[32:35], {so} offen offset:{(i%4)*1024} sc1")
        def chk(i):
            b = 32 + 4*i
            for r in range(b, b+4): A(f"v_xor_b32 v{r}, s41, v{r}")
            A(f"v_or3_b32 v15, v{b}, v{b+1}, v{b+2}")
            A(f"v_or_b32 v15, v15, v{b+3}")
            A(f"v_cmp_ne_u32_sdwa s[{MS+2*i}:{MS+2*i+1}], v15, v13 src0_sel:BYTE_0 src1_sel:DWORD")
        def anyleft():
            A(f"s_or_b64 s[42:43], s[{MS}:{MS+1}], s[{MS+2}:{MS+3}]")
            for i in range(2, 7): A(f"s_or_b64 s[42:43], s[42:43], s[{MS+2*i}:{MS+2*i+1}]")
        for i in range(7): ld(i)
        A("s_mov_b32 s49, 1")
        for i in range(7):
            A(f"s_waitcnt vmcnt({6-i})")
            chk(i)
            if i == 1: A("v_pk_add_f32 v[16:17], v[32:33], v[36:37]"); A("v_pk_add_f32 v[18:19], v[34:35], v[38:39]")
            if i >= 2: A(f"v_pk_add_f32 v[16:17], v[16:17], v[{32+4*i}:{33+4*i}]"); A(f"v_pk_add_f32 v[18:19], v[18:19], v[{34+4*i}:{35+4*i}]")
        anyleft()
        A("s_cbranch_scc0 L_x2ok")
        LB("L_x2poll")
        if x2s: A(f"s_sleep {x2s}")
        for i in range(7):
            A(f"s_mov_b64 exec, s[{MS+2*i}:{MS+2*i+1}]")
            A(f"s_cbranch_execz L_x2l{i}")
            ld(i)
            LB(f"L_x2l{i}")
        A("s_add_u32 s49, s49, 1")
        A("s_waitcnt vmcnt(0)")
        for i in range(7):
            A(f"s_mov_b64 exec, s[{MS+2*i}:{MS+2*i+1}]")
            A(f"s_cbranch_execz L_x2c{i}")
            chk(i)
            LB(f"L_x2c{i}")
        A("s_mov_b64 exec, -1")
        anyleft()
        A("s_cbranch_scc0 L_x2sum")
        A("s_cmp_lt_u32 s49, %d" % SPIN)
        A("s_cbranch_scc1 L_x2poll")
        LB("L_x2sum")
        A("v_pk_add_f32 v[16:17], v[32:33], v[36:37]"); A("v_pk_add_f32 v[18:19], v[34:35], v[38:39]")
        for i in range(2, 7):
            A(f"v_pk_add_f32 v[16:17], v[16:17], v[{32+4*i}:{33+4*i}]"); A(f"v_pk_add_f32 v[18:19], v[18:19], v[{34+4*i}:{35+4*i}]")
        A("s_nop 0")
    else:
        if pre:
            A("s_branch L_x2poll")
            LB("L_x2re")
            A("s_cmp_ge_u32 s49, %d" % SPIN)
            A("s_cbranch_scc1 L_x2ok")
        LB("L_x2poll")
        for i in range(7):
            so = "s46" if i < 4 else "s47"
            A(f"buffer_load_dwordx4 v[{32+4*i}:{35+4*i}], v14, s[32:35], {so} offen offset:{(i%4)*1024} sc1")
        A("s_add_u32 s49, s49, 1")
        for i in range(7):
            A(f"s_waitcnt vmcnt({6-i})")
            b = 32 + 4*i
            for r in range(b, b+4, {0: 1, 2: 2, 1: 4}[t2]): A(f"v_xor_b32 v{r}, s41, v{r}")
            if t2 == 2: A(f"v_or_b32 v15, v{b}, v{b+2}" if i == 0 else f"v_or3_b32 v15, v15, v{b}, v{b+2}")
            elif t2 == 1:
                if i == 1: A(f"v_or_b32 v15, v{b-4}, v{b}")
                elif i in (3, 5): A(f"v_or3_b32 v15, v15, v{b-4}, v{b}")
                elif i == 6: A(f"v_or_b32 v15, v15, v{b}")
            elif i == 0:
                A(f"v_or3_b32 v15, v{b}, v{b+1}, v{b+2}")
                A(f"v_or_b32 v15, v15, v{b+3}")
            else:
                A(f"v_or3_b32 v15, v15, v{b}, v{b+1}")
                A(f"v_or3_b32 v15, v15, v{b+2}, v{b+3}")
            if i:
                src = 32 if i == 1 else 16
                A(f"v_pk_add_f32 v[16:17], v[{src}:{src+1}], v[{b}:{b+1}]")
                A(f"v_pk_add_f32 v[18:19], v[{src+2}:{src+3}], v[{b+2}:{b+3}]")
        if sdwa: A("v_cmp_ne_u32_sdwa vcc, v15, 0 src0_sel:BYTE_0 src1_sel:DWORD")
        else:
            A("v_and_b32 v15, 0xff, v15")
            A("v_cmp_ne_u32 vcc, 0, v15")
        if pre: A("s_cbranch_vccnz L_x2re")
        else:
            A("s_cbranch_vccz L_x2ok")
            if x2s: A(f"s_sleep {x2s}")
            A("s_cmp_lt_u32 s49, %d" % SPIN)
            A("s_cbranch_scc1 L_x2poll")
    LB("L_x2ok")
    stamp(6)
    A("v_permlane32_swap_b32 v16, v17")
    A("v_permlane32_swap_b32 v18, v19")
    A("v_add_f32 v16, v16, v17")
    A("v_add_f32 v18, v18, v19")
    A("s_nop 1")
    A("v_permlane16_swap_b32 v16, v18")
    A("v_add_f32 v16, v16, v18")
    A("s_nop 1")
    A("v_add_f32_dpp v16, v16, v16 row_ror:8 row_mask:0xf bank_mask:0xf")
    A("s_mov_b64 exec, s[44:45]")
    if cz:
        A("v_cvt_pk_bf16_f32 v16, 0, v16")
        A("v_mul_f32 v16, v16, v10")
        A("v_cvt_pk_bf16_f32 v16, 0, v16         ; y*sigmoid")
        A("v_add_f32 v16, v9, v16               ; x + (x*0 + y*sigmoid)")
    else:
        A("v_cvt_pk_bf16_f32 v16, v16, v16")
        A("v_and_b32 v16, 0xffff0000, v16       ; y")
        A("v_mul_f32 v16, v16, v10")
        A("v_cvt_pk_bf16_f32 v16, v16, v16")
        A("v_and_b32 v16, 0xffff0000, v16       ; y*sigmoid")
        A("v_fma_f32 v16, v9, 0, v16            ; upd = x*0 + y")
        A("v_add_f32 v16, v9, v16")
    A("v_cvt_pk_bf16_f32 v16, v16, v16")
    A(f"buffer_store_short v16, v7, s[36:39], 0 offen{finpol}")
    A(f"s_cmp_lg_u32 s2, {epw}")
    A("s_cbranch_scc1 L_noep")
    A("v_mov_b32 v18, s40")
    A("s_mov_b64 exec, 1")
    A(f"buffer_store_dword v18, off, s[32:35], 0 {eppol}")
    LB("L_noep")
    stamp(7)
    LB("L_fin")
    if stamps:
        import diag
        if dg: diag.epilogue(A, LB, dg, nwg=256, invalid=())
        elif gamp: diag.gamp(A, LB, gamp)
        else:
            A("s_barrier")
            diag.dump(A, LB)
    LB("L_end")
    A("s_endpgm")
    L.extend(slow)
    body = "\n".join(L)
    pad = ".p2align 12\n.fill 832, 4, 0xbf800000            ; the kernel starts a 4 KB page (instruction prefetch stops at page ends)\n" if align else ""
    return f"""{HEAD}; @launch grid=(256,1,1) block=(384,1,1) lds={LDS_BYTES}
{DOC}.amdgcn_target "amdgcn-amd-amdhsa--gfx950"
.text
.globl {KN}
{pad}.p2align 8
.type {KN},@function
{KN}:
{body}
.section .rodata,"a"
.p2align 6
.amdhsa_kernel {KN}
  .amdhsa_next_free_vgpr 160
  .amdhsa_next_free_sgpr 96
  .amdhsa_accum_offset 160
  .amdhsa_group_segment_fixed_size 0
  .amdhsa_kernarg_size 64
  .amdhsa_user_sgpr_count 2
  .amdhsa_user_sgpr_kernarg_segment_ptr 1
  .amdhsa_system_sgpr_workgroup_id_x 1
  .amdhsa_float_denorm_mode_32 3
.end_amdhsa_kernel
"""
if __name__ == "__main__":
    import sys, json
    kw = json.loads(sys.argv[2]) if len(sys.argv) > 2 else {}
    open(sys.argv[1] if len(sys.argv) > 1 else "standalone__moe_arch_mod__sampling.s", "w").write(gen(**kw))
```

```python
KN = "standalone__moe_arch_mod__sampling_kernel"
HEAD = open("standalone__moe_arch_mod__sampling.s.ref").read().split("; Override launch")[0]

O_IDX = 0x1000
O_LDR = 0x12000
O_EX1F = 0x20000
O_EX2 = 0x100000
O_EX1 = 0x300000
WS_REC = 0x500000
L_XS = 0
L_RED = 8192
L_HB = 16384
L_KEY = 17408
L_FLAG = 17408 + 32
LDS_BYTES = 17408 + 64
SPIN = 40000

DOC = """; MoD sampling block: route (argmax of x.w_r per batch), SwiGLU FFN on the 8 selected rows, residual update.
"""

def gen(pol="nt", xpol="", D=11, DI=6, D3=8, D3W=12, BX=7, BX3=8, DX=32, LS=8, NF=12, PK=3, FS=38, fsleep=1,
        outpol="sc1", finpol="", x1pol="", x2d=26, PERM=(7,0,1,2,4,5,6,3), align=True, prog=False, early_id=True,
        stamps=False, dg=None, gamp=None, cst1=True, lag0=0, MAP="B", DUP0=True, X2S=8192, nob5=False, mx=False, x2s=0, b4=True, rlag=0, IS=6, ipf=0, FS0=None, X20=None, late2=0, late3=0, D0=None, pace=None, pace3=None, DT=None, em=1, ldr=True, NSP=None, ssl=1, hold=None, mc=True, SF=28, NC=32, lid='pre', lw=None, D3B=None, hx=False, D3X=None, R3=1, wg=None, NLD=2, LF=0, RF=0, CW=0, lp=1, lps=5, NR=1, FA=1, full=False, rpol='sc1', LBR=16, nodup=False, nr0=False, PK3=None, KP=4, LF0=None, sib=None, xr=False, x1ld='sc1', pt=True, x1f=None, ptp='', skip=True, dum=False, ids='bx', idd=0, FK=16, arr=None, rk=None, xpf=False, is0=False, eppol='', epw=193, idl=False, ptl=False, chk2=False, DWA=None, scr=False, wb=None, r3e=0, uf=None, t2=2, t1x=True, sdwa=True, post=True, emk=3, cz=True, pre=True, own=True, cz4=True, ST=None, SG=4):
    if gamp or dg: stamps = True
    if NSP is None: NSP = NC - 1
    L = []
    def A(s): L.append("  " + s)
    def LB(s): L.append(s + ":")
    def stamp(i):
        if stamps: A(f"s_memrealtime s[{60+2*i}:{61+2*i}]")
    sp = lambda p: (" " + p) if p else ""
    pol, xpol, outpol, finpol, x1pol = map(sp, (pol, xpol, outpol, finpol, x1pol))
    REPS = 64 * LS
    XR = 80
    RAW = 16; FR = 80; XB = 96; ACC = 112; W2 = 128
    F2 = 40; HA = 72
    IDR = 40
    def raw(s, i): return RAW + 16*s + 2*i
    def frag(s, j): return (FR if s == 0 else RAW + 16*(s-1)) + 4*j
    def raw2(s, i): return W2 + 16*s + 2*i
    def frag2(s, j): return F2 + 16*s + 4*j
    def perm_pair(rawf, fragf, s, p):
        for e in range(2):
            A(f"v_perm_b32 v{fragf(s,2*e)+p}, v{rawf(s,2*p+1)+e}, v{rawf(s,2*p)+e}, s42")
            A(f"v_perm_b32 v{fragf(s,2*e+1)+p}, v{rawf(s,2*p+1)+e}, v{rawf(s,2*p)+e}, s43")
    def perms(rawf, fragf, s):
        for p in range(4): perm_pair(rawf, fragf, s, p)
    def w1load(n):
        s, i = divmod(n, 8)
        A(f"buffer_load_dwordx2 v[{raw(s,i)}:{raw(s,i)+1}], v3, s[24:27], s44 offen{pol}")
        A("s_addk_i32 s44, 7168" if i < 7 else "s_add_u32 s44, s44, %d" % (25*7168))
    def w2load(n):
        s, i = divmod(n, 8)
        p, b = divmod(i, 2)
        row = 2*s + (p >> 1) + 8*(p & 1) + 4*b
        A("s_add_u32 s47, s53, %d" % (row*2048))
        A(f"buffer_load_dwordx2 v[{raw2(s,i)}:{raw2(s,i)+1}], v10, s[28:31], s47 offen{pol}")

    if lag0:
        A("s_and_b32 s3, s2, 7")
        A("s_cmp_lg_u32 s3, 0")
        A("s_cbranch_scc1 L_nolag")
        A(f"s_sleep {lag0}")
        LB("L_nolag")
    stamp(0)
    A("s_cmp_ge_u32 s2, 256")
    A("s_cbranch_scc1 L_exit")
    A("s_load_dwordx16 s[4:19], s[0:1], 0")
    A("v_lshrrev_b32 v1, 6, v0")
    A("v_and_b32 v0, 63, v0                 ; lane")
    A("v_readfirstlane_b32 s3, v1           ; wave")
    A("s_lshl_b32 s22, s2, 2")
    A("s_lshr_b32 s22, 0x%x, s22" % sum(v << (4*i) for i, v in enumerate(PERM)))
    A("s_and_b32 s22, s22, 7")
    A("s_lshr_b32 s23, s2, 3")
    if scr:
        A("s_lshr_b32 s22, s2, 5")
        A("s_and_b32 s23, s2, 31")
    A("s_lshr_b32 s44, s23, 2")
    A("s_mul_i32 s45, s22, 6")
    A("s_add_u32 s45, s45, s44")
    A("s_add_u32 s44, s45, 4")
    A("s_mul_i32 s44, s44, 37")
    A("s_lshr_b32 s44, s44, 8")
    A("s_add_u32 s20, s45, s44")
    A("s_lshl_b32 s44, s22, 3")
    A("s_add_u32 s44, s44, 3")
    A("s_min_u32 s44, s44, 55")
    A("s_cmp_ge_u32 s23, 24")
    A("s_cselect_b32 s20, s44, s20")
    A("s_cselect_b32 s57, 1, 0")
    A("s_cselect_b32 s21, 7, 3")
    A("s_and_b32 s21, s21, s23              ; part")
    A(f"s_cmp_ge_u32 s23, {24 + NLD}")
    A("s_cselect_b32 s58, 1, 0")
    A("s_mov_b32 s27, 0x20000")
    A("s_cmp_lt_u32 s3, 4")
    A("s_cbranch_scc1 L_c")
    A("s_mov_b32 s30, 524288")
    A("s_mov_b32 s31, 0x20000")
    A("v_lshlrev_b32 v14, 4, v0             ; lane*16")
    A("s_cmp_eq_u32 s58, 1")
    A("s_cbranch_scc1 L_rt")
    A("s_cmp_eq_u32 s3, 4")
    A("s_cbranch_scc1 L_r")
    LB("L_exit")
    A("s_endpgm")
    LB("L_rt")
    A("s_setprio 3")
    A(f"s_mul_i32 s52, s22, {8 - NLD}")
    A("s_add_u32 s52, s52, s21")
    A("s_lshl_b32 s52, s52, 1")
    A("s_add_u32 s52, s52, s3")
    A(f"s_sub_u32 s52, s52, {4 + 2*NLD}")
    if nodup:
        A(f"s_cmp_ge_u32 s52, {nodup}")
        A("s_cselect_b32 s56, 0x40000000, 0")
    A("s_and_b32 s52, s52, 63")
    A("s_lshl_b32 s44, s52, 13")
    if nodup: A("s_or_b32 s44, s44, s56")
    A("s_add_u32 s45, s44, 4096")
    A("s_movk_i32 s26, 2048")
    A("s_waitcnt lgkmcnt(0)")
    A("s_mov_b64 s[28:29], s[4:5]")
    A("s_mov_b64 s[24:25], s[6:7]")
    A("s_load_dword s40, s[18:19], 0        ; epoch")
    A(f"buffer_load_dwordx4 v[16:19], v14, s[24:27], 0 offen")
    A(f"buffer_load_dwordx4 v[20:23], v14, s[24:27], 0 offen offset:1024")
    for i in range(8):
        if r3e and i == 8 - 2*r3e:
            A("s_mov_b32 s45, 0x40000000")
        A(f"buffer_load_dwordx4 v[{XR+4*i}:{XR+4*i+3}], v14, s[28:31], {'s44' if i < 4 else 's45'} offen offset:{(i%4)*1024}{xpol}")
    A("s_barrier                            ; B0")
    A("s_branch L_route")
    LB("L_c")
    A("v_mov_b32 v4, 0")
    if FK and not uf:
        A("v_mov_b32 v5, 0")
        A(f"ds_write_b64 v4, v[4:5] offset:{L_FLAG}")
    else: A(f"ds_write_b32 v4, v4 offset:{L_FLAG}")
    A("s_mov_b32 s26, 7340032")
    A("v_lshrrev_b32 v1, 4, v0              ; g")
    A("v_and_b32 v2, 15, v0                 ; n")
    A("v_mul_u32_u24 v3, %d, v1" % (8*7168))
    A("v_lshl_add_u32 v3, v2, 3, v3         ; voffset")
    A("s_lshr_b32 s44, s21, 1")
    A("s_lshl_b32 s44, s44, 2")
    A("s_add_u32 s44, s44, s3")
    A("s_lshr_b32 s45, %d, s57" % (128*7168))
    A("s_mul_i32 s44, s44, s45")
    A("s_lshl_b32 s45, s20, 7")
    A("s_add_u32 s44, s44, s45              ; soffset")
    A("s_bitcmp1_b32 s21, 0")
    A("s_waitcnt lgkmcnt(0)")
    A("s_cselect_b64 s[24:25], s[10:11], s[8:9]")
    A("s_cmp_eq_u32 s58, 0")
    A("s_cbranch_scc1 L_nb0")
    A("s_barrier")
    LB("L_nb0")
    if not cst1: stamp(1)
    for n in range(DI): w1load(n)
    A("s_load_dword s40, s[18:19], 0        ; epoch")
    if stamps:
        A("s_getreg_b32 s59, hwreg(HW_REG_HW_ID)")
    A("s_mov_b64 s[32:33], s[18:19]")
    A("s_mov_b32 s34, %d" % WS_REC)
    A("s_mov_b32 s35, 0x20000")
    A("s_mov_b32 s42, 0x05040100")
    A("s_mov_b32 s43, 0x07060302")
    A("v_and_b32 v8, 7, v0")
    A("v_lshl_add_u32 v13, v1, 3, v8")
    A("v_lshlrev_b32 v13, 4, v13")
    A("s_lshl_b32 s45, s3, 11")
    A("v_add_u32 v4, s45, v13")
    A("s_lshr_b32 s45, s45, s57")
    A("v_add_u32 v5, s45, v13")
    A("v_lshlrev_b32 v6, 3, v0")
    A("s_lshl_b32 s45, s3, 9")
    A("v_add_u32 v6, s45, v6                ; w*512 + lane*8")
    A("v_lshrrev_b32 v7, 1, v0")
    A("v_lshlrev_b32 v7, 4, v7")
    A("v_and_b32 v9, 1, v0")
    A("v_lshl_add_u32 v7, v9, 2, v7")
    A("s_lshr_b32 s45, s3, 1")
    A("s_lshl_b32 s45, s45, 9")
    A("s_and_b32 s46, s3, 1")
    A("s_lshl_b32 s46, s46, 3")
    A("s_add_u32 s45, s45, s46")
    A("v_add_u32 v7, s45, v7")
    A("s_mov_b64 s[28:29], s[12:13]")
    A("s_mov_b32 s30, 7340032")
    A("s_mov_b32 s31, 0x20000")
    A("v_lshlrev_b32 v10, 15, v1            ; g*16*2048")
    A("v_lshl_add_u32 v10, v2, 3, v10")
    A("v_lshrrev_b32 v11, 3, v2")
    A("v_lshl_add_u32 v11, v1, 7, v11       ; 4g*32 + (n>>3)")
    A("v_mul_u32_u24 v11, %d, v11" % X2S)
    A("v_lshl_add_u32 v11, v8, 4, v11       ; + (n&7)*16")
    A("s_lshl_b32 s53, s21, 2")
    A("s_lshr_b32 s53, s53, s57")
    A("s_add_u32 s53, s53, s3")
    A("s_lshr_b32 s45, s3, 1")
    A("s_and_b32 s45, s45, s57")
    A("s_lshl_b32 s45, s45, 30")
    A("v_or_b32 v10, s45, v10")
    A("v_or_b32 v11, s45, v11")
    A("s_mul_i32 s52, s53, %d" % (2*X2S))
    A("s_lshl_b32 s46, s20, 7")
    A("s_add_u32 s52, s52, s46")
    A("s_add_u32 s52, s52, %d" % O_EX2)
    A("s_lshl_b32 s53, s53, 7")
    A("s_lshl_b32 s46, s20, 17              ; tile*64*2048")
    A("s_add_u32 s53, s53, s46")
    A("s_lshl_b32 s45, s20, 14")
    A("s_lshl_b32 s46, s21, 11")
    A("s_add_u32 s45, s45, %d               ; group base" % O_EX1F)
    A("s_add_u32 s46, s46, s45")
    A("s_mov_b32 s48, 0xffffff00")
    A("s_mov_b32 s50, 0xbfb8aa3b            ; -log2(e)")
    A("s_mov_b32 s51, 0xbfb8aa3b")
    A("s_mov_b32 s49, 0")
    A("s_getreg_b32 s54, hwreg(HW_REG_XCC_ID, 0, 3)")
    A("v_mov_b32 v12, 1")
    if not D0: A("v_cmp_eq_u32 vcc, s57, v12")
    A("s_cmp_eq_u32 s58, 1")
    A("s_cbranch_scc1 L_cb")

    slow = []; st = {}
    def cpath(NS, sfx, DD, DW, bx):
        NL = 8*NS
        done = 0
        landed = 0
        if NS == 2: A("s_barrier")
        lt = late2 if NS == 4 else late3
        if D0 and NS == 4:
            A(f"s_cmp_eq_u32 s22, {PERM[0]}")
            A("s_cselect_b64 vcc, -1, 0")
        landed0 = 1
        for n in range(DI, NL + 16 - lt):
            dn = min(DD, DI + (n - DI + 1) * (R3 if NS == 2 else 1) // 2) if n < NL else DW
            if n >= NL + bx:
                if n == NL + bx:
                    A("s_barrier")
                    if NS == 2:
                        LB("L_bx"); st["done"] = done
                dn = DX
                if wg is not None and NS == 4 and n == NL + bx: dn = bx + wg + 1
            if NS == 2 and hold is not None:
                if n == DI + hold: A("s_barrier                            ; " + ("BX: the keys and the selected rows are in the queue" if hx else "B0c: the first look at the scores is in the queue"))
                if D3B and DI + hold <= n < NL: dn = D3B
                if D3X and n >= NL: dn = D3X
            if DT and NS == 4 and DT[0] <= n < NL + bx: dn = min(DT[1], DD + (n - DT[0] + 1) * DT[2] // 2)
            pc = pace if NS == 4 else pace3
            if pc and DI < n < NL + bx:
                dn = pc[2]
                if (n - DI) % pc[0] == 0 or pc[0] == 1: A(f"s_sleep {pc[1]}")
            if D0 and NS == 4 and n > DI + 1 and n < NL + bx:
                d0 = min(D0[0] + (n & 1), DI + (n - DI + 1) * D0[1] // 2)
                if n >= NL: d0 = dn = max(dn, 12)
                if n - dn + 1 > landed0 and d0 > dn:
                    A(f"s_cbranch_vccnz L_d0_{n}")
                    A(f"s_waitcnt vmcnt({dn-1})")
                    LB(f"L_d0_{n}")
                    landed0 = n - dn + 1
                dn = max(dn, d0)
            if n - dn + 1 > landed:
                A(f"s_waitcnt vmcnt({dn-1})")
                landed = n - dn + 1
            if n == DI and cst1: stamp(1)
            if n == LBR and NS == 4:
                assert done == 0
                if D0:
                    A("s_cmp_eq_u32 s57, 1")
                    A("s_cbranch_scc1 L_cc")
                else: A("s_cbranch_vccnz L_cc")
            if n < NL: w1load(n)
            else: w2load(n - NL)
            if n == (uf or DI) and NS == 4:
                A(f"ds_write_b32 v12, v12 offset:{L_FLAG - 1}      ; " + ("the keys will not be long" if uf else "the first weights have landed"))
            if n == NL - 1: stamp(2)
            while done < NS and 8*done + 8 <= landed:
                perms(raw, frag, done); done += 1
        A("s_waitcnt lgkmcnt(0)")
        A("s_add_u32 s40, s40, 8                ; tag32")
        A("s_and_b32 s41, s40, 0xff")
        A("s_and_b32 s55, s40, 0xf8")
        A("s_or_b32 s54, s54, s55")
        A("v_mov_b32 v9, s41")
        A("v_mov_b32 v12, s54")
        if skip:
            A("s_bitcmp1_b32 s21, 0")
            A("s_cselect_b64 s[22:23], -1, 0")
        if pre:
            for b in range(1, 4 if NS == 4 else 8): A(f"s_xor_b32 s{75+b}, s46, {b*2048}" + ("           ; blocks of the other parts" if b == 1 else ""))
            for r in range(1, 4): A(f"s_add_u32 s{83+r}, s52, {r*32*X2S}")
        if NL + 16 - lt <= NL + bx: A("s_barrier                            ; BX")
        while done < NS - (1 if em and NS == 4 else 0):
            A(f"s_waitcnt vmcnt({NL + 16 - lt - 8*done - 8})")
            perms(raw, frag, done); done += 1
        if emk and done < NS:
            A(f"s_waitcnt vmcnt({16 + 8 - 2*emk})")
            for p in range(emk): perm_pair(raw, frag, NS - 1, p)
        A("s_barrier")
        stamp(3)
        for n in range(16 - lt, 16): w2load(n)
        for s in range(NS):
            A(f"ds_read_b128 v[{XB+4*s}:{XB+4*s+3}], v5 offset:{L_XS + 512*s}")
        for s in range(NS):
            late = done < NS
            if late and em == 1 and s == NS - 1:
                A("s_waitcnt vmcnt(16)")
                for p in range(emk, 4): perm_pair(raw, frag, NS - 1, p)
                if emk == 3: A("s_nop 0")
            if late and em == 2 and s == NS - 2: A("s_waitcnt vmcnt(16)")
            A(f"s_waitcnt lgkmcnt({NS-1-s})")
            for j in range(4):
                c = "0" if s == 0 else f"v[{ACC+4*j}:{ACC+4*j+3}]"
                A(f"v_mfma_f32_16x16x32_bf16 v[{ACC+4*j}:{ACC+4*j+3}], v[{frag(s,j)}:{frag(s,j)+3}], v[{XB+4*s}:{XB+4*s+3}], {c}")
                if late and em == 2 and s == NS - 2: perm_pair(raw, frag, NS - 1, j)
        A("s_mov_b32 exec_lo, 0x00ff00ff")
        A("s_mov_b32 exec_hi, 0x00ff00ff")
        A("s_nop 2")
        for j in range(4):
            A(f"ds_write_b128 v4, v[{ACC+4*j}:{ACC+4*j+3}] offset:{L_RED + 512*j}")
        A("s_mov_b64 exec, -1")
        A("s_waitcnt lgkmcnt(0)")
        A("s_barrier                            ; B3")
        for w in range(2):
            A(f"ds_read2st64_b64 v[{16+4*w}:{19+4*w}], v6 offset0:{(L_RED + 4096*w)//512} offset1:{(L_RED + 4096*w + 2048)//512}")
        A("s_waitcnt lgkmcnt(1)")
        A("v_pk_add_f32 v[16:17], v[16:17], v[18:19]")
        A("s_waitcnt lgkmcnt(0)")
        A("v_pk_add_f32 v[20:21], v[20:21], v[22:23]")
        A("v_pk_add_f32 v[16:17], v[16:17], v[20:21]")
        A("v_and_or_b32 v16, v16, s48, v12")
        if not t1x: A("v_and_or_b32 v17, v17, s48, v12")
        A(f"buffer_store_dwordx2 v[16:17], v6, s[32:35], s46 offen{x1pol}")
        stamp(4)
        def owns():
            A("v_and_b32 v24, s48, v16")
            A("v_mov_b32 v25, v17" if t1x else "v_and_b32 v25, s48, v17")
        if skip and not (own and post): owns()
        NB = 4 if NS == 4 else 8
        pairs = [(s, p) for s in range(2) for p in range(4)]
        k = 0
        PKx = PK3 if (NS == 2 and PK3 is not None) else PK
        if KP and not post:
            A(f"s_waitcnt vmcnt({17 - 2*KP})")
            while k < KP: perm_pair(raw2, frag2, *pairs[k]); k += 1
        if prog:
            while 17 - 2*(k+1) >= PK:
                A(f"s_waitcnt vmcnt({17 - 2*(k+1)})")
                perm_pair(raw2, frag2, *pairs[k]); k += 1
        if not prog or 17 - 2*k > PK: A(f"s_waitcnt vmcnt({PKx})")
        def polls(x1ld=x1ld):
            if skip:
                for b in range(1, NB):
                    if not pre: A(f"s_xor_b32 s47, s46, {b*2048}")
                    A(f"buffer_load_dwordx2 v[{24+2*b}:{25+2*b}], v6, s[32:35], s{75+b if pre else 47} offen {x1ld}")
                if dum: A("buffer_load_dword v15, v6, s[32:35], s34 offen")
                return
            for b in range(NB):
                if b and b % 2 == 0: A(f"s_add_u32 s47, s45, {b*2048}")
                A(f"buffer_load_dwordx2 v[{24+2*b}:{25+2*b}], v6, s[32:35], {'s45' if b < 2 else 's47'} offen offset:{(b%2)*2048} {x1ld}")
        if prog:
            polls()
            while k < 8:
                A(f"s_waitcnt vmcnt({NB + 17 - 2*(k+1)})")
                perm_pair(raw2, frag2, *pairs[k]); k += 1
            A(f"s_branch L_x1chk{sfx}")
        if post:
            polls()
            if skip and own: owns()
            while 17 - 2*(k+1) >= PKx: perm_pair(raw2, frag2, *pairs[k]); k += 1
            A(f"s_branch L_x1chk{sfx}")
            LB("L_x1re" + sfx)
            A(f"s_cmp_ge_u32 s49, {NF}")
            A(f"s_cbranch_scc1 L_x1no{sfx}")
        if xr: stamp(1)
        if x1f is not None:
            if xr: stamp(7)
            polls(x1f)
            A(f"s_branch L_x1chk{sfx}")
        LB("L_x1poll" + sfx)
        if xr: stamp(7)
        polls()
        LB("L_x1chk" + sfx)
        A("s_add_u32 s49, s49, 1")
        A(f"s_waitcnt vmcnt({1 if dum else 0})")
        r0 = 26 if skip else 24
        rs = list(range(r0, 24+2*NB, 2 if t1x else 1))
        for r in rs: A(f"v_xor_b32 v{r}, s54, v{r}")
        A(f"v_or3_b32 v8, v{rs[0]}, v{rs[1]}, v{rs[2]}")
        rs = rs[3:]
        while len(rs) > 1: A(f"v_or3_b32 v8, v8, v{rs[0]}, v{rs[1]}"); rs = rs[2:]
        if rs: A(f"v_or_b32 v8, v8, v{rs[0]}")
        if sdwa: A("v_cmp_ne_u32_sdwa vcc, v8, 0 src0_sel:BYTE_0 src1_sel:DWORD")
        else:
            A("v_and_b32 v8, 0xff, v8")
            A("v_cmp_ne_u32 vcc, 0, v8")
        A("s_cbranch_vccnz L_x1" + ("re" if post else "no") + sfx)
        LB("L_x1ok" + sfx)
        stamp(5)
        if NB == 8:
            A("v_pk_add_f32 v[24:25], v[24:25], v[32:33]")
            A("v_pk_add_f32 v[26:27], v[26:27], v[34:35]")
            A("v_pk_add_f32 v[28:29], v[28:29], v[36:37]")
            A("v_pk_add_f32 v[30:31], v[30:31], v[38:39]")
        S = []
        def B(s): S.append("  " + s)
        S.append("L_x1no" + sfx + ":")
        if not post:
            B(f"s_cmp_lt_u32 s49, {NF}")
            B("s_cbranch_scc1 L_x1poll" + sfx)
        B("v_lshlrev_b32 v8, 1, v6")
        B("s_lshl_b32 s56, s20, 15")
        B("s_add_u32 s56, s56, %d" % O_EX1)
        B(f"s_cmp_lg_u32 s49, {NF}")
        B("s_cbranch_scc1 L_x1ns" + sfx)
        B("v_and_b32 v96, s48, v16")
        B("v_mov_b32 v97, v17" if t1x else "v_and_b32 v97, s48, v17")
        B("v_mov_b32 v98, s40")
        B("v_mov_b32 v99, s40")
        B("s_lshl_b32 s47, s21, 12")
        B("s_add_u32 s47, s47, s56")
        B("buffer_store_dwordx4 v[96:99], v8, s[32:35], s47 offen sc1")
        B("s_waitcnt vmcnt(0)")
        S.append("L_x1ns" + sfx + ":")
        if skip:
            B("s_lshl_b32 s47, s21, 12")
            B("s_add_u32 s56, s56, s47")
        for b in range(NB):
            if skip:
                B(f"s_xor_b32 s47, s56, {b*4096}")
                B(f"buffer_load_dwordx4 v[{96+4*b}:{99+4*b}], v8, s[32:35], s47 offen sc1")
            else:
                B(f"buffer_load_dwordx4 v[{96+4*b}:{99+4*b}], v8, s[32:35], s56 offen sc1")
                B("s_add_u32 s56, s56, 4096")
        B("s_waitcnt vmcnt(0)")
        B("v_mov_b32 v8, 0")
        for b in range(NB):
            B(f"v_xor_b32 v{98+4*b}, s40, v{98+4*b}")
            B(f"v_xor_b32 v{99+4*b}, s40, v{99+4*b}")
            B(f"v_or3_b32 v8, v8, v{98+4*b}, v{99+4*b}")
            B(f"v_mov_b32 v{24+2*b}, v{96+4*b}")
            B(f"v_mov_b32 v{25+2*b}, v{97+4*b}")
        B("v_cmp_ne_u32 vcc, 0, v8")
        B("s_cbranch_vccz L_x1ok" + sfx)
        B("s_cmp_lt_u32 s49, %d" % SPIN)
        B("s_cbranch_scc1 L_x1poll" + sfx)
        B("s_branch L_x1ok" + sfx)
        slow.extend(S)
        return k
    ka = cpath(4, "a", D, DWA or D, BX)
    LB("L_h")
    A("v_pk_add_f32 v[24:25], v[24:25], v[28:29]")
    A("v_pk_add_f32 v[26:27], v[26:27], v[30:31]")
    if cz4:
        for i in range(4): A(f"v_cvt_pk_bf16_f32 v{24+i}, 0, v{24+i}" + ("       ; rounded to bf16 in the upper half" if i == 0 else ""))
        A("v_cndmask_b32 v18, v24, v26, s[22:23]  ; gate")
        A("v_cndmask_b32 v19, v25, v27, s[22:23]")
    elif skip:
        A("v_cvt_pk_bf16_f32 v18, v24, v25")
        A("v_cvt_pk_bf16_f32 v19, v26, v27")
        A("v_cndmask_b32 v8, v18, v19, s[22:23]  ; gate")
        A("v_cndmask_b32 v12, v19, v18, s[22:23] ; up")
    else:
        A("v_cvt_pk_bf16_f32 v8, v24, v25")
        A("v_cvt_pk_bf16_f32 v12, v26, v27")
    if not cz4:
        A("v_lshlrev_b32 v18, 16, v8")
        A("v_and_b32 v19, 0xffff0000, v8")
    A("v_pk_mul_f32 v[20:21], v[18:19], s[50:51]")
    A("v_exp_f32 v20, v20")
    A("v_exp_f32 v21, v21")
    A("v_cndmask_b32 v14, v26, v24, s[22:23]  ; up" if cz4 else "v_lshlrev_b32 v14, 16, v12")
    A("v_pk_add_f32 v[20:21], v[20:21], 1.0 op_sel_hi:[1,0]")
    A("v_rcp_f32 v20, v20")
    A("v_rcp_f32 v21, v21")
    A("v_cndmask_b32 v15, v27, v25, s[22:23]" if cz4 else "v_and_b32 v15, 0xffff0000, v12")
    A("v_pk_mul_f32 v[18:19], v[18:19], v[20:21]")
    if cz:
        A("v_cvt_pk_bf16_f32 v18, 0, v18")
        A("v_cvt_pk_bf16_f32 v19, 0, v19")
    else:
        A("v_cvt_pk_bf16_f32 v8, v18, v19        ; silu")
        A("v_lshlrev_b32 v18, 16, v8")
        A("v_and_b32 v19, 0xffff0000, v8")
    A("v_pk_mul_f32 v[18:19], v[18:19], v[14:15]")
    A("v_cvt_pk_bf16_f32 v8, v18, v19        ; h")
    A(f"ds_write_b32 v7, v8 offset:{L_HB}")
    for k in range(ka, 8): perm_pair(raw2, frag2, *divmod(k, 4))
    A("s_waitcnt lgkmcnt(0)")
    A("s_barrier                            ; B4")
    for s in range(2):
        A(f"ds_read_b128 v[{HA+4*s}:{HA+4*s+3}], v13 offset:{L_HB + 512*s}")
    for s in range(2):
        A(f"s_waitcnt lgkmcnt({1-s})")
        for j in range(4):
            c = "0" if s == 0 else f"v[{ACC+4*j}:{ACC+4*j+3}]"
            A(f"v_mfma_f32_16x16x32_bf16 v[{ACC+4*j}:{ACC+4*j+3}], v[{HA+4*s}:{HA+4*s+3}], v[{frag2(s,j)}:{frag2(s,j)+3}], {c}")
    A("s_mov_b32 exec_lo, -1")
    A("s_mov_b32 exec_hi, 0")
    A("s_nop 2")
    for r in range(4):
        for j in range(4):
            if t2 and (j & 1 or (t2 == 1 and j)): A(f"v_mov_b32 v{20+4*r+j}, v{ACC+4*j+r}")
            else: A(f"v_and_or_b32 v{20+4*r+j}, v{ACC+4*j+r}, s48, v9")
        A(f"buffer_store_dwordx4 v[{20+4*r}:{23+4*r}], v11, s[32:35], s{83+r if pre and r else 52} offen sc1")
        if r < 3 and not pre: A("s_add_u32 s52, s52, %d" % (32*X2S))
    stamp(6)
    if wb:
        A("s_lshl_b32 s44, s23, 2")
        A("s_add_u32 s44, s44, s3")
        A(f"s_cmp_lg_u32 s44, {4*wb[0] + 3}")
        A("s_cbranch_scc1 L_nwb")
        if wb[2]: A(f"s_sleep {wb[2]}")
        A(f"buffer_wbl2 {wb[1]}")
        LB("L_nwb")
    if not (nob5 or b4): A("s_waitcnt vmcnt(0)")
    if not b4: A("s_barrier                            ; B5")
    if not xr: stamp(7)
    if stamps: A("s_branch L_fin")
    else: A("s_endpgm")

    def rsetup():
        A("s_mov_b64 s[32:33], s[18:19]")
        A("s_mov_b32 s34, %d" % WS_REC)
        A("s_mov_b32 s35, 0x20000")
        A("s_mov_b64 s[36:37], s[14:15]")
        A("s_mov_b32 s38, 524288")
        A("s_mov_b32 s39, 0x20000")
        A("v_and_b32 v4, 7, v0")
        if stamps:
            A("s_mov_b32 s59, 0")
            A("s_mov_b32 s49, 0")
    LB("L_route")
    rsetup()
    A("s_and_b32 s45, s52, 7")
    A("s_lshl_b32 s46, s45, 3")
    A("s_lshr_b32 s52, s52, 3               ; batch")
    A("s_add_u32 s46, s46, s52")
    if ST:
        A(f"s_lshr_b32 s47, s46, {SG}")
        A(f"s_mul_i32 s47, s47, {ST - (8 << SG)}")
    A("s_mul_i32 s46, s46, %d" % LS)
    if ST: A("s_add_u32 s46, s46, s47")
    A("s_add_u32 s46, s46, %d               ; slot" % O_IDX)
    if nodup: A("s_or_b32 s46, s46, s56")
    A("s_lshl_b32 s45, s45, 2")
    if NR > 1 or full: A("v_mul_u32_u24 v5, %d, v0             ; replica offset" % (8 if full else REPS))
    if ipf:
        A("s_mov_b64 exec, 0xff")
        A("buffer_load_dword v13, v5, s[32:35], s46 offen sc1")
        A("s_mov_b64 exec, -1")
    A("v_lshrrev_b32 v10, 5, v0")
    A("v_bfe_u32 v11, v0, 4, 1")
    A("v_lshl_add_u32 v10, v11, 1, v10")
    A("v_add_u32 v10, s45, v10")
    A("v_xor_b32 v10, 31, v10")
    for t in range(4):
        for hlf in range(2):
            A(f"s_waitcnt vmcnt({7 - 2*t - hlf + (1 if ipf else 0)})")
            for k in range(4):
                c = "0" if (hlf == 0 and k == 0) else f"v{6+t}"
                A(f"v_dot2_f32_bf16 v{6+t}, v{XR+8*t+4*hlf+k}, v{16+4*hlf+k}, {c}")
    A("s_waitcnt lgkmcnt(0)")
    A("s_add_u32 s40, s40, 8")
    A("s_nop 0")
    A("v_permlane32_swap_b32 v6, v7")
    A("v_permlane32_swap_b32 v8, v9")
    A("v_add_f32 v6, v6, v7")
    A("v_add_f32 v8, v8, v9")
    A("s_nop 1")
    A("v_permlane16_swap_b32 v6, v8")
    A("v_add_f32 v6, v6, v8")
    A("s_nop 1")
    A("v_add_f32_dpp v6, v6, v6 quad_perm:[1,0,3,2] row_mask:0xf bank_mask:0xf")
    A("s_nop 1")
    A("v_add_f32_dpp v6, v6, v6 quad_perm:[2,3,0,1] row_mask:0xf bank_mask:0xf")
    A("s_nop 1")
    A("v_add_f32_dpp v6, v6, v6 row_half_mirror row_mask:0xf bank_mask:0xf")
    A("s_nop 1")
    A("v_add_f32_dpp v6, v6, v6 row_mirror row_mask:0xf bank_mask:0xf")
    A("v_cvt_pk_bf16_f32 v7, v6, v6")
    A("v_and_b32 v7, 0xffff0000, v7          ; r (bf16)")
    A("v_ashrrev_i32 v6, 31, v7")
    A("v_or_b32 v6, 0x80000000, v6")
    A("v_xor_b32 v6, v6, v7")
    A("v_cmp_o_f32 vcc, v7, v7")
    A("v_and_b32 v6, 0xffff0000, v6")
    A("s_nop 0")
    A("v_cndmask_b32 v6, 0, v6, vcc")
    A("v_or_b32 v6, v10, v6")
    A("v_mov_b32 v7, v6")
    A("s_nop 1")
    A("v_permlane16_swap_b32 v6, v7")
    A("v_max_u32 v6, v6, v7")
    A("v_mov_b32 v7, v6")
    A("s_nop 1")
    A("v_permlane32_swap_b32 v6, v7")
    A("v_max_u32 v6, v6, v7")
    A("v_mov_b32 v7, s40")
    if rlag: A(f"s_sleep {rlag}")
    A("s_mov_b64 exec, 0x%x" % ((1 << (LS // 8 if full else NR)) - 1))
    if NR > 1 or full: A(f"buffer_store_dwordx2 v[6:7], v5, s[32:35], s46 offen {rpol}")
    else: A(f"buffer_store_dwordx2 v[6:7], off, s[32:35], s46 {rpol}")
    A("s_mov_b64 exec, -1")
    A("s_barrier                            ; B0b")
    stamp(1)
    A("s_setprio 0")
    A("s_cmp_eq_u32 s3, 4")
    A("s_cbranch_scc1 L_r4")
    A("s_endpgm")
    if align: L.append(".p2align 12" if not (D0 or pace) else ".p2align 6")
    LB("L_cb")
    kb = cpath(2, "b", D3, D3W, BX3)
    assert ka == kb
    A("s_branch L_h")
    LB("L_cc")
    if LBR == 16: stamp(2)
    for n in range(CW): w2load(n)
    for d in range(st["done"]):
        A(f"s_waitcnt vmcnt({LBR - 8 - 8*d + CW})")
        perms(raw, frag, d)
    if FK:
        A(f"s_waitcnt vmcnt({LBR - FK + CW})")
        A(f"ds_write_b32 v12, v12 offset:{L_FLAG + (-1 if uf else 3)}")
    A("s_barrier                            ; BX")
    for n in range(LBR, 16): w1load(n)
    if LBR < 16: stamp(2)
    for n in range(CW, BX3): w2load(n)
    A("s_branch L_bx")

    def idload():
        A(f"buffer_load_dwordx4 v[{IDR}:{IDR+3}], v14, s[28:31], s53 offen{xpol}")
        A(f"buffer_load_dwordx4 v[{IDR+4}:{IDR+7}], v14, s[28:31], s53 offen offset:1024{xpol}")
    def idconv():
        for r in range(IDR, IDR+8):
            A(f"v_lshlrev_b32 v16, 16, v{r}")
            A(f"v_and_b32 v17, 0xffff0000, v{r}")
            A("v_pk_fma_f32 v[16:17], v[16:17], 0, v[16:17] op_sel_hi:[1,0,1]")
            A(f"v_cvt_pk_bf16_f32 v{r}, v16, v17    ; x + x*0")
    def psetup():
        A("s_lshl_b32 s53, s2, 11")
        A("v_mul_u32_u24 v12, %d, v0            ; poll offset" % LS)
        if ST:
            A(f"v_lshrrev_b32 v11, {SG}, v0")
            A(f"v_mul_u32_u24 v11, {ST - (8 << SG)}, v11")
            A("v_add_u32 v12, v11, v12")
        if NR == 1: A("s_movk_i32 s47, %d                 ; the scores" % O_IDX)
        else:
            if NR < 8:
                A(f"s_and_b32 s47, s22, {NR - 1}")
                A("s_mul_i32 s47, s47, %d" % REPS)
            else: A("s_mul_i32 s47, s22, %d" % REPS)
            A("s_add_u32 s47, s47, %d               ; this group's replica" % O_IDX)
        A("v_lshrrev_b32 v11, 3, v0")
        A("s_lshr_b32 s45, s21, 1")
        A("s_sub_u32 s46, 10, s57")
        A("s_lshl_b32 s45, s45, s46")
        A("s_lshl_b32 s48, s20, 14")
        A("s_lshl_b32 s46, s21, 11")
        A("s_add_u32 s48, s48, s46")
        A("s_add_u32 s48, s48, %d               ; own L2-local block" % O_EX1F)
        A("s_lshr_b32 s51, s2, 5")
        if ldr:
            A("s_getreg_b32 s42, hwreg(HW_REG_XCC_ID, 0, 3)")
            A("v_lshlrev_b32 v13, 3, v0")
            A("s_lshl_b32 s42, s42, %d" % (12 if (arr or rk) else {16: 10, 32: 11}[NC] if mc else 8))
            A("s_add_u32 s42, s42, %d               ; this die's copy of the keys" % O_LDR)
    LB("L_r")
    A("s_waitcnt lgkmcnt(0)")
    A("s_load_dword s40, s[18:19], 0        ; epoch")
    A("s_mov_b64 s[28:29], s[4:5]")
    rsetup()
    stamp(1)
    LB("L_r4")
    psetup()
    if ptl:
        A("s_cmp_gt_u32 s57, s58")
        A("s_cbranch_scc0 L_npt")
    for i in range(NC // 16): A(f"buffer_load_dwordx4 v[{16+4*i}:{19+4*i}], v14, s[32:35], s42 offen offset:{1024*i}")
    if ptl: LB("L_npt")
    if arr or rk: A("buffer_load_dword v24, v13, s[32:35], s42 offen offset:2048")
    A("s_cmp_eq_u32 s58, 1")
    A("s_cbranch_scc1 L_rr")
    if uf:
        A("s_cmp_eq_u32 s57, 0")
        A("s_cbranch_scc1 L_nid")
        idload()
        LB("L_nid")
    A("v_mov_b32 v8, 0")
    A("s_mov_b32 s49, 0")
    LB("L_fwait")
    if fsleep: A(f"s_sleep {fsleep}")
    A(f"ds_read_b32 v9, v8 offset:{L_FLAG}")
    A("s_add_u32 s49, s49, 1")
    A("s_cmp_ge_u32 s49, %d" % SPIN)
    A("s_waitcnt lgkmcnt(0)")
    A("v_cmp_eq_u32 vcc, 0, v9")
    A("s_cbranch_scc1 L_fok")
    A("s_cbranch_vccnz L_fwait")
    LB("L_fok")
    if not (idl or uf): idload()
    A("s_add_u32 s40, s40, 8")
    A("s_cmp_eq_u32 s57, 1")
    A("s_cbranch_scc1 L_lead")
    if SF - RF and not uf: A(f"s_sleep {SF - RF}")
    if not (idl or uf): A("s_branch L_sp0")
    LB("L_rr")
    idload()
    LB("L_sp0")
    if RF: A(f"s_sleep {RF}")
    stamp(2)
    A("s_mov_b32 s49, 0")
    if sib is not None:
        A(f"s_getreg_b32 s41, hwreg(HW_REG_HW_ID, {8 + sib}, 1)")
        A(f"s_mul_i32 s46, s41, {64*(NC-1)}")
        A("s_add_u32 s46, s46, s42")
        A("s_lshl_b32 s41, s41, 7")
        A("s_sub_u32 s41, 64, s41")
    else: A("s_mov_b32 s46, s42")
    LB("L_spoll")
    if ssl: A(f"s_sleep {ssl}")
    A("s_load_dwordx16 s[76:91], s[18:19], s46")
    A("s_add_u32 s46, s46, %s               ; the scalar cache keeps what it has seen: another copy next time" % ("64" if sib is None else "s41"))
    A("s_add_u32 s49, s49, 1")
    A(f"s_cmp_gt_u32 s49, {NSP}")
    A("s_cbranch_scc1 L_ip0")
    A("s_waitcnt lgkmcnt(0)")
    A("s_xor_b32 s43, s77, s40")
    for i in ((3, 4, 7) if chk2 else range(1, 8)):
        A(f"s_xor_b32 s44, s{77+2*i}, s40")
        A("s_or_b32 s43, s43, s44")
    A("s_cbranch_scc1 L_spoll")
    stamp(3)
    if stamps: A("s_mov_b32 s59, s49")
    A("s_mov_b32 exec_lo, 0x01010101")
    A("s_mov_b32 exec_hi, 0x01010101")
    for i in range(8):
        A(f"v_mov_b32 v6, s{76+2*i}")
        A("s_lshl_b64 exec, exec, 1" if i < 7 else "s_mov_b64 exec, -1")
    A("s_branch L_sok")
    LB("L_lead")
    if idl: idload()
    if FK and not uf:
        A("s_mov_b32 s49, 0")
        LB("L_fw2")
        if fsleep: A(f"s_sleep {fsleep}")
        A(f"ds_read_b32 v9, v8 offset:{L_FLAG + 4}")
        A("s_add_u32 s49, s49, 1")
        A("s_cmp_ge_u32 s49, %d" % SPIN)
        A("s_waitcnt lgkmcnt(0)")
        A("v_cmp_eq_u32 vcc, 0, v9")
        A("s_cbranch_scc1 L_fo2")
        A("s_cbranch_vccnz L_fw2")
        LB("L_fo2")
    if LF0 is not None:
        A(f"s_cmp_eq_u32 s22, {PERM[0]}")
        A("s_cbranch_scc1 L_lf0")
        A(f"s_sleep {LF - LF0}")
        LB("L_lf0")
        A(f"s_sleep {LF0}")
    elif LF: A(f"s_sleep {LF}")
    stamp(2)
    LB("L_ip0")
    A("s_waitcnt lgkmcnt(0)")
    A("s_mov_b32 s49, 0")
    if not is0: A("s_branch L_ipl")
    LB("L_ipoll")
    if IS: A(f"s_sleep {IS}")
    if not is0: LB("L_ipl")
    A(f"buffer_load_dwordx2 v[8:9], v12, s[32:35], s47 offen sc1")
    LB("L_ichk")
    A("s_add_u32 s49, s49, 1")
    A("s_cmp_ge_u32 s49, %d" % SPIN)
    A(f"s_waitcnt vmcnt(0)")
    A(f"v_cmp_ne_u32 vcc, s40, v9")
    A("s_cbranch_scc1 L_iok")
    A("s_cbranch_vccnz L_ipoll")
    LB("L_iok")
    stamp(3)
    if stamps: A("s_mov_b32 s59, s49")
    A("v_max_u32_dpp v8, v8, v8 row_ror:8 row_mask:0xf bank_mask:0xf")
    A("v_mov_b32 v9, v8")
    if ldr:
        A("v_mov_b32 v7, s40")
        A("s_nop 0")
    else:
        A("s_mov_b32 m0, %d" % L_XS)
        A("s_cmp_eq_u32 s57, 1")
    A("v_permlane16_swap_b32 v8, v9")
    A("v_max_u32 v8, v8, v9")
    A("v_mov_b32 v9, v8")
    A("s_nop 1")
    A("v_permlane32_swap_b32 v8, v9")
    A("v_max_u32 v6, v8, v9")
    if ldr:
        if rk:
            A("v_mov_b32 v8, 0")
            A("buffer_store_dword v8, off, s[32:35], s42 offset:2048")
        if mc:
            for i in range(NC // 8): A(f"buffer_store_dwordx2 v[6:7], v13, s[32:35], s42 offen offset:{512*i}")
        else:
            A("s_mov_b64 exec, 0xff")
            A("buffer_store_dwordx2 v[6:7], v13, s[32:35], s42 offen")
            A("s_mov_b64 exec, -1")
        if xpf:
            A("v_and_b32 v15, 31, v6")
            A("v_xor_b32 v15, 31, v15")
            A("v_lshl_add_u32 v15, v4, 5, v15")
            A("v_lshlrev_b32 v15, 11, v15")
            A("v_lshl_add_u32 v15, v11, 7, v15")
            A("buffer_load_dword v32, v15, s[28:31], 0 offen")
            A("buffer_load_dword v33, v15, s[28:31], 0 offen offset:1024")
        LB("L_sok")
        A("s_mov_b32 m0, %d" % L_XS)
        A("s_cmp_eq_u32 s57, 1")
    A("v_and_b32 v10, 31, v6")
    A("v_xor_b32 v10, 31, v10")
    A("v_lshl_add_u32 v10, v4, 5, v10       ; row")
    A("v_lshlrev_b32 v10, 11, v10")
    A("v_lshl_add_u32 v10, v11, 4, v10      ; + chunk*16")
    for i in range(8):
        if i == 4: A("s_cbranch_scc1 L_dmadone")
        A(f"buffer_load_dwordx4 v10, s[28:31], s45 offen{xpol} lds")
        if i < 7:
            A("s_mov_b32 m0, %d" % (L_XS + 1024*(i+1)))
            A("v_add_u32 v10, 128, v10")
    LB("L_dmadone")
    if not early_id: idload()
    pto = "s48" if pt else "s56"
    if not pt: A("s_mov_b32 s56, 0x40000000")
    A(f"buffer_load_dwordx4 v[24:27], v14, s[32:35], {pto} offen {ptp}")
    A(f"buffer_load_dwordx4 v[28:31], v14, s[32:35], {pto} offen offset:1024 {ptp}")
    A("s_barrier                            ; BX")
    A("v_readlane_b32 s55, v6, s51")
    A("s_and_b32 s46, s2, 31")
    A("s_and_b32 s54, s55, 31")
    A("s_xor_b32 s54, s54, 31")
    A("s_cmp_eq_u32 s54, s46")
    A("s_cselect_b32 s56, 0x40000000, s53")
    if ldr:
        A("s_waitcnt vmcnt(10)")
        A("s_cmp_eq_u32 s57, 0")
        A("s_cbranch_scc1 L_idw")
        A("s_waitcnt vmcnt(6)")
        LB("L_idw")
        idconv()
    def idstore():
        A(f"buffer_store_dwordx4 v[{IDR}:{IDR+3}], v14, s[36:39], s56 offen{outpol}")
        A(f"buffer_store_dwordx4 v[{IDR+4}:{IDR+7}], v14, s[36:39], s56 offen offset:1024{outpol}")
    if ids == 'bx': idstore()
    A("v_lshrrev_b32 v7, 5, v0")
    A("v_bfe_u32 v8, v0, 4, 1")
    A("v_lshl_add_u32 v7, v8, 1, v7         ; e")
    A("v_lshl_add_u32 v7, v4, 2, v7         ; 4*pos + e")
    A("s_lshl_b32 s45, s51, 5")
    A("s_add_u32 s45, s45, s54")
    A("s_lshl_b32 s45, s45, 5")
    A("s_add_u32 s45, s45, s46")
    A("s_lshl_b32 s45, s45, 5")
    A("v_add_u32 v7, s45, v7")
    A("v_lshlrev_b32 v7, 1, v7")
    A("buffer_load_ushort v9, v7, s[28:31], 0 offen")
    A(f"s_waitcnt vmcnt({5 if ids == 'bx' else 3})")
    A("s_barrier                            ; B2")
    stamp(4)
    if not early_id:
        A("s_waitcnt vmcnt(3)")
        idconv()
    A("s_lshr_b32 s44, s55, 16")
    A("s_xor_b32 s45, s44, 0xffff")
    A("s_and_b32 s44, s44, 0x7fff")
    A("s_cmp_lt_i32 s55, 0")
    A("s_cselect_b32 s44, s44, s45")
    A("s_lshl_b32 s44, s44, 16              ; r")
    A("v_mov_b32 v10, 0xbfb8aa3b")
    A("v_mul_f32 v10, s44, v10")
    A("v_exp_f32 v10, v10")
    A("s_and_b32 s41, s40, 0xff")
    A("v_add_f32 v10, 1.0, v10")
    A("v_rcp_f32 v10, v10")
    if ids == 'b2': idstore()
    A("s_barrier                            ; B3")
    if ids == 'b3':
        if idd: A(f"s_sleep {idd}")
        idstore()
    if not early_id:
        A(f"buffer_store_dwordx4 v[{IDR}:{IDR+3}], v14, s[36:39], s56 offen{outpol}")
        A(f"buffer_store_dwordx4 v[{IDR+4}:{IDR+7}], v14, s[36:39], s56 offen offset:1024{outpol}")
    A("v_cvt_pk_bf16_f32 v10, v10, v10")
    A("v_and_b32 v10, 0xffff0000, v10       ; sigmoid")
    A("s_mul_i32 s46, s2, %d" % X2S)
    A("s_add_u32 s46, s46, %d" % O_EX2)
    A("s_add_u32 s47, s46, 4096")
    A("s_mov_b32 s49, 0")
    A("s_mov_b32 s44, 0x00ff00ff")
    A("s_mov_b32 s45, 0x00ff00ff")
    A("s_waitcnt vmcnt(%d)" % (2 if ids in ('b2', 'b3') else 0))
    A("v_lshlrev_b32 v9, 16, v9             ; x")
    if cz: A("v_fma_f32 v9, v9, 0, v9              ; x + x*0")
    if arr:
        A("v_and_b32 v13, 31, v0")
        A("v_lshlrev_b32 v13, 2, v13")
        A("v_mov_b32 v12, s40")
        A("s_lshl_b32 s43, s23, 2")
        A("s_add_u32 s43, s43, s42")
        A("s_mov_b64 exec, 1")
    if mx: A("v_mov_b32 v13, 0")
    if rk:
        A("v_mov_b32 v12, 1")
        A("s_mov_b64 exec, 1")
    A("s_barrier                            ; B4")
    if rk:
        A("buffer_atomic_add v12, off, s[32:35], s42 offset:2048 sc0")
        A("s_mov_b64 exec, -1")
    if arr:
        A("buffer_store_dword v12, off, s[32:35], s43 offset:2048")
        A("s_mov_b64 exec, -1")
    if not b4: A("s_barrier")
    stamp(5)
    if ids == 'b4': idstore()
    if X20 is not None:
        A(f"s_cmp_eq_u32 s22, {PERM[0]}")
        A("s_cbranch_scc1 L_x20")
        A(f"s_sleep {x2d - X20}")
        LB("L_x20")
        if X20: A(f"s_sleep {X20}")
    elif rk:
        A("s_waitcnt vmcnt(0)")
        A("v_readfirstlane_b32 s43, v12")
        stamp(4)
        A("s_min_u32 s43, s43, 31")
        if stamps: A("s_mov_b32 s59, s43")
        A(f"s_mul_i32 s43, s43, {rk[1]}")
        A("s_lshr_b32 s43, s43, 4")
        A(f"s_sub_i32 s43, {rk[0]}, s43")
        A(f"s_max_i32 s43, s43, {rk[2]}")
        if len(rk) > 3: A(f"s_min_i32 s43, s43, {rk[3]}")
        LB("L_rk")
        A("s_sleep 1")
        A("s_sub_u32 s43, s43, 1")
        A("s_cmp_gt_i32 s43, 0")
        A("s_cbranch_scc1 L_rk")
    elif arr:
        LB("L_arr")
        if len(arr) > 2 and arr[2]: A(f"s_sleep {arr[2]}")
        A("buffer_load_dword v15, v13, s[32:35], s42 offen offset:2048 sc1")
        A("s_add_u32 s49, s49, 1")
        A(f"s_cmp_ge_u32 s49, {arr[0]}")
        A("s_waitcnt vmcnt(0)")
        A("v_cmp_ne_u32 vcc, s40, v15")
        A("s_cbranch_scc1 L_aok")
        A("s_cbranch_vccnz L_arr")
        LB("L_aok")
        if stamps: A("s_mov_b32 s59, s49")
        A("s_mov_b32 s49, 0")
        if arr[1]: A(f"s_sleep {arr[1]}")
        stamp(4)
    elif x2d: A(f"s_sleep {x2d}")
    if mx:
        MS = 76 if stamps else 60
        def ld(i):
            so = "s46" if i < 4 else "s47"
            A(f"buffer_load_dwordx4 v[{32+4*i}:{35+4*i}], v14, s[32:35], {so} offen offset:{(i%4)*1024} sc1")
        def chk(i):
            b = 32 + 4*i
            for r in range(b, b+4): A(f"v_xor_b32 v{r}, s41, v{r}")
            A(f"v_or3_b32 v15, v{b}, v{b+1}, v{b+2}")
            A(f"v_or_b32 v15, v15, v{b+3}")
            A(f"v_cmp_ne_u32_sdwa s[{MS+2*i}:{MS+2*i+1}], v15, v13 src0_sel:BYTE_0 src1_sel:DWORD")
        def anyleft():
            A(f"s_or_b64 s[42:43], s[{MS}:{MS+1}], s[{MS+2}:{MS+3}]")
            for i in range(2, 7): A(f"s_or_b64 s[42:43], s[42:43], s[{MS+2*i}:{MS+2*i+1}]")
        for i in range(7): ld(i)
        A("s_mov_b32 s49, 1")
        for i in range(7):
            A(f"s_waitcnt vmcnt({6-i})")
            chk(i)
            if i == 1: A("v_pk_add_f32 v[16:17], v[32:33], v[36:37]"); A("v_pk_add_f32 v[18:19], v[34:35], v[38:39]")
            if i >= 2: A(f"v_pk_add_f32 v[16:17], v[16:17], v[{32+4*i}:{33+4*i}]"); A(f"v_pk_add_f32 v[18:19], v[18:19], v[{34+4*i}:{35+4*i}]")
        anyleft()
        A("s_cbranch_scc0 L_x2ok")
        LB("L_x2poll")
        if x2s: A(f"s_sleep {x2s}")
        for i in range(7):
            A(f"s_mov_b64 exec, s[{MS+2*i}:{MS+2*i+1}]")
            A(f"s_cbranch_execz L_x2l{i}")
            ld(i)
            LB(f"L_x2l{i}")
        A("s_add_u32 s49, s49, 1")
        A("s_waitcnt vmcnt(0)")
        for i in range(7):
            A(f"s_mov_b64 exec, s[{MS+2*i}:{MS+2*i+1}]")
            A(f"s_cbranch_execz L_x2c{i}")
            chk(i)
            LB(f"L_x2c{i}")
        A("s_mov_b64 exec, -1")
        anyleft()
        A("s_cbranch_scc0 L_x2sum")
        A("s_cmp_lt_u32 s49, %d" % SPIN)
        A("s_cbranch_scc1 L_x2poll")
        LB("L_x2sum")
        A("v_pk_add_f32 v[16:17], v[32:33], v[36:37]"); A("v_pk_add_f32 v[18:19], v[34:35], v[38:39]")
        for i in range(2, 7):
            A(f"v_pk_add_f32 v[16:17], v[16:17], v[{32+4*i}:{33+4*i}]"); A(f"v_pk_add_f32 v[18:19], v[18:19], v[{34+4*i}:{35+4*i}]")
        A("s_nop 0")
    else:
        if pre:
            A("s_branch L_x2poll")
            LB("L_x2re")
            A("s_cmp_ge_u32 s49, %d" % SPIN)
            A("s_cbranch_scc1 L_x2ok")
        LB("L_x2poll")
        for i in range(7):
            so = "s46" if i < 4 else "s47"
            A(f"buffer_load_dwordx4 v[{32+4*i}:{35+4*i}], v14, s[32:35], {so} offen offset:{(i%4)*1024} sc1")
        A("s_add_u32 s49, s49, 1")
        for i in range(7):
            A(f"s_waitcnt vmcnt({6-i})")
            b = 32 + 4*i
            for r in range(b, b+4, {0: 1, 2: 2, 1: 4}[t2]): A(f"v_xor_b32 v{r}, s41, v{r}")
            if t2 == 2: A(f"v_or_b32 v15, v{b}, v{b+2}" if i == 0 else f"v_or3_b32 v15, v15, v{b}, v{b+2}")
            elif t2 == 1:
                if i == 1: A(f"v_or_b32 v15, v{b-4}, v{b}")
                elif i in (3, 5): A(f"v_or3_b32 v15, v15, v{b-4}, v{b}")
                elif i == 6: A(f"v_or_b32 v15, v15, v{b}")
            elif i == 0:
                A(f"v_or3_b32 v15, v{b}, v{b+1}, v{b+2}")
                A(f"v_or_b32 v15, v15, v{b+3}")
            else:
                A(f"v_or3_b32 v15, v15, v{b}, v{b+1}")
                A(f"v_or3_b32 v15, v15, v{b+2}, v{b+3}")
            if i:
                src = 32 if i == 1 else 16
                A(f"v_pk_add_f32 v[16:17], v[{src}:{src+1}], v[{b}:{b+1}]")
                A(f"v_pk_add_f32 v[18:19], v[{src+2}:{src+3}], v[{b+2}:{b+3}]")
        if sdwa: A("v_cmp_ne_u32_sdwa vcc, v15, 0 src0_sel:BYTE_0 src1_sel:DWORD")
        else:
            A("v_and_b32 v15, 0xff, v15")
            A("v_cmp_ne_u32 vcc, 0, v15")
        if pre: A("s_cbranch_vccnz L_x2re")
        else:
            A("s_cbranch_vccz L_x2ok")
            if x2s: A(f"s_sleep {x2s}")
            A("s_cmp_lt_u32 s49, %d" % SPIN)
            A("s_cbranch_scc1 L_x2poll")
    LB("L_x2ok")
    stamp(6)
    A("v_permlane32_swap_b32 v16, v17")
    A("v_permlane32_swap_b32 v18, v19")
    A("v_add_f32 v16, v16, v17")
    A("v_add_f32 v18, v18, v19")
    A("s_nop 1")
    A("v_permlane16_swap_b32 v16, v18")
    A("v_add_f32 v16, v16, v18")
    A("s_nop 1")
    A("v_add_f32_dpp v16, v16, v16 row_ror:8 row_mask:0xf bank_mask:0xf")
    A("s_mov_b64 exec, s[44:45]")
    if cz:
        A("v_cvt_pk_bf16_f32 v16, 0, v16")
        A("v_mul_f32 v16, v16, v10")
        A("v_cvt_pk_bf16_f32 v16, 0, v16         ; y*sigmoid")
        A("v_add_f32 v16, v9, v16               ; x + (x*0 + y*sigmoid)")
    else:
        A("v_cvt_pk_bf16_f32 v16, v16, v16")
        A("v_and_b32 v16, 0xffff0000, v16       ; y")
        A("v_mul_f32 v16, v16, v10")
        A("v_cvt_pk_bf16_f32 v16, v16, v16")
        A("v_and_b32 v16, 0xffff0000, v16       ; y*sigmoid")
        A("v_fma_f32 v16, v9, 0, v16            ; upd = x*0 + y")
        A("v_add_f32 v16, v9, v16")
    A("v_cvt_pk_bf16_f32 v16, v16, v16")
    A(f"buffer_store_short v16, v7, s[36:39], 0 offen{finpol}")
    A(f"s_cmp_lg_u32 s2, {epw}")
    A("s_cbranch_scc1 L_noep")
    A("v_mov_b32 v18, s40")
    A("s_mov_b64 exec, 1")
    A(f"buffer_store_dword v18, off, s[32:35], 0 {eppol}")
    LB("L_noep")
    stamp(7)
    LB("L_fin")
    if stamps:
        import diag
        if dg: diag.epilogue(A, LB, dg, nwg=256, invalid=())
        elif gamp: diag.gamp(A, LB, gamp)
        else:
            A("s_barrier")
            diag.dump(A, LB)
    LB("L_end")
    A("s_endpgm")
    L.extend(slow)
    body = "\n".join(L)
    pad = ".p2align 12\n.fill 832, 4, 0xbf800000            ; the kernel starts a 4 KB page (instruction prefetch stops at page ends)\n" if align else ""
    return f"""{HEAD}; @launch grid=(256,1,1) block=(384,1,1) lds={LDS_BYTES}
{DOC}.amdgcn_target "amdgcn-amd-amdhsa--gfx950"
.text
.globl {KN}
{pad}.p2align 8
.type {KN},@function
{KN}:
{body}
.section .rodata,"a"
.p2align 6
.amdhsa_kernel {KN}
  .amdhsa_next_free_vgpr 160
  .amdhsa_next_free_sgpr 96
  .amdhsa_accum_offset 160
  .amdhsa_group_segment_fixed_size 0
  .amdhsa_kernarg_size 64
  .amdhsa_user_sgpr_count 2
  .amdhsa_user_sgpr_kernarg_segment_ptr 1
  .amdhsa_system_sgpr_workgroup_id_x 1
  .amdhsa_float_denorm_mode_32 3
.end_amdhsa_kernel
"""
if __name__ == "__main__":
    import sys, json
    kw = json.loads(sys.argv[2]) if len(sys.argv) > 2 else {}
    open(sys.argv[1] if len(sys.argv) > 1 else "standalone__moe_arch_mod__sampling.s", "w").write(gen(**kw))
```
